```python
import torch

def _softmax(x, axis=-1):
    return torch.softmax(x, dim=axis)
def _gelu(x):
    return torch.nn.functional.gelu(x, approximate="tanh")
def _silu(x):
    return torch.nn.functional.silu(x)
def _sigmoid(x):
    return torch.sigmoid(x)
def _layernorm(x, axis=-1, eps=1e-5):
    m = x.mean(dim=axis, keepdim=True)
    v = x.var(dim=axis, keepdim=True, unbiased=False)
    return (x - m) / torch.sqrt(v + eps)
def _scatter_add(tgt, idx, src, axis=0):
    return tgt.clone().index_add_(axis, idx, src)
def _segment_sum(src, seg, n):
    out = torch.zeros((n,) + src.shape[1:], dtype=src.dtype)
    return out.index_add_(0, seg, src)
def _pad(x, pw):
    flat = tuple(v for pair in reversed(pw) for v in pair)
    return torch.nn.functional.pad(x, flat)

kernel_name = 'sequential_preLN__grouped_kv_mqa__glu_gated_glu__prompt'

def setup_inputs():

    _w = (lambda a: (lambda t: t.to(torch.bfloat16) if t.is_floating_point() else t)(torch.as_tensor(a)))
    def _A_setup():
        B, S, D, H = 1, 2048, 1024, 32
        Dh = D // H
        return {
            "x": _w((lambda *s: torch.randn(*s, dtype=torch.bfloat16) * 0.05)(B, S, D)),
            "wq": _w((lambda *s: torch.randn(*s, dtype=torch.bfloat16) * 0.05)(D, H * Dh)),
            "wk": _w((lambda *s: torch.randn(*s, dtype=torch.bfloat16) * 0.05)(D, Dh)),
            "wv": _w((lambda *s: torch.randn(*s, dtype=torch.bfloat16) * 0.05)(D, Dh)),
            "wo": _w((lambda *s: torch.randn(*s, dtype=torch.bfloat16) * 0.05)(H * Dh, D)),
        }
    _A_in = _A_setup()

    def _B_setup():
        B, S, D, F = 1, 2048, 1024, 3584
        return {
            "x": _w((lambda *s: torch.randn(*s, dtype=torch.bfloat16) * 0.05)(B, S, D)),
            "w_gate": _w((lambda *s: torch.randn(*s, dtype=torch.bfloat16) * 0.05)(D, F)),
            "w_up": _w((lambda *s: torch.randn(*s, dtype=torch.bfloat16) * 0.05)(D, F)),
            "w_down": _w((lambda *s: torch.randn(*s, dtype=torch.bfloat16) * 0.05)(F, D)),
        }
    _B_in = _B_setup()

    return {
        "A_x": _A_in["x"],
        "A_wq": _A_in["wq"],
        "A_wk": _A_in["wk"],
        "A_wv": _A_in["wv"],
        "A_wo": _A_in["wo"],
        "B_x": _B_in["x"],
        "B_w_gate": _B_in["w_gate"],
        "B_w_up": _B_in["w_up"],
        "B_w_down": _B_in["w_down"],
    }

def reference(A_x, A_wq, A_wk, A_wv, A_wo, B_x, B_w_gate, B_w_up, B_w_down):
    def _A_ref(x, wq, wk, wv, wo):
        B, S, D = x.shape
        H = 32
        Dh = D // H
        q = (lambda x, *d: x.permute(*d))((x @ wq).reshape(B, S, H, Dh), 0, 2, 1, 3)
        k = x @ wk
        v = x @ wv
        scores = torch.einsum("bhqd,bkd->bhqk", q, k) * (Dh ** -0.5)
        p = _softmax(scores, axis=-1)
        o = torch.einsum("bhqk,bkd->bhqd", p, v)
        return (lambda x, *d: x.permute(*d))(o, 0, 2, 1, 3).reshape(B, S, H * Dh) @ wo

    def _B_ref(x, w_gate, w_up, w_down):
        g = torch.einsum("bsd,df->bsf", x, w_gate)
        u = torch.einsum("bsd,df->bsf", x, w_up)
        h = _sigmoid(g) * u
        return torch.einsum("bsf,fd->bsd", h, w_down)

    x = A_x
    h = x + _A_ref(_layernorm(x, axis=-1), A_wq, A_wk, A_wv, A_wo)
    h2 = h + _B_ref(_layernorm(h, axis=-1), B_w_gate, B_w_up, B_w_down)
    return h2
```

```python
import re

REG_RE = re.compile(r'^(-|abs\(|\|)*([vas])(\d+)\)?\|?$')
RNG_RE = re.compile(r'^(-|abs\(|\|)*([vas])\[(\d+):(\d+)\]\)?\|?$')
TRANS = ('v_exp_', 'v_log_', 'v_rcp_', 'v_rsq_', 'v_sqrt_', 'v_sin_', 'v_cos_')


def regs_of(tok):
    tok = tok.strip()
    m = REG_RE.match(tok)
    if m:
        return [m.group(2) + m.group(3)]
    m = RNG_RE.match(tok)
    if m:
        return [m.group(2) + str(i) for i in range(int(m.group(3)), int(m.group(4)) + 1)]
    if tok in ('vcc', 'vcc_lo', 'vcc_hi'):
        return ['vcc']
    if tok in ('exec', 'exec_lo', 'exec_hi'):
        return ['exec']
    if tok == 'm0':
        return ['m0']
    return []


class Ins:
    def __init__(self, text, rd=(), wr=(), awr=(), nowaw=False, pend_rd=()):
        self.text = text
        t = text.split(';')[0].strip()
        parts = t.split(None, 1)
        self.op = op = parts[0]
        rest = parts[1] if len(parts) > 1 else ''
        toks = [x.strip() for x in rest.split(',')]
        mods = []
        if toks and toks[-1]:
            l = toks[-1].split()
            toks[-1] = l[0]
            mods = l[1:]
        self.toks, self.mods = toks, mods
        R = [regs_of(x) for x in toks]
        self.rd, self.wr, self.awr = set(), set(), set()
        self.q = None
        self.passes = 0
        self.kind = 'salu'
        self.mf_ab, self.mf_c = set(), []
        self.store_data = set()
        self.dpp = any(m.startswith(('row_', 'quad_perm', 'wave_', 'bank_mask')) for m in mods) or op.endswith('_dpp')
        flat = lambda L: [r for x in L for r in x]
        if op.startswith('v_mfma'):
            self.kind = 'mfma'
            self.passes = 8 if '32x32x16' in op else 4 if '16x16x32' in op else None
            assert self.passes, op
            self.wr = set(R[0]); self.mf_d = R[0]
            self.mf_ab = set(R[1] + R[2]); self.mf_c = R[3]
            self.rd = self.mf_ab | set(self.mf_c)
        elif op.startswith('v_'):
            self.kind = 'trans' if op.startswith(TRANS) else 'valu'
            if op.startswith(('v_permlane16_swap', 'v_permlane32_swap', 'v_swap')):
                self.wr = set(R[0] + R[1]); self.rd = set(R[0] + R[1])
            elif op.startswith(('v_add_co', 'v_sub_co', 'v_addc_co', 'v_subb_co')):
                self.wr = set(R[0] + R[1]); self.rd = set(flat(R[2:]))
            elif op == 'v_nop':
                pass
            else:
                self.wr = set(R[0]); self.rd = set(flat(R[1:]))
                if op.startswith(('v_fmac', 'v_dot2c', 'v_writelane', 'v_mac')) or self.dpp or any('PRESERVE' in m for m in mods) \
                        or any(m.startswith('op_sel') for m in mods) and op.startswith('v_cvt'):
                    self.rd |= set(R[0])
        elif op.startswith('ds_'):
            self.kind = 'ds'; self.q = 'lg'
            if op.startswith(('ds_read', 'ds_bpermute', 'ds_permute', 'ds_swizzle')) or '_rtn' in op:
                self.awr = set(R[0]); self.rd = set(flat(R[1:]))
            else:
                self.rd = set(flat(R))
        elif op.startswith('buffer_') or op.startswith('global_'):
            self.kind = 'vmem'; self.q = 'vm'
            if op in ('buffer_inv', 'buffer_wbl2'):
                pass
            elif 'lds' in mods:
                self.rd = set(flat(R)) | {'m0'}; self.dma = True
            elif '_load' in op:
                self.awr = set(R[0]); self.rd = set(flat(R[1:]))
            elif '_atomic' in op and 'sc0' in mods:
                self.awr = set(R[0]); self.rd = set(flat(R))
            else:
                self.rd = set(flat(R))
                if op.endswith(('x3', 'x4')):
                    self.store_data = set(R[0] if op.startswith('buffer_') else R[1])
        elif op.startswith(('s_load', 's_buffer_load', 's_memtime', 's_memrealtime')):
            self.kind = 'smem'; self.q = 'sm'
            self.awr = set(R[0]); self.rd = set(flat(R[1:]))
        elif op.startswith(('s_cmp', 's_bitcmp')):
            self.rd = set(flat(R))
        elif op.startswith(('s_waitcnt', 's_barrier', 's_nop', 's_setprio', 's_endpgm', 's_sleep', 's_branch')):
            pass
        elif op.startswith('s_cbranch'):
            if 'vcc' in op: self.rd = {'vcc'}
        elif op.startswith('s_'):
            self.wr = set(R[0]); self.rd = set(flat(R[1:]))
            if 'saveexec' in op:
                self.wr |= {'exec'}
            if op.startswith(('s_addk', 's_mulk', 's_cmov', 's_bitset')):
                self.rd |= set(R[0])
        else:
            raise ValueError('unknown op ' + text)
        self.rd |= set(rd); self.wr |= set(wr); self.awr |= set(awr)
        self.pend_rd = set(pend_rd)
        self.nowaw = nowaw
        self.wait_vm = None; self.wait_lg = None; self.nops = 0


class Label:
    def __init__(self, name): self.name = name


class Loop:
    def __init__(self, label, count, body, align=True):
        self.label, self.count, self.body, self.align = label, count, body, align


class Raw:
    def __init__(self, text): self.text = text


class Fence:
    pass


class Seg:
    def __init__(self): self.body = []


class Prog:
    def __init__(self):
        self.paths = None
        self.items = []
        self.cur = self.items
        self.stack = []

    def __call__(self, text, **kw):
        for line in text.strip().split('\n'):
            line = line.strip()
            if not line or line.startswith(';'):
                continue
            if line.endswith(':'):
                self.cur.append(Label(line[:-1]))
            else:
                self.cur.append(Ins(line, **kw))

    def add(self, x):
        if isinstance(x, str):
            self(x)
        elif isinstance(x, (list, tuple)):
            for y in x: self.add(y)
        else:
            self.cur.append(x)

    def begin_loop(self, label, count, align=True):
        lp = Loop(label, count, [], align)
        self.cur.append(lp)
        self.stack.append(self.cur)
        self.cur = lp.body

    def end_loop(self):
        self.cur = self.stack.pop()

    def fence(self):
        self.cur.append(Fence())

    def trace(self, items=None):
        for it in (self.items if items is None else items):
            if isinstance(it, Loop):
                for _ in range(min(it.count, 6)):
                    yield from self.trace(it.body)
            elif isinstance(it, Seg):
                yield from self.trace(it.body)
            else:
                yield it

    def all_paths(self):
        for path in (self.paths or [self.items]):
            yield from self.trace(path)
            yield Fence()

    def segment(self):
        seg = Seg()
        self.items.append(seg)
        self.cur = seg.body
        return seg

    def auto_waits(self):
        changed = True
        while changed:
            changed = False
            vm, lg = [], []
            for it in self.all_paths():
                if isinstance(it, Fence):
                    vm, lg = [], []
                    continue
                if not isinstance(it, Ins):
                    continue
                if it.op == 's_waitcnt':
                    m = re.search(r'vmcnt\((\d+)\)', it.text)
                    if m: vm = vm[len(vm) - min(len(vm), int(m.group(1))):]
                    m = re.search(r'lgkmcnt\((\d+)\)', it.text)
                    if m:
                        n = int(m.group(1))
                        if n == 0 or not any(o.q == 'sm' for o in lg):
                            lg = lg[len(lg) - min(len(lg), n):]
                    continue
                touch = it.rd | it.wr | (set() if it.nowaw else it.awr)
                wrs = it.wr | it.awr

                def need(q):
                    k = -1
                    for i, o in enumerate(q):
                        if (o.awr & touch) or (o.pend_rd & wrs):
                            k = i
                    return k
                k = need(vm)
                if k >= 0:
                    n = min(63, len(vm) - k - 1)
                    if it.wait_vm is None or n < it.wait_vm:
                        it.wait_vm = n; changed = True
                k = need(lg)
                if k >= 0:
                    n = 0 if any(o.q == 'sm' for o in lg) else min(15, len(lg) - k - 1)
                    if it.wait_lg is None or n < it.wait_lg:
                        it.wait_lg = n; changed = True
                if it.wait_vm is not None:
                    vm = vm[len(vm) - min(len(vm), it.wait_vm):]
                if it.wait_lg is not None:
                    if it.wait_lg == 0 or not any(o.q == 'sm' for o in lg):
                        lg = lg[len(lg) - min(len(lg), it.wait_lg):]
                if it.q == 'vm': vm.append(it)
                elif it.q in ('lg', 'sm'): lg.append(it)

    def auto_nops(self):
        changed = True
        while changed:
            changed = False
            pos = 0
            lw = {}
            lc = {}
            ls = {}
            for it in self.all_paths():
                if isinstance(it, Fence):
                    pos += 40
                    continue
                if not isinstance(it, Ins):
                    continue
                if it.wait_vm is not None or it.wait_lg is not None:
                    pos += 1
                base = pos
                req = 0

                def after(p, n):
                    nonlocal req
                    req = max(req, p + 1 + n)
                isvalu = it.kind in ('valu', 'trans')
                for r in it.rd | it.wr | it.awr:
                    if r not in lw: continue
                    p, w = lw[r]
                    if w.kind == 'mfma':
                        big = 12 if w.passes == 8 else 8
                        if it.kind == 'mfma':
                            if r in it.mf_ab: after(p, big)
                            if r in it.mf_c:
                                if it.mf_c == w.mf_d and it.passes == w.passes: pass
                                else: after(p, big - 2)
                            elif r in it.wr and r not in it.rd:
                                after(p, big - 2)
                        else:
                            after(p, big)
                    elif w.kind in ('valu', 'trans'):
                        if r in it.rd:
                            if r[0] in 'va' and r != 'vcc':
                                if it.kind == 'mfma': after(p, 2)
                                if it.op.startswith(('v_readfirstlane', 'v_readlane')): after(p, 1)
                                if it.op.startswith('v_permlane') or it.dpp: after(p, 2)
                                if w.kind == 'trans' and it.kind != 'trans': after(p, 1)
                                if w.kind == 'trans' and it.kind == 'trans': after(p, 1)
                                if any(m.startswith(('op_sel', 'dst_sel')) for m in w.mods) and isvalu: after(p, 1)
                            else:
                                if it.kind == 'vmem': after(p, 5)
                                if isvalu: after(p, 4 if it.op.startswith(('v_readlane', 'v_writelane')) else 2)
                                if it.kind in ('salu', 'smem'): after(p, 1)
                    elif w.kind == 'salu':
                        if r == 'm0' and r in it.rd and it.kind in ('vmem', 'ds'): after(p, 1)
                if isvalu or it.awr:
                    for r in it.wr | it.awr:
                        if r in lc and isvalu:
                            p, ps = lc[r]
                            after(p, 7 if ps == 8 else 3)
                        if r in ls: after(ls[r], 2)
                n = max(0, req - base)
                if n > it.nops:
                    it.nops = n; changed = True
                pos = base + it.nops
                for r in it.wr: lw[r] = (pos, it)
                for r in it.awr: lw.pop(r, None)
                if it.kind == 'mfma':
                    for r in it.mf_c: lc[r] = (pos, it.passes)
                for r in it.store_data: ls[r] = pos
                if it.op == 's_nop':
                    pos += int(it.toks[0])
                pos += 1

    def emit(self, items=None, ind='    '):
        out = []
        for it in (self.items if items is None else items):
            if isinstance(it, Loop):
                if it.align:
                    out.append('.p2align 6')
                out.append(it.label + ':')
                out += self.emit(it.body, ind)
            elif isinstance(it, Seg):
                out += self.emit(it.body, ind)
            elif isinstance(it, Label):
                out.append(it.name + ':')
            elif isinstance(it, Raw):
                out.append(it.text)
            elif isinstance(it, Fence):
                out += [ind + 's_waitcnt vmcnt(0) lgkmcnt(0)', ind + 's_nop 15']
            else:
                w = []
                if it.wait_vm is not None: w.append(f'vmcnt({it.wait_vm})')
                if it.wait_lg is not None: w.append(f'lgkmcnt({it.wait_lg})')
                if w: out.append(ind + 's_waitcnt ' + ' '.join(w))
                n = it.nops
                while n > 0:
                    k = min(n, 16)
                    out.append(ind + f's_nop {k - 1}')
                    n -= k
                out.append(ind + it.text)
        return out

    def finish(self):
        self.auto_waits()
        self.auto_nops()
        return '\n'.join(self.emit())

    def max_regs(self):
        mx = {'v': -1, 'a': -1, 's': -1}
        for it in self.trace():
            if isinstance(it, Ins):
                for r in it.rd | it.wr | it.awr:
                    if r[0] in mx and r[1:].isdigit():
                        mx[r[0]] = max(mx[r[0]], int(r[1:]))
        return mx


def rr(kind, base, n=1):
    return f'{kind}{base}' if n == 1 else f'{kind}[{base}:{base + n - 1}]'


def kernel_text(name, prog, min_v=0):
    body = prog.finish()
    mx = prog.max_regs()
    nv = max(mx['v'] + 1, min_v, 4)
    acc = (nv + 3) // 4 * 4
    tot = acc + mx['a'] + 1 if mx['a'] >= 0 else nv
    code = f""".globl {name}
.p2align 8
.type {name},@function
{name}:
{body}
"""
    desc = f""".amdhsa_kernel {name}
  .amdhsa_next_free_vgpr {tot}
  .amdhsa_next_free_sgpr {max(mx['s'] + 1, 16)}
  .amdhsa_accum_offset {acc}
  .amdhsa_group_segment_fixed_size 0
  .amdhsa_kernarg_size 96
  .amdhsa_user_sgpr_count 2
  .amdhsa_user_sgpr_kernarg_segment_ptr 1
  .amdhsa_system_sgpr_workgroup_id_x 1
  .amdhsa_float_denorm_mode_32 3
.end_amdhsa_kernel
"""
    return code, desc
```

```python
from asmlib import *

S, D, H, DH, FF = 2048, 1024, 32, 32, 3584
A_X, A_WQ, A_WK, A_WV, A_WO, A_BX, A_WG, A_WU, A_WD, A_OUT, A_DBG, A_WS = [8 * i for i in range(12)]
QF = (0x0000000, 0x400000)
KV = (0x0400000, 0x040000)
OF = (0x0800000, 0x400000)
HC = (0x0C00000, 0x400000)
HR = (0x1000000, 0x400000)
HH = (0x1400000, 0xE00000)
ST = (0x2200000, 0x180000)
XC = (0x2400000, 0x1000000)
ST_MEANX = 0x0000
ST_RS = 0x2000
ST_RSTD = 0x3000
ST_SSQ = 0x8000

LOG2E = 1.4426950408889634


def f32hex(x):
    import struct
    return hex(struct.unpack('<I', struct.pack('<f', x))[0])


def srd_in(p, s, ptr, size):
    p(f"""
    s_mov_b32 s{s}, s{ptr}
    s_mov_b32 s{s+1}, s{ptr+1}
    s_mov_b32 s{s+2}, {hex(size)}
    s_mov_b32 s{s+3}, 0x20000""")


def srd_ws(p, s, ws, region):
    off, size = region
    p(f"""
    s_add_u32 s{s}, s{ws}, {hex(off)}
    s_addc_u32 s{s+1}, s{ws+1}, 0
    s_mov_b32 s{s+2}, {hex(size)}
    s_mov_b32 s{s+3}, 0x20000""")


def mf16(d, a, b, c=None):
    return f"v_mfma_f32_16x16x32_bf16 {d}, {a}, {b}, {d if c is None else c}"


def mf32(d, a, b, c=None):
    return f"v_mfma_f32_32x32x16_bf16 {d}, {a}, {b}, {d if c is None else c}"


def xsum16_32(p, x, tmp):
    p(f"""
    v_mov_b32 {tmp}, {x}
    v_permlane16_swap_b32 {x}, {tmp}
    v_add_f32 {x}, {x}, {tmp}
    v_mov_b32 {tmp}, {x}
    v_permlane32_swap_b32 {x}, {tmp}
    v_add_f32 {x}, {x}, {tmp}""")
```

```python
from common import *

LDS_ATT = 131072 + 256


def gen_attn(name, prefetch=True):
    p = Prog()
    sQ, sK, sO, sP = 4, 8, 12, 16
    s_w, s_b, s_j, s_kh, s_pw = 20, 21, 22, 23, 24
    s_ko, s_m0, s_cnt, s_t0, s_t1, s_dsl, s_rsl, s_k0, s_qo = 25, 26, 27, 28, 29, 30, 31, 32, 33
    s_ws = 36
    s_p0 = 40
    s_wo = 38
    p(f"""
    s_cmp_ge_u32 s2, 256
    s_cbranch_scc1 {name}_end
    s_load_dwordx2 s[{s_ws}:{s_ws+1}], s[0:1], {A_WS}
    s_load_dwordx2 s[{s_wo}:{s_wo+1}], s[0:1], {A_WO}
    s_load_dwordx4 s[{s_p0}:{s_p0+3}], s[0:1], {A_WG}
    s_load_dwordx2 s[{s_p0+4}:{s_p0+5}], s[0:1], {A_WD}
    v_lshrrev_b32 v1, 6, v0
    v_and_b32 v0, 63, v0
    v_readfirstlane_b32 s{s_w}, v1
    s_and_b32 s{s_b}, s2, 15
    s_lshr_b32 s{s_j}, s2, 4
    s_lshr_b32 s{s_kh}, s{s_w}, 2
    s_and_b32 s{s_pw}, s{s_w}, 3
    """)
    vL, vA, vAb = 2, 3, 4
    vt = 6
    ONES = 12
    Q = lambda x, m: rr('v', 16 + x * 8 + m * 4, 4)
    Kf = lambda b, m: rr('v', 32 + b * 8 + m * 4, 4)
    Vf = lambda b, m: rr('v', 48 + b * 8 + m * 4, 4)
    Sb = lambda x: 64 + 16 * x
    Ob = lambda x: 96 + 16 * x
    Lb = lambda x: 128 + 4 * x
    Pb = lambda x: 136 + 8 * x
    Nb = lambda x: 160 + 16 * x
    vDum = 152
    srd_ws(p, sQ, s_ws, QF)
    srd_ws(p, sK, s_ws, KV)
    srd_ws(p, sO, s_ws, OF)
    p(f"""
    v_lshlrev_b32 v{vL}, 4, v0
    s_lshl_b32 s{s_k0}, s{s_kh}, 5
    s_add_u32 s{s_k0}, s{s_k0}, s{s_pw}
    s_lshl_b32 s{s_k0}, s{s_k0}, 12
    s_lshl_b32 s{s_m0}, s{s_w}, 12
    s_lshl_b32 s{s_t0}, s{s_kh}, 14
    v_add_u32 v{vAb}, s{s_t0}, v{vL}
    """)

    def dma(tag):
        o = [Ins(f"s_add_u32 m0, s{s_m0}, s{s_dsl}")]
        for i in range(4):
            o.append(Ins(f"buffer_load_dwordx4 v{vL}, s[{sK}:{sK+3}], s{s_ko} offen offset:{i*1024} lds", awr=[tag], nowaw=True))
        o += [Ins(f"s_add_u32 s{s_ko}, s{s_ko}, 16384"),
              Ins(f"s_add_u32 s{s_dsl}, s{s_dsl}, 32768"),
              Ins(f"s_and_b32 s{s_dsl}, s{s_dsl}, 0x1ffff")]
        return o

    def start_ring():
        p(f"""
        s_mov_b32 s{s_ko}, s{s_k0}
        s_mov_b32 s{s_dsl}, 0
        s_mov_b32 s{s_rsl}, 0
        v_mov_b32 v{vA}, v{vAb}""")
        p.add(dma('L0'))

    start_ring()
    p(f"""
    s_lshl_b32 s{s_t0}, s{s_j}, 1
    s_add_u32 s{s_t0}, s{s_t0}, s{s_kh}
    s_lshl_b32 s{s_t0}, s{s_t0}, 6
    s_lshl_b32 s{s_t1}, s{s_b}, 2
    s_add_u32 s{s_t1}, s{s_t1}, s{s_pw}
    s_add_u32 s{s_t0}, s{s_t0}, s{s_t1}
    s_lshl_b32 s{s_qo}, s{s_t0}, 11
    s_xor_b32 s{s_t0}, s{s_qo}, 0x20000
    """)
    for m in range(2):
        p(f"buffer_load_dwordx4 {Q(0, m)}, v{vL}, s[{sQ}:{sQ+3}], s{s_qo} offen offset:{m*1024}")
    for m in range(2):
        p(f"buffer_load_dwordx4 {Q(1, m)}, v{vL}, s[{sQ}:{sQ+3}], s{s_t0} offen offset:{m*1024}")
    p(f"""
    v_lshrrev_b32 v{vt}, 2, v0
    v_and_b32 v{vt}, 4, v{vt}
    v_xor_b32 v{vt}, v{vt}, v0
    v_and_b32 v{vt}, 7, v{vt}
    v_cmp_eq_u32 vcc, 0, v{vt}
    v_mov_b32 v{vt+1}, 0x3f803f80
    v_cndmask_b32 v{ONES}, 0, v{vt+1}, vcc
    v_mov_b32 v{ONES+1}, v{ONES}
    v_mov_b32 v{ONES+2}, v{ONES}
    v_mov_b32 v{ONES+3}, v{ONES}
    """)

    def krd(b, kt, m): return Ins(f"ds_read_b128 {Kf(b, m)}, v{vA} offset:{kt*4096 + m*1024}")
    def vrd(b, kt, m): return Ins(f"ds_read_b128 {Vf(b, m)}, v{vA} offset:{kt*4096 + 2048 + m*1024}")

    def half(x, Kb, Vb, C, extra):
        y = 1 - x
        Sx, Px, Sy, Py = Sb(x), Pb(x), rr('v', Sb(y), 16), Pb(y)
        valu = []
        for i in range(8):
            valu.append(f"v_exp_f32 v{Sx+2*i}, v{Sx+2*i}")
            valu.append(f"v_exp_f32 v{Sx+2*i+1}, v{Sx+2*i+1}")
            if i > 0:
                valu.append(f"v_cvt_pk_bf16_f32 v{Px+i-1}, v{Sx+2*i-2}, v{Sx+2*i-1}")
        valu.append(f"v_cvt_pk_bf16_f32 v{Px+7}, v{Sx+14}, v{Sx+15}")
        Oy, Ly = rr('v', Ob(y), 16), rr('v', Lb(y), 4)
        mf = [mf32(Sy, Kf(Kb, 0), Q(y, 0), C(y)), mf32(Sy, Kf(Kb, 1), Q(y, 1)),
              mf32(Oy, Vf(Vb, 0), rr('v', Py, 4)), mf16(Ly, rr('v', ONES, 4), rr('v', Py, 4)),
              mf32(Oy, Vf(Vb, 1), rr('v', Py + 4, 4)), mf16(Ly, rr('v', ONES, 4), rr('v', Py + 4, 4))]
        pos = (0, 4, 8, 12, 15, 19)
        for i, v in enumerate(valu):
            if i in pos:
                k = pos.index(i)
                p(mf[k])
                p.add(extra.get(k, []))
            p(v)

    def main(tag, C, pf):
        p.add(dma('Lx'))
        if pf: p.add(Ins(pf[0].text, nowaw=True))
        for x in range(2):
            for i in range(16): p(f"v_mov_b32 v{Ob(x)+i}, 0")
            for i in range(4): p(f"v_mov_b32 v{Lb(x)+i}, 0")
        for i in range(8): p(f"v_mov_b32 v{Pb(1)+i}, 0")
        for i in range(8): p(f"v_mov_b32 v{48+8+i}, 0")
        p("s_barrier", rd=['L0'] + [f'v{i}' for i in range(16, 32)])
        p.add([krd(0, 0, 0), krd(0, 0, 1), vrd(0, 0, 0), vrd(0, 0, 1)])
        p(mf32(rr('v', Sb(0), 16), Kf(0, 0), Q(0, 0), C(0)))
        p(mf32(rr('v', Sb(0), 16), Kf(0, 1), Q(0, 1)))
        p(f"s_mov_b32 s{s_cnt}, 8")
        p("s_nop 11")
        p.begin_loop(f"{name}_{tag}_loop", 8)
        d = dma('Lx')
        for kt in range(4):
            b = kt & 1
            e0 = {}
            if kt == 3:
                e0[0] = [Ins(f"s_waitcnt vmcnt({6 if pf else 4})"), Ins("s_barrier")]
                e0[1] = [Ins(f"s_add_u32 s{s_rsl}, s{s_rsl}, 32768"), Ins(f"s_and_b32 s{s_rsl}, s{s_rsl}, 0x1ffff"),
                         Ins(f"v_add_u32 v{vA}, s{s_rsl}, v{vAb}")]
            e0[2] = [krd(1 - b, (kt + 1) & 3, 0)]
            e0[3] = [krd(1 - b, (kt + 1) & 3, 1)]
            if kt == 0:
                e0[0] = [d[0]]; e0[4] = [d[1]]
            if kt == 1:
                e0[4] = [d[3]]
            if kt == 2 and pf:
                e0[0] = [pf[0]]; e0[1] = [pf[1]]; e0[4] = [pf[2]]; e0[5] = [pf[3]]
            if kt == 3 and pf:
                e0[4] = [pf[6]]; e0[5] = [pf[7]]
            half(0, b, 1 - b, C, e0)
            e1 = {0: [vrd(1 - b, (kt + 1) & 3, 0)], 1: [vrd(1 - b, (kt + 1) & 3, 1)]}
            if kt == 0: e1[4] = [d[2]]
            if kt == 1: e1[4] = [d[4]]; e1[5] = [d[5]]
            if kt == 2: e1[4] = [d[6]]; e1[5] = [d[7]]
            if kt == 3: e1[4] = [Ins(f"s_sub_u32 s{s_cnt}, s{s_cnt}, 1")]; e1[5] = [Ins(f"s_cmp_lg_u32 s{s_cnt}, 0")]
            if kt == 2 and pf: e1[2] = [pf[4]]; e1[3] = [pf[5]]
            if kt == 3 and pf: e1[2] = [pf[8]]; e1[3] = [pf[9]]
            half(1, 1 - b, b, C, e1)
        p(f"s_cbranch_scc1 {name}_{tag}_loop")
        p.end_loop()
        O1, L1 = rr('v', Ob(1), 16), rr('v', Lb(1), 4)
        p(mf32(O1, Vf(1, 0), rr('v', Pb(1), 4)))
        p(mf16(L1, rr('v', ONES, 4), rr('v', Pb(1), 4)))
        p(mf32(O1, Vf(1, 1), rr('v', Pb(1) + 4, 4)))
        p(mf16(L1, rr('v', ONES, 4), rr('v', Pb(1) + 4, 4)))
        p("s_waitcnt vmcnt(0) lgkmcnt(0)")
        p("s_barrier")
        p(f"""
        s_mul_i32 s{s_t0}, s{s_w}, 5120
        v_add_u32 v{vt}, s{s_t0}, v{vL}
        s_xor_b32 s{s_t1}, s{s_w}, 4
        s_mul_i32 s{s_t1}, s{s_t1}, 5120
        v_add_u32 v{vt+1}, s{s_t1}, v{vL}""")
        for i in range(4):
            p(f"ds_write_b128 v{vt}, {rr('v', Ob(1)+4*i, 4)} offset:{i*1024}")
        p(f"ds_write_b128 v{vt}, {rr('v', Lb(1), 4)} offset:4096")
        p("s_waitcnt lgkmcnt(0)")
        p("s_barrier")
        p(f"ds_read_b128 {rr('v', Lb(1), 4)}, v{vt+1} offset:4096")
        for i in range(4):
            p(f"ds_read_b128 {rr('v', Ob(1)+4*i, 4)}, v{vt+1} offset:{i*1024}")
        p(f"v_add_f32 v{Lb(0)}, v{Lb(0)}, v{Lb(1)}")
        for i in range(16):
            p(f"v_add_f32 v{Ob(0)+i}, v{Ob(0)+i}, v{Ob(1)+i}")

    pf = None
    if prefetch:
        vPF = 5
        s_po, s_z = 34, 50
        p(f"""
        v_mul_u32_u24 v{vt}, 9363, v0
        v_lshrrev_b32 v{vt}, 16, v{vt}
        v_mul_u32_u24 v{vt+1}, {7168 - 7*128}, v{vt}
        v_lshl_add_u32 v{vPF}, v0, 7, v{vt+1}
        v_cmp_gt_u32 vcc, 28, v0
        v_cndmask_b32 v{vPF}, -1, v{vPF}, vcc
        v_and_b32 v{vPF}, 0x7fffff80, v{vPF}
        s_lshr_b32 s{s_t0}, s2, 3
        s_lshl_b32 s{s_t0}, s{s_t0}, 3
        s_add_u32 s{s_t0}, s{s_t0}, s{s_w}
        s_mul_i32 s{s_po}, s{s_t0}, {4 * 7168}
        s_and_b32 s{s_t0}, s2, 7
        s_mul_i32 s{s_t0}, s{s_t0}, 896
        s_add_u32 s{s_po}, s{s_po}, s{s_t0}
        s_mov_b64 s[{sP}:{sP+1}], s[{s_wo}:{s_wo+1}]
        s_mov_b32 s{sP+2}, 0
        s_mov_b32 s{sP+3}, 0x20000
        s_mov_b32 s{s_z}, {D * D * 2}
        s_mov_b32 s{s_z+1}, {D * FF * 2}
        s_mov_b32 s{s_z+2}, {D * FF * 2}
        s_mov_b32 s{s_z+3}, {D * FF * 2}
        """)
        pf = [Ins(f"buffer_load_dword v{vDum}, v{vPF}, s[{sP}:{sP+3}], s{s_po} offen", nowaw=True),
              Ins(f"s_mov_b64 s[{sP}:{sP+1}], s[{s_wo}:{s_wo+1}]"), Ins(f"s_mov_b32 s{sP+2}, s{s_z}"),
              Ins(f"s_mov_b64 s[{s_wo}:{s_wo+1}], s[{s_p0}:{s_p0+1}]"), Ins(f"s_mov_b32 s{s_z}, s{s_z+1}"),
              Ins(f"s_mov_b64 s[{s_p0}:{s_p0+1}], s[{s_p0+2}:{s_p0+3}]"), Ins(f"s_mov_b32 s{s_z+1}, s{s_z+2}"),
              Ins(f"s_mov_b64 s[{s_p0+2}:{s_p0+3}], s[{s_p0+4}:{s_p0+5}]"), Ins(f"s_mov_b32 s{s_z+2}, s{s_z+3}"),
              Ins(f"s_mov_b32 s{s_z+3}, 0")]

    main('fast', lambda y: "0", pf)
    p(f"v_add_f32 v{vt}, |v{Ob(0)}|, |v{Ob(0)+1}|")
    p(f"v_add_f32 v{vt+1}, |v{Ob(0)+2}|, |v{Ob(0)+3}|")
    for i in range(4, 16):
        p(f"v_add_f32 v{vt+(i&1)}, v{vt+(i&1)}, |v{Ob(0)+i}|")
    p(f"""
    v_add_f32 v{vt}, v{vt}, v{vt+1}
    s_mov_b32 s{s_t0}, {f32hex(2.0**-40)}
    s_mov_b32 s{s_t1}, {f32hex(2.0**40)}
    v_cmp_nle_f32 s[46:47], s{s_t0}, v{Lb(0)}
    v_cmp_nge_f32 s[48:49], s{s_t1}, v{Lb(0)}
    s_mov_b32 s{s_t0}, {f32hex(2.0**120)}
    v_cmp_nge_f32 vcc, s{s_t0}, v{vt}
    s_or_b64 s[46:47], s[46:47], s[48:49]
    s_or_b64 s[46:47], s[46:47], vcc
    s_cselect_b32 s{s_t0}, 1, 0
    s_lshl_b32 s{s_t1}, s{s_w}, 2
    s_add_u32 s{s_t1}, s{s_t1}, 131072
    v_mov_b32 v{vt}, s{s_t1}
    v_mov_b32 v{vt+1}, s{s_t0}
    ds_write_b32 v{vt}, v{vt+1}
    s_waitcnt lgkmcnt(0)
    s_barrier
    v_and_b32 v{vt}, 7, v0
    v_lshlrev_b32 v{vt}, 2, v{vt}
    v_add_u32 v{vt}, 131072, v{vt}
    ds_read_b32 v{vt+1}, v{vt}
    v_cmp_ne_u32 vcc, 0, v{vt+1}
    s_cbranch_vccnz {name}_slow
    {name}_fin:
    """)
    p(f"v_rcp_f32 v{Lb(0)}, v{Lb(0)}")
    p(f"""
    v_bfe_u32 v{vt}, v0, 4, 1
    v_lshlrev_b32 v{vt}, 15, v{vt}
    v_and_b32 v{vt+1}, 15, v0
    v_lshl_add_u32 v{vt}, v{vt+1}, 4, v{vt}
    v_lshrrev_b32 v{vt+1}, 5, v0
    v_lshl_add_u32 v{vt}, v{vt+1}, 8, v{vt}
    s_lshl_b32 s{s_t0}, s{s_b}, 2
    s_add_u32 s{s_t0}, s{s_t0}, s{s_pw}
    s_lshl_b32 s{s_t0}, s{s_t0}, 6
    s_lshl_b32 s{s_t1}, s{s_j}, 1
    s_add_u32 s{s_t1}, s{s_t1}, s{s_kh}
    s_add_u32 s{s_t0}, s{s_t0}, s{s_t1}
    s_lshl_b32 s{s_t0}, s{s_t0}, 10
    """)
    for i in range(16):
        p(f"v_mul_f32 v{Ob(0)+i}, v{Ob(0)+i}, v{Lb(0)}")
    for i in range(8):
        p(f"v_cvt_pk_bf16_f32 v{Pb(0)+i}, v{Ob(0)+2*i}, v{Ob(0)+2*i+1}")
    for a in range(2):
        p(f"buffer_store_dwordx4 {rr('v', Pb(0)+4*a, 4)}, v{vt}, s[{sO}:{sO+3}], s{s_t0} offen offset:{a*512}")
    p(f"{name}_end:")
    p("s_endpgm")

    p(f"{name}_slow:")
    p.fence()
    p("s_barrier")
    for x in range(2):
        p(f"v_mov_b32 v{Nb(x)}, 0xff800000")
    p(f"s_mov_b32 s{s_t0}, 0")
    p.begin_loop(f"{name}_max_loop", 64, align=False)
    for m in range(2):
        p(f"buffer_load_dwordx4 {Kf(0, m)}, v{vL}, s[{sK}:{sK+3}], s{s_t0} offen offset:{m*1024}")
    for x in range(2):
        p(mf32(rr('v', Sb(x), 16), Kf(0, 0), Q(x, 0), "0"))
        p(mf32(rr('v', Sb(x), 16), Kf(0, 1), Q(x, 1)))
    for x in range(2):
        for i in range(0, 16, 2):
            p(f"v_max3_f32 v{Nb(x)}, v{Nb(x)}, v{Sb(x)+i}, v{Sb(x)+i+1}")
    p(f"""
    s_add_u32 s{s_t0}, s{s_t0}, 4096
    s_cmp_lg_u32 s{s_t0}, {64 * 4096}
    s_cbranch_scc1 {name}_max_loop""")
    p.end_loop()
    for x in range(2):
        p(f"""
        v_mov_b32 v{vt}, v{Nb(x)}
        v_permlane32_swap_b32 v{Nb(x)}, v{vt}
        v_max_f32 v{Nb(x)}, v{Nb(x)}, v{vt}
        v_sub_f32 v{Nb(x)}, 0, v{Nb(x)}""")
        for i in range(1, 16):
            p(f"v_mov_b32 v{Nb(x)+i}, v{Nb(x)}")
    start_ring()
    main('safe', lambda y: rr('v', Nb(y), 16), None)
    p.fence()
    p(f"s_branch {name}_fin")
    return p
```

```python
from common import *

LDS_RING = 65536
LDS_STG = 65536
LDS_RS = 65536 + 4 * 4608
LDS_GEMMS = LDS_RS + 4096


def gen_gemms(kind, name, LEAD=12):
    assert kind in ('wo', 'down')
    wo = kind == 'wo'
    NG = 32 if wo else 112
    NS = NG // 4
    XR = OF if wo else HH
    p = Prog()
    sX, sW, sR, sO, sT, sC = 4, 8, 12, 16, 20, 24
    s_w, s_b, s_j = 28, 29, 30
    s_xo, s_xe, s_xend, s_wo, s_m0, s_cnt, s_t0, s_t1 = 31, 32, 33, 34, 35, 36, 37, 38
    s_ws, s_pw, s_pa = 40, 42, 44
    p(f"""
    s_cmp_ge_u32 s2, 256
    s_cbranch_scc1 {name}_end
    s_load_dwordx2 s[{s_ws}:{s_ws+1}], s[0:1], {A_WS}
    s_load_dwordx2 s[{s_pw}:{s_pw+1}], s[0:1], {A_WO if wo else A_WD}
    s_load_dwordx2 s[{s_pa}:{s_pa+1}], s[0:1], {A_X if wo else A_OUT}
    v_lshrrev_b32 v1, 6, v0
    v_and_b32 v0, 63, v0
    v_readfirstlane_b32 s{s_w}, v1
    s_and_b32 s{s_t0}, s2, 7
    s_lshr_b32 s{s_t1}, s2, 3
    s_lshr_b32 s{s_b}, s{s_t0}, 1
    s_lshl_b32 s{s_b}, s{s_b}, 2
    s_and_b32 s{s_j}, s{s_t1}, 3
    s_add_u32 s{s_b}, s{s_b}, s{s_j}
    s_and_b32 s{s_j}, s{s_t0}, 1
    s_lshl_b32 s{s_j}, s{s_j}, 3
    s_lshr_b32 s{s_t1}, s{s_t1}, 2
    s_add_u32 s{s_j}, s{s_j}, s{s_t1}
    """)
    vX0, vX1 = 2, 3
    vD = 4
    vA = 8
    vt = 12
    p(f"""
    v_lshlrev_b32 v{vX0}, 4, v0
    v_add_u32 v{vX1}, {NG * 1024}, v{vX0}
    v_lshrrev_b32 v{vt}, 3, v0
    v_and_b32 v{vt+1}, 6, v{vt}
    v_and_b32 v{vt+2}, 7, v0
    v_xor_b32 v{vt+1}, v{vt+1}, v{vt+2}
    v_lshlrev_b32 v{vt+1}, 4, v{vt+1}
    v_lshl_add_u32 v{vD}, v{vt}, 11, v{vt+1}
    v_add_u32 v{vD+1}, {8*2048 - 1024}, v{vD}
    v_add_u32 v{vD+2}, {16*2048 - 2048}, v{vD}
    v_add_u32 v{vD+3}, {24*2048 - 3072}, v{vD}
    """)
    p(f"""
    s_lshl_b32 s{s_t0}, s{s_b}, 2
    s_add_u32 s{s_t0}, s{s_t0}, s{s_w}
    s_mul_i32 s{s_xo}, s{s_t0}, {2 * NG * 1024}
    s_add_u32 s{s_xend}, s{s_xo}, {NG * 1024}
    s_lshl_b32 s{s_wo}, s{s_w}, 16
    s_lshl_b32 s{s_t1}, s{s_j}, 7
    s_add_u32 s{s_wo}, s{s_wo}, s{s_t1}
    s_lshl_b32 s{s_m0}, s{s_w}, 12
    """)
    srd_ws(p, sX, s_ws, XR)
    srd_in(p, sW, s_pw, NG * 32 * 2048)

    X = lambda slot, t, G: rr('a', slot * 32 + (t * 4 + G) * 4, 4)
    WB = 64
    W = lambda F, G: rr('v', WB + F * 16 + G * 4, 4)
    Wh = lambda F, G, b: rr('v', WB + F * 16 + G * 4 + b * 2, 2)
    AB = 32
    ACC = lambda F, t: rr('v', AB + (F * 2 + t) * 4, 4)
    MB = 128
    MACC = lambda t: rr('v', MB + 4 * t, 4)
    RSF = lambda G: rr('v', MB + 8 + 4 * G, 4)
    vRS = 20

    def dma(slot):
        o = [Ins(f"s_add_u32 m0, s{s_m0}, {slot * 16384}")]
        for i in range(4):
            o.append(Ins(f"buffer_load_dwordx4 v{vD+i}, s[{sW}:{sW+3}], s{s_wo} offen offset:{i*1024} lds",
                         awr=[f'L{slot}'], nowaw=True))
        o.append(Ins(f"s_add_u32 s{s_wo}, s{s_wo}, {128 * 2048}"))
        return o

    def xld(slot):
        o = [Ins(f"s_cmp_lt_u32 s{s_xo}, s{s_xend}"), Ins(f"s_cselect_b32 s{s_xe}, s{s_xo}, s{sX+2}")]
        for t in range(2):
            for G in range(4):
                o.append(Ins(f"buffer_load_dwordx4 {X(slot, t, G)}, v{vX0+t}, s[{sX}:{sX+3}], s{s_xe} offen offset:{G*1024}"))
        o.append(Ins(f"s_add_u32 s{s_xo}, s{s_xo}, 4096"))
        return o

    srd_ws(p, sT, s_ws, ST)
    if wo:
        p(f"""
        s_lshl_b32 s{s_t0}, s{s_w}, 10
        s_add_u32 m0, s{s_t0}, {LDS_RS}
        s_add_u32 s{s_t0}, s{s_t0}, {ST_RS}""")
        p(f"buffer_load_dwordx4 v{vX0}, s[{sT}:{sT+3}], s{s_t0} offen lds", awr=['L0'], nowaw=True)
    p.add(dma(0)); p.add(xld(0)); p.add(dma(1)); p.add(xld(1)); p.add(xld(2))

    if wo:
        p(f"""
        v_lshrrev_b32 v{vt}, 2, v0
        v_and_b32 v{vt}, 7, v{vt}
        v_lshrrev_b32 v{vt+1}, 5, v0
        v_lshl_add_u32 v{vt+1}, v{vt+1}, 4, v{vt}
        """)
        boff = 8 * 128
    else:
        p(f"""
        v_lshrrev_b32 v{vt+1}, 2, v0
        v_and_b32 v{vt}, 7, v{vt+1}
        """)
        boff = 16 * 128
    p(f"""
    v_lshrrev_b32 v{vt}, 1, v{vt}
    v_lshlrev_b32 v{vt}, 5, v{vt}
    v_lshl_add_u32 v{vt}, v{vt+1}, 7, v{vt}
    v_and_b32 v{vt+1}, 3, v0
    v_lshl_add_u32 v{vA}, v{vt+1}, 3, v{vt}
    v_xor_b32 v{vA+1}, 32, v{vA}
    v_xor_b32 v{vA+2}, 64, v{vA}
    v_xor_b32 v{vA+3}, 0x60, v{vA}
    """)
    vE = 144 + 16
    vS = 22
    s_tok = 39
    p(f"""
    s_lshl_b32 s{s_tok}, s{s_b}, 2
    s_add_u32 s{s_tok}, s{s_tok}, s{s_w}
    s_lshl_b32 s{s_tok}, s{s_tok}, 5
    v_and_b32 v{vt}, 15, v0
    v_lshlrev_b32 v{vt}, 2, v{vt}
    s_lshl_b32 s{s_t0}, s{s_tok}, 2
    s_add_u32 s{s_t0}, s{s_t0}, {ST_MEANX if wo else ST_RSTD}
    buffer_load_dword v{vS}, v{vt}, s[{sT}:{sT+3}], s{s_t0} offen
    buffer_load_dword v{vS+1}, v{vt}, s[{sT}:{sT+3}], s{s_t0} offen offset:64
    """)
    s_ho = 46
    p(f"""
    s_lshl_b32 s{s_ho}, s{s_tok}, 11
    s_lshl_b32 s{s_t1}, s{s_j}, 11
    s_add_u32 s{s_ho}, s{s_ho}, s{s_t1}
    """)
    s_ro = 47
    p(f"""
    s_lshl_b32 s{s_ro}, s{s_tok}, 11
    s_lshl_b32 s{s_t1}, s{s_j}, 7
    s_add_u32 s{s_ro}, s{s_ro}, s{s_t1}
    """)
    srd_ws(p, sR, s_ws, HR)
    srd_in(p, sO, s_pa, S * D * 2)
    vH1 = 21
    p(f"v_add_u32 v{vH1}, 0x8000, v{vX0}")
    if wo:
        srd_ws(p, sC, s_ws, HC)
        p(f"""
        s_mul_i32 s{s_t0}, s{s_w}, 4608
        s_add_u32 m0, s{s_t0}, {LDS_STG}
        v_lshrrev_b32 v{vt}, 3, v0
        v_lshrrev_b32 v{vt+1}, 4, v0
        v_and_b32 v{vt+2}, 7, v0
        v_xor_b32 v{vt+1}, v{vt+1}, v{vt+2}
        v_lshlrev_b32 v{vt+1}, 4, v{vt+1}
        v_lshl_add_u32 v{vt}, v{vt}, 11, v{vt+1}
        v_xor_b32 v{vt+1}, 64, v{vt}
        v_add_u32 v{vt+1}, {8*2048 - 1024}, v{vt+1}
        v_add_u32 v{vt+2}, {16*2048 - 2048}, v{vt}
        v_add_u32 v{vt+3}, {16*2048 - 2048}, v{vt+1}
        """)
        for i in range(4):
            p(f"buffer_load_dwordx4 v{vt+i}, s[{sO}:{sO+3}], s{s_ro} offen offset:{i*1024} lds", awr=['LX'], nowaw=True)
        p(f"""
        v_and_b32 v{vt+4}, 1, v0
        v_lshlrev_b32 v{vt+4}, 11, v{vt+4}
        v_lshrrev_b32 v{vt+5}, 4, v0
        v_lshl_add_u32 v{vRS}, v{vt+5}, 4, v{vt+4}
        v_add_u32 v{vRS}, {LDS_RS}, v{vRS}
        """)
        for i in range(8):
            p(f"v_mov_b32 v{MB+i}, 0")
    else:
        for t in range(2):
            for g in range(2):
                p(f"buffer_load_dwordx4 {rr('v', vE + (t*2+g)*4, 4)}, v{vH1 if t else vX0}, s[{sR}:{sR+3}], s{s_ho} offen offset:{g*1024}")
    for i in range(32):
        p(f"v_mov_b32 v{AB+i}, 0")

    def rd(slot, n):
        F, G, b = n >> 3, (n >> 1) & 3, n & 1
        return Ins(f"ds_read_b64_tr_b16 {Wh(F, G, b)}, v{vA+F} offset:{slot*16384 + G*4096 + b*boff}")

    def rsrd(u, G):
        return Ins(f"ds_read_b128 {RSF(G)}, v{vRS} offset:{(u*4+G)*64}")

    p("s_barrier", rd=['L0'])
    for n in range(LEAD):
        p.add(rd(0, n))
    p(f"s_mov_b32 s{s_cnt}, {NS // 4}")
    p.begin_loop(f"{name}_loop", NS // 4)
    for u in range(4):
        fill = {}
        vm = dma((u + 2) % 4) + xld((u + 3) % 4)
        pos = 0
        for ins in vm:
            fill.setdefault(pos, []).append(ins)
            if ins.kind == 'vmem':
                pos += 2
        order = [(F, t, G) for F in range(4) for t in range(2) for G in range(4)]
        for i, (F, t, G) in enumerate(order):
            p(mf16(ACC(F, t), W(F, G), X(u, t, G)))
            n = i + LEAD
            if n == 32:
                p("s_barrier", rd=[f'L{(u+1) % 4}'])
            p.add(rd((u + n // 32) % 4, n % 32))
            if wo and i < 4:
                p.add(rsrd(u, i))
            p.add(fill.get(i, []))
            if wo and i >= 16 and i % 2 == 1:
                k = (i - 16) // 2
                p(mf16(MACC(k >> 2), RSF(k & 3), X(u, k >> 2, k & 3)))
    if wo:
        p(f"v_add_u32 v{vRS}, 1024, v{vRS}")
    p(f"""
    s_sub_u32 s{s_cnt}, s{s_cnt}, 1
    s_cmp_lg_u32 s{s_cnt}, 0
    s_cbranch_scc1 {name}_loop
    """)
    p.end_loop()

    vP = WB
    if not wo:
        vL = vt
        p(f"""
        s_mul_i32 s{s_t0}, s{s_w}, 4608
        s_add_u32 s{s_t0}, s{s_t0}, {LDS_STG}
        v_and_b32 v{vt+2}, 15, v0
        v_mul_u32_u24 v{vt+2}, 144, v{vt+2}
        v_lshrrev_b32 v{vt+3}, 4, v0
        v_lshl_add_u32 v{vt+2}, v{vt+3}, 3, v{vt+2}
        v_add_u32 v{vL}, s{s_t0}, v{vt+2}
        v_lshrrev_b32 v{vt+2}, 3, v0
        v_and_b32 v{vt+3}, 7, v0
        v_lshlrev_b32 v{vt+3}, 4, v{vt+3}
        v_lshl_add_u32 v{vt+4}, v{vt+2}, 11, v{vt+3}
        v_mul_u32_u24 v{vt+2}, 144, v{vt+2}
        v_add3_u32 v{vL+1}, v{vt+2}, v{vt+3}, s{s_t0}
        """)
        vG = vt + 4
        for t in range(2):
            for F in range(4):
                a = AB + (F * 2 + t) * 4
                e = vE + (t * 2 + (F >> 1)) * 4 + (F & 1) * 2
                k = vP + (t * 4 + F) * 6
                p(f"""
                v_lshlrev_b32 v{k}, 16, v{e}
                v_and_b32 v{k+1}, 0xffff0000, v{e}
                v_lshlrev_b32 v{k+2}, 16, v{e+1}
                v_and_b32 v{k+3}, 0xffff0000, v{e+1}
                v_fmac_f32 v{k}, v{vS+t}, v{a}
                v_fmac_f32 v{k+1}, v{vS+t}, v{a+1}
                v_fmac_f32 v{k+2}, v{vS+t}, v{a+2}
                v_fmac_f32 v{k+3}, v{vS+t}, v{a+3}
                v_cvt_pk_bf16_f32 v{k+4}, v{k}, v{k+1}
                v_cvt_pk_bf16_f32 v{k+5}, v{k+2}, v{k+3}
                """)
                p(f"ds_write_b64 v{vL}, v[{k+4}:{k+5}] offset:{t*16*144 + F*32}")
            for n in range(2):
                p(f"ds_read_b128 {rr('v', AB + (t*2+n)*4 + 96, 4)}, v{vL+1} offset:{(t*2+n)*8*144}")
        for n in range(4):
            p(f"s_add_u32 s{s_t0}, s{s_ro}, {n * 8 * 2048}")
            p(f"buffer_store_dwordx4 {rr('v', AB + n*4 + 96, 4)}, v{vG}, s[{sO}:{sO+3}], s{s_t0} offen")
    else:
        p(f"""
        s_mul_i32 s{s_t0}, s{s_w}, 4608
        s_add_u32 s{s_t0}, s{s_t0}, {LDS_STG}
        v_and_b32 v{vt+4}, 15, v0
        v_lshrrev_b32 v{vt+5}, 1, v{vt+4}
        v_lshrrev_b32 v{vt+6}, 5, v0
        v_xor_b32 v{vt+5}, v{vt+5}, v{vt+6}
        v_lshlrev_b32 v{vt+5}, 4, v{vt+5}
        v_lshl_add_u32 v{vt+5}, v{vt+4}, 7, v{vt+5}
        v_bfe_u32 v{vt+6}, v0, 4, 1
        v_lshl_add_u32 v{vt+5}, v{vt+6}, 3, v{vt+5}
        v_xor_b32 v{vt+1}, 32, v{vt+5}
        v_xor_b32 v{vt+2}, 64, v{vt+5}
        v_xor_b32 v{vt+3}, 0x60, v{vt+5}
        v_add_u32 v{vt}, s{s_t0}, v{vt+5}
        v_add_u32 v{vt+1}, s{s_t0}, v{vt+1}
        v_add_u32 v{vt+2}, s{s_t0}, v{vt+2}
        v_add_u32 v{vt+3}, s{s_t0}, v{vt+3}
        """)
        for t in range(2):
            for F in range(4):
                p(f"ds_read_b64 {rr('v', vE + (t*4+F)*2, 2)}, v{vt+F} offset:{t*2048}", rd=['LX'])
        p(f"s_mov_b32 s{s_t1}, {f32hex(1.0/1024)}")
        vQ = 24
        for t in range(2):
            p(f"""
            v_add_f32 v{MB+4*t}, v{MB+4*t}, v{MB+4*t+1}
            v_fmac_f32 v{vS+t}, s{s_t1}, v{MB+4*t}
            v_mov_b32 v{vQ+t}, 0
            """)
            for F in range(4):
                a = AB + (F * 2 + t) * 4
                e = vE + (t * 4 + F) * 2
                k = vP + 32 + (F & 1) * 4
                hr = vP + (t * 2 + (F >> 1)) * 4 + (F & 1) * 2
                hc = hr + 16
                p(f"""
                v_lshlrev_b32 v{k}, 16, v{e}
                v_and_b32 v{k+1}, 0xffff0000, v{e}
                v_lshlrev_b32 v{k+2}, 16, v{e+1}
                v_and_b32 v{k+3}, 0xffff0000, v{e+1}
                v_add_f32 v{a}, v{a}, v{k}
                v_add_f32 v{a+1}, v{a+1}, v{k+1}
                v_add_f32 v{a+2}, v{a+2}, v{k+2}
                v_add_f32 v{a+3}, v{a+3}, v{k+3}
                v_cvt_pk_bf16_f32 v{hr}, v{a}, v{a+1}
                v_cvt_pk_bf16_f32 v{hr+1}, v{a+2}, v{a+3}
                v_sub_f32 v{a}, v{a}, v{vS+t}
                v_sub_f32 v{a+1}, v{a+1}, v{vS+t}
                v_sub_f32 v{a+2}, v{a+2}, v{vS+t}
                v_sub_f32 v{a+3}, v{a+3}, v{vS+t}
                v_cvt_pk_bf16_f32 v{hc}, v{a}, v{a+1}
                v_cvt_pk_bf16_f32 v{hc+1}, v{a+2}, v{a+3}
                v_fmac_f32 v{vQ+t}, v{a}, v{a}
                v_fmac_f32 v{vQ+t}, v{a+1}, v{a+1}
                v_fmac_f32 v{vQ+t}, v{a+2}, v{a+2}
                v_fmac_f32 v{vQ+t}, v{a+3}, v{a+3}
                """)
                if F & 1:
                    g = F >> 1
                    b = vP + (t * 2 + g) * 4
                    p(f"buffer_store_dwordx4 {rr('v', b+16, 4)}, v{vH1 if t else vX0}, s[{sC}:{sC+3}], s{s_ho} offen offset:{g*1024}")
                    p(f"buffer_store_dwordx4 {rr('v', b, 4)}, v{vH1 if t else vX0}, s[{sR}:{sR+3}], s{s_ho} offen offset:{g*1024}")
        xsum16_32(p, f"v{vQ}", f"v{vt}")
        xsum16_32(p, f"v{vQ+1}", f"v{vt+1}")
        p(f"""
        v_cmp_gt_u32 vcc, 16, v0
        v_cndmask_b32 v{vQ}, v{vQ+1}, v{vQ}, vcc
        s_lshr_b32 s{s_t0}, s{s_j}, 2
        s_lshl_b32 s{s_t0}, s{s_t0}, 15
        s_and_b32 s{s_t1}, s{s_j}, 3
        s_lshl_b32 s{s_t1}, s{s_t1}, 2
        s_add_u32 s{s_t0}, s{s_t0}, s{s_t1}
        s_lshl_b32 s{s_t1}, s{s_tok}, 4
        s_add_u32 s{s_t0}, s{s_t0}, s{s_t1}
        s_add_u32 s{s_t0}, s{s_t0}, {ST_SSQ}
        s_mov_b32 exec_hi, 0
        buffer_store_dword v{vQ}, v{vX0}, s[{sT}:{sT+3}], s{s_t0} offen
        """)
    p(f"{name}_end:")
    p("s_endpgm")
    return p
```

```python
from common import *

SLOT = 28672


def gen_gu(name, XD=2, NSLOT=4, LEAD=8):
    NS = 16
    assert NS % XD == 0
    p = Prog()
    sX, sW, sT, sH = 4, 8, 12, 16
    s_w, s_mb, s_nb = 20, 21, 22
    s_xo, s_xe, s_xend, s_wo, s_m0, s_cnt, s_t0, s_t1, s_par = 23, 24, 25, 26, 27, 28, 29, 30, 31
    s_ws, s_pg, s_pu = 32, 34, 36
    s_dsl, s_rsl, s_tok = 38, 39, 40
    p(f"""
    s_cmp_ge_u32 s2, 256
    s_cbranch_scc1 {name}_end
    s_load_dwordx2 s[{s_ws}:{s_ws+1}], s[0:1], {A_WS}
    s_load_dwordx2 s[{s_pg}:{s_pg+1}], s[0:1], {A_WG}
    s_load_dwordx2 s[{s_pu}:{s_pu+1}], s[0:1], {A_WU}
    v_lshrrev_b32 v1, 6, v0
    v_and_b32 v0, 63, v0
    v_readfirstlane_b32 s{s_w}, v1
    s_and_b32 s{s_t0}, s2, 7
    s_lshr_b32 s{s_t1}, s2, 3
    s_and_b32 s{s_mb}, s{s_t1}, 7
    s_lshr_b32 s{s_t1}, s{s_t1}, 3
    s_lshl_b32 s{s_nb}, s{s_t0}, 2
    s_add_u32 s{s_nb}, s{s_nb}, s{s_t1}
    s_and_b32 s{s_par}, s{s_nb}, 1
    """)
    vX = 2
    vD = 6
    vA, vAb = 13, 14
    vR = 16
    vt = 20
    p(f"""
    v_lshlrev_b32 v{vX}, 4, v0
    v_add_u32 v{vX+1}, 0x8000, v{vX}
    v_add_u32 v{vX+2}, 0x10000, v{vX}
    v_add_u32 v{vX+3}, 0x18000, v{vX}
    s_lshl_b32 s{s_t0}, s{s_par}, 1
    s_movk_i32 s{s_t1}, 4682
    """)
    for i in range(7):
        p(f"""
        v_add_u32 v{vt}, {64*i}, v0
        v_mul_u32_u24 v{vt+1}, s{s_t1}, v{vt}
        v_lshrrev_b32 v{vt+1}, 16, v{vt+1}
        v_mul_u32_u24 v{vt+2}, 14, v{vt+1}
        v_sub_u32 v{vt}, v{vt}, v{vt+2}
        v_add_u32 v{vt}, s{s_t0}, v{vt}
        v_subrev_u32 v{vt+2}, 14, v{vt}
        v_min_u32 v{vt}, v{vt}, v{vt+2}
        v_mul_u32_u24 v{vt+1}, 7168, v{vt+1}
        v_lshl_add_u32 v{vD+i}, v{vt}, 4, v{vt+1}
        """)
        if i & 3:
            p(f"v_subrev_u32 v{vD+i}, {(i & 3) * 1024}, v{vD+i}")
    p(f"""
    s_lshl_b32 s{s_tok}, s{s_mb}, 2
    s_add_u32 s{s_tok}, s{s_tok}, s{s_w}
    s_lshl_b32 s{s_tok}, s{s_tok}, 6
    s_lshl_b32 s{s_xo}, s{s_tok}, 11
    s_add_u32 s{s_xend}, s{s_xo}, 0x8000
    s_and_b32 s{s_t0}, s{s_w}, 1
    s_mul_i32 s{s_wo}, s{s_t0}, {32 * 7168}
    s_mul_i32 s{s_t1}, s{s_nb}, 224
    s_add_u32 s{s_wo}, s{s_wo}, s{s_t1}
    s_mul_i32 s{s_m0}, s{s_w}, 7168
    s_mov_b32 s{s_dsl}, 0
    s_mov_b32 s{s_rsl}, 0
    """)
    srd_ws(p, sX, s_ws, HC)
    p(f"""
    s_cmp_lt_u32 s{s_w}, 2
    s_cselect_b32 s{sW}, s{s_pg}, s{s_pu}
    s_cselect_b32 s{sW+1}, s{s_pg+1}, s{s_pu+1}
    s_mov_b32 s{sW+2}, {hex(D * FF * 2)}
    s_mov_b32 s{sW+3}, 0x20000
    """)
    X = lambda slot, t, g: rr('a', slot * 32 + (t * 2 + g) * 4, 4)
    WB = XD * 32
    NWR = 4
    assert (14 * XD) % NWR == 0
    W = lambda q, g: rr('a', WB + (q % NWR) * 8 + g * 4, 4)
    Wh = lambda q, g, b: rr('a', WB + (q % NWR) * 8 + g * 4 + b * 2, 2)
    AB = 32
    ACC = lambda f, t: rr('v', AB + (f * 4 + t) * 4, 4)

    def dma(tag):
        o = []
        for i in range(7):
            if i == 0: o.append(Ins(f"s_add_u32 m0, s{s_m0}, s{s_dsl}"))
            if i == 4: o.append(Ins(f"s_add_u32 m0, m0, 4096"))
            o.append(Ins(f"buffer_load_dwordx4 v{vD+i}, s[{sW}:{sW+3}], s{s_wo} offen offset:{(i&3)*1024} lds",
                         awr=[tag], nowaw=True))
        o += [Ins(f"s_add_u32 s{s_wo}, s{s_wo}, {64 * 7168}"),
              Ins(f"s_add_u32 s{s_dsl}, s{s_dsl}, {SLOT}"),
              Ins(f"s_cmp_eq_u32 s{s_dsl}, {SLOT * NSLOT}"),
              Ins(f"s_cselect_b32 s{s_dsl}, 0, s{s_dsl}")]
        return o

    def xld(slot):
        o = [Ins(f"s_cmp_lt_u32 s{s_xo}, s{s_xend}"), Ins(f"s_cselect_b32 s{s_xe}, s{s_xo}, s{sX+2}")]
        for t in range(4):
            for g in range(2):
                o.append(Ins(f"buffer_load_dwordx4 {X(slot, t, g)}, v{vX+t}, s[{sX}:{sX+3}], s{s_xe} offen offset:{g*1024}"))
        o.append(Ins(f"s_add_u32 s{s_xo}, s{s_xo}, 2048"))
        return o
    DA = NSLOT - 2
    for u in range(max(DA, XD - 1)):
        if u < DA: p.add(dma('L0' if u == 0 else 'Lx'))
        if u < XD - 1: p.add(xld(u))
    p(f"""
    v_lshrrev_b32 v{vt}, 2, v0
    v_mul_u32_u24 v{vt}, 224, v{vt}
    v_and_b32 v{vt+1}, 3, v0
    v_lshl_add_u32 v{vAb}, v{vt+1}, 3, v{vt}
    v_mov_b32 v{vA}, v{vAb}
    """)
    srd_ws(p, sT, s_ws, ST)
    srd_ws(p, sH, s_ws, HH)
    p(f"""
    v_and_b32 v{vt}, 15, v0
    v_lshlrev_b32 v{vt}, 4, v{vt}
    v_lshrrev_b32 v{vt+1}, 4, v0
    v_lshl_add_u32 v{vt}, v{vt+1}, 15, v{vt}
    s_lshl_b32 s{s_t0}, s{s_tok}, 4
    s_add_u32 s{s_t0}, s{s_t0}, {ST_SSQ}
    """)
    SQ = WB + NWR * 8
    for t in range(4):
        p(f"buffer_load_dwordx4 {rr('a', SQ + 4*t, 4)}, v{vt}, s[{sT}:{sT+3}], s{s_t0} offen offset:{t*256}")
    for i in range(224):
        p(f"v_mov_b32 v{AB+i}, 0")

    def rd(q, n):
        f = q % 14
        g, b = n >> 1, n & 1
        return Ins(f"ds_read_b64_tr_b16 {Wh(q, g, b)}, v{vA} offset:{(f&1)*14336 + (32*g+16*b)*224 + (f>>1)*32}")

    p("s_barrier", rd=['L0'])
    for n in range(LEAD):
        p.add(rd(n >> 2, n & 3))
    p(f"s_mov_b32 s{s_cnt}, {NS // XD}")
    p.begin_loop(f"{name}_loop", NS // XD)
    for u in range(XD):
        fill = {}
        vm = xld((u + XD - 1) % XD) + dma('Lx') if XD == 2 else dma('Lx') + xld((u + XD - 1) % XD)
        pos = 1
        for ins in vm:
            fill.setdefault(pos, []).append(ins)
            if ins.kind == 'vmem':
                pos += 4
        nvm_after = 0
        order = [(f, t, g) for f in range(14) for t in range(4) for g in range(2)]
        for i, (f, t, g) in enumerate(order):
            p(mf16(ACC(f, t), W(u * 14 + f, g), X(u, t, g)))
            if i % 2 == 0:
                n = i // 2 + LEAD
                if n == 56:
                    cnt = 15 * (DA - 1) + (0 if XD == 2 else 8)
                    p(f"s_waitcnt vmcnt({cnt})")
                    p(f"""
                    s_add_u32 s{s_rsl}, s{s_rsl}, {SLOT}
                    s_cmp_eq_u32 s{s_rsl}, {SLOT * NSLOT}
                    s_cselect_b32 s{s_rsl}, 0, s{s_rsl}
                    s_barrier
                    v_add_u32 v{vA}, s{s_rsl}, v{vAb}""")
                p.add(rd(u * 14 + (n >> 2), n & 3))
            p.add(fill.get(i, []))
    p(f"""
    s_sub_u32 s{s_cnt}, s{s_cnt}, 1
    s_cmp_lg_u32 s{s_cnt}, 0
    s_cbranch_scc1 {name}_loop
    """)
    p.end_loop()

    p(f"""
    s_mov_b32 s{s_t0}, {f32hex(1.0/1024)}
    v_mov_b32 v{vt+4}, {f32hex(1e-5)}
    """)
    for t in range(4):
        for i in range(4):
            p(f"v_accvgpr_read_b32 v{vt+i}, a{SQ+4*t+i}")
        p(f"""
        v_add_f32 v{vt}, v{vt}, v{vt+1}
        v_add_f32 v{vt+2}, v{vt+2}, v{vt+3}
        v_add_f32 v{vR+t}, v{vt}, v{vt+2}""")
        xsum16_32(p, f"v{vR+t}", f"v{vt}")
        p(f"""
        v_fma_f32 v{vR+t}, v{vR+t}, s{s_t0}, v{vt+4}
        v_rsq_f32 v{vR+t}, v{vR+t}""")
    p(f"""
    v_lshrrev_b32 v{vt}, 4, v0
    v_cmp_eq_u32 vcc, 1, v{vt}
    v_cndmask_b32 v{vt+1}, v{vR}, v{vR+1}, vcc
    v_cmp_eq_u32 vcc, 2, v{vt}
    v_cndmask_b32 v{vt+1}, v{vt+1}, v{vR+2}, vcc
    v_cmp_eq_u32 vcc, 3, v{vt}
    v_cndmask_b32 v{vt+1}, v{vt+1}, v{vR+3}, vcc
    v_lshlrev_b32 v{vt}, 2, v0
    s_lshl_b32 s{s_t0}, s{s_tok}, 2
    s_add_u32 s{s_t0}, s{s_t0}, {ST_RSTD}
    s_cmp_eq_u32 s{s_nb}, 0
    s_cselect_b32 s{s_t0}, s{s_t0}, s{sT+2}
    buffer_store_dword v{vt+1}, v{vt}, s[{sT}:{sT+3}], s{s_t0} offen
    """)
    for t in range(4):
        p(f"v_mul_f32 v{vR+t}, {f32hex(-LOG2E)}, v{vR+t}")
    s_of, s_oh = s_xo, s_xe
    p(f"""
    s_mul_i32 s{s_t0}, s{s_tok}, {112 * 64}
    s_mul_i32 s{s_t1}, s{s_nb}, 7
    s_add_u32 s{s_t1}, s{s_t1}, s{s_par}
    s_lshl_b32 s{s_t1}, s{s_t1}, 9
    s_add_u32 s{s_of}, s{s_t0}, s{s_t1}
    s_mul_i32 s{s_t1}, s{s_par}, 4088
    s_add_u32 s{s_oh}, s{s_of}, 3072
    s_sub_u32 s{s_oh}, s{s_oh}, s{s_t1}
    """)
    for t in range(1, 4):
        p(f"v_add_u32 v{vX+t}, {t * 112 * 1024}, v{vX}")
    for pr in range(7):
        for t in range(4):
            g = AB + ((2 * pr) * 4 + t) * 4
            u_ = AB + ((2 * pr + 1) * 4 + t) * 4
            for r in range(4): p(f"v_mul_f32 v{g+r}, v{vR+t}, v{g+r}")
            for r in range(4): p(f"v_exp_f32 v{g+r}, v{g+r}")
            for r in range(4): p(f"v_add_f32 v{g+r}, 1.0, v{g+r}")
            for r in range(4): p(f"v_rcp_f32 v{g+r}, v{g+r}")
            for r in range(4): p(f"v_mul_f32 v{u_+r}, v{u_+r}, v{g+r}")
            d = AB + ((2 * (pr & ~1)) * 4 + t) * 4 + (pr & 1) * 2
            p(f"v_cvt_pk_bf16_f32 v{d}, v{u_}, v{u_+1}")
            p(f"v_cvt_pk_bf16_f32 v{d+1}, v{u_+2}, v{u_+3}")
            if pr & 1:
                p(f"buffer_store_dwordx4 {rr('v', d-2, 4)}, v{vX+t}, s[{sH}:{sH+3}], s{s_of} offen offset:{(pr>>1)*1024}")
            elif pr == 6:
                p(f"buffer_store_dwordx2 {rr('v', d, 2)}, v{vX+t}, s[{sH}:{sH+3}], s{s_oh} offen")
    p(f"{name}_end:")
    p("s_endpgm")
    return p
```

```python
from common import *

SLOT = 28672
NSLOT = 5
LDS_CS = SLOT * NSLOT
LDS_VT = LDS_CS + 512
LDS_QKV = LDS_VT + 1024


def gen_qkv(name):
    NS = 16
    p = Prog()
    sX, sW, sE, sQ, sK, sT, sO = 4, 8, 12, 16, 20, 24, 28
    s_w, s_b, s_j, s_role, s_tsw = 32, 33, 34, 35, 36
    s_xo, s_xe, s_xend, s_wo, s_eo, s_m0, s_cnt, s_t0, s_t1, s_dsl, s_rsl, s_tok = range(37, 49)
    s_p = 52
    s_pwo, s_ws = 60, 62
    pro = p.segment()
    p(f"""
    s_cmp_ge_u32 s2, 256
    s_cbranch_scc1 {name}_end
    s_load_dwordx8 s[{s_p}:{s_p+7}], s[0:1], {A_X}
    s_load_dwordx2 s[{s_pwo}:{s_pwo+1}], s[0:1], {A_WO}
    s_load_dwordx2 s[{s_ws}:{s_ws+1}], s[0:1], {A_WS}
    v_lshrrev_b32 v1, 6, v0
    v_and_b32 v0, 63, v0
    v_readfirstlane_b32 s{s_w}, v1
    s_and_b32 s{s_t0}, s2, 7
    s_lshr_b32 s{s_t1}, s2, 3
    s_lshr_b32 s{s_b}, s{s_t0}, 1
    s_lshl_b32 s{s_b}, s{s_b}, 2
    s_and_b32 s{s_j}, s{s_t1}, 3
    s_add_u32 s{s_b}, s{s_b}, s{s_j}
    s_and_b32 s{s_j}, s{s_t0}, 1
    s_lshl_b32 s{s_j}, s{s_j}, 3
    s_lshr_b32 s{s_t1}, s{s_t1}, 2
    s_add_u32 s{s_j}, s{s_j}, s{s_t1}
    s_bfe_u32 s{s_tsw}, s{s_j}, 0x10001
    s_lshr_b32 s{s_t0}, s{s_j}, 2
    s_sub_u32 s{s_role}, s{s_w}, s{s_t0}
    s_and_b32 s{s_role}, s{s_role}, 3
    """)
    vD = 2
    vB = 10
    vA = 18
    vt = 26
    ONES = 36
    vRS = 40
    AB = 48
    SUMB, GRB, EB = 80, 88, 96
    FB = 112
    ACC = lambda F, t: rr('v', AB + (F * 2 + t) * 4, 4)
    SUM = lambda t: rr('v', SUMB + 4 * t, 4)
    GR = lambda t: rr('v', GRB + 4 * t, 4)
    EA = lambda e: rr('v', EB + 4 * e, 4)
    X = lambda s, t, g: rr('v', FB + s * 64 + (t * 2 + g) * 4, 4)
    W = lambda s, F, g: rr('v', FB + s * 64 + 16 + (F * 2 + g) * 4, 4)
    Wh = lambda s, F, g, b: rr('v', FB + s * 64 + 16 + (F * 2 + g) * 4 + 2 * b, 2)
    p(f"""
    v_lshrrev_b32 v{vt}, 3, v0
    v_lshrrev_b32 v{vt+1}, 4, v0
    v_and_b32 v{vt+2}, 7, v0
    v_xor_b32 v{vt+3}, v{vt+1}, v{vt+2}
    v_lshlrev_b32 v{vt+3}, 4, v{vt+3}
    v_lshl_add_u32 v{vt+3}, v{vt}, 11, v{vt+3}
    s_lshl_b32 s{s_t0}, s{s_tsw}, 15
    s_xor_b32 s{s_t1}, s{s_t0}, 0x8000
    v_xor_b32 v{vt+4}, 64, v{vt+3}
    v_add_u32 v{vt+4}, {8*2048}, v{vt+4}
    v_add_u32 v{vD}, s{s_t0}, v{vt+3}
    v_add_u32 v{vD+1}, s{s_t0}, v{vt+4}
    v_add_u32 v{vD+2}, s{s_t1}, v{vt+3}
    v_add_u32 v{vD+3}, s{s_t1}, v{vt+4}
    """)
    for i in range(4):
        p(f"v_add_u32 v{vD+i}, {4096 - 1024 * i}, v{vD+i}")
    p(f"""
    v_and_b32 v{vt+1}, 1, v{vt+1}
    v_lshlrev_b32 v{vt+1}, 1, v{vt+1}
    v_xor_b32 v{vt+1}, v{vt+1}, v{vt+2}
    v_lshlrev_b32 v{vt+1}, 4, v{vt+1}
    v_lshl_add_u32 v{vD+4}, v{vt}, 11, v{vt+1}
    v_xor_b32 v{vD+5}, 64, v{vD+4}
    v_add_u32 v{vD+5}, {8*2048 - 1024}, v{vD+5}
    v_lshrrev_b32 v{vt+1}, 5, v0
    v_lshlrev_b32 v{vt+1}, 1, v{vt+1}
    v_xor_b32 v{vt+1}, v{vt+1}, v0
    v_lshlrev_b32 v{vD+6}, 4, v{vt+1}
    s_lshl_b32 s{s_tok}, s{s_b}, 2
    s_add_u32 s{s_tok}, s{s_tok}, s{s_w}
    s_lshl_b32 s{s_tok}, s{s_tok}, 5
    s_lshl_b32 s{s_xo}, s{s_tok}, 11
    s_add_u32 s{s_xend}, s{s_xo}, 2048
    s_lshl_b32 s{s_wo}, s{s_w}, 15
    s_lshl_b32 s{s_t1}, s{s_j}, 7
    s_add_u32 s{s_wo}, s{s_wo}, s{s_t1}
    s_lshl_b32 s{s_eo}, s{s_w}, 10
    s_mul_i32 s{s_m0}, s{s_w}, 7168
    s_mov_b32 s{s_dsl}, 0
    s_mov_b32 s{s_rsl}, 0
    """)
    p(f"""
    s_sub_u32 s{sX}, s{s_p}, 4096
    s_subb_u32 s{sX+1}, s{s_p+1}, 0
    s_mov_b32 s{sX+2}, {hex(S * D * 2 + 4096)}
    s_mov_b32 s{sX+3}, 0x20000
    s_bitcmp0_b32 s{s_j}, 0
    s_cselect_b32 s{sE}, s{s_p+4}, s{s_p+6}
    s_cselect_b32 s{sE+1}, s{s_p+5}, s{s_p+7}
    s_sub_u32 s{sE}, s{sE}, 2048
    s_subb_u32 s{sE+1}, s{sE+1}, 0
    s_mov_b32 s{sE+2}, {hex(D * 64 + 2048)}
    s_mov_b32 s{sE+3}, 0x20000
    """)
    srd_in(p, sW, s_p + 2, D * D * 2)

    def dma(tag):
        o = [Ins(f"s_cmp_lt_u32 s{s_xo}, s{s_xend}"), Ins(f"s_cselect_b32 s{s_xe}, s{s_xo}, s{sX+2}"),
             Ins(f"s_add_u32 m0, s{s_m0}, s{s_dsl}")]
        for i in range(4):
            o.append(Ins(f"buffer_load_dwordx4 v{vD+i}, s[{sX}:{sX+3}], s{s_xe} offen offset:{i*1024} lds", awr=[tag], nowaw=True))
        o.append(Ins("s_add_u32 m0, m0, 4096"))
        o.append(Ins(f"s_add_u32 s{s_xo}, s{s_xo}, 128"))
        for i in range(2):
            o.append(Ins(f"buffer_load_dwordx4 v{vD+4+i}, s[{sW}:{sW+3}], s{s_wo} offen offset:{i*1024} lds", awr=[tag], nowaw=True))
        o.append(Ins(f"buffer_load_dwordx4 v{vD+6}, s[{sE}:{sE+3}], s{s_eo} offen offset:2048 lds", awr=[tag], nowaw=True))
        o += [Ins(f"s_add_u32 s{s_wo}, s{s_wo}, {64 * 2048}"),
              Ins(f"s_add_u32 s{s_eo}, s{s_eo}, 4096"),
              Ins(f"s_add_u32 s{s_dsl}, s{s_dsl}, {SLOT}"),
              Ins(f"s_cmp_eq_u32 s{s_dsl}, {SLOT * NSLOT}"),
              Ins(f"s_cselect_b32 s{s_dsl}, 0, s{s_dsl}")]
        return o
    for u in range(NSLOT - 1):
        p.add(dma('L0' if u == 0 else 'Lx'))
    p(f"""
    v_and_b32 v{vt}, 15, v0
    v_lshrrev_b32 v{vt+1}, 1, v{vt}
    v_lshrrev_b32 v{vt+2}, 4, v0
    v_xor_b32 v{vt+1}, v{vt+1}, v{vt+2}
    v_lshlrev_b32 v{vt+1}, 4, v{vt+1}
    v_lshl_add_u32 v{vt+1}, v{vt}, 7, v{vt+1}
    v_xor_b32 v{vt+3}, 64, v{vt+1}
    v_add_u32 v{vB}, s{s_m0}, v{vt+1}
    v_add_u32 v{vB+1}, s{s_m0}, v{vt+3}
    v_lshrrev_b32 v{vt}, 5, v0
    v_mul_u32_u24 v{vt}, 7168, v{vt}
    v_and_b32 v{vt+1}, 3, v0
    v_lshl_add_u32 v{vt}, v{vt+1}, 3, v{vt}
    v_bfe_u32 v{vt+1}, v0, 2, 2
    v_bfe_u32 v{vt+2}, v0, 4, 1
    v_lshl_add_u32 v{vt+3}, v{vt+2}, 3, v{vt+1}
    v_bfe_u32 v{vt+4}, v0, 3, 2
    v_lshlrev_b32 v{vt+4}, 5, v{vt+4}
    v_lshl_add_u32 v{vt+4}, v{vt+3}, 7, v{vt+4}
    v_add_u32 v{vB+2}, v{vt}, v{vt+4}
    v_xor_b32 v{vB+3}, 32, v{vB+2}
    v_xor_b32 v{vB+4}, 64, v{vB+2}
    v_xor_b32 v{vB+5}, 0x60, v{vB+2}
    v_lshlrev_b32 v{vt+4}, 5, v{vt+2}
    v_lshl_add_u32 v{vt+4}, v{vt+3}, 6, v{vt+4}
    v_add_u32 v{vB+6}, v{vt}, v{vt+4}
    v_xor_b32 v{vB+7}, 32, v{vB+6}
    """)
    for i in range(8):
        p(f"v_mov_b32 v{vA+i}, v{vB+i}")
    for i in range(4):
        p(f"v_mov_b32 v{ONES+i}, 0x3f803f80")
    for i in range(AB, EB + 8):
        p(f"v_mov_b32 v{i}, 0")
    srd_ws(p, sQ, s_ws, QF)
    srd_ws(p, sK, s_ws, KV)
    srd_ws(p, sT, s_ws, ST)
    srd_in(p, sO, s_pwo, D * D * 2)

    def reads(s, usee):
        o = []
        for g in range(2):
            for t in range(2):
                o.append(Ins(f"ds_read_b128 {X(s, t, g)}, v{vA+g} offset:{t*2048}"))
        for F in range(6 if usee else 4):
            for g in range(2):
                for b in range(2):
                    off = 2 * g * 7168 + (4096 + b * 512 if F < 4 else 6144 + b * 256)
                    o.append(Ins(f"ds_read_b64_tr_b16 {Wh(s, F, g, b)}, v{vA+2+F} offset:{off}"))
        return o

    def advance(usee):
        return [Ins(f"s_add_u32 s{s_rsl}, s{s_rsl}, {SLOT}"), Ins(f"s_cmp_eq_u32 s{s_rsl}, {SLOT * NSLOT}"),
                Ins(f"s_cselect_b32 s{s_rsl}, 0, s{s_rsl}")] + \
               [Ins(f"v_add_u32 v{vA+i}, s{s_rsl}, v{vB+i}") for i in range(8 if usee else 6)]

    p("s_barrier", rd=['L0'])
    p.add(reads(0, True))
    p.add(advance(True))
    p(f"s_mov_b32 s{s_cnt}, {NS // 2}")
    for r in range(1, 4):
        p(f"""
        s_cmp_eq_u32 s{s_role}, {r}
        s_cbranch_scc1 {name}_role{r}""")
    on = rr('v', ONES, 4)
    segs = []
    for role in range(4):
        segs.append(p.segment())
        p(f"{name}_role{role}:")
        usee = role in (0, 3)
        p.begin_loop(f"{name}_loop{role}", NS // 2, align=False)
        for s in range(2):
            mf = []
            for t in range(2):
                mf += [mf16(SUM(t), on, X(s, t, g)) for g in range(2)]
                mf += [mf16(GR(t), X(s, t, g), X(s, t, g)) for g in range(2)]
            for F in range(4):
                for t in range(2):
                    mf += [mf16(ACC(F, t), W(s, F, g), X(s, t, g)) for g in range(2)]
            for e in range(2):
                for g in range(2):
                    if role == 0: mf.append(mf16(EA(e), W(s, 4 + e, g), X(s, 0, g)))
                    else: mf.append(mf16(EA(e), W(s, 2 * (role - 1) + e, g), on))
            rds = reads(1 - s, usee)
            vm = dma('Lx')
            fill = {}
            pos = 1
            for ins in vm:
                fill.setdefault(pos, []).append(ins)
                if ins.kind == 'vmem': pos += 3
            p(f"s_waitcnt vmcnt({7 * (NSLOT - 3)})")
            p("s_barrier")
            for i, m in enumerate(mf):
                p(m)
                if i < len(rds): p.add(rds[i])
                p.add(fill.get(i, []))
            p.add(advance(usee))
        p(f"""
        s_sub_u32 s{s_cnt}, s{s_cnt}, 1
        s_cmp_lg_u32 s{s_cnt}, 0
        s_cbranch_scc1 {name}_loop{role}""")
        p.end_loop()
        if role:
            p(f"""
            v_lshrrev_b32 v{vt}, 4, v0
            v_lshlrev_b32 v{vt}, 4, v{vt}
            v_add_u32 v{vt}, {LDS_CS + (role - 1) * 128}, v{vt}
            ds_write_b128 v{vt}, {EA(0)}
            ds_write_b128 v{vt}, {EA(1)} offset:64""")
        if role < 3:
            p(f"s_branch {name}_epi")
    epi = p.segment()
    CS = FB
    vM, vR = vA, vA + 2
    p(f"""
    {name}_epi:
    s_lshl_b32 s{s_t0}, s2, 2
    s_add_u32 s{s_t0}, s{s_t0}, s{s_w}
    s_lshl_b32 s{s_t1}, s{s_t0}, 11
    v_lshlrev_b32 v{vt+8}, 4, v0
    buffer_load_dwordx4 {rr('v', vRS, 4)}, v{vt+8}, s[{sO}:{sO+3}], s{s_t1} offen
    buffer_load_dwordx4 {rr('v', vRS+4, 4)}, v{vt+8}, s[{sO}:{sO+3}], s{s_t1} offen offset:1024
    s_waitcnt lgkmcnt(0)
    s_barrier
    v_lshrrev_b32 v{vt}, 4, v0
    v_lshlrev_b32 v{vt}, 4, v{vt}
    v_add_u32 v{vt}, {LDS_CS}, v{vt}
    """)
    for F in range(6):
        p(f"ds_read_b128 {rr('v', CS + 4*F, 4)}, v{vt} offset:{F*64}")
    p(f"""
    v_and_b32 v{vt}, 3, v0
    v_cmp_eq_u32 s[64:65], 1, v{vt}
    v_cmp_eq_u32 s[66:67], 2, v{vt}
    v_cmp_eq_u32 s[68:69], 3, v{vt}
    v_bfe_u32 v{vt}, v0, 2, 2
    v_lshrrev_b32 v{vt+1}, 4, v0
    v_cmp_eq_u32 vcc, v{vt}, v{vt+1}
    s_mov_b32 s{s_t1}, {f32hex(1.0/1024)}
    """)
    for t in range(2):
        g = GRB + 4 * t
        p(f"""
        v_cndmask_b32 v{g}, v{g}, v{g+1}, s[64:65]
        v_cndmask_b32 v{g}, v{g}, v{g+2}, s[66:67]
        v_cndmask_b32 v{g}, v{g}, v{g+3}, s[68:69]
        v_cndmask_b32 v{g}, 0, v{g}, vcc""")
        xsum16_32(p, f"v{g}", f"v{g+1}")
        p(f"""
        v_mul_f32 v{vM+t}, s{s_t1}, v{SUMB+4*t}
        v_mul_f32 v{g+1}, v{vM+t}, v{vM+t}
        v_fma_f32 v{g}, v{g}, s{s_t1}, -v{g+1}
        v_max_f32 v{g}, 0, v{g}
        v_add_f32 v{g}, {f32hex(1e-5)}, v{g}
        v_rsq_f32 v{vR+t}, v{g}
        v_mul_f32 v{vR+2+t}, {f32hex(LOG2E * DH ** -0.5)}, v{vR+t}""")
    vS = vt + 2
    p(f"""
    v_lshrrev_b32 v{vt}, 4, v0
    v_lshlrev_b32 v{vt}, 9, v{vt}
    v_and_b32 v{vt+1}, 15, v0
    v_lshl_add_u32 v{vt}, v{vt+1}, 4, v{vt}
    s_lshl_b32 s{s_t1}, s{s_tsw}, 8
    v_add_u32 v{vS}, s{s_t1}, v{vt}
    v_xor_b32 v{vS+1}, 0x100, v{vS}
    s_lshl_b32 s{s_xo}, s{s_j}, 18
    s_lshl_b32 s{s_t1}, s{s_tok}, 6
    s_add_u32 s{s_xo}, s{s_xo}, s{s_t1}
    s_add_u32 s{s_xe}, s{s_xo}, 0x20000
    """)
    PK = CS + 32
    for hd in range(2):
        for t in range(2):
            d = PK + (hd * 2 + t) * 4
            for f in range(2):
                F = 2 * hd + f
                a = AB + (F * 2 + t) * 4
                for r in range(4): p(f"v_fma_f32 v{a+r}, -v{vM+t}, v{CS+4*F+r}, v{a+r}")
                for r in range(4): p(f"v_mul_f32 v{a+r}, v{vR+2+t}, v{a+r}")
                p(f"v_cvt_pk_bf16_f32 v{d+2*f}, v{a}, v{a+1}")
                p(f"v_cvt_pk_bf16_f32 v{d+2*f+1}, v{a+2}, v{a+3}")
            p(f"buffer_store_dwordx4 {rr('v', d, 4)}, v{vS+t}, s[{sQ}:{sQ+3}], s{s_xe if hd else s_xo} offen")
    p(f"""
    v_cmp_gt_u32 vcc, 16, v0
    v_cndmask_b32 v{vt}, v{vM+1}, v{vM}, vcc
    s_lshl_b32 s{s_t1}, s{s_tsw}, 4
    v_xor_b32 v{vt+1}, s{s_t1}, v0
    v_lshlrev_b32 v{vt+1}, 2, v{vt+1}
    s_lshl_b32 s{s_t1}, s{s_tok}, 2
    s_cmp_eq_u32 s{s_j}, 0
    s_cselect_b32 s{s_t1}, s{s_t1}, s{sT+2}
    s_mov_b32 exec_hi, 0
    buffer_store_dword v{vt}, v{vt+1}, s[{sT}:{sT+3}], s{s_t1} offen offset:{ST_MEANX}
    s_mov_b32 exec_hi, -1
    s_cmp_lg_u32 s{s_role}, 0
    s_cbranch_scc1 {name}_rs
    """)
    kv = p.segment()
    d = PK + 16
    for e in range(2):
        a = EB + 4 * e
        for r in range(4): p(f"v_fma_f32 v{a+r}, -v{vM}, v{CS+16+4*e+r}, v{a+r}")
        for r in range(4): p(f"v_mul_f32 v{a+r}, v{vR}, v{a+r}")
        p(f"v_cvt_pk_bf16_f32 v{d+2*e}, v{a}, v{a+1}")
        p(f"v_cvt_pk_bf16_f32 v{d+2*e+1}, v{a+2}, v{a+3}")
    p(f"""
    s_lshl_b32 s{s_xo}, s{s_tok}, 7
    s_bitcmp1_b32 s{s_j}, 0
    s_cbranch_scc1 {name}_v""")
    kk = p.segment()
    p(f"""
    buffer_store_dwordx4 {rr('v', d, 4)}, v{vS}, s[{sK}:{sK+3}], s{s_xo} offen
    s_branch {name}_rs""")
    vv = p.segment()
    p(f"""
    {name}_v:
    v_and_b32 v{vt}, 15, v0
    v_lshlrev_b32 v{vt}, 6, v{vt}
    v_lshrrev_b32 v{vt+1}, 4, v0
    v_lshl_add_u32 v{vt}, v{vt+1}, 3, v{vt}
    v_add_u32 v{vt}, {LDS_VT}, v{vt}
    ds_write_b64 v{vt}, {rr('v', d, 2)}
    ds_write_b64 v{vt}, {rr('v', d+2, 2)} offset:32
    v_lshrrev_b32 v{vt+4}, 2, v0
    v_lshlrev_b32 v{vt+4}, 6, v{vt+4}
    v_and_b32 v{vt+5}, 3, v0
    v_lshl_add_u32 v{vt+4}, v{vt+5}, 3, v{vt+4}
    v_add_u32 v{vt+4}, {LDS_VT}, v{vt+4}
    ds_read_b64_tr_b16 {rr('v', d+4, 2)}, v{vt+4}
    ds_read_b64_tr_b16 {rr('v', d+6, 2)}, v{vt+4} offset:32
    v_and_b32 v{vt}, 15, v0
    v_lshlrev_b32 v{vt}, 4, v{vt}
    v_bfe_u32 v{vt+1}, v0, 4, 1
    v_lshl_add_u32 v{vt}, v{vt+1}, 9, v{vt}
    v_lshrrev_b32 v{vt+1}, 5, v0
    v_lshl_add_u32 v{vt}, v{vt+1}, 3, v{vt}
    s_lshl_b32 s{s_t1}, s{s_tsw}, 10
    s_add_u32 s{s_xo}, s{s_xo}, s{s_t1}
    buffer_store_dwordx2 {rr('v', d+4, 2)}, v{vt}, s[{sK}:{sK+3}], s{s_xo} offen offset:2048
    buffer_store_dwordx2 {rr('v', d+6, 2)}, v{vt}, s[{sK}:{sK+3}], s{s_xo} offen offset:{2048 + 256}
    """)
    rs = p.segment()
    p(f"{name}_rs:")
    p(mf16(SUM(0), on, rr('v', vRS, 4), "0"))
    p(mf16(SUM(0), on, rr('v', vRS + 4, 4)))
    z = SUMB
    p(f"""
    v_add_f32_dpp v{z}, v{z}, v{z} row_ror:8 row_mask:0xf bank_mask:0xf
    v_add_f32_dpp v{z}, v{z}, v{z} row_ror:4 row_mask:0xf bank_mask:0xf
    v_add_f32_dpp v{z}, v{z}, v{z} row_ror:2 row_mask:0xf bank_mask:0xf
    v_add_f32_dpp v{z}, v{z}, v{z} row_ror:1 row_mask:0xf bank_mask:0xf
    v_cvt_pk_bf16_f32 v{z+1}, v{z}, v{z}
    v_and_b32 v{z+2}, 0xffff0000, v{z+1}
    v_sub_f32 v{z+2}, v{z}, v{z+2}
    v_cvt_pk_bf16_f32 v{z+2}, v{z+2}, v{z+2}
    v_cmp_eq_u32 vcc, 0, v0
    v_cndmask_b32 v{z+1}, v{z+2}, v{z+1}, vcc
    v_lshlrev_b32 v{z+3}, 11, v0
    s_and_b32 s{s_t1}, s{s_t0}, 0x3f3
    s_bfe_u32 s{s_xo}, s{s_t0}, 0x10002
    s_lshl_b32 s{s_xo}, s{s_xo}, 3
    s_or_b32 s{s_t1}, s{s_t1}, s{s_xo}
    s_bfe_u32 s{s_xo}, s{s_t0}, 0x10003
    s_lshl_b32 s{s_xo}, s{s_xo}, 2
    s_or_b32 s{s_t1}, s{s_t1}, s{s_xo}
    s_lshl_b32 s{s_t1}, s{s_t1}, 1
    s_add_u32 s{s_t1}, s{s_t1}, {ST_RS}
    s_mov_b64 exec, 3
    buffer_store_short v{z+1}, v{z+3}, s[{sT}:{sT+3}], s{s_t1} offen
    {name}_end:
    s_endpgm""")
    p.paths = [[pro, segs[0], epi, kv, kk, rs], [pro, segs[0], epi, kv, vv, rs]] + [[pro, segs[r], epi, rs] for r in (1, 2, 3)]
    return p
```

```python
import sys
sys.path.insert(0, 'dev')
from common import *
import k_qkv, k_attn, k_gemms, k_gu

HDR = open('sequential_preLN__grouped_kv_mqa__glu_gated_glu__prompt.s.ref').read().split('; Override launch')[0]

def build(opts=None):
    o = dict(XD=2, NSLOT=4, prefetch=True)
    o.update(opts or {})
    ks = [
        ('qkv_kernel', k_qkv.gen_qkv('qkv'), 256, k_qkv.LDS_QKV),
        ('attn_kernel', k_attn.gen_attn('attn', o['prefetch']), 512, k_attn.LDS_ATT),
        ('wo_kernel', k_gemms.gen_gemms('wo', 'wo'), 256, k_gemms.LDS_GEMMS),
        ('gu_kernel', k_gu.gen_gu('gu', o['XD'], o['NSLOT']), 256, k_gu.SLOT * o['NSLOT']),
        ('down_kernel', k_gemms.gen_gemms('down', 'down'), 256, k_gemms.LDS_GEMMS),
    ]
    txt = HDR
    for n, pr, blk, lds in ks:
        txt += f"; @launch kernel={n} grid=(256,1,1) block=({blk},1,1) lds={lds}\n"
    txt += '.amdgcn_target "amdgcn-amd-amdhsa--gfx950"\n.text\n'
    descs = []
    for n, pr, blk, lds in ks:
        c, d = kernel_text(n, pr)
        txt += c
        descs.append(d)
    txt += '.section .rodata,"a"\n'
    for d in descs:
        txt += '.p2align 6\n' + d
    return txt

if __name__ == '__main__':
    out = sys.argv[1] if len(sys.argv) > 1 else 'sequential_preLN__grouped_kv_mqa__glu_gated_glu__prompt.s'
    opts = eval(sys.argv[2]) if len(sys.argv) > 2 else {}
    open(out, 'w').write(build(opts))
    print('wrote', out)
```

```python
import sys
sys.path.insert(0, 'dev')
from common import *
import k_qkv, k_attn, k_gemms, k_gu

HDR = open('sequential_preLN__grouped_kv_mqa__glu_gated_glu__prompt.s.ref').read().split('; Override launch')[0]

def build(opts=None):
    o = dict(XD=2, NSLOT=4, prefetch=True)
    o.update(opts or {})
    ks = [
        ('qkv_kernel', k_qkv.gen_qkv('qkv'), 256, k_qkv.LDS_QKV),
        ('attn_kernel', k_attn.gen_attn('attn', o['prefetch']), 512, k_attn.LDS_ATT),
        ('wo_kernel', k_gemms.gen_gemms('wo', 'wo'), 256, k_gemms.LDS_GEMMS),
        ('gu_kernel', k_gu.gen_gu('gu', o['XD'], o['NSLOT']), 256, k_gu.SLOT * o['NSLOT']),
        ('down_kernel', k_gemms.gen_gemms('down', 'down'), 256, k_gemms.LDS_GEMMS),
    ]
    if o.get('empty'):
        pe = Prog(); pe("s_endpgm")
        ks_l = list(ks)
        for i in range(o['empty']):
            ks_l.insert(o.get('empty_at', 1), ('empty_kernel', pe, 256, 0))
        ks = ks + [('empty_kernel', pe, 256, 0)]
    else:
        ks_l = ks
    if o.get('repeat'):
        ks_l = [k for k in ks_l for _ in range(1 + (k[0] == o['repeat']))]
    txt = HDR
    for n, pr, blk, lds in ks_l:
        txt += f"; @launch kernel={n} grid=(256,1,1) block=({blk},1,1) lds={lds}\n"
    txt += '.amdgcn_target "amdgcn-amd-amdhsa--gfx950"\n.text\n'
    descs = []
    for n, pr, blk, lds in ks:
        c, d = kernel_text(n, pr)
        txt += c
        descs.append(d)
    txt += '.section .rodata,"a"\n'
    for d in descs:
        txt += '.p2align 6\n' + d
    return txt

if __name__ == '__main__':
    out = sys.argv[1] if len(sys.argv) > 1 else 'sequential_preLN__grouped_kv_mqa__glu_gated_glu__prompt.s'
    opts = eval(sys.argv[2]) if len(sys.argv) > 2 else {}
    open(out, 'w').write(build(opts))
    print('wrote', out)
```

```python
import sys
sys.path.insert(0, 'dev')
from common import *
import k_qkv, k_attn, k_gemms, k_gu

HDR = open('sequential_preLN__grouped_kv_mqa__glu_gated_glu__prompt.s.ref').read().split('; Override launch')[0]

def add_stamps(c, d, n, idx):
    base = n[:-7]
    c = c.replace(f"{n}:\n", f"{n}:\n    s_memrealtime s[96:97]\n    s_load_dwordx2 s[92:93], s[0:1], {A_DBG}\n    s_waitcnt lgkmcnt(0)\n", 1)
    tail = f'''    s_waitcnt vmcnt(0)
    s_memrealtime s[98:99]
    s_sub_u32 s92, s92, {512 * idx}
    s_subb_u32 s93, s93, 0
    s_mov_b32 s94, 64
    s_mov_b32 s95, 0x20000
    s_waitcnt lgkmcnt(0)
    s_mov_b64 exec, 1
    s_not_b32 s97, s96
    v_mov_b32 v1, s97
    v_mov_b32 v2, s98
    v_mov_b32 v3, s96
    v_mov_b32 v0, 0
    buffer_atomic_umax v1, v0, s[92:95], 0 offen offset:{idx * 12}
    buffer_atomic_umax v3, v0, s[92:95], 0 offen offset:{idx * 12 + 4}
    buffer_atomic_umax v2, v0, s[92:95], 0 offen offset:{idx * 12 + 8}
'''
    c = c.replace(f"{base}_end:\n", tail + f"{base}_end:\n", 1)
    import re
    d = re.sub(r"next_free_sgpr \d+", "next_free_sgpr 102", d)
    return c, d

def build(opts=None):
    o = dict(XD=2, NSLOT=4, prefetch=True)
    o.update(opts or {})
    ks = [
        ('qkv_kernel', k_qkv.gen_qkv('qkv'), 256, k_qkv.LDS_QKV),
        ('attn_kernel', k_attn.gen_attn('attn', o['prefetch']), 512, k_attn.LDS_ATT),
        ('wo_kernel', k_gemms.gen_gemms('wo', 'wo'), 256, k_gemms.LDS_GEMMS),
        ('gu_kernel', k_gu.gen_gu('gu', o['XD'], o['NSLOT']), 256, k_gu.SLOT * o['NSLOT']),
        ('down_kernel', k_gemms.gen_gemms('down', 'down'), 256, k_gemms.LDS_GEMMS),
    ]
    if o.get('empty'):
        pe = Prog(); pe("s_endpgm")
        ks_l = list(ks)
        for i in range(o['empty']):
            ks_l.insert(o.get('empty_at', 1), ('empty_kernel', pe, 256, 0))
        ks = ks + [('empty_kernel', pe, 256, 0)]
    else:
        ks_l = ks
    if o.get('repeat'):
        ks_l = [k for k in ks_l for _ in range(1 + (k[0] == o['repeat']))]
    txt = HDR
    for n, pr, blk, lds in ks_l:
        txt += f"; @launch kernel={n} grid=(256,1,1) block=({blk},1,1) lds={lds}\n"
    txt += '.amdgcn_target "amdgcn-amd-amdhsa--gfx950"\n.text\n'
    descs = []
    for n, pr, blk, lds in ks:
        c, d = kernel_text(n, pr)
        if o.get('stamp') and n != 'empty_kernel':
            c, d = add_stamps(c, d, n, [k[0] for k in ks_l].index(n))
        txt += c
        descs.append(d)
    txt += '.section .rodata,"a"\n'
    for d in descs:
        txt += '.p2align 6\n' + d
    return txt

if __name__ == '__main__':
    out = sys.argv[1] if len(sys.argv) > 1 else 'sequential_preLN__grouped_kv_mqa__glu_gated_glu__prompt.s'
    opts = eval(sys.argv[2]) if len(sys.argv) > 2 else {}
    open(out, 'w').write(build(opts))
    print('wrote', out)
```

```python
import re

REG_RE = re.compile(r'^(-|abs\(|\|)*([vas])(\d+)\)?\|?$')
RNG_RE = re.compile(r'^(-|abs\(|\|)*([vas])\[(\d+):(\d+)\]\)?\|?$')
TRANS = ('v_exp_', 'v_log_', 'v_rcp_', 'v_rsq_', 'v_sqrt_', 'v_sin_', 'v_cos_')


def regs_of(tok):
    tok = tok.strip()
    m = REG_RE.match(tok)
    if m:
        return [m.group(2) + m.group(3)]
    m = RNG_RE.match(tok)
    if m:
        return [m.group(2) + str(i) for i in range(int(m.group(3)), int(m.group(4)) + 1)]
    if tok in ('vcc', 'vcc_lo', 'vcc_hi'):
        return ['vcc']
    if tok in ('exec', 'exec_lo', 'exec_hi'):
        return ['exec']
    if tok == 'm0':
        return ['m0']
    return []


class Ins:
    def __init__(self, text, rd=(), wr=(), awr=(), nowaw=False, pend_rd=()):
        self.text = text
        t = text.split(';')[0].strip()
        parts = t.split(None, 1)
        self.op = op = parts[0]
        rest = parts[1] if len(parts) > 1 else ''
        rest = re.sub(r'((?:op_sel|op_sel_hi|neg_lo|neg_hi|quad_perm):\[[^\]]*\])', lambda m: m.group(1).replace(',', '|'), rest)
        toks = [x.strip() for x in rest.split(',')]
        mods = []
        if toks and toks[-1]:
            l = toks[-1].split()
            toks[-1] = l[0]
            mods = l[1:]
        self.toks, self.mods = toks, mods
        R = [regs_of(x) for x in toks]
        self.rd, self.wr, self.awr = set(), set(), set()
        self.q = None
        self.passes = 0
        self.kind = 'salu'
        self.mf_ab, self.mf_c = set(), []
        self.store_data = set()
        self.dpp = any(m.startswith(('row_', 'quad_perm', 'wave_', 'bank_mask')) for m in mods) or op.endswith('_dpp')
        flat = lambda L: [r for x in L for r in x]
        if op.startswith('v_mfma'):
            self.kind = 'mfma'
            self.passes = 8 if '32x32x16' in op else 4 if '16x16x32' in op else None
            assert self.passes, op
            self.wr = set(R[0]); self.mf_d = R[0]
            self.mf_ab = set(R[1] + R[2]); self.mf_c = R[3]
            self.rd = self.mf_ab | set(self.mf_c)
        elif op.startswith('v_'):
            self.kind = 'trans' if op.startswith(TRANS) else 'valu'
            if op.startswith(('v_permlane16_swap', 'v_permlane32_swap', 'v_swap')):
                self.wr = set(R[0] + R[1]); self.rd = set(R[0] + R[1])
            elif op.startswith(('v_add_co', 'v_sub_co', 'v_addc_co', 'v_subb_co')):
                self.wr = set(R[0] + R[1]); self.rd = set(flat(R[2:]))
            elif op == 'v_nop':
                pass
            else:
                self.wr = set(R[0]); self.rd = set(flat(R[1:]))
                if op.startswith(('v_fmac', 'v_dot2c', 'v_writelane', 'v_mac')) or self.dpp or any('PRESERVE' in m for m in mods) \
                        or any(m.startswith('op_sel') for m in mods) and op.startswith('v_cvt'):
                    self.rd |= set(R[0])
        elif op.startswith('ds_'):
            self.kind = 'ds'; self.q = 'lg'
            if op.startswith(('ds_read', 'ds_bpermute', 'ds_permute', 'ds_swizzle')) or '_rtn' in op:
                self.awr = set(R[0]); self.rd = set(flat(R[1:]))
            else:
                self.rd = set(flat(R))
        elif op.startswith('buffer_') or op.startswith('global_'):
            self.kind = 'vmem'; self.q = 'vm'
            if op in ('buffer_inv', 'buffer_wbl2'):
                pass
            elif 'lds' in mods:
                self.rd = set(flat(R)) | {'m0'}; self.dma = True
            elif '_load' in op:
                self.awr = set(R[0]); self.rd = set(flat(R[1:]))
            elif '_atomic' in op and 'sc0' in mods:
                self.awr = set(R[0]); self.rd = set(flat(R))
            else:
                self.rd = set(flat(R))
                if op.endswith(('x3', 'x4')):
                    self.store_data = set(R[0] if op.startswith('buffer_') else R[1])
        elif op.startswith(('s_load', 's_buffer_load', 's_memtime', 's_memrealtime')):
            self.kind = 'smem'; self.q = 'sm'
            self.awr = set(R[0]); self.rd = set(flat(R[1:]))
        elif op.startswith(('s_cmp', 's_bitcmp')):
            self.rd = set(flat(R))
        elif op == 'wait':
            self.kind = 'pseudo'
            self.rd = set(flat(R))
        elif op.startswith(('s_waitcnt', 's_barrier', 's_nop', 's_setprio', 's_endpgm', 's_sleep', 's_branch')):
            pass
        elif op.startswith('s_cbranch'):
            if 'vcc' in op: self.rd = {'vcc'}
        elif op.startswith('s_'):
            self.wr = set(R[0]); self.rd = set(flat(R[1:]))
            if 'saveexec' in op:
                self.wr |= {'exec'}
            if op.startswith(('s_addk', 's_mulk', 's_cmov', 's_bitset')):
                self.rd |= set(R[0])
        else:
            raise ValueError('unknown op ' + text)
        self.rd |= set(rd); self.wr |= set(wr); self.awr |= set(awr)
        self.pend_rd = set(pend_rd)
        self.nowaw = nowaw
        self.wait_vm = None; self.wait_lg = None; self.nops = 0


class Label:
    def __init__(self, name): self.name = name


class Loop:
    def __init__(self, label, count, body, align=True):
        self.label, self.count, self.body, self.align = label, count, body, align


class Raw:
    def __init__(self, text): self.text = text


class Fence:
    pass


class Seg:
    def __init__(self): self.body = []


class Prog:
    def __init__(self):
        self.paths = None
        self.items = []
        self.cur = self.items
        self.stack = []

    def __call__(self, text, **kw):
        for line in text.strip().split('\n'):
            line = line.strip()
            if not line or line.startswith(';'):
                continue
            if line.endswith(':'):
                self.cur.append(Label(line[:-1]))
            else:
                self.cur.append(Ins(line, **kw))

    def add(self, x):
        if isinstance(x, str):
            self(x)
        elif isinstance(x, (list, tuple)):
            for y in x: self.add(y)
        else:
            self.cur.append(x)

    def begin_loop(self, label, count, align=True):
        lp = Loop(label, count, [], align)
        self.cur.append(lp)
        self.stack.append(self.cur)
        self.cur = lp.body

    def end_loop(self):
        self.cur = self.stack.pop()

    def fence(self):
        self.cur.append(Fence())

    def trace(self, items=None):
        for it in (self.items if items is None else items):
            if isinstance(it, Loop):
                for _ in range(min(it.count, 6)):
                    yield from self.trace(it.body)
            elif isinstance(it, Seg):
                yield from self.trace(it.body)
            else:
                yield it

    def all_paths(self):
        for path in (self.paths or [self.items]):
            yield from self.trace(path)
            yield Fence()

    def segment(self):
        seg = Seg()
        self.items.append(seg)
        self.cur = seg.body
        return seg

    def auto_waits(self):
        changed = True
        while changed:
            changed = False
            vm, lg = [], []
            for it in self.all_paths():
                if isinstance(it, Fence):
                    vm, lg = [], []
                    continue
                if not isinstance(it, Ins):
                    continue
                if it.op == 's_waitcnt':
                    m = re.search(r'vmcnt\((\d+)\)', it.text)
                    if m: vm = vm[len(vm) - min(len(vm), int(m.group(1))):]
                    m = re.search(r'lgkmcnt\((\d+)\)', it.text)
                    if m:
                        n = int(m.group(1))
                        if n == 0 or not any(o.q == 'sm' for o in lg):
                            lg = lg[len(lg) - min(len(lg), n):]
                    continue
                touch = it.rd | it.wr | (set() if it.nowaw else it.awr)
                wrs = it.wr | it.awr

                def need(q):
                    k = -1
                    for i, o in enumerate(q):
                        if (o.awr & touch) or (o.pend_rd & wrs):
                            k = i
                    return k
                k = need(vm)
                if k >= 0:
                    n = min(62, len(vm) - k - 1)
                    if it.wait_vm is None or n < it.wait_vm:
                        it.wait_vm = n; changed = True
                k = need(lg)
                if k >= 0:
                    n = 0 if any(o.q == 'sm' for o in lg) else min(14, len(lg) - k - 1)
                    if it.wait_lg is None or n < it.wait_lg:
                        it.wait_lg = n; changed = True
                if it.wait_vm is not None:
                    vm = vm[len(vm) - min(len(vm), it.wait_vm):]
                if it.wait_lg is not None:
                    if it.wait_lg == 0 or not any(o.q == 'sm' for o in lg):
                        lg = lg[len(lg) - min(len(lg), it.wait_lg):]
                if it.q == 'vm': vm.append(it)
                elif it.q in ('lg', 'sm'): lg.append(it)

    def auto_nops(self):
        changed = True
        while changed:
            changed = False
            pos = 0
            lw = {}
            lc = {}
            ls = {}
            for it in self.all_paths():
                if isinstance(it, Fence):
                    pos += 40
                    continue
                if not isinstance(it, Ins):
                    continue
                if it.wait_vm is not None or it.wait_lg is not None:
                    pos += 1
                if it.kind == 'pseudo':
                    continue
                base = pos
                req = 0

                def after(p, n):
                    nonlocal req
                    req = max(req, p + 1 + n)
                isvalu = it.kind in ('valu', 'trans')
                for r in it.rd | it.wr | it.awr:
                    if r not in lw: continue
                    p, w = lw[r]
                    if w.kind == 'mfma':
                        big = 12 if w.passes == 8 else 8
                        if it.kind == 'mfma':
                            if r in it.mf_ab: after(p, big)
                            if r in it.mf_c:
                                if it.mf_c == w.mf_d and it.passes == w.passes: pass
                                else: after(p, big - 2)
                            elif r in it.wr and r not in it.rd:
                                after(p, big - 2)
                        else:
                            after(p, big)
                    elif w.kind in ('valu', 'trans'):
                        if r in it.rd:
                            if r[0] in 'va' and r != 'vcc':
                                if it.kind == 'mfma': after(p, 2)
                                if it.op.startswith(('v_readfirstlane', 'v_readlane')): after(p, 1)
                                if it.op.startswith('v_permlane') or it.dpp: after(p, 2)
                                if w.kind == 'trans' and it.kind != 'trans': after(p, 1)
                                if w.kind == 'trans' and it.kind == 'trans': after(p, 1)
                                if any(m.startswith(('op_sel', 'dst_sel')) for m in w.mods) and isvalu and not w.op.startswith('v_pk_'): after(p, 1)
                            else:
                                if it.kind == 'vmem': after(p, 5)
                                if isvalu: after(p, 4 if it.op.startswith(('v_readlane', 'v_writelane')) else 2)
                                if it.kind in ('salu', 'smem'): after(p, 1)
                    elif w.kind == 'salu':
                        if r == 'm0' and r in it.rd and it.kind in ('vmem', 'ds'): after(p, 1)
                if isvalu or it.awr:
                    for r in it.wr | it.awr:
                        if r in lc and isvalu:
                            p, ps = lc[r]
                            after(p, 7 if ps == 8 else 3)
                        if r in ls: after(ls[r], 2)
                n = max(0, req - base)
                if n > it.nops:
                    it.nops = n; changed = True
                pos = base + it.nops
                for r in it.wr: lw[r] = (pos, it)
                for r in it.awr: lw.pop(r, None)
                if it.kind == 'mfma':
                    for r in it.mf_c: lc[r] = (pos, it.passes)
                for r in it.store_data: ls[r] = pos
                if it.op == 's_nop':
                    pos += int(it.toks[0])
                pos += 1

    def emit(self, items=None, ind='    '):
        out = []
        for it in (self.items if items is None else items):
            if isinstance(it, Loop):
                if it.align:
                    out.append('.p2align 6')
                out.append(it.label + ':')
                out += self.emit(it.body, ind)
            elif isinstance(it, Seg):
                out += self.emit(it.body, ind)
            elif isinstance(it, Label):
                out.append(it.name + ':')
            elif isinstance(it, Raw):
                out.append(it.text)
            elif isinstance(it, Fence):
                out += [ind + 's_waitcnt vmcnt(0) lgkmcnt(0)', ind + 's_nop 15']
            else:
                w = []
                if it.wait_vm is not None: w.append(f'vmcnt({it.wait_vm})')
                if it.wait_lg is not None: w.append(f'lgkmcnt({it.wait_lg})')
                if w: out.append(ind + 's_waitcnt ' + ' '.join(w))
                n = it.nops
                while n > 0:
                    k = min(n, 16)
                    out.append(ind + f's_nop {k - 1}')
                    n -= k
                if it.kind != 'pseudo':
                    out.append(ind + it.text)
        return out

    def finish(self):
        self.auto_waits()
        self.auto_nops()
        return '\n'.join(self.emit())

    def max_regs(self):
        mx = {'v': -1, 'a': -1, 's': -1}
        for it in self.trace():
            if isinstance(it, Ins):
                for r in it.rd | it.wr | it.awr:
                    if r[0] in mx and r[1:].isdigit():
                        mx[r[0]] = max(mx[r[0]], int(r[1:]))
        return mx


def rr(kind, base, n=1):
    return f'{kind}{base}' if n == 1 else f'{kind}[{base}:{base + n - 1}]'


def kernel_text(name, prog, min_v=0):
    body = prog.finish()
    mx = prog.max_regs()
    nv = max(mx['v'] + 1, min_v, 4)
    acc = (nv + 3) // 4 * 4
    tot = acc + mx['a'] + 1 if mx['a'] >= 0 else nv
    code = f""".globl {name}
.p2align 8
.type {name},@function
{name}:
{body}
"""
    desc = f""".amdhsa_kernel {name}
  .amdhsa_next_free_vgpr {tot}
  .amdhsa_next_free_sgpr {max(mx['s'] + 1, 16)}
  .amdhsa_accum_offset {acc}
  .amdhsa_group_segment_fixed_size 0
  .amdhsa_kernarg_size 96
  .amdhsa_user_sgpr_count 2
  .amdhsa_user_sgpr_kernarg_segment_ptr 1
  .amdhsa_system_sgpr_workgroup_id_x 1
  .amdhsa_float_denorm_mode_32 3
.end_amdhsa_kernel
"""
    return code, desc
```

```python
from common import *

LDS_TOTAL = 163840
ST_MR = 0x0000
ST_RS2 = 0x4000
ST_CNT = 0x28000
SPIN = 1 << 20

pX, pWQ, pWK, pWV, pWO, pWG, pWU, pWD, pOUT, pDBG, pWS = 4, 6, 8, 10, 12, 16, 18, 20, 22, 24, 26
sA, sB, sC, sD, sE, sT = 28, 32, 36, 40, 44, 48
s_w, s_b, s_j, s_tok, s_t0, s_t1, s_t2, s_cnt, s_spin = 52, 53, 54, 55, 56, 57, 58, 59, 60
vL16, vZ, vOne = 1, 2, 3
aMEAN, aHR = 238, 240


def srd(p, s, ptr, size, off=None, bias=0):
    if off is not None:
        p(f"s_add_u32 s{s}, s{ptr}, s{off}\ns_addc_u32 s{s+1}, s{ptr+1}, 0")
        ptr = s
    if bias > 0:
        p(f"s_add_u32 s{s}, s{ptr}, {hex(bias)}\ns_addc_u32 s{s+1}, s{ptr+1}, 0")
    elif bias < 0:
        p(f"s_sub_u32 s{s}, s{ptr}, {hex(-bias)}\ns_subb_u32 s{s+1}, s{ptr+1}, 0")
    elif off is None:
        p(f"s_mov_b64 s[{s}:{s+1}], s[{ptr}:{ptr+1}]")
    if isinstance(size, str):
        p(size.format(d=f"s{s+2}"))
    else:
        p(f"s_mov_b32 s{s+2}, {hex(size)}")
    p(f"s_mov_b32 s{s+3}, 0x20000")


def arrive(p, soff):
    p("s_waitcnt vmcnt(0)")
    p(f"buffer_atomic_add v{vOne}, v{vZ}, s[{sT}:{sT+3}], s{soff} offen")


def poll(p, label, soff, target, vtmp):
    p(f"s_mov_b32 s{s_spin}, {SPIN}")
    p.add(Raw(f"""{label}:
    buffer_load_dword v{vtmp}, v{vZ}, s[{sT}:{sT+3}], s{soff} offen sc1
    s_sub_u32 s{s_spin}, s{s_spin}, 1
    s_waitcnt vmcnt(0)
    v_readfirstlane_b32 s{s_t2}, v{vtmp}
    s_nop 0
    s_cselect_b32 s{s_t2}, {target}, s{s_t2}
    s_cmp_lt_u32 s{s_t2}, {target}
    s_cbranch_scc1 {label}"""))
    p("s_waitcnt vmcnt(0)")


def spread(vm, start, step):
    fill, pos = {}, start
    for ins in vm:
        fill.setdefault(pos, []).append(ins)
        if ins.kind == 'vmem':
            pos += step
    return fill


def gen_fused(name, o):
    dbg = o.get('dbg', '')
    KVSC = 'sc1' if o.get('kvsc1', True) else ''
    p = Prog()
    main = p.segment()
    p(f"""
    s_cmp_ge_u32 s2, 256
    s_cbranch_scc1 {name}_end
    s_load_dwordx16 s[4:19], s[0:1], 0
    s_load_dwordx8 s[20:27], s[0:1], 64
    v_lshrrev_b32 v1, 6, v0
    v_and_b32 v0, 63, v0
    v_readfirstlane_b32 s{s_w}, v1
    s_and_b32 s{s_t0}, s2, 7
    s_lshr_b32 s{s_t1}, s2, 3
    s_lshr_b32 s{s_b}, s{s_t0}, 1
    s_lshl_b32 s{s_b}, s{s_b}, 2
    s_and_b32 s{s_j}, s{s_t1}, 3
    s_add_u32 s{s_b}, s{s_b}, s{s_j}
    s_and_b32 s{s_j}, s{s_t0}, 1
    s_lshl_b32 s{s_j}, s{s_j}, 3
    s_lshr_b32 s{s_t1}, s{s_t1}, 2
    s_add_u32 s{s_j}, s{s_j}, s{s_t1}
    s_lshl_b32 s{s_tok}, s{s_b}, 2
    s_add_u32 s{s_tok}, s{s_tok}, s{s_w}
    s_lshl_b32 s{s_tok}, s{s_tok}, 5
    v_lshlrev_b32 v{vL16}, 4, v0
    v_cmp_eq_u32 vcc, 0, v0
    v_mov_b32 v{vOne}, 0x7ffffff0
    v_cndmask_b32 v{vZ}, v{vOne}, 0, vcc
    v_mov_b32 v{vOne}, 1
    """)

    SL = 24576
    RED, CSQ = 147456, 162816
    vt = 4
    vD = 12
    vD0 = 18
    vB = 22
    vA = 28
    ONES = 36
    vRS = 40
    s_kv, s_xoff, s_woff, s_dm, s_pb, s_w6 = 61, 62, 63, 64, 65, 66
    p(f"""
    v_lshrrev_b32 v{vt}, 3, v0
    v_lshrrev_b32 v{vt+1}, 4, v0
    v_and_b32 v{vt+2}, 7, v0
    v_xor_b32 v{vt+3}, v{vt+1}, v{vt+2}
    v_lshlrev_b32 v{vt+3}, 4, v{vt+3}
    v_lshl_add_u32 v{vt+3}, v{vt}, 11, v{vt+3}
    v_xor_b32 v{vt+4}, 64, v{vt+3}
    v_add_u32 v{vD}, 4096, v{vt+3}
    v_add_u32 v{vD+1}, {16384 + 4096 - 1024}, v{vt+4}
    v_add_u32 v{vD0}, {128 + 4096 - 2048}, v{vt+3}
    v_add_u32 v{vD0+1}, {16384 + 128 + 4096 - 3072}, v{vt+4}
    v_lshrrev_b32 v{vt+5}, 5, v0
    v_lshlrev_b32 v{vt+5}, 1, v{vt+5}
    v_xor_b32 v{vt+5}, v{vt+5}, v0
    v_lshlrev_b32 v{vD0+2}, 4, v{vt+5}
    s_lshr_b32 s{s_t0}, s{s_j}, 1
    s_lshl_b32 s{s_kv}, s{s_b}, 3
    s_add_u32 s{s_kv}, s{s_kv}, s{s_t0}
    s_lshl_b32 s{s_kv}, s{s_kv}, 4
    s_lshl_b32 s{s_t0}, s{s_kv}, 11
    s_lshl_b32 s{s_t1}, s{s_w}, 9
    s_add_u32 s{s_t0}, s{s_t0}, s{s_t1}
    s_add_u32 s{s_t1}, s{s_w}, 2
    s_mul_i32 s{s_dm}, s{s_t1}, {SL}
    s_mov_b32 m0, s{s_dm}
    """)
    srd(p, sA, pX, S * D * 2 + 4096, bias=-4096)
    xo = [vD, vD + 1, vD0, vD0 + 1]
    for n in range(8):
        if n == 4:
            p(f"s_add_u32 m0, m0, 4096\ns_add_u32 s{s_t0}, s{s_t0}, 256")
        p(f"buffer_load_dwordx4 v{xo[n & 3]}, s[{sA}:{sA+3}], s{s_t0} offen offset:{(n & 3) * 1024} lds", awr=['P0'], nowaw=True)
    p(f"""
    s_bitcmp0_b32 s{s_j}, 0
    s_cselect_b64 s[{sB}:{sB+1}], s[{pWK}:{pWK+1}], s[{pWV}:{pWV+1}]
    s_mov_b32 s{sB+2}, {D * 64}
    s_mov_b32 s{sB+3}, 0x20000
    s_lshl_b32 s{s_t1}, s{s_b}, 12
    s_lshl_b32 s{s_t2}, s{s_w}, 14
    s_add_u32 s{s_dm}, s{s_dm}, 8192
    """)
    for q in range(4):
        p(f"""
        s_and_b32 s{s_t1}, s{s_t1}, 0x3000
        s_add_u32 m0, s{s_dm}, s{s_t1}
        s_add_u32 s{s_t0}, s{s_t2}, s{s_t1}""")
        for i in range(4):
            p(f"buffer_load_dwordx4 v{vD0+2}, s[{sB}:{sB+3}], s{s_t0} offen offset:{i*1024} lds", awr=['P0'], nowaw=True)
        if q < 3:
            p(f"s_add_u32 s{s_t1}, s{s_t1}, 0x1000")
    p(f"""
    v_add_u32 v{vD+2}, {32768 + 4096 - 2048}, v{vt+3}
    v_add_u32 v{vD+3}, {32768 + 16384 + 4096 - 3072}, v{vt+4}
    v_and_b32 v{vt+1}, 1, v{vt+1}
    v_lshlrev_b32 v{vt+1}, 1, v{vt+1}
    v_xor_b32 v{vt+1}, v{vt+1}, v{vt+2}
    v_lshlrev_b32 v{vt+1}, 4, v{vt+1}
    v_lshl_add_u32 v{vD+4}, v{vt}, 11, v{vt+1}
    v_xor_b32 v{vD+5}, 64, v{vD+4}
    v_add_u32 v{vD+5}, {8*2048 - 1024}, v{vD+5}
    s_lshl_b32 s{s_t0}, s{s_tok}, 11
    s_lshl_b32 s{s_t1}, s{s_w}, 15
    s_lshl_b32 s{s_t2}, s{s_j}, 7
    s_add_u32 s{s_t1}, s{s_t1}, s{s_t2}
    """)
    srd(p, sC, pX, 32 * 2048 + 4096, off=s_t0, bias=-4096)
    srd(p, sD, pWQ, f"s_sub_u32 {{d}}, {D * D * 2}, s{s_t1}", off=s_t1)
    p(f"""
    s_lshl_b32 s{s_t0}, s{s_b}, 1
    s_add_u32 s{s_t0}, s{s_t0}, s{s_j}
    s_lshl_b32 s{s_xoff}, s{s_t0}, 8
    s_and_b32 s{s_xoff}, s{s_xoff}, 2047
    s_mul_i32 s{s_w6}, s{s_w}, 6144
    """)

    def dma1(m0expr, tag):
        o_ = [Ins(m0expr), Ins(f"s_lshl_b32 s{s_woff}, s{s_xoff}, 10")]
        for i in range(4):
            o_.append(Ins(f"buffer_load_dwordx4 v{vD+i}, s[{sC}:{sC+3}], s{s_xoff} offen offset:{i*1024} lds", awr=[tag], nowaw=True))
        o_ += [Ins("s_add_u32 m0, m0, 4096"), Ins(f"s_add_u32 s{s_xoff}, s{s_xoff}, 128")]
        for i in range(2):
            o_.append(Ins(f"buffer_load_dwordx4 v{vD+4+i}, s[{sD}:{sD+3}], s{s_woff} offen offset:{i*1024} lds", awr=[tag], nowaw=True))
        o_.append(Ins(f"s_and_b32 s{s_xoff}, s{s_xoff}, 2047"))
        return o_
    srd(p, sE, pWO, D * D * 2)
    p(f"""
    s_lshl_b32 s{s_t0}, s2, 2
    s_add_u32 s{s_t0}, s{s_t0}, s{s_w}
    s_lshl_b32 s{s_t0}, s{s_t0}, 11
    buffer_load_dwordx4 {rr('v', vRS, 4)}, v{vL16}, s[{sE}:{sE+3}], s{s_t0} offen
    buffer_load_dwordx4 {rr('v', vRS+4, 4)}, v{vL16}, s[{sE}:{sE+3}], s{s_t0} offen offset:1024
    """)
    p.add(dma1(f"s_mov_b32 m0, s{s_w6}", 'L0'))
    p.add(dma1(f"s_add_u32 m0, s{s_w6}, {SL}", 'Lx'))
    srd(p, sT, pWS, ST[1], bias=ST[0])
    p(f"""
    v_and_b32 v{vt}, 15, v0
    v_lshrrev_b32 v{vt+1}, 1, v{vt}
    v_lshrrev_b32 v{vt+2}, 4, v0
    v_xor_b32 v{vt+1}, v{vt+1}, v{vt+2}
    v_lshlrev_b32 v{vt+1}, 4, v{vt+1}
    v_lshl_add_u32 v{vt+1}, v{vt}, 7, v{vt+1}
    v_xor_b32 v{vt+3}, 64, v{vt+1}
    v_add_u32 v{vB}, s{s_w6}, v{vt+1}
    v_add_u32 v{vB+1}, s{s_w6}, v{vt+3}
    s_sub_u32 s{s_t0}, s{s_dm}, 8192
    v_add_u32 v{vA}, s{s_t0}, v{vt+1}
    v_add_u32 v{vA+1}, s{s_t0}, v{vt+3}
    v_lshrrev_b32 v{vt}, 5, v0
    v_and_b32 v{vt+1}, 3, v0
    v_lshlrev_b32 v{vt+1}, 3, v{vt+1}
    v_bfe_u32 v{vt+2}, v0, 2, 2
    v_bfe_u32 v{vt+3}, v0, 4, 1
    v_lshl_add_u32 v{vt+2}, v{vt+3}, 3, v{vt+2}
    v_lshl_add_u32 v{vt+4}, v{vt}, 10, v{vt+1}
    v_lshl_add_u32 v{vt+4}, v{vt+2}, 6, v{vt+4}
    v_lshl_add_u32 v{vt+4}, v{vt+3}, 5, v{vt+4}
    v_add_u32 v{vA+2}, s{s_dm}, v{vt+4}
    v_xor_b32 v{vA+3}, 32, v{vA+2}
    v_mul_u32_u24 v{vt}, 6144, v{vt}
    v_add_u32 v{vt}, v{vt}, v{vt+1}
    v_lshl_add_u32 v{vt}, v{vt+2}, 7, v{vt}
    v_bfe_u32 v{vt+4}, v0, 3, 2
    v_xor_b32 v{vt+4}, s{s_w}, v{vt+4}
    v_lshl_add_u32 v{vB+2}, v{vt+4}, 5, v{vt}
    v_xor_b32 v{vB+3}, 32, v{vB+2}
    v_xor_b32 v{vB+4}, 64, v{vB+2}
    v_xor_b32 v{vB+5}, 0x60, v{vB+2}
    """)
    for i in range(4):
        p(f"v_mov_b32 v{ONES+i}, 0x3f803f80")
    on = rr('v', ONES, 4)
    AB = 48
    CSA = 80
    PA = 84
    FB = 112
    p.add(Raw("; @stamp 0"))
    X0 = lambda G: rr('v', FB + 4 * G, 4)
    W0 = lambda G, e: rr('v', FB + 32 + (G * 2 + e) * 4, 4)
    first = True
    for G in range(8):
        p(f"ds_read_b128 {X0(G)}, v{vA + (G & 1)} offset:{(G >> 1) * 2048}", rd=['P0'] if first else [])
        first = False
        for e in range(2):
            for b in range(2):
                p(f"ds_read_b64_tr_b16 {rr('v', FB + 32 + (G*2+e)*4 + 2*b, 2)}, v{vA+2+e} offset:{G*2048 + b*256}")
    for i in range(AB, CSA + 4):
        p(f"v_mov_b32 v{i}, 0")
    p("s_waitcnt lgkmcnt(0)")
    p("s_barrier")
    fill = spread(dma1(f"s_add_u32 m0, s{s_w6}, {2*SL}", 'Lx') + dma1(f"s_add_u32 m0, s{s_w6}, {3*SL}", 'Lx') +
                  dma1(f"s_add_u32 m0, s{s_w6}, {4*SL}", 'Lx'), 0, 2)
    acc0 = lambda k: rr('v', PA + 4 * k, 4)
    n = 0
    for G in range(8):
        c = "0" if G == 0 else None
        for m in (mf16(acc0(0), W0(G, 0), X0(G), c), mf16(acc0(1), W0(G, 1), X0(G), c), mf16(acc0(2), W0(G, 0), on, c),
                  mf16(acc0(3), W0(G, 1), on, c), mf16(acc0(4), on, X0(G), c), mf16(acc0(5), X0(G), X0(G), c)):
            p(m)
            p.add(fill.get(n, []))
            n += 1
    RSA = PA + 24
    p(mf16(rr('v', RSA, 4), on, rr('v', vRS, 4), "0"))
    p(mf16(rr('v', RSA, 4), on, rr('v', vRS + 4, 4)))
    g = PA + 20
    p(f"""
    v_and_b32 v{vt}, 3, v0
    v_cmp_eq_u32 s[68:69], 1, v{vt}
    v_cmp_eq_u32 s[70:71], 2, v{vt}
    v_cmp_eq_u32 s[72:73], 3, v{vt}
    v_bfe_u32 v{vt}, v0, 2, 2
    v_lshrrev_b32 v{vt+1}, 4, v0
    v_cmp_eq_u32 vcc, v{vt}, v{vt+1}
    s_mul_i32 s{s_t0}, s{s_w}, 5120
    s_add_u32 s{s_t0}, s{s_t0}, {RED - 5120}
    v_add_u32 v{vt+2}, s{s_t0}, v{vL16}
    v_cndmask_b32 v{g}, v{g}, v{g+1}, s[68:69]
    v_cndmask_b32 v{g}, v{g}, v{g+2}, s[70:71]
    v_cndmask_b32 v{g}, v{g}, v{g+3}, s[72:73]
    v_cndmask_b32 v{PA+17}, 0, v{g}, vcc
    v_add_f32_dpp v{RSA}, v{RSA}, v{RSA} row_ror:8 row_mask:0xf bank_mask:0xf
    v_add_f32_dpp v{RSA}, v{RSA}, v{RSA} row_ror:4 row_mask:0xf bank_mask:0xf
    v_add_f32_dpp v{RSA}, v{RSA}, v{RSA} row_ror:2 row_mask:0xf bank_mask:0xf
    v_add_f32_dpp v{RSA}, v{RSA}, v{RSA} row_ror:1 row_mask:0xf bank_mask:0xf
    v_bfe_u32 v{vt}, v0, 1, 2
    v_cmp_eq_u32 vcc, s{s_w}, v{vt}
    v_cndmask_b32 v{PA+18}, 0, v{RSA}, vcc
    s_cmp_eq_u32 s{s_w}, 0
    s_cbranch_scc1 {name}_p0fin
    """)
    red_w = p.segment()
    for k in range(5):
        p(f"ds_write_b128 v{vt+2}, {acc0(k)} offset:{k*1024}")
    p(f"""
    s_waitcnt lgkmcnt(0)
    s_barrier
    s_branch {name}_p1""")
    fin = p.segment()
    p(f"""
    {name}_p0fin:
    s_barrier""")
    for w in range(3):
        for k in range(5):
            p(f"ds_read_b128 {rr('v', FB + (w*5+k)*4, 4)}, v{vt+2} offset:{5120*(w+1) + k*1024}")
    for w in range(3):
        for i in range(19):
            p(f"v_add_f32 v{PA+i}, v{PA+i}, v{FB + w*20 + i}")
    xsum16_32(p, f"v{PA+17}", f"v{vt}")
    vM, vR = PA + 20, PA + 21
    d = PA + 24
    srd(p, sA, pWS, KV[1], bias=KV[0])
    p(f"""
    s_mov_b32 s{s_t1}, {f32hex(1.0/1024)}
    v_mul_f32 v{vM}, s{s_t1}, v{PA+16}
    v_mul_f32 v{vt}, v{vM}, v{vM}
    v_fma_f32 v{vt}, v{PA+17}, s{s_t1}, -v{vt}
    v_max_f32 v{vt}, 0, v{vt}
    v_add_f32 v{vt}, {f32hex(1e-5)}, v{vt}
    v_rsq_f32 v{vR}, v{vt}
    """)
    for e in range(2):
        a = PA + 4 * e
        for r in range(4): p(f"v_fma_f32 v{a+r}, -v{vM}, v{a+8+r}, v{a+r}")
        for r in range(4): p(f"v_mul_f32 v{a+r}, v{vR}, v{a+r}")
        p(f"v_cvt_pk_bf16_f32 v{d+2*e}, v{a}, v{a+1}")
        p(f"v_cvt_pk_bf16_f32 v{d+2*e+1}, v{a+2}, v{a+3}")
    z = PA + 18
    p(f"""
    v_cvt_pk_bf16_f32 v{vt}, v{z}, v{z}
    v_and_b32 v{vt+1}, 0xffff0000, v{vt}
    v_sub_f32 v{vt+1}, v{z}, v{vt+1}
    v_cvt_pk_bf16_f32 v{vt+1}, v{vt+1}, v{vt+1}
    v_and_b32 v{vt+3}, 1, v0
    v_cmp_eq_u32 vcc, 0, v{vt+3}
    v_cndmask_b32 v{vt}, v{vt+1}, v{vt}, vcc
    v_lshlrev_b32 v{vt+3}, 11, v{vt+3}
    v_and_b32 v{vt+4}, 6, v0
    v_add_u32 v{vt+3}, v{vt+3}, v{vt+4}
    s_and_b32 s{s_t0}, s2, 0xfc
    s_bfe_u32 s{s_t1}, s2, 0x10000
    s_lshl_b32 s{s_t1}, s{s_t1}, 1
    s_or_b32 s{s_t0}, s{s_t0}, s{s_t1}
    s_bfe_u32 s{s_t1}, s2, 0x10001
    s_or_b32 s{s_t0}, s{s_t0}, s{s_t1}
    s_lshl_b32 s{s_t0}, s{s_t0}, 3
    s_add_u32 s{s_t0}, s{s_t0}, {ST_RS2}
    s_mov_b64 exec, 0xff
    buffer_store_short v{vt}, v{vt+3}, s[{sT}:{sT+3}], s{s_t0} offen sc1
    s_mov_b64 exec, -1
    s_lshl_b32 s{s_t0}, s2, 8
    s_add_u32 s{s_t0}, s{s_t0}, {ST_CNT}
    v_mov_b32 v{vt+4}, 0
    buffer_store_dword v{vt+4}, v{vZ}, s[{sT}:{sT+3}], s{s_t0} offen sc1
    s_lshr_b32 s{s_t0}, s{s_kv}, 5
    s_lshl_b32 s{s_t0}, s{s_t0}, 12
    s_bfe_u32 s{s_t1}, s{s_kv}, 0x10004
    v_and_b32 v{vt+5}, 15, v0
    s_bitcmp1_b32 s{s_j}, 0
    s_cbranch_scc1 {name}_p0v
    """)
    fin_k = p.segment()
    p(f"""
    v_bfe_u32 v{vt}, v0, 4, 1
    v_lshlrev_b32 v{vt}, 10, v{vt}
    v_lshrrev_b32 v{vt+1}, 5, v0
    v_lshl_add_u32 v{vt}, v{vt+1}, 9, v{vt}
    v_lshl_add_u32 v{vt}, v{vt+5}, 4, v{vt}
    s_lshl_b32 s{s_t1}, s{s_t1}, 8
    s_add_u32 s{s_t0}, s{s_t0}, s{s_t1}
    buffer_store_dwordx4 {rr('v', d, 4)}, v{vt}, s[{sA}:{sA+3}], s{s_t0} offen sc1
    v_lshlrev_b32 v{vt+1}, 3, v0
    s_lshl_b32 s{s_t0}, s{s_kv}, 3
    s_mov_b64 exec, 0xffff
    buffer_store_dwordx2 {rr('v', vM, 2)}, v{vt+1}, s[{sT}:{sT+3}], s{s_t0} offen offset:{ST_MR} sc1
    s_mov_b64 exec, -1
    s_branch {name}_p1""")
    fin_v = p.segment()
    p(f"""
    {name}_p0v:
    v_lshlrev_b32 v{vt}, 6, v{vt+5}
    v_lshrrev_b32 v{vt+1}, 4, v0
    v_lshl_add_u32 v{vt}, v{vt+1}, 3, v{vt}
    v_add_u32 v{vt}, {RED}, v{vt}
    ds_write_b64 v{vt}, {rr('v', d, 2)}
    ds_write_b64 v{vt}, {rr('v', d+2, 2)} offset:32
    v_lshrrev_b32 v{vt+3}, 2, v0
    v_lshlrev_b32 v{vt+3}, 6, v{vt+3}
    v_and_b32 v{vt+4}, 3, v0
    v_lshl_add_u32 v{vt+3}, v{vt+4}, 3, v{vt+3}
    v_add_u32 v{vt+3}, {RED}, v{vt+3}
    ds_read_b64_tr_b16 {rr('v', PA, 2)}, v{vt+3}
    ds_read_b64_tr_b16 {rr('v', PA+2, 2)}, v{vt+3} offset:32
    v_lshlrev_b32 v{vt}, 4, v{vt+5}
    v_bfe_u32 v{vt+1}, v0, 4, 1
    v_lshl_add_u32 v{vt}, v{vt+1}, 9, v{vt}
    v_lshrrev_b32 v{vt+1}, 5, v0
    v_lshl_add_u32 v{vt}, v{vt+1}, 3, v{vt}
    s_lshl_b32 s{s_t1}, s{s_t1}, 10
    s_add_u32 s{s_t0}, s{s_t0}, s{s_t1}
    buffer_store_dwordx2 {rr('v', PA, 2)}, v{vt}, s[{sA}:{sA+3}], s{s_t0} offen offset:2048 sc1
    buffer_store_dwordx2 {rr('v', PA+2, 2)}, v{vt}, s[{sA}:{sA+3}], s{s_t0} offen offset:{2048 + 256} sc1
    """)

    rest = p.segment()
    p(f"{name}_p1:")
    p.add(Raw("; @stamp 1"))
    ACC = lambda F, t: rr('v', AB + (F * 2 + t) * 4, 4)
    X1 = lambda s, t, g: rr('v', FB + s * 48 + (t * 2 + g) * 4, 4)
    W1 = lambda s, F, g: rr('v', FB + s * 48 + 16 + (F * 2 + g) * 4, 4)

    def reads1(s, base):
        o_ = []
        xr = lambda t, g: Ins(f"ds_read_b128 {X1(s, t, g)}, v{vA+g} offset:{base + t*2048}")
        wr = lambda F, g, b: Ins(f"ds_read_b64_tr_b16 {rr('v', FB + s*48 + 16 + (F*2+g)*4 + 2*b, 2)}, v{vA+2+F} offset:{base + 2*g*6144 + 4096 + b*512}")
        o_ += [wr(0, 0, 0), wr(0, 0, 1), wr(0, 1, 0), wr(0, 1, 1), xr(0, 0), xr(0, 1), xr(1, 0), xr(1, 1)]
        o_ += [wr(F, g, b) for F in range(1, 4) for g in range(2) for b in range(2)]
        return o_
    srd(p, sB, pDBG, 256)
    for i in range(6):
        p(f"v_mov_b32 v{vA+i}, v{vB+i}")
    p(f"""
    s_mov_b32 s{s_pb}, 0
    s_add_u32 s{s_dm}, s{s_w6}, {2 * 2 * SL}
    s_and_b32 s{s_kv}, s2, 1
    s_lshl_b32 s{s_kv}, s{s_kv}, 7
    s_lshl_b32 s{s_t2}, s{s_w}, 8
    s_add_u32 s{s_t2}, s{s_t2}, 7
    s_mov_b32 s{s_cnt}, 8""")
    p("s_barrier", rd=['L0'])
    p.add(reads1(0, 0))
    p.begin_loop(f"{name}_p1loop", 8, align=False)
    for s in range(2):
        mf = [mf16(rr('v', CSA, 4), W1(s, 0, g), on) for g in range(2)]
        for F in range(4):
            for t in range(2):
                mf += [mf16(ACC(F, t), W1(s, F, g), X1(s, t, g)) for g in range(2)]
        pre = []
        if s == 1:
            pre = [Ins(f"v_add_u32 v{vA+i}, s{s_pb}, v{vB+i}") for i in range(6)]
        rds = reads1(1 - s, SL if s == 0 else 0)
        vm = dma1(f"s_add_u32 m0, s{s_dm}, {SL}" if s == 0 else f"s_mov_b32 m0, s{s_dm}", 'Lx')
        fill = spread(vm, 1, 2)
        if s == 0:
            fill.setdefault(14, []).extend([Ins(f"s_cmp_le_u32 s{s_cnt}, 3"), Ins(f"s_cselect_b32 s{sC+2}, 0, s{sC+2}")])
            fill.setdefault(15, []).extend([Ins(f"s_cselect_b32 s{sD+2}, 0, s{sD+2}"), Ins(f"s_add_u32 s{s_dm}, s{s_pb}, s{s_w6}")])
            fill.setdefault(16, []).extend([Ins(f"s_add_u32 s{s_pb}, s{s_pb}, {2*SL}"), Ins(f"s_cmp_eq_u32 s{s_pb}, {6*SL}")])
            fill.setdefault(17, []).extend([Ins(f"s_cselect_b32 s{s_pb}, 0, s{s_pb}")])
        else:
            fill.setdefault(16, []).append(Ins(f"s_sub_u32 s{s_cnt}, s{s_cnt}, 1"))
            fill.setdefault(17, []).append(Ins(f"s_cmp_lg_u32 s{s_cnt}, 0"))
        p.add(pre)
        p("s_waitcnt vmcnt(18)")
        p("s_barrier")
        if s == 1:
            p.add(Raw(f"""    s_cmp_lg_u32 s{s_cnt}, s{s_t2}
    s_cbranch_scc1 {name}_noarr
    buffer_atomic_add v{vOne}, v{vZ}, s[{sB}:{sB+3}], s{s_kv} offen
{name}_noarr:"""))
        k = 0
        for i, m in enumerate(mf):
            p(m)
            nr = 2 if i in (0, 12) else 1
            p.add(rds[k:k + nr]); k += nr
            p.add(fill.get(i, []))
        assert k >= len(rds)
    p(f"s_cbranch_scc1 {name}_p1loop")
    p.end_loop()
    p.add(Raw("; @stamp 2"))
    p(f"""
    v_lshrrev_b32 v{vt}, 4, v0
    v_lshlrev_b32 v{vt}, 4, v{vt}
    s_lshl_b32 s{s_t0}, s{s_w}, 6
    s_add_u32 s{s_t0}, s{s_t0}, {CSQ}
    v_add_u32 v{vt}, s{s_t0}, v{vt}
    ds_write_b128 v{vt}, {rr('v', CSA, 4)}
    v_and_b32 v{vt+4}, 1, v0
    v_lshlrev_b32 v{vt+4}, 7, v{vt+4}
    s_mov_b32 s{s_spin}, {SPIN}
    s_movk_i32 s{s_t1}, 128""")
    p.add(Raw(f"""{name}_gpoll:
    buffer_load_dword v{vt+5}, v{vt+4}, s[{sB}:{sB+3}], 0 offen sc1
    s_sub_u32 s{s_spin}, s{s_spin}, 1
    s_waitcnt vmcnt(0)
    v_cmp_gt_u32 vcc, s{s_t1}, v{vt+5}
    s_cbranch_scc1 {name}_gdone
    s_nop 0
    s_cbranch_vccnz {name}_gpoll
{name}_gdone:"""))
    p("s_waitcnt vmcnt(0)")

    NR = 8
    Kf = lambda b, m: rr('a', (b % NR) * 8 + m * 4, 4)
    Vf = lambda b, m: rr('a', 64 + (b % NR) * 8 + m * 4, 4)
    vMR = 84
    s_ko, s_vo = 61, 62
    srd(p, sA, pWS, KV[1], bias=KV[0])
    p(f"""
    v_and_b32 v{vt+1}, 15, v0
    v_lshlrev_b32 v{vt+1}, 3, v{vt+1}
    s_lshl_b32 s{s_t0}, s{s_tok}, 3
    buffer_load_dwordx2 {rr('v', vMR, 2)}, v{vt+1}, s[{sT}:{sT+3}], s{s_t0} offen offset:{ST_MR} sc1
    buffer_load_dwordx2 {rr('v', vMR+2, 2)}, v{vt+1}, s[{sT}:{sT+3}], s{s_t0} offen offset:{ST_MR + 128} sc1
    """)
    kld = lambda b, m: Ins(f"buffer_load_dwordx4 {Kf(b, m)}, v{vL16}, s[{sA}:{sA+3}], s{s_ko} offen offset:{m*1024} {KVSC}")
    vld = lambda b, m: Ins(f"buffer_load_dwordx4 {Vf(b, m)}, v{vL16}, s[{sA}:{sA+3}], s{s_vo} offen offset:{2048 + m*1024} {KVSC}")

    def fill_kv():
        p(f"s_mov_b32 s{s_ko}, 0\ns_mov_b32 s{s_vo}, 0")
        for b in range(NR):
            p.add([kld(b, 0), kld(b, 1), Ins(f"s_add_u32 s{s_ko}, s{s_ko}, 4096")])
            if b < NR - 2:
                p.add([vld(b, 0), vld(b, 1), Ins(f"s_add_u32 s{s_vo}, s{s_vo}, 4096")])
    fill_kv()
    p("s_waitcnt lgkmcnt(0)")
    p("s_barrier")
    CS = 88
    for f in range(4):
        if f: p(f"v_xor_b32 v{vt+f}, {f*64}, v{vt}")
        p(f"ds_read_b128 {rr('v', CS + 4*f, 4)}, v{vt+f}")
    XT, RST = 131072, 147456
    p(f"""
    s_mov_b32 s{sC+2}, {32 * 2048 + 4096}
    s_lshl_b32 s{s_t0}, s{s_w}, 12
    s_add_u32 m0, s{s_t0}, {XT}
    s_lshl_b32 s{s_t1}, s{s_j}, 7""")
    for i in range(4):
        p(f"buffer_load_dwordx4 v{vD+i}, s[{sC}:{sC+3}], s{s_t1} offen offset:{i*1024} lds", awr=['LW'], nowaw=True)
    p(f"""
    s_lshl_b32 s{s_t0}, s{s_w}, 10
    s_add_u32 m0, s{s_t0}, {RST}
    s_add_u32 s{s_t0}, s{s_t0}, {ST_RS2}""")
    p(f"buffer_load_dwordx4 v{vL16}, s[{sT}:{sT+3}], s{s_t0} offen sc1 lds", awr=['LW'], nowaw=True)
    Q = lambda x, m: rr('v', 16 + x * 8 + m * 4, 4)
    QP = 112
    for t in range(2):
        p(f"v_accvgpr_write_b32 a{aMEAN+t}, v{vMR+2*t}")
        p(f"v_mul_f32 v{vMR+2*t+1}, {f32hex(LOG2E * DH ** -0.5)}, v{vMR+2*t+1}")
    for hd in range(2):
        for t in range(2):
            for f in range(2):
                F = 2 * hd + f
                a = AB + (F * 2 + t) * 4
                dq = QP + hd * 8 + t * 4 + 2 * f
                for r in range(4): p(f"v_fma_f32 v{a+r}, -v{vMR+2*t}, v{CS+4*F+r}, v{a+r}")
                for r in range(4): p(f"v_mul_f32 v{a+r}, v{vMR+2*t+1}, v{a+r}")
                p(f"v_cvt_pk_bf16_f32 v{dq}, v{a}, v{a+1}")
                p(f"v_cvt_pk_bf16_f32 v{dq+1}, v{a+2}, v{a+3}")
    p(f"s_bitcmp1_b32 s{s_w}, 0\ns_cselect_b64 vcc, -1, 0")
    for i in range(16):
        p(f"v_cndmask_b32 v{16+i}, v{QP+i}, v{QP+(i^2)}, vcc")
    for hd in range(2):
        for i in range(4):
            p(f"v_permlane16_swap_b32 v{16+hd*8+i}, v{16+hd*8+4+i}")
    s_hd = 63
    p(f"""
    s_lshl_b32 s{s_hd}, s{s_j}, 1
    s_lshr_b32 s{s_t0}, s{s_w}, 1
    s_add_u32 s{s_hd}, s{s_hd}, s{s_t0}""")
    if 'q' in dbg:
        srd(p, sB, pWS, QF[1], bias=QF[0])
        p(f"s_lshl_b32 s{s_t0}, s{s_hd}, 17\ns_lshl_b32 s{s_t1}, s{s_tok}, 6\ns_add_u32 s{s_t0}, s{s_t0}, s{s_t1}\ns_xor_b32 s{s_t1}, s{s_t0}, 0x20000")
        for x in range(2):
            for m in range(2):
                p(f"buffer_store_dwordx4 {Q(x, m)}, v{vL16}, s[{sB}:{sB+3}], s{s_t1 if x else s_t0} offen offset:{m*1024}")
    SEL = 12
    Sb = lambda x: 64 + 16 * x
    Ob = lambda x: 96 + 16 * x
    Lb = lambda x: 128 + 4 * x
    Pb = lambda x: 136 + 8 * x
    Nb = lambda x: 160 + 16 * x
    vDum, vPF, vWD = 152, 153, 32
    s_wdo, s_wm0, s_po, s_pk = 64, 65, 66, 67
    p(f"""
    v_lshrrev_b32 v{vt}, 2, v0
    v_and_b32 v{vt}, 4, v{vt}
    v_xor_b32 v{vt}, v{vt}, v0
    v_and_b32 v{vt}, 7, v{vt}
    v_cmp_eq_u32 vcc, 0, v{vt}
    v_cndmask_b32 v{SEL}, 0, v{ONES}, vcc
    v_mov_b32 v{SEL+1}, v{SEL}
    v_mov_b32 v{SEL+2}, v{SEL}
    v_mov_b32 v{SEL+3}, v{SEL}
    v_lshrrev_b32 v{vt}, 3, v0
    v_and_b32 v{vt+1}, 6, v{vt}
    v_and_b32 v{vt+2}, 7, v0
    v_xor_b32 v{vt+1}, v{vt+1}, v{vt+2}
    v_lshlrev_b32 v{vt+1}, 4, v{vt+1}
    v_lshl_add_u32 v{vWD}, v{vt}, 11, v{vt+1}
    v_add_u32 v{vWD+1}, {8*2048 - 1024}, v{vWD}
    v_add_u32 v{vWD+2}, {16*2048 - 2048}, v{vWD}
    v_add_u32 v{vWD+3}, {24*2048 - 3072}, v{vWD}
    s_lshl_b32 s{s_wdo}, s{s_w}, 16
    s_lshl_b32 s{s_t1}, s{s_j}, 7
    s_add_u32 s{s_wdo}, s{s_wdo}, s{s_t1}
    s_lshl_b32 s{s_wm0}, s{s_w}, 12
    """)
    p(f"""
    v_mul_u32_u24 v{vt}, 9363, v0
    v_lshrrev_b32 v{vt}, 16, v{vt}
    v_mul_u32_u24 v{vt+1}, {7168 - 7*128}, v{vt}
    v_lshl_add_u32 v{vPF}, v0, 7, v{vt+1}
    v_cmp_gt_u32 vcc, 14, v0
    v_cndmask_b32 v{vPF}, -1, v{vPF}, vcc
    v_and_b32 v{vPF}, 0x7fffff80, v{vPF}
    s_lshr_b32 s{s_t0}, s2, 3
    s_lshl_b32 s{s_t0}, s{s_t0}, 2
    s_add_u32 s{s_t0}, s{s_t0}, s{s_w}
    s_mul_i32 s{s_pk}, s{s_t0}, {2 * 7168}
    s_and_b32 s{s_t0}, s2, 7
    s_mul_i32 s{s_t0}, s{s_t0}, 896
    s_add_u32 s{s_pk}, s{s_pk}, s{s_t0}
    s_mov_b32 s{s_po}, s{s_pk}
    s_mov_b64 s[{sD}:{sD+1}], s[{pWG}:{pWG+1}]
    s_mov_b32 s{sD+2}, {D * FF * 2 if o.get('prefetch', True) else 0}
    """)

    def half(x, Kb, Vb, C, extra):
        y = 1 - x
        Sx, Px, Sy, Py = Sb(x), Pb(x), rr('v', Sb(y), 16), Pb(y)
        valu = []
        for i in range(8):
            valu.append(f"v_exp_f32 v{Sx+2*i}, v{Sx+2*i}")
            valu.append(f"v_exp_f32 v{Sx+2*i+1}, v{Sx+2*i+1}")
            if i > 0:
                valu.append(f"v_cvt_pk_bf16_f32 v{Px+i-1}, v{Sx+2*i-2}, v{Sx+2*i-1}")
        valu.append(f"v_cvt_pk_bf16_f32 v{Px+7}, v{Sx+14}, v{Sx+15}")
        Oy, Ly = rr('v', Ob(y), 16), rr('v', Lb(y), 4)
        sel = rr('v', SEL, 4)
        mf = [mf32(Sy, Kf(Kb, 0), Q(y, 0), C(y)), mf32(Sy, Kf(Kb, 1), Q(y, 1)),
              mf32(Oy, Vf(Vb, 0), rr('v', Py, 4)), mf16(Ly, sel, rr('v', Py, 4)),
              mf32(Oy, Vf(Vb, 1), rr('v', Py + 4, 4)), mf16(Ly, sel, rr('v', Py + 4, 4))]
        pos = (0, 4, 8, 12, 15, 19)
        for i, v in enumerate(valu):
            if i in pos:
                k = pos.index(i)
                p(mf[k])
                p.add(extra.get(k, []))
            p(v)

    def attention(tag, C, side):
        for x in range(2):
            for i in range(16): p(f"v_mov_b32 v{Ob(x)+i}, 0")
            for i in range(4): p(f"v_mov_b32 v{Lb(x)+i}, 0")
        for i in range(8): p(f"v_mov_b32 v{Pb(1)+i}, 0")
        for i in range(8): p(f"v_accvgpr_write_b32 a{64 + (NR-1)*8 + i}, 0")
        p(mf32(rr('v', Sb(0), 16), Kf(0, 0), Q(0, 0), C(0)))
        p(mf32(rr('v', Sb(0), 16), Kf(0, 1), Q(0, 1)))
        p(f"s_mov_b32 s{s_cnt}, {64 // NR}")
        p("s_nop 11")
        p.begin_loop(f"{name}_{tag}_loop", 64 // NR)
        for kt in range(NR):
            e0 = {0: [vld(kt + NR - 2, 0)], 1: [vld(kt + NR - 2, 1)], 3: [Ins(f"s_add_u32 s{s_vo}, s{s_vo}, 4096")],
                  5: [Ins(f"wait {Kf(kt+1, 0)}, {Kf(kt+1, 1)}, {Vf(kt, 0)}, {Vf(kt, 1)}")]}
            e1 = {0: [kld(kt, 0)], 1: [kld(kt, 1)], 3: [Ins(f"s_add_u32 s{s_ko}, s{s_ko}, 4096")]}
            if side:
                if kt == 0: e0[2] = [Ins(f"s_mov_b32 m0, s{s_wm0}")]
                if kt % 2 == 0:
                    i = kt // 2
                    e0[4] = [Ins(f"buffer_load_dwordx4 v{vWD+i}, s[{sE}:{sE+3}], s{s_wdo} offen offset:{i*1024} lds", awr=['LW'], nowaw=True)]
                if kt == 7:
                    e0[2] = [Ins(f"s_add_u32 s{s_wdo}, s{s_wdo}, {128 * 2048}")]
                    e0[4] = [Ins(f"s_add_u32 s{s_wm0}, s{s_wm0}, 16384")]
                if kt in (1, 5):
                    e0[2] = [Ins(f"buffer_load_dword v{vDum}, v{vPF}, s[{sD}:{sD+3}], s{s_po} offen", nowaw=True)]
                    e0[4] = [Ins(f"s_add_u32 s{s_po}, s{s_po}, {256 * 7168}")]
                if kt == 5:
                    e1[2] = [Ins(f"s_cmp_eq_u32 s{s_cnt}, 7")]
                    e1[3] = [Ins(f"s_cselect_b64 s[{sD}:{sD+1}], s[{pWU}:{pWU+1}], s[{sD}:{sD+1}]")]
                    e1[4] = [Ins(f"s_cselect_b32 s{s_po}, s{s_pk}, s{s_po}")]
                    e1[5] = [Ins(f"s_add_u32 s{s_ko}, s{s_ko}, 4096")]
                if kt == 6:
                    e1[2] = [Ins(f"s_cmp_eq_u32 s{s_cnt}, 5")]
                    e1[3] = [Ins(f"s_cselect_b64 s[{sD}:{sD+1}], s[{pWD}:{pWD+1}], s[{sD}:{sD+1}]")]
                    e1[4] = [Ins(f"s_cselect_b32 s{s_po}, s{s_pk}, s{s_po}")]
                    e1[5] = [Ins(f"s_add_u32 s{s_ko}, s{s_ko}, 4096")]
            if kt == NR - 1:
                e1[4] = [Ins(f"s_sub_u32 s{s_cnt}, s{s_cnt}, 1")]
                e1[5] = [Ins(f"s_cmp_lg_u32 s{s_cnt}, 0")]
            half(0, kt, kt - 1, C, e0)
            half(1, kt + 1, kt, C, e1)
        p(f"s_cbranch_scc1 {name}_{tag}_loop")
        p.end_loop()
        O1, L1, sel = rr('v', Ob(1), 16), rr('v', Lb(1), 4), rr('v', SEL, 4)
        p(mf32(O1, Vf(NR - 1, 0), rr('v', Pb(1), 4)))
        p(mf16(L1, sel, rr('v', Pb(1), 4)))
        p(mf32(O1, Vf(NR - 1, 1), rr('v', Pb(1) + 4, 4)))
        p(mf16(L1, sel, rr('v', Pb(1) + 4, 4)))

    p.add(Raw("; @stamp 3"))
    attention('fast', lambda y: "0", True)
    p.add(Raw("; @stamp 4"))
    srd(p, sB, pWS, OF[1], bias=OF[0])
    p(f"s_mov_b32 s{s_t0}, {f32hex(2.0**-40)}\ns_mov_b32 s{s_t1}, {f32hex(2.0**40)}\ns_mov_b32 s{s_t2}, {f32hex(2.0**120)}")
    for x in range(2):
        p(f"v_add_f32 v{vt+2*x}, |v{Ob(x)}|, |v{Ob(x)+1}|")
        p(f"v_add_f32 v{vt+2*x+1}, |v{Ob(x)+2}|, |v{Ob(x)+3}|")
        for i in range(4, 16):
            p(f"v_add_f32 v{vt+2*x+(i&1)}, v{vt+2*x+(i&1)}, |v{Ob(x)+i}|")
    p(f"""
    v_add_f32 v{vt}, v{vt}, v{vt+1}
    v_add_f32 v{vt+2}, v{vt+2}, v{vt+3}
    v_add_f32 v{vt}, v{vt}, v{vt+2}
    v_cmp_nle_f32 s[68:69], s{s_t0}, v{Lb(0)}
    v_cmp_nle_f32 s[70:71], s{s_t0}, v{Lb(1)}
    v_cmp_nge_f32 s[72:73], s{s_t1}, v{Lb(0)}
    v_cmp_nge_f32 s[74:75], s{s_t1}, v{Lb(1)}
    v_cmp_nge_f32 vcc, s{s_t2}, v{vt}
    s_or_b64 s[68:69], s[68:69], s[70:71]
    s_or_b64 s[72:73], s[72:73], s[74:75]
    s_or_b64 s[68:69], s[68:69], s[72:73]
    s_or_b64 s[68:69], s[68:69], vcc
    s_cbranch_scc1 {name}_slow
    {name}_fin:
    v_rcp_f32 v{Lb(0)}, v{Lb(0)}
    v_rcp_f32 v{Lb(1)}, v{Lb(1)}
    v_bfe_u32 v{vt}, v0, 4, 1
    v_lshlrev_b32 v{vt}, 15, v{vt}
    v_and_b32 v{vt+1}, 15, v0
    v_lshl_add_u32 v{vt}, v{vt+1}, 4, v{vt}
    v_lshrrev_b32 v{vt+1}, 5, v0
    v_lshl_add_u32 v{vt}, v{vt+1}, 8, v{vt}
    s_lshl_b32 s{s_t0}, s{s_tok}, 1
    s_add_u32 s{s_t0}, s{s_t0}, s{s_hd}
    s_lshl_b32 s{s_t0}, s{s_t0}, 10
    s_xor_b32 s{s_t1}, s{s_t0}, 1024
    """)
    for x in range(2):
        for a in range(2):
            for i in range(8 * a, 8 * a + 8):
                p(f"v_mul_f32 v{Ob(x)+i}, v{Ob(x)+i}, v{Lb(x)}")
            for i in range(4 * a, 4 * a + 4):
                p(f"v_cvt_pk_bf16_f32 v{Pb(x)+i}, v{Ob(x)+2*i}, v{Ob(x)+2*i+1}")
            p(f"buffer_store_dwordx4 {rr('v', Pb(x)+4*a, 4)}, v{vt}, s[{sB}:{sB+3}], s{s_t1 if x else s_t0} offen offset:{a*512} sc1")

    s_c, s_xo, s_xe, s_xend = 61, 62, 63, 64
    vX1, vA3, vRSA = 12, 16, 20
    AB3, WB, MB = 32 + 8, 72, 136
    LEAD = 12
    XS = lambda slot, t, G: rr('a', slot * 32 + (t * 4 + G) * 4, 4)
    WS_ = lambda F, G: rr('v', WB + F * 16 + G * 4, 4)
    ACS = lambda F, t: rr('v', AB3 + (F * 2 + t) * 4, 4)

    def xld(slot, oob=True):
        o_ = [Ins(f"s_cmp_lt_u32 s{s_xo}, s{s_xend}"), Ins(f"s_cselect_b32 s{s_xe}, s{s_xo}, s{sB+2}")]
        for t in range(2):
            for G in range(4):
                o_.append(Ins(f"buffer_load_dwordx4 {XS(slot, t, G)}, v{vX1 if t else vL16}, s[{sB}:{sB+3}], s{s_xe} offen offset:{G*1024} sc1"))
        o_.append(Ins(f"s_add_u32 s{s_xo}, s{s_xo}, 4096"))
        return o_

    def wread_addr(wo, base):
        if wo:
            p(f"v_lshrrev_b32 v{vt}, 2, v0\nv_and_b32 v{vt}, 7, v{vt}\nv_lshrrev_b32 v{vt+1}, 5, v0\nv_lshl_add_u32 v{vt+1}, v{vt+1}, 4, v{vt}")
        else:
            p(f"v_lshrrev_b32 v{vt+1}, 2, v0\nv_and_b32 v{vt}, 7, v{vt+1}")
        p(f"""
        v_lshrrev_b32 v{vt}, 1, v{vt}
        v_lshlrev_b32 v{vt}, 5, v{vt}
        v_lshl_add_u32 v{vt}, v{vt+1}, 7, v{vt}
        v_and_b32 v{vt+1}, 3, v0
        v_lshl_add_u32 v{vA3}, v{vt+1}, 3, v{vt}""")
        if base:
            p(f"v_add_u32 v{vA3}, {base}, v{vA3}")
        p(f"v_xor_b32 v{vA3+1}, 32, v{vA3}\nv_xor_b32 v{vA3+2}, 64, v{vA3}\nv_xor_b32 v{vA3+3}, 0x60, v{vA3}")

    def rdS(slot, n, boff):
        F, G, b = n >> 3, (n >> 1) & 3, n & 1
        return Ins(f"ds_read_b64_tr_b16 {rr('v', WB + F*16 + G*4 + 2*b, 2)}, v{vA3+F} offset:{slot*16384 + G*4096 + b*boff}")

    def small_loop(label, trips, boff, wo, dmaf):
        MACC = lambda t: rr('v', MB + 4 * t, 4)
        RSF = lambda G: rr('v', MB + 8 + 4 * G, 4)
        for n in range(LEAD):
            p.add(rdS(0, n, boff))
        p(f"s_mov_b32 s{s_cnt}, {trips}")
        p(f"wait {WS_(0, 0)}, {WS_(0, 1)}, " + ", ".join(XS(0, t_, G_) for t_ in range(2) for G_ in range(4)))
        p.begin_loop(label, trips)
        for u in range(4):
            fill = spread((dmaf(u) if dmaf else []) + xld((u + 3) % 4), 0, 2)
            order = [(F, t, G) for F in range(4) for t in range(2) for G in range(4)]
            for i, (F, t, G) in enumerate(order):
                p(mf16(ACS(F, t), WS_(F, G), XS(u, t, G)))
                n = i + LEAD
                if n == 32 and dmaf:
                    p("s_barrier")
                if u == 3 and n >= 32 and n % 8 == 0:
                    p(f"v_xor_b32 v{vA3 + (n-32)//8}, 0x10000, v{vA3 + (n-32)//8}")
                p.add(rdS((u + n // 32) % 4, n % 32, boff))
                if i % 8 == 7:
                    Fn = (F + 1) % 4
                    p(f"wait {WS_(Fn, 0)}, {WS_(Fn, 1)}" + ("".join(", " + XS((u + 1) % 4, t_, G_) for t_ in range(2) for G_ in range(4)) if i == 31 else ""))
                if i % 8 == 1:
                    p(f"wait {WS_(F, 2)}, {WS_(F, 3)}")
                if wo and i < 4:
                    p(f"ds_read_b128 {RSF(i)}, v{vRSA} offset:{(u*4+i)*64}")
                p.add(fill.get(i, []))
                if wo and i >= 16 and i % 2 == 1:
                    k = (i - 16) // 2
                    p(mf16(MACC(k >> 2), RSF(k & 3), XS(u, k >> 2, k & 3)))
                if u == 3 and i == 29:
                    p(f"v_xor_b32 v{vA3+2}, 0x10000, v{vA3+2}")
                if u == 3 and i == 30:
                    p(f"v_xor_b32 v{vA3+3}, 0x10000, v{vA3+3}")
        if wo:
            p(f"v_add_u32 v{vRSA}, 1024, v{vRSA}")
        p(f"""
        s_sub_u32 s{s_cnt}, s{s_cnt}, 1
        s_cmp_lg_u32 s{s_cnt}, 0
        s_cbranch_scc1 {label}""")
        p.end_loop()

    p(f"""
    s_lshl_b32 s{s_c}, s{s_tok}, 3
    s_add_u32 s{s_c}, s{s_c}, {ST_CNT}
    s_lshl_b32 s{s_xo}, s{s_tok}, 11
    s_add_u32 s{s_xend}, s{s_xo}, 0x8000""")
    arrive(p, s_c)
    p(f"""
    v_add_u32 v{vX1}, 0x8000, v{vL16}
    v_and_b32 v{vt}, 1, v0
    v_lshlrev_b32 v{vt}, 11, v{vt}
    v_lshrrev_b32 v{vt+1}, 4, v0
    v_lshl_add_u32 v{vRSA}, v{vt+1}, 4, v{vt}
    v_add_u32 v{vRSA}, {RST}, v{vRSA}""")
    wread_addr(True, 0)
    for i in list(range(AB3, AB3 + 32)) + list(range(MB, MB + 8)):
        p(f"v_mov_b32 v{i}, 0")
    p("s_barrier")
    p.add(Raw("; @stamp 5"))
    poll(p, f"{name}_opoll", s_c, 16, vt)
    p.add(Raw("; @stamp 6"))
    for u in range(3):
        p.add(xld(u))
    small_loop(f"{name}_p3loop", 2, 8 * 128, True, None)
    p.add(Raw("; @stamp 7"))

    XD, NSLOT, SLOT4, LEAD4 = o.get('XD', 2), 4, 28672, 8
    s_mb, s_nb, s_par, s_wo4, s_m04, s_dsl, s_rsl, s_tk4 = 65, 66, 67, 68, 69, 70, 71, 72
    vD4 = 21
    p(f"""
    s_and_b32 s{s_t0}, s2, 7
    s_lshr_b32 s{s_t1}, s2, 3
    s_and_b32 s{s_mb}, s{s_t1}, 7
    s_lshr_b32 s{s_t1}, s{s_t1}, 3
    s_lshl_b32 s{s_nb}, s{s_t0}, 2
    s_add_u32 s{s_nb}, s{s_nb}, s{s_t1}
    s_and_b32 s{s_par}, s{s_nb}, 1
    s_lshl_b32 s{s_t0}, s{s_par}, 1
    s_movk_i32 s{s_t1}, 4682
    """)
    for i in range(7):
        p(f"""
        v_add_u32 v{vt}, {64*i}, v0
        v_mul_u32_u24 v{vt+1}, s{s_t1}, v{vt}
        v_lshrrev_b32 v{vt+1}, 16, v{vt+1}
        v_mul_u32_u24 v{vt+2}, 14, v{vt+1}
        v_sub_u32 v{vt}, v{vt}, v{vt+2}
        v_add_u32 v{vt}, s{s_t0}, v{vt}
        v_subrev_u32 v{vt+2}, 14, v{vt}
        v_min_u32 v{vt}, v{vt}, v{vt+2}
        v_mul_u32_u24 v{vt+1}, 7168, v{vt+1}
        v_lshl_add_u32 v{vD4+i}, v{vt}, 4, v{vt+1}
        """)
        if i & 3:
            p(f"v_subrev_u32 v{vD4+i}, {(i & 3) * 1024}, v{vD4+i}")
    p(f"""
    s_lshl_b32 s{s_tk4}, s{s_mb}, 2
    s_add_u32 s{s_tk4}, s{s_tk4}, s{s_w}
    s_lshl_b32 s{s_tk4}, s{s_tk4}, 6
    s_and_b32 s{s_t0}, s{s_w}, 1
    s_mul_i32 s{s_wo4}, s{s_t0}, {32 * 7168}
    s_mul_i32 s{s_t1}, s{s_nb}, 224
    s_add_u32 s{s_wo4}, s{s_wo4}, s{s_t1}
    s_mul_i32 s{s_m04}, s{s_w}, 7168
    s_mov_b32 s{s_dsl}, 0
    s_mov_b32 s{s_rsl}, 0
    s_cmp_lt_u32 s{s_w}, 2
    s_cselect_b64 s[{sD}:{sD+1}], s[{pWG}:{pWG+1}], s[{pWU}:{pWU+1}]
    s_mov_b32 s{sD+2}, {hex(D * FF * 2)}
    """)

    def dma4(tag):
        o_ = []
        for i in range(7):
            if i == 0: o_.append(Ins(f"s_add_u32 m0, s{s_m04}, s{s_dsl}"))
            if i == 4: o_.append(Ins("s_add_u32 m0, m0, 4096"))
            o_.append(Ins(f"buffer_load_dwordx4 v{vD4+i}, s[{sD}:{sD+3}], s{s_wo4} offen offset:{(i&3)*1024} lds", awr=[tag], nowaw=True))
        o_ += [Ins(f"s_add_u32 s{s_wo4}, s{s_wo4}, {64 * 7168}"), Ins(f"s_add_u32 s{s_dsl}, s{s_dsl}, {SLOT4}"),
               Ins(f"s_cmp_eq_u32 s{s_dsl}, {SLOT4 * NSLOT}"), Ins(f"s_cselect_b32 s{s_dsl}, 0, s{s_dsl}")]
        return o_
    p("s_waitcnt lgkmcnt(0)")
    p("s_barrier")
    p.add(dma4('Lx')); p.add(dma4('Lx'))

    vE, vS, vQ, vP = 160, 28, 30, WB
    srd(p, sB, pWS, HC[1], bias=HC[0])
    if 'h' in dbg:
        srd(p, sA, pWS, HR[1], bias=HR[0])
    s_ho = s_xo
    p(f"""
    s_lshl_b32 s{s_t0}, s{s_w}, 12
    s_add_u32 s{s_t0}, s{s_t0}, {XT}
    v_and_b32 v{vt+4}, 15, v0
    v_lshrrev_b32 v{vt+5}, 1, v{vt+4}
    v_lshrrev_b32 v{vt+6}, 5, v0
    v_xor_b32 v{vt+5}, v{vt+5}, v{vt+6}
    v_lshlrev_b32 v{vt+5}, 4, v{vt+5}
    v_lshl_add_u32 v{vt+5}, v{vt+4}, 7, v{vt+5}
    v_bfe_u32 v{vt+6}, v0, 4, 1
    v_lshl_add_u32 v{vt+5}, v{vt+6}, 3, v{vt+5}
    v_add_u32 v{vt}, s{s_t0}, v{vt+5}
    v_xor_b32 v{vt+1}, 32, v{vt}
    v_xor_b32 v{vt+2}, 64, v{vt}
    v_xor_b32 v{vt+3}, 0x60, v{vt}
    s_add_u32 s{s_ho}, s{s_tok}, s{s_j}
    s_lshl_b32 s{s_ho}, s{s_ho}, 11
    """)
    for t in range(2):
        for F in range(4):
            p(f"ds_read_b64 {rr('v', vE + (t*4+F)*2, 2)}, v{vt+F} offset:{t*2048}")
    p(f"s_mov_b32 s{s_t1}, {f32hex(1.0/1024)}")
    for t in range(2):
        p(f"""
        v_accvgpr_read_b32 v{vS+t}, a{aMEAN+t}
        v_add_f32 v{MB+4*t}, v{MB+4*t}, v{MB+4*t+1}
        v_fmac_f32 v{vS+t}, s{s_t1}, v{MB+4*t}
        v_mov_b32 v{vQ+t}, 0
        """)
        for F in range(4):
            a = AB3 + (F * 2 + t) * 4
            e = vE + (t * 4 + F) * 2
            k = vP + 32 + (F & 1) * 4
            hr = vP + (t * 2 + (F >> 1)) * 4 + (F & 1) * 2
            hc = hr + 16
            p(f"""
            v_lshlrev_b32 v{k}, 16, v{e}
            v_and_b32 v{k+1}, 0xffff0000, v{e}
            v_lshlrev_b32 v{k+2}, 16, v{e+1}
            v_and_b32 v{k+3}, 0xffff0000, v{e+1}
            v_add_f32 v{a}, v{a}, v{k}
            v_add_f32 v{a+1}, v{a+1}, v{k+1}
            v_add_f32 v{a+2}, v{a+2}, v{k+2}
            v_add_f32 v{a+3}, v{a+3}, v{k+3}
            v_sub_f32 v{k}, v{a}, v{vS+t}
            v_sub_f32 v{k+1}, v{a+1}, v{vS+t}
            v_sub_f32 v{k+2}, v{a+2}, v{vS+t}
            v_sub_f32 v{k+3}, v{a+3}, v{vS+t}
            v_cvt_pk_bf16_f32 v{hc}, v{k}, v{k+1}
            v_cvt_pk_bf16_f32 v{hc+1}, v{k+2}, v{k+3}
            v_fmac_f32 v{vQ+t}, v{k}, v{k}
            v_fmac_f32 v{vQ+t}, v{k+1}, v{k+1}
            v_fmac_f32 v{vQ+t}, v{k+2}, v{k+2}
            v_fmac_f32 v{vQ+t}, v{k+3}, v{k+3}
            """)
            if F & 1:
                g = F >> 1
                b = vP + (t * 2 + g) * 4
                p(f"buffer_store_dwordx4 {rr('v', b+16, 4)}, v{vX1 if t else vL16}, s[{sB}:{sB+3}], s{s_ho} offen offset:{g*1024} sc1")
    xsum16_32(p, f"v{vQ}", f"v{vt}")
    xsum16_32(p, f"v{vQ+1}", f"v{vt+1}")
    p(f"""
    v_cmp_gt_u32 vcc, 16, v0
    v_cndmask_b32 v{vQ}, v{vQ+1}, v{vQ}, vcc
    s_lshr_b32 s{s_t0}, s{s_j}, 2
    s_lshl_b32 s{s_t0}, s{s_t0}, 15
    s_and_b32 s{s_t1}, s{s_j}, 3
    s_lshl_b32 s{s_t1}, s{s_t1}, 2
    s_add_u32 s{s_t0}, s{s_t0}, s{s_t1}
    s_lshl_b32 s{s_t1}, s{s_tok}, 4
    s_add_u32 s{s_t0}, s{s_t0}, s{s_t1}
    s_add_u32 s{s_t0}, s{s_t0}, {ST_SSQ}
    s_mov_b32 exec_hi, 0
    buffer_store_dword v{vQ}, v{vL16}, s[{sT}:{sT+3}], s{s_t0} offen sc1
    s_mov_b32 exec_hi, -1
    s_lshr_b32 s{s_c}, s{s_tok}, 6
    s_lshl_b32 s{s_c}, s{s_c}, 8
    s_add_u32 s{s_c}, s{s_c}, {ST_CNT + 64 * 256}
    """)
    for t in range(2):
        for F in range(4):
            a = AB3 + (F * 2 + t) * 4
            hr = vP + (t * 2 + (F >> 1)) * 4 + (F & 1) * 2
            p(f"v_cvt_pk_bf16_f32 v{hr}, v{a}, v{a+1}\nv_cvt_pk_bf16_f32 v{hr+1}, v{a+2}, v{a+3}")
    for i in range(16):
        p(f"v_accvgpr_write_b32 a{aHR+i}, v{vP+i}")
    for i in range(4):
        p(f"v_accvgpr_write_b32 a{aMEAN-4+i}, v{vWD+i}")
    if 'h' in dbg:
        for t in range(2):
            for g in range(2):
                p(f"buffer_store_dwordx4 {rr('v', vP + (t*2+g)*4, 4)}, v{vX1 if t else vL16}, s[{sA}:{sA+3}], s{s_ho} offen offset:{g*1024}")
    arrive(p, s_c)

    vX4 = [vL16, 12, 13, 14]
    vA4, vAb, vR4 = 15, 16, 17
    AB4 = 32
    X4 = lambda slot, t, g: rr('a', slot * 32 + (t * 2 + g) * 4, 4)
    WB4, NWR = XD * 32, 4
    W4 = lambda q, g: rr('a', WB4 + (q % NWR) * 8 + g * 4, 4)
    AC4 = lambda f, t: rr('v', AB4 + (f * 4 + t) * 4, 4)
    SQ = WB4 + NWR * 8
    p(f"""
    v_add_u32 v{vX4[2]}, 0x10000, v{vL16}
    v_add_u32 v{vX4[3]}, 0x18000, v{vL16}
    v_lshrrev_b32 v{vt}, 2, v0
    v_mul_u32_u24 v{vt}, 224, v{vt}
    v_and_b32 v{vt+1}, 3, v0
    v_lshl_add_u32 v{vAb}, v{vt+1}, 3, v{vt}
    v_mov_b32 v{vA4}, v{vAb}
    v_and_b32 v{vt+2}, 15, v0
    v_lshlrev_b32 v{vt+2}, 4, v{vt+2}
    v_lshrrev_b32 v{vt+1}, 4, v0
    v_lshl_add_u32 v{vt+2}, v{vt+1}, 15, v{vt+2}
    s_lshl_b32 s{s_xo}, s{s_tk4}, 11
    s_add_u32 s{s_xend}, s{s_xo}, 0x8000
    s_lshl_b32 s{s_c}, s{s_tk4}, 2
    s_add_u32 s{s_c}, s{s_c}, {ST_CNT + 64 * 256}
    s_lshl_b32 s{s_t0}, s{s_tk4}, 4
    s_add_u32 s{s_t0}, s{s_t0}, {ST_SSQ}
    """)
    for i in range(224):
        p(f"v_mov_b32 v{AB4+i}, 0")

    def xld4(slot):
        o_ = [Ins(f"s_cmp_lt_u32 s{s_xo}, s{s_xend}"), Ins(f"s_cselect_b32 s{s_xe}, s{s_xo}, s{sB+2}")]
        for t in range(4):
            for g in range(2):
                o_.append(Ins(f"buffer_load_dwordx4 {X4(slot, t, g)}, v{vX4[t]}, s[{sB}:{sB+3}], s{s_xe} offen offset:{g*1024} sc1"))
        o_.append(Ins(f"s_add_u32 s{s_xo}, s{s_xo}, 2048"))
        return o_

    def rd4(q, n):
        f = q % 14
        g, b = n >> 1, n & 1
        return Ins(f"ds_read_b64_tr_b16 {rr('a', WB4 + (q % NWR)*8 + g*4 + 2*b, 2)}, v{vA4} offset:{(f&1)*14336 + (32*g+16*b)*224 + (f>>1)*32}")
    p("s_barrier")
    for n in range(LEAD4):
        p.add(rd4(n >> 2, n & 3))
    p.add(Raw("; @stamp 8"))
    poll(p, f"{name}_hpoll", s_c, 32, vt)
    p.add(Raw("; @stamp 9"))
    for u in range(XD - 1):
        p.add(xld4(u))
    for t in range(4):
        p(f"buffer_load_dwordx4 {rr('a', SQ + 4*t, 4)}, v{vt+2}, s[{sT}:{sT+3}], s{s_t0} offen offset:{t*256} sc1")
    p(f"s_mov_b32 s{s_cnt}, {16 // XD}")
    p("wait " + ", ".join(X4(0, t, g) for t in range(4) for g in range(2)) + f", {W4(0, 0)}, {W4(0, 1)}")
    p.begin_loop(f"{name}_p4loop", 16 // XD)
    for u in range(XD):
        vm = xld4((u + XD - 1) % XD) + dma4('Lx') if XD == 2 else dma4('Lx') + xld4((u + XD - 1) % XD)
        fill, pos = {}, 1
        for ins in vm:
            fill.setdefault(pos, []).append(ins)
            pos += 2
            if pos % 8 == 7: pos += 2
        assert pos < 95
        fill[89] = [Ins(f"s_add_u32 s{s_rsl}, s{s_rsl}, {SLOT4}")]
        fill[91] = [Ins(f"s_cmp_eq_u32 s{s_rsl}, {SLOT4 * NSLOT}")]
        fill[93] = [Ins(f"s_cselect_b32 s{s_rsl}, 0, s{s_rsl}")]
        if u == XD - 1:
            fill[105] = [Ins(f"s_sub_u32 s{s_cnt}, s{s_cnt}, 1")]
            fill[107] = [Ins(f"s_cmp_lg_u32 s{s_cnt}, 0")]
        order = [(f, t, g) for f in range(14) for t in range(4) for g in range(2)]
        for i, (f, t, g) in enumerate(order):
            p(mf16(AC4(f, t), W4(u * 14 + f, g), X4(u, t, g)))
            if i % 2 == 0:
                n = i // 2 + LEAD4
                p.add(rd4(u * 14 + (n >> 2), n & 3))
            if i == 2 * (56 - LEAD4) - 1:
                p(f"v_add_u32 v{vA4}, s{s_rsl}, v{vAb}")
                p(f"s_waitcnt vmcnt({15 + (0 if XD == 2 else 8)}) lgkmcnt(4)")
                p("s_barrier")
            elif i == 111:
                p(f"wait {W4(u*14 + 14, 0)}, {W4(u*14 + 14, 1)}, " + ", ".join(X4((u + 1) % XD, t_, g_) for t_ in range(4) for g_ in range(2)))
            elif i % 8 == 7:
                p(f"wait {W4(u*14 + f + 1, 0)}, {W4(u*14 + f + 1, 1)}")
            p.add(fill.get(i, []))
    p(f"s_cbranch_scc1 {name}_p4loop")
    p.end_loop()
    p.add(Raw("; @stamp 10"))

    R5 = 0
    vW5 = 21
    s_wo5, s_m05 = 68, 69
    srd(p, sD, pWD, FF * D * 2)
    for i in range(4):
        p(f"v_accvgpr_read_b32 v{vW5+i}, a{aMEAN-4+i}")
    p(f"""
    s_lshl_b32 s{s_wo5}, s{s_w}, 16
    s_lshl_b32 s{s_t1}, s{s_j}, 7
    s_add_u32 s{s_wo5}, s{s_wo5}, s{s_t1}
    s_lshl_b32 s{s_m05}, s{s_w}, 12
    s_mov_b32 s{s_dsl}, 0
    s_waitcnt vmcnt(0) lgkmcnt(0)
    s_barrier""")

    def dma5(u=None):
        o_ = [Ins(f"s_add_u32 m0, s{s_m05}, s{s_dsl}"), Ins(f"s_add_u32 s{s_dsl}, s{s_dsl}, 16384")]
        for i in range(4):
            o_.append(Ins(f"buffer_load_dwordx4 v{vW5+i}, s[{sD}:{sD+3}], s{s_wo5} offen offset:{i*1024} lds", awr=['Lx'], nowaw=True))
        o_ += [Ins(f"s_add_u32 s{s_wo5}, s{s_wo5}, {128 * 2048}"), Ins(f"s_and_b32 s{s_dsl}, s{s_dsl}, 0x1ffff")]
        return o_
    pre5 = [dma5() for _ in range(6)]

    srd(p, sB, pWS, HH[1], bias=HH[0])
    p.add(pre5[0])
    p(f"s_mov_b32 s{s_t0}, {f32hex(1.0/1024)}\nv_mov_b32 v{vt+4}, {f32hex(1e-5)}")

    def rstd_from(aq, dst):
        for i in range(4):
            p(f"v_accvgpr_read_b32 v{vt+i}, a{aq+i}")
        p(f"v_add_f32 v{vt}, v{vt}, v{vt+1}\nv_add_f32 v{vt+2}, v{vt+2}, v{vt+3}\nv_add_f32 v{dst}, v{vt}, v{vt+2}")
        xsum16_32(p, f"v{dst}", f"v{vt}")
        p(f"v_fma_f32 v{dst}, v{dst}, s{s_t0}, v{vt+4}\nv_rsq_f32 v{dst}, v{dst}")
    for t in range(4):
        rstd_from(SQ + 4 * t, vR4 + t)
    for t in range(4):
        p(f"v_mul_f32 v{vR4+t}, {f32hex(-LOG2E)}, v{vR4+t}")
    s_of, s_oh = s_xo, s_xe
    p(f"""
    s_mul_i32 s{s_t0}, s{s_tk4}, {112 * 64}
    s_mul_i32 s{s_t1}, s{s_nb}, 7
    s_add_u32 s{s_t1}, s{s_t1}, s{s_par}
    s_lshl_b32 s{s_t1}, s{s_t1}, 9
    s_add_u32 s{s_of}, s{s_t0}, s{s_t1}
    s_mul_i32 s{s_t1}, s{s_par}, 4088
    s_add_u32 s{s_oh}, s{s_of}, 3072
    s_sub_u32 s{s_oh}, s{s_oh}, s{s_t1}
    s_add_u32 s{s_c}, s{s_c}, {32 * 256}
    """)
    for t in range(1, 4):
        p(f"v_add_u32 v{vX4[t]}, {t * 112 * 1024}, v{vL16}")
    for n, pr in enumerate((6, 0, 1, 2, 3, 4, 5)):
        if n < 5: p.add(pre5[n + 1])
        for t in range(4):
            g = AB4 + ((2 * pr) * 4 + t) * 4
            u_ = AB4 + ((2 * pr + 1) * 4 + t) * 4
            for r in range(4): p(f"v_mul_f32 v{g+r}, v{vR4+t}, v{g+r}")
            for r in range(4): p(f"v_exp_f32 v{g+r}, v{g+r}")
            for r in range(4): p(f"v_add_f32 v{g+r}, 1.0, v{g+r}")
            for r in range(4): p(f"v_rcp_f32 v{g+r}, v{g+r}")
            for r in range(4): p(f"v_mul_f32 v{u_+r}, v{u_+r}, v{g+r}")
            d_ = AB4 + ((2 * (pr & ~1)) * 4 + t) * 4 + (pr & 1) * 2
            p(f"v_cvt_pk_bf16_f32 v{d_}, v{u_}, v{u_+1}")
            p(f"v_cvt_pk_bf16_f32 v{d_+1}, v{u_+2}, v{u_+3}")
            if pr & 1:
                p(f"buffer_store_dwordx4 {rr('v', d_-2, 4)}, v{vX4[t]}, s[{sB}:{sB+3}], s{s_of} offen offset:{(pr>>1)*1024} sc1")
            elif pr == 6:
                p(f"buffer_store_dwordx2 {rr('v', d_, 2)}, v{vX4[t]}, s[{sB}:{sB+3}], s{s_oh} offen sc1")
    p.add(Raw("; @stamp 11"))
    arrive(p, s_c)

    p(f"""
    s_lshr_b32 s{s_c}, s{s_tok}, 6
    s_lshl_b32 s{s_c}, s{s_c}, 8
    s_add_u32 s{s_c}, s{s_c}, {ST_CNT + 96 * 256}
    s_mul_i32 s{s_xo}, s{s_tok}, {112 * 64}
    s_add_u32 s{s_xend}, s{s_xo}, {112 * 1024}
    s_lshl_b32 s{s_t0}, s{s_tok}, 4
    s_add_u32 s{s_t0}, s{s_t0}, {ST_SSQ}
    v_and_b32 v{vt+6}, 15, v0
    v_lshlrev_b32 v{vt+6}, 4, v{vt+6}
    v_lshrrev_b32 v{vt+1}, 4, v0
    v_lshl_add_u32 v{vt+6}, v{vt+1}, 15, v{vt+6}
    """)
    wread_addr(False, 0)
    for i in range(AB3, AB3 + 32):
        p(f"v_mov_b32 v{i}, 0")
    p("s_barrier")
    p.add(Raw("; @stamp 12"))
    poll(p, f"{name}_fpoll", s_c, 32, vt)
    p.add(Raw("; @stamp 13"))
    for u in range(3):
        p.add(xld(u))
    for t in range(2):
        p(f"buffer_load_dwordx4 {rr('a', 128 + 4*t, 4)}, v{vt+6}, s[{sT}:{sT+3}], s{s_t0} offen offset:{t*256} sc1")
    small_loop(f"{name}_p5loop", 7, 16 * 128, False, dma5)
    p.add(Raw("; @stamp 14"))
    srd(p, sA, pOUT, S * D * 2)
    p(f"s_mov_b32 s{s_t0}, {f32hex(1.0/1024)}\nv_mov_b32 v{vt+4}, {f32hex(1e-5)}")
    for t in range(2):
        rstd_from(128 + 4 * t, vS + t)
    STG = 131072
    vL, vG = vt, vt + 4
    p(f"""
    s_mul_i32 s{s_t0}, s{s_w}, 4608
    s_add_u32 s{s_t0}, s{s_t0}, {STG}
    v_and_b32 v{vt+2}, 15, v0
    v_mul_u32_u24 v{vt+2}, 144, v{vt+2}
    v_lshrrev_b32 v{vt+3}, 4, v0
    v_lshl_add_u32 v{vt+2}, v{vt+3}, 3, v{vt+2}
    v_add_u32 v{vL}, s{s_t0}, v{vt+2}
    v_lshrrev_b32 v{vt+2}, 3, v0
    v_and_b32 v{vt+3}, 7, v0
    v_lshlrev_b32 v{vt+3}, 4, v{vt+3}
    v_lshl_add_u32 v{vG}, v{vt+2}, 11, v{vt+3}
    v_mul_u32_u24 v{vt+2}, 144, v{vt+2}
    v_add3_u32 v{vL+1}, v{vt+2}, v{vt+3}, s{s_t0}
    s_lshl_b32 s{s_t1}, s{s_tok}, 11
    s_lshl_b32 s{s_t2}, s{s_j}, 7
    s_add_u32 s{s_t1}, s{s_t1}, s{s_t2}
    """)
    for i in range(16):
        p(f"v_accvgpr_read_b32 v{vE+i}, a{aHR+i}")
    for t in range(2):
        for F in range(4):
            a = AB3 + (F * 2 + t) * 4
            e = vE + (t * 2 + (F >> 1)) * 4 + (F & 1) * 2
            k = vP + (t * 4 + F) * 6
            p(f"""
            v_lshlrev_b32 v{k}, 16, v{e}
            v_and_b32 v{k+1}, 0xffff0000, v{e}
            v_lshlrev_b32 v{k+2}, 16, v{e+1}
            v_and_b32 v{k+3}, 0xffff0000, v{e+1}
            v_fmac_f32 v{k}, v{vS+t}, v{a}
            v_fmac_f32 v{k+1}, v{vS+t}, v{a+1}
            v_fmac_f32 v{k+2}, v{vS+t}, v{a+2}
            v_fmac_f32 v{k+3}, v{vS+t}, v{a+3}
            v_cvt_pk_bf16_f32 v{k+4}, v{k}, v{k+1}
            v_cvt_pk_bf16_f32 v{k+5}, v{k+2}, v{k+3}
            """)
            p(f"ds_write_b64 v{vL}, v[{k+4}:{k+5}] offset:{t*16*144 + F*32}")
        for n in range(2):
            p(f"ds_read_b128 {rr('v', MB + (t*2+n)*4, 4)}, v{vL+1} offset:{(t*2+n)*8*144}")
    for n in range(4):
        p(f"buffer_store_dwordx4 {rr('v', MB + n*4, 4)}, v{vG}, s[{sA}:{sA+3}], s{s_t1} offen")
        if n < 3: p(f"s_add_u32 s{s_t1}, s{s_t1}, {8 * 2048}")
    p(f"{name}_end:")
    p("s_endpgm")

    slow = p.segment()
    p(f"{name}_slow:")
    p.fence()
    for x in range(2):
        p(f"v_mov_b32 v{Nb(x)}, 0xff800000")
    p(f"s_mov_b32 s{s_ko}, 0")
    p.begin_loop(f"{name}_max_loop", 64, align=False)
    p.add([kld(0, 0), kld(0, 1)])
    for x in range(2):
        p(mf32(rr('v', Sb(x), 16), Kf(0, 0), Q(x, 0), "0"))
        p(mf32(rr('v', Sb(x), 16), Kf(0, 1), Q(x, 1)))
    for x in range(2):
        for i in range(0, 16, 2):
            p(f"v_max3_f32 v{Nb(x)}, v{Nb(x)}, v{Sb(x)+i}, v{Sb(x)+i+1}")
    p(f"""
    s_add_u32 s{s_ko}, s{s_ko}, 4096
    s_cmp_lg_u32 s{s_ko}, {64 * 4096}
    s_cbranch_scc1 {name}_max_loop""")
    p.end_loop()
    for x in range(2):
        p(f"""
        v_mov_b32 v{vt}, v{Nb(x)}
        v_permlane32_swap_b32 v{Nb(x)}, v{vt}
        v_max_f32 v{Nb(x)}, v{Nb(x)}, v{vt}
        v_sub_f32 v{Nb(x)}, 0, v{Nb(x)}""")
        for i in range(1, 16):
            p(f"v_mov_b32 v{Nb(x)+i}, v{Nb(x)}")
    fill_kv()
    attention('safe', lambda y: rr('v', Nb(y), 16), False)
    p.fence()
    p(f"s_branch {name}_fin")
    p.paths = [[main, red_w, rest], [main, fin, fin_k, rest], [main, fin, fin_v, rest], [slow]]
    return p
```

```python
import sys, re
sys.path.insert(0, 'dev')
from common import *
import fused

NAME = 'sequential_preLN__grouped_kv_mqa__glu_gated_glu__prompt'
HDR = open(f'cdna_kernels/{NAME}.s.ref').read().split('; Override launch')[0]
STAMP = (0x3000000, 0x100000)

def add_stamps(c, d, n):
    c = c.replace(f"{n}:\n", f"{n}:\n    s_memrealtime s[96:97]\n    s_memtime s[94:95]\n", 1)
    tail = f"""    s_waitcnt vmcnt(0)
    s_memrealtime s[98:99]
    s_memtime s[100:101]
    s_add_u32 s28, s26, {STAMP[0]}
    s_addc_u32 s29, s27, 0
    s_mov_b32 s30, 0x100000
    s_mov_b32 s31, 0x20000
    s_waitcnt lgkmcnt(0)
    s_mov_b64 exec, 1
    s_lshl_b32 s56, s2, 2
    s_add_u32 s56, s56, s52
    s_lshl_b32 s56, s56, 7
    s_sub_u32 s93, s100, s94
    s_mov_b32 s92, s98
    s_mov_b32 s91, s96
    v_mov_b32 v0, 0
"""
    for q in range(5):
        tail += "".join(f"    v_mov_b32 v{4+4*q+i}, s{76+4*q+i}\n" for i in range(4))
        tail += f"    buffer_store_dwordx4 v[{4+4*q}:{7+4*q}], v0, s[28:31], s56 offen offset:{16*q}\n"
    c = c.replace("F_end:\n", tail + "F_end:\n", 1)
    c = re.sub(r"; @stamp (\d+)", lambda m: f"    s_memrealtime s[98:99]\n    s_waitcnt lgkmcnt(0)\n    s_mov_b32 s{76+int(m.group(1))}, s98", c)
    d = re.sub(r"next_free_sgpr \d+", "next_free_sgpr 102", d)
    return c, d

def build(o):
    n = NAME + '_kernel'
    pr = fused.gen_fused('F', o)
    txt = HDR + f"; @launch grid=(256,1,1) block=(256,1,1) lds={fused.LDS_TOTAL}\n"
    txt += '.amdgcn_target "amdgcn-amd-amdhsa--gfx950"\n.text\n'
    c, d = kernel_text(n, pr)
    if o.get('stamp'):
        c, d = add_stamps(c, d, n)
    else:
        c = re.sub(r"; @stamp \d+\n", "", c)
    return txt + c + '.section .rodata,"a"\n.p2align 6\n' + d

if __name__ == '__main__':
    out = sys.argv[1] if len(sys.argv) > 1 else f'cdna_kernels/{NAME}.s'
    opts = eval(sys.argv[2]) if len(sys.argv) > 2 else {}
    open(out, 'w').write(build(opts))
    print('wrote', out)
```

```python
import sys, re
sys.path.insert(0, 'dev')
from common import *
import fused

NAME = 'sequential_preLN__grouped_kv_mqa__glu_gated_glu__prompt'
HDR = open(f'cdna_kernels/{NAME}.s.ref').read().split('; Override launch')[0]
STAMP = (0x3000000, 0x100000)

def add_stamps(c, d, n, dbgout=False):
    c = c.replace(f"{n}:\n", f"{n}:\n    s_memrealtime s[96:97]\n    s_memtime s[94:95]\n", 1)
    tail = f"""    s_waitcnt vmcnt(0)
    s_memrealtime s[98:99]
    s_memtime s[100:101]
    s_add_u32 s28, s26, {STAMP[0]}
    s_addc_u32 s29, s27, 0
    s_mov_b32 s30, 0x100000
    s_mov_b32 s31, 0x20000
    s_waitcnt lgkmcnt(0)
    s_mov_b64 exec, 1
    s_lshl_b32 s56, s2, 2
    s_add_u32 s56, s56, s52
    s_lshl_b32 s56, s56, 7
    s_sub_u32 s93, s100, s94
    s_mov_b32 s92, s98
    s_mov_b32 s91, s96
    v_mov_b32 v0, 0
"""
    for q in range(5):
        tail += "".join(f"    v_mov_b32 v{4+4*q+i}, s{76+4*q+i}\n" for i in range(4))
        tail += f"    buffer_store_dwordx4 v[{4+4*q}:{7+4*q}], v0, s[28:31], s56 offen offset:{16*q}\n"
    if dbgout:
        tail += "    s_mov_b64 s[28:29], s[24:25]\n    s_mov_b32 s30, 64\n    s_mov_b32 s90, s92\n"
        for i in range(15):
            tail += f"    s_sub_u32 s57, s{76+i}, s91\n    v_mov_b32 v4, s57\n    buffer_store_dword v4, v0, s[28:31], s56 offen offset:{4+4*i}\n"
    c = c.replace("F_end:\n", tail + "F_end:\n", 1)
    c = re.sub(r"; @stamp (\d+)", lambda m: f"    s_memrealtime s[98:99]\n    s_waitcnt lgkmcnt(0)\n    s_mov_b32 s{76+int(m.group(1))}, s98", c)
    d = re.sub(r"next_free_sgpr \d+", "next_free_sgpr 102", d)
    return c, d

def build(o):
    n = NAME + '_kernel'
    pr = fused.gen_fused('F', o)
    txt = HDR + f"; @launch grid=(256,1,1) block=(256,1,1) lds={fused.LDS_TOTAL}\n"
    txt += '.amdgcn_target "amdgcn-amd-amdhsa--gfx950"\n.text\n'
    c, d = kernel_text(n, pr)
    if o.get('stamp'):
        c, d = add_stamps(c, d, n, o.get('dbgout'))
    else:
        c = re.sub(r"; @stamp \d+\n", "", c)
    return txt + c + '.section .rodata,"a"\n.p2align 6\n' + d

if __name__ == '__main__':
    out = sys.argv[1] if len(sys.argv) > 1 else f'cdna_kernels/{NAME}.s'
    opts = eval(sys.argv[2]) if len(sys.argv) > 2 else {}
    open(out, 'w').write(build(opts))
    print('wrote', out)
```

```python
from common import *

LDS_TOTAL = 163840
ST_MR = 0x0000
ST_RS2 = 0x4000
ST_CNT = 0x28000
SPIN = 1 << 20

pX, pWQ, pWK, pWV, pWO, pWG, pWU, pWD, pOUT, pDBG, pWS = 4, 6, 8, 10, 12, 16, 18, 20, 22, 24, 26
sA, sB, sC, sD, sE, sT = 28, 32, 36, 40, 44, 48
s_w, s_b, s_j, s_tok, s_t0, s_t1, s_t2, s_cnt, s_spin = 52, 53, 54, 55, 56, 57, 58, 59, 60
vL16, vZ, vOne = 1, 2, 3
aMEAN, aHR = 238, 240


def srd(p, s, ptr, size, off=None, bias=0):
    if off is not None:
        p(f"s_add_u32 s{s}, s{ptr}, s{off}\ns_addc_u32 s{s+1}, s{ptr+1}, 0")
        ptr = s
    if bias > 0:
        p(f"s_add_u32 s{s}, s{ptr}, {hex(bias)}\ns_addc_u32 s{s+1}, s{ptr+1}, 0")
    elif bias < 0:
        p(f"s_sub_u32 s{s}, s{ptr}, {hex(-bias)}\ns_subb_u32 s{s+1}, s{ptr+1}, 0")
    elif off is None:
        p(f"s_mov_b64 s[{s}:{s+1}], s[{ptr}:{ptr+1}]")
    if isinstance(size, str):
        p(size.format(d=f"s{s+2}"))
    else:
        p(f"s_mov_b32 s{s+2}, {hex(size)}")
    p(f"s_mov_b32 s{s+3}, 0x20000")


def arrive(p, soff):
    p("s_waitcnt vmcnt(0)")
    p(f"buffer_atomic_add v{vOne}, v{vZ}, s[{sT}:{sT+3}], s{soff} offen")


def poll(p, label, soff, target, vtmp):
    p(f"s_mov_b32 s{s_spin}, {SPIN}")
    p.add(Raw(f"""{label}:
    buffer_load_dword v{vtmp}, v{vZ}, s[{sT}:{sT+3}], s{soff} offen sc1
    s_sub_u32 s{s_spin}, s{s_spin}, 1
    s_waitcnt vmcnt(0)
    v_readfirstlane_b32 s{s_t2}, v{vtmp}
    s_nop 0
    s_cselect_b32 s{s_t2}, {target}, s{s_t2}
    s_cmp_lt_u32 s{s_t2}, {target}
    s_cbranch_scc1 {label}"""))
    p("s_waitcnt vmcnt(0)")


def spread(vm, start, step):
    fill, pos = {}, start
    for ins in vm:
        fill.setdefault(pos, []).append(ins)
        if ins.kind == 'vmem':
            pos += step
    return fill


def gen_fused(name, o):
    dbg = o.get('dbg', '')
    KVSC = 'sc1' if o.get('kvsc1', False) else ''
    p = Prog()
    main = p.segment()
    p(f"""
    s_cmp_ge_u32 s2, 256
    s_cbranch_scc1 {name}_end
    s_load_dwordx16 s[4:19], s[0:1], 0
    s_load_dwordx8 s[20:27], s[0:1], 64
    v_lshrrev_b32 v1, 6, v0
    v_and_b32 v0, 63, v0
    v_readfirstlane_b32 s{s_w}, v1
    s_and_b32 s{s_t0}, s2, 7
    s_lshr_b32 s{s_t1}, s2, 3
    s_lshr_b32 s{s_b}, s{s_t0}, 1
    s_lshl_b32 s{s_b}, s{s_b}, 2
    s_and_b32 s{s_j}, s{s_t1}, 3
    s_add_u32 s{s_b}, s{s_b}, s{s_j}
    s_and_b32 s{s_j}, s{s_t0}, 1
    s_lshl_b32 s{s_j}, s{s_j}, 3
    s_lshr_b32 s{s_t1}, s{s_t1}, 2
    s_add_u32 s{s_j}, s{s_j}, s{s_t1}
    s_lshl_b32 s{s_tok}, s{s_b}, 2
    s_add_u32 s{s_tok}, s{s_tok}, s{s_w}
    s_lshl_b32 s{s_tok}, s{s_tok}, 5
    v_lshlrev_b32 v{vL16}, 4, v0
    v_cmp_eq_u32 vcc, 0, v0
    v_mov_b32 v{vOne}, 0x7ffffff0
    v_cndmask_b32 v{vZ}, v{vOne}, 0, vcc
    v_mov_b32 v{vOne}, 1
    """)

    if o.get('ipf', True):
        p(f"""
        s_getpc_b64 s[{sE}:{sE+1}]
        s_lshr_b32 s{s_t0}, s2, 3
        s_lshl_b32 s{s_t0}, s{s_t0}, 2
        s_add_u32 s{s_t0}, s{s_t0}, s{s_w}
        s_lshl_b32 s{s_t0}, s{s_t0}, 8
        v_and_b32 v4, 1, v0
        v_lshl_add_u32 v4, v4, 7, s{s_t0}
        """)
        p(f"global_load_dword v255, v4, s[{sE}:{sE+1}]", nowaw=True)
        p.cur[-1].awr = set()

    SL = 24576
    RED, CSQ = 147456, 162816
    vt = 4
    vD = 12
    vD0 = 18
    vB = 22
    vA = 28
    ONES = 36
    vRS = 40
    s_kv, s_xoff, s_woff, s_dm, s_pb, s_w6 = 61, 62, 63, 64, 65, 66
    p(f"""
    v_lshrrev_b32 v{vt}, 3, v0
    v_lshrrev_b32 v{vt+1}, 4, v0
    v_and_b32 v{vt+2}, 7, v0
    v_xor_b32 v{vt+3}, v{vt+1}, v{vt+2}
    v_lshlrev_b32 v{vt+3}, 4, v{vt+3}
    v_lshl_add_u32 v{vt+3}, v{vt}, 11, v{vt+3}
    v_xor_b32 v{vt+4}, 64, v{vt+3}
    v_add_u32 v{vD}, 4096, v{vt+3}
    v_add_u32 v{vD+1}, {16384 + 4096 - 1024}, v{vt+4}
    v_add_u32 v{vD0}, {128 + 4096 - 2048}, v{vt+3}
    v_add_u32 v{vD0+1}, {16384 + 128 + 4096 - 3072}, v{vt+4}
    v_lshrrev_b32 v{vt+5}, 5, v0
    v_lshlrev_b32 v{vt+5}, 1, v{vt+5}
    v_xor_b32 v{vt+5}, v{vt+5}, v0
    v_lshlrev_b32 v{vD0+2}, 4, v{vt+5}
    s_lshr_b32 s{s_t0}, s{s_j}, 1
    s_lshl_b32 s{s_kv}, s{s_b}, 3
    s_add_u32 s{s_kv}, s{s_kv}, s{s_t0}
    s_lshl_b32 s{s_kv}, s{s_kv}, 4
    s_lshl_b32 s{s_t0}, s{s_kv}, 11
    s_lshl_b32 s{s_t1}, s{s_w}, 9
    s_add_u32 s{s_t0}, s{s_t0}, s{s_t1}
    s_add_u32 s{s_t1}, s{s_w}, 2
    s_mul_i32 s{s_dm}, s{s_t1}, {SL}
    s_mov_b32 m0, s{s_dm}
    """)
    srd(p, sA, pX, S * D * 2 + 4096, bias=-4096)
    xo = [vD, vD + 1, vD0, vD0 + 1]
    for n in range(8):
        if n == 4:
            p(f"s_add_u32 m0, m0, 4096\ns_add_u32 s{s_t0}, s{s_t0}, 256")
        p(f"buffer_load_dwordx4 v{xo[n & 3]}, s[{sA}:{sA+3}], s{s_t0} offen offset:{(n & 3) * 1024} lds", awr=['P0'], nowaw=True)
    p(f"""
    s_bitcmp0_b32 s{s_j}, 0
    s_cselect_b64 s[{sB}:{sB+1}], s[{pWK}:{pWK+1}], s[{pWV}:{pWV+1}]
    s_mov_b32 s{sB+2}, {D * 64}
    s_mov_b32 s{sB+3}, 0x20000
    s_lshl_b32 s{s_t1}, s{s_b}, 12
    s_lshl_b32 s{s_t2}, s{s_w}, 14
    s_add_u32 s{s_dm}, s{s_dm}, 8192
    """)
    for q in range(4):
        p(f"""
        s_and_b32 s{s_t1}, s{s_t1}, 0x3000
        s_add_u32 m0, s{s_dm}, s{s_t1}
        s_add_u32 s{s_t0}, s{s_t2}, s{s_t1}""")
        for i in range(4):
            p(f"buffer_load_dwordx4 v{vD0+2}, s[{sB}:{sB+3}], s{s_t0} offen offset:{i*1024} lds", awr=['P0'], nowaw=True)
        if q < 3:
            p(f"s_add_u32 s{s_t1}, s{s_t1}, 0x1000")
    p(f"""
    v_add_u32 v{vD+2}, {32768 + 4096 - 2048}, v{vt+3}
    v_add_u32 v{vD+3}, {32768 + 16384 + 4096 - 3072}, v{vt+4}
    v_and_b32 v{vt+1}, 1, v{vt+1}
    v_lshlrev_b32 v{vt+1}, 1, v{vt+1}
    v_xor_b32 v{vt+1}, v{vt+1}, v{vt+2}
    v_lshlrev_b32 v{vt+1}, 4, v{vt+1}
    v_lshl_add_u32 v{vD+4}, v{vt}, 11, v{vt+1}
    v_xor_b32 v{vD+5}, 64, v{vD+4}
    v_add_u32 v{vD+5}, {8*2048 - 1024}, v{vD+5}
    s_lshl_b32 s{s_t0}, s{s_tok}, 11
    s_lshl_b32 s{s_t1}, s{s_w}, 15
    s_lshl_b32 s{s_t2}, s{s_j}, 7
    s_add_u32 s{s_t1}, s{s_t1}, s{s_t2}
    """)
    srd(p, sC, pX, 32 * 2048 + 4096, off=s_t0, bias=-4096)
    srd(p, sD, pWQ, f"s_sub_u32 {{d}}, {D * D * 2}, s{s_t1}", off=s_t1)
    p(f"""
    s_lshl_b32 s{s_t0}, s{s_b}, 1
    s_add_u32 s{s_t0}, s{s_t0}, s{s_j}
    s_lshl_b32 s{s_xoff}, s{s_t0}, 8
    s_and_b32 s{s_xoff}, s{s_xoff}, 2047
    s_mul_i32 s{s_w6}, s{s_w}, 6144
    """)

    def dma1(m0expr, tag):
        o_ = [Ins(m0expr), Ins(f"s_lshl_b32 s{s_woff}, s{s_xoff}, 10")]
        for i in range(4):
            o_.append(Ins(f"buffer_load_dwordx4 v{vD+i}, s[{sC}:{sC+3}], s{s_xoff} offen offset:{i*1024} lds", awr=[tag], nowaw=True))
        o_ += [Ins("s_add_u32 m0, m0, 4096"), Ins(f"s_add_u32 s{s_xoff}, s{s_xoff}, 128")]
        for i in range(2):
            o_.append(Ins(f"buffer_load_dwordx4 v{vD+4+i}, s[{sD}:{sD+3}], s{s_woff} offen offset:{i*1024} lds", awr=[tag], nowaw=True))
        o_.append(Ins(f"s_and_b32 s{s_xoff}, s{s_xoff}, 2047"))
        return o_
    srd(p, sE, pWO, D * D * 2)
    p(f"""
    s_lshl_b32 s{s_t0}, s2, 2
    s_add_u32 s{s_t0}, s{s_t0}, s{s_w}
    s_lshl_b32 s{s_t0}, s{s_t0}, 11
    buffer_load_dwordx4 {rr('v', vRS, 4)}, v{vL16}, s[{sE}:{sE+3}], s{s_t0} offen
    buffer_load_dwordx4 {rr('v', vRS+4, 4)}, v{vL16}, s[{sE}:{sE+3}], s{s_t0} offen offset:1024
    """)
    p.add(dma1(f"s_mov_b32 m0, s{s_w6}", 'L0'))
    p.add(dma1(f"s_add_u32 m0, s{s_w6}, {SL}", 'Lx'))
    srd(p, sT, pWS, ST[1], bias=ST[0])
    p(f"""
    v_and_b32 v{vt}, 15, v0
    v_lshrrev_b32 v{vt+1}, 1, v{vt}
    v_lshrrev_b32 v{vt+2}, 4, v0
    v_xor_b32 v{vt+1}, v{vt+1}, v{vt+2}
    v_lshlrev_b32 v{vt+1}, 4, v{vt+1}
    v_lshl_add_u32 v{vt+1}, v{vt}, 7, v{vt+1}
    v_xor_b32 v{vt+3}, 64, v{vt+1}
    v_add_u32 v{vB}, s{s_w6}, v{vt+1}
    v_add_u32 v{vB+1}, s{s_w6}, v{vt+3}
    s_sub_u32 s{s_t0}, s{s_dm}, 8192
    v_add_u32 v{vA}, s{s_t0}, v{vt+1}
    v_add_u32 v{vA+1}, s{s_t0}, v{vt+3}
    v_lshrrev_b32 v{vt}, 5, v0
    v_and_b32 v{vt+1}, 3, v0
    v_lshlrev_b32 v{vt+1}, 3, v{vt+1}
    v_bfe_u32 v{vt+2}, v0, 2, 2
    v_bfe_u32 v{vt+3}, v0, 4, 1
    v_lshl_add_u32 v{vt+2}, v{vt+3}, 3, v{vt+2}
    v_lshl_add_u32 v{vt+4}, v{vt}, 10, v{vt+1}
    v_lshl_add_u32 v{vt+4}, v{vt+2}, 6, v{vt+4}
    v_lshl_add_u32 v{vt+4}, v{vt+3}, 5, v{vt+4}
    v_add_u32 v{vA+2}, s{s_dm}, v{vt+4}
    v_xor_b32 v{vA+3}, 32, v{vA+2}
    v_mul_u32_u24 v{vt}, 6144, v{vt}
    v_add_u32 v{vt}, v{vt}, v{vt+1}
    v_lshl_add_u32 v{vt}, v{vt+2}, 7, v{vt}
    v_bfe_u32 v{vt+4}, v0, 3, 2
    v_xor_b32 v{vt+4}, s{s_w}, v{vt+4}
    v_lshl_add_u32 v{vB+2}, v{vt+4}, 5, v{vt}
    v_xor_b32 v{vB+3}, 32, v{vB+2}
    v_xor_b32 v{vB+4}, 64, v{vB+2}
    v_xor_b32 v{vB+5}, 0x60, v{vB+2}
    """)
    for i in range(4):
        p(f"v_mov_b32 v{ONES+i}, 0x3f803f80")
    on = rr('v', ONES, 4)
    AB = 48
    CSA = 80
    PA = 84
    FB = 112
    p.add(Raw("; @stamp 0"))
    X0 = lambda G: rr('v', FB + 4 * G, 4)
    W0 = lambda G, e: rr('v', FB + 32 + (G * 2 + e) * 4, 4)
    first = True
    for G in range(8):
        p(f"ds_read_b128 {X0(G)}, v{vA + (G & 1)} offset:{(G >> 1) * 2048}", rd=['P0'] if first else [])
        first = False
        for e in range(2):
            for b in range(2):
                p(f"ds_read_b64_tr_b16 {rr('v', FB + 32 + (G*2+e)*4 + 2*b, 2)}, v{vA+2+e} offset:{G*2048 + b*256}")
    for i in range(AB, CSA + 4):
        p(f"v_mov_b32 v{i}, 0")
    p("s_waitcnt lgkmcnt(0)")
    p("s_barrier")
    fill = spread(dma1(f"s_add_u32 m0, s{s_w6}, {2*SL}", 'Lx') + dma1(f"s_add_u32 m0, s{s_w6}, {3*SL}", 'Lx') +
                  dma1(f"s_add_u32 m0, s{s_w6}, {4*SL}", 'Lx'), 0, 2)
    acc0 = lambda k: rr('v', PA + 4 * k, 4)
    n = 0
    for G in range(8):
        c = "0" if G == 0 else None
        for m in (mf16(acc0(0), W0(G, 0), X0(G), c), mf16(acc0(1), W0(G, 1), X0(G), c), mf16(acc0(2), W0(G, 0), on, c),
                  mf16(acc0(3), W0(G, 1), on, c), mf16(acc0(4), on, X0(G), c), mf16(acc0(5), X0(G), X0(G), c)):
            p(m)
            p.add(fill.get(n, []))
            n += 1
    RSA = PA + 24
    p(mf16(rr('v', RSA, 4), on, rr('v', vRS, 4), "0"))
    p(mf16(rr('v', RSA, 4), on, rr('v', vRS + 4, 4)))
    g = PA + 20
    p(f"""
    v_and_b32 v{vt}, 3, v0
    v_cmp_eq_u32 s[68:69], 1, v{vt}
    v_cmp_eq_u32 s[70:71], 2, v{vt}
    v_cmp_eq_u32 s[72:73], 3, v{vt}
    v_bfe_u32 v{vt}, v0, 2, 2
    v_lshrrev_b32 v{vt+1}, 4, v0
    v_cmp_eq_u32 vcc, v{vt}, v{vt+1}
    s_mul_i32 s{s_t0}, s{s_w}, 5120
    s_add_u32 s{s_t0}, s{s_t0}, {RED - 5120}
    v_add_u32 v{vt+2}, s{s_t0}, v{vL16}
    v_cndmask_b32 v{g}, v{g}, v{g+1}, s[68:69]
    v_cndmask_b32 v{g}, v{g}, v{g+2}, s[70:71]
    v_cndmask_b32 v{g}, v{g}, v{g+3}, s[72:73]
    v_cndmask_b32 v{PA+17}, 0, v{g}, vcc
    v_add_f32_dpp v{RSA}, v{RSA}, v{RSA} row_ror:8 row_mask:0xf bank_mask:0xf
    v_add_f32_dpp v{RSA}, v{RSA}, v{RSA} row_ror:4 row_mask:0xf bank_mask:0xf
    v_add_f32_dpp v{RSA}, v{RSA}, v{RSA} row_ror:2 row_mask:0xf bank_mask:0xf
    v_add_f32_dpp v{RSA}, v{RSA}, v{RSA} row_ror:1 row_mask:0xf bank_mask:0xf
    v_bfe_u32 v{vt}, v0, 1, 2
    v_cmp_eq_u32 vcc, s{s_w}, v{vt}
    v_cndmask_b32 v{PA+18}, 0, v{RSA}, vcc
    s_cmp_eq_u32 s{s_w}, 0
    s_cbranch_scc1 {name}_p0fin
    """)
    red_w = p.segment()
    for k in range(5):
        p(f"ds_write_b128 v{vt+2}, {acc0(k)} offset:{k*1024}")
    p(f"""
    s_waitcnt lgkmcnt(0)
    s_barrier
    s_branch {name}_p1""")
    fin = p.segment()
    p(f"""
    {name}_p0fin:
    s_barrier""")
    for w in range(3):
        for k in range(5):
            p(f"ds_read_b128 {rr('v', FB + (w*5+k)*4, 4)}, v{vt+2} offset:{5120*(w+1) + k*1024}")
    for w in range(3):
        for i in range(19):
            p(f"v_add_f32 v{PA+i}, v{PA+i}, v{FB + w*20 + i}")
    xsum16_32(p, f"v{PA+17}", f"v{vt}")
    vM, vR = PA + 20, PA + 21
    d = PA + 24
    srd(p, sA, pWS, KV[1], bias=KV[0])
    p(f"""
    s_mov_b32 s{s_t1}, {f32hex(1.0/1024)}
    v_mul_f32 v{vM}, s{s_t1}, v{PA+16}
    v_mul_f32 v{vt}, v{vM}, v{vM}
    v_fma_f32 v{vt}, v{PA+17}, s{s_t1}, -v{vt}
    v_max_f32 v{vt}, 0, v{vt}
    v_add_f32 v{vt}, {f32hex(1e-5)}, v{vt}
    v_rsq_f32 v{vR}, v{vt}
    """)
    for e in range(2):
        a = PA + 4 * e
        for r in range(4): p(f"v_fma_f32 v{a+r}, -v{vM}, v{a+8+r}, v{a+r}")
        for r in range(4): p(f"v_mul_f32 v{a+r}, v{vR}, v{a+r}")
        p(f"v_cvt_pk_bf16_f32 v{d+2*e}, v{a}, v{a+1}")
        p(f"v_cvt_pk_bf16_f32 v{d+2*e+1}, v{a+2}, v{a+3}")
    z = PA + 18
    p(f"""
    v_cvt_pk_bf16_f32 v{vt}, v{z}, v{z}
    v_and_b32 v{vt+1}, 0xffff0000, v{vt}
    v_sub_f32 v{vt+1}, v{z}, v{vt+1}
    v_cvt_pk_bf16_f32 v{vt+1}, v{vt+1}, v{vt+1}
    v_and_b32 v{vt+3}, 1, v0
    v_cmp_eq_u32 vcc, 0, v{vt+3}
    v_cndmask_b32 v{vt}, v{vt+1}, v{vt}, vcc
    v_lshlrev_b32 v{vt+3}, 11, v{vt+3}
    v_and_b32 v{vt+4}, 6, v0
    v_add_u32 v{vt+3}, v{vt+3}, v{vt+4}
    s_and_b32 s{s_t0}, s2, 0xfc
    s_bfe_u32 s{s_t1}, s2, 0x10000
    s_lshl_b32 s{s_t1}, s{s_t1}, 1
    s_or_b32 s{s_t0}, s{s_t0}, s{s_t1}
    s_bfe_u32 s{s_t1}, s2, 0x10001
    s_or_b32 s{s_t0}, s{s_t0}, s{s_t1}
    s_lshl_b32 s{s_t0}, s{s_t0}, 3
    s_add_u32 s{s_t0}, s{s_t0}, {ST_RS2}
    s_mov_b64 exec, 0xff
    buffer_store_short v{vt}, v{vt+3}, s[{sT}:{sT+3}], s{s_t0} offen sc1
    s_mov_b64 exec, -1
    s_lshl_b32 s{s_t0}, s2, 8
    s_add_u32 s{s_t0}, s{s_t0}, {ST_CNT}
    v_mov_b32 v{vt+4}, 0
    buffer_store_dword v{vt+4}, v{vZ}, s[{sT}:{sT+3}], s{s_t0} offen sc1
    s_lshr_b32 s{s_t0}, s{s_kv}, 5
    s_lshl_b32 s{s_t0}, s{s_t0}, 12
    s_bfe_u32 s{s_t1}, s{s_kv}, 0x10004
    v_and_b32 v{vt+5}, 15, v0
    s_bitcmp1_b32 s{s_j}, 0
    s_cbranch_scc1 {name}_p0v
    """)
    fin_k = p.segment()
    p(f"""
    v_bfe_u32 v{vt}, v0, 4, 1
    v_lshlrev_b32 v{vt}, 10, v{vt}
    v_lshrrev_b32 v{vt+1}, 5, v0
    v_lshl_add_u32 v{vt}, v{vt+1}, 9, v{vt}
    v_lshl_add_u32 v{vt}, v{vt+5}, 4, v{vt}
    s_lshl_b32 s{s_t1}, s{s_t1}, 8
    s_add_u32 s{s_t0}, s{s_t0}, s{s_t1}
    buffer_store_dwordx4 {rr('v', d, 4)}, v{vt}, s[{sA}:{sA+3}], s{s_t0} offen sc1
    v_lshlrev_b32 v{vt+1}, 3, v0
    s_lshl_b32 s{s_t0}, s{s_kv}, 3
    s_mov_b64 exec, 0xffff
    buffer_store_dwordx2 {rr('v', vM, 2)}, v{vt+1}, s[{sT}:{sT+3}], s{s_t0} offen offset:{ST_MR} sc1
    s_mov_b64 exec, -1
    s_branch {name}_p1""")
    fin_v = p.segment()
    p(f"""
    {name}_p0v:
    v_lshlrev_b32 v{vt}, 6, v{vt+5}
    v_lshrrev_b32 v{vt+1}, 4, v0
    v_lshl_add_u32 v{vt}, v{vt+1}, 3, v{vt}
    v_add_u32 v{vt}, {RED}, v{vt}
    ds_write_b64 v{vt}, {rr('v', d, 2)}
    ds_write_b64 v{vt}, {rr('v', d+2, 2)} offset:32
    v_lshrrev_b32 v{vt+3}, 2, v0
    v_lshlrev_b32 v{vt+3}, 6, v{vt+3}
    v_and_b32 v{vt+4}, 3, v0
    v_lshl_add_u32 v{vt+3}, v{vt+4}, 3, v{vt+3}
    v_add_u32 v{vt+3}, {RED}, v{vt+3}
    ds_read_b64_tr_b16 {rr('v', PA, 2)}, v{vt+3}
    ds_read_b64_tr_b16 {rr('v', PA+2, 2)}, v{vt+3} offset:32
    v_lshlrev_b32 v{vt}, 4, v{vt+5}
    v_bfe_u32 v{vt+1}, v0, 4, 1
    v_lshl_add_u32 v{vt}, v{vt+1}, 9, v{vt}
    v_lshrrev_b32 v{vt+1}, 5, v0
    v_lshl_add_u32 v{vt}, v{vt+1}, 3, v{vt}
    s_lshl_b32 s{s_t1}, s{s_t1}, 10
    s_add_u32 s{s_t0}, s{s_t0}, s{s_t1}
    buffer_store_dwordx2 {rr('v', PA, 2)}, v{vt}, s[{sA}:{sA+3}], s{s_t0} offen offset:2048 sc1
    buffer_store_dwordx2 {rr('v', PA+2, 2)}, v{vt}, s[{sA}:{sA+3}], s{s_t0} offen offset:{2048 + 256} sc1
    """)

    rest = p.segment()
    p(f"{name}_p1:")
    p.add(Raw("; @stamp 1"))
    ACC = lambda F, t: rr('v', AB + (F * 2 + t) * 4, 4)
    X1 = lambda s, t, g: rr('v', FB + s * 48 + (t * 2 + g) * 4, 4)
    W1 = lambda s, F, g: rr('v', FB + s * 48 + 16 + (F * 2 + g) * 4, 4)

    def reads1(s, base):
        o_ = []
        xr = lambda t, g: Ins(f"ds_read_b128 {X1(s, t, g)}, v{vA+g} offset:{base + t*2048}")
        wr = lambda F, g, b: Ins(f"ds_read_b64_tr_b16 {rr('v', FB + s*48 + 16 + (F*2+g)*4 + 2*b, 2)}, v{vA+2+F} offset:{base + 2*g*6144 + 4096 + b*512}")
        o_ += [wr(0, 0, 0), wr(0, 0, 1), wr(0, 1, 0), wr(0, 1, 1), xr(0, 0), xr(0, 1), xr(1, 0), xr(1, 1)]
        o_ += [wr(F, g, b) for F in range(1, 4) for g in range(2) for b in range(2)]
        return o_
    srd(p, sB, pDBG, 256)
    for i in range(6):
        p(f"v_mov_b32 v{vA+i}, v{vB+i}")
    p(f"""
    s_mov_b32 s{s_pb}, 0
    s_add_u32 s{s_dm}, s{s_w6}, {2 * 2 * SL}
    s_and_b32 s{s_kv}, s2, 1
    s_lshl_b32 s{s_kv}, s{s_kv}, 7
    s_lshl_b32 s{s_t2}, s{s_w}, 8
    s_add_u32 s{s_t2}, s{s_t2}, 7
    s_mov_b32 s{s_cnt}, 8""")
    p("s_barrier", rd=['L0'])
    p.add(reads1(0, 0))
    p.begin_loop(f"{name}_p1loop", 8, align=False)
    for s in range(2):
        mf = [mf16(rr('v', CSA, 4), W1(s, 0, g), on) for g in range(2)]
        for F in range(4):
            for t in range(2):
                mf += [mf16(ACC(F, t), W1(s, F, g), X1(s, t, g)) for g in range(2)]
        pre = []
        if s == 1:
            pre = [Ins(f"v_add_u32 v{vA+i}, s{s_pb}, v{vB+i}") for i in range(6)]
        rds = reads1(1 - s, SL if s == 0 else 0)
        vm = dma1(f"s_add_u32 m0, s{s_dm}, {SL}" if s == 0 else f"s_mov_b32 m0, s{s_dm}", 'Lx')
        fill = spread(vm, 1, 2)
        if s == 0:
            fill.setdefault(14, []).extend([Ins(f"s_cmp_le_u32 s{s_cnt}, 3"), Ins(f"s_cselect_b32 s{sC+2}, 0, s{sC+2}")])
            fill.setdefault(15, []).extend([Ins(f"s_cselect_b32 s{sD+2}, 0, s{sD+2}"), Ins(f"s_add_u32 s{s_dm}, s{s_pb}, s{s_w6}")])
            fill.setdefault(16, []).extend([Ins(f"s_add_u32 s{s_pb}, s{s_pb}, {2*SL}"), Ins(f"s_cmp_eq_u32 s{s_pb}, {6*SL}")])
            fill.setdefault(17, []).extend([Ins(f"s_cselect_b32 s{s_pb}, 0, s{s_pb}")])
        else:
            fill.setdefault(16, []).append(Ins(f"s_sub_u32 s{s_cnt}, s{s_cnt}, 1"))
            fill.setdefault(17, []).append(Ins(f"s_cmp_lg_u32 s{s_cnt}, 0"))
        p.add(pre)
        p("s_waitcnt vmcnt(18)")
        p("s_barrier")
        if s == 1:
            p.add(Raw(f"""    s_cmp_lg_u32 s{s_cnt}, s{s_t2}
    s_cbranch_scc1 {name}_noarr
    buffer_atomic_add v{vOne}, v{vZ}, s[{sB}:{sB+3}], s{s_kv} offen
{name}_noarr:"""))
        k = 0
        for i, m in enumerate(mf):
            if 'p1nomf' not in dbg: p(m)
            nr = 2 if i in (0, 12) else 1
            if 'p1nods' not in dbg: p.add(rds[k:k + nr])
            k += nr
            p.add([x for x in fill.get(i, []) if not ('p1nodma' in dbg and x.kind == 'vmem')])
        assert k >= len(rds)
    p(f"s_cbranch_scc1 {name}_p1loop")
    p.end_loop()
    p.add(Raw("; @stamp 2"))
    p(f"""
    v_lshrrev_b32 v{vt}, 4, v0
    v_lshlrev_b32 v{vt}, 4, v{vt}
    s_lshl_b32 s{s_t0}, s{s_w}, 6
    s_add_u32 s{s_t0}, s{s_t0}, {CSQ}
    v_add_u32 v{vt}, s{s_t0}, v{vt}
    ds_write_b128 v{vt}, {rr('v', CSA, 4)}
    v_and_b32 v{vt+4}, 1, v0
    v_lshlrev_b32 v{vt+4}, 7, v{vt+4}
    s_mov_b32 s{s_spin}, {SPIN}
    s_movk_i32 s{s_t1}, 128""")
    p.add(Raw(f"""{name}_gpoll:
    buffer_load_dword v{vt+5}, v{vt+4}, s[{sB}:{sB+3}], 0 offen sc1
    s_sub_u32 s{s_spin}, s{s_spin}, 1
    s_waitcnt vmcnt(0)
    v_cmp_gt_u32 vcc, s{s_t1}, v{vt+5}
    s_cbranch_scc1 {name}_gdone
    s_nop 0
    s_cbranch_vccnz {name}_gpoll
{name}_gdone:"""))
    p("s_waitcnt vmcnt(0)")
    if o.get('inv', False):
        p("buffer_inv sc1")

    NR = 8
    Kf = lambda b, m: rr('a', (b % NR) * 8 + m * 4, 4)
    Vf = lambda b, m: rr('a', 64 + (b % NR) * 8 + m * 4, 4)
    vMR = 84
    s_ko, s_vo = 61, 62
    srd(p, sA, pWS, KV[1], bias=KV[0])
    p(f"""
    v_and_b32 v{vt+1}, 15, v0
    v_lshlrev_b32 v{vt+1}, 3, v{vt+1}
    s_lshl_b32 s{s_t0}, s{s_tok}, 3
    buffer_load_dwordx2 {rr('v', vMR, 2)}, v{vt+1}, s[{sT}:{sT+3}], s{s_t0} offen offset:{ST_MR} sc1
    buffer_load_dwordx2 {rr('v', vMR+2, 2)}, v{vt+1}, s[{sT}:{sT+3}], s{s_t0} offen offset:{ST_MR + 128} sc1
    """)
    kld = lambda b, m: Ins(f"buffer_load_dwordx4 {Kf(b, m)}, v{vL16}, s[{sA}:{sA+3}], s{s_ko} offen offset:{m*1024} {KVSC}")
    vld = lambda b, m: Ins(f"buffer_load_dwordx4 {Vf(b, m)}, v{vL16}, s[{sA}:{sA+3}], s{s_vo} offen offset:{2048 + m*1024} {KVSC}")

    def fill_kv():
        p(f"s_mov_b32 s{s_ko}, 0\ns_mov_b32 s{s_vo}, 0")
        for b in range(NR):
            p.add([kld(b, 0), kld(b, 1), Ins(f"s_add_u32 s{s_ko}, s{s_ko}, 4096")])
            if b < NR - 2:
                p.add([vld(b, 0), vld(b, 1), Ins(f"s_add_u32 s{s_vo}, s{s_vo}, 4096")])
    fill_kv()
    p("s_waitcnt lgkmcnt(0)")
    p("s_barrier")
    CS = 88
    for f in range(4):
        if f: p(f"v_xor_b32 v{vt+f}, {f*64}, v{vt}")
        p(f"ds_read_b128 {rr('v', CS + 4*f, 4)}, v{vt+f}")
    XT, RST = 131072, 147456
    p(f"""
    s_mov_b32 s{sC+2}, {32 * 2048 + 4096}
    s_lshl_b32 s{s_t0}, s{s_w}, 12
    s_add_u32 m0, s{s_t0}, {XT}
    s_lshl_b32 s{s_t1}, s{s_j}, 7""")
    for i in range(4):
        p(f"buffer_load_dwordx4 v{vD+i}, s[{sC}:{sC+3}], s{s_t1} offen offset:{i*1024} lds", awr=['LW'], nowaw=True)
    p(f"""
    s_lshl_b32 s{s_t0}, s{s_w}, 10
    s_add_u32 m0, s{s_t0}, {RST}
    s_add_u32 s{s_t0}, s{s_t0}, {ST_RS2}""")
    p(f"buffer_load_dwordx4 v{vL16}, s[{sT}:{sT+3}], s{s_t0} offen sc1 lds", awr=['LW'], nowaw=True)
    Q = lambda x, m: rr('v', 16 + x * 8 + m * 4, 4)
    QP = 112
    for t in range(2):
        p(f"v_accvgpr_write_b32 a{aMEAN+t}, v{vMR+2*t}")
        p(f"v_mul_f32 v{vMR+2*t+1}, {f32hex(LOG2E * DH ** -0.5)}, v{vMR+2*t+1}")
    for hd in range(2):
        for t in range(2):
            for f in range(2):
                F = 2 * hd + f
                a = AB + (F * 2 + t) * 4
                dq = QP + hd * 8 + t * 4 + 2 * f
                for r in range(4): p(f"v_fma_f32 v{a+r}, -v{vMR+2*t}, v{CS+4*F+r}, v{a+r}")
                for r in range(4): p(f"v_mul_f32 v{a+r}, v{vMR+2*t+1}, v{a+r}")
                p(f"v_cvt_pk_bf16_f32 v{dq}, v{a}, v{a+1}")
                p(f"v_cvt_pk_bf16_f32 v{dq+1}, v{a+2}, v{a+3}")
    p(f"s_bitcmp1_b32 s{s_w}, 0\ns_cselect_b64 vcc, -1, 0")
    for i in range(16):
        p(f"v_cndmask_b32 v{16+i}, v{QP+i}, v{QP+(i^2)}, vcc")
    for hd in range(2):
        for i in range(4):
            p(f"v_permlane16_swap_b32 v{16+hd*8+i}, v{16+hd*8+4+i}")
    s_hd = 63
    p(f"""
    s_lshl_b32 s{s_hd}, s{s_j}, 1
    s_lshr_b32 s{s_t0}, s{s_w}, 1
    s_add_u32 s{s_hd}, s{s_hd}, s{s_t0}""")
    if 'Q' in dbg:
        srd(p, sB, pWS, QF[1], bias=QF[0])
        p(f"s_lshl_b32 s{s_t0}, s{s_hd}, 17\ns_lshl_b32 s{s_t1}, s{s_tok}, 6\ns_add_u32 s{s_t0}, s{s_t0}, s{s_t1}\ns_xor_b32 s{s_t1}, s{s_t0}, 0x20000")
        for x in range(2):
            for m in range(2):
                p(f"buffer_store_dwordx4 {Q(x, m)}, v{vL16}, s[{sB}:{sB+3}], s{s_t1 if x else s_t0} offen offset:{m*1024}")
    SEL = 12
    Sb = lambda x: 64 + 16 * x
    Ob = lambda x: 96 + 16 * x
    Lb = lambda x: 128 + 4 * x
    Pb = lambda x: 136 + 8 * x
    Nb = lambda x: 160 + 16 * x
    vDum, vPF, vWD = 152, 153, 32
    s_wdo, s_wm0, s_po, s_pk = 64, 65, 66, 67
    p(f"""
    v_lshrrev_b32 v{vt}, 2, v0
    v_and_b32 v{vt}, 4, v{vt}
    v_xor_b32 v{vt}, v{vt}, v0
    v_and_b32 v{vt}, 7, v{vt}
    v_cmp_eq_u32 vcc, 0, v{vt}
    v_cndmask_b32 v{SEL}, 0, v{ONES}, vcc
    v_mov_b32 v{SEL+1}, v{SEL}
    v_mov_b32 v{SEL+2}, v{SEL}
    v_mov_b32 v{SEL+3}, v{SEL}
    v_lshrrev_b32 v{vt}, 3, v0
    v_and_b32 v{vt+1}, 6, v{vt}
    v_and_b32 v{vt+2}, 7, v0
    v_xor_b32 v{vt+1}, v{vt+1}, v{vt+2}
    v_lshlrev_b32 v{vt+1}, 4, v{vt+1}
    v_lshl_add_u32 v{vWD}, v{vt}, 11, v{vt+1}
    v_add_u32 v{vWD+1}, {8*2048 - 1024}, v{vWD}
    v_add_u32 v{vWD+2}, {16*2048 - 2048}, v{vWD}
    v_add_u32 v{vWD+3}, {24*2048 - 3072}, v{vWD}
    s_lshl_b32 s{s_wdo}, s{s_w}, 16
    s_lshl_b32 s{s_t1}, s{s_j}, 7
    s_add_u32 s{s_wdo}, s{s_wdo}, s{s_t1}
    s_lshl_b32 s{s_wm0}, s{s_w}, 12
    """)
    p(f"""
    v_mul_u32_u24 v{vt}, 9363, v0
    v_lshrrev_b32 v{vt}, 16, v{vt}
    v_mul_u32_u24 v{vt+1}, {7168 - 7*128}, v{vt}
    v_lshl_add_u32 v{vPF}, v0, 7, v{vt+1}
    v_cmp_gt_u32 vcc, 14, v0
    v_cndmask_b32 v{vPF}, -1, v{vPF}, vcc
    v_and_b32 v{vPF}, 0x7fffff80, v{vPF}
    s_lshr_b32 s{s_t0}, s2, 3
    s_lshl_b32 s{s_t0}, s{s_t0}, 2
    s_add_u32 s{s_t0}, s{s_t0}, s{s_w}
    s_mul_i32 s{s_pk}, s{s_t0}, {2 * 7168}
    s_and_b32 s{s_t0}, s2, 7
    s_mul_i32 s{s_t0}, s{s_t0}, 896
    s_add_u32 s{s_pk}, s{s_pk}, s{s_t0}
    s_mov_b32 s{s_po}, s{s_pk}
    s_mov_b64 s[{sD}:{sD+1}], s[{pWG}:{pWG+1}]
    s_mov_b32 s{sD+2}, {D * FF * 2 if o.get('prefetch', True) else 0}
    """)

    def half(x, Kb, Vb, C, extra):
        y = 1 - x
        Sx, Px, Sy, Py = Sb(x), Pb(x), rr('v', Sb(y), 16), Pb(y)
        valu = []
        for i in range(8):
            valu.append(f"v_exp_f32 v{Sx+2*i}, v{Sx+2*i}")
            valu.append(f"v_exp_f32 v{Sx+2*i+1}, v{Sx+2*i+1}")
            if i > 0:
                valu.append(f"v_cvt_pk_bf16_f32 v{Px+i-1}, v{Sx+2*i-2}, v{Sx+2*i-1}")
        valu.append(f"v_cvt_pk_bf16_f32 v{Px+7}, v{Sx+14}, v{Sx+15}")
        Oy, Ly = rr('v', Ob(y), 16), rr('v', Lb(y), 4)
        sel = rr('v', SEL, 4)
        mf = [mf32(Sy, Kf(Kb, 0), Q(y, 0), C(y)), mf32(Sy, Kf(Kb, 1), Q(y, 1)),
              mf32(Oy, Vf(Vb, 0), rr('v', Py, 4)), mf16(Ly, sel, rr('v', Py, 4)),
              mf32(Oy, Vf(Vb, 1), rr('v', Py + 4, 4)), mf16(Ly, sel, rr('v', Py + 4, 4))]
        pos = (0, 4, 8, 12, 15, 19)
        for i, v in enumerate(valu):
            if i in pos:
                k = pos.index(i)
                p(mf[k])
                p.add(extra.get(k, []))
            p(v)

    def attention(tag, C, side):
        for x in range(2):
            for i in range(16): p(f"v_mov_b32 v{Ob(x)+i}, 0")
            for i in range(4): p(f"v_mov_b32 v{Lb(x)+i}, 0")
        for i in range(8): p(f"v_mov_b32 v{Pb(1)+i}, 0")
        for i in range(8): p(f"v_accvgpr_write_b32 a{64 + (NR-1)*8 + i}, 0")
        p(mf32(rr('v', Sb(0), 16), Kf(0, 0), Q(0, 0), C(0)))
        p(mf32(rr('v', Sb(0), 16), Kf(0, 1), Q(0, 1)))
        p(f"s_mov_b32 s{s_cnt}, {64 // NR}")
        p("s_nop 11")
        p.begin_loop(f"{name}_{tag}_loop", 64 // NR)
        for kt in range(NR):
            e0 = {0: [vld(kt + NR - 2, 0)], 1: [vld(kt + NR - 2, 1)], 3: [Ins(f"s_add_u32 s{s_vo}, s{s_vo}, 4096")],
                  5: [Ins(f"wait {Kf(kt+1, 0)}, {Kf(kt+1, 1)}, {Vf(kt, 0)}, {Vf(kt, 1)}")]}
            e1 = {0: [kld(kt, 0)], 1: [kld(kt, 1)], 3: [Ins(f"s_add_u32 s{s_ko}, s{s_ko}, 4096")]}
            if side:
                if kt == 0: e0[2] = [Ins(f"s_mov_b32 m0, s{s_wm0}")]
                if kt % 2 == 0 and 'nowodma' not in dbg:
                    i = kt // 2
                    e0[4] = [Ins(f"buffer_load_dwordx4 v{vWD+i}, s[{sE}:{sE+3}], s{s_wdo} offen offset:{i*1024} lds", awr=['LW'], nowaw=True)]
                if kt == 7:
                    e0[2] = [Ins(f"s_add_u32 s{s_wdo}, s{s_wdo}, {128 * 2048}")]
                    e0[4] = [Ins(f"s_add_u32 s{s_wm0}, s{s_wm0}, 16384")]
                if kt in (1, 5):
                    e0[2] = [Ins(f"buffer_load_dword v{vDum}, v{vPF}, s[{sD}:{sD+3}], s{s_po} offen", nowaw=True)]
                    e0[4] = [Ins(f"s_add_u32 s{s_po}, s{s_po}, {256 * 7168}")]
                if kt == 5:
                    e1[2] = [Ins(f"s_cmp_eq_u32 s{s_cnt}, 7")]
                    e1[3] = [Ins(f"s_cselect_b64 s[{sD}:{sD+1}], s[{pWU}:{pWU+1}], s[{sD}:{sD+1}]")]
                    e1[4] = [Ins(f"s_cselect_b32 s{s_po}, s{s_pk}, s{s_po}")]
                    e1[5] = [Ins(f"s_add_u32 s{s_ko}, s{s_ko}, 4096")]
                if kt == 6:
                    e1[2] = [Ins(f"s_cmp_eq_u32 s{s_cnt}, 5")]
                    e1[3] = [Ins(f"s_cselect_b64 s[{sD}:{sD+1}], s[{pWD}:{pWD+1}], s[{sD}:{sD+1}]")]
                    e1[4] = [Ins(f"s_cselect_b32 s{s_po}, s{s_pk}, s{s_po}")]
                    e1[5] = [Ins(f"s_add_u32 s{s_ko}, s{s_ko}, 4096")]
            if kt == NR - 1:
                e1[4] = [Ins(f"s_sub_u32 s{s_cnt}, s{s_cnt}, 1")]
                e1[5] = [Ins(f"s_cmp_lg_u32 s{s_cnt}, 0")]
            half(0, kt, kt - 1, C, e0)
            half(1, kt + 1, kt, C, e1)
        p(f"s_cbranch_scc1 {name}_{tag}_loop")
        p.end_loop()
        O1, L1, sel = rr('v', Ob(1), 16), rr('v', Lb(1), 4), rr('v', SEL, 4)
        p(mf32(O1, Vf(NR - 1, 0), rr('v', Pb(1), 4)))
        p(mf16(L1, sel, rr('v', Pb(1), 4)))
        p(mf32(O1, Vf(NR - 1, 1), rr('v', Pb(1) + 4, 4)))
        p(mf16(L1, sel, rr('v', Pb(1) + 4, 4)))

    p.add(Raw("; @stamp 3"))
    attention('fast', lambda y: "0", 'noside' not in dbg)
    p.add(Raw("; @stamp 4"))
    srd(p, sB, pWS, OF[1], bias=OF[0])
    p(f"s_mov_b32 s{s_t0}, {f32hex(2.0**-40)}\ns_mov_b32 s{s_t1}, {f32hex(2.0**40)}\ns_mov_b32 s{s_t2}, {f32hex(2.0**120)}")
    for x in range(2):
        p(f"v_add_f32 v{vt+2*x}, |v{Ob(x)}|, |v{Ob(x)+1}|")
        p(f"v_add_f32 v{vt+2*x+1}, |v{Ob(x)+2}|, |v{Ob(x)+3}|")
        for i in range(4, 16):
            p(f"v_add_f32 v{vt+2*x+(i&1)}, v{vt+2*x+(i&1)}, |v{Ob(x)+i}|")
    p(f"""
    v_add_f32 v{vt}, v{vt}, v{vt+1}
    v_add_f32 v{vt+2}, v{vt+2}, v{vt+3}
    v_add_f32 v{vt}, v{vt}, v{vt+2}
    v_cmp_nle_f32 s[68:69], s{s_t0}, v{Lb(0)}
    v_cmp_nle_f32 s[70:71], s{s_t0}, v{Lb(1)}
    v_cmp_nge_f32 s[72:73], s{s_t1}, v{Lb(0)}
    v_cmp_nge_f32 s[74:75], s{s_t1}, v{Lb(1)}
    v_cmp_nge_f32 vcc, s{s_t2}, v{vt}
    s_or_b64 s[68:69], s[68:69], s[70:71]
    s_or_b64 s[72:73], s[72:73], s[74:75]
    s_or_b64 s[68:69], s[68:69], s[72:73]
    s_or_b64 s[68:69], s[68:69], vcc
    {'' if 'nocheck' in dbg else f's_cbranch_scc1 {name}_slow'}
    {name}_fin:
    v_rcp_f32 v{Lb(0)}, v{Lb(0)}
    v_rcp_f32 v{Lb(1)}, v{Lb(1)}
    v_bfe_u32 v{vt}, v0, 4, 1
    v_lshlrev_b32 v{vt}, 15, v{vt}
    v_and_b32 v{vt+1}, 15, v0
    v_lshl_add_u32 v{vt}, v{vt+1}, 4, v{vt}
    v_lshrrev_b32 v{vt+1}, 5, v0
    v_lshl_add_u32 v{vt}, v{vt+1}, 8, v{vt}
    s_lshl_b32 s{s_t0}, s{s_tok}, 1
    s_add_u32 s{s_t0}, s{s_t0}, s{s_hd}
    s_lshl_b32 s{s_t0}, s{s_t0}, 10
    s_xor_b32 s{s_t1}, s{s_t0}, 1024
    """)
    for x in range(2):
        for a in range(2):
            for i in range(8 * a, 8 * a + 8):
                p(f"v_mul_f32 v{Ob(x)+i}, v{Ob(x)+i}, v{Lb(x)}")
            for i in range(4 * a, 4 * a + 4):
                p(f"v_cvt_pk_bf16_f32 v{Pb(x)+i}, v{Ob(x)+2*i}, v{Ob(x)+2*i+1}")
            p(f"buffer_store_dwordx4 {rr('v', Pb(x)+4*a, 4)}, v{vt}, s[{sB}:{sB+3}], s{s_t1 if x else s_t0} offen offset:{a*512} sc1")

    s_c, s_xo, s_xe, s_xend = 61, 62, 63, 64
    vX1, vA3, vRSA = 12, 16, 20
    AB3, WB, MB = 32 + 8, 72, 136
    LEAD = 12
    XS = lambda slot, t, G: rr('a', slot * 32 + (t * 4 + G) * 4, 4)
    WS_ = lambda F, G: rr('v', WB + F * 16 + G * 4, 4)
    ACS = lambda F, t: rr('v', AB3 + (F * 2 + t) * 4, 4)

    def xld(slot, oob=True):
        o_ = [Ins(f"s_cmp_lt_u32 s{s_xo}, s{s_xend}"), Ins(f"s_cselect_b32 s{s_xe}, s{s_xo}, s{sB+2}")]
        for t in range(2):
            for G in range(4):
                o_.append(Ins(f"buffer_load_dwordx4 {XS(slot, t, G)}, v{vX1 if t else vL16}, s[{sB}:{sB+3}], s{s_xe} offen offset:{G*1024} sc1"))
        o_.append(Ins(f"s_add_u32 s{s_xo}, s{s_xo}, 4096"))
        return o_

    def wread_addr(wo, base):
        if wo:
            p(f"v_lshrrev_b32 v{vt}, 2, v0\nv_and_b32 v{vt}, 7, v{vt}\nv_lshrrev_b32 v{vt+1}, 5, v0\nv_lshl_add_u32 v{vt+1}, v{vt+1}, 4, v{vt}")
        else:
            p(f"v_lshrrev_b32 v{vt+1}, 2, v0\nv_and_b32 v{vt}, 7, v{vt+1}")
        p(f"""
        v_lshrrev_b32 v{vt}, 1, v{vt}
        v_lshlrev_b32 v{vt}, 5, v{vt}
        v_lshl_add_u32 v{vt}, v{vt+1}, 7, v{vt}
        v_and_b32 v{vt+1}, 3, v0
        v_lshl_add_u32 v{vA3}, v{vt+1}, 3, v{vt}""")
        if base:
            p(f"v_add_u32 v{vA3}, {base}, v{vA3}")
        p(f"v_xor_b32 v{vA3+1}, 32, v{vA3}\nv_xor_b32 v{vA3+2}, 64, v{vA3}\nv_xor_b32 v{vA3+3}, 0x60, v{vA3}")

    def rdS(slot, n, boff):
        F, G, b = n >> 3, (n >> 1) & 3, n & 1
        return Ins(f"ds_read_b64_tr_b16 {rr('v', WB + F*16 + G*4 + 2*b, 2)}, v{vA3+F} offset:{slot*16384 + G*4096 + b*boff}")

    def small_loop(label, trips, boff, wo, dmaf):
        MACC = lambda t: rr('v', MB + 4 * t, 4)
        RSF = lambda G: rr('v', MB + 8 + 4 * G, 4)
        for n in range(LEAD):
            p.add(rdS(0, n, boff))
        p(f"s_mov_b32 s{s_cnt}, {trips}")
        p(f"wait {WS_(0, 0)}, {WS_(0, 1)}, " + ", ".join(XS(0, t_, G_) for t_ in range(2) for G_ in range(4)))
        p.begin_loop(label, trips)
        for u in range(4):
            fill = spread((dmaf(u) if dmaf else []) + xld((u + 3) % 4), 0, 2)
            order = [(F, t, G) for F in range(4) for t in range(2) for G in range(4)]
            for i, (F, t, G) in enumerate(order):
                p(mf16(ACS(F, t), WS_(F, G), XS(u, t, G)))
                n = i + LEAD
                if n == 32 and dmaf:
                    p("s_barrier")
                if u == 3 and n >= 32 and n % 8 == 0:
                    p(f"v_xor_b32 v{vA3 + (n-32)//8}, 0x10000, v{vA3 + (n-32)//8}")
                p.add(rdS((u + n // 32) % 4, n % 32, boff))
                if i % 8 == 7:
                    Fn = (F + 1) % 4
                    p(f"wait {WS_(Fn, 0)}, {WS_(Fn, 1)}" + ("".join(", " + XS((u + 1) % 4, t_, G_) for t_ in range(2) for G_ in range(4)) if i == 31 else ""))
                if i % 8 == 1:
                    p(f"wait {WS_(F, 2)}, {WS_(F, 3)}")
                if wo and i < 4:
                    p(f"ds_read_b128 {RSF(i)}, v{vRSA} offset:{(u*4+i)*64}")
                p.add(fill.get(i, []))
                if wo and i >= 16 and i % 2 == 1:
                    k = (i - 16) // 2
                    p(mf16(MACC(k >> 2), RSF(k & 3), XS(u, k >> 2, k & 3)))
                if u == 3 and i == 29:
                    p(f"v_xor_b32 v{vA3+2}, 0x10000, v{vA3+2}")
                if u == 3 and i == 30:
                    p(f"v_xor_b32 v{vA3+3}, 0x10000, v{vA3+3}")
        if wo:
            p(f"v_add_u32 v{vRSA}, 1024, v{vRSA}")
        p(f"""
        s_sub_u32 s{s_cnt}, s{s_cnt}, 1
        s_cmp_lg_u32 s{s_cnt}, 0
        s_cbranch_scc1 {label}""")
        p.end_loop()

    p(f"""
    s_lshl_b32 s{s_c}, s{s_tok}, 3
    s_add_u32 s{s_c}, s{s_c}, {ST_CNT}
    s_lshl_b32 s{s_xo}, s{s_tok}, 11
    s_add_u32 s{s_xend}, s{s_xo}, 0x8000""")
    arrive(p, s_c)
    p(f"""
    v_add_u32 v{vX1}, 0x8000, v{vL16}
    v_and_b32 v{vt}, 1, v0
    v_lshlrev_b32 v{vt}, 11, v{vt}
    v_lshrrev_b32 v{vt+1}, 4, v0
    v_lshl_add_u32 v{vRSA}, v{vt+1}, 4, v{vt}
    v_add_u32 v{vRSA}, {RST}, v{vRSA}""")
    wread_addr(True, 0)
    for i in list(range(AB3, AB3 + 32)) + list(range(MB, MB + 8)):
        p(f"v_mov_b32 v{i}, 0")
    p("s_barrier")
    p.add(Raw("; @stamp 5"))
    poll(p, f"{name}_opoll", s_c, 16, vt)
    p.add(Raw("; @stamp 6"))
    for u in range(3):
        p.add(xld(u))
    small_loop(f"{name}_p3loop", 2, 8 * 128, True, None)
    p.add(Raw("; @stamp 7"))

    XD, NSLOT, SLOT4, LEAD4 = o.get('XD', 2), 4, 28672, 8
    s_mb, s_nb, s_par, s_wo4, s_m04, s_dsl, s_rsl, s_tk4 = 65, 66, 67, 68, 69, 70, 71, 72
    vD4 = 21
    p(f"""
    s_and_b32 s{s_t0}, s2, 7
    s_lshr_b32 s{s_t1}, s2, 3
    s_and_b32 s{s_mb}, s{s_t1}, 7
    s_lshr_b32 s{s_t1}, s{s_t1}, 3
    s_lshl_b32 s{s_nb}, s{s_t0}, 2
    s_add_u32 s{s_nb}, s{s_nb}, s{s_t1}
    s_and_b32 s{s_par}, s{s_nb}, 1
    s_lshl_b32 s{s_t0}, s{s_par}, 1
    s_movk_i32 s{s_t1}, 4682
    """)
    for i in range(7):
        p(f"""
        v_add_u32 v{vt}, {64*i}, v0
        v_mul_u32_u24 v{vt+1}, s{s_t1}, v{vt}
        v_lshrrev_b32 v{vt+1}, 16, v{vt+1}
        v_mul_u32_u24 v{vt+2}, 14, v{vt+1}
        v_sub_u32 v{vt}, v{vt}, v{vt+2}
        v_add_u32 v{vt}, s{s_t0}, v{vt}
        v_subrev_u32 v{vt+2}, 14, v{vt}
        v_min_u32 v{vt}, v{vt}, v{vt+2}
        v_mul_u32_u24 v{vt+1}, 7168, v{vt+1}
        v_lshl_add_u32 v{vD4+i}, v{vt}, 4, v{vt+1}
        """)
        if i & 3:
            p(f"v_subrev_u32 v{vD4+i}, {(i & 3) * 1024}, v{vD4+i}")
    p(f"""
    s_lshl_b32 s{s_tk4}, s{s_mb}, 2
    s_add_u32 s{s_tk4}, s{s_tk4}, s{s_w}
    s_lshl_b32 s{s_tk4}, s{s_tk4}, 6
    s_and_b32 s{s_t0}, s{s_w}, 1
    s_mul_i32 s{s_wo4}, s{s_t0}, {32 * 7168}
    s_mul_i32 s{s_t1}, s{s_nb}, 224
    s_add_u32 s{s_wo4}, s{s_wo4}, s{s_t1}
    s_mul_i32 s{s_m04}, s{s_w}, 7168
    s_mov_b32 s{s_dsl}, 0
    s_mov_b32 s{s_rsl}, 0
    s_cmp_lt_u32 s{s_w}, 2
    s_cselect_b64 s[{sD}:{sD+1}], s[{pWG}:{pWG+1}], s[{pWU}:{pWU+1}]
    s_mov_b32 s{sD+2}, {hex(D * FF * 2)}
    """)

    def dma4(tag):
        o_ = []
        for i in range(7):
            if i == 0: o_.append(Ins(f"s_add_u32 m0, s{s_m04}, s{s_dsl}"))
            if i == 4: o_.append(Ins("s_add_u32 m0, m0, 4096"))
            o_.append(Ins(f"buffer_load_dwordx4 v{vD4+i}, s[{sD}:{sD+3}], s{s_wo4} offen offset:{(i&3)*1024} lds", awr=[tag], nowaw=True))
        o_ += [Ins(f"s_add_u32 s{s_wo4}, s{s_wo4}, {64 * 7168}"), Ins(f"s_add_u32 s{s_dsl}, s{s_dsl}, {SLOT4}"),
               Ins(f"s_cmp_eq_u32 s{s_dsl}, {SLOT4 * NSLOT}"), Ins(f"s_cselect_b32 s{s_dsl}, 0, s{s_dsl}")]
        return o_
    p("s_waitcnt lgkmcnt(0)")
    p("s_barrier")
    p.add(dma4('Lx')); p.add(dma4('Lx'))

    vE, vS, vQ, vP = 160, 28, 30, WB
    srd(p, sB, pWS, HC[1], bias=HC[0])
    if 'H' in dbg:
        srd(p, sA, pWS, HR[1], bias=HR[0])
    s_ho = s_xo
    p(f"""
    s_lshl_b32 s{s_t0}, s{s_w}, 12
    s_add_u32 s{s_t0}, s{s_t0}, {XT}
    v_and_b32 v{vt+4}, 15, v0
    v_lshrrev_b32 v{vt+5}, 1, v{vt+4}
    v_lshrrev_b32 v{vt+6}, 5, v0
    v_xor_b32 v{vt+5}, v{vt+5}, v{vt+6}
    v_lshlrev_b32 v{vt+5}, 4, v{vt+5}
    v_lshl_add_u32 v{vt+5}, v{vt+4}, 7, v{vt+5}
    v_bfe_u32 v{vt+6}, v0, 4, 1
    v_lshl_add_u32 v{vt+5}, v{vt+6}, 3, v{vt+5}
    v_add_u32 v{vt}, s{s_t0}, v{vt+5}
    v_xor_b32 v{vt+1}, 32, v{vt}
    v_xor_b32 v{vt+2}, 64, v{vt}
    v_xor_b32 v{vt+3}, 0x60, v{vt}
    s_add_u32 s{s_ho}, s{s_tok}, s{s_j}
    s_lshl_b32 s{s_ho}, s{s_ho}, 11
    """)
    for t in range(2):
        for F in range(4):
            p(f"ds_read_b64 {rr('v', vE + (t*4+F)*2, 2)}, v{vt+F} offset:{t*2048}")
    p(f"s_mov_b32 s{s_t1}, {f32hex(1.0/1024)}")
    for t in range(2):
        p(f"""
        v_accvgpr_read_b32 v{vS+t}, a{aMEAN+t}
        v_add_f32 v{MB+4*t}, v{MB+4*t}, v{MB+4*t+1}
        v_fmac_f32 v{vS+t}, s{s_t1}, v{MB+4*t}
        v_mov_b32 v{vQ+t}, 0
        """)
        for F in range(4):
            a = AB3 + (F * 2 + t) * 4
            e = vE + (t * 4 + F) * 2
            k = vP + 32 + (F & 1) * 4
            hr = vP + (t * 2 + (F >> 1)) * 4 + (F & 1) * 2
            hc = hr + 16
            p(f"""
            v_lshlrev_b32 v{k}, 16, v{e}
            v_and_b32 v{k+1}, 0xffff0000, v{e}
            v_lshlrev_b32 v{k+2}, 16, v{e+1}
            v_and_b32 v{k+3}, 0xffff0000, v{e+1}
            v_add_f32 v{a}, v{a}, v{k}
            v_add_f32 v{a+1}, v{a+1}, v{k+1}
            v_add_f32 v{a+2}, v{a+2}, v{k+2}
            v_add_f32 v{a+3}, v{a+3}, v{k+3}
            v_sub_f32 v{k}, v{a}, v{vS+t}
            v_sub_f32 v{k+1}, v{a+1}, v{vS+t}
            v_sub_f32 v{k+2}, v{a+2}, v{vS+t}
            v_sub_f32 v{k+3}, v{a+3}, v{vS+t}
            v_cvt_pk_bf16_f32 v{hc}, v{k}, v{k+1}
            v_cvt_pk_bf16_f32 v{hc+1}, v{k+2}, v{k+3}
            v_fmac_f32 v{vQ+t}, v{k}, v{k}
            v_fmac_f32 v{vQ+t}, v{k+1}, v{k+1}
            v_fmac_f32 v{vQ+t}, v{k+2}, v{k+2}
            v_fmac_f32 v{vQ+t}, v{k+3}, v{k+3}
            """)
            if F & 1:
                g = F >> 1
                b = vP + (t * 2 + g) * 4
                p(f"buffer_store_dwordx4 {rr('v', b+16, 4)}, v{vX1 if t else vL16}, s[{sB}:{sB+3}], s{s_ho} offen offset:{g*1024} sc1")
    xsum16_32(p, f"v{vQ}", f"v{vt}")
    xsum16_32(p, f"v{vQ+1}", f"v{vt+1}")
    p(f"""
    v_cmp_gt_u32 vcc, 16, v0
    v_cndmask_b32 v{vQ}, v{vQ+1}, v{vQ}, vcc
    s_lshr_b32 s{s_t0}, s{s_j}, 2
    s_lshl_b32 s{s_t0}, s{s_t0}, 15
    s_and_b32 s{s_t1}, s{s_j}, 3
    s_lshl_b32 s{s_t1}, s{s_t1}, 2
    s_add_u32 s{s_t0}, s{s_t0}, s{s_t1}
    s_lshl_b32 s{s_t1}, s{s_tok}, 4
    s_add_u32 s{s_t0}, s{s_t0}, s{s_t1}
    s_add_u32 s{s_t0}, s{s_t0}, {ST_SSQ}
    s_mov_b32 exec_hi, 0
    buffer_store_dword v{vQ}, v{vL16}, s[{sT}:{sT+3}], s{s_t0} offen sc1
    s_mov_b32 exec_hi, -1
    s_lshr_b32 s{s_c}, s{s_tok}, 6
    s_lshl_b32 s{s_c}, s{s_c}, 8
    s_add_u32 s{s_c}, s{s_c}, {ST_CNT + 64 * 256}
    """)
    for t in range(2):
        for F in range(4):
            a = AB3 + (F * 2 + t) * 4
            hr = vP + (t * 2 + (F >> 1)) * 4 + (F & 1) * 2
            p(f"v_cvt_pk_bf16_f32 v{hr}, v{a}, v{a+1}\nv_cvt_pk_bf16_f32 v{hr+1}, v{a+2}, v{a+3}")
    for i in range(16):
        p(f"v_accvgpr_write_b32 a{aHR+i}, v{vP+i}")
    for i in range(4):
        p(f"v_accvgpr_write_b32 a{aMEAN-4+i}, v{vWD+i}")
    if 'H' in dbg:
        for t in range(2):
            for g in range(2):
                p(f"buffer_store_dwordx4 {rr('v', vP + (t*2+g)*4, 4)}, v{vX1 if t else vL16}, s[{sA}:{sA+3}], s{s_ho} offen offset:{g*1024}")
    arrive(p, s_c)

    vX4 = [vL16, 12, 13, 14]
    vA4, vAb, vR4 = 15, 16, 17
    AB4 = 32
    X4 = lambda slot, t, g: rr('a', slot * 32 + (t * 2 + g) * 4, 4)
    WB4, NWR = XD * 32, 4
    W4 = lambda q, g: rr('a', WB4 + (q % NWR) * 8 + g * 4, 4)
    AC4 = lambda f, t: rr('v', AB4 + (f * 4 + t) * 4, 4)
    SQ = WB4 + NWR * 8
    p(f"""
    v_add_u32 v{vX4[2]}, 0x10000, v{vL16}
    v_add_u32 v{vX4[3]}, 0x18000, v{vL16}
    v_lshrrev_b32 v{vt}, 2, v0
    v_mul_u32_u24 v{vt}, 224, v{vt}
    v_and_b32 v{vt+1}, 3, v0
    v_lshl_add_u32 v{vAb}, v{vt+1}, 3, v{vt}
    v_mov_b32 v{vA4}, v{vAb}
    v_and_b32 v{vt+2}, 15, v0
    v_lshlrev_b32 v{vt+2}, 4, v{vt+2}
    v_lshrrev_b32 v{vt+1}, 4, v0
    v_lshl_add_u32 v{vt+2}, v{vt+1}, 15, v{vt+2}
    s_lshl_b32 s{s_xo}, s{s_tk4}, 11
    s_add_u32 s{s_xend}, s{s_xo}, 0x8000
    s_lshl_b32 s{s_c}, s{s_tk4}, 2
    s_add_u32 s{s_c}, s{s_c}, {ST_CNT + 64 * 256}
    s_lshl_b32 s{s_t0}, s{s_tk4}, 4
    s_add_u32 s{s_t0}, s{s_t0}, {ST_SSQ}
    """)
    for i in range(224):
        p(f"v_mov_b32 v{AB4+i}, 0")

    def xld4(slot):
        o_ = [Ins(f"s_cmp_lt_u32 s{s_xo}, s{s_xend}"), Ins(f"s_cselect_b32 s{s_xe}, s{s_xo}, s{sB+2}")]
        for t in range(4):
            for g in range(2):
                o_.append(Ins(f"buffer_load_dwordx4 {X4(slot, t, g)}, v{vX4[t]}, s[{sB}:{sB+3}], s{s_xe} offen offset:{g*1024} sc1"))
        o_.append(Ins(f"s_add_u32 s{s_xo}, s{s_xo}, 2048"))
        return o_

    def rd4(q, n):
        f = q % 14
        g, b = n >> 1, n & 1
        return Ins(f"ds_read_b64_tr_b16 {rr('a', WB4 + (q % NWR)*8 + g*4 + 2*b, 2)}, v{vA4} offset:{(f&1)*14336 + (32*g+16*b)*224 + (f>>1)*32}")
    p("s_barrier")
    for n in range(LEAD4):
        p.add(rd4(n >> 2, n & 3))
    p.add(Raw("; @stamp 8"))
    poll(p, f"{name}_hpoll", s_c, 32, vt)
    p.add(Raw("; @stamp 9"))
    for u in range(XD - 1):
        p.add(xld4(u))
    for t in range(4):
        p(f"buffer_load_dwordx4 {rr('a', SQ + 4*t, 4)}, v{vt+2}, s[{sT}:{sT+3}], s{s_t0} offen offset:{t*256} sc1")
    p(f"s_mov_b32 s{s_cnt}, {16 // XD}")
    p("wait " + ", ".join(X4(0, t, g) for t in range(4) for g in range(2)) + f", {W4(0, 0)}, {W4(0, 1)}")
    p.begin_loop(f"{name}_p4loop", 16 // XD)
    for u in range(XD):
        vm = xld4((u + XD - 1) % XD) + dma4('Lx') if XD == 2 else dma4('Lx') + xld4((u + XD - 1) % XD)
        fill, pos = {}, 1
        for ins in vm:
            fill.setdefault(pos, []).append(ins)
            pos += 2
            if pos % 8 == 7: pos += 2
        assert pos < 95
        fill[89] = [Ins(f"s_add_u32 s{s_rsl}, s{s_rsl}, {SLOT4}")]
        fill[91] = [Ins(f"s_cmp_eq_u32 s{s_rsl}, {SLOT4 * NSLOT}")]
        fill[93] = [Ins(f"s_cselect_b32 s{s_rsl}, 0, s{s_rsl}")]
        if u == XD - 1:
            fill[105] = [Ins(f"s_sub_u32 s{s_cnt}, s{s_cnt}, 1")]
            fill[107] = [Ins(f"s_cmp_lg_u32 s{s_cnt}, 0")]
        order = [(f, t, g) for f in range(14) for t in range(4) for g in range(2)]
        for i, (f, t, g) in enumerate(order):
            p(mf16(AC4(f, t), W4(u * 14 + f, g), X4(u, t, g)))
            if i % 2 == 0:
                n = i // 2 + LEAD4
                p.add(rd4(u * 14 + (n >> 2), n & 3))
            if i == 2 * (56 - LEAD4) - 1:
                p(f"v_add_u32 v{vA4}, s{s_rsl}, v{vAb}")
                p(f"s_waitcnt vmcnt({15 + (0 if XD == 2 else 8)}) lgkmcnt(4)")
                p("s_barrier")
            elif i == 111:
                p(f"wait {W4(u*14 + 14, 0)}, {W4(u*14 + 14, 1)}, " + ", ".join(X4((u + 1) % XD, t_, g_) for t_ in range(4) for g_ in range(2)))
            elif i % 8 == 7:
                p(f"wait {W4(u*14 + f + 1, 0)}, {W4(u*14 + f + 1, 1)}")
            p.add(fill.get(i, []))
    p(f"s_cbranch_scc1 {name}_p4loop")
    p.end_loop()
    p.add(Raw("; @stamp 10"))

    R5 = 0
    vW5 = 21
    s_wo5, s_m05 = 68, 69
    srd(p, sD, pWD, FF * D * 2)
    for i in range(4):
        p(f"v_accvgpr_read_b32 v{vW5+i}, a{aMEAN-4+i}")
    p(f"""
    s_lshl_b32 s{s_wo5}, s{s_w}, 16
    s_lshl_b32 s{s_t1}, s{s_j}, 7
    s_add_u32 s{s_wo5}, s{s_wo5}, s{s_t1}
    s_lshl_b32 s{s_m05}, s{s_w}, 12
    s_mov_b32 s{s_dsl}, 0
    s_waitcnt vmcnt(0) lgkmcnt(0)
    s_barrier""")

    def dma5(u=None):
        o_ = [Ins(f"s_add_u32 m0, s{s_m05}, s{s_dsl}"), Ins(f"s_add_u32 s{s_dsl}, s{s_dsl}, 16384")]
        for i in range(4):
            o_.append(Ins(f"buffer_load_dwordx4 v{vW5+i}, s[{sD}:{sD+3}], s{s_wo5} offen offset:{i*1024} lds", awr=['Lx'], nowaw=True))
        o_ += [Ins(f"s_add_u32 s{s_wo5}, s{s_wo5}, {128 * 2048}"), Ins(f"s_and_b32 s{s_dsl}, s{s_dsl}, 0x1ffff")]
        return o_
    pre5 = [dma5() for _ in range(6)]

    srd(p, sB, pWS, HH[1], bias=HH[0])
    p.add(pre5[0])
    p(f"s_mov_b32 s{s_t0}, {f32hex(1.0/1024)}\nv_mov_b32 v{vt+4}, {f32hex(1e-5)}")

    def rstd_from(aq, dst):
        for i in range(4):
            p(f"v_accvgpr_read_b32 v{vt+i}, a{aq+i}")
        p(f"v_add_f32 v{vt}, v{vt}, v{vt+1}\nv_add_f32 v{vt+2}, v{vt+2}, v{vt+3}\nv_add_f32 v{dst}, v{vt}, v{vt+2}")
        xsum16_32(p, f"v{dst}", f"v{vt}")
        p(f"v_fma_f32 v{dst}, v{dst}, s{s_t0}, v{vt+4}\nv_rsq_f32 v{dst}, v{dst}")
    for t in range(4):
        rstd_from(SQ + 4 * t, vR4 + t)
    for t in range(4):
        p(f"v_mul_f32 v{vR4+t}, {f32hex(-LOG2E)}, v{vR4+t}")
    s_of, s_oh = s_xo, s_xe
    p(f"""
    s_mul_i32 s{s_t0}, s{s_tk4}, {112 * 64}
    s_mul_i32 s{s_t1}, s{s_nb}, 7
    s_add_u32 s{s_t1}, s{s_t1}, s{s_par}
    s_lshl_b32 s{s_t1}, s{s_t1}, 9
    s_add_u32 s{s_of}, s{s_t0}, s{s_t1}
    s_mul_i32 s{s_t1}, s{s_par}, 4088
    s_add_u32 s{s_oh}, s{s_of}, 3072
    s_sub_u32 s{s_oh}, s{s_oh}, s{s_t1}
    s_add_u32 s{s_c}, s{s_c}, {32 * 256}
    """)
    for t in range(1, 4):
        p(f"v_add_u32 v{vX4[t]}, {t * 112 * 1024}, v{vL16}")
    for n, pr in enumerate((6, 0, 1, 2, 3, 4, 5)):
        if n < 5: p.add(pre5[n + 1])
        for t in range(4):
            g = AB4 + ((2 * pr) * 4 + t) * 4
            u_ = AB4 + ((2 * pr + 1) * 4 + t) * 4
            for r in range(4): p(f"v_mul_f32 v{g+r}, v{vR4+t}, v{g+r}")
            for r in range(4): p(f"v_exp_f32 v{g+r}, v{g+r}")
            for r in range(4): p(f"v_add_f32 v{g+r}, 1.0, v{g+r}")
            for r in range(4): p(f"v_rcp_f32 v{g+r}, v{g+r}")
            for r in range(4): p(f"v_mul_f32 v{u_+r}, v{u_+r}, v{g+r}")
            d_ = AB4 + ((2 * (pr & ~1)) * 4 + t) * 4 + (pr & 1) * 2
            p(f"v_cvt_pk_bf16_f32 v{d_}, v{u_}, v{u_+1}")
            p(f"v_cvt_pk_bf16_f32 v{d_+1}, v{u_+2}, v{u_+3}")
            if pr & 1:
                p(f"buffer_store_dwordx4 {rr('v', d_-2, 4)}, v{vX4[t]}, s[{sB}:{sB+3}], s{s_of} offen offset:{(pr>>1)*1024} sc1")
            elif pr == 6:
                p(f"buffer_store_dwordx2 {rr('v', d_, 2)}, v{vX4[t]}, s[{sB}:{sB+3}], s{s_oh} offen sc1")
    p.add(Raw("; @stamp 11"))
    arrive(p, s_c)

    p(f"""
    s_lshr_b32 s{s_c}, s{s_tok}, 6
    s_lshl_b32 s{s_c}, s{s_c}, 8
    s_add_u32 s{s_c}, s{s_c}, {ST_CNT + 96 * 256}
    s_mul_i32 s{s_xo}, s{s_tok}, {112 * 64}
    s_add_u32 s{s_xend}, s{s_xo}, {112 * 1024}
    s_lshl_b32 s{s_t0}, s{s_tok}, 4
    s_add_u32 s{s_t0}, s{s_t0}, {ST_SSQ}
    v_and_b32 v{vt+6}, 15, v0
    v_lshlrev_b32 v{vt+6}, 4, v{vt+6}
    v_lshrrev_b32 v{vt+1}, 4, v0
    v_lshl_add_u32 v{vt+6}, v{vt+1}, 15, v{vt+6}
    """)
    wread_addr(False, 0)
    for i in range(AB3, AB3 + 32):
        p(f"v_mov_b32 v{i}, 0")
    p("s_barrier")
    p.add(Raw("; @stamp 12"))
    poll(p, f"{name}_fpoll", s_c, 32, vt)
    p.add(Raw("; @stamp 13"))
    for u in range(3):
        p.add(xld(u))
    for t in range(2):
        p(f"buffer_load_dwordx4 {rr('a', 128 + 4*t, 4)}, v{vt+6}, s[{sT}:{sT+3}], s{s_t0} offen offset:{t*256} sc1")
    small_loop(f"{name}_p5loop", 7, 16 * 128, False, dma5)
    p.add(Raw("; @stamp 14"))
    srd(p, sA, pOUT, S * D * 2)
    p(f"s_mov_b32 s{s_t0}, {f32hex(1.0/1024)}\nv_mov_b32 v{vt+4}, {f32hex(1e-5)}")
    for t in range(2):
        rstd_from(128 + 4 * t, vS + t)
    STG = 131072
    vL, vG = vt, vt + 4
    p(f"""
    s_mul_i32 s{s_t0}, s{s_w}, 4608
    s_add_u32 s{s_t0}, s{s_t0}, {STG}
    v_and_b32 v{vt+2}, 15, v0
    v_mul_u32_u24 v{vt+2}, 144, v{vt+2}
    v_lshrrev_b32 v{vt+3}, 4, v0
    v_lshl_add_u32 v{vt+2}, v{vt+3}, 3, v{vt+2}
    v_add_u32 v{vL}, s{s_t0}, v{vt+2}
    v_lshrrev_b32 v{vt+2}, 3, v0
    v_and_b32 v{vt+3}, 7, v0
    v_lshlrev_b32 v{vt+3}, 4, v{vt+3}
    v_lshl_add_u32 v{vG}, v{vt+2}, 11, v{vt+3}
    v_mul_u32_u24 v{vt+2}, 144, v{vt+2}
    v_add3_u32 v{vL+1}, v{vt+2}, v{vt+3}, s{s_t0}
    s_lshl_b32 s{s_t1}, s{s_tok}, 11
    s_lshl_b32 s{s_t2}, s{s_j}, 7
    s_add_u32 s{s_t1}, s{s_t1}, s{s_t2}
    """)
    for i in range(16):
        p(f"v_accvgpr_read_b32 v{vE+i}, a{aHR+i}")
    for t in range(2):
        for F in range(4):
            a = AB3 + (F * 2 + t) * 4
            e = vE + (t * 2 + (F >> 1)) * 4 + (F & 1) * 2
            k = vP + (t * 4 + F) * 6
            p(f"""
            v_lshlrev_b32 v{k}, 16, v{e}
            v_and_b32 v{k+1}, 0xffff0000, v{e}
            v_lshlrev_b32 v{k+2}, 16, v{e+1}
            v_and_b32 v{k+3}, 0xffff0000, v{e+1}
            v_fmac_f32 v{k}, v{vS+t}, v{a}
            v_fmac_f32 v{k+1}, v{vS+t}, v{a+1}
            v_fmac_f32 v{k+2}, v{vS+t}, v{a+2}
            v_fmac_f32 v{k+3}, v{vS+t}, v{a+3}
            v_cvt_pk_bf16_f32 v{k+4}, v{k}, v{k+1}
            v_cvt_pk_bf16_f32 v{k+5}, v{k+2}, v{k+3}
            """)
            p(f"ds_write_b64 v{vL}, v[{k+4}:{k+5}] offset:{t*16*144 + F*32}")
        for n in range(2):
            p(f"ds_read_b128 {rr('v', MB + (t*2+n)*4, 4)}, v{vL+1} offset:{(t*2+n)*8*144}")
    for n in range(4):
        p(f"buffer_store_dwordx4 {rr('v', MB + n*4, 4)}, v{vG}, s[{sA}:{sA+3}], s{s_t1} offen")
        if n < 3: p(f"s_add_u32 s{s_t1}, s{s_t1}, {8 * 2048}")
    p(f"{name}_end:")
    p("s_endpgm")

    slow = p.segment()
    p(f"{name}_slow:")
    p.fence()
    for x in range(2):
        p(f"v_mov_b32 v{Nb(x)}, 0xff800000")
    p(f"s_mov_b32 s{s_ko}, 0")
    p.begin_loop(f"{name}_max_loop", 64, align=False)
    p.add([kld(0, 0), kld(0, 1)])
    for x in range(2):
        p(mf32(rr('v', Sb(x), 16), Kf(0, 0), Q(x, 0), "0"))
        p(mf32(rr('v', Sb(x), 16), Kf(0, 1), Q(x, 1)))
    for x in range(2):
        for i in range(0, 16, 2):
            p(f"v_max3_f32 v{Nb(x)}, v{Nb(x)}, v{Sb(x)+i}, v{Sb(x)+i+1}")
    p(f"""
    s_add_u32 s{s_ko}, s{s_ko}, 4096
    s_cmp_lg_u32 s{s_ko}, {64 * 4096}
    s_cbranch_scc1 {name}_max_loop""")
    p.end_loop()
    for x in range(2):
        p(f"""
        v_mov_b32 v{vt}, v{Nb(x)}
        v_permlane32_swap_b32 v{Nb(x)}, v{vt}
        v_max_f32 v{Nb(x)}, v{Nb(x)}, v{vt}
        v_sub_f32 v{Nb(x)}, 0, v{Nb(x)}""")
        for i in range(1, 16):
            p(f"v_mov_b32 v{Nb(x)+i}, v{Nb(x)}")
    fill_kv()
    attention('safe', lambda y: rr('v', Nb(y), 16), False)
    p.fence()
    p(f"s_branch {name}_fin")
    p.paths = [[main, red_w, rest], [main, fin, fin_k, rest], [main, fin, fin_v, rest], [slow]]
    return p
```

```python
from common import *

LDS_TOTAL = 163840
ST_MR = 0x0000
ST_RS2 = 0x4000
ST_MP = 0x28000
ST_CNT = 0x48000
ST_HCR = 0x58000
SPIN = 1 << 20

pX, pWQ, pWK, pWV, pWO, pWG, pWU, pWD, pOUT, pDBG, pWS = 4, 6, 8, 10, 12, 16, 18, 20, 22, 24, 26
sA, sB, sC, sD, sE, sT = 28, 32, 36, 40, 44, 48
s_w, s_b, s_j, s_tok, s_t0, s_t1, s_t2, s_cnt, s_spin = 52, 53, 54, 55, 56, 57, 58, 59, 60
vL16, vZ, vOne = 1, 2, 3
aMEAN, aHR = 238, 240


def srd(p, s, ptr, size, off=None, bias=0):
    if off is not None:
        p(f"s_add_u32 s{s}, s{ptr}, s{off}\ns_addc_u32 s{s+1}, s{ptr+1}, 0")
        ptr = s
    if bias > 0:
        p(f"s_add_u32 s{s}, s{ptr}, {hex(bias)}\ns_addc_u32 s{s+1}, s{ptr+1}, 0")
    elif bias < 0:
        p(f"s_sub_u32 s{s}, s{ptr}, {hex(-bias)}\ns_subb_u32 s{s+1}, s{ptr+1}, 0")
    elif off is None:
        p(f"s_mov_b64 s[{s}:{s+1}], s[{ptr}:{ptr+1}]")
    if isinstance(size, str):
        p(size.format(d=f"s{s+2}"))
    else:
        p(f"s_mov_b32 s{s+2}, {hex(size)}")
    p(f"s_mov_b32 s{s+3}, 0x20000")


def arrive(p, soff):
    p("s_waitcnt vmcnt(0)")
    p(f"buffer_atomic_add v{vOne}, v{vZ}, s[{sT}:{sT+3}], s{soff} offen")


SLEEP = [0]


def poll(p, label, soff, target, vtmp):
    p(f"s_mov_b32 s{s_spin}, {SPIN}")
    p.add(Raw(f"""    s_branch {label}_go
{label}:
    {f's_sleep {SLEEP[0]}' if SLEEP[0] else ''}
{label}_go:
    buffer_load_dword v{vtmp}, v{vZ}, s[{sT}:{sT+3}], s{soff} offen sc1
    s_sub_u32 s{s_spin}, s{s_spin}, 1
    s_waitcnt vmcnt(0)
    v_readfirstlane_b32 s{s_t2}, v{vtmp}
    s_nop 0
    s_cselect_b32 s{s_t2}, {target}, s{s_t2}
    s_cmp_lt_u32 s{s_t2}, {target}
    s_cbranch_scc1 {label}"""))
    p("s_waitcnt vmcnt(0)")


def poll_wg(p, label, soff, n, target, vtmp, allw):
    p(f"""
    s_mov_b32 s{s_spin}, {SPIN}
    v_and_b32 v{vtmp+1}, {n-1}, v0
    v_lshlrev_b32 v{vtmp+1}, 8, v{vtmp+1}
    s_andn2_b32 s{s_t2}, s{soff}, {(n-1) << 8}""")
    p.add(Raw(("" if allw else f"    s_cmp_lg_u32 s{s_w}, 0\n    s_cbranch_scc1 {label}_done\n") + f"""{label}:
    buffer_load_dword v{vtmp}, v{vtmp+1}, s[{sT}:{sT+3}], s{s_t2} offen sc1
    s_sub_u32 s{s_spin}, s{s_spin}, 1
    s_waitcnt vmcnt(0)
    v_cmp_gt_u32 vcc, {target}, v{vtmp}
    s_cbranch_scc1 {label}_done
    s_nop 0
    s_cbranch_vccnz {label}
{label}_done:"""))
    if not allw:
        p("s_barrier")


def spread(vm, start, step):
    fill, pos = {}, start
    for ins in vm:
        fill.setdefault(pos, []).append(ins)
        if ins.kind == 'vmem':
            pos += step
    return fill


def gen_fused(name, o):
    dbg = o.get('dbg', '')
    SLEEP[0] = o.get('sleep', 0)
    KVSC = 'sc1' if o.get('kvsc1', False) else ''
    p = Prog()
    main = p.segment()
    p(f"""
    s_cmp_ge_u32 s2, 256
    s_cbranch_scc1 {name}_end
    s_load_dwordx16 s[4:19], s[0:1], 0
    s_load_dwordx8 s[20:27], s[0:1], 64
    v_lshrrev_b32 v1, 6, v0
    v_and_b32 v0, 63, v0
    v_readfirstlane_b32 s{s_w}, v1
    s_and_b32 s{s_t0}, s2, 7
    s_lshr_b32 s{s_t1}, s2, 3
    s_lshr_b32 s{s_b}, s{s_t0}, 1
    s_lshl_b32 s{s_b}, s{s_b}, 2
    s_and_b32 s{s_j}, s{s_t1}, 3
    s_add_u32 s{s_b}, s{s_b}, s{s_j}
    s_and_b32 s{s_j}, s{s_t0}, 1
    s_lshl_b32 s{s_j}, s{s_j}, 3
    s_lshr_b32 s{s_t1}, s{s_t1}, 2
    s_add_u32 s{s_j}, s{s_j}, s{s_t1}
    s_lshl_b32 s{s_tok}, s{s_b}, 2
    s_add_u32 s{s_tok}, s{s_tok}, s{s_w}
    s_lshl_b32 s{s_tok}, s{s_tok}, 5
    v_lshlrev_b32 v{vL16}, 4, v0
    v_cmp_eq_u32 vcc, 0, v0
    v_mov_b32 v{vOne}, 0x7ffffff0
    v_cndmask_b32 v{vZ}, v{vOne}, 0, vcc
    v_mov_b32 v{vOne}, 1
    """)

    SL = 24576
    RED, CSQ = 147456, 162816
    vt = 4
    vD = 12
    vD0 = 18
    vB = 22
    vA = 28
    ONES = 36
    vRS = 40
    s_kv, s_xoff, s_woff, s_dm, s_pb, s_w6 = 61, 62, 63, 64, 65, 66
    p(f"""
    v_lshrrev_b32 v{vt}, 3, v0
    v_lshrrev_b32 v{vt+1}, 4, v0
    v_and_b32 v{vt+2}, 7, v0
    v_xor_b32 v{vt+3}, v{vt+1}, v{vt+2}
    v_lshlrev_b32 v{vt+3}, 4, v{vt+3}
    v_lshl_add_u32 v{vt+3}, v{vt}, 11, v{vt+3}
    v_xor_b32 v{vt+4}, 64, v{vt+3}
    v_add_u32 v{vD}, 4096, v{vt+3}
    v_add_u32 v{vD+1}, {16384 + 4096 - 1024}, v{vt+4}
    v_add_u32 v{vD0}, {128 + 4096 - 2048}, v{vt+3}
    v_add_u32 v{vD0+1}, {16384 + 128 + 4096 - 3072}, v{vt+4}
    v_lshrrev_b32 v{vt+5}, 5, v0
    v_lshlrev_b32 v{vt+5}, 1, v{vt+5}
    v_xor_b32 v{vt+5}, v{vt+5}, v0
    v_lshlrev_b32 v{vD0+2}, 4, v{vt+5}
    s_lshr_b32 s{s_t0}, s{s_j}, 1
    s_lshl_b32 s{s_kv}, s{s_b}, 3
    s_add_u32 s{s_kv}, s{s_kv}, s{s_t0}
    s_lshl_b32 s{s_kv}, s{s_kv}, 4
    s_lshl_b32 s{s_t0}, s{s_kv}, 11
    s_lshl_b32 s{s_t1}, s{s_w}, 9
    s_add_u32 s{s_t0}, s{s_t0}, s{s_t1}
    s_add_u32 s{s_t1}, s{s_w}, 2
    s_mul_i32 s{s_dm}, s{s_t1}, {SL}
    s_mov_b32 m0, s{s_dm}
    """)
    srd(p, sA, pX, S * D * 2 + 4096, bias=-4096)
    TCH = o.get('touch', 0)
    if TCH:
        srd(p, sD, pWQ, D * D * 2)
        p(f"""
        s_lshl_b32 s{s_xoff}, s2, 2
        s_add_u32 s{s_xoff}, s{s_xoff}, s{s_w}
        v_lshlrev_b32 v{vt+6}, 7, v0""")
        if TCH == 1:
            p(f"""
            s_lshl_b32 s{s_woff}, s{s_xoff}, 11
            s_lshl_b32 s{s_xoff}, s{s_xoff}, 12
            s_add_u32 s{s_xoff}, s{s_xoff}, 4096
            s_mov_b64 exec, 0xffff""")
            p(f"buffer_load_dword v255, v{vt+6}, s[{sD}:{sD+3}], s{s_woff} offen", nowaw=True); p.cur[-1].awr = set()
            p("s_mov_b32 exec_lo, -1")
            p(f"buffer_load_dword v255, v{vt+6}, s[{sA}:{sA+3}], s{s_xoff} offen", nowaw=True); p.cur[-1].awr = set()
            p("s_mov_b64 exec, -1")
        if TCH == 2:
            p(f"""
            s_lshl_b32 s{s_woff}, s{s_xoff}, 11
            s_mov_b64 exec, 0xffff""")
            p(f"buffer_load_dword v255, v{vt+6}, s[{sD}:{sD+3}], s{s_woff} offen", nowaw=True); p.cur[-1].awr = set()
            p("s_mov_b64 exec, -1")
        if TCH == 3:
            p(f"""
            s_lshr_b32 s{s_xoff}, s2, 3
            s_lshl_b32 s{s_xoff}, s{s_xoff}, 2
            s_add_u32 s{s_xoff}, s{s_xoff}, s{s_w}
            s_lshl_b32 s{s_woff}, s{s_xoff}, 14
            s_and_b32 s{s_xoff}, s2, 1
            s_lshl_b32 s{s_xoff}, s{s_xoff}, 10
            s_add_u32 s{s_woff}, s{s_woff}, s{s_xoff}
            v_lshlrev_b32 v{vt+6}, 7, v{vt+2}
            v_lshl_add_u32 v{vt+6}, v{vt}, 11, v{vt+6}""")
            p(f"buffer_load_dword v255, v{vt+6}, s[{sD}:{sD+3}], s{s_woff} offen", nowaw=True); p.cur[-1].awr = set()
    xo = [vD, vD + 1, vD0, vD0 + 1]
    for n in range(8):
        if n == 4:
            p(f"s_add_u32 m0, m0, 4096\ns_add_u32 s{s_t0}, s{s_t0}, 256")
        p(f"buffer_load_dwordx4 v{xo[n & 3]}, s[{sA}:{sA+3}], s{s_t0} offen offset:{(n & 3) * 1024} lds", awr=['P0'], nowaw=True)
    p(f"""
    s_bitcmp0_b32 s{s_j}, 0
    s_cselect_b64 s[{sB}:{sB+1}], s[{pWK}:{pWK+1}], s[{pWV}:{pWV+1}]
    s_mov_b32 s{sB+2}, {D * 64}
    s_mov_b32 s{sB+3}, 0x20000
    s_lshl_b32 s{s_t1}, s{s_b}, 12
    s_lshl_b32 s{s_t2}, s{s_w}, 14
    s_add_u32 s{s_dm}, s{s_dm}, 8192
    """)
    for q in range(4):
        p(f"""
        s_and_b32 s{s_t1}, s{s_t1}, 0x3000
        s_add_u32 m0, s{s_dm}, s{s_t1}
        s_add_u32 s{s_t0}, s{s_t2}, s{s_t1}""")
        for i in range(4):
            p(f"buffer_load_dwordx4 v{vD0+2}, s[{sB}:{sB+3}], s{s_t0} offen offset:{i*1024} lds", awr=['P0'], nowaw=True)
        if q < 3:
            p(f"s_add_u32 s{s_t1}, s{s_t1}, 0x1000")
    p(f"""
    v_add_u32 v{vD+2}, {32768 + 4096 - 2048}, v{vt+3}
    v_add_u32 v{vD+3}, {32768 + 16384 + 4096 - 3072}, v{vt+4}
    v_and_b32 v{vt+1}, 1, v{vt+1}
    v_lshlrev_b32 v{vt+1}, 1, v{vt+1}
    v_xor_b32 v{vt+1}, v{vt+1}, v{vt+2}
    v_lshlrev_b32 v{vt+1}, 4, v{vt+1}
    v_lshl_add_u32 v{vD+4}, v{vt}, 11, v{vt+1}
    v_xor_b32 v{vD+5}, 64, v{vD+4}
    v_add_u32 v{vD+5}, {8*2048 - 1024}, v{vD+5}
    s_lshl_b32 s{s_t0}, s{s_tok}, 11
    s_lshl_b32 s{s_t1}, s{s_w}, 15
    s_lshl_b32 s{s_t2}, s{s_j}, 7
    s_add_u32 s{s_t1}, s{s_t1}, s{s_t2}
    """)
    srd(p, sC, pX, 32 * 2048 + 4096, off=s_t0, bias=-4096)
    srd(p, sD, pWQ, f"s_sub_u32 {{d}}, {D * D * 2}, s{s_t1}", off=s_t1)
    p(f"""
    s_lshl_b32 s{s_t0}, s{s_b}, 1
    s_add_u32 s{s_t0}, s{s_t0}, s{s_j}
    s_lshl_b32 s{s_xoff}, s{s_t0}, 8
    s_and_b32 s{s_xoff}, s{s_xoff}, {o.get('rotmask', 2047)}
    s_mul_i32 s{s_w6}, s{s_w}, 6144
    """)

    def dma1(m0expr, tag):
        o_ = [Ins(m0expr), Ins(f"s_lshl_b32 s{s_woff}, s{s_xoff}, 10")]
        for i in range(4):
            o_.append(Ins(f"buffer_load_dwordx4 v{vD+i}, s[{sC}:{sC+3}], s{s_xoff} offen offset:{i*1024} lds", awr=[tag], nowaw=True))
        o_ += [Ins("s_add_u32 m0, m0, 4096"), Ins(f"s_add_u32 s{s_xoff}, s{s_xoff}, 128")]
        for i in range(2):
            o_.append(Ins(f"buffer_load_dwordx4 v{vD+4+i}, s[{sD}:{sD+3}], s{s_woff} offen offset:{i*1024} lds", awr=[tag], nowaw=True))
        o_.append(Ins(f"s_and_b32 s{s_xoff}, s{s_xoff}, 2047"))
        return o_
    srd(p, sE, pWO, D * D * 2)
    p(f"""
    s_lshl_b32 s{s_t0}, s2, 2
    s_add_u32 s{s_t0}, s{s_t0}, s{s_w}
    s_lshl_b32 s{s_t0}, s{s_t0}, {21 if 'nors' in dbg else 11}
    buffer_load_dwordx4 {rr('v', vRS, 4)}, v{vL16}, s[{sE}:{sE+3}], s{s_t0} offen
    buffer_load_dwordx4 {rr('v', vRS+4, 4)}, v{vL16}, s[{sE}:{sE+3}], s{s_t0} offen offset:1024
    """)
    p.add(dma1(f"s_mov_b32 m0, s{s_w6}", 'L0'))
    p.add(dma1(f"s_add_u32 m0, s{s_w6}, {SL}", 'Lx'))
    srd(p, sT, pWS, ST[1], bias=ST[0])
    p(f"""
    v_and_b32 v{vt}, 15, v0
    v_lshrrev_b32 v{vt+1}, 1, v{vt}
    v_lshrrev_b32 v{vt+2}, 4, v0
    v_xor_b32 v{vt+1}, v{vt+1}, v{vt+2}
    v_lshlrev_b32 v{vt+1}, 4, v{vt+1}
    v_lshl_add_u32 v{vt+1}, v{vt}, 7, v{vt+1}
    v_xor_b32 v{vt+3}, 64, v{vt+1}
    v_add_u32 v{vB}, s{s_w6}, v{vt+1}
    v_add_u32 v{vB+1}, s{s_w6}, v{vt+3}
    s_sub_u32 s{s_t0}, s{s_dm}, 8192
    v_add_u32 v{vA}, s{s_t0}, v{vt+1}
    v_add_u32 v{vA+1}, s{s_t0}, v{vt+3}
    v_lshrrev_b32 v{vt}, 5, v0
    v_and_b32 v{vt+1}, 3, v0
    v_lshlrev_b32 v{vt+1}, 3, v{vt+1}
    v_bfe_u32 v{vt+2}, v0, 2, 2
    v_bfe_u32 v{vt+3}, v0, 4, 1
    v_lshl_add_u32 v{vt+2}, v{vt+3}, 3, v{vt+2}
    v_lshl_add_u32 v{vt+4}, v{vt}, 10, v{vt+1}
    v_lshl_add_u32 v{vt+4}, v{vt+2}, 6, v{vt+4}
    v_lshl_add_u32 v{vt+4}, v{vt+3}, 5, v{vt+4}
    v_add_u32 v{vA+2}, s{s_dm}, v{vt+4}
    v_xor_b32 v{vA+3}, 32, v{vA+2}
    v_mul_u32_u24 v{vt}, 6144, v{vt}
    v_add_u32 v{vt}, v{vt}, v{vt+1}
    v_lshl_add_u32 v{vt}, v{vt+2}, 7, v{vt}
    v_bfe_u32 v{vt+4}, v0, 3, 2
    v_xor_b32 v{vt+4}, s{s_w}, v{vt+4}
    v_lshl_add_u32 v{vB+2}, v{vt+4}, 5, v{vt}
    v_xor_b32 v{vB+3}, 32, v{vB+2}
    v_xor_b32 v{vB+4}, 64, v{vB+2}
    v_xor_b32 v{vB+5}, 0x60, v{vB+2}
    """)
    for i in range(4):
        p(f"v_mov_b32 v{ONES+i}, 0x3f803f80")
    on = rr('v', ONES, 4)
    AB = 48
    CSA = 80
    PA = 84
    FB = 112
    p.add(Raw("; @stamp 0"))
    X0 = lambda G: rr('v', FB + 4 * G, 4)
    W0 = lambda G, e: rr('v', FB + 32 + (G * 2 + e) * 4, 4)
    first = True
    for G in range(8):
        p(f"ds_read_b128 {X0(G)}, v{vA + (G & 1)} offset:{(G >> 1) * 2048}", rd=['P0'] if first else [])
        first = False
        for e in range(2):
            for b in range(2):
                p(f"ds_read_b64_tr_b16 {rr('v', FB + 32 + (G*2+e)*4 + 2*b, 2)}, v{vA+2+e} offset:{G*2048 + b*256}")
    for i in range(AB, CSA + 4):
        p(f"v_mov_b32 v{i}, 0")
    p("s_waitcnt lgkmcnt(0)")
    p("s_barrier")
    fill = spread(dma1(f"s_add_u32 m0, s{s_w6}, {2*SL}", 'Lx') + dma1(f"s_add_u32 m0, s{s_w6}, {3*SL}", 'Lx') +
                  dma1(f"s_add_u32 m0, s{s_w6}, {4*SL}", 'Lx'), 0, 2)
    acc0 = lambda k: rr('v', PA + 4 * k, 4)
    n = 0
    for G in range(8):
        c = "0" if G == 0 else None
        for m in (mf16(acc0(0), W0(G, 0), X0(G), c), mf16(acc0(1), W0(G, 1), X0(G), c), mf16(acc0(2), W0(G, 0), on, c),
                  mf16(acc0(3), W0(G, 1), on, c), mf16(acc0(4), on, X0(G), c), mf16(acc0(5), X0(G), X0(G), c)):
            p(m)
            p.add(fill.get(n, []))
            n += 1
    RSA = PA + 24
    p(mf16(rr('v', RSA, 4), on, rr('v', vRS, 4), "0"))
    p(mf16(rr('v', RSA, 4), on, rr('v', vRS + 4, 4)))
    g = PA + 20
    p(f"""
    v_and_b32 v{vt}, 3, v0
    v_cmp_eq_u32 s[68:69], 1, v{vt}
    v_cmp_eq_u32 s[70:71], 2, v{vt}
    v_cmp_eq_u32 s[72:73], 3, v{vt}
    v_bfe_u32 v{vt}, v0, 2, 2
    v_lshrrev_b32 v{vt+1}, 4, v0
    v_cmp_eq_u32 vcc, v{vt}, v{vt+1}
    s_mul_i32 s{s_t0}, s{s_w}, 5120
    s_add_u32 s{s_t0}, s{s_t0}, {RED - 5120}
    v_add_u32 v{vt+2}, s{s_t0}, v{vL16}
    v_cndmask_b32 v{g}, v{g}, v{g+1}, s[68:69]
    v_cndmask_b32 v{g}, v{g}, v{g+2}, s[70:71]
    v_cndmask_b32 v{g}, v{g}, v{g+3}, s[72:73]
    v_cndmask_b32 v{PA+17}, 0, v{g}, vcc
    v_add_f32_dpp v{RSA}, v{RSA}, v{RSA} row_ror:8 row_mask:0xf bank_mask:0xf
    v_add_f32_dpp v{RSA}, v{RSA}, v{RSA} row_ror:4 row_mask:0xf bank_mask:0xf
    v_add_f32_dpp v{RSA}, v{RSA}, v{RSA} row_ror:2 row_mask:0xf bank_mask:0xf
    v_add_f32_dpp v{RSA}, v{RSA}, v{RSA} row_ror:1 row_mask:0xf bank_mask:0xf
    v_cmp_eq_u32 vcc, s{s_w}, v0
    v_cndmask_b32 v{PA+18}, 0, v{RSA}, vcc
    s_cmp_eq_u32 s{s_w}, 0
    s_cbranch_scc1 {name}_p0fin
    """)
    red_w = p.segment()
    for k in range(5):
        p(f"ds_write_b128 v{vt+2}, {acc0(k)} offset:{k*1024}")
    p(f"""
    s_waitcnt lgkmcnt(0)
    s_barrier
    s_branch {name}_p1""")
    fin = p.segment()
    p(f"""
    {name}_p0fin:
    s_barrier""")
    for w in range(3):
        for k in range(5):
            p(f"ds_read_b128 {rr('v', FB + (w*5+k)*4, 4)}, v{vt+2} offset:{5120*(w+1) + k*1024}")
    for w in range(3):
        for i in range(19):
            p(f"v_add_f32 v{PA+i}, v{PA+i}, v{FB + w*20 + i}")
    xsum16_32(p, f"v{PA+17}", f"v{vt}")
    vM, vR = PA + 20, PA + 21
    d = PA + 24
    srd(p, sA, pWS, KV[1], bias=KV[0])
    p(f"""
    s_mov_b32 s{s_t1}, {f32hex(1.0/1024)}
    v_mul_f32 v{vM}, s{s_t1}, v{PA+16}
    v_mul_f32 v{vt}, v{vM}, v{vM}
    v_fma_f32 v{vt}, v{PA+17}, s{s_t1}, -v{vt}
    v_max_f32 v{vt}, 0, v{vt}
    v_add_f32 v{vt}, {f32hex(1e-5)}, v{vt}
    v_rsq_f32 v{vR}, v{vt}
    """)
    for e in range(2):
        a = PA + 4 * e
        for r in range(4): p(f"v_fma_f32 v{a+r}, -v{vM}, v{a+8+r}, v{a+r}")
        for r in range(4): p(f"v_mul_f32 v{a+r}, v{vR}, v{a+r}")
        p(f"v_cvt_pk_bf16_f32 v{d+2*e}, v{a}, v{a+1}")
        p(f"v_cvt_pk_bf16_f32 v{d+2*e+1}, v{a+2}, v{a+3}")
    p(f"""
    v_lshlrev_b32 v{vt+3}, 2, v0
    s_lshl_b32 s{s_t0}, s2, 4
    s_add_u32 s{s_t0}, s{s_t0}, {ST_RS2}
    s_mov_b64 exec, 15
    buffer_store_dword v{PA+18}, v{vt+3}, s[{sT}:{sT+3}], s{s_t0} offen sc1
    s_mov_b64 exec, -1
    s_lshl_b32 s{s_t0}, s2, 8
    s_add_u32 s{s_t0}, s{s_t0}, {ST_CNT}
    v_lshlrev_b32 v{vt+3}, 7, v0
    s_mov_b64 exec, 3
    buffer_store_dwordx4 {rr('v', AB, 4)}, v{vt+3}, s[{sT}:{sT+3}], s{s_t0} offen sc1
    s_mov_b64 exec, -1
    s_lshl_b32 s{s_t0}, s2, 7
    s_add_u32 s{s_t0}, s{s_t0}, {ST_HCR}
    buffer_store_dword v{AB}, v{vZ}, s[{sT}:{sT+3}], s{s_t0} offen sc1
    s_lshr_b32 s{s_t0}, s{s_kv}, 5
    s_lshl_b32 s{s_t0}, s{s_t0}, 12
    s_bfe_u32 s{s_t1}, s{s_kv}, 0x10004
    v_and_b32 v{vt+5}, 15, v0
    s_bitcmp1_b32 s{s_j}, 0
    s_cbranch_scc1 {name}_p0v
    """)
    fin_k = p.segment()
    p(f"""
    v_bfe_u32 v{vt}, v0, 4, 1
    v_lshlrev_b32 v{vt}, 10, v{vt}
    v_lshrrev_b32 v{vt+1}, 5, v0
    v_lshl_add_u32 v{vt}, v{vt+1}, 9, v{vt}
    v_lshl_add_u32 v{vt}, v{vt+5}, 4, v{vt}
    s_lshl_b32 s{s_t1}, s{s_t1}, 8
    s_add_u32 s{s_t0}, s{s_t0}, s{s_t1}
    buffer_store_dwordx4 {rr('v', d, 4)}, v{vt}, s[{sA}:{sA+3}], s{s_t0} offen sc1
    v_lshlrev_b32 v{vt+1}, 3, v0
    s_lshl_b32 s{s_t0}, s{s_kv}, 3
    s_mov_b64 exec, 0xffff
    buffer_store_dwordx2 {rr('v', vM, 2)}, v{vt+1}, s[{sT}:{sT+3}], s{s_t0} offen offset:{ST_MR} sc1
    s_mov_b64 exec, -1
    s_branch {name}_p1""")
    fin_v = p.segment()
    p(f"""
    {name}_p0v:
    v_lshlrev_b32 v{vt}, 6, v{vt+5}
    v_lshrrev_b32 v{vt+1}, 4, v0
    v_lshl_add_u32 v{vt}, v{vt+1}, 3, v{vt}
    v_add_u32 v{vt}, {RED}, v{vt}
    ds_write_b64 v{vt}, {rr('v', d, 2)}
    ds_write_b64 v{vt}, {rr('v', d+2, 2)} offset:32
    v_lshrrev_b32 v{vt+3}, 2, v0
    v_lshlrev_b32 v{vt+3}, 6, v{vt+3}
    v_and_b32 v{vt+4}, 3, v0
    v_lshl_add_u32 v{vt+3}, v{vt+4}, 3, v{vt+3}
    v_add_u32 v{vt+3}, {RED}, v{vt+3}
    ds_read_b64_tr_b16 {rr('v', PA, 2)}, v{vt+3}
    ds_read_b64_tr_b16 {rr('v', PA+2, 2)}, v{vt+3} offset:32
    v_lshlrev_b32 v{vt}, 4, v{vt+5}
    v_bfe_u32 v{vt+1}, v0, 4, 1
    v_lshl_add_u32 v{vt}, v{vt+1}, 9, v{vt}
    v_lshrrev_b32 v{vt+1}, 5, v0
    v_lshl_add_u32 v{vt}, v{vt+1}, 3, v{vt}
    s_lshl_b32 s{s_t1}, s{s_t1}, 10
    s_add_u32 s{s_t0}, s{s_t0}, s{s_t1}
    buffer_store_dwordx2 {rr('v', PA, 2)}, v{vt}, s[{sA}:{sA+3}], s{s_t0} offen offset:2048 sc1
    buffer_store_dwordx2 {rr('v', PA+2, 2)}, v{vt}, s[{sA}:{sA+3}], s{s_t0} offen offset:{2048 + 256} sc1
    """)

    rest = p.segment()
    p(f"{name}_p1:")
    p.add(Raw("; @stamp 1"))
    ACC = lambda F, t: rr('v', AB + (F * 2 + t) * 4, 4)
    X1 = lambda s, t, g: rr('v', FB + s * 48 + (t * 2 + g) * 4, 4)
    W1 = lambda s, F, g: rr('v', FB + s * 48 + 16 + (F * 2 + g) * 4, 4)

    def reads1(s, base):
        o_ = []
        xr = lambda t, g: Ins(f"ds_read_b128 {X1(s, t, g)}, v{vA+g} offset:{base + t*2048}")
        wr = lambda F, g, b: Ins(f"ds_read_b64_tr_b16 {rr('v', FB + s*48 + 16 + (F*2+g)*4 + 2*b, 2)}, v{vA+2+F} offset:{base + 2*g*6144 + 4096 + b*512}")
        o_ += [wr(0, 0, 0), wr(0, 0, 1), wr(0, 1, 0), wr(0, 1, 1), xr(0, 0), xr(0, 1), xr(1, 0), xr(1, 1)]
        o_ += [wr(F, g, b) for F in range(1, 4) for g in range(2) for b in range(2)]
        return o_
    srd(p, sB, pDBG, 256)
    for i in range(6):
        p(f"v_mov_b32 v{vA+i}, v{vB+i}")
    p(f"""
    s_mov_b32 s{s_pb}, 0
    s_add_u32 s{s_dm}, s{s_w6}, {2 * 2 * SL}
    s_and_b32 s{s_kv}, s2, 1
    s_lshl_b32 s{s_kv}, s{s_kv}, 7
    s_lshl_b32 s{s_t2}, s{s_w}, 8
    s_add_u32 s{s_t2}, s{s_t2}, 7
    s_mov_b32 s{s_cnt}, 8""")
    p("s_barrier", rd=['L0'])
    p.add(reads1(0, 0))
    p.begin_loop(f"{name}_p1loop", 8, align=False)
    for s in range(2):
        mf = [mf16(rr('v', CSA, 4), W1(s, 0, g), on) for g in range(2)]
        for F in range(4):
            for t in range(2):
                mf += [mf16(ACC(F, t), W1(s, F, g), X1(s, t, g)) for g in range(2)]
        pre = []
        if s == 1:
            pre = [Ins(f"v_add_u32 v{vA+i}, s{s_pb}, v{vB+i}") for i in range(6)]
        rds = reads1(1 - s, SL if s == 0 else 0)
        vm = dma1(f"s_add_u32 m0, s{s_dm}, {SL}" if s == 0 else f"s_mov_b32 m0, s{s_dm}", 'Lx')
        fill = spread(vm, 1, 2)
        if s == 0:
            fill.setdefault(14, []).extend([Ins(f"s_cmp_le_u32 s{s_cnt}, 3"), Ins(f"s_cselect_b32 s{sC+2}, 0, s{sC+2}")])
            fill.setdefault(15, []).extend([Ins(f"s_cselect_b32 s{sD+2}, 0, s{sD+2}"), Ins(f"s_add_u32 s{s_dm}, s{s_pb}, s{s_w6}")])
            fill.setdefault(16, []).extend([Ins(f"s_add_u32 s{s_pb}, s{s_pb}, {2*SL}"), Ins(f"s_cmp_eq_u32 s{s_pb}, {6*SL}")])
            fill.setdefault(17, []).extend([Ins(f"s_cselect_b32 s{s_pb}, 0, s{s_pb}")])
        else:
            fill.setdefault(16, []).append(Ins(f"s_sub_u32 s{s_cnt}, s{s_cnt}, 1"))
            fill.setdefault(17, []).append(Ins(f"s_cmp_lg_u32 s{s_cnt}, 0"))
        p.add(pre)
        p("s_waitcnt vmcnt(18)")
        p("s_barrier")
        if s == 1:
            p.add(Raw(f"""    s_cmp_lg_u32 s{s_cnt}, s{s_t2}
    s_cbranch_scc1 {name}_noarr
    buffer_atomic_add v{vOne}, v{vZ}, s[{sB}:{sB+3}], s{s_kv} offen
{name}_noarr:"""))
        k = 0
        for i, m in enumerate(mf):
            if 'p1nomf' not in dbg: p(m)
            nr = 2 if i in (0, 12) else 1
            if 'p1nods' not in dbg: p.add(rds[k:k + nr])
            k += nr
            p.add([x for x in fill.get(i, []) if not ('p1nodma' in dbg and x.kind == 'vmem')])
        assert k >= len(rds)
    p(f"s_cbranch_scc1 {name}_p1loop")
    p.end_loop()
    p.add(Raw("; @stamp 2"))
    p(f"""
    v_lshrrev_b32 v{vt}, 4, v0
    v_lshlrev_b32 v{vt}, 4, v{vt}
    s_lshl_b32 s{s_t0}, s{s_w}, 6
    s_add_u32 s{s_t0}, s{s_t0}, {CSQ}
    v_add_u32 v{vt}, s{s_t0}, v{vt}
    ds_write_b128 v{vt}, {rr('v', CSA, 4)}
    v_and_b32 v{vt+4}, 1, v0
    v_lshlrev_b32 v{vt+4}, 7, v{vt+4}
    s_mov_b32 s{s_spin}, {SPIN}
    s_movk_i32 s{s_t1}, 128""")
    p.add(Raw(f"""{name}_gpoll:
    buffer_load_dword v{vt+5}, v{vt+4}, s[{sB}:{sB+3}], 0 offen sc1
    s_sub_u32 s{s_spin}, s{s_spin}, 1
    s_waitcnt vmcnt(0)
    v_cmp_gt_u32 vcc, s{s_t1}, v{vt+5}
    s_cbranch_scc1 {name}_gdone
    s_nop 0
    s_cbranch_vccnz {name}_gpoll
{name}_gdone:"""))
    p("s_waitcnt vmcnt(0)")
    if o.get('inv', False):
        p("buffer_inv sc1")

    NR = 8
    Kf = lambda b, m: rr('a', (b % NR) * 8 + m * 4, 4)
    Vf = lambda b, m: rr('a', 64 + (b % NR) * 8 + m * 4, 4)
    vMR = 84
    s_ko, s_vo = 61, 62
    srd(p, sA, pWS, KV[1], bias=KV[0])
    p(f"""
    v_and_b32 v{vt+1}, 15, v0
    v_lshlrev_b32 v{vt+1}, 3, v{vt+1}
    s_lshl_b32 s{s_t0}, s{s_tok}, 3
    buffer_load_dwordx2 {rr('v', vMR, 2)}, v{vt+1}, s[{sT}:{sT+3}], s{s_t0} offen offset:{ST_MR} sc1
    buffer_load_dwordx2 {rr('v', vMR+2, 2)}, v{vt+1}, s[{sT}:{sT+3}], s{s_t0} offen offset:{ST_MR + 128} sc1
    """)
    kld = lambda b, m: Ins(f"buffer_load_dwordx4 {Kf(b, m)}, v{vL16}, s[{sA}:{sA+3}], s{s_ko} offen offset:{m*1024} {KVSC}")
    vld = lambda b, m: Ins(f"buffer_load_dwordx4 {Vf(b, m)}, v{vL16}, s[{sA}:{sA+3}], s{s_vo} offen offset:{2048 + m*1024} {KVSC}")

    def fill_kv():
        p(f"s_mov_b32 s{s_ko}, 0\ns_mov_b32 s{s_vo}, 0")
        for b in range(NR):
            p.add([kld(b, 0), kld(b, 1), Ins(f"s_add_u32 s{s_ko}, s{s_ko}, 4096")])
            if b < NR - 2:
                p.add([vld(b, 0), vld(b, 1), Ins(f"s_add_u32 s{s_vo}, s{s_vo}, 4096")])
    fill_kv()
    p("s_waitcnt lgkmcnt(0)")
    p("s_barrier")
    CS = 88
    for f in range(4):
        if f: p(f"v_xor_b32 v{vt+f}, {f*64}, v{vt}")
        p(f"ds_read_b128 {rr('v', CS + 4*f, 4)}, v{vt+f}")
    XT = 131072
    p(f"""
    s_mov_b32 s{sC+2}, {32 * 2048 + 4096}
    s_lshl_b32 s{s_t0}, s{s_w}, 12
    s_add_u32 m0, s{s_t0}, {XT}
    s_lshl_b32 s{s_t1}, s{s_j}, 7""")
    for i in range(4):
        p(f"buffer_load_dwordx4 v{vD+i}, s[{sC}:{sC+3}], s{s_t1} offen offset:{i*1024} lds", awr=['LW'], nowaw=True)
    s_hd = 63
    RSV = 192
    p(f"""
    s_lshl_b32 s{s_hd}, s{s_j}, 1
    s_lshr_b32 s{s_t0}, s{s_w}, 1
    s_add_u32 s{s_hd}, s{s_hd}, s{s_t0}
    s_lshl_b32 s{s_t0}, s{s_hd}, 7
    s_add_u32 s{s_t0}, s{s_t0}, {ST_RS2}
    s_xor_b32 s{s_t1}, s{s_t0}, 128
    v_lshrrev_b32 v{vt+5}, 5, v0
    v_lshlrev_b32 v{vt+5}, 4, v{vt+5}""")
    for x in range(2):
        for jj in range(4):
            p(f"buffer_load_dwordx4 {rr('v', RSV + 16*x + 4*jj, 4)}, v{vt+5}, s[{sT}:{sT+3}], s{s_t1 if x else s_t0} offen offset:{jj*32} sc1")
    Q = lambda x, m: rr('v', 16 + x * 8 + m * 4, 4)
    QP = 112
    for t in range(2):
        p(f"v_accvgpr_write_b32 a{aMEAN+t}, v{vMR+2*t}")
        p(f"v_mul_f32 v{vMR+2*t+1}, {f32hex(LOG2E * DH ** -0.5)}, v{vMR+2*t+1}")
    for hd in range(2):
        for t in range(2):
            for f in range(2):
                F = 2 * hd + f
                a = AB + (F * 2 + t) * 4
                dq = QP + hd * 8 + t * 4 + 2 * f
                for r in range(4): p(f"v_fma_f32 v{a+r}, -v{vMR+2*t}, v{CS+4*F+r}, v{a+r}")
                for r in range(4): p(f"v_mul_f32 v{a+r}, v{vMR+2*t+1}, v{a+r}")
                p(f"v_cvt_pk_bf16_f32 v{dq}, v{a}, v{a+1}")
                p(f"v_cvt_pk_bf16_f32 v{dq+1}, v{a+2}, v{a+3}")
    p(f"s_bitcmp1_b32 s{s_w}, 0\ns_cselect_b64 vcc, -1, 0")
    for i in range(16):
        p(f"v_cndmask_b32 v{16+i}, v{QP+i}, v{QP+(i^2)}, vcc")
    for hd in range(2):
        for i in range(4):
            p(f"v_permlane16_swap_b32 v{16+hd*8+i}, v{16+hd*8+4+i}")
    if 'Q' in dbg:
        srd(p, sB, pWS, QF[1], bias=QF[0])
        p(f"s_lshl_b32 s{s_t0}, s{s_hd}, 17\ns_lshl_b32 s{s_t1}, s{s_tok}, 6\ns_add_u32 s{s_t0}, s{s_t0}, s{s_t1}\ns_xor_b32 s{s_t1}, s{s_t0}, 0x20000")
        for x in range(2):
            for m in range(2):
                p(f"buffer_store_dwordx4 {Q(x, m)}, v{vL16}, s[{sB}:{sB+3}], s{s_t1 if x else s_t0} offen offset:{m*1024}")
    SEL = 12
    Sb = lambda x: 64 + 16 * x
    Ob = lambda x: 96 + 16 * x
    Lb = lambda x: 128 + 4 * x
    Pb = lambda x: 136 + 8 * x
    Nb = lambda x: 160 + 16 * x
    vDum, vPF, vWD = 152, 153, 32
    s_wdo, s_wm0, s_po, s_pk = 64, 65, 66, 67
    p(f"""
    v_lshrrev_b32 v{vt}, 2, v0
    v_and_b32 v{vt}, 4, v{vt}
    v_xor_b32 v{vt}, v{vt}, v0
    v_and_b32 v{vt}, 7, v{vt}
    v_cmp_eq_u32 vcc, 0, v{vt}
    v_cndmask_b32 v{SEL}, 0, v{ONES}, vcc
    v_mov_b32 v{SEL+1}, v{SEL}
    v_mov_b32 v{SEL+2}, v{SEL}
    v_mov_b32 v{SEL+3}, v{SEL}
    v_lshrrev_b32 v{vt}, 3, v0
    v_and_b32 v{vt+1}, 6, v{vt}
    v_and_b32 v{vt+2}, 7, v0
    v_xor_b32 v{vt+1}, v{vt+1}, v{vt+2}
    v_lshlrev_b32 v{vt+1}, 4, v{vt+1}
    v_lshl_add_u32 v{vWD}, v{vt}, 11, v{vt+1}
    v_add_u32 v{vWD+1}, {8*2048 - 1024}, v{vWD}
    v_add_u32 v{vWD+2}, {16*2048 - 2048}, v{vWD}
    v_add_u32 v{vWD+3}, {24*2048 - 3072}, v{vWD}
    s_lshl_b32 s{s_wdo}, s{s_w}, 16
    s_lshl_b32 s{s_t1}, s{s_j}, 7
    s_add_u32 s{s_wdo}, s{s_wdo}, s{s_t1}
    s_lshl_b32 s{s_wm0}, s{s_w}, 12
    """)
    p(f"""
    v_mul_u32_u24 v{vt}, 9363, v0
    v_lshrrev_b32 v{vt}, 16, v{vt}
    v_mul_u32_u24 v{vt+1}, {7168 - 7*128}, v{vt}
    v_lshl_add_u32 v{vPF}, v0, 7, v{vt+1}
    v_cmp_gt_u32 vcc, 14, v0
    v_cndmask_b32 v{vPF}, -1, v{vPF}, vcc
    v_and_b32 v{vPF}, 0x7fffff80, v{vPF}
    s_lshr_b32 s{s_t0}, s2, 3
    s_lshl_b32 s{s_t0}, s{s_t0}, 2
    s_add_u32 s{s_t0}, s{s_t0}, s{s_w}
    s_mul_i32 s{s_pk}, s{s_t0}, {2 * 7168}
    s_and_b32 s{s_t0}, s2, 7
    s_mul_i32 s{s_t0}, s{s_t0}, 896
    s_add_u32 s{s_pk}, s{s_pk}, s{s_t0}
    s_mov_b32 s{s_po}, s{s_pk}
    s_mov_b64 s[{sD}:{sD+1}], s[{pWG}:{pWG+1}]
    s_mov_b32 s{sD+2}, {D * FF * 2 if o.get('prefetch', True) else 0}
    """)

    def half(x, Kb, Vb, C, extra):
        y = 1 - x
        Sx, Px, Sy, Py = Sb(x), Pb(x), rr('v', Sb(y), 16), Pb(y)
        valu = []
        for i in range(8):
            valu.append(f"v_exp_f32 v{Sx+2*i}, v{Sx+2*i}")
            valu.append(f"v_exp_f32 v{Sx+2*i+1}, v{Sx+2*i+1}")
            if i > 0:
                valu.append(f"v_cvt_pk_bf16_f32 v{Px+i-1}, v{Sx+2*i-2}, v{Sx+2*i-1}")
        valu.append(f"v_cvt_pk_bf16_f32 v{Px+7}, v{Sx+14}, v{Sx+15}")
        Oy, Ly = rr('v', Ob(y), 16), rr('v', Lb(y), 4)
        sel = rr('v', SEL, 4)
        mf = [mf32(Sy, Kf(Kb, 0), Q(y, 0), C(y)), mf32(Sy, Kf(Kb, 1), Q(y, 1)),
              mf32(Oy, Vf(Vb, 0), rr('v', Py, 4)), mf16(Ly, sel, rr('v', Py, 4)),
              mf32(Oy, Vf(Vb, 1), rr('v', Py + 4, 4)), mf16(Ly, sel, rr('v', Py + 4, 4))]
        pos = (0, 4, 8, 12, 15, 19)
        for i, v in enumerate(valu):
            if i in pos:
                k = pos.index(i)
                p(mf[k])
                p.add(extra.get(k, []))
            p(v)

    def attention(tag, C, side):
        for x in range(2):
            for i in range(16): p(f"v_mov_b32 v{Ob(x)+i}, 0")
            for i in range(4): p(f"v_mov_b32 v{Lb(x)+i}, 0")
        for i in range(8): p(f"v_mov_b32 v{Pb(1)+i}, 0")
        for i in range(8): p(f"v_accvgpr_write_b32 a{64 + (NR-1)*8 + i}, 0")
        p(mf32(rr('v', Sb(0), 16), Kf(0, 0), Q(0, 0), C(0)))
        p(mf32(rr('v', Sb(0), 16), Kf(0, 1), Q(0, 1)))
        p(f"s_mov_b32 s{s_cnt}, {64 // NR}")
        p("s_nop 11")
        p.begin_loop(f"{name}_{tag}_loop", 64 // NR)
        for kt in range(NR):
            e0 = {0: [vld(kt + NR - 2, 0)], 1: [vld(kt + NR - 2, 1)], 3: [Ins(f"s_add_u32 s{s_vo}, s{s_vo}, 4096")],
                  5: [Ins(f"wait {Kf(kt+1, 0)}, {Kf(kt+1, 1)}, {Vf(kt, 0)}, {Vf(kt, 1)}")]}
            e1 = {0: [kld(kt, 0)], 1: [kld(kt, 1)], 3: [Ins(f"s_add_u32 s{s_ko}, s{s_ko}, 4096")]}
            if side:
                if kt == 0: e0[2] = [Ins(f"s_mov_b32 m0, s{s_wm0}")]
                if kt % 2 == 0 and 'nowodma' not in dbg:
                    i = kt // 2
                    e0[4] = [Ins(f"buffer_load_dwordx4 v{vWD+i}, s[{sE}:{sE+3}], s{s_wdo} offen offset:{i*1024} lds", awr=['LW'], nowaw=True)]
                if kt == 7:
                    e0[2] = [Ins(f"s_add_u32 s{s_wdo}, s{s_wdo}, {128 * 2048}")]
                    e0[4] = [Ins(f"s_add_u32 s{s_wm0}, s{s_wm0}, 16384")]
                if kt in (1, 5):
                    e0[2] = [Ins(f"buffer_load_dword v{vDum}, v{vPF}, s[{sD}:{sD+3}], s{s_po} offen", nowaw=True)]
                    e0[4] = [Ins(f"s_add_u32 s{s_po}, s{s_po}, {256 * 7168}")]
                if kt == 5:
                    e1[2] = [Ins(f"s_cmp_eq_u32 s{s_cnt}, 7")]
                    e1[3] = [Ins(f"s_cselect_b64 s[{sD}:{sD+1}], s[{pWU}:{pWU+1}], s[{sD}:{sD+1}]")]
                    e1[4] = [Ins(f"s_cselect_b32 s{s_po}, s{s_pk}, s{s_po}")]
                    e1[5] = [Ins(f"s_add_u32 s{s_ko}, s{s_ko}, 4096")]
                if kt == 6:
                    e1[2] = [Ins(f"s_cmp_eq_u32 s{s_cnt}, 5")]
                    e1[3] = [Ins(f"s_cselect_b64 s[{sD}:{sD+1}], s[{pWD}:{pWD+1}], s[{sD}:{sD+1}]")]
                    e1[4] = [Ins(f"s_cselect_b32 s{s_po}, s{s_pk}, s{s_po}")]
                    e1[5] = [Ins(f"s_add_u32 s{s_ko}, s{s_ko}, 4096")]
            if kt == NR - 1:
                e1[4] = [Ins(f"s_sub_u32 s{s_cnt}, s{s_cnt}, 1")]
                e1[5] = [Ins(f"s_cmp_lg_u32 s{s_cnt}, 0")]
            half(0, kt, kt - 1, C, e0)
            half(1, kt + 1, kt, C, e1)
        p(f"s_cbranch_scc1 {name}_{tag}_loop")
        p.end_loop()
        O1, L1, sel = rr('v', Ob(1), 16), rr('v', Lb(1), 4), rr('v', SEL, 4)
        p(mf32(O1, Vf(NR - 1, 0), rr('v', Pb(1), 4)))
        p(mf16(L1, sel, rr('v', Pb(1), 4)))
        p(mf32(O1, Vf(NR - 1, 1), rr('v', Pb(1) + 4, 4)))
        p(mf16(L1, sel, rr('v', Pb(1) + 4, 4)))

    if o.get('ipf', False):
        p(f"""
        s_getpc_b64 s[74:75]
        s_lshr_b32 s{s_t0}, s2, 3
        s_lshl_b32 s{s_t0}, s{s_t0}, 2
        s_add_u32 s{s_t0}, s{s_t0}, s{s_w}
        s_lshl_b32 s{s_t0}, s{s_t0}, 8
        s_min_u32 s{s_t0}, s{s_t0}, {name}_end-{name}_fast_loop
        v_and_b32 v4, 1, v0
        v_lshl_add_u32 v4, v4, 7, s{s_t0}
        """)
        p(f"global_load_dword v255, v4, s[74:75]", nowaw=True)
        p.cur[-1].awr = set()

    p.add(Raw("; @stamp 3"))
    attention('fast', lambda y: "0", 'noside' not in dbg)
    p.add(Raw("; @stamp 4"))
    srd(p, sB, pWS, OF[1], bias=OF[0])
    p(f"s_mov_b32 s{s_t0}, {f32hex(2.0**-40)}\ns_mov_b32 s{s_t1}, {f32hex(2.0**40)}\ns_mov_b32 s{s_t2}, {f32hex(2.0**120)}")
    for x in range(2):
        p(f"v_add_f32 v{vt+2*x}, |v{Ob(x)}|, |v{Ob(x)+1}|")
        p(f"v_add_f32 v{vt+2*x+1}, |v{Ob(x)+2}|, |v{Ob(x)+3}|")
        for i in range(4, 16):
            p(f"v_add_f32 v{vt+2*x+(i&1)}, v{vt+2*x+(i&1)}, |v{Ob(x)+i}|")
    p(f"""
    v_add_f32 v{vt}, v{vt}, v{vt+1}
    v_add_f32 v{vt+2}, v{vt+2}, v{vt+3}
    v_add_f32 v{vt}, v{vt}, v{vt+2}
    v_cmp_nle_f32 s[68:69], s{s_t0}, v{Lb(0)}
    v_cmp_nle_f32 s[70:71], s{s_t0}, v{Lb(1)}
    v_cmp_nge_f32 s[72:73], s{s_t1}, v{Lb(0)}
    v_cmp_nge_f32 s[74:75], s{s_t1}, v{Lb(1)}
    v_cmp_nge_f32 vcc, s{s_t2}, v{vt}
    s_or_b64 s[68:69], s[68:69], s[70:71]
    s_or_b64 s[72:73], s[72:73], s[74:75]
    s_or_b64 s[68:69], s[68:69], s[72:73]
    s_or_b64 s[68:69], s[68:69], vcc
    {'' if 'nocheck' in dbg else f's_cbranch_scc1 {name}_slow'}
    {name}_fin:
    v_rcp_f32 v{Lb(0)}, v{Lb(0)}
    v_rcp_f32 v{Lb(1)}, v{Lb(1)}
    v_bfe_u32 v{vt}, v0, 4, 1
    v_lshlrev_b32 v{vt}, 15, v{vt}
    v_and_b32 v{vt+1}, 15, v0
    v_lshl_add_u32 v{vt}, v{vt+1}, 4, v{vt}
    v_lshrrev_b32 v{vt+1}, 5, v0
    v_lshl_add_u32 v{vt}, v{vt+1}, 8, v{vt}
    s_lshl_b32 s{s_t0}, s{s_tok}, 1
    s_add_u32 s{s_t0}, s{s_t0}, s{s_hd}
    s_lshl_b32 s{s_t0}, s{s_t0}, 10
    s_xor_b32 s{s_t1}, s{s_t0}, 1024
    """)
    for x in range(2):
        for a in range(2):
            for i in range(8 * a, 8 * a + 8, 2):
                p(f"v_pk_mul_f32 {rr('v', Ob(x)+i, 2)}, {rr('v', Ob(x)+i, 2)}, {rr('v', Lb(x), 2)} op_sel_hi:[1,0]")
            for i in range(4 * a, 4 * a + 4):
                p(f"v_cvt_pk_bf16_f32 v{Pb(x)+i}, v{Ob(x)+2*i}, v{Ob(x)+2*i+1}")
            p(f"buffer_store_dwordx4 {rr('v', Pb(x)+4*a, 4)}, v{vt}, s[{sB}:{sB+3}], s{s_t1 if x else s_t0} offen offset:{a*512} sc1")
    p(f"v_pk_mul_f32 v[{vt+2}:{vt+3}], {rr('v', Ob(0), 2)}, {rr('v', RSV, 2)}")
    p(f"v_pk_mul_f32 v[{vt+4}:{vt+5}], {rr('v', Ob(0)+2, 2)}, {rr('v', RSV+2, 2)}")
    for i in range(2, 16):
        k = vt + 2 + 2 * (i & 1)
        p(f"v_pk_fma_f32 v[{k}:{k+1}], {rr('v', Ob(0)+2*i, 2)}, {rr('v', RSV+2*i, 2)}, v[{k}:{k+1}]")
    s_pj = 73
    vPW = 36
    p(f"""
    v_pk_add_f32 v[{vt+2}:{vt+3}], v[{vt+2}:{vt+3}], v[{vt+4}:{vt+5}]
    s_lshl_b32 s{s_pj}, s{s_tok}, 6
    s_lshl_b32 s{s_t1}, s{s_j}, 7
    v_add_f32 v{vt+2}, v{vt+2}, v{vt+3}
    v_and_b32 v{vPW}, 15, v0
    v_mov_b32 v{vt+3}, v{vt+2}
    v_lshlrev_b32 v{vPW}, 3, v{vPW}
    v_lshrrev_b32 v{vt+4}, 4, v0
    v_permlane32_swap_b32 v{vt+2}, v{vt+3}
    v_lshl_add_u32 v{vPW}, v{vt+4}, 2, v{vPW}
    s_add_u32 s{s_pj}, s{s_pj}, s{s_t1}
    s_add_u32 s{s_t0}, s{s_pj}, {ST_MP}
    v_add_f32 v{vt+2}, v{vt+2}, v{vt+3}
    s_mov_b32 exec_hi, 0
    buffer_store_dword v{vt+2}, v{vPW}, s[{sT}:{sT+3}], s{s_t0} offen sc1
    s_mov_b32 exec_hi, -1
    """)

    SPLIT = o.get('split5', True)
    s_c, s_xo, s_xe, s_xend = 61, 62, 63, 64
    vX1, vA3 = 12, 16
    WB, AB3 = 40, 104
    vPT = 20
    LEAD = 12
    ACS = lambda F, t: rr('v', AB3 + (F * 2 + t) * 4, 4)

    class Shape:
        def __init__(self, NF, off):
            self.NF, self.NG, self.off = NF, 16 // NF, off
        def X(self, slot, t, G): return rr('a', slot * 8 * self.NG + (t * self.NG + G) * 4, 4)
        def Xall(self, slot): return ", ".join(self.X(slot, t, G) for t in range(2) for G in range(self.NG))
        def W(self, F, G): return rr('v', WB + (F * self.NG + G) * 4, 4)
        def rd(self, slot, n):
            F, G, b = n // (2 * self.NG), (n >> 1) % self.NG, n & 1
            return Ins(f"ds_read_b64_tr_b16 {rr('v', WB + 2*n, 2)}, v{vA3 + (F & 3)} offset:{slot*16384 + self.off(F, G, b)}")
        def xld(self, slot):
            o_ = [Ins(f"s_cmp_lt_u32 s{s_xo}, s{s_xend}"), Ins(f"s_cselect_b32 s{s_xe}, s{s_xo}, s{sB+2}")]
            for t in range(2):
                for G in range(self.NG):
                    o_.append(Ins(f"buffer_load_dwordx4 {self.X(slot, t, G)}, v{vX1 if t else vL16}, s[{sB}:{sB+3}], s{s_xe} offen offset:{G*1024} sc1"))
            o_.append(Ins(f"s_add_u32 s{s_xo}, s{s_xo}, {self.NG * 1024}"))
            return o_
    sh4 = Shape(4, lambda F, G, b: G * 4096 + b * 1024)
    sh8 = Shape(8, lambda F, G, b: G * 8192 + (F >> 2) * 2048 + b * 1024)

    def wread_addr(blk):
        p(f"""
        v_bfe_u32 v{vt}, v0, 2, 3
        v_lshrrev_b32 v{vt+1}, 1, v{vt}
        v_lshlrev_b32 v{vt+1}, 5, v{vt+1}
        v_lshl_add_u32 v{vt}, v{vt}, 7, v{vt+1}
        v_lshrrev_b32 v{vt+1}, 5, v0
        v_lshl_add_u32 v{vt}, v{vt+1}, {blk}, v{vt}
        v_and_b32 v{vt+1}, 3, v0
        v_lshl_add_u32 v{vA3}, v{vt+1}, 3, v{vt}
        v_xor_b32 v{vA3+1}, 32, v{vA3}
        v_xor_b32 v{vA3+2}, 64, v{vA3}
        v_xor_b32 v{vA3+3}, 0x60, v{vA3}""")

    def small_loop(label, trips, sh, dmaf):
        p(f"s_mov_b32 s{s_cnt}, {trips}")
        p(f"wait {rr('v', WB, 8)}, {sh.Xall(0)}")
        p.begin_loop(label, trips)
        order = [(F, t, G) for F in range(sh.NF) for t in range(2) for G in range(sh.NG)]
        first_use = {}
        for i, (F, t, G) in enumerate(order):
            first_use.setdefault((F * sh.NG + G) // 2, i)
        waits = {(i - 1) % 32: q for q, i in first_use.items()}
        last_rd = {}
        for n in range(32):
            last_rd[(n // (2 * sh.NG)) & 3] = n
        for u in range(4):
            vm = (dmaf() if dmaf else []) + sh.xld((u + 3) % 4)
            fill, pos = {}, 0
            for ins in vm:
                fill.setdefault(pos, []).append(ins)
                pos += 2 if ins.kind == 'vmem' and len(vm) < 18 else 1
            assert pos <= 31
            if u == 3:
                fill.setdefault(29, []).append(Ins(f"s_sub_u32 s{s_cnt}, s{s_cnt}, 1"))
                fill.setdefault(30, []).append(Ins(f"s_cmp_lg_u32 s{s_cnt}, 0"))
            for i, (F, t, G) in enumerate(order):
                p(mf16(ACS(F, t), sh.W(F, G), sh.X(u, t, G)))
                n = i + LEAD
                if n == 32 and dmaf:
                    p("s_barrier")
                p.add(sh.rd((u + n // 32) % 4, n % 32))
                for a_, ln in last_rd.items():
                    if (u, n) == ((3, ln) if ln >= LEAD else (2, ln + 32)):
                        flip_at = (u, i)
                        if ln >= LEAD: p(f"v_xor_b32 v{vA3+a_}, 0x10000, v{vA3+a_}")
                if u == 3 and i == 0:
                    for a_, ln in last_rd.items():
                        if ln < LEAD: p(f"v_xor_b32 v{vA3+a_}, 0x10000, v{vA3+a_}")
                if i in waits:
                    q = waits[i]
                    p(f"wait {rr('v', WB + 8*q, 8)}" + (", " + sh.Xall((u + 1) % 4) if i == 31 else ""))
                p.add(fill.get(i, []))
        p(f"s_cbranch_scc1 {label}")
        p.end_loop()

    def table_load(aq, soff, blk=0):
        for i in range(4):
            p(f"buffer_load_dwordx2 {rr('v', aq + 2*i, 2)}, v{vPT}, s[{sT}:{sT+3}], s{soff} offen offset:{blk*2048 + i*128} sc1")

    def table_sum(aq, dst):
        p(f"""
        v_pk_add_f32 {rr('v', aq, 2)}, {rr('v', aq, 2)}, {rr('v', aq+2, 2)}
        v_pk_add_f32 {rr('v', aq+4, 2)}, {rr('v', aq+4, 2)}, {rr('v', aq+6, 2)}
        v_pk_add_f32 {rr('v', dst, 2)}, {rr('v', aq, 2)}, {rr('v', aq+4, 2)}""")
        for sw in (16, 32):
            p(f"""
            v_pk_mov_b32 {rr('v', aq, 2)}, {rr('v', dst, 2)}, {rr('v', dst, 2)} op_sel:[0,1]
            v_permlane{sw}_swap_b32 v{dst}, v{aq}
            v_permlane{sw}_swap_b32 v{dst+1}, v{aq+1}
            v_pk_add_f32 {rr('v', dst, 2)}, {rr('v', dst, 2)}, {rr('v', aq, 2)}""")

    def rstd_from(aq, dst):
        table_sum(aq, dst)
        for t in range(2):
            p(f"v_fma_f32 v{dst+t}, v{dst+t}, s{s_t1}, v{vt+4}")
        for t in range(2):
            p(f"v_rsq_f32 v{dst+t}, v{dst+t}")

    p(f"""
    s_lshl_b32 s{s_c}, s{s_tok}, 3
    s_add_u32 s{s_c}, s{s_c}, {ST_CNT}
    s_lshl_b32 s{s_xo}, s{s_tok}, 11
    s_add_u32 s{s_xend}, s{s_xo}, 0x8000""")
    arrive(p, s_c)
    vE = 136
    p(f"""
    v_add_u32 v{vX1}, 0x8000, v{vL16}
    s_lshl_b32 s{s_t0}, s{s_w}, 12
    s_add_u32 s{s_t0}, s{s_t0}, {XT}
    v_and_b32 v{vt+4}, 15, v0
    v_lshrrev_b32 v{vt+5}, 1, v{vt+4}
    v_lshrrev_b32 v{vt+6}, 5, v0
    v_xor_b32 v{vt+5}, v{vt+5}, v{vt+6}
    v_lshlrev_b32 v{vt+5}, 4, v{vt+5}
    v_lshl_add_u32 v{vt+5}, v{vt+4}, 7, v{vt+5}
    v_bfe_u32 v{vt+6}, v0, 4, 1
    v_lshl_add_u32 v{vt+5}, v{vt+6}, 3, v{vt+5}
    v_add_u32 v{vt}, s{s_t0}, v{vt+5}
    v_xor_b32 v{vt+1}, 32, v{vt}
    v_xor_b32 v{vt+2}, 64, v{vt}
    v_xor_b32 v{vt+3}, 0x60, v{vt}""")
    for t in range(2):
        for F in range(4):
            p(f"ds_read_b64 {rr('v', vE + (t*4+F)*2, 2)}, v{vt+F} offset:{t*2048}")
    p(f"""
    v_lshlrev_b32 v{vPT}, 3, v{vt+4}
    v_lshrrev_b32 v{vt+5}, 4, v0
    v_lshl_add_u32 v{vPT}, v{vt+5}, 9, v{vPT}""")
    wread_addr(11)
    for t in range(2):
        for F in range(4):
            a = AB3 + (F * 2 + t) * 4
            e = vE + (t * 4 + F) * 2
            p(f"""
            v_lshlrev_b32 v{a}, 16, v{e}
            v_and_b32 v{a+1}, 0xffff0000, v{e}
            v_lshlrev_b32 v{a+2}, 16, v{e+1}
            v_and_b32 v{a+3}, 0xffff0000, v{e+1}""")
    p("s_barrier")
    for n in range(LEAD):
        p.add(sh4.rd(0, n))
    SLOT4, HI4, LEAD4 = 28672, 106496, 8
    s_nb, s_wo4, s_m04, s_dsl, s_rsl, s_tk4 = 66, 68, 69, 70, 71, 72
    vD4 = 21
    AB4 = 32
    p(f"""
    s_and_b32 s{s_t0}, s2, 7
    s_lshr_b32 s{s_t1}, s2, 3
    s_and_b32 s{s_tk4}, s{s_t1}, 7
    s_lshr_b32 s{s_t1}, s{s_t1}, 3
    s_lshl_b32 s{s_nb}, s{s_t0}, 2
    s_add_u32 s{s_nb}, s{s_nb}, s{s_t1}
    s_movk_i32 s{s_t1}, 4682
    s_movk_i32 s{s_t0}, {7168 - 14 * 16}
    """)
    for i in range(7):
        p(f"""
        v_add_u32 v{vt}, {64*i}, v0
        v_mul_u32_u24 v{vt+1}, s{s_t1}, v{vt}
        v_lshrrev_b32 v{vt+1}, 16, v{vt+1}
        v_add_u32 v{vt}, {1024 * (i - (i & 3))}, v{vL16}
        v_mad_u32_u24 v{vD4+i}, v{vt+1}, s{s_t0}, v{vt}
        """)
    p(f"""
    s_lshl_b32 s{s_tk4}, s{s_tk4}, 2
    s_add_u32 s{s_tk4}, s{s_tk4}, s{s_w}
    s_lshl_b32 s{s_tk4}, s{s_tk4}, 6
    s_and_b32 s{s_t0}, s{s_w}, 1
    s_mul_i32 s{s_wo4}, s{s_t0}, {32 * 7168}
    s_mul_i32 s{s_t1}, s{s_nb}, 224
    s_add_u32 s{s_wo4}, s{s_wo4}, s{s_t1}
    s_mul_i32 s{s_m04}, s{s_w}, 7168
    s_mov_b32 s{s_dsl}, s{s_m04}
    s_mov_b32 s{s_rsl}, {HI4}
    s_cmp_lt_u32 s{s_w}, 2
    s_cselect_b64 s[{sD}:{sD+1}], s[{pWG}:{pWG+1}], s[{pWU}:{pWU+1}]
    s_mov_b32 s{sD+2}, {hex(D * FF * 2)}
    s_lshl_b32 s{s_t0}, s{s_tok}, 6
    s_add_u32 s{s_t0}, s{s_t0}, {ST_MP}
    """)
    srd(p, sA, pWS, HC[1], bias=HC[0])
    for i in range(4):
        p(f"v_accvgpr_write_b32 a{aMEAN-4+i}, v{vWD+i}")
    for i in range(160, 256, 2):
        p(f"v_pk_mov_b32 {rr('v', i, 2)}, 0, 0")
    p.add(Raw("; @stamp 5"))
    PM = o.get('pollmode', '000')
    if PM[0] == '0': poll(p, f"{name}_opoll", s_c, 16, vt)
    else: poll_wg(p, f"{name}_opoll", s_c, 4, 16, vt, PM[0] == '2')
    p.add(Raw("; @stamp 6"))

    def dma4(par):
        o_ = []
        for i in range(7):
            if i == 0: o_.append(Ins(f"s_add_u32 m0, s{s_dsl}, {par * SLOT4}"))
            if i == 4: o_.append(Ins("s_add_u32 m0, m0, 4096"))
            o_.append(Ins(f"buffer_load_dwordx4 v{vD4+i}, s[{sD}:{sD+3}], s{s_wo4} offen offset:{(i&3)*1024} lds", awr=['Lx'], nowaw=True))
        o_.append(Ins(f"s_add_u32 s{s_wo4}, s{s_wo4}, {64 * 7168}"))
        return o_

    def xld3(u):
        o_ = [Ins(f"buffer_load_dwordx4 {sh4.X(u % 4, t, G)}, v{vX1 if t else vL16}, s[{sB}:{sB+3}], s{s_xo} offen offset:{G*1024} sc1")
              for t in range(2) for G in range(4)]
        return o_ + [Ins(f"s_add_u32 s{s_xo}, s{s_xo}, 4096")]
    vS, vQ, vP = 28, 144, WB
    p.add(xld3(0)); p.add(xld3(1))
    order = [(F, t, G) for F in range(4) for t in range(2) for G in range(4)]
    for u in range(8):
        vm = xld3(u + 2) if u < 6 else []
        if u == 0:
            vm += [Ins(f"buffer_load_dwordx2 {rr('v', vE + 2*i, 2)}, v{vPT}, s[{sT}:{sT+3}], s{s_t0} offen offset:{i*128} sc1") for i in range(4)]
        if u == 5: vm += dma4(0)
        if u == 6: vm += dma4(1)
        fill, pos = {}, 0
        for ins in vm:
            fill.setdefault(pos, []).append(ins)
            pos += 2 if ins.kind == 'vmem' and len(vm) < 16 else 1
        for i, (F, t, G) in enumerate(order):
            p(mf16(ACS(F, t), sh4.W(F, G), sh4.X(u % 4, t, G)))
            n = i + LEAD
            if u == 5 and i == 0:
                p("s_barrier")
            if u * 32 + n < 256:
                p.add(sh4.rd((u + n // 32) % 4, n % 32))
            if u == 3 and i == 0: p(f"v_xor_b32 v{vA3}, 0x10000, v{vA3}")
            if u == 3 and n in (15, 23, 31): p(f"v_xor_b32 v{vA3 + n // 8}, 0x10000, v{vA3 + n // 8}")
            if u > 0 or i > 7:
                if i % 8 == 7 and u * 32 + i < 255:
                    p(f"wait {rr('v', WB + ((F + 1) % 4) * 16, 8)}" + (", " + sh4.Xall((u + 1) % 4) if i == 31 else ""))
                if i % 8 == 1:
                    p(f"wait {rr('v', WB + F * 16 + 8, 8)}")
            p.add(fill.get(i, []))
    p.add(Raw("; @stamp 7"))

    s_ho = s_xo
    p(f"""
    s_mov_b32 s{s_t1}, {f32hex(-1.0/1024)}
    s_add_u32 s{s_ho}, s{s_tok}, s{s_j}
    s_lshl_b32 s{s_ho}, s{s_ho}, 11""")
    table_sum(vE, vS)
    for t in range(2):
        p(f"v_accvgpr_read_b32 v{vt}, a{aMEAN+t}")
        p(f"v_fma_f32 v{vS+t}, v{vS+t}, s{s_t1}, -v{vt}")
    for t in range(2):
        sel = "op_sel_hi:[1,0]" if t == 0 else "op_sel:[0,1]"
        q = rr('v', vQ + 2 * t, 2)
        for F in range(4):
            a = AB3 + (F * 2 + t) * 4
            k = vQ + 4 + (F & 1) * 4
            hc = vP + (t * 2 + (F >> 1)) * 4 + (F & 1) * 2
            p(f"""
            v_pk_add_f32 {rr('v', k, 2)}, {rr('v', a, 2)}, {rr('v', vS, 2)} {sel}
            v_pk_add_f32 {rr('v', k+2, 2)}, {rr('v', a+2, 2)}, {rr('v', vS, 2)} {sel}
            v_cvt_pk_bf16_f32 v{hc}, v{k}, v{k+1}
            v_cvt_pk_bf16_f32 v{hc+1}, v{k+2}, v{k+3}""")
            if F & 1:
                g = F >> 1
                p(f"buffer_store_dwordx4 {rr('v', hc-2, 4)}, v{vX1 if t else vL16}, s[{sA}:{sA+3}], s{s_ho} offen offset:{g*1024} sc1")
            p(f"v_pk_mul_f32 {q}, {rr('v', k, 2)}, {rr('v', k, 2)}" if F == 0 else f"v_pk_fma_f32 {q}, {rr('v', k, 2)}, {rr('v', k, 2)}, {q}")
            p(f"v_pk_fma_f32 {q}, {rr('v', k+2, 2)}, {rr('v', k+2, 2)}, {q}")
    p(f"""
    v_add_f32 v{vQ}, v{vQ}, v{vQ+1}
    v_add_f32 v{vQ+2}, v{vQ+2}, v{vQ+3}
    s_add_u32 s{s_t0}, s{s_pj}, {ST_SSQ}
    s_lshr_b32 s{s_c}, s{s_tok}, 6
    v_permlane16_swap_b32 v{vQ}, v{vQ+2}
    v_add_f32 v{vQ}, v{vQ}, v{vQ+2}
    v_mov_b32 v{vQ+1}, v{vQ}
    s_lshl_b32 s{s_c}, s{s_c}, 10
    s_add_u32 s{s_c}, s{s_c}, {ST_HCR}
    v_permlane32_swap_b32 v{vQ}, v{vQ+1}
    v_add_f32 v{vQ}, v{vQ}, v{vQ+1}
    s_mov_b32 exec_hi, 0
    buffer_store_dword v{vQ}, v{vPW}, s[{sT}:{sT+3}], s{s_t0} offen sc1
    s_mov_b32 exec_hi, -1
    """)
    for t in range(2):
        for F in range(4):
            a = AB3 + (F * 2 + t) * 4
            hr = vP + 16 + (t * 2 + (F >> 1)) * 4 + (F & 1) * 2
            p(f"v_cvt_pk_bf16_f32 v{hr}, v{a}, v{a+1}\nv_cvt_pk_bf16_f32 v{hr+1}, v{a+2}, v{a+3}")
    for i in range(16):
        p(f"v_accvgpr_write_b32 a{aHR+i}, v{vP+16+i}")
    if 'H' in dbg:
        srd(p, sB, pWS, HR[1], bias=HR[0])
        for t in range(2):
            for g in range(2):
                p(f"buffer_store_dwordx4 {rr('v', vP + 16 + (t*2+g)*4, 4)}, v{vX1 if t else vL16}, s[{sB}:{sB+3}], s{s_ho} offen offset:{g*1024}")
    p(f"""
    v_lshlrev_b32 v{vt}, 7, v0
    s_mov_b64 exec, 0xff
    s_waitcnt vmcnt(0)
    buffer_atomic_add v{vOne}, v{vt}, s[{sT}:{sT+3}], s{s_c} offen
    s_mov_b64 exec, -1""")

    vX4 = [vL16, 12, 13, 14]
    vA4, vAb, vR4 = 15, 16, 28
    X4 = lambda slot, t, g: rr('a', slot * 32 + (t * 2 + g) * 4, 4)
    WB4, WB4B, NWR = 96, 128, 4
    W4 = lambda q, g: rr('a', WB4 + (q % NWR) * 8 + g * 4, 4)
    AC4 = lambda f, t: rr('v', AB4 + (f * 4 + t) * 4, 4)
    p(f"""
    v_add_u32 v{vX4[2]}, 0x10000, v{vL16}
    v_add_u32 v{vX4[3]}, 0x18000, v{vL16}
    v_lshrrev_b32 v{vt}, 2, v0
    v_mul_u32_u24 v{vt}, 224, v{vt}
    v_and_b32 v{vt+1}, 3, v0
    v_lshl_add_u32 v{vAb}, v{vt+1}, 3, v{vt}
    v_mov_b32 v{vA4}, v{vAb}
    s_lshl_b32 s{s_xo}, s{s_tk4}, 11
    s_add_u32 s{s_dsl}, s{s_m04}, {HI4}
    s_lshl_b32 s{s_c}, s{s_tk4}, 4
    s_and_b32 s{s_t0}, s2, 7
    s_lshl_b32 s{s_t0}, s{s_t0}, 7
    s_add_u32 s{s_c}, s{s_c}, s{s_t0}
    s_add_u32 s{s_c}, s{s_c}, {ST_HCR}
    s_lshl_b32 s{s_t0}, s{s_tk4}, 6
    s_add_u32 s{s_t0}, s{s_t0}, {ST_SSQ}
    s_mov_b32 s{s_t1}, {f32hex(1.0/1024)}
    v_mov_b32 v{vt+4}, {f32hex(1e-5)}
    """)
    for i in range(AB4 + 16, 160, 2):
        p(f"v_pk_mov_b32 {rr('v', i, 2)}, 0, 0")

    def xld4(slot):
        o_ = [Ins(f"buffer_load_dwordx4 {X4(slot, t, g)}, v{vX4[t]}, s[{sA}:{sA+3}], s{s_xo} offen offset:{g*1024} sc1")
              for t in range(4) for g in range(2)]
        return o_ + [Ins(f"s_add_u32 s{s_xo}, s{s_xo}, 2048")]

    def rd4(q, n, par=None, base=WB4):
        f = q % 14
        g, b = n >> 1, n & 1
        if par is None: par = (q // 14) & 1
        return Ins(f"ds_read_b64_tr_b16 {rr('a', base + (q % NWR)*8 + g*4 + 2*b, 2)}, v{vA4} offset:{par*SLOT4 + (f&1)*14336 + (32*g+16*b)*224 + (f>>1)*32}")
    p("s_barrier")
    for n in range(LEAD4):
        p.add(rd4(n >> 2, n & 3))
    p.add(Raw("; @stamp 8"))
    poll(p, f"{name}_hpoll", s_c, 32, vt)
    p.add(Raw("; @stamp 9"))
    for q in range(2):
        table_load(AB4 + 8 * q, s_t0, q)
    p.add(xld4(0))
    for q in range(2):
        rstd_from(AB4 + 8 * q, vR4 + 2 * q)
    for t in range(4):
        p(f"v_mul_f32 v{vR4+t}, {f32hex(-LOG2E)}, v{vR4+t}")
    for i in range(AB4, AB4 + 16, 2):
        p(f"v_pk_mov_b32 {rr('v', i, 2)}, 0, 0")
    p(f"s_mov_b32 s{s_cnt}, 7")
    p("wait " + ", ".join(X4(0, t, g) for t in range(4) for g in range(2)) + f", {W4(0, 0)}, {W4(0, 1)}")
    p.begin_loop(f"{name}_p4loop", 7)
    for u in range(2):
        vm = xld4(1 - u) + dma4(u)
        fill, pos = {}, 1
        for ins in vm:
            fill.setdefault(pos, []).append(ins)
            pos += o.get('p4step', 4)
            if pos % 8 == 7: pos += 2
        assert pos < 95
        if u == 1:
            fill[97] = [Ins(f"s_sub_u32 s{s_rsl}, {HI4}, s{s_rsl}")]
            fill[99] = [Ins(f"s_add_u32 s{s_dsl}, s{s_m04}, s{s_rsl}")]
            fill[105] = [Ins(f"s_sub_u32 s{s_cnt}, s{s_cnt}, 1")]
            fill[107] = [Ins(f"s_cmp_lg_u32 s{s_cnt}, 0")]
            fill.setdefault(pos, []).append(Raw(f"    s_cmp_lg_u32 s{s_cnt}, 1\n    s_cbranch_scc1 {name}_nox15\n" +
                                                "".join(f"    {x.text}\n" for x in xld4(2)[:8]) + f"{name}_nox15:"))
        order = [(f, t, g) for f in range(14) for t in range(4) for g in range(2)]
        for i, (f, t, g) in enumerate(order):
            p(mf16(AC4(f, t), W4(u * 14 + f, g), X4(u, t, g)))
            if i % 2 == 0:
                n = i // 2 + LEAD4
                p.add(rd4(u * 14 + (n >> 2), n & 3))
            if i == 2 * (56 - LEAD4) - 1:
                if u == 1: p(f"v_add_u32 v{vA4}, s{s_rsl}, v{vAb}")
                p("s_waitcnt vmcnt(15) lgkmcnt(4)")
                p("s_barrier")
            elif i == 111:
                p(f"wait {W4(u*14 + 14, 0)}, {W4(u*14 + 14, 1)}, " + ", ".join(X4(1 - u, t_, g_) for t_ in range(4) for g_ in range(2)))
            elif i % 8 == 7:
                p(f"wait {W4(u*14 + f + 1, 0)}, {W4(u*14 + f + 1, 1)}")
            p.add(fill.get(i, []))
    p(f"s_cbranch_scc1 {name}_p4loop")
    p.end_loop()
    p.add(Raw("; @stamp 10"))
    main_cur = p.cur
    setup = []
    p.cur = setup

    vW5 = 21
    s_wo5, s_m05, s_hf = 68, 69, 65
    for i in range(4):
        p(f"v_accvgpr_read_b32 v{vW5+i}, a{aMEAN-4+i}")
    if SPLIT:
        p(f"""
        s_lshr_b32 s{s_hf}, s{s_j}, 3
        s_mul_i32 s{s_t0}, s{s_hf}, {1792 * 2048}
        s_lshl_b32 s{s_t1}, s{s_hf}, 11
        s_sub_u32 s{s_t1}, {4096 + 1024 - 2048}, s{s_t1}
        v_add_u32 v{vW5+2}, s{s_t1}, v{vW5}
        v_add_u32 v{vW5+3}, s{s_t1}, v{vW5+1}
        v_add_u32 v{vW5}, 4096, v{vW5}
        v_add_u32 v{vW5+1}, 4096, v{vW5+1}
        s_lshl_b32 s{s_wo5}, s{s_w}, 15""")
        srd(p, sD, pWD, 1792 * 2048 + 4096, off=s_t0, bias=-4096)
    else:
        p(f"s_lshl_b32 s{s_wo5}, s{s_w}, 16")
        srd(p, sD, pWD, FF * D * 2)
    p(f"""
    s_lshl_b32 s{s_t1}, s{s_j}, 7
    s_add_u32 s{s_wo5}, s{s_wo5}, s{s_t1}
    s_lshl_b32 s{s_m05}, s{s_w}, 12
    s_mov_b32 s{s_dsl}, 0""")

    def dma5():
        o_ = [Ins(f"s_add_u32 m0, s{s_m05}, s{s_dsl}"), Ins(f"s_add_u32 s{s_dsl}, s{s_dsl}, 16384")]
        for i in range(4):
            o_.append(Ins(f"buffer_load_dwordx4 v{vW5+i}, s[{sD}:{sD+3}], s{s_wo5} offen offset:{i*1024} lds", awr=['Lx'], nowaw=True))
        o_ += [Ins(f"s_add_u32 s{s_wo5}, s{s_wo5}, {(64 if SPLIT else 128) * 2048}"), Ins(f"s_and_b32 s{s_dsl}, s{s_dsl}, 0x1ffff")]
        return o_

    srd(p, sB, pWS, HH[1], bias=HH[0])
    s_of = s_xo
    vH = 13
    p(f"""
    s_mul_i32 s{s_t0}, s{s_tk4}, {112 * 64}
    s_mul_i32 s{s_t1}, s{s_nb}, {7 * 512}
    s_add_u32 s{s_of}, s{s_t0}, s{s_t1}
    v_lshrrev_b32 v{vt}, 5, v0
    v_mul_u32_u24 v{vt}, {112 * 1024 - 512}, v{vt}
    v_add_u32 v{vH}, v{vt}, v{vL16}
    v_add_u32 v{vH+1}, {2 * 112 * 1024}, v{vH}
    v_add_u32 v{vX1}, {112 * 1024}, v{vL16}
    s_lshr_b32 s{s_t0}, s{s_nb}, 4
    s_lshl_b32 s{s_t0}, s{s_t0}, 13
    s_lshl_b32 s{s_c}, s{s_tk4}, 2
    s_add_u32 s{s_c}, s{s_c}, {ST_CNT + 96 * 256}
    {f's_add_u32 s{s_c}, s{s_c}, s{s_t0}' if SPLIT else ''}
    """)
    p.cur = main_cur

    def glu(pr, packed):
        o_ = []
        for t in range(4):
            g = AB4 + ((2 * pr) * 4 + t) * 4
            u_ = AB4 + ((2 * pr + 1) * 4 + t) * 4
            rs_ = rr('v', vR4 + (t & 2), 2)
            sel = "op_sel_hi:[1,0]" if t % 2 == 0 else "op_sel:[0,1]"
            if packed:
                o_ += [f"v_pk_mul_f32 {rr('v', g+r, 2)}, {rr('v', g+r, 2)}, {rs_} {sel}" for r in (0, 2)]
                o_ += [f"v_exp_f32 v{g+r}, v{g+r}" for r in range(4)]
                o_ += [f"v_pk_add_f32 {rr('v', g+r, 2)}, {rr('v', g+r, 2)}, 1.0 op_sel_hi:[1,0]" for r in (0, 2)]
                o_ += [f"v_rcp_f32 v{g+r}, v{g+r}" for r in range(4)]
                o_ += [f"v_pk_mul_f32 {rr('v', u_+r, 2)}, {rr('v', u_+r, 2)}, {rr('v', g+r, 2)}" for r in (0, 2)]
            else:
                o_ += [f"v_mul_f32 v{g+r}, v{vR4+t}, v{g+r}" for r in range(4)]
                o_ += [f"v_exp_f32 v{g+r}, v{g+r}" for r in range(4)]
                o_ += [f"v_add_f32 v{g+r}, 1.0, v{g+r}" for r in range(4)]
                o_ += [f"v_rcp_f32 v{g+r}, v{g+r}" for r in range(4)]
                o_ += [f"v_mul_f32 v{u_+r}, v{u_+r}, v{g+r}" for r in range(4)]
            d_ = AB4 + ((2 * pr) * 4 + (t & 2)) * 4 + (t & 1) * 2
            o_ += [f"v_cvt_pk_bf16_f32 v{d_}, v{u_}, v{u_+1}", f"v_cvt_pk_bf16_f32 v{d_+1}, v{u_+2}, v{u_+3}"]
            if t & 1:
                o_ += [f"v_permlane32_swap_b32 v{d_-2}, v{d_}", f"v_permlane32_swap_b32 v{d_-1}, v{d_+1}",
                       f"buffer_store_dwordx4 {rr('v', d_-2, 4)}, v{vH + (t >> 1)}, s[{sB}:{sB+3}], s{s_of} offen offset:{pr*512} sc1"]
        return [Ins(x) for x in o_]

    W4B = lambda q, g: rr('a', WB4B + (q % NWR) * 8 + g * 4, 4)
    p("s_waitcnt vmcnt(0)")
    p("s_barrier")
    for n in range(4):
        p.add(rd4(0, n, 1, WB4B))
    cost = lambda x: 8 if x.kind == 'trans' else 0 if x.kind == 'vmem' else 4
    pend = []
    for pr in range(7):
        work = setup if pr == 0 else glu(pr - 1, False)
        side = dma5() if pr >= 1 else []
        tot = sum(cost(x) for x in work)
        done, wi = 0, 0
        for ff in range(2):
            f = 2 * pr + ff
            if f == 0: order = [(t, k) for t in range(4) for k in (0, 1)] + [(t, k) for t in range(4) for k in (2, 3)]
            else: order = [(t, k) for t in range(4) for k in range(4)]
            rds = [rd4(f + 1, n, 1, WB4B) for n in range(4)] if f + 1 < 14 else []
            rds += [rd4(f + 2, n, 0) for n in range(4)] if f + 2 < 14 else []
            for i, (t, k) in enumerate(order):
                p(mf16(AC4(f, t), W4(f, k) if k < 2 else W4B(f, k - 2), X4(0 if k < 2 else 2, t, k & 1)))
                if i % 2 == 0:
                    if rds: p.add(rds.pop(0))
                elif i == 15:
                    if f < 13: p(f"wait {W4(f+1, 0)}, {W4(f+1, 1)}, {W4B(f+1, 0)}, {W4B(f+1, 1)}")
                elif pend:
                    p.add(pend.pop(0))
                elif side:
                    p.add(side.pop(0))
                gap = ff * 16 + i + 1
                while wi < len(work) and done + cost(work[wi]) / 2 <= tot * gap / 32:
                    if work[wi].kind == 'vmem': pend.append(work[wi])
                    else: p.add(work[wi])
                    done += cost(work[wi]); wi += 1
        assert wi == len(work) and not side
    p.add(pend)
    p.add(glu(6, True))
    p.add(Raw("; @stamp 11"))
    arrive(p, s_c)

    sh5 = sh8 if SPLIT else sh4
    NA5 = 64 if SPLIT else 32
    vHF = 176
    STG = 131072
    vL, vG = 30, 15
    s_ro, s_fl, s_xs = 66, 67, 72
    p(f"""
    s_lshr_b32 s{s_c}, s{s_tok}, 6
    s_lshl_b32 s{s_c}, s{s_c}, 8
    s_add_u32 s{s_c}, s{s_c}, {ST_CNT + 96 * 256}
    s_mul_i32 s{s_xo}, s{s_tok}, {112 * 64}""")
    if SPLIT:
        p(f"""
        s_lshl_b32 s{s_t0}, s{s_hf}, 13
        s_add_u32 s{s_c}, s{s_c}, s{s_t0}
        s_mul_i32 s{s_t0}, s{s_hf}, {56 * 1024}
        s_add_u32 s{s_xo}, s{s_xo}, s{s_t0}
        s_lshl_b32 s{s_t0}, s{s_b}, 4
        s_add_u32 s{s_t0}, s{s_t0}, s{s_j}
        s_lshl_b32 s{s_fl}, s{s_t0}, 8
        s_lshl_b32 s{s_t1}, s{s_w}, 2
        s_add_u32 s{s_fl}, s{s_fl}, s{s_t1}
        s_add_u32 s{s_fl}, s{s_fl}, {ST_CNT + 128}
        s_lshl_b32 s{s_xs}, s{s_t0}, 2
        s_add_u32 s{s_xs}, s{s_xs}, s{s_w}
        s_lshl_b32 s{s_xs}, s{s_xs}, 13""")
        srd(p, sC, pWS, XC[1], bias=XC[0])
    p(f"""
    s_add_u32 s{s_xend}, s{s_xo}, {(56 if SPLIT else 112) * 1024}
    s_mul_i32 s{s_t0}, s{s_w}, 4608
    s_add_u32 s{s_t0}, s{s_t0}, {STG}
    v_and_b32 v{vt+2}, 15, v0
    v_mul_u32_u24 v{vt+2}, 144, v{vt+2}
    v_lshrrev_b32 v{vt+3}, 4, v0
    v_lshl_add_u32 v{vt+2}, v{vt+3}, 3, v{vt+2}
    v_add_u32 v{vL}, s{s_t0}, v{vt+2}
    v_lshrrev_b32 v{vt+2}, 3, v0
    v_and_b32 v{vt+3}, 7, v0
    v_lshlrev_b32 v{vt+3}, 4, v{vt+3}
    v_lshl_add_u32 v{vG}, v{vt+2}, 11, v{vt+3}
    v_mul_u32_u24 v{vt+2}, 144, v{vt+2}
    v_add3_u32 v{vL+1}, v{vt+2}, v{vt+3}, s{s_t0}
    s_lshl_b32 s{s_ro}, s{s_tok}, 11
    s_lshl_b32 s{s_t2}, s{s_j}, 7
    s_add_u32 s{s_ro}, s{s_ro}, s{s_t2}
    s_lshl_b32 s{s_t0}, s{s_tok}, 6
    s_add_u32 s{s_t0}, s{s_t0}, {ST_SSQ}
    s_mov_b32 s{s_t1}, {f32hex(1.0/1024)}
    v_mov_b32 v{vt+4}, {f32hex(1e-5)}
    """)
    srd(p, sA, pOUT, S * D * 2)
    wread_addr(12 if SPLIT else 11)
    p("s_barrier")
    for n in range(LEAD):
        p.add(sh5.rd(0, n))
    for i in range(AB3, AB3 + NA5, 2):
        p(f"v_pk_mov_b32 {rr('v', i, 2)}, 0, 0")
    for t in range(2):
        for F in range(4):
            e = aHR + (t * 2 + (F >> 1)) * 4 + (F & 1) * 2
            k = vHF + (F * 2 + t) * 4
            p(f"""
            v_accvgpr_read_b32 v{k+1}, a{e}
            v_accvgpr_read_b32 v{k+3}, a{e+1}
            v_lshlrev_b32 v{k}, 16, v{k+1}
            v_lshlrev_b32 v{k+2}, 16, v{k+3}
            v_and_b32 v{k+1}, 0xffff0000, v{k+1}
            v_and_b32 v{k+3}, 0xffff0000, v{k+3}""")
    p.add(Raw("; @stamp 12"))
    if PM[2] == '0': poll(p, f"{name}_fpoll", s_c, 16 if SPLIT else 32, vt)
    else: poll_wg(p, f"{name}_fpoll", s_c, 2, 16 if SPLIT else 32, vt, PM[2] == '2')
    p.add(Raw("; @stamp 13"))
    table_load(32, s_t0)
    for u in range(3):
        p.add(sh5.xld(u))
    rstd_from(32, vS)
    small_loop(f"{name}_p5loop", 7, sh5, dma5)
    p.add(Raw("; @stamp 14"))
    if SPLIT:
        p(f"s_add_u32 s{s_t0}, s{s_xs}, 4096")
        for n in range(8):
            p(f"buffer_store_dwordx4 {rr('v', AB3 + 32 + 4*n, 4)}, v{vL16}, s[{sC}:{sC+3}], s{s_t0 if n >= 4 else s_xs} offen offset:{(n & 3)*1024} sc1")
        p(f"""
        s_xor_b32 s{s_xs}, s{s_xs}, {8 << 15}
        s_xor_b32 s{s_t0}, s{s_t0}, {8 << 15}
        s_waitcnt vmcnt(0)
        buffer_store_dword v{vOne}, v{vZ}, s[{sT}:{sT+3}], s{s_fl} offen sc1
        s_xor_b32 s{s_fl}, s{s_fl}, {8 << 8}""")
        if 'tail' in dbg: p.add(Raw("; @stamp 0"))
    for t in range(2):
        sel = "op_sel_hi:[1,0,1]" if t == 0 else "op_sel:[0,1,0]"
        for F in range(4):
            for r in (0, 2):
                a, k = AB3 + (F * 2 + t) * 4 + r, vHF + (F * 2 + t) * 4 + r
                p(f"v_pk_fma_f32 {rr('v', k, 2)}, {rr('v', a, 2)}, {rr('v', vS, 2)}, {rr('v', k, 2)} {sel}")
    if SPLIT:
        poll(p, f"{name}_xpoll", s_fl, 1, vt)
        if 'tail' in dbg: p.add(Raw("; @stamp 1"))
        for n in (0, 2, 4, 6, 1, 3, 5, 7):
            p(f"buffer_load_dwordx4 {rr('v', AB3 + 4*n, 4)}, v{vL16}, s[{sC}:{sC+3}], s{s_t0 if n >= 4 else s_xs} offen offset:{(n & 3)*1024} sc1")
    for t in range(2):
        sel = "op_sel_hi:[1,0,1]" if t == 0 else "op_sel:[0,1,0]"
        for F in range(4):
            a, k = AB3 + (F * 2 + t) * 4, vHF + (F * 2 + t) * 4
            if SPLIT:
                for r in (0, 2):
                    p(f"v_pk_fma_f32 {rr('v', k+r, 2)}, {rr('v', a+r, 2)}, {rr('v', vS, 2)}, {rr('v', k+r, 2)} {sel}")
            p(f"v_cvt_pk_bf16_f32 v{k}, v{k}, v{k+1}\nv_cvt_pk_bf16_f32 v{k+1}, v{k+2}, v{k+3}")
            p(f"ds_write_b64 v{vL}, v[{k}:{k+1}] offset:{t*16*144 + F*32}")
        for n in range(2):
            p(f"ds_read_b128 {rr('v', 208 + (t*2+n)*4, 4)}, v{vL+1} offset:{(t*2+n)*8*144}")
    if 'tail' in dbg: p.add(Raw("; @stamp 2"))
    for n in range(4):
        p(f"buffer_store_dwordx4 {rr('v', 208 + n*4, 4)}, v{vG}, s[{sA}:{sA+3}], s{s_ro} offen")
        if n < 3: p(f"s_add_u32 s{s_ro}, s{s_ro}, {8 * 2048}")
    p(f"{name}_end:")
    p("s_endpgm")

    slow = p.segment()
    p(f"{name}_slow:")
    p.fence()
    for x in range(2):
        p(f"v_mov_b32 v{Nb(x)}, 0xff800000")
    p(f"s_mov_b32 s{s_ko}, 0")
    p.begin_loop(f"{name}_max_loop", 64, align=False)
    p.add([kld(0, 0), kld(0, 1)])
    for x in range(2):
        p(mf32(rr('v', Sb(x), 16), Kf(0, 0), Q(x, 0), "0"))
        p(mf32(rr('v', Sb(x), 16), Kf(0, 1), Q(x, 1)))
    for x in range(2):
        for i in range(0, 16, 2):
            p(f"v_max3_f32 v{Nb(x)}, v{Nb(x)}, v{Sb(x)+i}, v{Sb(x)+i+1}")
    p(f"""
    s_add_u32 s{s_ko}, s{s_ko}, 4096
    s_cmp_lg_u32 s{s_ko}, {64 * 4096}
    s_cbranch_scc1 {name}_max_loop""")
    p.end_loop()
    for x in range(2):
        p(f"""
        v_mov_b32 v{vt}, v{Nb(x)}
        v_permlane32_swap_b32 v{Nb(x)}, v{vt}
        v_max_f32 v{Nb(x)}, v{Nb(x)}, v{vt}
        v_sub_f32 v{Nb(x)}, 0, v{Nb(x)}""")
        for i in range(1, 16):
            p(f"v_mov_b32 v{Nb(x)+i}, v{Nb(x)}")
    fill_kv()
    attention('safe', lambda y: rr('v', Nb(y), 16), False)
    p.fence()
    p(f"s_branch {name}_fin")
    p.paths = [[main, red_w, rest], [main, fin, fin_k, rest], [main, fin, fin_v, rest], [slow]]
    return p
```

```python
from common import *

LDS_TOTAL = 163840
ST_MR = 0x0000
ST_RS2 = 0x4000
ST_MP = 0x28000
ST_CNT = 0x48000
ST_HCR = 0x58000
SPIN = 1 << 20

pX, pWQ, pWK, pWV, pWO, pWG, pWU, pWD, pOUT, pDBG, pWS = 4, 6, 8, 10, 12, 16, 18, 20, 22, 24, 26
sA, sB, sC, sD, sE, sT = 28, 32, 36, 40, 44, 48
s_w, s_b, s_j, s_tok, s_t0, s_t1, s_t2, s_cnt, s_spin = 52, 53, 54, 55, 56, 57, 58, 59, 60
vL16, vZ, vOne = 1, 2, 3
aMEAN, aHR = 238, 240


def srd(p, s, ptr, size, off=None, bias=0):
    if off is not None:
        p(f"s_add_u32 s{s}, s{ptr}, s{off}\ns_addc_u32 s{s+1}, s{ptr+1}, 0")
        ptr = s
    if bias > 0:
        p(f"s_add_u32 s{s}, s{ptr}, {hex(bias)}\ns_addc_u32 s{s+1}, s{ptr+1}, 0")
    elif bias < 0:
        p(f"s_sub_u32 s{s}, s{ptr}, {hex(-bias)}\ns_subb_u32 s{s+1}, s{ptr+1}, 0")
    elif off is None:
        p(f"s_mov_b64 s[{s}:{s+1}], s[{ptr}:{ptr+1}]")
    if isinstance(size, str):
        p(size.format(d=f"s{s+2}"))
    else:
        p(f"s_mov_b32 s{s+2}, {hex(size)}")
    p(f"s_mov_b32 s{s+3}, 0x20000")


def arrive(p, soff):
    p("s_waitcnt vmcnt(0)")
    p(f"buffer_atomic_add v{vOne}, v{vZ}, s[{sT}:{sT+3}], s{soff} offen")


SLEEP = [0]


def poll(p, label, soff, target, vtmp):
    p(f"s_mov_b32 s{s_spin}, {SPIN}")
    p.add(Raw(f"""    s_branch {label}_go
{label}:
    {f's_sleep {SLEEP[0]}' if SLEEP[0] else ''}
{label}_go:
    buffer_load_dword v{vtmp}, v{vZ}, s[{sT}:{sT+3}], s{soff} offen sc1
    s_sub_u32 s{s_spin}, s{s_spin}, 1
    s_waitcnt vmcnt(0)
    v_readfirstlane_b32 s{s_t2}, v{vtmp}
    s_nop 0
    s_cselect_b32 s{s_t2}, {target}, s{s_t2}
    s_cmp_lt_u32 s{s_t2}, {target}
    s_cbranch_scc1 {label}"""))
    p("s_waitcnt vmcnt(0)")


def poll_wg(p, label, soff, n, target, vtmp, allw):
    p(f"""
    s_mov_b32 s{s_spin}, {SPIN}
    v_and_b32 v{vtmp+1}, {n-1}, v0
    v_lshlrev_b32 v{vtmp+1}, 8, v{vtmp+1}
    s_andn2_b32 s{s_t2}, s{soff}, {(n-1) << 8}""")
    p.add(Raw(("" if allw else f"    s_cmp_lg_u32 s{s_w}, 0\n    s_cbranch_scc1 {label}_done\n") + f"""{label}:
    buffer_load_dword v{vtmp}, v{vtmp+1}, s[{sT}:{sT+3}], s{s_t2} offen sc1
    s_sub_u32 s{s_spin}, s{s_spin}, 1
    s_waitcnt vmcnt(0)
    v_cmp_gt_u32 vcc, {target}, v{vtmp}
    s_cbranch_scc1 {label}_done
    s_nop 0
    s_cbranch_vccnz {label}
{label}_done:"""))
    if not allw:
        p("s_barrier")


def spread(vm, start, step):
    fill, pos = {}, start
    for ins in vm:
        fill.setdefault(pos, []).append(ins)
        if ins.kind == 'vmem':
            pos += step
    return fill


def gen_fused(name, o):
    dbg = o.get('dbg', '')
    SLEEP[0] = o.get('sleep', 0)
    KVSC = 'sc1' if o.get('kvsc1', False) else ''
    p = Prog()
    main = p.segment()
    p(f"""
    s_cmp_ge_u32 s2, 256
    s_cbranch_scc1 {name}_end
    s_load_dwordx16 s[4:19], s[0:1], 0
    s_load_dwordx8 s[20:27], s[0:1], 64
    v_lshrrev_b32 v1, 6, v0
    v_and_b32 v0, 63, v0
    v_readfirstlane_b32 s{s_w}, v1
    s_and_b32 s{s_t0}, s2, 7
    s_lshr_b32 s{s_t1}, s2, 3
    s_lshr_b32 s{s_b}, s{s_t0}, 1
    s_lshl_b32 s{s_b}, s{s_b}, 2
    s_and_b32 s{s_j}, s{s_t1}, 3
    s_add_u32 s{s_b}, s{s_b}, s{s_j}
    s_and_b32 s{s_j}, s{s_t0}, 1
    s_lshl_b32 s{s_j}, s{s_j}, 3
    s_lshr_b32 s{s_t1}, s{s_t1}, 2
    s_add_u32 s{s_j}, s{s_j}, s{s_t1}
    {f"s_xor_b32 s{s_j}, s{s_j}, {o['jxor']}" if o.get('jxor') else ''}
    s_lshl_b32 s{s_tok}, s{s_b}, 2
    s_add_u32 s{s_tok}, s{s_tok}, s{s_w}
    s_lshl_b32 s{s_tok}, s{s_tok}, 5
    v_lshlrev_b32 v{vL16}, 4, v0
    v_cmp_eq_u32 vcc, 0, v0
    v_mov_b32 v{vOne}, 0x7ffffff0
    v_cndmask_b32 v{vZ}, v{vOne}, 0, vcc
    v_mov_b32 v{vOne}, 1
    """)

    SL = 24576
    RED, CSQ = 147456, 162816
    vt = 4
    vD = 12
    vD0 = 18
    vB = 22
    vA = 28
    vST = 34
    ONES = 36
    vRS = 40
    s_kv, s_xoff, s_woff, s_dm, s_pb, s_w6 = 61, 62, 63, 64, 65, 66
    s_hd, s_wdo, s_wm0, s_po, s_pk, s_ko, s_vo, s_pj = 67, 68, 69, 70, 71, 72, 73, 3
    p(f"""
    v_lshrrev_b32 v{vt}, 3, v0
    v_lshrrev_b32 v{vt+1}, 4, v0
    v_and_b32 v{vt+2}, 7, v0
    v_xor_b32 v{vt+3}, v{vt+1}, v{vt+2}
    v_lshlrev_b32 v{vt+3}, 4, v{vt+3}
    v_lshl_add_u32 v{vt+3}, v{vt}, 11, v{vt+3}
    v_xor_b32 v{vt+4}, 64, v{vt+3}
    v_add_u32 v{vD}, 4096, v{vt+3}
    v_add_u32 v{vD+1}, {16384 + 4096 - 1024}, v{vt+4}
    v_add_u32 v{vD0}, {128 + 4096 - 2048}, v{vt+3}
    v_add_u32 v{vD0+1}, {16384 + 128 + 4096 - 3072}, v{vt+4}
    v_lshrrev_b32 v{vt+5}, 5, v0
    v_lshlrev_b32 v{vt+5}, 1, v{vt+5}
    v_xor_b32 v{vt+5}, v{vt+5}, v0
    v_lshlrev_b32 v{vD0+2}, 4, v{vt+5}
    v_add_u32 v{vD+2}, {32768 + 4096 - 2048}, v{vt+3}
    v_add_u32 v{vD+3}, {32768 + 16384 + 4096 - 3072}, v{vt+4}
    v_and_b32 v{vt+1}, 1, v{vt+1}
    v_lshlrev_b32 v{vt+1}, 1, v{vt+1}
    v_xor_b32 v{vt+1}, v{vt+1}, v{vt+2}
    v_lshlrev_b32 v{vt+1}, 4, v{vt+1}
    v_lshl_add_u32 v{vD+4}, v{vt}, 11, v{vt+1}
    v_xor_b32 v{vD+5}, 64, v{vD+4}
    v_add_u32 v{vD+5}, {8*2048 - 1024}, v{vD+5}
    s_lshr_b32 s{s_t0}, s{s_j}, 1
    s_lshl_b32 s{s_kv}, s{s_b}, 3
    s_add_u32 s{s_kv}, s{s_kv}, s{s_t0}
    s_lshl_b32 s{s_kv}, s{s_kv}, 4
    s_lshl_b32 s{s_t0}, s{s_kv}, 11
    s_lshl_b32 s{s_t1}, s{s_w}, 9
    s_add_u32 s{s_t0}, s{s_t0}, s{s_t1}
    s_add_u32 s{s_t1}, s{s_w}, 2
    s_mul_i32 s{s_dm}, s{s_t1}, {SL}
    s_mov_b32 m0, s{s_dm}
    s_mul_i32 s{s_xoff}, s{s_b}, {128 * o.get('rotb', 4)}
    s_mul_i32 s{s_woff}, s{s_j}, {128 * o.get('rotj', 2)}
    s_add_u32 s{s_xoff}, s{s_xoff}, s{s_woff}
    s_and_b32 s{s_xoff}, s{s_xoff}, 2047
    s_mul_i32 s{s_w6}, s{s_w}, 6144
    s_lshl_b32 s{s_ko}, s{s_w}, 14
    """)
    srd(p, sA, pX, S * D * 2 + 4096, bias=-4096)
    p.add(Raw("; @fine 4"))
    xo = [vD, vD + 1, vD0, vD0 + 1]
    for n in range(8):
        if n == 4:
            p(f"s_add_u32 m0, m0, 4096\ns_add_u32 s{s_t0}, s{s_t0}, 256")
        p(f"buffer_load_dwordx4 v{xo[n & 3]}, s[{sA}:{sA+3}], s{s_t0} offen offset:{(n & 3) * 1024} lds", awr=['P00'], nowaw=True)
    p(f"""
    s_bitcmp0_b32 s{s_j}, 0
    s_cselect_b64 s[{sB}:{sB+1}], s[{pWK}:{pWK+1}], s[{pWV}:{pWV+1}]
    s_mov_b32 s{sB+2}, {D * 64}
    s_mov_b32 s{sB+3}, 0x20000
    """)

    def wkv(q):
        p("s_add_u32 m0, m0, 4096")
        if q: p(f"s_add_u32 s{s_ko}, s{s_ko}, 4096")
        for i in range(4):
            p(f"buffer_load_dwordx4 v{vD0+2}, s[{sB}:{sB+3}], s{s_ko} offen offset:{i*1024} lds", awr=[f'P0{q}'], nowaw=True)
    EARLY = o.get('early', 1)
    for q in range(EARLY): wkv(q)
    p.add(Raw("; @fine 5"))
    p(f"""
    s_lshl_b32 s{s_t0}, s{s_tok}, 11
    s_lshl_b32 s{s_t1}, s{s_w}, 15
    s_lshl_b32 s{s_t2}, s{s_j}, 7
    s_add_u32 s{s_t1}, s{s_t1}, s{s_t2}
    """)
    srd(p, sC, pX, 32 * 2048 + 4096, off=s_t0, bias=-4096)
    srd(p, sD, pWQ, f"s_sub_u32 {{d}}, {D * D * 2}, s{s_t1}", off=s_t1)

    def dma1(m0expr, tag):
        o_ = [Ins(m0expr), Ins(f"s_lshl_b32 s{s_woff}, s{s_xoff}, 10")]
        for i in range(4):
            o_.append(Ins(f"buffer_load_dwordx4 v{vD+i}, s[{sC}:{sC+3}], s{s_xoff} offen offset:{i*1024} lds", awr=[tag], nowaw=True))
        o_ += [Ins("s_add_u32 m0, m0, 4096"), Ins(f"s_add_u32 s{s_xoff}, s{s_xoff}, 128")]
        for i in range(2):
            o_.append(Ins(f"buffer_load_dwordx4 v{vD+4+i}, s[{sD}:{sD+3}], s{s_woff} offen offset:{i*1024} lds", awr=[tag], nowaw=True))
        o_.append(Ins(f"s_and_b32 s{s_xoff}, s{s_xoff}, 2047"))
        return o_
    if o.get('qtouch', True):
        srd(p, sE, pWQ, D * D * 2)
        p(f"""
        s_lshr_b32 s{s_t0}, s2, 3
        s_lshl_b32 s{s_t0}, s{s_t0}, 2
        s_add_u32 s{s_t0}, s{s_t0}, s{s_w}
        s_lshl_b32 s{s_t0}, s{s_t0}, 14
        s_and_b32 s{s_t1}, s{s_j}, 8
        s_lshl_b32 s{s_t1}, s{s_t1}, 7
        s_add_u32 s{s_t0}, s{s_t0}, s{s_t1}
        v_lshlrev_b32 v{vt+6}, 11, v0
        s_mov_b64 exec, 0xff""")
        p(f"buffer_load_dword v255, v{vt+6}, s[{sE}:{sE+3}], s{s_t0} offen offset:384", nowaw=True)
        p.cur[-1].awr = set()
        p("s_mov_b64 exec, -1")
    srd(p, sE, pWO, D * D * 2)
    srd(p, sT, pWS, ST[1], bias=ST[0])
    srd(p, sA, pWS, KV[1], bias=KV[0])
    p(f"""
    v_and_b32 v{vt}, 15, v0
    v_lshrrev_b32 v{vt+1}, 1, v{vt}
    v_lshrrev_b32 v{vt+2}, 4, v0
    v_xor_b32 v{vt+1}, v{vt+1}, v{vt+2}
    v_lshlrev_b32 v{vt+1}, 4, v{vt+1}
    v_lshl_add_u32 v{vt+1}, v{vt}, 7, v{vt+1}
    v_xor_b32 v{vt+3}, 64, v{vt+1}
    v_add_u32 v{vB}, s{s_w6}, v{vt+1}
    v_add_u32 v{vB+1}, s{s_w6}, v{vt+3}
    v_add_u32 v{vA}, s{s_dm}, v{vt+1}
    v_add_u32 v{vA+1}, s{s_dm}, v{vt+3}
    v_lshrrev_b32 v{vt}, 5, v0
    v_and_b32 v{vt+1}, 3, v0
    v_lshlrev_b32 v{vt+1}, 3, v{vt+1}
    v_bfe_u32 v{vt+2}, v0, 2, 2
    v_bfe_u32 v{vt+3}, v0, 4, 1
    v_lshl_add_u32 v{vt+2}, v{vt+3}, 3, v{vt+2}
    v_lshl_add_u32 v{vt+4}, v{vt}, 10, v{vt+1}
    v_lshl_add_u32 v{vt+4}, v{vt+2}, 6, v{vt+4}
    v_lshl_add_u32 v{vt+4}, v{vt+3}, 5, v{vt+4}
    v_add_u32 v{vA+2}, s{s_dm}, v{vt+4}
    v_xor_b32 v{vA+3}, 32, v{vA+2}
    v_mul_u32_u24 v{vt}, 6144, v{vt}
    v_add_u32 v{vt}, v{vt}, v{vt+1}
    v_lshl_add_u32 v{vt}, v{vt+2}, 7, v{vt}
    v_bfe_u32 v{vt+4}, v0, 3, 2
    v_xor_b32 v{vt+4}, s{s_w}, v{vt+4}
    v_lshl_add_u32 v{vB+2}, v{vt+4}, 5, v{vt}
    v_xor_b32 v{vB+3}, 32, v{vB+2}
    v_xor_b32 v{vB+4}, 64, v{vB+2}
    v_xor_b32 v{vB+5}, 0x60, v{vB+2}
    """)
    for i in range(4):
        p(f"v_mov_b32 v{ONES+i}, 0x3f803f80")
    on = rr('v', ONES, 4)
    AB = 48
    CSA = 80
    PA = 84
    FB = 128
    TR = 112
    NR = 8
    Q = lambda x, m: rr('v', 16 + x * 8 + m * 4, 4)
    Sb = lambda x: 64 + 16 * x
    RSV = 112
    Nb = lambda x: 144 + 16 * x
    Ob = lambda x: 176 + 16 * x
    Lb = lambda x: 208 + 4 * x
    Pb = lambda x: 216 + 8 * x
    SEL, vWD, vPF, vDum, vOS, vPW, vCS, vGP, vMA, vFF = 232, 236, 240, 241, 242, 243, 244, 245, 246, 248

    def att_init():
        for i in list(range(Ob(0), Lb(1) + 4, 2)) + list(range(Pb(1), Pb(1) + 8, 2)):
            p(f"v_pk_mov_b32 {rr('v', i, 2)}, 0, 0")
        for i in range(8): p(f"v_accvgpr_write_b32 a{64 + (NR-1)*8 + i}, 0")
    for i in range(AB, CSA + 4, 2):
        p(f"v_pk_mov_b32 {rr('v', i, 2)}, 0, 0")
    att_init()
    for i in range(4):
        p(f"v_mov_b32 v{vFF+i}, -1")
    p(f"""
    v_lshrrev_b32 v{vt}, 2, v0
    v_and_b32 v{vt}, 4, v{vt}
    v_xor_b32 v{vt}, v{vt}, v0
    v_and_b32 v{vt}, 7, v{vt}
    v_cmp_eq_u32 vcc, 0, v{vt}
    v_lshrrev_b32 v{vt}, 3, v0
    v_and_b32 v{vt+1}, 6, v{vt}
    v_cndmask_b32 v{SEL}, 0, v{ONES}, vcc
    v_mov_b32 v{SEL+1}, v{SEL}
    v_mov_b32 v{SEL+2}, v{SEL}
    v_mov_b32 v{SEL+3}, v{SEL}
    v_and_b32 v{vt+2}, 7, v0
    v_xor_b32 v{vt+1}, v{vt+1}, v{vt+2}
    v_lshlrev_b32 v{vt+1}, 4, v{vt+1}
    v_lshl_add_u32 v{vWD}, v{vt}, 11, v{vt+1}
    v_add_u32 v{vWD+1}, {8*2048 - 1024}, v{vWD}
    v_add_u32 v{vWD+2}, {16*2048 - 2048}, v{vWD}
    v_add_u32 v{vWD+3}, {24*2048 - 3072}, v{vWD}
    s_lshl_b32 s{s_wdo}, s{s_w}, 16
    s_lshl_b32 s{s_t1}, s{s_j}, 7
    s_add_u32 s{s_wdo}, s{s_wdo}, s{s_t1}
    s_lshl_b32 s{s_wm0}, s{s_w}, 12
    s_lshl_b32 s{s_pj}, s{s_tok}, 6
    s_add_u32 s{s_pj}, s{s_pj}, s{s_t1}
    s_lshl_b32 s{s_hd}, s{s_j}, 1
    s_lshr_b32 s{s_t0}, s{s_w}, 1
    s_add_u32 s{s_hd}, s{s_hd}, s{s_t0}
    v_mul_u32_u24 v{vt}, 9363, v0
    v_lshrrev_b32 v{vt}, 16, v{vt}
    v_mul_u32_u24 v{vt+1}, {7168 - 7*128}, v{vt}
    v_cmp_gt_u32 vcc, 14, v0
    v_lshl_add_u32 v{vPF}, v0, 7, v{vt+1}
    s_lshr_b32 s{s_t0}, s2, 3
    v_cndmask_b32 v{vPF}, -1, v{vPF}, vcc
    v_and_b32 v{vPF}, 0x7fffff80, v{vPF}
    s_lshl_b32 s{s_t0}, s{s_t0}, 2
    s_add_u32 s{s_t0}, s{s_t0}, s{s_w}
    s_mul_i32 s{s_pk}, s{s_t0}, {2 * 7168}
    s_and_b32 s{s_t0}, s2, 7
    s_mul_i32 s{s_t0}, s{s_t0}, 896
    s_add_u32 s{s_pk}, s{s_pk}, s{s_t0}
    s_mov_b32 s{s_po}, s{s_pk}
    v_and_b32 v{vt}, 15, v0
    v_bfe_u32 v{vt+1}, v0, 4, 1
    v_lshrrev_b32 v{vt+2}, 5, v0
    v_lshrrev_b32 v{vt+3}, 4, v0
    v_lshlrev_b32 v{vMA}, 3, v{vt}
    v_lshl_add_u32 v{vPW}, v{vt+3}, 2, v{vMA}
    v_lshlrev_b32 v{vt}, 4, v{vt}
    v_lshl_add_u32 v{vOS}, v{vt+1}, 15, v{vt}
    v_lshl_add_u32 v{vOS}, v{vt+2}, 8, v{vOS}
    s_lshl_b32 s{s_t0}, s{s_w}, 6
    s_add_u32 s{s_t0}, s{s_t0}, {CSQ}
    v_lshl_add_u32 v{vCS}, v{vt+3}, 4, s{s_t0}
    v_and_b32 v{vGP}, {o.get('gcnt', 2) - 1}, v0
    v_lshlrev_b32 v{vGP}, {7 if o.get('gcnt', 2) == 2 else 6}, v{vGP}
    s_bitcmp1_b32 s{s_j}, 0
    s_cselect_b32 s{s_t0}, 9, 10
    s_cselect_b32 s{s_t1}, 3, 9
    v_lshl_add_u32 v{vST}, v{vt+1}, s{s_t0}, v{vt}
    v_lshl_add_u32 v{vST}, v{vt+2}, s{s_t1}, v{vST}
    s_mul_i32 s{s_t0}, s{s_w}, 5120
    s_add_u32 s{s_t0}, s{s_t0}, {RED - 5120}
    v_add_u32 v{vST+1}, s{s_t0}, v{vL16}
    v_and_b32 v{vt}, 3, v0
    v_cmp_eq_u32 s[0:1], 1, v{vt}
    v_cmp_eq_u32 s[14:15], 2, v{vt}
    v_cmp_eq_u32 s[74:75], 3, v{vt}
    v_bfe_u32 v{vt}, v0, 2, 2
    v_cmp_eq_u32 vcc, v{vt}, v{vt+3}
    """)
    for q in range(EARLY, 4): wkv(q)
    srd(p, sB, pDBG, 256)
    p(f"""
    s_lshl_b32 s{s_t0}, s2, 2
    s_add_u32 s{s_t0}, s{s_t0}, s{s_w}
    s_lshl_b32 s{s_t0}, s{s_t0}, {21 if 'nors' in dbg else 11}
    buffer_load_dwordx4 {rr('v', vRS, 4)}, v{vL16}, s[{sE}:{sE+3}], s{s_t0} offen
    buffer_load_dwordx4 {rr('v', vRS+4, 4)}, v{vL16}, s[{sE}:{sE+3}], s{s_t0} offen offset:1024
    """)
    p.add(Raw("; @stamp 0"))
    X0 = lambda G: rr('a', FB + 4 * G, 4)
    W0 = lambda G, e: rr('a', FB + 32 + (G * 2 + e) * 4, 4)
    acc0 = lambda k: rr('v', PA + 4 * k, 4)

    def rd0(q):
        o_ = []
        for G in (2 * q, 2 * q + 1):
            o_.append(Ins(f"ds_read_b128 {X0(G)}, v{vA + (G & 1)} offset:{q * 2048}", rd=[f'P0{q}']))
            o_ += [Ins(f"ds_read_b64_tr_b16 {rr('a', FB + 32 + (G*2+e)*4 + 2*b, 2)}, v{vA+2+e} offset:{8192 + G*2048 + b*256}")
                   for e in range(2) for b in range(2)]
        return o_

    def mf0(q):
        o_ = []
        for G in (2 * q, 2 * q + 1):
            c = "0" if G == 0 else None
            o_ += [mf16(acc0(4), on, X0(G), c), mf16(acc0(5), X0(G), X0(G), c), mf16(acc0(0), W0(G, 0), X0(G), c),
                   mf16(acc0(2), W0(G, 0), on, c), mf16(acc0(1), W0(G, 1), X0(G), c), mf16(acc0(3), W0(G, 1), on, c)]
        return o_
    p.add(rd0(0))
    p.add(Raw("; @fine 6"))
    later = dma1(f"s_mov_b32 m0, s{s_w6}", 'L0') + dma1(f"s_add_u32 m0, s{s_w6}, {SL}", 'Lx')

    def some(k):
        n = 0
        while later and n < k:
            x = later.pop(0); p.add(x); n += x.kind == 'vmem'
    RSA = PA + 24
    for q in range(4):
        rds = rd0(q + 1) if q < 3 else []
        for i, m in enumerate(mf0(q)):
            p(m)
            if rds: p.add(rds.pop(0))
            if i % 4 == 1: some(1)
    p(mf16(rr('v', RSA, 4), on, rr('v', vRS, 4), "0"))
    p(mf16(rr('v', RSA, 4), on, rr('v', vRS + 4, 4)))
    some(99)
    p.add(Raw("; @fine 7"))
    g = PA + 20
    p(f"""
    v_cndmask_b32 v{g}, v{g}, v{g+1}, s[0:1]
    v_cndmask_b32 v{g}, v{g}, v{g+2}, s[14:15]
    v_cndmask_b32 v{g}, v{g}, v{g+3}, s[74:75]
    v_cndmask_b32 v{PA+17}, 0, v{g}, vcc
    v_cmp_eq_u32 vcc, s{s_w}, v0""")
    for k in (8, 4, 2, 1):
        p(f"v_add_f32_dpp v{RSA}, v{RSA}, v{RSA} row_ror:{k} row_mask:0xf bank_mask:0xf")
    p(f"""
    v_cndmask_b32 v{PA+18}, 0, v{RSA}, vcc
    s_cmp_eq_u32 s{s_w}, 0
    s_cbranch_scc1 {name}_p0fin
    """)
    red_w = p.segment()
    for k in (4, 0, 2, 1, 3):
        p(f"ds_write_b128 v{vST+1}, {acc0(k)} offset:{k*1024}")
    p("s_waitcnt lgkmcnt(0)")
    p("s_barrier")
    p(f"s_branch {name}_p1")
    fin = p.segment()
    p(f"{name}_p0fin:")
    p(f"""
    v_lshlrev_b32 v{vt+3}, 7, v0
    s_lshl_b32 s{s_t0}, s2, 8
    s_add_u32 s{s_t0}, s{s_t0}, {ST_CNT}
    s_mov_b64 exec, 3
    buffer_store_dwordx4 {rr('v', AB, 4)}, v{vt+3}, s[{sT}:{sT+3}], s{s_t0} offen sc1
    s_mov_b64 exec, -1
    s_lshl_b32 s{s_t0}, s2, 7
    s_add_u32 s{s_t0}, s{s_t0}, {ST_HCR}
    buffer_store_dword v{AB}, v{vZ}, s[{sT}:{sT+3}], s{s_t0} offen sc1
    s_mov_b32 s{s_t1}, {f32hex(1.0/1024)}
    v_lshlrev_b32 v{vt+3}, 2, v0
    s_lshl_b32 s{s_t0}, s2, 4
    s_add_u32 s{s_t0}, s{s_t0}, {ST_RS2}""")
    p("s_barrier")
    for k in (4, 0, 2, 1, 3):
        for w in range(3):
            p(f"ds_read_b128 {rr('v', TR + (k*3+w)*4, 4)}, v{vST+1} offset:{5120*(w+1) + k*1024}")

    def red(k):
        a, b = PA + 4 * k, TR + k * 12
        for h in (0, 2):
            p(f"v_pk_add_f32 {rr('v', a+h, 2)}, {rr('v', a+h, 2)}, {rr('v', b+h, 2)}")
            p(f"v_pk_add_f32 {rr('v', b+4+h, 2)}, {rr('v', b+4+h, 2)}, {rr('v', b+8+h, 2)}")
        for h in (0, 2):
            p(f"v_pk_add_f32 {rr('v', a+h, 2)}, {rr('v', a+h, 2)}, {rr('v', b+4+h, 2)}")
    vM, vR = PA + 20, PA + 21
    d = PA + 24
    red(4)
    p(f"""
    s_mov_b64 exec, 15
    buffer_store_dword v{PA+18}, v{vt+3}, s[{sT}:{sT+3}], s{s_t0} offen sc1
    s_mov_b64 exec, -1""")
    xsum16_32(p, f"v{PA+17}", f"v{vt}")
    p(f"""
    v_mul_f32 v{vM}, s{s_t1}, v{PA+16}
    v_mul_f32 v{vt}, v{vM}, v{vM}
    v_fma_f32 v{vt}, v{PA+17}, s{s_t1}, -v{vt}
    v_max_f32 v{vt}, 0, v{vt}
    v_add_f32 v{vt}, {f32hex(1e-5)}, v{vt}
    v_rsq_f32 v{vR}, v{vt}
    s_lshr_b32 s{s_t0}, s{s_kv}, 5
    s_lshl_b32 s{s_t0}, s{s_t0}, 12
    s_bfe_u32 s{s_t1}, s{s_kv}, 0x10004
    """)
    mr = rr('v', vM, 2)
    for e in range(2):
        red(e); red(2 + e)
        a = PA + 4 * e
        for r in (0, 2): p(f"v_pk_fma_f32 {rr('v', a+r, 2)}, {rr('v', a+8+r, 2)}, {mr}, {rr('v', a+r, 2)} op_sel_hi:[1,0,1] neg_lo:[0,1,0] neg_hi:[0,1,0]")
        for r in (0, 2): p(f"v_pk_mul_f32 {rr('v', a+r, 2)}, {rr('v', a+r, 2)}, {mr} op_sel:[0,1]")
        p(f"v_cvt_pk_bf16_f32 v{d+2*e}, v{a}, v{a+1}")
        p(f"v_cvt_pk_bf16_f32 v{d+2*e+1}, v{a+2}, v{a+3}")
    p(f"""
    s_bitcmp1_b32 s{s_j}, 0
    s_cbranch_scc1 {name}_p0v
    """)
    fin_k = p.segment()
    p(f"""
    s_lshl_b32 s{s_t1}, s{s_t1}, 8
    s_add_u32 s{s_t0}, s{s_t0}, s{s_t1}
    buffer_store_dwordx4 {rr('v', d, 4)}, v{vST}, s[{sA}:{sA+3}], s{s_t0} offen sc1
    s_lshl_b32 s{s_t0}, s{s_kv}, 3
    s_mov_b64 exec, 0xffff
    buffer_store_dwordx2 {mr}, v{vMA}, s[{sT}:{sT+3}], s{s_t0} offen offset:{ST_MR} sc1
    s_mov_b64 exec, -1
    s_branch {name}_p1""")
    fin_v = p.segment()
    p(f"""
    {name}_p0v:
    v_lshrrev_b32 v{vt+1}, 4, v0
    v_add_u32 v{vt}, v{vt+1}, v{vMA}
    v_lshlrev_b32 v{vt}, 3, v{vt}
    v_add_u32 v{vt}, {RED}, v{vt}
    ds_write_b64 v{vt}, {rr('v', d, 2)}
    ds_write_b64 v{vt}, {rr('v', d+2, 2)} offset:32
    v_lshrrev_b32 v{vt+3}, 2, v0
    v_lshlrev_b32 v{vt+3}, 6, v{vt+3}
    v_and_b32 v{vt+4}, 3, v0
    v_lshl_add_u32 v{vt+3}, v{vt+4}, 3, v{vt+3}
    v_add_u32 v{vt+3}, {RED}, v{vt+3}
    ds_read_b64_tr_b16 {rr('v', PA, 2)}, v{vt+3}
    ds_read_b64_tr_b16 {rr('v', PA+2, 2)}, v{vt+3} offset:32
    s_lshl_b32 s{s_t1}, s{s_t1}, 10
    s_add_u32 s{s_t0}, s{s_t0}, s{s_t1}
    buffer_store_dwordx2 {rr('v', PA, 2)}, v{vST}, s[{sA}:{sA+3}], s{s_t0} offen offset:2048 sc1
    buffer_store_dwordx2 {rr('v', PA+2, 2)}, v{vST}, s[{sA}:{sA+3}], s{s_t0} offen offset:{2048 + 256} sc1
    """)

    rest = p.segment()
    p(f"{name}_p1:")
    p.add(Raw("; @stamp 1"))
    ACC = lambda F, t: rr('v', AB + (F * 2 + t) * 4, 4)
    X1 = lambda s, t, g: rr('a', FB + s * 48 + (t * 2 + g) * 4, 4)
    W1 = lambda s, F, g: rr('a', FB + s * 48 + 16 + (F * 2 + g) * 4, 4)

    def reads1(s, base, va):
        xr = lambda t, g: Ins(f"ds_read_b128 {X1(s, t, g)}, v{va+g} offset:{base + t*2048}")
        wr = lambda F, g, b: Ins(f"ds_read_b64_tr_b16 {rr('a', FB + s*48 + 16 + (F*2+g)*4 + 2*b, 2)}, v{va+2+F} offset:{base + 2*g*6144 + 4096 + b*512}")
        return [wr(0, 0, 0), wr(0, 0, 1), wr(0, 1, 0), wr(0, 1, 1), xr(0, 0), xr(0, 1), xr(1, 0), xr(1, 1)] + \
               [wr(F, g, b) for F in range(1, 4) for g in range(2) for b in range(2)]
    for u in range(2, 5):
        p.add(dma1(f"s_add_u32 m0, s{s_w6}, {u*SL}", 'Lx'))
    p.add(Raw("; @fine 8"))
    p("s_barrier", rd=['L0'])
    p.add(Raw("; @fine 9"))
    p.add(reads1(0, 0, vB))
    for i in range(6):
        p(f"v_mov_b32 v{vA+i}, v{vB+i}")
    GC = o.get('gcnt', 2)
    p(f"""
    s_mov_b32 s{s_pb}, {2 * SL}
    s_add_u32 s{s_dm}, s{s_w6}, {2 * 2 * SL}
    s_and_b32 s{s_kv}, s2, {GC - 1}
    s_lshl_b32 s{s_kv}, s{s_kv}, {7 if GC == 2 else 6}
    s_lshl_b32 s{s_t2}, s{s_w}, 8
    s_add_u32 s{s_t2}, s{s_t2}, 5
    s_mov_b32 s{s_cnt}, 5""")

    def stage1(s, head, fill, rds):
        mf = [mf16(rr('v', CSA, 4), W1(s, 0, g), on) for g in range(2)]
        for F in range(4):
            for t in range(2):
                mf += [mf16(ACC(F, t), W1(s, F, g), X1(s, t, g)) for g in range(2)]
        p.add(head)
        rds = list(rds)
        for i, m in enumerate(mf):
            if 'p1nomf' not in dbg: p(m)
            for _ in range(2 if i in (0, 1) else 1):
                if rds:
                    x = rds.pop(0)
                    if 'p1nods' not in dbg: p.add(x)
            p.add([x for x in fill.get(i, []) if not ('p1nodma' in dbg and getattr(x, 'kind', '') == 'vmem')])

    def one_per_gap(lst, start):
        return {start + i: [x] for i, x in enumerate(lst)}

    def spaced(lst):
        pos = [0, 1, 2, 5, 8, 11, 12, 13, 14, 17, 17]
        out = {}
        for k, x in zip(pos, lst): out.setdefault(k, []).append(x)
        return out
    upd = lambda: {3: [Ins(f"v_add_u32 v{vA+2}, s{s_pb}, v{vB+2}")], 6: [Ins(f"v_add_u32 v{vA}, s{s_pb}, v{vB}")],
                   7: [Ins(f"v_add_u32 v{vA+1}, s{s_pb}, v{vB+1}")], 10: [Ins(f"v_add_u32 v{vA+3}, s{s_pb}, v{vB+3}")],
                   15: [Ins(f"v_add_u32 v{vA+4}, s{s_pb}, v{vB+4}")], 17: [Ins(f"v_add_u32 v{vA+5}, s{s_pb}, v{vB+5}")]}
    nextpb = lambda: [Ins(f"s_add_u32 s{s_pb}, s{s_pb}, {2*SL}"), Ins(f"s_cmp_eq_u32 s{s_pb}, {6*SL}"), Ins(f"s_cselect_b32 s{s_pb}, 0, s{s_pb}")]

    def merge(*fs):
        out = {}
        for f in fs:
            for k, v in f.items(): out.setdefault(k, []).extend(v)
        return out
    sync = lambda n: [Ins(f"s_waitcnt vmcnt({n}) lgkmcnt(12)"), Ins("s_barrier")]
    s_nx = s_t0
    p(f"s_mov_b32 s{s_nx}, s{s_w6}")
    p.add(Raw("; @fine 10"))
    p.begin_loop(f"{name}_p1loop", 5, align=False)
    stage1(0, sync(18), merge(spaced(dma1(f"s_add_u32 m0, s{s_dm}, {SL}", 'Lx')[:-1]), upd(), {16: [Ins(f"s_and_b32 s{s_xoff}, s{s_xoff}, 2047")]}), reads1(1, SL, vA))
    arr = Raw(f"""    s_cmp_lg_u32 s{s_cnt}, s{s_t2}
    s_cbranch_scc1 {name}_noarr
    buffer_atomic_add v{vOne}, v{vZ}, s[{sB}:{sB+3}], s{s_kv} offen
{name}_noarr:""")
    stage1(1, sync(18) + [arr], merge({3: [Ins(f"s_mov_b32 s{s_dm}, s{s_nx}")], 4: [Ins(f"s_add_u32 s{s_nx}, s{s_pb}, s{s_w6}")],
                                        6: nextpb()[:1], 7: nextpb()[1:], 9: [Ins(f"s_sub_u32 s{s_cnt}, s{s_cnt}, 1")],
                                        15: [Ins(f"s_and_b32 s{s_xoff}, s{s_xoff}, 2047")], 16: [Ins(f"s_cmp_lg_u32 s{s_cnt}, 0")]},
                                       spaced(dma1(f"s_mov_b32 m0, s{s_nx}", 'Lx')[:-1])), reads1(0, 0, vA))
    p(f"s_cbranch_scc1 {name}_p1loop")
    p.end_loop()
    p.add(Raw("; @fine 11"))
    Kf = lambda b, m: rr('a', (b % NR) * 8 + m * 4, 4)
    Vf = lambda b, m: rr('a', 64 + (b % NR) * 8 + m * 4, 4)
    vMR = 84
    kld = lambda b, m: Ins(f"buffer_load_dwordx4 {Kf(b, m)}, v{vL16}, s[{sA}:{sA+3}], s{s_ko} offen offset:{m*1024} {KVSC}")
    vld = lambda b, m: Ins(f"buffer_load_dwordx4 {Vf(b, m)}, v{vL16}, s[{sA}:{sA+3}], s{s_vo} offen offset:{2048 + m*1024} {KVSC}")

    def kv_list():
        o_ = [Ins(f"s_mov_b32 s{s_ko}, 0"), Ins(f"s_mov_b32 s{s_vo}, 0")]
        for b in range(NR):
            o_ += [kld(b, 0), kld(b, 1), Ins(f"s_add_u32 s{s_ko}, s{s_ko}, 4096")]
            if b < NR - 2:
                o_ += [vld(b, 0), vld(b, 1), Ins(f"s_add_u32 s{s_vo}, s{s_vo}, 4096")]
        return o_

    def fill_kv():
        p.add(kv_list())
    gl = f"buffer_load_dword v{vt+5}, v{vGP}, s[{sB}:{sB+3}], 0 offen sc1"
    stage1(0, sync(18), merge(spaced(dma1(f"s_add_u32 m0, s{s_dm}, {SL}", 'Lx')[:-1]), upd(), {16: [Ins(f"s_and_b32 s{s_xoff}, s{s_xoff}, 2047")]}), reads1(1, SL, vA))
    stage1(1, sync(18), one_per_gap(nextpb(), 2), reads1(0, 0, vA))
    stage1(0, sync(12), upd(), reads1(1, SL, vA))
    stage1(1, sync(6), {2: [Ins(gl)], 3: [Ins(f"s_mov_b32 s{s_spin}, {SPIN}")], 4: [Ins(f"s_movk_i32 s{s_t1}, {256 // GC}")],
                        5: [Ins(f"s_lshl_b32 s{s_t0}, s{s_tok}, 3")]}, reads1(0, 0, vA))
    gp = Raw(f"""    s_branch {name}_gchk
{name}_gpoll:
    {gl}
    s_waitcnt vmcnt(0)
{name}_gchk:
    v_cmp_gt_u32 vcc, s{s_t1}, v{vt+5}
    s_sub_u32 s{s_spin}, s{s_spin}, 1
    s_cbranch_scc1 {name}_gdone
    s_cbranch_vccnz {name}_gpoll
{name}_gdone:""")
    todo = [Ins(f"buffer_load_dwordx2 {rr('v', vMR+2*t, 2)}, v{vMA}, s[{sT}:{sT+3}], s{s_t0} offen offset:{ST_MR + 128*t} sc1") for t in range(2)] + kv_list()

    def take(k):
        o_, n = [], 0
        while todo and n < k:
            x = todo.pop(0); o_.append(x); n += x.kind == 'vmem'
        return o_
    stage1(0, [Raw("; @fine 12")] + sync(0) + [Raw("; @fine 13"), gp, Raw("; @fine 14")], {i: take(1) for i in range(2, 18, 3)}, reads1(1, SL, vA))
    stage1(1, [], merge({i: take(1) for i in range(0, 18, 3)}, {10: [Ins(f"ds_write_b128 v{vCS}, {rr('v', CSA, 4)}")]}), [])
    p.add(Raw("; @stamp 2"))

    p("s_waitcnt lgkmcnt(0)")
    p("s_barrier")
    CS = 88
    for f in range(4):
        if f: p(f"v_xor_b32 v{vt+f}, {f*64}, v{vCS}")
        p(f"ds_read_b128 {rr('v', CS + 4*f, 4)}, v{vt+f if f else vCS}")
    XT = 131072
    QP = 112
    for t in range(2):
        p(f"v_accvgpr_write_b32 a{aMEAN+t}, v{vMR+2*t}")
        p(f"v_mul_f32 v{vMR+2*t+1}, {f32hex(LOG2E * DH ** -0.5)}, v{vMR+2*t+1}")
    p(f"s_bitcmp1_b32 s{s_w}, 0\ns_cselect_b64 vcc, -1, 0")
    for hd in range(2):
        for t in range(2):
            mr = rr('v', vMR + 2 * t, 2)
            for f in range(2):
                F = 2 * hd + f
                a = AB + (F * 2 + t) * 4
                dq = QP + hd * 8 + t * 4 + 2 * f
                for r in (0, 2): p(f"v_pk_fma_f32 {rr('v', a+r, 2)}, {rr('v', CS+4*F+r, 2)}, {mr}, {rr('v', a+r, 2)} op_sel_hi:[1,0,1] neg_lo:[0,1,0] neg_hi:[0,1,0]")
                for r in (0, 2): p(f"v_pk_mul_f32 {rr('v', a+r, 2)}, {rr('v', a+r, 2)}, {mr} op_sel:[0,1]")
                p(f"v_cvt_pk_bf16_f32 v{dq}, v{a}, v{a+1}")
                p(f"v_cvt_pk_bf16_f32 v{dq+1}, v{a+2}, v{a+3}")
                p.add(take(1))
        for i in range(8 * hd, 8 * hd + 8):
            p(f"v_cndmask_b32 v{16+i}, v{QP+i}, v{QP+(i^2)}, vcc")
        p.add(take(1))
        for i in range(4):
            p(f"v_permlane16_swap_b32 v{16+hd*8+i}, v{16+hd*8+4+i}")
    if 'Q' in dbg:
        srd(p, sB, pWS, QF[1], bias=QF[0])
        p(f"s_lshl_b32 s{s_t0}, s{s_hd}, 17\ns_lshl_b32 s{s_t1}, s{s_tok}, 6\ns_add_u32 s{s_t0}, s{s_t0}, s{s_t1}\ns_xor_b32 s{s_t1}, s{s_t0}, 0x20000")
        for x in range(2):
            for m in range(2):
                p(f"buffer_store_dwordx4 {Q(x, m)}, v{vL16}, s[{sB}:{sB+3}], s{s_t1 if x else s_t0} offen offset:{m*1024}")
    s_safe, s_fo = 65, 61
    SENT = o.get('sent', False)
    p(f"""
    s_mov_b64 s[{sD}:{sD+1}], s[{pWG}:{pWG+1}]
    s_mov_b32 s{sD+2}, {D * FF * 2 if o.get('prefetch', True) else 0}
    s_mov_b32 s{s_safe}, 0
    s_lshl_b32 s{s_fo}, s{s_b}, 4
    s_add_u32 s{s_fo}, s{s_fo}, s{s_j}
    s_lshl_b32 s{s_fo}, s{s_fo}, 2
    s_add_u32 s{s_fo}, s{s_fo}, s{s_w}
    s_lshl_b32 s{s_fo}, s{s_fo}, 13
    s_add_u32 s{s_fo}, s{s_fo}, {XC[0] - OF[0]}
    """)
    srd(p, sB, pWS, XC[0] + XC[1] - OF[0], bias=OF[0])

    def half(x, Kb, Vb, C, extra):
        y = 1 - x
        Sx, Px, Sy, Py = Sb(x), Pb(x), rr('v', Sb(y), 16), Pb(y)
        valu = []
        for i in range(8):
            valu.append(f"v_exp_f32 v{Sx+2*i}, v{Sx+2*i}")
            valu.append(f"v_exp_f32 v{Sx+2*i+1}, v{Sx+2*i+1}")
            if i > 0:
                valu.append(f"v_cvt_pk_bf16_f32 v{Px+i-1}, v{Sx+2*i-2}, v{Sx+2*i-1}")
        valu.append(f"v_cvt_pk_bf16_f32 v{Px+7}, v{Sx+14}, v{Sx+15}")
        Oy, Ly = rr('v', Ob(y), 16), rr('v', Lb(y), 4)
        sel = rr('v', SEL, 4)
        mf = [mf32(Sy, Kf(Kb, 0), Q(y, 0), C(y)), mf32(Sy, Kf(Kb, 1), Q(y, 1)),
              mf32(Oy, Vf(Vb, 0), rr('v', Py, 4)), mf16(Ly, sel, rr('v', Py, 4)),
              mf32(Oy, Vf(Vb, 1), rr('v', Py + 4, 4)), mf16(Ly, sel, rr('v', Py + 4, 4))]
        pos = (0, 4, 8, 12, 15, 19)
        for i, v in enumerate(valu):
            if i in pos:
                k = pos.index(i)
                p(mf[k])
                p.add(extra.get(k, []))
            p(v)

    def attention(tag, C, side, pre):
        p(mf32(rr('v', Sb(0), 16), Kf(0, 0), Q(0, 0), C(0)))
        p(mf32(rr('v', Sb(0), 16), Kf(0, 1), Q(0, 1)))
        p(f"s_mov_b32 s{s_cnt}, {64 // NR}")
        p.add(pre)
        p.begin_loop(f"{name}_{tag}_loop", 64 // NR)
        for kt in range(NR):
            e0 = {0: [vld(kt + NR - 2, 0)], 1: [vld(kt + NR - 2, 1)], 3: [Ins(f"s_add_u32 s{s_vo}, s{s_vo}, 4096")],
                  5: [Ins(f"wait {Kf(kt+1, 0)}, {Kf(kt+1, 1)}, {Vf(kt, 0)}, {Vf(kt, 1)}")]}
            e1 = {0: [kld(kt, 0)], 1: [kld(kt, 1)], 3: [Ins(f"s_add_u32 s{s_ko}, s{s_ko}, 4096")]}
            if side:
                if kt == 0: e0[2] = [Ins(f"s_mov_b32 m0, s{s_wm0}")]
                if kt % 2 == 0 and 'nowodma' not in dbg:
                    i = kt // 2
                    e0[4] = [Ins(f"buffer_load_dwordx4 v{vWD+i}, s[{sE}:{sE+3}], s{s_wdo} offen offset:{i*1024} lds", awr=['LW'], nowaw=True)]
                if kt == 7:
                    e0[2] = [Ins(f"s_add_u32 s{s_wdo}, s{s_wdo}, {128 * 2048}")]
                    e0[4] = [Ins(f"s_add_u32 s{s_wm0}, s{s_wm0}, 16384")]
                if kt == 3 and SENT:
                    e0[2] = [Ins(f"buffer_store_dwordx4 {rr('v', vFF, 4)}, v{vL16}, s[{sB}:{sB+3}], s{s_fo} offen sc1")]
                    e0[4] = [Ins(f"s_add_u32 s{s_fo}, s{s_fo}, 1024")]
                if kt in (1, 5):
                    e0[2] = [Ins(f"buffer_load_dword v{vDum}, v{vPF}, s[{sD}:{sD+3}], s{s_po} offen", nowaw=True)]
                    e0[4] = [Ins(f"s_add_u32 s{s_po}, s{s_po}, {256 * 7168}")]
                if kt == 5:
                    e1[2] = [Ins(f"s_cmp_eq_u32 s{s_cnt}, 7")]
                    e1[3] = [Ins(f"s_cselect_b64 s[{sD}:{sD+1}], s[{pWU}:{pWU+1}], s[{sD}:{sD+1}]")]
                    e1[4] = [Ins(f"s_cselect_b32 s{s_po}, s{s_pk}, s{s_po}")]
                    e1[5] = [Ins(f"s_add_u32 s{s_ko}, s{s_ko}, 4096")]
                if kt == 6:
                    e1[2] = [Ins(f"s_cmp_eq_u32 s{s_cnt}, 5")]
                    e1[3] = [Ins(f"s_cselect_b64 s[{sD}:{sD+1}], s[{pWD}:{pWD+1}], s[{sD}:{sD+1}]")]
                    e1[4] = [Ins(f"s_cselect_b32 s{s_po}, s{s_pk}, s{s_po}")]
                    e1[5] = [Ins(f"s_add_u32 s{s_ko}, s{s_ko}, 4096")]
            if kt == NR - 1:
                e1[4] = [Ins(f"s_sub_u32 s{s_cnt}, s{s_cnt}, 1")]
                e1[5] = [Ins(f"s_cmp_lg_u32 s{s_cnt}, 0")]
            half(0, kt, kt - 1, C, e0)
            half(1, kt + 1, kt, C, e1)
        p(f"s_cbranch_scc1 {name}_{tag}_loop")
        p.end_loop()
        O1, L1, sel = rr('v', Ob(1), 16), rr('v', Lb(1), 4), rr('v', SEL, 4)
        p(mf32(O1, Vf(NR - 1, 0), rr('v', Pb(1), 4)))
        p(mf16(L1, sel, rr('v', Pb(1), 4)))
        p(mf32(O1, Vf(NR - 1, 1), rr('v', Pb(1) + 4, 4)))
        p(mf16(L1, sel, rr('v', Pb(1) + 4, 4)))

    pre = take(99)
    if o.get('ipf', True):
        pre += [Ins(x.strip()) for x in f"""s_getpc_b64 s[74:75]
        s_lshr_b32 s{s_t0}, s2, 3
        s_lshl_b32 s{s_t0}, s{s_t0}, 2
        s_add_u32 s{s_t0}, s{s_t0}, s{s_w}
        s_lshl_b32 s{s_t0}, s{s_t0}, 8
        s_min_u32 s{s_t0}, s{s_t0}, {name}_end-{name}_fast_loop
        v_and_b32 v4, 1, v0
        v_lshl_add_u32 v4, v4, 7, s{s_t0}""".split("\n")]
        pre.append(Ins(f"global_load_dword v{vDum}, v4, s[74:75]", nowaw=True))
    assert len(pre) >= 12
    pre.append(Raw("; @stamp 3"))
    attention('fast', lambda y: "0", 'noside' not in dbg, pre)
    p.add(Raw("; @stamp 4"))
    p(f"""
    s_lshl_b32 s{s_t0}, s{s_hd}, 7
    s_add_u32 s{s_t0}, s{s_t0}, {ST_RS2}
    s_xor_b32 s{s_t1}, s{s_t0}, 128
    v_lshrrev_b32 v{vt+5}, 5, v0
    v_lshlrev_b32 v{vt+5}, 4, v{vt+5}""")
    for x in range(2):
        for jj in range(4):
            p(f"buffer_load_dwordx4 {rr('v', RSV + 16*x + 4*jj, 4)}, v{vt+5}, s[{sT}:{sT+3}], s{s_t1 if x else s_t0} offen offset:{jj*32} sc1")
    p(f"""
    {name}_fin:
    v_rcp_f32 v{Lb(0)+2}, v{Lb(0)}
    s_lshl_b32 s{s_t0}, s{s_tok}, 1
    s_add_u32 s{s_t0}, s{s_t0}, s{s_hd}
    s_lshl_b32 s{s_t0}, s{s_t0}, 10
    s_xor_b32 s{s_t1}, s{s_t0}, 1024
    """)
    for x in range(2):
        if x: p(f"v_rcp_f32 v{Lb(1)+2}, v{Lb(1)}")
        for a in range(2):
            for i in range(8 * a, 8 * a + 8, 2):
                p(f"v_pk_mul_f32 {rr('v', Ob(x)+i, 2)}, {rr('v', Ob(x)+i, 2)}, {rr('v', Lb(x)+2, 2)} op_sel_hi:[1,0]")
            for i in range(4 * a, 4 * a + 4):
                p(f"v_cvt_pk_bf16_f32 v{Pb(x)+i}, v{Ob(x)+2*i}, v{Ob(x)+2*i+1}")
            p(f"buffer_store_dwordx4 {rr('v', Pb(x)+4*a, 4)}, v{vOS}, s[{sB}:{sB+3}], s{s_t1 if x else s_t0} offen offset:{a*512} sc1")
    p(f"v_pk_mul_f32 v[{vt+2}:{vt+3}], {rr('v', Ob(0), 2)}, {rr('v', RSV, 2)}")
    p(f"v_pk_mul_f32 v[{vt+4}:{vt+5}], {rr('v', Ob(0)+2, 2)}, {rr('v', RSV+2, 2)}")
    for i in range(2, 16):
        k = vt + 2 + 2 * (i & 1)
        p(f"v_pk_fma_f32 v[{k}:{k+1}], {rr('v', Ob(0)+2*i, 2)}, {rr('v', RSV+2*i, 2)}, v[{k}:{k+1}]")
    p(f"""
    v_pk_add_f32 v[{vt+2}:{vt+3}], v[{vt+2}:{vt+3}], v[{vt+4}:{vt+5}]
    v_add_f32 v{vt+2}, v{vt+2}, v{vt+3}
    v_mov_b32 v{vt+3}, v{vt+2}
    s_add_u32 s{s_t0}, s{s_pj}, {ST_MP}
    s_mov_b32 s{s_t1}, {f32hex(2.0**-40)}
    v_permlane32_swap_b32 v{vt+2}, v{vt+3}
    v_add_f32 v{vt+2}, v{vt+2}, v{vt+3}
    s_mov_b32 exec_hi, 0
    buffer_store_dword v{vt+2}, v{vPW}, s[{sT}:{sT+3}], s{s_t0} offen sc1
    s_mov_b32 exec_hi, -1
    """)
    p(f"""
    v_cmp_nle_f32 s[0:1], s{s_t1}, v{Lb(0)}
    v_cmp_nle_f32 s[14:15], s{s_t1}, v{Lb(1)}
    s_mov_b32 s{s_t1}, {f32hex(2.0**40)}
    v_cmp_nge_f32 s[74:75], s{s_t1}, v{Lb(0)}
    v_cmp_nge_f32 vcc, s{s_t1}, v{Lb(1)}
    s_or_b64 s[0:1], s[0:1], s[14:15]
    s_movk_i32 s{s_t1}, 0x207
    v_cmp_class_f32 s[14:15], v{vt+2}, s{s_t1}
    s_or_b64 s[0:1], s[0:1], s[74:75]
    s_or_b64 s[0:1], s[0:1], vcc
    s_or_b64 s[0:1], s[0:1], s[14:15]
    s_cselect_b32 s{s_t1}, 1, 0
    s_cmp_gt_u32 s{s_t1}, s{s_safe}
    {'' if 'nocheck' in dbg else f's_cbranch_scc1 {name}_slow'}
    s_lshl_b32 s{s_t0}, s{s_w}, 12
    s_add_u32 m0, s{s_t0}, {XT}
    s_lshl_b32 s{s_t1}, s{s_j}, 7""")
    xt = [Ins(f"buffer_load_dwordx4 v{vD+i}, s[{sC}:{sC+3}], s{s_t1} offen offset:{i*1024} lds", awr=['LX'], nowaw=True) for i in range(4)]

    SPLIT = o.get('split5', True)
    s_c, s_xo, s_xe, s_xend = 61, 62, 63, 64
    vX1, vA3 = 12, 16
    WB, AB3 = 40, 104
    vPT = 20
    LEAD = 12
    ACS = lambda F, t: rr('v', AB3 + (F * 2 + t) * 4, 4)

    class Shape:
        def __init__(self, NF, off):
            self.NF, self.NG, self.off = NF, 16 // NF, off
        def X(self, slot, t, G): return rr('a', slot * 8 * self.NG + (t * self.NG + G) * 4, 4)
        def Xall(self, slot): return ", ".join(self.X(slot, t, G) for t in range(2) for G in range(self.NG))
        def W(self, F, G): return rr('v', WB + (F * self.NG + G) * 4, 4)
        def rd(self, slot, n):
            F, G, b = n // (2 * self.NG), (n >> 1) % self.NG, n & 1
            return Ins(f"ds_read_b64_tr_b16 {rr('v', WB + 2*n, 2)}, v{vA3 + (F & 3)} offset:{slot*16384 + self.off(F, G, b)}")
        def xld(self, slot):
            o_ = [Ins(f"s_cmp_lt_u32 s{s_xo}, s{s_xend}"), Ins(f"s_cselect_b32 s{s_xe}, s{s_xo}, s{sB+2}")]
            for t in range(2):
                for G in range(self.NG):
                    o_.append(Ins(f"buffer_load_dwordx4 {self.X(slot, t, G)}, v{vX1 if t else vL16}, s[{sB}:{sB+3}], s{s_xe} offen offset:{G*1024} sc1"))
            o_.append(Ins(f"s_add_u32 s{s_xo}, s{s_xo}, {self.NG * 1024}"))
            return o_
    sh4 = Shape(4, lambda F, G, b: G * 4096 + b * 1024)
    sh8 = Shape(8, lambda F, G, b: G * 8192 + (F >> 2) * 2048 + b * 1024)

    def wread_addr(blk):
        p(f"""
        v_bfe_u32 v{vt}, v0, 2, 3
        v_lshrrev_b32 v{vt+1}, 1, v{vt}
        v_lshlrev_b32 v{vt+1}, 5, v{vt+1}
        v_lshl_add_u32 v{vt}, v{vt}, 7, v{vt+1}
        v_lshrrev_b32 v{vt+1}, 5, v0
        v_lshl_add_u32 v{vt}, v{vt+1}, {blk}, v{vt}
        v_and_b32 v{vt+1}, 3, v0
        v_lshl_add_u32 v{vA3}, v{vt+1}, 3, v{vt}
        v_xor_b32 v{vA3+1}, 32, v{vA3}
        v_xor_b32 v{vA3+2}, 64, v{vA3}
        v_xor_b32 v{vA3+3}, 0x60, v{vA3}""")

    def table_load(aq, soff, blk=0):
        for i in range(4):
            p(f"buffer_load_dwordx2 {rr('v', aq + 2*i, 2)}, v{vPT}, s[{sT}:{sT+3}], s{soff} offen offset:{blk*2048 + i*128} sc1")

    def table_sum(aq, dst):
        p(f"""
        v_pk_add_f32 {rr('v', aq, 2)}, {rr('v', aq, 2)}, {rr('v', aq+2, 2)}
        v_pk_add_f32 {rr('v', aq+4, 2)}, {rr('v', aq+4, 2)}, {rr('v', aq+6, 2)}
        v_pk_add_f32 {rr('v', dst, 2)}, {rr('v', aq, 2)}, {rr('v', aq+4, 2)}""")
        for sw in (16, 32):
            p(f"""
            v_pk_mov_b32 {rr('v', aq, 2)}, {rr('v', dst, 2)}, {rr('v', dst, 2)} op_sel:[0,1]
            v_permlane{sw}_swap_b32 v{dst}, v{aq}
            v_permlane{sw}_swap_b32 v{dst+1}, v{aq+1}
            v_pk_add_f32 {rr('v', dst, 2)}, {rr('v', dst, 2)}, {rr('v', aq, 2)}""")

    def rstd_from(aq, dst):
        table_sum(aq, dst)
        for t in range(2):
            p(f"v_fma_f32 v{dst+t}, v{dst+t}, s{s_t1}, v{vt+4}")
        for t in range(2):
            p(f"v_rsq_f32 v{dst+t}, v{dst+t}")

    p(f"""
    s_lshl_b32 s{s_c}, s{s_tok}, 3
    s_add_u32 s{s_c}, s{s_c}, {ST_CNT}
    s_lshl_b32 s{s_xo}, s{s_tok}, 11
    s_add_u32 s{s_xend}, s{s_xo}, 0x8000""")
    p.add(xt)
    p("s_waitcnt vmcnt(4)")
    p(f"buffer_atomic_add v{vOne}, v{vZ}, s[{sT}:{sT+3}], s{s_c} offen")
    vE = 136
    p(f"""
    v_add_u32 v{vX1}, 0x8000, v{vL16}
    s_lshl_b32 s{s_t0}, s{s_w}, 12
    s_add_u32 s{s_t0}, s{s_t0}, {XT}
    v_and_b32 v{vt+4}, 15, v0
    v_lshrrev_b32 v{vt+5}, 1, v{vt+4}
    v_lshrrev_b32 v{vt+6}, 5, v0
    v_xor_b32 v{vt+5}, v{vt+5}, v{vt+6}
    v_lshlrev_b32 v{vt+5}, 4, v{vt+5}
    v_lshl_add_u32 v{vt+5}, v{vt+4}, 7, v{vt+5}
    v_bfe_u32 v{vt+6}, v0, 4, 1
    v_lshl_add_u32 v{vt+5}, v{vt+6}, 3, v{vt+5}
    v_add_u32 v{vt}, s{s_t0}, v{vt+5}
    v_xor_b32 v{vt+1}, 32, v{vt}
    v_xor_b32 v{vt+2}, 64, v{vt}
    v_xor_b32 v{vt+3}, 0x60, v{vt}""")
    for t in range(2):
        for F in range(4):
            p(f"ds_read_b64 {rr('v', vE + (t*4+F)*2, 2)}, v{vt+F} offset:{t*2048}", rd=['LX'])
    p(f"""
    v_lshlrev_b32 v{vPT}, 3, v{vt+4}
    v_lshrrev_b32 v{vt+5}, 4, v0
    v_lshl_add_u32 v{vPT}, v{vt+5}, 9, v{vPT}""")
    wread_addr(11)
    for t in range(2):
        for F in range(4):
            a = AB3 + (F * 2 + t) * 4
            e = vE + (t * 4 + F) * 2
            p(f"""
            v_lshlrev_b32 v{a}, 16, v{e}
            v_and_b32 v{a+1}, 0xffff0000, v{e}
            v_lshlrev_b32 v{a+2}, 16, v{e+1}
            v_and_b32 v{a+3}, 0xffff0000, v{e+1}""")
    p("s_barrier")
    for n in range(LEAD):
        p.add(sh4.rd(0, n))
    SLOT4, HI4, LEAD4 = 28672, 106496, 8
    s_nb, s_wo4, s_m04, s_dsl, s_rsl, s_tk4 = 66, 68, 69, 70, 71, 72
    vD4 = 21
    AB4 = 32
    p(f"""
    s_and_b32 s{s_t0}, s2, 7
    s_lshr_b32 s{s_t1}, s2, 3
    s_and_b32 s{s_tk4}, s{s_t1}, 7
    s_lshr_b32 s{s_t1}, s{s_t1}, 3
    s_lshl_b32 s{s_nb}, s{s_t0}, 2
    s_add_u32 s{s_nb}, s{s_nb}, s{s_t1}
    s_movk_i32 s{s_t1}, 4682
    s_movk_i32 s{s_t0}, {7168 - 14 * 16}
    """)
    for i in range(7):
        p(f"""
        v_add_u32 v{vt}, {64*i}, v0
        v_mul_u32_u24 v{vt+1}, s{s_t1}, v{vt}
        v_lshrrev_b32 v{vt+1}, 16, v{vt+1}
        v_add_u32 v{vt}, {1024 * (i - (i & 3))}, v{vL16}
        v_mad_u32_u24 v{vD4+i}, v{vt+1}, s{s_t0}, v{vt}
        """)
    p(f"""
    s_lshl_b32 s{s_tk4}, s{s_tk4}, 2
    s_add_u32 s{s_tk4}, s{s_tk4}, s{s_w}
    s_lshl_b32 s{s_tk4}, s{s_tk4}, 6
    s_and_b32 s{s_t0}, s{s_w}, 1
    s_mul_i32 s{s_wo4}, s{s_t0}, {32 * 7168}
    s_mul_i32 s{s_t1}, s{s_nb}, 224
    s_add_u32 s{s_wo4}, s{s_wo4}, s{s_t1}
    s_mul_i32 s{s_m04}, s{s_w}, 7168
    s_mov_b32 s{s_dsl}, s{s_m04}
    s_mov_b32 s{s_rsl}, {HI4}
    s_cmp_lt_u32 s{s_w}, 2
    s_cselect_b64 s[{sD}:{sD+1}], s[{pWG}:{pWG+1}], s[{pWU}:{pWU+1}]
    s_mov_b32 s{sD+2}, {hex(D * FF * 2)}
    s_lshl_b32 s{s_t0}, s{s_tok}, 6
    s_add_u32 s{s_t0}, s{s_t0}, {ST_MP}
    """)
    srd(p, sA, pWS, HC[1], bias=HC[0])
    for i in range(4):
        p(f"v_accvgpr_write_b32 a{aMEAN-4+i}, v{vWD+i}")
    p(f"v_mov_b32 v36, v{vPW}")
    vPW = 36
    for i in range(160, 256, 2):
        p(f"v_pk_mov_b32 {rr('v', i, 2)}, 0, 0")
    p.add(Raw("; @stamp 5"))
    PM = o.get('pollmode', '000')
    if PM[0] == '0': poll(p, f"{name}_opoll", s_c, 16, vt)
    else: poll_wg(p, f"{name}_opoll", s_c, 4, 16, vt, PM[0] == '2')
    p.add(Raw("; @stamp 6"))

    def dma4(par):
        o_ = []
        for i in range(7):
            if i == 0: o_.append(Ins(f"s_add_u32 m0, s{s_dsl}, {par * SLOT4}"))
            if i == 4: o_.append(Ins("s_add_u32 m0, m0, 4096"))
            o_.append(Ins(f"buffer_load_dwordx4 v{vD4+i}, s[{sD}:{sD+3}], s{s_wo4} offen offset:{(i&3)*1024} lds", awr=['Lx'], nowaw=True))
        o_.append(Ins(f"s_add_u32 s{s_wo4}, s{s_wo4}, {64 * 7168}"))
        return o_

    def xld3(u):
        o_ = [Ins(f"buffer_load_dwordx4 {sh4.X(u % 4, t, G)}, v{vX1 if t else vL16}, s[{sB}:{sB+3}], s{s_xo} offen offset:{G*1024} sc1")
              for t in range(2) for G in range(4)]
        return o_ + [Ins(f"s_add_u32 s{s_xo}, s{s_xo}, 4096")]
    vS, vQ, vP = 28, 144, WB
    p.add(xld3(0)); p.add(xld3(1))
    order = [(F, t, G) for F in range(4) for t in range(2) for G in range(4)]
    for u in range(8):
        vm = xld3(u + 2) if u < 6 else []
        if u == 0:
            vm += [Ins(f"buffer_load_dwordx2 {rr('v', vE + 2*i, 2)}, v{vPT}, s[{sT}:{sT+3}], s{s_t0} offen offset:{i*128} sc1") for i in range(4)]
        if u == 5: vm += dma4(0)
        if u == 6: vm += dma4(1)
        fill, pos = {}, 0
        for ins in vm:
            fill.setdefault(pos, []).append(ins)
            pos += 2 if ins.kind == 'vmem' and len(vm) < 16 else 1
        for i, (F, t, G) in enumerate(order):
            p(mf16(ACS(F, t), sh4.W(F, G), sh4.X(u % 4, t, G)))
            n = i + LEAD
            if u == 5 and i == 0:
                p("s_barrier")
            if u * 32 + n < 256:
                p.add(sh4.rd((u + n // 32) % 4, n % 32))
            if u == 3 and i == 0: p(f"v_xor_b32 v{vA3}, 0x10000, v{vA3}")
            if u == 3 and n in (15, 23, 31): p(f"v_xor_b32 v{vA3 + n // 8}, 0x10000, v{vA3 + n // 8}")
            if u > 0 or i > 7:
                if i % 8 == 7 and u * 32 + i < 255:
                    p(f"wait {rr('v', WB + ((F + 1) % 4) * 16, 8)}" + (", " + sh4.Xall((u + 1) % 4) if i == 31 else ""))
                if i % 8 == 1:
                    p(f"wait {rr('v', WB + F * 16 + 8, 8)}")
            p.add(fill.get(i, []))
    p.add(Raw("; @stamp 7"))

    s_ho = s_xo
    p(f"""
    s_mov_b32 s{s_t1}, {f32hex(-1.0/1024)}
    s_add_u32 s{s_ho}, s{s_tok}, s{s_j}
    s_lshl_b32 s{s_ho}, s{s_ho}, 11""")
    table_sum(vE, vS)
    for t in range(2):
        p(f"v_accvgpr_read_b32 v{vt}, a{aMEAN+t}")
        p(f"v_fma_f32 v{vS+t}, v{vS+t}, s{s_t1}, -v{vt}")
    for t in range(2):
        sel = "op_sel_hi:[1,0]" if t == 0 else "op_sel:[0,1]"
        q = rr('v', vQ + 2 * t, 2)
        for F in range(4):
            a = AB3 + (F * 2 + t) * 4
            k = vQ + 4 + (F & 1) * 4
            hc = vP + (t * 2 + (F >> 1)) * 4 + (F & 1) * 2
            p(f"""
            v_pk_add_f32 {rr('v', k, 2)}, {rr('v', a, 2)}, {rr('v', vS, 2)} {sel}
            v_pk_add_f32 {rr('v', k+2, 2)}, {rr('v', a+2, 2)}, {rr('v', vS, 2)} {sel}
            v_cvt_pk_bf16_f32 v{hc}, v{k}, v{k+1}
            v_cvt_pk_bf16_f32 v{hc+1}, v{k+2}, v{k+3}""")
            if F & 1:
                g = F >> 1
                p(f"buffer_store_dwordx4 {rr('v', hc-2, 4)}, v{vX1 if t else vL16}, s[{sA}:{sA+3}], s{s_ho} offen offset:{g*1024} sc1")
            p(f"v_pk_mul_f32 {q}, {rr('v', k, 2)}, {rr('v', k, 2)}" if F == 0 else f"v_pk_fma_f32 {q}, {rr('v', k, 2)}, {rr('v', k, 2)}, {q}")
            p(f"v_pk_fma_f32 {q}, {rr('v', k+2, 2)}, {rr('v', k+2, 2)}, {q}")
    p(f"""
    v_add_f32 v{vQ}, v{vQ}, v{vQ+1}
    v_add_f32 v{vQ+2}, v{vQ+2}, v{vQ+3}
    s_add_u32 s{s_t0}, s{s_pj}, {ST_SSQ}
    s_lshr_b32 s{s_c}, s{s_tok}, 6
    v_permlane16_swap_b32 v{vQ}, v{vQ+2}
    v_add_f32 v{vQ}, v{vQ}, v{vQ+2}
    v_mov_b32 v{vQ+1}, v{vQ}
    s_lshl_b32 s{s_c}, s{s_c}, 10
    s_add_u32 s{s_c}, s{s_c}, {ST_HCR}
    v_permlane32_swap_b32 v{vQ}, v{vQ+1}
    v_add_f32 v{vQ}, v{vQ}, v{vQ+1}
    s_mov_b32 exec_hi, 0
    buffer_store_dword v{vQ}, v{vPW}, s[{sT}:{sT+3}], s{s_t0} offen sc1
    s_mov_b32 exec_hi, -1
    """)
    for t in range(2):
        for F in range(4):
            a = AB3 + (F * 2 + t) * 4
            hr = vP + 16 + (t * 2 + (F >> 1)) * 4 + (F & 1) * 2
            p(f"v_cvt_pk_bf16_f32 v{hr}, v{a}, v{a+1}\nv_cvt_pk_bf16_f32 v{hr+1}, v{a+2}, v{a+3}")
    for i in range(16):
        p(f"v_accvgpr_write_b32 a{aHR+i}, v{vP+16+i}")
    if 'H' in dbg:
        srd(p, sB, pWS, HR[1], bias=HR[0])
        for t in range(2):
            for g in range(2):
                p(f"buffer_store_dwordx4 {rr('v', vP + 16 + (t*2+g)*4, 4)}, v{vX1 if t else vL16}, s[{sB}:{sB+3}], s{s_ho} offen offset:{g*1024}")
    p(f"""
    v_lshlrev_b32 v{vt}, 7, v0
    s_mov_b64 exec, 0xff
    s_waitcnt vmcnt(0)
    buffer_atomic_add v{vOne}, v{vt}, s[{sT}:{sT+3}], s{s_c} offen
    s_mov_b64 exec, -1""")

    vX4 = [vL16, 12, 13, 14]
    vA4, vAb, vR4 = 15, 16, 28
    X4 = lambda slot, t, g: rr('a', slot * 32 + (t * 2 + g) * 4, 4)
    WB4, WB4B, NWR = 96, 128, 4
    W4 = lambda q, g: rr('a', WB4 + (q % NWR) * 8 + g * 4, 4)
    AC4 = lambda f, t: rr('v', AB4 + (f * 4 + t) * 4, 4)
    p(f"""
    v_add_u32 v{vX4[2]}, 0x10000, v{vL16}
    v_add_u32 v{vX4[3]}, 0x18000, v{vL16}
    v_lshrrev_b32 v{vt}, 2, v0
    v_mul_u32_u24 v{vt}, 224, v{vt}
    v_and_b32 v{vt+1}, 3, v0
    v_lshl_add_u32 v{vAb}, v{vt+1}, 3, v{vt}
    v_mov_b32 v{vA4}, v{vAb}
    s_lshl_b32 s{s_xo}, s{s_tk4}, 11
    s_add_u32 s{s_dsl}, s{s_m04}, {HI4}
    s_lshl_b32 s{s_c}, s{s_tk4}, 4
    s_and_b32 s{s_t0}, s2, 7
    s_lshl_b32 s{s_t0}, s{s_t0}, 7
    s_add_u32 s{s_c}, s{s_c}, s{s_t0}
    s_add_u32 s{s_c}, s{s_c}, {ST_HCR}
    s_lshl_b32 s{s_t0}, s{s_tk4}, 6
    s_add_u32 s{s_t0}, s{s_t0}, {ST_SSQ}
    s_mov_b32 s{s_t1}, {f32hex(1.0/1024)}
    v_mov_b32 v{vt+4}, {f32hex(1e-5)}
    """)
    for i in range(AB4 + 16, 160, 2):
        p(f"v_pk_mov_b32 {rr('v', i, 2)}, 0, 0")

    def xld4(slot):
        o_ = [Ins(f"buffer_load_dwordx4 {X4(slot, t, g)}, v{vX4[t]}, s[{sA}:{sA+3}], s{s_xo} offen offset:{g*1024} sc1")
              for t in range(4) for g in range(2)]
        return o_ + [Ins(f"s_add_u32 s{s_xo}, s{s_xo}, 2048")]

    def rd4(q, n, par=None, base=WB4):
        f = q % 14
        g, b = n >> 1, n & 1
        if par is None: par = (q // 14) & 1
        return Ins(f"ds_read_b64_tr_b16 {rr('a', base + (q % NWR)*8 + g*4 + 2*b, 2)}, v{vA4} offset:{par*SLOT4 + (f&1)*14336 + (32*g+16*b)*224 + (f>>1)*32}")
    p("s_barrier")
    for n in range(LEAD4):
        p.add(rd4(n >> 2, n & 3))
    p.add(Raw("; @stamp 8"))
    poll(p, f"{name}_hpoll", s_c, 32, vt)
    p.add(Raw("; @stamp 9"))
    for q in range(2):
        table_load(AB4 + 8 * q, s_t0, q)
    p.add(xld4(0))
    for q in range(2):
        rstd_from(AB4 + 8 * q, vR4 + 2 * q)
    for t in range(4):
        p(f"v_mul_f32 v{vR4+t}, {f32hex(-LOG2E)}, v{vR4+t}")
    for i in range(AB4, AB4 + 16, 2):
        p(f"v_pk_mov_b32 {rr('v', i, 2)}, 0, 0")
    p(f"s_mov_b32 s{s_cnt}, 7")
    p("wait " + ", ".join(X4(0, t, g) for t in range(4) for g in range(2)) + f", {W4(0, 0)}, {W4(0, 1)}")
    p.begin_loop(f"{name}_p4loop", 7)
    for u in range(2):
        vm = xld4(1 - u) + dma4(u)
        fill, pos = {}, 1
        for ins in vm:
            fill.setdefault(pos, []).append(ins)
            pos += o.get('p4step', 4)
            if pos % 8 == 7: pos += 2
        assert pos < 95
        if u == 1:
            fill[97] = [Ins(f"s_sub_u32 s{s_rsl}, {HI4}, s{s_rsl}")]
            fill[99] = [Ins(f"s_add_u32 s{s_dsl}, s{s_m04}, s{s_rsl}")]
            fill[105] = [Ins(f"s_sub_u32 s{s_cnt}, s{s_cnt}, 1")]
            fill[107] = [Ins(f"s_cmp_lg_u32 s{s_cnt}, 0")]
            fill.setdefault(pos, []).append(Raw(f"    s_cmp_lg_u32 s{s_cnt}, 1\n    s_cbranch_scc1 {name}_nox15\n" +
                                                "".join(f"    {x.text}\n" for x in xld4(2)[:8]) + f"{name}_nox15:"))
        order = [(f, t, g) for f in range(14) for t in range(4) for g in range(2)]
        for i, (f, t, g) in enumerate(order):
            p(mf16(AC4(f, t), W4(u * 14 + f, g), X4(u, t, g)))
            if i % 2 == 0:
                n = i // 2 + LEAD4
                p.add(rd4(u * 14 + (n >> 2), n & 3))
            if i == 2 * (56 - LEAD4) - 1:
                if u == 1: p(f"v_add_u32 v{vA4}, s{s_rsl}, v{vAb}")
                p("s_waitcnt vmcnt(15) lgkmcnt(4)")
                p("s_barrier")
            elif i == 111:
                p(f"wait {W4(u*14 + 14, 0)}, {W4(u*14 + 14, 1)}, " + ", ".join(X4(1 - u, t_, g_) for t_ in range(4) for g_ in range(2)))
            elif i % 8 == 7:
                p(f"wait {W4(u*14 + f + 1, 0)}, {W4(u*14 + f + 1, 1)}")
            p.add(fill.get(i, []))
    p(f"s_cbranch_scc1 {name}_p4loop")
    p.end_loop()
    p.add(Raw("; @stamp 10"))
    main_cur = p.cur
    setup = []
    p.cur = setup

    vW5 = 21
    s_wo5, s_m05, s_hf = 68, 69, 65
    PX = o.get('px', 8)
    for i in range(4):
        p(f"v_accvgpr_read_b32 v{vW5+i}, a{aMEAN-4+i}")
    if SPLIT:
        p(f"""
        s_lshr_b32 s{s_hf}, s{s_j}, 3
        s_mul_i32 s{s_t0}, s{s_hf}, {1792 * 2048}
        s_xor_b32 s{s_t1}, s{s_j}, {PX}
        s_add_u32 s{s_t1}, s{s_t1}, 16
        s_sub_u32 s{s_t1}, s{s_t1}, s{s_j}
        s_lshl_b32 s{s_t1}, s{s_t1}, 7
        v_add_u32 v{vW5+2}, s{s_t1}, v{vW5}
        v_add_u32 v{vW5+3}, s{s_t1}, v{vW5+1}
        v_add_u32 v{vW5}, 4096, v{vW5}
        v_add_u32 v{vW5+1}, 4096, v{vW5+1}
        s_lshl_b32 s{s_wo5}, s{s_w}, 15""")
        srd(p, sD, pWD, 1792 * 2048 + 4096, off=s_t0, bias=-4096)
    else:
        p(f"s_lshl_b32 s{s_wo5}, s{s_w}, 16")
        srd(p, sD, pWD, FF * D * 2)
    p(f"""
    s_lshl_b32 s{s_t1}, s{s_j}, 7
    s_add_u32 s{s_wo5}, s{s_wo5}, s{s_t1}
    s_lshl_b32 s{s_m05}, s{s_w}, 12
    s_mov_b32 s{s_dsl}, 0
    s_and_b32 s{s_t0}, s{s_b}, 3
    s_cmp_eq_u32 s{s_t0}, s{s_w}
    s_cselect_b32 s{s_rsl}, 16384, 0
    s_lshl_b32 s{s_xend}, s{s_rsl}, 3""")
    BT = o.get('btouch', 1)
    vBT, s_bt = 17, 67
    if BT:
        p(f"""
        v_cmp_gt_u32 vcc, {28 // BT}, v0
        v_lshlrev_b32 v{vt}, 10, v0
        v_add_u32 v{vt}, {4096 + 384}, v{vt}
        v_mov_b32 v{vt+1}, 0x7ffffff0
        v_cndmask_b32 v{vBT}, v{vt+1}, v{vt}, vcc
        s_lshr_b32 s{s_bt}, s2, 3
        s_lshl_b32 s{s_bt}, s{s_bt}, 2
        s_add_u32 s{s_bt}, s{s_bt}, s{s_w}
        s_mul_i32 s{s_bt}, s{s_bt}, {14 // BT * 2048}""")
    btouch = lambda: Ins(f"buffer_load_dword v18, v{vBT}, s[{sD}:{sD+3}], s{s_bt} offen", nowaw=True)
    LAG = o.get('lag', 0)

    def dma5(hold=False):
        o_ = [Ins(f"s_add_u32 m0, s{s_m05}, s{s_dsl}"), Ins(f"s_add_u32 s{s_dsl}, s{s_dsl}, {f's{s_rsl}' if hold else 16384}")]
        for i in range(4):
            o_.append(Ins(f"buffer_load_dwordx4 v{vW5+i}, s[{sD}:{sD+3}], s{s_wo5} offen offset:{i*1024} lds", awr=['Lx'], nowaw=True))
        o_ += [Ins(f"s_add_u32 s{s_wo5}, s{s_wo5}, {f's{s_xend}' if hold else 64 * 2048}"), Ins(f"s_and_b32 s{s_dsl}, s{s_dsl}, 0x1ffff")]
        return o_

    srd(p, sB, pWS, HH[1], bias=HH[0])
    s_of = s_xo
    vH = 13
    p(f"""
    s_mul_i32 s{s_t0}, s{s_tk4}, {112 * 64}
    s_mul_i32 s{s_t1}, s{s_nb}, {7 * 512}
    s_add_u32 s{s_of}, s{s_t0}, s{s_t1}
    v_lshrrev_b32 v{vt}, 5, v0
    v_mul_u32_u24 v{vt}, {112 * 1024 - 512}, v{vt}
    v_add_u32 v{vH}, v{vt}, v{vL16}
    v_add_u32 v{vH+1}, {2 * 112 * 1024}, v{vH}
    v_add_u32 v{vX1}, {112 * 1024}, v{vL16}
    s_lshr_b32 s{s_t0}, s{s_nb}, 4
    s_lshl_b32 s{s_t0}, s{s_t0}, 13
    s_lshl_b32 s{s_c}, s{s_tk4}, 2
    s_add_u32 s{s_c}, s{s_c}, {ST_CNT + 96 * 256}
    {f's_add_u32 s{s_c}, s{s_c}, s{s_t0}' if SPLIT else ''}
    """)
    p.cur = main_cur

    def glu(pr, packed):
        o_ = []
        for t in range(4):
            g = AB4 + ((2 * pr) * 4 + t) * 4
            u_ = AB4 + ((2 * pr + 1) * 4 + t) * 4
            rs_ = rr('v', vR4 + (t & 2), 2)
            sel = "op_sel_hi:[1,0]" if t % 2 == 0 else "op_sel:[0,1]"
            if packed:
                o_ += [f"v_pk_mul_f32 {rr('v', g+r, 2)}, {rr('v', g+r, 2)}, {rs_} {sel}" for r in (0, 2)]
                o_ += [f"v_exp_f32 v{g+r}, v{g+r}" for r in range(4)]
                o_ += [f"v_pk_add_f32 {rr('v', g+r, 2)}, {rr('v', g+r, 2)}, 1.0 op_sel_hi:[1,0]" for r in (0, 2)]
                o_ += [f"v_rcp_f32 v{g+r}, v{g+r}" for r in range(4)]
                o_ += [f"v_pk_mul_f32 {rr('v', u_+r, 2)}, {rr('v', u_+r, 2)}, {rr('v', g+r, 2)}" for r in (0, 2)]
            else:
                o_ += [f"v_mul_f32 v{g+r}, v{vR4+t}, v{g+r}" for r in range(4)]
                o_ += [f"v_exp_f32 v{g+r}, v{g+r}" for r in range(4)]
                o_ += [f"v_add_f32 v{g+r}, 1.0, v{g+r}" for r in range(4)]
                o_ += [f"v_rcp_f32 v{g+r}, v{g+r}" for r in range(4)]
                o_ += [f"v_mul_f32 v{u_+r}, v{u_+r}, v{g+r}" for r in range(4)]
            d_ = AB4 + ((2 * pr) * 4 + (t & 2)) * 4 + (t & 1) * 2
            o_ += [f"v_cvt_pk_bf16_f32 v{d_}, v{u_}, v{u_+1}", f"v_cvt_pk_bf16_f32 v{d_+1}, v{u_+2}, v{u_+3}"]
            if t & 1:
                o_ += [f"v_permlane32_swap_b32 v{d_-2}, v{d_}", f"v_permlane32_swap_b32 v{d_-1}, v{d_+1}",
                       f"buffer_store_dwordx4 {rr('v', d_-2, 4)}, v{vH + (t >> 1)}, s[{sB}:{sB+3}], s{s_of} offen offset:{pr*512} sc1"]
        return [Ins(x) for x in o_]

    W4B = lambda q, g: rr('a', WB4B + (q % NWR) * 8 + g * 4, 4)
    p("s_waitcnt vmcnt(0)")
    p("s_barrier")
    for n in range(4):
        p.add(rd4(0, n, 1, WB4B))
    cost = lambda x: 8 if x.kind == 'trans' else 0 if x.kind == 'vmem' else 4
    pend = []
    for pr in range(7):
        work = setup if pr == 0 else glu(pr - 1, False)
        side = dma5(pr <= LAG) if pr >= 1 else []
        if BT and pr == o.get('btat', 5): side.append(btouch())
        tot = sum(cost(x) for x in work)
        done, wi = 0, 0
        for ff in range(2):
            f = 2 * pr + ff
            if f == 0: order = [(t, k) for t in range(4) for k in (0, 1)] + [(t, k) for t in range(4) for k in (2, 3)]
            else: order = [(t, k) for t in range(4) for k in range(4)]
            rds = [rd4(f + 1, n, 1, WB4B) for n in range(4)] if f + 1 < 14 else []
            rds += [rd4(f + 2, n, 0) for n in range(4)] if f + 2 < 14 else []
            for i, (t, k) in enumerate(order):
                p(mf16(AC4(f, t), W4(f, k) if k < 2 else W4B(f, k - 2), X4(0 if k < 2 else 2, t, k & 1)))
                if i % 2 == 0:
                    if rds: p.add(rds.pop(0))
                elif i == 15:
                    if f < 13: p(f"wait {W4(f+1, 0)}, {W4(f+1, 1)}, {W4B(f+1, 0)}, {W4B(f+1, 1)}")
                elif pend:
                    p.add(pend.pop(0))
                elif side:
                    p.add(side.pop(0))
                gap = ff * 16 + i + 1
                while wi < len(work) and done + cost(work[wi]) / 2 <= tot * gap / 32:
                    if work[wi].kind == 'vmem': pend.append(work[wi])
                    else: p.add(work[wi])
                    done += cost(work[wi]); wi += 1
        assert wi == len(work) and not side
    p.add(pend)
    p.add(glu(6, True))
    p.add(Raw("; @stamp 11"))
    arrive(p, s_c)

    sh5 = sh8 if SPLIT else sh4
    NA5 = 64 if SPLIT else 32
    vHF = 176
    STG = 131072
    vL, vG = 30, 15
    s_ro, s_fl, s_xs = 66, 67, 72
    vTX, vTD = 25, 26
    p(f"""
    s_lshr_b32 s{s_c}, s{s_tok}, 6
    s_lshl_b32 s{s_c}, s{s_c}, 8
    s_add_u32 s{s_c}, s{s_c}, {ST_CNT + 96 * 256}
    s_mul_i32 s{s_xo}, s{s_tok}, {112 * 64}""")
    if SPLIT:
        p(f"""
        s_lshl_b32 s{s_t0}, s{s_hf}, 13
        s_add_u32 s{s_c}, s{s_c}, s{s_t0}
        s_mul_i32 s{s_t0}, s{s_hf}, {56 * 1024}
        s_add_u32 s{s_xo}, s{s_xo}, s{s_t0}
        s_lshl_b32 s{s_t0}, s{s_b}, 4
        s_add_u32 s{s_t0}, s{s_t0}, s{s_j}
        s_lshl_b32 s{s_fl}, s{s_t0}, 8
        s_lshl_b32 s{s_t1}, s{s_w}, 2
        s_add_u32 s{s_fl}, s{s_fl}, s{s_t1}
        s_add_u32 s{s_fl}, s{s_fl}, {ST_CNT + 128}
        s_lshl_b32 s{s_xs}, s{s_t0}, 2
        s_add_u32 s{s_xs}, s{s_xs}, s{s_w}
        s_lshl_b32 s{s_xs}, s{s_xs}, 13""")
        srd(p, sC, pWS, XC[1], bias=XC[0])
    p(f"""
    v_bfe_u32 v{vt+2}, v0, 3, 1
    v_mul_u32_u24 v{vt+2}, {112 * 1024}, v{vt+2}
    v_and_b32 v{vt+3}, 7, v0
    v_lshl_add_u32 v{vt+2}, v{vt+3}, 7, v{vt+2}
    s_and_b32 s{s_t0}, s{s_j}, 7
    s_add_u32 s{s_t0}, s{s_t0}, 4
    s_lshl_b32 s{s_t0}, s{s_t0}, 10
    v_cmp_gt_u32 vcc, 16, v0
    v_add_u32 v{vt+2}, s{s_t0}, v{vt+2}
    v_mov_b32 v{vt+3}, 0x7ffffff0
    v_cndmask_b32 v{vTX}, v{vt+3}, v{vt+2}, vcc
    s_mul_i32 s{s_t0}, s{s_w}, 4608
    s_add_u32 s{s_t0}, s{s_t0}, {STG}
    v_and_b32 v{vt+2}, 15, v0
    v_mul_u32_u24 v{vt+2}, 144, v{vt+2}
    v_lshrrev_b32 v{vt+3}, 4, v0
    v_lshl_add_u32 v{vt+2}, v{vt+3}, 3, v{vt+2}
    v_add_u32 v{vL}, s{s_t0}, v{vt+2}
    v_lshrrev_b32 v{vt+2}, 3, v0
    v_and_b32 v{vt+3}, 7, v0
    v_lshlrev_b32 v{vt+3}, 4, v{vt+3}
    v_lshl_add_u32 v{vG}, v{vt+2}, 11, v{vt+3}
    v_mul_u32_u24 v{vt+2}, 144, v{vt+2}
    v_add3_u32 v{vL+1}, v{vt+2}, v{vt+3}, s{s_t0}
    s_lshl_b32 s{s_ro}, s{s_tok}, 11
    s_lshl_b32 s{s_t2}, s{s_j}, 7
    s_add_u32 s{s_ro}, s{s_ro}, s{s_t2}
    s_lshl_b32 s{s_t0}, s{s_tok}, 6
    s_add_u32 s{s_t0}, s{s_t0}, {ST_SSQ}
    s_mov_b32 s{s_t1}, {f32hex(1.0/1024)}
    v_mov_b32 v{vt+4}, {f32hex(1e-5)}
    """)
    srd(p, sA, pOUT, S * D * 2)
    wread_addr(12 if SPLIT else 11)
    p("s_barrier")
    for n in range(LEAD):
        p.add(sh5.rd(0, n))
    for i in range(AB3, AB3 + NA5, 2):
        p(f"v_pk_mov_b32 {rr('v', i, 2)}, 0, 0")
    for t in range(2):
        for F in range(4):
            e = aHR + (t * 2 + (F >> 1)) * 4 + (F & 1) * 2
            k = vHF + (F * 2 + t) * 4
            p(f"""
            v_accvgpr_read_b32 v{k+1}, a{e}
            v_accvgpr_read_b32 v{k+3}, a{e+1}
            v_lshlrev_b32 v{k}, 16, v{k+1}
            v_lshlrev_b32 v{k+2}, 16, v{k+3}
            v_and_b32 v{k+1}, 0xffff0000, v{k+1}
            v_and_b32 v{k+3}, 0xffff0000, v{k+3}""")
    p.add(Raw("; @stamp 12"))
    if PM[2] == '0': poll(p, f"{name}_fpoll", s_c, 16 if SPLIT else 32, vt)
    else: poll_wg(p, f"{name}_fpoll", s_c, 2, 16 if SPLIT else 32, vt, PM[2] == '2')
    p.add(Raw("; @stamp 13"))
    table_load(32, s_t0)
    XT5 = o.get('xtouch', False)
    sh = sh8

    def xld5(slot):
        return [Ins(f"buffer_load_dwordx4 {sh.X(slot, t, G)}, v{vX1 if t else vL16}, s[{sB}:{sB+3}], s{s_xo} offen offset:{G*1024} sc1")
                for t in range(2) for G in range(2)] + [Ins(f"s_add_u32 s{s_xo}, s{s_xo}, 2048")]
    touch = lambda: Ins(f"buffer_load_dword v{vTD}, v{vTX}, s[{sB}:{sB+3}], s{s_xo} offen sc1", nowaw=True)
    p.add(xld5(0)); p.add(xld5(1))
    if XT5: p.add(touch())
    p.add(xld5(2))
    rstd_from(32, vS)
    p(f"s_mov_b32 s{s_cnt}, 6")
    p(f"wait {rr('v', WB, 8)}, {sh.Xall(0)}")
    p.begin_loop(f"{name}_p5loop", 6)
    for u in range(4):
        d5, x5 = dma5(), xld5((u + 3) % 4)
        fill = {0: [d5[0]], 1: [d5[1]], 2: [d5[2]], 6: [d5[3]], 10: [d5[4]], 14: [d5[5]], 16: [d5[6]], 4: [d5[7]],
                18: [x5[0]], 22: [x5[1]], 25: [x5[2]], 28: [x5[3]], 29: [x5[4]]}
        if u == 3:
            if XT5: fill[12] = [touch()]
            fill[24] = [Ins(f"s_sub_u32 s{s_cnt}, s{s_cnt}, 1")]
            fill[30] = [Ins(f"s_cmp_lg_u32 s{s_cnt}, 0")]
            for a_ in range(4):
                fill.setdefault((9, 13, 17, 21)[a_], []).append(Ins(f"v_xor_b32 v{vA3+a_}, 0x10000, v{vA3+a_}"))
        for i in range(32):
            F, t, G = i >> 2, (i >> 1) & 1, i & 1
            if 'p5nomf' not in dbg: p(mf16(ACS(F, t), sh.W(F, G), sh.X(u, t, G)))
            n = i + LEAD
            if n == 32 and 'p5nobar' not in dbg:
                p("s_barrier")
            if 'p5nods' not in dbg: p.add(sh.rd((u + n // 32) % 4, n % 32))
            if i % 4 == 3:
                p(f"wait {rr('v', WB + 8 * ((F + 1) % 8), 8)}" + (", " + sh.Xall((u + 1) % 4) if i == 31 else ""))
            p.add([x for x in fill.get(i, []) if not (('p5now' in dbg and 'lds' in x.mods) or ('p5nox' in dbg and x.kind == 'vmem' and 'lds' not in x.mods))])
            if 'p5l2' in dbg and u == 3 and i == 29:
                p(f"s_sub_u32 s{s_xo}, s{s_xo}, 8192\ns_sub_u32 s{s_wo5}, s{s_wo5}, {4 * 64 * 2048}")
    p(f"s_cbranch_scc1 {name}_p5loop")
    p.end_loop()
    units = [(0, F) for F in range(8)] + [(1, F) for F in range(4, 8)] + [(u, F) for F in range(4, 8) for u in (2, 3)] + \
            [(u, F) for F in range(4) for u in (1, 2, 3)]
    x5 = xld5(3)
    XB = o.get('xbf16', True)
    fill = {0: [x5[0]], 2: [x5[1]], 4: [x5[2]], 6: [x5[3]], 8: [Ins(f"s_add_u32 s{s_t0}, s{s_xs}, 4096")]}
    for F in range(4, 8):
        k = units.index((3, F))
        if XB:
            a = AB3 + F * 8
            for q in range(4):
                fill[4 * (k + 2) + q] = [Ins(f"v_cvt_pk_bf16_f32 v{a+q}, v{a+2*q}, v{a+2*q+1}")]
            fill[4 * (k + 3)] = [Ins(f"buffer_store_dwordx4 {rr('v', a, 4)}, v{vL16}, s[{sC}:{sC+3}], s{s_xs} offen offset:{(F-4)*1024} sc1")]
            continue
        for t in range(2):
            n = (F - 4) * 2 + t
            fill[4 * (k + 2) + 2 * t] = [Ins(f"buffer_store_dwordx4 {ACS(F, t)}, v{vL16}, s[{sC}:{sC+3}], s{s_t0 if n >= 4 else s_xs} offen offset:{(n & 3)*1024} sc1")]
    fill[120] = [Ins(f"s_xor_b32 s{s_xs}, s{s_xs}, {PX << 15}")]
    fill[121] = [Ins(f"s_xor_b32 s{s_t0}, s{s_t0}, {PX << 15}")]
    for i in range(128):
        k, t, G = i >> 2, (i >> 1) & 1, i & 1
        u, F = units[k]
        p(mf16(ACS(F, t), rr('v', WB + (k % 8) * 8 + G * 4, 4), sh.X(u, t, G)))
        n = i + LEAD
        if n == 32:
            p("s_barrier", rd=['Lx'])
        if n < 128:
            un, Fn = units[n >> 2]
            p(f"ds_read_b64_tr_b16 {rr('v', WB + 2 * (n % 32), 2)}, v{vA3 + (Fn & 3)} offset:{un*16384 + sh.off(Fn, (n >> 1) & 1, n & 1)}")
        if i % 4 == 3 and i < 127:
            p(f"wait {rr('v', WB + 8 * ((k + 1) % 8), 8)}, {sh.Xall(units[k + 1][0])}")
        p.add(fill.get(i, []))
    p.add(Raw("; @stamp 14"))
    RX = 208
    xl = [f"buffer_load_dwordx4 {rr('v', RX + 4*n, 4)}, v{vL16}, s[{sC}:{sC+3}], s{s_t0 if n >= 4 else s_xs} offen offset:{(n & 3)*1024} sc1"
          for n in (0, 2, 4, 6, 1, 3, 5, 7)]
    if XB:
        xl = [f"buffer_load_dwordx4 {rr('v', WB + 4*F, 4)}, v{vL16}, s[{sC}:{sC+3}], s{s_xs} offen offset:{F*1024} sc1" for F in range(4)]
    if SENT:
        p(f"s_mov_b32 s{s_spin}, {SPIN}")
    else:
        p(f"""
        s_waitcnt vmcnt(0)
        buffer_store_dword v{vOne}, v{vZ}, s[{sT}:{sT+3}], s{s_fl} offen sc1
        s_xor_b32 s{s_fl}, s{s_fl}, {PX << 8}""")
    if 'tail' in dbg: p.add(Raw("; @stamp 0"))
    for t in range(2):
        sel = "op_sel_hi:[1,0,1]" if t == 0 else "op_sel:[0,1,0]"
        for F in range(4):
            for r in (0, 2):
                a, k = AB3 + (F * 2 + t) * 4 + r, vHF + (F * 2 + t) * 4 + r
                p(f"v_pk_fma_f32 {rr('v', k, 2)}, {rr('v', a, 2)}, {rr('v', vS, 2)}, {rr('v', k, 2)} {sel}")
    if SENT:
        chk = [f"v_max3_u32 v{vt}, v{RX}, v{RX+1}, v{RX+2}", f"v_max3_u32 v{vt+1}, v{RX+3}, v{RX+4}, v{RX+5}"]
        chk += [f"v_max3_u32 v{vt+(i&1)}, v{vt+(i&1)}, v{RX+6+2*i}, v{RX+7+2*i}" for i in range(13)]
        p.add(Raw(f"""    s_waitcnt vmcnt(0)
    {f's_branch {name}_xall' if SENT == 1 else ''}
{name}_xpoll:
    buffer_load_dword v{vt}, v{vZ}, s[{sC}:{sC+3}], s{s_t0} offen offset:4092 sc1
    s_sub_u32 s{s_spin}, s{s_spin}, 1
    s_cbranch_scc1 {name}_xdone
    s_waitcnt vmcnt(0)
    v_cmp_eq_u32 vcc, -1, v{vt}
    s_nop 0
    s_cbranch_vccnz {name}_xpoll
{name}_xall:
""" + "".join(f"    {x}\n" for x in xl) +
                  f"    s_waitcnt vmcnt(0)\n" + "".join(f"    {x}\n" for x in chk) + f"""    v_max_u32 v{vt}, v{vt}, v{vt+1}
    v_cmp_eq_u32 vcc, -1, v{vt}
    s_nop 0
    s_cbranch_vccnz {name}_xpoll
{name}_xdone:"""))
        p("s_waitcnt vmcnt(0)")
    else:
        poll(p, f"{name}_xpoll", s_fl, 1, vt)
        p("\n".join(xl))
    if 'tail' in dbg: p.add(Raw("; @stamp 1"))
    for t in range(2):
        sel = "op_sel_hi:[1,0,1]" if t == 0 else "op_sel:[0,1,0]"
        for F in range(4):
            a, k = RX + (F * 2 + t) * 4, vHF + (F * 2 + t) * 4
            if SPLIT:
                for r in (0, 2):
                    if XB:
                        e = WB + 4 * F + 2 * t + r // 2
                        p(f"v_lshlrev_b32 v{a+r}, 16, v{e}\nv_and_b32 v{a+r+1}, 0xffff0000, v{e}")
                    p(f"v_pk_fma_f32 {rr('v', k+r, 2)}, {rr('v', a+r, 2)}, {rr('v', vS, 2)}, {rr('v', k+r, 2)} {sel}")
            p(f"v_cvt_pk_bf16_f32 v{k}, v{k}, v{k+1}\nv_cvt_pk_bf16_f32 v{k+1}, v{k+2}, v{k+3}")
            p(f"ds_write_b64 v{vL}, v[{k}:{k+1}] offset:{t*16*144 + F*32}")
        for n in range(2):
            p(f"ds_read_b128 {rr('v', 240 + (t*2+n)*4, 4)}, v{vL+1} offset:{(t*2+n)*8*144}")
    if 'tail' in dbg: p.add(Raw("; @stamp 2"))
    for n in range(4):
        p(f"buffer_store_dwordx4 {rr('v', 240 + n*4, 4)}, v{vG}, s[{sA}:{sA+3}], s{s_ro} offen {o.get('outfl', '')}")
        if n < 3: p(f"s_add_u32 s{s_ro}, s{s_ro}, {8 * 2048}")
    p(f"{name}_end:")
    p("s_endpgm")

    slow = p.segment()
    p(f"{name}_slow:")
    p.fence()
    for x in range(2):
        p(f"v_mov_b32 v{Nb(x)}, 0xff800000")
    p(f"s_mov_b32 s{s_ko}, 0")
    p.begin_loop(f"{name}_max_loop", 64, align=False)
    p.add([kld(0, 0), kld(0, 1)])
    for x in range(2):
        p(mf32(rr('v', Sb(x), 16), Kf(0, 0), Q(x, 0), "0"))
        p(mf32(rr('v', Sb(x), 16), Kf(0, 1), Q(x, 1)))
    for x in range(2):
        for i in range(0, 16, 2):
            p(f"v_max3_f32 v{Nb(x)}, v{Nb(x)}, v{Sb(x)+i}, v{Sb(x)+i+1}")
    p(f"""
    s_add_u32 s{s_ko}, s{s_ko}, 4096
    s_cmp_lg_u32 s{s_ko}, {64 * 4096}
    s_cbranch_scc1 {name}_max_loop""")
    p.end_loop()
    for x in range(2):
        p(f"""
        v_mov_b32 v{vt}, v{Nb(x)}
        v_permlane32_swap_b32 v{Nb(x)}, v{vt}
        v_max_f32 v{Nb(x)}, v{Nb(x)}, v{vt}
        v_sub_f32 v{Nb(x)}, 0, v{Nb(x)}""")
        for i in range(1, 16):
            p(f"v_mov_b32 v{Nb(x)+i}, v{Nb(x)}")
    fill_kv()
    att_init()
    p(f"s_mov_b32 s{s_safe}, 1")
    attention('safe', lambda y: rr('v', Nb(y), 16), False, [Ins("s_nop 11")])
    p.fence()
    p(f"s_branch {name}_fin")
    p.paths = [[main, red_w, rest], [main, fin, fin_k, rest], [main, fin, fin_v, rest], [slow]]
    return p
```

```python
import sys, re
sys.path.insert(0, 'dev')
from common import *
import fused

NAME = 'sequential_preLN__grouped_kv_mqa__glu_gated_glu__prompt'
HDR = open(f'cdna_kernels/{NAME}.s.ref').read().split('; Override launch')[0]
STAMP = (0x3000000, 0x100000)

def add_stamps(c, d, n, dbgout=False):
    c = c.replace(f"{n}:\n", f"{n}:\n    s_memrealtime s[96:97]\n    s_memtime s[94:95]\n", 1)
    tail = f"""    s_waitcnt vmcnt(0)
    s_memrealtime s[98:99]
    s_memtime s[100:101]
    s_add_u32 s28, s26, {STAMP[0]}
    s_addc_u32 s29, s27, 0
    s_mov_b32 s30, 0x100000
    s_mov_b32 s31, 0x20000
    s_waitcnt lgkmcnt(0)
    s_mov_b64 exec, 1
    s_lshl_b32 s56, s2, 2
    s_add_u32 s56, s56, s52
    s_lshl_b32 s56, s56, 7
    s_sub_u32 s93, s100, s94
    s_mov_b32 s92, s98
    s_mov_b32 s91, s96
    v_mov_b32 v0, 0
"""
    for q in range(5):
        tail += "".join(f"    v_mov_b32 v{4+4*q+i}, s{76+4*q+i}\n" for i in range(4))
        tail += f"    buffer_store_dwordx4 v[{4+4*q}:{7+4*q}], v0, s[28:31], s56 offen offset:{16*q}\n"
    if dbgout:
        tail += "    s_mov_b64 s[28:29], s[24:25]\n    s_mov_b32 s30, 64\n    s_mov_b32 s90, s92\n"
        for i in range(15):
            tail += f"    s_sub_u32 s57, s{76+i}, s91\n    v_mov_b32 v4, s57\n    buffer_store_dword v4, v0, s[28:31], s56 offen offset:{4+4*i}\n"
    c = c.replace("F_end:\n", tail + "F_end:\n", 1)
    c = re.sub(r"; @stamp (\d+)", lambda m: f"    s_memrealtime s[98:99]\n    s_waitcnt lgkmcnt(0)\n    s_mov_b32 s{76+int(m.group(1))}, s98", c)
    d = re.sub(r"next_free_sgpr \d+", "next_free_sgpr 102", d)
    return c, d

def build(o):
    n = NAME + '_kernel'
    pr = fused.gen_fused('F', o)
    txt = HDR + f"; @launch grid=(256,1,1) block=(256,1,1) lds={fused.LDS_TOTAL}\n"
    txt += '.amdgcn_target "amdgcn-amd-amdhsa--gfx950"\n.text\n'
    c, d = kernel_text(n, pr)
    if o.get('fine'):
        c = re.sub(r"; @stamp ([4-9]|1\d)\n", "", c).replace("; @fine", "; @stamp")
    else:
        c = re.sub(r"; @fine \d+\n", "", c)
    if o.get('stamp'):
        c, d = add_stamps(c, d, n, o.get('dbgout'))
    else:
        c = re.sub(r"; @stamp \d+\n", "", c)
    return txt + c + '.section .rodata,"a"\n.p2align 6\n' + d

if __name__ == '__main__':
    out = sys.argv[1] if len(sys.argv) > 1 else f'cdna_kernels/{NAME}.s'
    opts = eval(sys.argv[2]) if len(sys.argv) > 2 else {}
    open(out, 'w').write(build(opts))
    print('wrote', out)
```

```python
import sys, re
sys.path.insert(0, 'dev')
from common import *
import fused

NAME = 'sequential_preLN__grouped_kv_mqa__glu_gated_glu__prompt'
HDR = open(f'cdna_kernels/{NAME}.s.ref').read().split('; Override launch')[0]
STAMP = (0x3000000, 0x100000)

def add_stamps(c, d, n, dbgout=False, amp=None):
    c = c.replace(f"{n}:\n", f"{n}:\n    s_memrealtime s[96:97]\n    s_memtime s[94:95]\n", 1)
    tail = f"""    s_waitcnt vmcnt(0)
    s_memrealtime s[98:99]
    s_memtime s[100:101]
    s_add_u32 s28, s26, {STAMP[0]}
    s_addc_u32 s29, s27, 0
    s_mov_b32 s30, 0x100000
    s_mov_b32 s31, 0x20000
    s_waitcnt lgkmcnt(0)
    s_mov_b64 exec, 1
    s_lshl_b32 s56, s2, 2
    s_add_u32 s56, s56, s52
    s_lshl_b32 s56, s56, 7
    s_sub_u32 s93, s100, s94
    s_mov_b32 s92, s98
    s_mov_b32 s91, s96
    v_mov_b32 v0, 0
"""
    for q in range(5):
        tail += "".join(f"    v_mov_b32 v{4+4*q+i}, s{76+4*q+i}\n" for i in range(4))
        tail += f"    buffer_store_dwordx4 v[{4+4*q}:{7+4*q}], v0, s[28:31], s56 offen offset:{16*q}\n"
    if amp:
        a, b, k = amp
        tail += f"    s_sub_u32 s57, s{76+b}, s{76+a}\n    s_mul_i32 s57, s57, {k}\n    s_min_u32 s57, s57, 100000\nF_amp:\n    s_memrealtime s[98:99]\n    s_waitcnt lgkmcnt(0)\n    s_sub_u32 s58, s98, s92\n    s_cmp_lt_u32 s58, s57\n    s_cbranch_scc1 F_amp\n"
    if dbgout:
        tail += "    s_mov_b64 s[28:29], s[24:25]\n    s_mov_b32 s30, 64\n    s_mov_b32 s90, s92\n"
        for i in range(15):
            tail += f"    s_sub_u32 s57, s{76+i}, s91\n    v_mov_b32 v4, s57\n    buffer_store_dword v4, v0, s[28:31], s56 offen offset:{4+4*i}\n"
    c = c.replace("F_end:\n", tail + "F_end:\n", 1)
    c = re.sub(r"; @stamp (\d+)", lambda m: f"    s_memrealtime s[98:99]\n    s_waitcnt lgkmcnt(0)\n    s_mov_b32 s{76+int(m.group(1))}, s98", c)
    d = re.sub(r"next_free_sgpr \d+", "next_free_sgpr 102", d)
    return c, d

def build(o):
    n = NAME + '_kernel'
    pr = fused.gen_fused('F', o)
    txt = HDR + f"; @launch grid=(256,1,1) block=(256,1,1) lds={fused.LDS_TOTAL}\n"
    txt += '.amdgcn_target "amdgcn-amd-amdhsa--gfx950"\n.text\n'
    c, d = kernel_text(n, pr)
    if o.get('fine'):
        c = re.sub(r"; @stamp ([4-9]|1\d)\n", "", c).replace("; @fine", "; @stamp")
    else:
        c = re.sub(r"; @fine \d+\n", "", c)
    if o.get('stamp'):
        c, d = add_stamps(c, d, n, o.get('dbgout'), o.get('amp'))
    else:
        c = re.sub(r"; @stamp \d+\n", "", c)
    return txt + c + '.section .rodata,"a"\n.p2align 6\n' + d

if __name__ == '__main__':
    out = sys.argv[1] if len(sys.argv) > 1 else f'cdna_kernels/{NAME}.s'
    opts = eval(sys.argv[2]) if len(sys.argv) > 2 else {}
    open(out, 'w').write(build(opts))
    print('wrote', out)
```

```python
import re

REG_RE = re.compile(r'^(-|abs\(|\|)*([vas])(\d+)\)?\|?$')
RNG_RE = re.compile(r'^(-|abs\(|\|)*([vas])\[(\d+):(\d+)\]\)?\|?$')
TRANS = ('v_exp_', 'v_log_', 'v_rcp_', 'v_rsq_', 'v_sqrt_', 'v_sin_', 'v_cos_')


def regs_of(tok):
    tok = tok.strip()
    m = REG_RE.match(tok)
    if m:
        return [m.group(2) + m.group(3)]
    m = RNG_RE.match(tok)
    if m:
        return [m.group(2) + str(i) for i in range(int(m.group(3)), int(m.group(4)) + 1)]
    if tok in ('vcc', 'vcc_lo', 'vcc_hi'):
        return ['vcc']
    if tok in ('exec', 'exec_lo', 'exec_hi'):
        return ['exec']
    if tok == 'm0':
        return ['m0']
    return []


class Ins:
    def __init__(self, text, rd=(), wr=(), awr=(), nowaw=False, pend_rd=()):
        self.text = text
        t = text.split(';')[0].strip()
        parts = t.split(None, 1)
        self.op = op = parts[0]
        rest = parts[1] if len(parts) > 1 else ''
        rest = re.sub(r'((?:op_sel|op_sel_hi|neg_lo|neg_hi|quad_perm):\[[^\]]*\])', lambda m: m.group(1).replace(',', '|'), rest)
        toks = [x.strip() for x in rest.split(',')]
        mods = []
        if toks and toks[-1]:
            l = toks[-1].split()
            toks[-1] = l[0]
            mods = l[1:]
        self.toks, self.mods = toks, mods
        R = [regs_of(x) for x in toks]
        self.rd, self.wr, self.awr = set(), set(), set()
        self.q = None
        self.passes = 0
        self.kind = 'salu'
        self.mf_ab, self.mf_c = set(), []
        self.store_data = set()
        self.dpp = any(m.startswith(('row_', 'quad_perm', 'wave_', 'bank_mask')) for m in mods) or op.endswith('_dpp')
        flat = lambda L: [r for x in L for r in x]
        if op.startswith('v_smfmac'):
            self.kind = 'mfma'
            self.passes = 8
            self.wr = set(R[0]); self.mf_d = R[0]
            self.mf_ab = set(R[1] + R[2] + R[3]); self.mf_c = R[0]
            self.rd = self.mf_ab | set(self.mf_c)
        elif op.startswith('v_mfma'):
            self.kind = 'mfma'
            self.passes = 8 if '32x32x16' in op else 4 if '16x16x32' in op else None
            assert self.passes, op
            self.wr = set(R[0]); self.mf_d = R[0]
            self.mf_ab = set(R[1] + R[2]); self.mf_c = R[3]
            self.rd = self.mf_ab | set(self.mf_c)
        elif op.startswith('v_'):
            self.kind = 'trans' if op.startswith(TRANS) else 'valu'
            if op.startswith(('v_permlane16_swap', 'v_permlane32_swap', 'v_swap')):
                self.wr = set(R[0] + R[1]); self.rd = set(R[0] + R[1])
            elif op.startswith(('v_add_co', 'v_sub_co', 'v_addc_co', 'v_subb_co')):
                self.wr = set(R[0] + R[1]); self.rd = set(flat(R[2:]))
            elif op == 'v_nop':
                pass
            else:
                self.wr = set(R[0]); self.rd = set(flat(R[1:]))
                if op.startswith(('v_fmac', 'v_dot2c', 'v_writelane', 'v_mac')) or self.dpp or any('PRESERVE' in m for m in mods) \
                        or any(m.startswith('op_sel') for m in mods) and op.startswith('v_cvt'):
                    self.rd |= set(R[0])
        elif op.startswith('ds_'):
            self.kind = 'ds'; self.q = 'lg'
            if op.startswith(('ds_read', 'ds_bpermute', 'ds_permute', 'ds_swizzle')) or '_rtn' in op:
                self.awr = set(R[0]); self.rd = set(flat(R[1:]))
            else:
                self.rd = set(flat(R))
        elif op.startswith('buffer_') or op.startswith('global_'):
            self.kind = 'vmem'; self.q = 'vm'
            if op in ('buffer_inv', 'buffer_wbl2'):
                pass
            elif 'lds' in mods:
                self.rd = set(flat(R)) | {'m0'}; self.dma = True
            elif '_load' in op:
                self.awr = set(R[0]); self.rd = set(flat(R[1:]))
            elif '_atomic' in op and 'sc0' in mods:
                self.awr = set(R[0]); self.rd = set(flat(R))
            else:
                self.rd = set(flat(R))
                if op.endswith(('x3', 'x4')):
                    self.store_data = set(R[0] if op.startswith('buffer_') else R[1])
        elif op.startswith(('s_load', 's_buffer_load', 's_memtime', 's_memrealtime')):
            self.kind = 'smem'; self.q = 'sm'
            self.awr = set(R[0]); self.rd = set(flat(R[1:]))
        elif op.startswith(('s_cmp', 's_bitcmp')):
            self.rd = set(flat(R))
        elif op == 'wait':
            self.kind = 'pseudo'
            self.rd = set(flat(R))
        elif op.startswith(('s_waitcnt', 's_barrier', 's_nop', 's_setprio', 's_endpgm', 's_sleep', 's_branch')):
            pass
        elif op.startswith('s_cbranch'):
            if 'vcc' in op: self.rd = {'vcc'}
        elif op.startswith('s_'):
            self.wr = set(R[0]); self.rd = set(flat(R[1:]))
            if 'saveexec' in op:
                self.wr |= {'exec'}
            if op.startswith(('s_addk', 's_mulk', 's_cmov', 's_bitset')):
                self.rd |= set(R[0])
        else:
            raise ValueError('unknown op ' + text)
        self.rd |= set(rd); self.wr |= set(wr); self.awr |= set(awr)
        self.pend_rd = set(pend_rd)
        self.nowaw = nowaw
        self.wait_vm = None; self.wait_lg = None; self.nops = 0


class Label:
    def __init__(self, name): self.name = name


class Loop:
    def __init__(self, label, count, body, align=True):
        self.label, self.count, self.body, self.align = label, count, body, align


class Raw:
    def __init__(self, text): self.text = text


class Fence:
    pass


class Seg:
    def __init__(self): self.body = []


class Prog:
    def __init__(self):
        self.paths = None
        self.items = []
        self.cur = self.items
        self.stack = []

    def __call__(self, text, **kw):
        for line in text.strip().split('\n'):
            line = line.strip()
            if not line or line.startswith(';'):
                continue
            if line.endswith(':'):
                self.cur.append(Label(line[:-1]))
            else:
                self.cur.append(Ins(line, **kw))

    def add(self, x):
        if isinstance(x, str):
            self(x)
        elif isinstance(x, (list, tuple)):
            for y in x: self.add(y)
        else:
            self.cur.append(x)

    def begin_loop(self, label, count, align=True):
        lp = Loop(label, count, [], align)
        self.cur.append(lp)
        self.stack.append(self.cur)
        self.cur = lp.body

    def end_loop(self):
        self.cur = self.stack.pop()

    def fence(self):
        self.cur.append(Fence())

    def trace(self, items=None):
        for it in (self.items if items is None else items):
            if isinstance(it, Loop):
                for _ in range(min(it.count, 6)):
                    yield from self.trace(it.body)
            elif isinstance(it, Seg):
                yield from self.trace(it.body)
            else:
                yield it

    def all_paths(self):
        for path in (self.paths or [self.items]):
            yield from self.trace(path)
            yield Fence()

    def segment(self):
        seg = Seg()
        self.items.append(seg)
        self.cur = seg.body
        return seg

    def auto_waits(self):
        changed = True
        while changed:
            changed = False
            vm, lg = [], []
            for it in self.all_paths():
                if isinstance(it, Fence):
                    vm, lg = [], []
                    continue
                if not isinstance(it, Ins):
                    continue
                if it.op == 's_waitcnt':
                    m = re.search(r'vmcnt\((\d+)\)', it.text)
                    if m: vm = vm[len(vm) - min(len(vm), int(m.group(1))):]
                    m = re.search(r'lgkmcnt\((\d+)\)', it.text)
                    if m:
                        n = int(m.group(1))
                        if n == 0 or not any(o.q == 'sm' for o in lg):
                            lg = lg[len(lg) - min(len(lg), n):]
                    continue
                touch = it.rd | it.wr | (set() if it.nowaw else it.awr)
                wrs = it.wr | it.awr

                def need(q):
                    k = -1
                    for i, o in enumerate(q):
                        if (o.awr & touch) or (o.pend_rd & wrs):
                            k = i
                    return k
                k = need(vm)
                if k >= 0:
                    n = min(62, len(vm) - k - 1)
                    if it.wait_vm is None or n < it.wait_vm:
                        it.wait_vm = n; changed = True
                k = need(lg)
                if k >= 0:
                    n = 0 if any(o.q == 'sm' for o in lg) else min(14, len(lg) - k - 1)
                    if it.wait_lg is None or n < it.wait_lg:
                        it.wait_lg = n; changed = True
                if it.wait_vm is not None:
                    vm = vm[len(vm) - min(len(vm), it.wait_vm):]
                if it.wait_lg is not None:
                    if it.wait_lg == 0 or not any(o.q == 'sm' for o in lg):
                        lg = lg[len(lg) - min(len(lg), it.wait_lg):]
                if it.q == 'vm': vm.append(it)
                elif it.q in ('lg', 'sm'): lg.append(it)

    def auto_nops(self):
        changed = True
        while changed:
            changed = False
            pos = 0
            lw = {}
            lc = {}
            ls = {}
            for it in self.all_paths():
                if isinstance(it, Fence):
                    pos += 40
                    continue
                if not isinstance(it, Ins):
                    continue
                if it.wait_vm is not None or it.wait_lg is not None:
                    pos += 1
                if it.kind == 'pseudo':
                    continue
                base = pos
                req = 0

                def after(p, n):
                    nonlocal req
                    req = max(req, p + 1 + n)
                isvalu = it.kind in ('valu', 'trans')
                for r in it.rd | it.wr | it.awr:
                    if r not in lw: continue
                    p, w = lw[r]
                    if w.kind == 'mfma':
                        big = 12 if w.passes == 8 else 8
                        if it.kind == 'mfma':
                            if r in it.mf_ab: after(p, big)
                            if r in it.mf_c:
                                if it.mf_c == w.mf_d and it.passes == w.passes: pass
                                else: after(p, big - 2)
                            elif r in it.wr and r not in it.rd:
                                after(p, big - 2)
                        else:
                            after(p, big)
                    elif w.kind in ('valu', 'trans'):
                        if r in it.rd:
                            if r[0] in 'va' and r != 'vcc':
                                if it.kind == 'mfma': after(p, 2)
                                if it.op.startswith(('v_readfirstlane', 'v_readlane')): after(p, 1)
                                if it.op.startswith('v_permlane') or it.dpp: after(p, 2)
                                if w.kind == 'trans' and it.kind != 'trans': after(p, 1)
                                if w.kind == 'trans' and it.kind == 'trans': after(p, 1)
                                if any(m.startswith(('op_sel', 'dst_sel')) for m in w.mods) and isvalu and not w.op.startswith('v_pk_'): after(p, 1)
                            else:
                                if it.kind == 'vmem': after(p, 5)
                                if isvalu: after(p, 4 if it.op.startswith(('v_readlane', 'v_writelane')) else 2)
                                if it.kind in ('salu', 'smem'): after(p, 1)
                    elif w.kind == 'salu':
                        if r == 'm0' and r in it.rd and it.kind in ('vmem', 'ds'): after(p, 1)
                if isvalu or it.awr:
                    for r in it.wr | it.awr:
                        if r in lc and isvalu:
                            p, ps = lc[r]
                            after(p, 7 if ps == 8 else 3)
                        if r in ls: after(ls[r], 2)
                n = max(0, req - base)
                if n > it.nops:
                    it.nops = n; changed = True
                pos = base + it.nops
                for r in it.wr: lw[r] = (pos, it)
                for r in it.awr: lw.pop(r, None)
                if it.kind == 'mfma':
                    for r in it.mf_c: lc[r] = (pos, it.passes)
                for r in it.store_data: ls[r] = pos
                if it.op == 's_nop':
                    pos += int(it.toks[0])
                pos += 1

    def emit(self, items=None, ind='    '):
        out = []
        for it in (self.items if items is None else items):
            if isinstance(it, Loop):
                if it.align:
                    out.append('.p2align 6')
                out.append(it.label + ':')
                out += self.emit(it.body, ind)
            elif isinstance(it, Seg):
                out += self.emit(it.body, ind)
            elif isinstance(it, Label):
                out.append(it.name + ':')
            elif isinstance(it, Raw):
                out.append(it.text)
            elif isinstance(it, Fence):
                out += [ind + 's_waitcnt vmcnt(0) lgkmcnt(0)', ind + 's_nop 15']
            else:
                w = []
                if it.wait_vm is not None: w.append(f'vmcnt({it.wait_vm})')
                if it.wait_lg is not None: w.append(f'lgkmcnt({it.wait_lg})')
                if w: out.append(ind + 's_waitcnt ' + ' '.join(w))
                n = it.nops
                while n > 0:
                    k = min(n, 16)
                    out.append(ind + f's_nop {k - 1}')
                    n -= k
                if it.kind != 'pseudo':
                    out.append(ind + it.text)
        return out

    def finish(self):
        self.auto_waits()
        self.auto_nops()
        return '\n'.join(self.emit())

    def max_regs(self):
        mx = {'v': -1, 'a': -1, 's': -1}
        for it in self.trace():
            if isinstance(it, Ins):
                for r in it.rd | it.wr | it.awr:
                    if r[0] in mx and r[1:].isdigit():
                        mx[r[0]] = max(mx[r[0]], int(r[1:]))
        return mx


def rr(kind, base, n=1):
    return f'{kind}{base}' if n == 1 else f'{kind}[{base}:{base + n - 1}]'


def kernel_text(name, prog, min_v=0):
    body = prog.finish()
    mx = prog.max_regs()
    nv = max(mx['v'] + 1, min_v, 4)
    acc = (nv + 3) // 4 * 4
    tot = acc + mx['a'] + 1 if mx['a'] >= 0 else nv
    code = f""".globl {name}
.p2align 8
.type {name},@function
{name}:
{body}
"""
    desc = f""".amdhsa_kernel {name}
  .amdhsa_next_free_vgpr {tot}
  .amdhsa_next_free_sgpr {max(mx['s'] + 1, 16)}
  .amdhsa_accum_offset {acc}
  .amdhsa_group_segment_fixed_size 0
  .amdhsa_kernarg_size 96
  .amdhsa_user_sgpr_count 2
  .amdhsa_user_sgpr_kernarg_segment_ptr 1
  .amdhsa_system_sgpr_workgroup_id_x 1
  .amdhsa_float_denorm_mode_32 3
.end_amdhsa_kernel
"""
    return code, desc
```

```python
from common import *

LDS_TOTAL = 163840
ST_MR = 0x0000
ST_RS2 = 0x60000
ST_MP = 0x28000
ST_FO = 0x80000
ST_FC = 0xA0000
ST_FH = 0xC0000
ST_F2 = 0x100000
ST_FX = 0xE0000
ST_KVC = 0x4000
SPIN = 1 << 20

pX, pWQ, pWK, pWV, pWO, pWG, pWU, pWD, pOUT, pDBG, pWS = 4, 6, 8, 10, 12, 16, 18, 20, 22, 24, 26
sA, sB, sC, sD, sE, sT = 28, 32, 36, 40, 44, 48
s_w, s_b, s_j, s_tok, s_t0, s_t1, s_t2, s_cnt, s_spin = 52, 53, 54, 55, 56, 57, 58, 59, 60
vL16, vZ, vOne = 1, 2, 3
aMEAN, aHR, aA5 = 238, 240, 160


def srd(p, s, ptr, size, off=None, bias=0):
    if off is not None:
        p(f"s_add_u32 s{s}, s{ptr}, s{off}\ns_addc_u32 s{s+1}, s{ptr+1}, 0")
        ptr = s
    if bias > 0:
        p(f"s_add_u32 s{s}, s{ptr}, {hex(bias)}\ns_addc_u32 s{s+1}, s{ptr+1}, 0")
    elif bias < 0:
        p(f"s_sub_u32 s{s}, s{ptr}, {hex(-bias)}\ns_subb_u32 s{s+1}, s{ptr+1}, 0")
    elif off is None:
        p(f"s_mov_b64 s[{s}:{s+1}], s[{ptr}:{ptr+1}]")
    if isinstance(size, str):
        p(size.format(d=f"s{s+2}"))
    else:
        p(f"s_mov_b32 s{s+2}, {hex(size)}")
    p(f"s_mov_b32 s{s+3}, 0x20000")


PFL = ['sc1', 'sc1', 'buffer_store_dword']


def arrive(p, soff):
    p("s_waitcnt vmcnt(0)")
    p(f"{PFL[2]} v{vOne}, v{vZ}, s[{sT}:{sT+3}], s{soff} offen {PFL[1]}")


SLEEP = [0]


def poll(p, label, soff, n, vtmp):
    p(f"""
    s_mov_b32 s{s_spin}, {SPIN}
    v_lshlrev_b32 v{vtmp+1}, 7, v0
    s_mov_b64 exec, {hex((1 << n) - 1) if n < 32 else 0xffff}
    {'s_mov_b32 exec_lo, -1' if n == 32 else ''}""")
    p.add(Raw(f"""    s_branch {label}_go
{label}:
    {f's_sleep {SLEEP[0]}' if SLEEP[0] else ''}
{label}_go:
    buffer_load_dword v{vtmp}, v{vtmp+1}, s[{sT}:{sT+3}], s{soff} offen {PFL[0]}
    s_sub_u32 s{s_spin}, s{s_spin}, 1
    s_waitcnt vmcnt(0)
    v_cmp_eq_u32 vcc, 0, v{vtmp}
    s_cbranch_scc1 {label}_done
    s_cbranch_vccnz {label}
{label}_done:"""))
    p("s_mov_b64 exec, -1")
    p("s_waitcnt vmcnt(0)")


def spread(vm, start, step):
    fill, pos = {}, start
    for ins in vm:
        fill.setdefault(pos, []).append(ins)
        if ins.kind == 'vmem':
            pos += step
    return fill


def gen_fused(name, o):
    dbg = o.get('dbg', '')
    SLEEP[0] = o.get('sleep', 0)
    PFL[:] = o.get('pfl', PFL)
    KVSC = 'sc1' if o.get('kvsc1', False) else ''
    p = Prog()
    main = p.segment()
    p(f"""
    s_cmp_ge_u32 s2, 256
    s_cbranch_scc1 {name}_end
    s_load_dwordx16 s[4:19], s[0:1], 0
    s_load_dwordx8 s[20:27], s[0:1], 64
    v_lshrrev_b32 v1, 6, v0
    v_and_b32 v0, 63, v0
    v_readfirstlane_b32 s{s_w}, v1
    s_and_b32 s{s_t0}, s2, 7
    s_lshr_b32 s{s_t1}, s2, 3
    s_lshr_b32 s{s_b}, s{s_t0}, 1
    s_lshl_b32 s{s_b}, s{s_b}, 2
    s_and_b32 s{s_j}, s{s_t1}, 3
    s_add_u32 s{s_b}, s{s_b}, s{s_j}
    s_and_b32 s{s_j}, s{s_t0}, 1
    s_lshl_b32 s{s_j}, s{s_j}, 3
    s_lshr_b32 s{s_t1}, s{s_t1}, 2
    s_add_u32 s{s_j}, s{s_j}, s{s_t1}
    {f"s_xor_b32 s{s_j}, s{s_j}, {o['jxor']}" if o.get('jxor') else ''}
    s_lshl_b32 s{s_tok}, s{s_b}, 2
    s_add_u32 s{s_tok}, s{s_tok}, s{s_w}
    s_lshl_b32 s{s_tok}, s{s_tok}, 5
    v_lshlrev_b32 v{vL16}, 4, v0
    v_cmp_eq_u32 vcc, 0, v0
    v_mov_b32 v{vOne}, 0x7ffffff0
    v_cndmask_b32 v{vZ}, v{vOne}, 0, vcc
    v_mov_b32 v{vOne}, 1
    """)

    R3 = o.get('rot3', False)
    SL = 24576
    RED, CSQ = 147456, 162816
    vt = 4
    vD = 12
    vD0 = 18
    vB = 22
    vA = 28
    vST = 34
    ONES = 36
    vRS = 40
    s_kv, s_xoff, s_woff, s_dm, s_pb, s_w6 = 61, 62, 63, 64, 65, 66
    s_hd, s_wdo, s_wm0, s_po, s_pk, s_ko, s_vo, s_pj = 67, 68, 69, 70, 71, 72, 73, 3
    p(f"""
    v_lshrrev_b32 v{vt}, 3, v0
    v_lshrrev_b32 v{vt+1}, 4, v0
    v_and_b32 v{vt+2}, 7, v0
    v_xor_b32 v{vt+3}, v{vt+1}, v{vt+2}
    v_lshlrev_b32 v{vt+3}, 4, v{vt+3}
    v_lshl_add_u32 v{vt+3}, v{vt}, 11, v{vt+3}
    v_xor_b32 v{vt+4}, 64, v{vt+3}
    v_add_u32 v{vD}, 4096, v{vt+3}
    v_add_u32 v{vD+1}, {16384 + 4096 - 1024}, v{vt+4}
    v_add_u32 v{vD0}, {128 + 4096 - 2048}, v{vt+3}
    v_add_u32 v{vD0+1}, {16384 + 128 + 4096 - 3072}, v{vt+4}
    v_lshrrev_b32 v{vt+5}, 5, v0
    v_lshlrev_b32 v{vt+5}, 1, v{vt+5}
    v_xor_b32 v{vt+5}, v{vt+5}, v0
    v_lshlrev_b32 v{vD0+2}, 4, v{vt+5}
    v_add_u32 v{vD+2}, {32768 + 4096 - 2048}, v{vt+3}
    v_add_u32 v{vD+3}, {32768 + 16384 + 4096 - 3072}, v{vt+4}
    v_and_b32 v{vt+1}, 1, v{vt+1}
    v_lshlrev_b32 v{vt+1}, 1, v{vt+1}
    v_xor_b32 v{vt+1}, v{vt+1}, v{vt+2}
    v_lshlrev_b32 v{vt+1}, 4, v{vt+1}
    v_lshl_add_u32 v{vD+4}, v{vt}, 11, v{vt+1}
    v_xor_b32 v{vD+5}, 64, v{vD+4}
    v_add_u32 v{vD+5}, {8*2048 - 1024}, v{vD+5}
    s_lshr_b32 s{s_t0}, s{s_j}, 1
    s_lshl_b32 s{s_kv}, s{s_b}, 3
    s_add_u32 s{s_kv}, s{s_kv}, s{s_t0}
    s_lshl_b32 s{s_kv}, s{s_kv}, 4
    s_lshl_b32 s{s_t0}, s{s_kv}, 11
    s_lshl_b32 s{s_t1}, s{s_w}, 9
    s_add_u32 s{s_t0}, s{s_t0}, s{s_t1}
    s_add_u32 s{s_t1}, s{s_w}, 2
    s_mul_i32 s{s_dm}, s{s_t1}, {SL}
    s_mov_b32 m0, s{s_dm}
    s_mul_i32 s{s_xoff}, s{s_b}, {128 * o.get('rotb', 4)}
    s_mul_i32 s{s_woff}, s{s_j}, {128 * o.get('rotj', 2)}
    s_add_u32 s{s_xoff}, s{s_xoff}, s{s_woff}
    s_and_b32 s{s_xoff}, s{s_xoff}, 2047
    s_mul_i32 s{s_w6}, s{s_w}, 6144
    s_lshl_b32 s{s_ko}, s{s_w}, 14
    s_bfe_u32 s{s_vo}, s{s_j}, 0x20001
    s_lshl_b32 s{s_vo}, s{s_vo}, 14
    s_and_b32 s{s_t1}, s{s_tok}, 0x1e0
    s_lshl_b32 s{s_t1}, s{s_t1}, 5
    s_add_u32 s{s_vo}, s{s_vo}, s{s_t1}
    v_lshlrev_b32 v{vt+6}, 7, v0
    """)
    srd(p, sA, pX, S * D * 2 + 4096, bias=-4096)
    p.add(Raw("; @fine 4"))
    p(f"""
    s_bitcmp0_b32 s{s_j}, 0
    s_cselect_b64 s[{sB}:{sB+1}], s[{pWK}:{pWK+1}], s[{pWV}:{pWV+1}]
    s_mov_b32 s{sB+2}, {D * 64}
    s_mov_b32 s{sB+3}, 0x20000
    """)
    if o.get('kvtouch', True):
        p("s_mov_b64 exec, 0xff")
        p(f"buffer_load_dword v255, v{vt+6}, s[{sB}:{sB+3}], s{s_vo} offen", nowaw=True)
        p.cur[-1].awr = set()
        p("s_mov_b64 exec, -1")
    xo = [vD, vD + 1, vD0, vD0 + 1]
    for n in range(8):
        if n == 4:
            p(f"s_add_u32 m0, m0, 4096\ns_add_u32 s{s_t0}, s{s_t0}, 256")
        p(f"buffer_load_dwordx4 v{xo[n & 3]}, s[{sA}:{sA+3}], s{s_t0} offen offset:{(n & 3) * 1024} lds", awr=['P00'], nowaw=True)

    def wkv(q):
        p("s_add_u32 m0, m0, 4096")
        if q: p(f"s_add_u32 s{s_ko}, s{s_ko}, 4096")
        for i in range(4):
            p(f"buffer_load_dwordx4 v{vD0+2}, s[{sB}:{sB+3}], s{s_ko} offen offset:{i*1024} lds", awr=[f'P0{q}'], nowaw=True)
    EARLY = o.get('early', 1)
    for q in range(EARLY): wkv(q)
    p.add(Raw("; @fine 5"))
    p(f"""
    s_lshl_b32 s{s_t0}, s{s_tok}, 11
    s_lshl_b32 s{s_t1}, s{s_w}, 15
    s_lshl_b32 s{s_t2}, s{s_j}, 7
    s_add_u32 s{s_t1}, s{s_t1}, s{s_t2}
    """)
    srd(p, sC, pX, 32 * 2048 + 4096, off=s_t0, bias=-4096)
    srd(p, sD, pWQ, f"s_sub_u32 {{d}}, {D * D * 2}, s{s_t1}", off=s_t1)

    def dma1(m0expr, tag):
        o_ = [Ins(m0expr), Ins(f"s_lshl_b32 s{s_woff}, s{s_xoff}, 10")]
        for i in range(4):
            o_.append(Ins(f"buffer_load_dwordx4 v{vD+i}, s[{sC}:{sC+3}], s{s_xoff} offen offset:{i*1024} lds", awr=[tag], nowaw=True))
        o_ += [Ins("s_add_u32 m0, m0, 4096"), Ins(f"s_add_u32 s{s_xoff}, s{s_xoff}, 128")]
        for i in range(2):
            o_.append(Ins(f"buffer_load_dwordx4 v{vD+4+i}, s[{sD}:{sD+3}], s{s_woff} offen offset:{i*1024} lds", awr=[tag], nowaw=True))
        o_.append(Ins(f"s_and_b32 s{s_xoff}, s{s_xoff}, 2047"))
        return o_
    if o.get('qtouch', True):
        srd(p, sE, pWQ, D * D * 2)
        p(f"""
        s_lshr_b32 s{s_t0}, s2, 3
        s_lshl_b32 s{s_t0}, s{s_t0}, 2
        s_add_u32 s{s_t0}, s{s_t0}, s{s_w}
        s_lshl_b32 s{s_t0}, s{s_t0}, 14
        s_and_b32 s{s_t1}, s{s_j}, 8
        s_lshl_b32 s{s_t1}, s{s_t1}, 7
        s_add_u32 s{s_t0}, s{s_t0}, s{s_t1}
        v_lshlrev_b32 v{vt+6}, 11, v0
        s_mov_b64 exec, 0xff""")
        p(f"buffer_load_dword v255, v{vt+6}, s[{sE}:{sE+3}], s{s_t0} offen offset:384", nowaw=True)
        p.cur[-1].awr = set()
        p("s_mov_b64 exec, -1")
    srd(p, sE, pWO, D * D * 2)

    def rs_loads():
        p(f"""
        s_lshl_b32 s{s_t0}, s2, 2
        s_add_u32 s{s_t0}, s{s_t0}, s{s_w}
        s_lshl_b32 s{s_t0}, s{s_t0}, {21 if 'nors' in dbg else 11}
        buffer_load_dwordx4 {rr('v', vRS, 4)}, v{vL16}, s[{sE}:{sE+3}], s{s_t0} offen
        buffer_load_dwordx4 {rr('v', vRS+4, 4)}, v{vL16}, s[{sE}:{sE+3}], s{s_t0} offen offset:1024
        """)
    if o.get('rsfirst', True): rs_loads()
    srd(p, sT, pWS, ST[1], bias=ST[0])
    srd(p, sA, pWS, KV[1], bias=KV[0])
    p(f"""
    v_and_b32 v{vt}, 15, v0
    v_lshrrev_b32 v{vt+1}, 1, v{vt}
    v_lshrrev_b32 v{vt+2}, 4, v0
    v_xor_b32 v{vt+1}, v{vt+1}, v{vt+2}
    v_lshlrev_b32 v{vt+1}, 4, v{vt+1}
    v_lshl_add_u32 v{vt+1}, v{vt}, 7, v{vt+1}
    v_xor_b32 v{vt+3}, 64, v{vt+1}
    v_add_u32 v{vB}, s{s_w6}, v{vt+1}
    v_add_u32 v{vB+1}, s{s_w6}, v{vt+3}
    v_add_u32 v{vA}, s{s_dm}, v{vt+1}
    v_add_u32 v{vA+1}, s{s_dm}, v{vt+3}
    v_lshrrev_b32 v{vt}, 5, v0
    v_and_b32 v{vt+1}, 3, v0
    v_lshlrev_b32 v{vt+1}, 3, v{vt+1}
    v_bfe_u32 v{vt+2}, v0, 2, 2
    v_bfe_u32 v{vt+3}, v0, 4, 1
    v_lshl_add_u32 v{vt+2}, v{vt+3}, 3, v{vt+2}
    v_lshl_add_u32 v{vt+4}, v{vt}, 10, v{vt+1}
    v_lshl_add_u32 v{vt+4}, v{vt+2}, 6, v{vt+4}
    v_lshl_add_u32 v{vt+4}, v{vt+3}, 5, v{vt+4}
    v_add_u32 v{vA+2}, s{s_dm}, v{vt+4}
    v_xor_b32 v{vA+3}, 32, v{vA+2}
    v_mul_u32_u24 v{vt}, 6144, v{vt}
    v_add_u32 v{vt}, v{vt}, v{vt+1}
    v_lshl_add_u32 v{vt}, v{vt+2}, 7, v{vt}
    v_bfe_u32 v{vt+4}, v0, 3, 2
    v_xor_b32 v{vt+4}, s{s_w}, v{vt+4}
    v_lshl_add_u32 v{vB+2}, v{vt+4}, 5, v{vt}
    v_xor_b32 v{vB+3}, 32, v{vB+2}
    v_xor_b32 v{vB+4}, 64, v{vB+2}
    v_xor_b32 v{vB+5}, 0x60, v{vB+2}
    """)
    for i in range(4):
        p(f"v_mov_b32 v{ONES+i}, 0x3f803f80")
    on = rr('v', ONES, 4)
    AB = 48
    CSA = 80
    PA = 84
    FB = 128
    TR = 112
    NR = 8
    Q = lambda x, m: rr('v', 16 + x * 8 + m * 4, 4)
    Sb = lambda x: 64 + 16 * x
    RSV = 112
    Nb = lambda x: 144 + 16 * x
    Ob = lambda x: 176 + 16 * x
    Lb = lambda x: 208 + 4 * x
    Pb = lambda x: 216 + 8 * x
    SEL, vWD, vPF, vDum, vOS, vPW, vCS, vGP, vMA, vRA, vFF = 232, 236, 240, 241, 242, 243, 244, 245, 246, 247, 248

    def att_init():
        for i in list(range(Ob(0), Lb(1) + 4, 2)) + list(range(Pb(1), Pb(1) + 8, 2)):
            p(f"v_pk_mov_b32 {rr('v', i, 2)}, 0, 0")
        for i in range(8): p(f"v_accvgpr_write_b32 a{64 + (NR-1)*8 + i}, 0")
    for i in range(AB, CSA + 4, 2):
        p(f"v_pk_mov_b32 {rr('v', i, 2)}, 0, 0")
    p.add(Raw(f"""    s_or_b32 s{s_t0}, s2, s{s_w}
    s_cbranch_scc1 {name}_noclr
    s_movk_i32 s{s_t0}, {ST_KVC}
""" + "".join(f"    buffer_store_dwordx4 {rr('v', AB, 4)}, v{vL16}, s[{sT}:{sT+3}], s{s_t0} offen offset:{i*1024} sc1\n" for i in range(4)) + f"{name}_noclr:"))
    att_init()
    for i in range(4):
        p(f"v_mov_b32 v{vFF+i}, -1")
    p(f"""
    v_lshrrev_b32 v{vt}, 2, v0
    v_and_b32 v{vt}, 4, v{vt}
    v_xor_b32 v{vt}, v{vt}, v0
    v_and_b32 v{vt}, 7, v{vt}
    v_cmp_eq_u32 vcc, 0, v{vt}
    v_lshrrev_b32 v{vt}, 3, v0
    v_and_b32 v{vt+1}, 6, v{vt}
    v_cndmask_b32 v{SEL}, 0, v{ONES}, vcc
    v_mov_b32 v{SEL+1}, v{SEL}
    v_mov_b32 v{SEL+2}, v{SEL}
    v_mov_b32 v{SEL+3}, v{SEL}
    v_and_b32 v{vt+2}, 7, v0
    v_xor_b32 v{vt+1}, v{vt+1}, v{vt+2}
    v_lshlrev_b32 v{vt+1}, 4, v{vt+1}
    v_lshl_add_u32 v{vWD}, v{vt}, 11, v{vt+1}
    v_add_u32 v{vWD+1}, {8*2048 - 1024}, v{vWD}
    v_add_u32 v{vWD+2}, {16*2048 - 2048}, v{vWD}
    v_add_u32 v{vWD+3}, {24*2048 - 3072}, v{vWD}
    s_lshl_b32 s{s_wdo}, s{s_w}, 16
    s_lshl_b32 s{s_t1}, s{s_j}, 7
    s_add_u32 s{s_wdo}, s{s_wdo}, s{s_t1}
    s_lshl_b32 s{s_wm0}, s{s_w}, 12
    {f's_and_b32 s{s_t0}, s{s_j}, 1' if R3 else ''}
    {f's_lshl_b32 s{s_t0}, s{s_t0}, 16' if R3 else ''}
    {f's_add_u32 s{s_wm0}, s{s_wm0}, s{s_t0}' if R3 else ''}
    s_lshl_b32 s{s_pj}, s{s_tok}, 6
    s_add_u32 s{s_pj}, s{s_pj}, s{s_t1}
    s_lshl_b32 s{s_hd}, s{s_j}, 1
    s_lshr_b32 s{s_t0}, s{s_w}, 1
    s_add_u32 s{s_hd}, s{s_hd}, s{s_t0}
    v_mul_u32_u24 v{vt}, 9363, v0
    v_lshrrev_b32 v{vt}, 16, v{vt}
    v_mul_u32_u24 v{vt+1}, {7168 - 7*128}, v{vt}
    v_cmp_gt_u32 vcc, 14, v0
    v_lshl_add_u32 v{vPF}, v0, 7, v{vt+1}
    s_lshr_b32 s{s_t0}, s2, 3
    v_cndmask_b32 v{vPF}, -1, v{vPF}, vcc
    v_and_b32 v{vPF}, 0x7fffff80, v{vPF}
    s_lshl_b32 s{s_t0}, s{s_t0}, 2
    s_add_u32 s{s_t0}, s{s_t0}, s{s_w}
    s_mul_i32 s{s_pk}, s{s_t0}, {2 * 7168}
    s_and_b32 s{s_t0}, s2, 7
    s_mul_i32 s{s_t0}, s{s_t0}, 896
    s_add_u32 s{s_pk}, s{s_pk}, s{s_t0}
    s_mov_b32 s{s_po}, s{s_pk}
    v_and_b32 v{vt}, 15, v0
    v_bfe_u32 v{vt+1}, v0, 4, 1
    v_lshrrev_b32 v{vt+2}, 5, v0
    v_lshrrev_b32 v{vt+3}, 4, v0
    v_lshlrev_b32 v{vMA}, 3, v{vt}
    v_lshlrev_b32 v{vRA}, 7, v{vt+2}
    v_add_u32 v253, 8192, v{vL16}
    v_lshl_add_u32 v{vPW}, v{vt+3}, 2, v{vMA}
    v_lshlrev_b32 v{vt}, 4, v{vt}
    v_lshl_add_u32 v{vOS}, v{vt+1}, 15, v{vt}
    v_lshl_add_u32 v{vOS}, v{vt+2}, 8, v{vOS}
    s_lshl_b32 s{s_t0}, s{s_w}, 6
    s_add_u32 s{s_t0}, s{s_t0}, {CSQ}
    v_lshl_add_u32 v{vCS}, v{vt+3}, 4, s{s_t0}
    v_lshlrev_b32 v{vGP}, 5, v{vMA}
    s_bitcmp1_b32 s{s_j}, 0
    s_cselect_b32 s{s_t0}, 9, 10
    s_cselect_b32 s{s_t1}, 8, 9
    v_lshl_add_u32 v{vST}, v{vt+1}, s{s_t0}, v{vt}
    v_lshl_add_u32 v{vST}, v{vt+2}, s{s_t1}, v{vST}
    s_mul_i32 s{s_t0}, s{s_w}, 5120
    s_add_u32 s{s_t0}, s{s_t0}, {RED - 5120}
    v_add_u32 v{vST+1}, s{s_t0}, v{vL16}
    v_and_b32 v{vt}, 3, v0
    v_cmp_eq_u32 s[0:1], 1, v{vt}
    v_cmp_eq_u32 s[14:15], 2, v{vt}
    v_cmp_eq_u32 s[74:75], 3, v{vt}
    v_bfe_u32 v{vt}, v0, 2, 2
    v_cmp_eq_u32 vcc, v{vt}, v{vt+3}
    """)
    SMF = o.get('smf', True)
    vIX = 252
    if SMF:
        p(f"""
        v_and_b32 v{vt+5}, 6, v0
        v_cmp_eq_u32 s[{sB}:{sB+1}], 0, v{vt+5}
        """.replace(f"s[{sB}:{sB+1}]", "s[76:77]" if False else "s[58:59]"))
        p(f"""
        v_cndmask_b32 v{SEL}, 0, v{ONES}, s[58:59]
        v_cndmask_b32 v{SEL+1}, 0, v{ONES}, s[58:59]
        v_cmp_eq_u32 s[58:59], 4, v{vt+5}
        v_and_b32 v{vIX}, 1, v0
        v_mul_u32_u24 v{vIX}, 0xaaaa, v{vIX}
        v_cndmask_b32 v{SEL+2}, 0, v{ONES}, s[58:59]
        v_cndmask_b32 v{SEL+3}, 0, v{ONES}, s[58:59]
        v_add_u32 v{vIX}, 0x4444, v{vIX}""")
    smf = lambda x: f"v_smfmac_f32_16x16x64_bf16 {rr('v', Lb(x), 4)}, {rr('v', SEL, 4)}, {rr('v', Pb(x), 8)}, v{vIX}"
    for q in range(EARLY, 4): wkv(q)
    srd(p, sB, pDBG, 256)
    if not o.get('rsfirst', True): rs_loads()
    p.add(Raw("; @stamp 0"))
    X0 = lambda G: rr('a', FB + 4 * G, 4)
    W0 = lambda G, e: rr('a', FB + 32 + (G * 2 + e) * 4, 4)
    acc0 = lambda k: rr('v', PA + 4 * k, 4)

    def rd0(q):
        o_ = []
        for G in (2 * q, 2 * q + 1):
            o_.append(Ins(f"ds_read_b128 {X0(G)}, v{vA + (G & 1)} offset:{q * 2048}", rd=[f'P0{q}']))
            o_ += [Ins(f"ds_read_b64_tr_b16 {rr('a', FB + 32 + (G*2+e)*4 + 2*b, 2)}, v{vA+2+e} offset:{8192 + G*2048 + b*256}")
                   for e in range(2) for b in range(2)]
        return o_

    def mf0(q):
        o_ = []
        for G in (2 * q, 2 * q + 1):
            c = "0" if G == 0 else None
            o_ += [mf16(acc0(4), on, X0(G), c), mf16(acc0(5), X0(G), X0(G), c), mf16(acc0(0), W0(G, 0), X0(G), c),
                   mf16(acc0(2), W0(G, 0), on, c), mf16(acc0(1), W0(G, 1), X0(G), c), mf16(acc0(3), W0(G, 1), on, c)]
        return o_
    p.add(rd0(0))
    p.add(Raw("; @fine 6"))
    later = dma1(f"s_mov_b32 m0, s{s_w6}", 'L0') + dma1(f"s_add_u32 m0, s{s_w6}, {SL}", 'Lx')

    def some(k):
        n = 0
        while later and n < k:
            x = later.pop(0); p.add(x); n += x.kind == 'vmem'
    RSA = PA + 24
    for q in range(4):
        rds = rd0(q + 1) if q < 3 else []
        for i, m in enumerate(mf0(q)):
            p(m)
            if rds: p.add(rds.pop(0))
            if i % 4 == 1: some(1)
    assert EARLY < 4
    p.add(Raw(f"""    s_or_b32 s{s_t0}, s2, s{s_w}
    s_cbranch_scc1 {name}_nordy
    buffer_store_dword v{vOne}, v{vZ}, s[{sB}:{sB+3}], 0 offen sc1
{name}_nordy:"""))
    p(mf16(rr('v', RSA, 4), on, rr('v', vRS, 4), "0"))
    p(mf16(rr('v', RSA, 4), on, rr('v', vRS + 4, 4)))
    some(99)
    p.add(Raw("; @fine 7"))
    g = PA + 20
    p(f"""
    v_cndmask_b32 v{g}, v{g}, v{g+1}, s[0:1]
    v_cndmask_b32 v{g}, v{g}, v{g+2}, s[14:15]
    v_cndmask_b32 v{g}, v{g}, v{g+3}, s[74:75]
    v_cndmask_b32 v{PA+17}, 0, v{g}, vcc
    v_cmp_eq_u32 vcc, s{s_w}, v0""")
    for k in (8, 4, 2, 1):
        p(f"v_add_f32_dpp v{RSA}, v{RSA}, v{RSA} row_ror:{k} row_mask:0xf bank_mask:0xf")
    p(f"""
    v_cndmask_b32 v{PA+18}, 0, v{RSA}, vcc
    s_cmp_eq_u32 s{s_w}, 0
    s_cbranch_scc1 {name}_p0fin
    """)
    red_w = p.segment()
    for k in (4, 0, 2, 1, 3):
        p(f"ds_write_b128 v{vST+1}, {acc0(k)} offset:{k*1024}")
    p("s_waitcnt lgkmcnt(0)")
    p("s_barrier")
    p(f"s_branch {name}_p1")
    fin = p.segment()
    p(f"{name}_p0fin:")
    p(f"""
    s_lshl_b32 s{s_t0}, s2, 11
    s_add_u32 s{s_t0}, s{s_t0}, {ST_FO}
    buffer_store_dwordx4 {rr('v', AB, 4)}, v{vL16}, s[{sT}:{sT+3}], s{s_t0} offen sc1
    buffer_store_dwordx4 {rr('v', AB, 4)}, v{vL16}, s[{sT}:{sT+3}], s{s_t0} offen offset:1024 sc1
    s_lshl_b32 s{s_t0}, s2, 9
    s_add_u32 s{s_t0}, s{s_t0}, {ST_F2}
    s_mov_b32 exec_hi, 0
    buffer_store_dwordx4 {rr('v', AB, 4)}, v{vL16}, s[{sT}:{sT+3}], s{s_t0} offen sc1
    s_mov_b32 exec_hi, -1
    s_lshl_b32 s{s_t0}, s2, 7
    s_mov_b32 s{s_t1}, {f32hex(1.0/1024)}
    v_lshlrev_b32 v{vt+3}, 2, v0
    s_add_u32 s{s_t0}, s{s_t0}, {ST_RS2}""")
    p("s_barrier")
    for k in (4, 0, 2, 1, 3):
        for w in range(3):
            p(f"ds_read_b128 {rr('v', TR + (k*3+w)*4, 4)}, v{vST+1} offset:{5120*(w+1) + k*1024}")

    def red(k):
        a, b = PA + 4 * k, TR + k * 12
        for h in (0, 2):
            p(f"v_pk_add_f32 {rr('v', a+h, 2)}, {rr('v', a+h, 2)}, {rr('v', b+h, 2)}")
            p(f"v_pk_add_f32 {rr('v', b+4+h, 2)}, {rr('v', b+4+h, 2)}, {rr('v', b+8+h, 2)}")
        for h in (0, 2):
            p(f"v_pk_add_f32 {rr('v', a+h, 2)}, {rr('v', a+h, 2)}, {rr('v', b+4+h, 2)}")
    vM, vR = PA + 20, PA + 21
    d = PA + 24
    red(4)
    p(f"""
    s_mov_b32 exec_hi, 0
    buffer_store_dword v{PA+18}, v{vt+3}, s[{sT}:{sT+3}], s{s_t0} offen sc1
    s_mov_b32 exec_hi, -1""")
    xsum16_32(p, f"v{PA+17}", f"v{vt}")
    p(f"""
    v_mul_f32 v{vM}, s{s_t1}, v{PA+16}
    v_mul_f32 v{vt}, v{vM}, v{vM}
    v_fma_f32 v{vt}, v{PA+17}, s{s_t1}, -v{vt}
    v_max_f32 v{vt}, 0, v{vt}
    v_add_f32 v{vt}, {f32hex(1e-5)}, v{vt}
    v_rsq_f32 v{vR}, v{vt}
    s_lshr_b32 s{s_t0}, s{s_kv}, 5
    s_lshl_b32 s{s_t0}, s{s_t0}, 12
    s_bfe_u32 s{s_t1}, s{s_kv}, 0x10004
    """)
    mr = rr('v', vM, 2)
    for e in range(2):
        red(e); red(2 + e)
        a = PA + 4 * e
        for r in (0, 2): p(f"v_pk_fma_f32 {rr('v', a+r, 2)}, {rr('v', a+8+r, 2)}, {mr}, {rr('v', a+r, 2)} op_sel_hi:[1,0,1] neg_lo:[0,1,0] neg_hi:[0,1,0]")
        for r in (0, 2): p(f"v_pk_mul_f32 {rr('v', a+r, 2)}, {rr('v', a+r, 2)}, {mr} op_sel:[0,1]")
        p(f"v_cvt_pk_bf16_f32 v{d+2*e}, v{a}, v{a+1}")
        p(f"v_cvt_pk_bf16_f32 v{d+2*e+1}, v{a+2}, v{a+3}")
    p(f"""
    s_bitcmp1_b32 s{s_j}, 0
    s_cbranch_scc1 {name}_p0v
    """)
    fin_k = p.segment()
    p(f"""
    s_lshl_b32 s{s_t1}, s{s_t1}, 8
    s_add_u32 s{s_t0}, s{s_t0}, s{s_t1}
    buffer_store_dwordx4 {rr('v', d, 4)}, v{vST}, s[{sA}:{sA+3}], s{s_t0} offen sc1
    s_lshl_b32 s{s_t0}, s{s_kv}, 3
    s_mov_b64 exec, 0xffff
    buffer_store_dwordx2 {mr}, v{vMA}, s[{sT}:{sT+3}], s{s_t0} offen offset:{ST_MR} sc1
    s_mov_b64 exec, -1
    s_branch {name}_p1""")
    fin_v = p.segment()
    p(f"""
    {name}_p0v:
    v_lshrrev_b32 v{vt+1}, 4, v0
    v_add_u32 v{vt}, v{vt+1}, v{vMA}
    v_lshlrev_b32 v{vt}, 3, v{vt}
    v_add_u32 v{vt}, {RED}, v{vt}
    ds_write_b64 v{vt}, {rr('v', d, 2)}
    ds_write_b64 v{vt}, {rr('v', d+2, 2)} offset:32
    v_lshrrev_b32 v{vt+3}, 2, v0
    v_lshlrev_b32 v{vt+3}, 6, v{vt+3}
    v_and_b32 v{vt+4}, 3, v0
    v_lshl_add_u32 v{vt+3}, v{vt+4}, 3, v{vt+3}
    v_add_u32 v{vt+3}, {RED}, v{vt+3}
    ds_read_b64_tr_b16 {rr('v', PA, 2)}, v{vt+3}
    ds_read_b64_tr_b16 {rr('v', PA+2, 2)}, v{vt+3} offset:32
    s_lshl_b32 s{s_t1}, s{s_t1}, 10
    s_add_u32 s{s_t0}, s{s_t0}, s{s_t1}
    v_permlane32_swap_b32 v{PA}, v{PA+2}
    v_permlane32_swap_b32 v{PA+1}, v{PA+3}
    buffer_store_dwordx4 {rr('v', PA, 4)}, v{vST}, s[{sA}:{sA+3}], s{s_t0} offen offset:2048 sc1
    """)

    rest = p.segment()
    p(f"{name}_p1:")
    p.add(Raw("; @stamp 1"))
    ACC = lambda F, t: rr('v', AB + (F * 2 + t) * 4, 4)
    X1 = lambda s, t, g: rr('a', FB + s * 48 + (t * 2 + g) * 4, 4)
    W1 = lambda s, F, g: rr('a', FB + s * 48 + 16 + (F * 2 + g) * 4, 4)

    def reads1(s, base, va):
        xr = lambda t, g: Ins(f"ds_read_b128 {X1(s, t, g)}, v{va+g} offset:{base + t*2048}")
        wr = lambda F, g, b: Ins(f"ds_read_b64_tr_b16 {rr('a', FB + s*48 + 16 + (F*2+g)*4 + 2*b, 2)}, v{va+2+F} offset:{base + 2*g*6144 + 4096 + b*512}")
        return [wr(0, 0, 0), wr(0, 0, 1), wr(0, 1, 0), wr(0, 1, 1), xr(0, 0), xr(0, 1), xr(1, 0), xr(1, 1)] + \
               [wr(F, g, b) for F in range(1, 4) for g in range(2) for b in range(2)]
    rdy = f"buffer_load_dword v{vt+5}, v{vZ}, s[{sB}:{sB+3}], 0 offen sc1"
    for u in range(2, 5):
        if u == 2: p.add(Raw(f"    s_cmp_lg_u32 s{s_w}, 0\n    s_cbranch_scc1 {name}_nor\n    {rdy}\n{name}_nor:"))
        p.add(dma1(f"s_add_u32 m0, s{s_w6}, {u*SL}", 'Lx'))
    p.add(Raw("; @fine 8"))
    p("s_barrier", rd=['L0'])
    p.add(Raw("; @fine 9"))
    p.add(reads1(0, 0, vB))
    for i in range(6):
        p(f"v_mov_b32 v{vA+i}, v{vB+i}")
    p(f"""
    s_mov_b32 s{s_pb}, {2 * SL}
    s_add_u32 s{s_dm}, s{s_w6}, {2 * 2 * SL}
    s_and_b32 s{s_kv}, s2, 15
    s_lshl_b32 s{s_kv}, s{s_kv}, 8
    s_add_u32 s{s_kv}, s{s_kv}, {ST_KVC}
    s_mov_b32 s{s_spin}, {SPIN}
    s_lshl_b32 s{s_t2}, s{s_w}, 8
    s_add_u32 s{s_t2}, s{s_t2}, 5
    s_mov_b32 s{s_cnt}, 5""")

    def stage1(s, head, fill, rds):
        mf = [mf16(rr('v', CSA, 4), W1(s, 0, g), on) for g in range(2)]
        for F in range(4):
            for t in range(2):
                mf += [mf16(ACC(F, t), W1(s, F, g), X1(s, t, g)) for g in range(2)]
        p.add(head)
        rds = list(rds)
        for i, m in enumerate(mf):
            if 'p1nomf' not in dbg: p(m)
            for _ in range(2 if i in (0, 1) else 1):
                if rds:
                    x = rds.pop(0)
                    if 'p1nods' not in dbg: p.add(x)
            p.add([x for x in fill.get(i, []) if not ('p1nodma' in dbg and getattr(x, 'kind', '') == 'vmem')])

    def one_per_gap(lst, start):
        return {start + i: [x] for i, x in enumerate(lst)}

    def spaced(lst):
        pos = [0, 1, 2, 5, 8, 11, 12, 13, 14, 17, 17]
        out = {}
        for k, x in zip(pos, lst): out.setdefault(k, []).append(x)
        return out
    upd = lambda: {3: [Ins(f"v_add_u32 v{vA+2}, s{s_pb}, v{vB+2}")], 6: [Ins(f"v_add_u32 v{vA}, s{s_pb}, v{vB}")],
                   7: [Ins(f"v_add_u32 v{vA+1}, s{s_pb}, v{vB+1}")], 10: [Ins(f"v_add_u32 v{vA+3}, s{s_pb}, v{vB+3}")],
                   15: [Ins(f"v_add_u32 v{vA+4}, s{s_pb}, v{vB+4}")], 17: [Ins(f"v_add_u32 v{vA+5}, s{s_pb}, v{vB+5}")]}
    nextpb = lambda: [Ins(f"s_add_u32 s{s_pb}, s{s_pb}, {2*SL}"), Ins(f"s_cmp_eq_u32 s{s_pb}, {6*SL}"), Ins(f"s_cselect_b32 s{s_pb}, 0, s{s_pb}")]

    def merge(*fs):
        out = {}
        for f in fs:
            for k, v in f.items(): out.setdefault(k, []).extend(v)
        return out
    sync = lambda n: [Ins(f"s_waitcnt vmcnt({n}) lgkmcnt(12)"), Ins("s_barrier")]
    s_nx = s_t0
    p(f"s_mov_b32 s{s_nx}, s{s_w6}")
    p.add(Raw("; @fine 10"))
    p.begin_loop(f"{name}_p1loop", 5, align=False)
    stage1(0, sync(18), merge(spaced(dma1(f"s_add_u32 m0, s{s_dm}, {SL}", 'Lx')[:-1]), upd(), {16: [Ins(f"s_and_b32 s{s_xoff}, s{s_xoff}, 2047")]}), reads1(1, SL, vA))
    arr = Raw(f"""    s_cmp_lg_u32 s{s_cnt}, s{s_t2}
    s_cbranch_scc1 {name}_noarr
{name}_rchk:
    v_readfirstlane_b32 s{s_t1}, v{vt+5}
    s_sub_u32 s{s_spin}, s{s_spin}, 1
    s_cselect_b32 s{s_t1}, 1, s{s_t1}
    s_cmp_lg_u32 s{s_t1}, 0
    s_cbranch_scc1 {name}_arr
    {rdy}
    s_waitcnt vmcnt(0)
    s_branch {name}_rchk
{name}_arr:
    buffer_atomic_add v{vOne}, v{vZ}, s[{sT}:{sT+3}], s{s_kv} offen
{name}_noarr:""")
    stage1(1, sync(18) + [arr], merge({3: [Ins(f"s_mov_b32 s{s_dm}, s{s_nx}")], 4: [Ins(f"s_add_u32 s{s_nx}, s{s_pb}, s{s_w6}")],
                                        6: nextpb()[:1], 7: nextpb()[1:], 9: [Ins(f"s_sub_u32 s{s_cnt}, s{s_cnt}, 1")],
                                        15: [Ins(f"s_and_b32 s{s_xoff}, s{s_xoff}, 2047")], 16: [Ins(f"s_cmp_lg_u32 s{s_cnt}, 0")]},
                                       spaced(dma1(f"s_mov_b32 m0, s{s_nx}", 'Lx')[:-1])), reads1(0, 0, vA))
    p(f"s_cbranch_scc1 {name}_p1loop")
    p.end_loop()
    p.add(Raw("; @fine 11"))
    Kf = lambda b, m: rr('a', (b % NR) * 8 + m * 4, 4)
    Vf = lambda b, m: rr('a', 64 + (b % NR) * 8 + m * 4, 4)
    vMR = 84
    kld = lambda b, m: Ins(f"buffer_load_dwordx4 {Kf(b, m)}, v{vL16}, s[{sA}:{sA+3}], s{s_ko} offen offset:{m*1024} {KVSC}")
    vld = lambda b, m: Ins(f"buffer_load_dwordx4 {Vf(b, m)}, v{vL16}, s[{sA}:{sA+3}], s{s_vo} offen offset:{2048 + m*1024} {KVSC}")

    vK2 = 253
    kld2 = lambda b, m: Ins(f"buffer_load_dwordx4 {Kf(b, m)}, v{vK2}, s[{sA}:{sA+3}], s{s_vo} offen offset:{m*1024} {KVSC}")

    def kv_list():
        o_ = [Ins(f"s_mov_b32 s{s_ko}, 0"), Ins(f"s_mov_b32 s{s_vo}, 0")]
        for b in range(NR):
            o_ += [kld(b, 0), kld(b, 1), Ins(f"s_add_u32 s{s_ko}, s{s_ko}, 4096")]
            if b < NR - 2:
                o_ += [vld(b, 0), vld(b, 1), Ins(f"s_add_u32 s{s_vo}, s{s_vo}, 4096")]
        return o_

    def fill_kv():
        p.add(kv_list())
    gl = f"buffer_load_dword v{vt+5}, v{vGP}, s[{sT}:{sT+3}], s{s_kv} offen sc1"
    stage1(0, sync(18), merge(spaced(dma1(f"s_add_u32 m0, s{s_dm}, {SL}", 'Lx')[:-1]), upd(), {16: [Ins(f"s_and_b32 s{s_xoff}, s{s_xoff}, 2047")]}), reads1(1, SL, vA))
    gp = Raw(f"""    s_branch {name}_gchk
{name}_gpoll:
    {gl}
    s_waitcnt vmcnt(0)
{name}_gchk:
    v_cmp_gt_u32 vcc, 16, v{vt+5}
    s_sub_u32 s{s_spin}, s{s_spin}, 1
    s_cbranch_scc1 {name}_gdone
    s_cbranch_vccnz {name}_gpoll
{name}_gdone:""")
    todo = [Ins(f"buffer_load_dwordx2 {rr('v', vMR+2*t, 2)}, v{vMA}, s[{sT}:{sT+3}], s{s_t0} offen offset:{ST_MR + 128*t} sc1") for t in range(2)] + kv_list()

    def take(k):
        o_, n = [], 0
        while todo and n < k:
            x = todo.pop(0); o_.append(x); n += x.kind == 'vmem'
        return o_
    PS = o.get('pstage', 13)
    for u in range(11, 16):
        head = sync(6 * (14 - u)) if u < PS else [Raw("; @fine 12")] + sync(0) + [Raw("; @fine 13"), gp, Raw("; @fine 14")] if u == PS else []
        fill = {11: one_per_gap(nextpb(), 8), 12: upd(), 15: {10: [Ins(f"ds_write_b128 v{vCS}, {rr('v', CSA, 4)}")]}}.get(u, {})
        if u == PS - 1:
            fill = merge(fill, {2: [Ins(f"s_movk_i32 s{s_kv}, {ST_KVC}")], 4: [Ins(gl)], 5: [Ins(f"s_mov_b32 s{s_spin}, {SPIN}")],
                                11: [Ins(f"s_lshl_b32 s{s_t0}, s{s_tok}, 3")]})
        if u >= PS:
            fill = merge(fill, {i: take(1) for i in range(2, 18, 3)})
        stage1(u & 1, head, fill, reads1(1 - (u & 1), 0 if u & 1 else SL, vA) if u < 15 else [])
    p.add(Raw("; @stamp 2"))

    p("s_waitcnt lgkmcnt(0)")
    p("s_barrier")
    CS = 88
    for f in range(4):
        if f: p(f"v_xor_b32 v{vt+f}, {f*64}, v{vCS}")
        p(f"ds_read_b128 {rr('v', CS + 4*f, 4)}, v{vt+f if f else vCS}")
    XT = 131072
    QP = 112
    for t in range(2):
        p(f"v_accvgpr_write_b32 a{aMEAN+t}, v{vMR+2*t}")
        p(f"v_mul_f32 v{vMR+2*t+1}, {f32hex(LOG2E * DH ** -0.5)}, v{vMR+2*t+1}")
    p(f"s_bitcmp1_b32 s{s_w}, 0\ns_cselect_b64 vcc, -1, 0")
    for hd in range(2):
        for t in range(2):
            mr = rr('v', vMR + 2 * t, 2)
            for f in range(2):
                F = 2 * hd + f
                a = AB + (F * 2 + t) * 4
                dq = QP + hd * 8 + t * 4 + 2 * f
                for r in (0, 2): p(f"v_pk_fma_f32 {rr('v', a+r, 2)}, {rr('v', CS+4*F+r, 2)}, {mr}, {rr('v', a+r, 2)} op_sel_hi:[1,0,1] neg_lo:[0,1,0] neg_hi:[0,1,0]")
                for r in (0, 2): p(f"v_pk_mul_f32 {rr('v', a+r, 2)}, {rr('v', a+r, 2)}, {mr} op_sel:[0,1]")
                p(f"v_cvt_pk_bf16_f32 v{dq}, v{a}, v{a+1}")
                p(f"v_cvt_pk_bf16_f32 v{dq+1}, v{a+2}, v{a+3}")
                p.add(take(1))
        for i in range(8 * hd, 8 * hd + 8):
            p(f"v_cndmask_b32 v{16+i}, v{QP+i}, v{QP+(i^2)}, vcc")
        p.add(take(1))
        for i in range(4):
            p(f"v_permlane16_swap_b32 v{16+hd*8+i}, v{16+hd*8+4+i}")
    if 'Q' in dbg:
        srd(p, sB, pWS, QF[1], bias=QF[0])
        p(f"s_lshl_b32 s{s_t0}, s{s_hd}, 17\ns_lshl_b32 s{s_t1}, s{s_tok}, 6\ns_add_u32 s{s_t0}, s{s_t0}, s{s_t1}\ns_xor_b32 s{s_t1}, s{s_t0}, 0x20000")
        for x in range(2):
            for m in range(2):
                p(f"buffer_store_dwordx4 {Q(x, m)}, v{vL16}, s[{sB}:{sB+3}], s{s_t1 if x else s_t0} offen offset:{m*1024}")
    s_safe, s_fo = 65, 61
    SENT = o.get('sent', False)
    p(f"""
    s_mov_b64 s[{sD}:{sD+1}], s[{pWG}:{pWG+1}]
    s_mov_b32 s{sD+2}, {D * FF * 2 if o.get('prefetch', True) else 0}
    s_mov_b32 s{s_safe}, 0
    s_lshl_b32 s{s_fo}, s{s_b}, 4
    s_add_u32 s{s_fo}, s{s_fo}, s{s_j}
    s_lshl_b32 s{s_fo}, s{s_fo}, 2
    s_add_u32 s{s_fo}, s{s_fo}, s{s_w}
    s_lshl_b32 s{s_fo}, s{s_fo}, 13
    s_add_u32 s{s_fo}, s{s_fo}, {XC[0] - OF[0]}
    """)
    srd(p, sB, pWS, XC[0] + XC[1] - OF[0], bias=OF[0])

    def half(x, Kb, Vb, C, extra):
        y = 1 - x
        Sx, Px, Sy, Py = Sb(x), Pb(x), rr('v', Sb(y), 16), Pb(y)
        valu = []
        for i in range(8):
            valu.append(f"v_exp_f32 v{Sx+2*i}, v{Sx+2*i}")
            valu.append(f"v_exp_f32 v{Sx+2*i+1}, v{Sx+2*i+1}")
            if i > 0:
                valu.append(f"v_cvt_pk_bf16_f32 v{Px+i-1}, v{Sx+2*i-2}, v{Sx+2*i-1}")
        valu.append(f"v_cvt_pk_bf16_f32 v{Px+7}, v{Sx+14}, v{Sx+15}")
        Oy, Ly = rr('v', Ob(y), 16), rr('v', Lb(y), 4)
        sel = rr('v', SEL, 4)
        mf = [mf32(Sy, Kf(Kb, 0), Q(y, 0), C(y)), mf32(Sy, Kf(Kb, 1), Q(y, 1)),
              mf32(Oy, Vf(Vb, 0), rr('v', Py, 4)), mf16(Ly, sel, rr('v', Py, 4)),
              mf32(Oy, Vf(Vb, 1), rr('v', Py + 4, 4)), mf16(Ly, sel, rr('v', Py + 4, 4))]
        pos = (0, 4, 8, 12, 15, 19)
        if SMF:
            mf = [mf[0], mf[1], mf[2], mf[4], smf(y)]
            pos = o.get('apos', (0, 5, 10, 15, 20))
        for i, v in enumerate(valu):
            if i in pos:
                k = pos.index(i)
                p(mf[k])
                p.add(extra.get(k, []))
            p(v)

    def attention(tag, C, side, pre):
        p(mf32(rr('v', Sb(0), 16), Kf(0, 0), Q(0, 0), C(0)))
        p(mf32(rr('v', Sb(0), 16), Kf(0, 1), Q(0, 1)))
        p(f"s_mov_b32 s{s_cnt}, {64 // NR}")
        p.add(pre)
        p.begin_loop(f"{name}_{tag}_loop", 64 // NR)
        for kt in range(NR):
            e0 = {0: [vld(kt + NR - 2, 0)], 1: [vld(kt + NR - 2, 1)],
                  4: [Ins(f"wait {Kf(kt+1, 0)}, {Kf(kt+1, 1)}, {Vf(kt, 0)}, {Vf(kt, 1)}")]}
            e1 = {0: [kld2(kt, 0)], 1: [kld2(kt, 1)], 2: [Ins(f"s_add_u32 s{s_vo}, s{s_vo}, 4096")]}
            if side:
                if kt == 0: e0[2] = [Ins(f"s_and_b32 m0, s{s_wm0}, 0x1ffff")]
                if kt % 2 == 0 and 'nowodma' not in dbg:
                    i = kt // 2
                    e0[3] = [Ins(f"buffer_load_dwordx4 v{vWD+i}, s[{sE}:{sE+3}], s{s_wdo} offen offset:{i*1024} lds", awr=['LW'], nowaw=True)]
                if kt == 0: e1[3] = [Ins(f"s_add_u32 s{s_wm0}, s{s_wm0}, 16384")]
                if kt in (1, 3):
                    e0[2] = [Ins(f"buffer_load_dword v{vDum}, v{vPF}, s[{sD}:{sD+3}], s{s_po} offen", nowaw=True)]
                    e0[3] = [Ins(f"s_add_u32 s{s_po}, s{s_po}, {256 * 7168}")]
                if kt in (3, 4):
                    e1[3] = [Ins(f"s_cmp_eq_u32 s{s_cnt}, {7 if kt == 3 else 5}")]
                    e1[4] = [Ins(f"s_cselect_b32 s{s_po}, s{s_pk}, s{s_po}")]
                if kt in (4, 5):
                    w_ = pWU if kt == 4 else pWD
                    e0[2] = [Ins(f"s_cselect_b64 s[{sD}:{sD+1}], s[{w_}:{w_+1}], s[{sD}:{sD+1}]")]
                if kt == 6: e1[3] = [Ins(f"s_add_u32 s{s_wdo}, s{s_wdo}, {128 * 2048}")]
                if kt == 7:
                    e0[2] = [Ins(f"s_cmp_eq_u32 s{s_cnt}, 2")]
                    e0[3] = [Raw(f"    s_cbranch_scc1 {name}_rsx\n{name}_rsxback:")]
            if kt == NR - 1:
                e1[3] = [Ins(f"s_sub_u32 s{s_cnt}, s{s_cnt}, 1")]
                e1[4] = [Ins(f"s_cmp_lg_u32 s{s_cnt}, 0")]
            half(0, kt, kt - 1, C, e0)
            half(1, kt + 1, kt, C, e1)
        p(f"s_cbranch_scc1 {name}_{tag}_loop")
        p.end_loop()
        O1, L1, sel = rr('v', Ob(1), 16), rr('v', Lb(1), 4), rr('v', SEL, 4)
        p(mf32(O1, Vf(NR - 1, 0), rr('v', Pb(1), 4)))
        if not SMF: p(mf16(L1, sel, rr('v', Pb(1), 4)))
        p(mf32(O1, Vf(NR - 1, 1), rr('v', Pb(1) + 4, 4)))
        p(smf(1) if SMF else mf16(L1, sel, rr('v', Pb(1) + 4, 4)))

    pre = take(99)
    if o.get('ipf', True):
        pre += [Ins(x.strip()) for x in f"""s_getpc_b64 s[74:75]
        s_lshr_b32 s{s_t0}, s2, 3
        s_lshl_b32 s{s_t0}, s{s_t0}, 2
        s_add_u32 s{s_t0}, s{s_t0}, s{s_w}
        s_lshl_b32 s{s_t0}, s{s_t0}, 8
        s_min_u32 s{s_t0}, s{s_t0}, {name}_end-{name}_fast_loop
        v_and_b32 v4, 1, v0
        v_lshl_add_u32 v4, v4, 7, s{s_t0}""".split("\n")]
        pre.append(Ins(f"global_load_dword v{vDum}, v4, s[74:75]", nowaw=True))
    if len(pre) < 12: pre.append(Ins(f"s_nop {11 - len(pre)}"))
    pre.append(Raw("; @stamp 3"))
    attention('fast', lambda y: "0", 'noside' not in dbg, pre)
    p.add(Raw("; @stamp 4"))
    p(f"""
    {name}_fin:
    v_add_f32 v{Lb(0)}, v{Lb(0)}, v{Lb(0)+1}
    v_rcp_f32 v{Lb(0)+2}, v{Lb(0)}
    s_lshl_b32 s{s_t0}, s{s_tok}, 1
    s_add_u32 s{s_t0}, s{s_t0}, s{s_hd}
    s_lshl_b32 s{s_t0}, s{s_t0}, 10
    s_xor_b32 s{s_t1}, s{s_t0}, 1024
    """)
    for x in range(2):
        if x: p(f"v_add_f32 v{Lb(1)}, v{Lb(1)}, v{Lb(1)+1}\nv_rcp_f32 v{Lb(1)+2}, v{Lb(1)}")
        for a in range(2):
            for i in range(8 * a, 8 * a + 8, 2):
                p(f"v_pk_mul_f32 {rr('v', Ob(x)+i, 2)}, {rr('v', Ob(x)+i, 2)}, {rr('v', Lb(x)+2, 2)} op_sel_hi:[1,0]")
            for i in range(4 * a, 4 * a + 4):
                p(f"v_cvt_pk_bf16_f32 v{Pb(x)+i}, v{Ob(x)+2*i}, v{Ob(x)+2*i+1}")
            p(f"buffer_store_dwordx4 {rr('v', Pb(x)+4*a, 4)}, v{vOS}, s[{sB}:{sB+3}], s{s_t1 if x else s_t0} offen offset:{a*512} sc1")
    p(f"v_pk_mul_f32 v[{vt+2}:{vt+3}], {rr('v', Ob(0), 2)}, {rr('v', RSV, 2)}")
    p(f"v_pk_mul_f32 v[{vt+4}:{vt+5}], {rr('v', Ob(0)+2, 2)}, {rr('v', RSV+2, 2)}")
    for i in range(2, 16):
        k = vt + 2 + 2 * (i & 1)
        p(f"v_pk_fma_f32 v[{k}:{k+1}], {rr('v', Ob(0)+2*i, 2)}, {rr('v', RSV+2*i, 2)}, v[{k}:{k+1}]")
    p(f"""
    v_pk_add_f32 v[{vt+2}:{vt+3}], v[{vt+2}:{vt+3}], v[{vt+4}:{vt+5}]
    v_add_f32 v{vt+2}, v{vt+2}, v{vt+3}
    v_mov_b32 v{vt+3}, v{vt+2}
    s_add_u32 s{s_t0}, s{s_pj}, {ST_MP}
    s_mov_b32 s{s_t1}, {f32hex(2.0**-40)}
    v_permlane32_swap_b32 v{vt+2}, v{vt+3}
    v_add_f32 v{vt+2}, v{vt+2}, v{vt+3}
    s_mov_b32 exec_hi, 0
    buffer_store_dword v{vt+2}, v{vPW}, s[{sT}:{sT+3}], s{s_t0} offen sc1
    s_mov_b32 exec_hi, -1
    """)
    p(f"""
    v_cmp_nle_f32 s[0:1], s{s_t1}, v{Lb(0)}
    v_cmp_nle_f32 s[14:15], s{s_t1}, v{Lb(1)}
    s_mov_b32 s{s_t1}, {f32hex(2.0**40)}
    v_cmp_nge_f32 s[74:75], s{s_t1}, v{Lb(0)}
    v_cmp_nge_f32 vcc, s{s_t1}, v{Lb(1)}
    s_or_b64 s[0:1], s[0:1], s[14:15]
    s_movk_i32 s{s_t1}, 0x207
    v_cmp_class_f32 s[14:15], v{vt+2}, s{s_t1}
    s_or_b64 s[0:1], s[0:1], s[74:75]
    s_or_b64 s[0:1], s[0:1], vcc
    s_or_b64 s[0:1], s[0:1], s[14:15]
    s_cselect_b32 s{s_t1}, 1, 0
    s_cmp_gt_u32 s{s_t1}, s{s_safe}
    {'' if 'nocheck' in dbg else f's_cbranch_scc1 {name}_slow'}
    """)

    SPLIT = True
    s_c, s_xo, s_xe, s_xend = 61, 62, 63, 64
    vX1, vA3 = 12, 16
    WB, AB3 = 40, 104
    vPT = 20
    LEAD = 12
    ACS = lambda F, t: rr('v', AB3 + (F * 2 + t) * 4, 4)

    class Shape:
        def __init__(self, NF, off):
            self.NF, self.NG, self.off = NF, 16 // NF, off
        def X(self, slot, t, G): return rr('a', slot * 8 * self.NG + (t * self.NG + G) * 4, 4)
        def Xall(self, slot): return ", ".join(self.X(slot, t, G) for t in range(2) for G in range(self.NG))
        def W(self, F, G): return rr('v', WB + (F * self.NG + G) * 4, 4)
        def rd(self, slot, n):
            F, G, b = n // (2 * self.NG), (n >> 1) % self.NG, n & 1
            return Ins(f"ds_read_b64_tr_b16 {rr('v', WB + 2*n, 2)}, v{vA3 + (F & 3)} offset:{slot*16384 + self.off(F, G, b)}")
        def xld(self, slot):
            o_ = [Ins(f"s_cmp_lt_u32 s{s_xo}, s{s_xend}"), Ins(f"s_cselect_b32 s{s_xe}, s{s_xo}, s{sB+2}")]
            for t in range(2):
                for G in range(self.NG):
                    o_.append(Ins(f"buffer_load_dwordx4 {self.X(slot, t, G)}, v{vX1 if t else vL16}, s[{sB}:{sB+3}], s{s_xe} offen offset:{G*1024} sc1"))
            o_.append(Ins(f"s_add_u32 s{s_xo}, s{s_xo}, {self.NG * 1024}"))
            return o_
    sh4 = Shape(4, lambda F, G, b: G * 4096 + b * 1024)
    sh8 = Shape(8, lambda F, G, b: G * 8192 + (F >> 2) * 2048 + b * 1024)

    def wread_addr(blk):
        p(f"""
        v_bfe_u32 v{vt}, v0, 2, 3
        v_lshrrev_b32 v{vt+1}, 1, v{vt}
        v_lshlrev_b32 v{vt+1}, 5, v{vt+1}
        v_lshl_add_u32 v{vt}, v{vt}, 7, v{vt+1}
        v_lshrrev_b32 v{vt+1}, 5, v0
        v_lshl_add_u32 v{vt}, v{vt+1}, {blk}, v{vt}
        v_and_b32 v{vt+1}, 3, v0
        v_lshl_add_u32 v{vA3}, v{vt+1}, 3, v{vt}
        v_xor_b32 v{vA3+1}, 32, v{vA3}
        v_xor_b32 v{vA3+2}, 64, v{vA3}
        v_xor_b32 v{vA3+3}, 0x60, v{vA3}""")

    def table_load(aq, soff, blk=0):
        for i in range(4):
            p(f"buffer_load_dwordx2 {rr('v', aq + 2*i, 2)}, v{vPT}, s[{sT}:{sT+3}], s{soff} offen offset:{blk*2048 + i*128} sc1")

    def table_sum(aq, dst):
        p(f"""
        v_pk_add_f32 {rr('v', aq, 2)}, {rr('v', aq, 2)}, {rr('v', aq+2, 2)}
        v_pk_add_f32 {rr('v', aq+4, 2)}, {rr('v', aq+4, 2)}, {rr('v', aq+6, 2)}
        v_pk_add_f32 {rr('v', dst, 2)}, {rr('v', aq, 2)}, {rr('v', aq+4, 2)}""")
        for sw in (16, 32):
            p(f"""
            v_pk_mov_b32 {rr('v', aq, 2)}, {rr('v', dst, 2)}, {rr('v', dst, 2)} op_sel:[0,1]
            v_permlane{sw}_swap_b32 v{dst}, v{aq}
            v_permlane{sw}_swap_b32 v{dst+1}, v{aq+1}
            v_pk_add_f32 {rr('v', dst, 2)}, {rr('v', dst, 2)}, {rr('v', aq, 2)}""")

    def rstd_from(aq, dst):
        table_sum(aq, dst)
        for t in range(2):
            p(f"v_fma_f32 v{dst+t}, v{dst+t}, s{s_t1}, v{vt+4}")
        for t in range(2):
            p(f"v_rsq_f32 v{dst+t}, v{dst+t}")

    p(f"""
    s_add_u32 s{s_xe}, s{s_pj}, {ST_FO}
    s_andn2_b32 s{s_c}, s{s_xe}, 2047
    s_lshl_b32 s{s_xo}, s{s_tok}, 11
    s_lshl_b32 s{s_xend}, s{s_tok}, 6
    s_add_u32 s{s_xend}, s{s_xend}, {ST_MP}""")
    if R3:
        p(f"s_and_b32 s{s_t0}, s{s_j}, 1\ns_lshl_b32 s{s_t0}, s{s_t0}, 14\ns_add_u32 s{s_xo}, s{s_xo}, s{s_t0}")
    vE = 136
    p(f"""
    v_add_u32 v{vX1}, 0x8000, v{vL16}
    s_lshl_b32 s{s_t0}, s{s_w}, 12
    s_add_u32 s{s_t0}, s{s_t0}, {XT}
    v_and_b32 v{vt+4}, 15, v0
    v_lshrrev_b32 v{vt+5}, 1, v{vt+4}
    v_lshrrev_b32 v{vt+6}, 5, v0
    v_xor_b32 v{vt+5}, v{vt+5}, v{vt+6}
    v_lshlrev_b32 v{vt+5}, 4, v{vt+5}
    v_lshl_add_u32 v{vt+5}, v{vt+4}, 7, v{vt+5}
    v_bfe_u32 v{vt+6}, v0, 4, 1
    v_lshl_add_u32 v{vt+5}, v{vt+6}, 3, v{vt+5}
    v_add_u32 v{vt}, s{s_t0}, v{vt+5}
    v_xor_b32 v{vt+1}, 32, v{vt}
    v_xor_b32 v{vt+2}, 64, v{vt}
    v_xor_b32 v{vt+3}, 0x60, v{vt}""")
    for t in range(2):
        for F in range(4):
            p(f"ds_read_b64 {rr('v', vE + (t*4+F)*2, 2)}, v{vt+F} offset:{t*2048}")
    p(f"""
    v_lshlrev_b32 v{vPT}, 3, v{vt+4}
    v_lshrrev_b32 v{vt+5}, 4, v0
    v_lshl_add_u32 v{vPT}, v{vt+5}, 9, v{vPT}""")
    wread_addr(11)
    for t in range(2):
        for F in range(4):
            a = AB3 + (F * 2 + t) * 4
            e = vE + (t * 4 + F) * 2
            p(f"""
            v_lshlrev_b32 v{a}, 16, v{e}
            v_and_b32 v{a+1}, 0xffff0000, v{e}
            v_lshlrev_b32 v{a+2}, 16, v{e+1}
            v_and_b32 v{a+3}, 0xffff0000, v{e+1}""")
    arrive(p, s_xe)
    p("s_barrier")
    for n in range(LEAD):
        p.add(sh4.rd(0, n))
    main_cur = p.cur
    bg = []
    p.cur = bg
    SLOT4, HI4, LEAD4 = 28672, 106496, 8
    s_nb, s_wo4, s_m04, s_dsl, s_rsl, s_tk4 = 66, 68, 69, 70, 71, 72
    vD4 = 21
    AB4 = 32
    p(f"""
    s_and_b32 s{s_t0}, s2, 7
    s_lshr_b32 s{s_t1}, s2, 3
    s_and_b32 s{s_tk4}, s{s_t1}, 7
    s_lshr_b32 s{s_t1}, s{s_t1}, 3
    s_lshl_b32 s{s_nb}, s{s_t0}, 2
    s_add_u32 s{s_nb}, s{s_nb}, s{s_t1}
    s_movk_i32 s{s_t1}, 4682
    s_movk_i32 s{s_t0}, {7168 - 14 * 16}
    """)
    for i in range(7):
        p(f"""
        v_add_u32 v{vt}, {64*i}, v0
        v_mul_u32_u24 v{vt+1}, s{s_t1}, v{vt}
        v_lshrrev_b32 v{vt+1}, 16, v{vt+1}
        v_add_u32 v{vt}, {1024 * (i - (i & 3))}, v{vL16}
        v_mad_u32_u24 v{vD4+i}, v{vt+1}, s{s_t0}, v{vt}
        """)
    p(f"""
    s_lshl_b32 s{s_tk4}, s{s_tk4}, 2
    s_add_u32 s{s_tk4}, s{s_tk4}, s{s_w}
    s_lshl_b32 s{s_tk4}, s{s_tk4}, 6
    s_and_b32 s{s_t0}, s{s_w}, 1
    s_mul_i32 s{s_wo4}, s{s_t0}, {32 * 7168}
    s_mul_i32 s{s_t1}, s{s_nb}, 224
    s_add_u32 s{s_wo4}, s{s_wo4}, s{s_t1}
    s_mul_i32 s{s_m04}, s{s_w}, 7168
    s_mov_b32 s{s_dsl}, s{s_m04}
    s_mov_b32 s{s_rsl}, {HI4}
    s_cmp_lt_u32 s{s_w}, 2
    s_cselect_b64 s[{sD}:{sD+1}], s[{pWG}:{pWG+1}], s[{pWU}:{pWU+1}]
    s_mov_b32 s{sD+2}, {hex(D * FF * 2)}
    """)
    srd(p, sA, pWS, HC[1], bias=HC[0])
    for i in range(4):
        p(f"v_accvgpr_write_b32 a{aMEAN-4+i}, v{vWD+i}")
    p(f"v_mov_b32 v36, v{vPW}")
    vPW = 36
    vX4 = [vL16, 12, 13, 14]
    vA4, vAb, vR4 = 15, 11, 28
    vS, vQ, vP = 28, 144, WB
    s_ho, s_c4, s_sq4 = 65, 67, 73
    p(f"""
    v_add_u32 v{vX4[2]}, 0x10000, v{vL16}
    v_add_u32 v{vX4[3]}, 0x18000, v{vL16}
    v_lshrrev_b32 v{vt}, 2, v0
    v_mul_u32_u24 v{vt}, 224, v{vt}
    v_and_b32 v{vt+1}, 3, v0
    v_lshl_add_u32 v{vAb}, v{vt+1}, 3, v{vt}
    v_mov_b32 v{vA4}, v{vAb}
    s_lshl_b32 s{s_sq4}, s{s_tk4}, 6
    s_add_u32 s{s_c4}, s{s_sq4}, {ST_FC}
    s_add_u32 s{s_sq4}, s{s_sq4}, {ST_SSQ}
    s_add_u32 s{s_ho}, s{s_tok}, s{s_j}
    s_lshl_b32 s{s_ho}, s{s_ho}, 11
    s_add_u32 s{s_c}, s{s_pj}, {ST_FC}
    s_add_u32 s{s_pj}, s{s_pj}, {ST_SSQ}
    s_mov_b32 s{s_t1}, {f32hex(-1.0/1024)}""")
    for t in range(2):
        p(f"""
        v_add_f32 v{vE+t}, v{vE+t}, v{vE+2+t}
        v_add_f32 v{vE+4+t}, v{vE+4+t}, v{vE+6+t}
        v_add_f32 v{vS+t}, v{vE+t}, v{vE+4+t}""")
        xsum16_32(p, f"v{vS+t}", f"v{vt}")
        p(f"v_accvgpr_read_b32 v{vt}, a{aMEAN+t}")
        p(f"v_fma_f32 v{vS+t}, v{vS+t}, s{s_t1}, -v{vt}")
    p(f"v_mov_b32 v{vt+4}, {f32hex(1e-5)}\ns_mov_b32 s{s_t1}, {f32hex(1.0/1024)}")
    for i in range(156, 256):
        p(f"v_mov_b32 v{i}, 0")
    p.cur = main_cur

    def units_of(lst):
        out = []
        for x in lst:
            if out and x.op.startswith(('s_addc', 's_subb', 's_cselect')): out[-1].append(x)
            else: out.append([x])
        return out
    bg = units_of(bg)
    p.add(Raw("; @stamp 5"))
    poll(p, f"{name}_opoll", s_c, 16, vt)
    if 'twice3' in dbg: p.add(Raw(f"    s_mov_b32 s{s_spin}, 2\n    s_mov_b32 s14, s{s_pj}\n    s_mov_b32 s15, s{s_xo}\n{name}_tw3:\n    s_mov_b32 s{s_pj}, s14\n    s_mov_b32 s{s_xo}, s15"))
    p.add(Raw("; @stamp 6"))

    def dma4(par):
        o_ = []
        for i in range(7):
            if i == 0: o_.append(Ins(f"s_add_u32 m0, s{s_dsl}, {par * SLOT4}"))
            if i == 4: o_.append(Ins("s_add_u32 m0, m0, 4096"))
            o_.append(Ins(f"buffer_load_dwordx4 v{vD4+i}, s[{sD}:{sD+3}], s{s_wo4} offen offset:{(i&3)*1024} lds", awr=['Lx'], nowaw=True))
        o_.append(Ins(f"s_add_u32 s{s_wo4}, s{s_wo4}, {64 * 7168}"))
        return o_

    def xld3(u):
        o_ = [Ins(f"buffer_load_dwordx4 {sh4.X(u % 4, t, G)}, v{vX1 if t else vL16}, s[{sB}:{sB+3}], s{s_xo} offen offset:{G*1024} sc1")
              for t in range(2) for G in range(4)]
        if R3 and u == 3:
            return o_ + [Ins(f"s_xor_b32 s{s_xo}, s{s_xo}, 0x7000")]
        return o_ + [Ins(f"s_add_u32 s{s_xo}, s{s_xo}, 4096")]
    p.add(xld3(0)); p.add(xld3(1))
    order = [(F, t, G) for F in range(4) for t in range(2) for G in range(4)]
    for u in range(8):
        vm = xld3(u + 2) if u < 6 else []
        if u == 0:
            vm += [Ins(f"buffer_load_dwordx2 {rr('v', vE + 2*i, 2)}, v{vPT}, s[{sT}:{sT+3}], s{s_xend} offen offset:{i*128} sc1") for i in range(4)]
        D4 = o.get('d4', (7, 9))
        for q in range(2):
            if u == D4[q]: vm += dma4(q)
        fill, pos = {}, 0
        for ins in vm:
            fill.setdefault(pos, []).append(ins)
            pos += (4 if len(vm) <= 10 else 2 if len(vm) < 16 else 1) if ins.kind == 'vmem' and pos < 28 else 1
        for i, (F, t, G) in enumerate(order):
            p(mf16(ACS(F, t), sh4.W(F, G), sh4.X(u % 4, t, G)))
            n = i + LEAD
            if u == 5 and i == 0:
                p("s_barrier")
            if u * 32 + n < 256:
                p.add(sh4.rd((u + n // 32) % 4, n % 32))
            if u == 3 and i == 0: p(f"v_xor_b32 v{vA3}, 0x10000, v{vA3}")
            if u == 3 and n in (15, 23, 31): p(f"v_xor_b32 v{vA3 + n // 8}, 0x10000, v{vA3 + n // 8}")
            if u > 0 or i > 7:
                if i % 8 == 7 and u * 32 + i < 255:
                    p(f"wait {rr('v', WB + ((F + 1) % 4) * 16, 8)}" + (", " + sh4.Xall((u + 1) % 4) if i == 31 else ""))
                if i % 8 == 1:
                    p(f"wait {rr('v', WB + F * 16 + 8, 8)}")
            p.add(fill.get(i, []))
            if bg and i not in fill and (u > 0 or i > 7):
                p.add(bg.pop(0))
                if bg and u * 32 + i > 200: p.add(bg.pop(0))
    assert not bg, len(bg)
    p.add(Raw("; @stamp 7"))
    if 'twice3' in dbg: p.add(Raw(f"    s_waitcnt vmcnt(0)\n    s_sub_u32 s{s_spin}, s{s_spin}, 1\n    s_cmp_lg_u32 s{s_spin}, 0\n    s_cbranch_scc1 {name}_tw3"))

    for t in range(2):
        sel = "op_sel_hi:[1,0]" if t == 0 else "op_sel:[0,1]"
        q = rr('v', vQ + 2 * t, 2)
        for F in range(4):
            a = AB3 + (F * 2 + t) * 4
            k = vQ + 4 + (F & 1) * 4
            hc = vP + (t * 2 + (F >> 1)) * 4 + (F & 1) * 2
            p(f"""
            v_pk_add_f32 {rr('v', k, 2)}, {rr('v', a, 2)}, {rr('v', vS, 2)} {sel}
            v_pk_add_f32 {rr('v', k+2, 2)}, {rr('v', a+2, 2)}, {rr('v', vS, 2)} {sel}
            v_cvt_pk_bf16_f32 v{hc}, v{k}, v{k+1}
            v_cvt_pk_bf16_f32 v{hc+1}, v{k+2}, v{k+3}""")
            if F & 1:
                g = F >> 1
                p(f"buffer_store_dwordx4 {rr('v', hc-2, 4)}, v{vX1 if t else vL16}, s[{sA}:{sA+3}], s{s_ho} offen offset:{g*1024} sc1")
            p(f"v_pk_mul_f32 {q}, {rr('v', k, 2)}, {rr('v', k, 2)}" if F == 0 else f"v_pk_fma_f32 {q}, {rr('v', k, 2)}, {rr('v', k, 2)}, {q}")
            p(f"v_pk_fma_f32 {q}, {rr('v', k+2, 2)}, {rr('v', k+2, 2)}, {q}")
    p(f"""
    v_add_f32 v{vQ}, v{vQ}, v{vQ+1}
    v_add_f32 v{vQ+2}, v{vQ+2}, v{vQ+3}
    v_permlane16_swap_b32 v{vQ}, v{vQ+2}
    v_add_f32 v{vQ}, v{vQ}, v{vQ+2}
    v_mov_b32 v{vQ+1}, v{vQ}
    v_permlane32_swap_b32 v{vQ}, v{vQ+1}
    v_add_f32 v{vt}, v{vQ}, v{vQ+1}
    s_mov_b32 exec_hi, 0
    buffer_store_dword v{vt}, v{vPW}, s[{sT}:{sT+3}], s{s_pj} offen sc1
    s_mov_b32 exec_hi, -1
    """)
    for q in range(2):
        if D4[q] == 8: p.add(dma4(q))
    for t in range(2):
        for F in range(4):
            a = AB3 + (F * 2 + t) * 4
            hr = vP + 16 + (t * 2 + (F >> 1)) * 4 + (F & 1) * 2
            p(f"v_cvt_pk_bf16_f32 v{hr}, v{a}, v{a+1}\nv_cvt_pk_bf16_f32 v{hr+1}, v{a+2}, v{a+3}")
    for i in range(16):
        p(f"v_accvgpr_write_b32 a{aHR+i}, v{vP+16+i}")
    if 'H' in dbg:
        srd(p, sB, pWS, HR[1], bias=HR[0])
        for t in range(2):
            for g in range(2):
                p(f"buffer_store_dwordx4 {rr('v', vP + 16 + (t*2+g)*4, 4)}, v{vX1 if t else vL16}, s[{sB}:{sB+3}], s{s_ho} offen offset:{g*1024}")
    for i in range(AB4 + 16, 156, 2):
        p(f"v_pk_mov_b32 {rr('v', i, 2)}, 0, 0")
    p(f"""
    s_lshl_b32 s{s_xo}, s{s_tk4}, 11
    s_waitcnt vmcnt({7 * D4.count(8)})
    buffer_store_dword v{vOne}, v{vZ}, s[{sT}:{sT+3}], s{s_c} offen sc1""")
    assert D4[0] < 8
    if D4[1] == 9: p.add(dma4(1))
    p(f"s_add_u32 s{s_dsl}, s{s_m04}, {HI4}")
    PX = o.get('px', 8)
    BT = o.get('btouch', 1)
    vFL, vBT = vt + 5, vt + 6
    s_hf, s_x5, s_of, s_bt = 65, 63, 64, 3
    wread_addr(12)
    srd(p, sB, pWS, HH[1], bias=HH[0])
    srd(p, sC, pWS, XC[1], bias=XC[0])
    p(f"""
    s_lshr_b32 s{s_hf}, s{s_j}, 3
    s_lshr_b32 s{s_c}, s{s_tok}, 6
    s_lshl_b32 s{s_c}, s{s_c}, 1
    s_add_u32 s{s_c}, s{s_c}, s{s_hf}
    s_lshl_b32 s{s_c}, s{s_c}, 11
    s_add_u32 s{s_c}, s{s_c}, {ST_FH}
    s_mul_i32 s{s_x5}, s{s_tok}, {112 * 64}
    s_mul_i32 s{s_t0}, s{s_hf}, {56 * 1024}
    s_add_u32 s{s_x5}, s{s_x5}, s{s_t0}
    s_mul_i32 s{s_of}, s{s_tk4}, {112 * 64}
    s_lshr_b32 s{s_t0}, s{s_nb}, 4
    s_mul_i32 s{s_t0}, s{s_t0}, {112 - 16}
    s_add_u32 s{s_t0}, s{s_t0}, s{s_nb}
    s_lshl_b32 s{s_t0}, s{s_t0}, 9
    s_add_u32 s{s_of}, s{s_of}, s{s_t0}
    v_and_b32 v{vFL}, 15, v0
    v_lshlrev_b32 v{vFL}, 7, v{vFL}""")
    if BT:
        p(f"""
        v_cmp_gt_u32 vcc, 28, v0
        v_lshlrev_b32 v{vt}, 10, v0
        v_add_u32 v{vt}, {4096 + 384}, v{vt}
        v_mov_b32 v{vt+1}, 0x7ffffff0
        v_cndmask_b32 v{vBT}, v{vt+1}, v{vt}, vcc
        s_lshr_b32 s{s_bt}, s2, 3
        s_lshl_b32 s{s_bt}, s{s_bt}, 2
        s_add_u32 s{s_bt}, s{s_bt}, s{s_w}
        s_mul_i32 s{s_bt}, s{s_bt}, {14 * 2048}""")
    for i in range(64):
        p(f"v_accvgpr_write_b32 a{aA5+i}, 0")

    X4 = lambda slot, t, g: rr('a', slot * 32 + (t * 2 + g) * 4, 4)
    WB4, WB4B, NWR = 96, 128, 4
    W4 = lambda q, g: rr('a', WB4 + (q % NWR) * 8 + g * 4, 4)
    AC4 = lambda f, t: rr('v', AB4 + (f * 4 + t) * 4, 4)

    def xld4(slot):
        o_ = [Ins(f"buffer_load_dwordx4 {X4(slot, t, g)}, v{vX4[t]}, s[{sA}:{sA+3}], s{s_xo} offen offset:{g*1024} sc1")
              for t in range(4) for g in range(2)]
        return o_ + [Ins(f"s_add_u32 s{s_xo}, s{s_xo}, 2048")]

    def rd4(q, n, par=None, base=WB4):
        f = q % 14
        g, b = n >> 1, n & 1
        if par is None: par = (q // 14) & 1
        return Ins(f"ds_read_b64_tr_b16 {rr('a', base + (q % NWR)*8 + g*4 + 2*b, 2)}, v{vA4} offset:{par*SLOT4 + (f&1)*14336 + (32*g+16*b)*224 + (f>>1)*32}")
    p("s_barrier")
    for n in range(LEAD4):
        p.add(rd4(n >> 2, n & 3))
    p.add(Raw("; @stamp 8"))
    poll(p, f"{name}_hpoll", s_c4, 32, vt)
    p.add(Raw("; @stamp 9"))
    for q in range(2):
        table_load(AB4 + 8 * q, s_sq4, q)
    p.add(xld4(0))
    for q in range(2):
        rstd_from(AB4 + 8 * q, vR4 + 2 * q)
    for t in range(4):
        p(f"v_mul_f32 v{vR4+t}, {f32hex(-LOG2E)}, v{vR4+t}")
    for i in range(AB4, AB4 + 16, 2):
        p(f"v_pk_mov_b32 {rr('v', i, 2)}, 0, 0")
    p(f"s_mov_b32 s{s_cnt}, 7")
    p("wait " + ", ".join(X4(0, t, g) for t in range(4) for g in range(2)) + f", {W4(0, 0)}, {W4(0, 1)}")
    p.begin_loop(f"{name}_p4loop", 7)
    for u in range(2):
        vm = xld4(1 - u) + dma4(u)
        fill, pos = {}, 1
        for ins in vm:
            fill.setdefault(pos, []).append(ins)
            pos += o.get('p4step', 4)
            if pos % 8 == 7: pos += 2
        assert pos < 95
        if u == 1:
            fill[97] = [Ins(f"s_sub_u32 s{s_rsl}, {HI4}, s{s_rsl}")]
            fill[99] = [Ins(f"s_add_u32 s{s_dsl}, s{s_m04}, s{s_rsl}")]
            fill[105] = [Ins(f"s_sub_u32 s{s_cnt}, s{s_cnt}, 1")]
            fill[107] = [Ins(f"s_cmp_lg_u32 s{s_cnt}, 0")]
            fill.setdefault(pos, []).append(Raw(f"    s_cmp_lg_u32 s{s_cnt}, 1\n    s_cbranch_scc1 {name}_nox15\n" +
                                                "".join(f"    {x.text}\n" for x in xld4(2)[:8]) + f"{name}_nox15:"))
        order = [(f, t, g) for f in range(14) for t in range(4) for g in range(2)]
        for i, (f, t, g) in enumerate(order):
            p(mf16(AC4(f, t), W4(u * 14 + f, g), X4(u, t, g)))
            if i % 2 == 0:
                n = i // 2 + LEAD4
                p.add(rd4(u * 14 + (n >> 2), n & 3))
            if i == 2 * (56 - LEAD4) - 1:
                if u == 1: p(f"v_add_u32 v{vA4}, s{s_rsl}, v{vAb}")
                p("s_waitcnt vmcnt(15) lgkmcnt(4)")
                p("s_barrier")
            elif i == 111:
                p(f"wait {W4(u*14 + 14, 0)}, {W4(u*14 + 14, 1)}, " + ", ".join(X4(1 - u, t_, g_) for t_ in range(4) for g_ in range(2)))
            elif i % 8 == 7:
                p(f"wait {W4(u*14 + f + 1, 0)}, {W4(u*14 + f + 1, 1)}")
            p.add(fill.get(i, []))
    p(f"s_cbranch_scc1 {name}_p4loop")
    p.end_loop()
    p.add(Raw("; @stamp 10"))
    main_cur = p.cur
    setup = []
    p.cur = setup

    vW5 = 21
    s_wo5, s_m05 = 68, 69
    vH = 13
    vFG, vTwo = 25, 26
    for i in range(2):
        p(f"v_accvgpr_read_b32 v{vW5+i}, a{aMEAN-4+i}")
    p(f"""
    s_mul_i32 s{s_t0}, s{s_hf}, {1792 * 2048}
    s_xor_b32 s{s_t1}, s{s_j}, {PX}
    s_add_u32 s{s_t1}, s{s_t1}, 16
    s_sub_u32 s{s_t1}, s{s_t1}, s{s_j}
    s_lshl_b32 s{s_t1}, s{s_t1}, 7
    v_add_u32 v{vW5+2}, s{s_t1}, v{vW5}
    v_add_u32 v{vW5+3}, s{s_t1}, v{vW5+1}
    v_add_u32 v{vW5}, 4096, v{vW5}
    v_add_u32 v{vW5+1}, 4096, v{vW5+1}
    s_mul_i32 s{s_wo5}, s{s_w}, {(16 if 'linw' in dbg else 112) * 2048}""")
    srd(p, sD, pWD, 1792 * 2048 + 4096, off=s_t0, bias=-4096)
    p(f"""
    s_lshl_b32 s{s_t1}, s{s_j}, 7
    s_add_u32 s{s_wo5}, s{s_wo5}, s{s_t1}
    s_lshl_b32 s{s_m05}, s{s_w}, 12
    s_mov_b32 s{s_dsl}, 0
    v_lshrrev_b32 v{vt}, 5, v0
    v_mul_u32_u24 v{vt}, {112 * 1024 - 512}, v{vt}
    v_add_u32 v{vH}, v{vt}, v{vL16}
    v_add_u32 v{vH+1}, {2 * 112 * 1024}, v{vH}
    v_add_u32 v{vX1}, {112 * 1024}, v{vL16}
    s_mov_b32 s{s_xo}, s{s_x5}
    s_mov_b32 s{s_spin}, {SPIN}
    s_mov_b32 s{s_cnt}, 6
    s_lshl_b32 s{s_t0}, s{s_nb}, 7
    s_add_u32 s{s_sq4}, s{s_sq4}, s{s_t0}
    s_add_u32 s{s_sq4}, s{s_sq4}, {ST_FH - ST_SSQ}""")
    p.cur = main_cur
    btouch = lambda: Ins(f"buffer_load_dword v27, v{vBT}, s[{sD}:{sD+3}], s{s_bt} offen", nowaw=True)

    def dma5(st):
        o_ = [Ins(f"s_add_u32 m0, s{s_m05}, s{s_dsl}"), Ins(f"s_add_u32 s{s_dsl}, s{s_dsl}, 16384")]
        for i in range(4):
            o_.append(Ins(f"buffer_load_dwordx4 v{vW5+i}, s[{sD}:{sD+3}], s{s_wo5} offen offset:{i*1024} lds", awr=['Lx'], nowaw=True))
        o_ += [Ins(f"s_add_u32 s{s_wo5}, s{s_wo5}, {64 * 2048}" if 'linw' in dbg else f"s_add_u32 s{s_wo5}, s{s_wo5}, {448 * 2048}" if st & 3 != 3 else f"s_sub_u32 s{s_wo5}, s{s_wo5}, {(3 * 448 - 16) * 2048}"),
               Ins(f"s_and_b32 s{s_dsl}, s{s_dsl}, 0x1ffff")]
        return o_

    def glu(pr, packed):
        o_ = []
        for t in range(4):
            g = AB4 + ((2 * pr) * 4 + t) * 4
            u_ = AB4 + ((2 * pr + 1) * 4 + t) * 4
            rs_ = rr('v', vR4 + (t & 2), 2)
            sel = "op_sel_hi:[1,0]" if t % 2 == 0 else "op_sel:[0,1]"
            if packed:
                o_ += [f"v_pk_mul_f32 {rr('v', g+r, 2)}, {rr('v', g+r, 2)}, {rs_} {sel}" for r in (0, 2)]
                o_ += [f"v_exp_f32 v{g+r}, v{g+r}" for r in range(4)]
                o_ += [f"v_pk_add_f32 {rr('v', g+r, 2)}, {rr('v', g+r, 2)}, 1.0 op_sel_hi:[1,0]" for r in (0, 2)]
                o_ += [f"v_rcp_f32 v{g+r}, v{g+r}" for r in range(4)]
                o_ += [f"v_pk_mul_f32 {rr('v', u_+r, 2)}, {rr('v', u_+r, 2)}, {rr('v', g+r, 2)}" for r in (0, 2)]
            else:
                o_ += [f"v_mul_f32 v{g+r}, v{vR4+t}, v{g+r}" for r in range(4)]
                o_ += [f"v_exp_f32 v{g+r}, v{g+r}" for r in range(4)]
                o_ += [f"v_add_f32 v{g+r}, 1.0, v{g+r}" for r in range(4)]
                o_ += [f"v_rcp_f32 v{g+r}, v{g+r}" for r in range(4)]
                o_ += [f"v_mul_f32 v{u_+r}, v{u_+r}, v{g+r}" for r in range(4)]
            d_ = AB4 + ((2 * pr) * 4 + (t & 2)) * 4 + (t & 1) * 2
            o_ += [f"v_cvt_pk_bf16_f32 v{d_}, v{u_}, v{u_+1}", f"v_cvt_pk_bf16_f32 v{d_+1}, v{u_+2}, v{u_+3}"]
            if t & 1:
                o_ += [f"v_permlane32_swap_b32 v{d_-2}, v{d_}", f"v_permlane32_swap_b32 v{d_-1}, v{d_+1}",
                       f"buffer_store_dwordx4 {rr('v', d_-2, 4)}, v{vH + (t >> 1)}, s[{sB}:{sB+3}], s{s_of} offen sc1"]
        o_.append(f"s_add_u32 s{s_of}, s{s_of}, 8192")
        return [Ins(x, awr=[f'HS{pr}'], nowaw=True) if x.startswith('buffer') else Ins(x) for x in o_]

    W4B = lambda q, g: rr('a', WB4B + (q % NWR) * 8 + g * 4, 4)
    fgl = f"buffer_load_dword v{vFG}, v{vFL}, s[{sT}:{sT+3}], s{s_c} offen sc1"
    F1AT, FPAT = o.get('f1at', (4, 27)), o.get('fpat', (6, 13))
    p("s_waitcnt vmcnt(0)")
    p("s_barrier")
    for n in range(4):
        p.add(rd4(0, n, 1, WB4B))
    cost = lambda x: 8 if x.kind == 'trans' else 0 if x.kind == 'vmem' else 4
    pend = []
    for pr in range(7):
        work = setup if pr == 0 else glu(pr - 1, False)
        side = dma5(pr - 1) if pr >= 1 else []
        if BT and pr == o.get('btat', 5): side.append(btouch())
        tot = sum(cost(x) for x in work)
        done, wi = 0, 0
        for ff in range(2):
            f = 2 * pr + ff
            if f == 0: order = [(t, k) for t in range(4) for k in (0, 1)] + [(t, k) for t in range(4) for k in (2, 3)]
            else: order = [(t, k) for t in range(4) for k in range(4)]
            rds = [rd4(f + 1, n, 1, WB4B) for n in range(4)] if f + 1 < 14 else []
            rds += [rd4(f + 2, n, 0) for n in range(4)] if f + 2 < 14 else []
            for i, (t, k) in enumerate(order):
                p(mf16(AC4(f, t), W4(f, k) if k < 2 else W4B(f, k - 2), X4(0 if k < 2 else 2, t, k & 1)))
                if i % 2 == 0:
                    if rds: p.add(rds.pop(0))
                elif i == 15:
                    if f < 13: p(f"wait {W4(f+1, 0)}, {W4(f+1, 1)}, {W4B(f+1, 0)}, {W4B(f+1, 1)}")
                elif (pr, ff * 16 + i) == F1AT:
                    p(f"buffer_store_dword v{vOne}, v{vZ}, s[{sT}:{sT+3}], s{s_sq4} offen sc1", rd=['HS0', 'HS1', 'HS2'])
                elif (pr, ff * 16 + i) == FPAT:
                    p(fgl)
                elif pend:
                    p.add(pend.pop(0))
                elif side:
                    p.add(side.pop(0))
                gap = ff * 16 + i + 1
                while wi < len(work) and done + cost(work[wi]) / 2 <= tot * gap / 32:
                    if work[wi].kind == 'vmem' or (pr and work[wi].kind == 'salu'): pend.append(work[wi])
                    else: p.add(work[wi])
                    done += cost(work[wi]); wi += 1
        assert wi == len(work) and not side
    p.add(pend)

    sh = sh8
    A5 = lambda F, t: rr('a', aA5 + (F * 2 + t) * 4, 4)

    def xld5(slot):
        return [Ins(f"buffer_load_dwordx4 {sh.X(slot, t, G)}, v{vX1 if t else vL16}, s[{sB}:{sB+3}], s{s_xo} offen offset:{G*1024} sc1")
                for t in range(2) for G in range(2)] + [Ins(f"s_add_u32 s{s_xo}, s{s_xo}, 2048")]

    def spin(label, level):
        return f"""    s_branch {label}_chk
{label}:
    {fgl}
    s_waitcnt vmcnt(0)
{label}_chk:
    v_cmp_gt_u32 vcc, {level}, v{vFG}
    s_sub_u32 s{s_spin}, s{s_spin}, 1
    s_cbranch_scc1 {label}_done
    s_cbranch_vccnz {label}
{label}_done:"""
    p.add(Raw("; @stamp 11"))
    p(f"wait v{vFG}")
    p.add(Raw(spin(f"{name}_fpoll", 1)))
    p.add(Raw("; @stamp 12"))
    for u in range(3):
        p.add(xld5(u))
    p("s_barrier")
    for n in range(LEAD):
        p.add(sh.rd(0, n))
    p.add(glu(6, True))
    p.add(Raw("; @stamp 13"))
    p(f"wait {rr('v', WB, 8)}, {sh.Xall(0)}")
    p.begin_loop(f"{name}_p5loop", 6)
    for u in range(4):
        d5, x5 = dma5(u + 6), xld5((u + 3) % 4)
        fill = {0: [d5[0]], 1: [d5[1]], 2: [d5[2]], 6: [d5[3]], 10: [d5[4]], 14: [d5[5]], 16: [d5[6]], 4: [d5[7]],
                18: [x5[0]], 22: [x5[1]], 25: [x5[2]], 28: [x5[3]], 29: [x5[4]]}
        if u == 1 and 'nof2' not in dbg:
            fill[21] = fill.pop(16)
            fill[16] = [Ins(f"s_cmp_eq_u32 s{s_cnt}, 4")]
            fill[17] = [Raw(f"    s_cbranch_scc1 {name}_f2c\n{name}_f2cback:")]
        if u == 3 and 'nof2' not in dbg:
            fill[5] = [Ins(f"s_cmp_ge_u32 s{s_cnt}, 5")]
            fill[8] = [Raw(f"    s_cbranch_scc1 {name}_f2\n{name}_f2back:")]
        if u == 3:
            fill[24] = [Ins(f"s_sub_u32 s{s_cnt}, s{s_cnt}, 1")]
            fill[30] = [Ins(f"s_cmp_lg_u32 s{s_cnt}, 0")]
            for a_ in range(4):
                fill.setdefault((9, 13, 17, 21)[a_], []).append(Ins(f"v_xor_b32 v{vA3+a_}, 0x10000, v{vA3+a_}"))
        for i in range(32):
            F, t, G = i >> 2, (i >> 1) & 1, i & 1
            p(mf16(A5(F, t), sh.W(F, G), sh.X(u, t, G)))
            n = i + LEAD
            if n == 32:
                p("s_barrier")
            p.add(sh.rd((u + n // 32) % 4, n % 32))
            if i % 4 == 3:
                p(f"wait {rr('v', WB + 8 * ((F + 1) % 8), 8)}" + (", " + sh.Xall((u + 1) % 4) if i == 31 else ""))
            p.add(fill.get(i, []))
    p(f"s_cbranch_scc1 {name}_p5loop")
    p.end_loop()
    f2blk = Raw(f"""{name}_f2:
    s_cmp_eq_u32 s{s_cnt}, 5
    s_cbranch_scc1 {name}_f2look
    s_add_u32 s{s_sq4}, s{s_sq4}, {ST_F2 - ST_FH}
    s_add_u32 s{s_c}, s{s_c}, {ST_F2 - ST_FH}
    buffer_store_dword v{vOne}, v{vZ}, s[{sT}:{sT+3}], s{s_sq4} offen sc1
    s_branch {name}_f2back
{name}_f2look:
    {fgl}
    s_branch {name}_f2back
{name}_f2c:
    s_waitcnt vmcnt(18)
""" + spin(f"{name}_f2poll", 1) + f"\n    s_branch {name}_f2cback")

    vHF = 176
    STG = 131072
    vL, vG = 30, 15
    s_ro, s_fl, s_xs = 66, 67, 72
    bg = []
    p.cur = bg
    p(f"""
    s_lshl_b32 s{s_t0}, s{s_b}, 4
    s_add_u32 s{s_t0}, s{s_t0}, s{s_j}
    s_lshl_b32 s{s_xs}, s{s_t0}, 2
    s_add_u32 s{s_xs}, s{s_xs}, s{s_w}
    s_lshl_b32 s{s_fl}, s{s_xs}, 7
    s_add_u32 s{s_fl}, s{s_fl}, {ST_FX}
    s_lshl_b32 s{s_xs}, s{s_xs}, 12
    s_mul_i32 s{s_t0}, s{s_w}, 4608
    s_add_u32 s{s_t0}, s{s_t0}, {STG}
    v_and_b32 v{vt+2}, 15, v0
    v_mul_u32_u24 v{vt+2}, 144, v{vt+2}
    v_lshrrev_b32 v{vt+3}, 4, v0
    v_lshl_add_u32 v{vt+2}, v{vt+3}, 3, v{vt+2}
    v_add_u32 v{vL}, s{s_t0}, v{vt+2}
    v_lshrrev_b32 v{vt+2}, 3, v0
    v_and_b32 v{vt+3}, 7, v0
    v_lshlrev_b32 v{vt+3}, 4, v{vt+3}
    v_lshl_add_u32 v{vG}, v{vt+2}, 11, v{vt+3}
    v_mul_u32_u24 v{vt+2}, 144, v{vt+2}
    v_add3_u32 v{vL+1}, v{vt+2}, v{vt+3}, s{s_t0}
    s_lshl_b32 s{s_ro}, s{s_tok}, 11
    s_lshl_b32 s{s_t2}, s{s_j}, 7
    s_add_u32 s{s_ro}, s{s_ro}, s{s_t2}
    """)
    srd(p, sA, pOUT, S * D * 2)
    nbg1 = len(bg)
    for t in range(2):
        for F in range(4):
            e = aHR + (t * 2 + (F >> 1)) * 4 + (F & 1) * 2
            k = vHF + (F * 2 + t) * 4
            p(f"""
            v_accvgpr_read_b32 v{k+1}, a{e}
            v_accvgpr_read_b32 v{k+3}, a{e+1}
            v_lshlrev_b32 v{k}, 16, v{k+1}
            v_lshlrev_b32 v{k+2}, 16, v{k+3}
            v_and_b32 v{k+1}, 0xffff0000, v{k+1}
            v_and_b32 v{k+3}, 0xffff0000, v{k+3}""")
    p.cur = main_cur
    units = [(0, F) for F in range(8)] + [(1, F) for F in range(4, 8)] + [(u, F) for F in range(4, 8) for u in (2, 3)] + \
            [(u, F) for F in range(4) for u in (1, 2, 3)]
    x5 = xld5(3)
    fill = {0: [x5[0]], 2: [x5[1]], 4: [x5[2]], 6: [x5[3]], 1: [Ins(f"s_lshl_b32 s{s_t1}, s{s_tok}, 6")],
            5: [Ins(f"s_add_u32 s{s_t1}, s{s_t1}, {ST_SSQ}")]}
    for i in range(4):
        fill[8 + 2 * i] = [Ins(f"buffer_load_dwordx2 {rr('v', 32 + 2*i, 2)}, v{vPT}, s[{sT}:{sT+3}], s{s_t1} offen offset:{i*128} sc1")]
    for F in range(4, 8):
        k = units.index((3, F))
        a = AB3 + F * 8
        seq = []
        for q in range(4):
            seq += [Ins(f"v_accvgpr_read_b32 v{a+2*q}, a{aA5 + F*8 + 2*q}"), Ins(f"v_accvgpr_read_b32 v{a+2*q+1}, a{aA5 + F*8 + 2*q + 1}"),
                    Ins(f"v_cvt_pk_bf16_f32 v{a+q}, v{a+2*q}, v{a+2*q+1}")]
        for q in range(6):
            fill[4 * (k + 1) + 3 + q] = seq[2 * q:2 * q + 2]
        fill[4 * (k + 1) + 9] = [Ins(f"buffer_store_dwordx4 {rr('v', a, 4)}, v{vL16}, s[{sC}:{sC+3}], s{s_xs} offen offset:{(F-4)*1024} sc1")]
    fill[126] = [Ins(f"s_xor_b32 s{s_xs}, s{s_xs}, {PX << 14}")]
    for i in range(128):
        k, t, G = i >> 2, (i >> 1) & 1, i & 1
        u, F = units[k]
        p(mf16(A5(F, t), rr('v', WB + (k % 8) * 8 + G * 4, 4), sh.X(u, t, G)))
        n = i + LEAD
        if n == 32:
            p("s_barrier", rd=['Lx'])
        if n < 128:
            un, Fn = units[n >> 2]
            p(f"ds_read_b64_tr_b16 {rr('v', WB + 2 * (n % 32), 2)}, v{vA3 + (Fn & 3)} offset:{un*16384 + sh.off(Fn, (n >> 1) & 1, n & 1)}")
        if i % 4 == 3 and i < 127:
            p(f"wait {rr('v', WB + 8 * ((k + 1) % 8), 8)}, {sh.Xall(units[k + 1][0])}")
        p.add(fill.get(i, []))
        if bg and i not in fill:
            p.add(bg.pop(0))
    assert not bg, len(bg)
    p.add(Raw("; @stamp 14"))
    arrive(p, s_fl)
    p(f"""
    s_xor_b32 s{s_fl}, s{s_fl}, {PX << 9}
    s_mov_b32 s{s_t1}, {f32hex(1.0/1024)}
    v_mov_b32 v{vt+4}, {f32hex(1e-5)}""")
    if 'tail' in dbg: p.add(Raw("; @stamp 0"))
    rstd_from(32, vS)
    for i in range(32):
        p(f"v_accvgpr_read_b32 v{AB3+i}, a{aA5+i}")
    for t in range(2):
        sel = "op_sel_hi:[1,0,1]" if t == 0 else "op_sel:[0,1,0]"
        for F in range(4):
            for r in (0, 2):
                a, k = AB3 + (F * 2 + t) * 4 + r, vHF + (F * 2 + t) * 4 + r
                p(f"v_pk_fma_f32 {rr('v', k, 2)}, {rr('v', a, 2)}, {rr('v', vS, 2)}, {rr('v', k, 2)} {sel}")
    poll(p, f"{name}_xpoll", s_fl, 1, vt)
    for F in range(4):
        p(f"buffer_load_dwordx4 {rr('v', WB + 4*F, 4)}, v{vL16}, s[{sC}:{sC+3}], s{s_xs} offen offset:{F*1024} sc1")
    if 'tail' in dbg: p.add(Raw("; @stamp 1"))
    RX = 208
    for t in range(2):
        sel = "op_sel_hi:[1,0,1]" if t == 0 else "op_sel:[0,1,0]"
        for F in range(4):
            a, k = RX + (F * 2 + t) * 4, vHF + (F * 2 + t) * 4
            for r in (0, 2):
                e = WB + 4 * F + 2 * t + r // 2
                p(f"v_lshlrev_b32 v{a+r}, 16, v{e}\nv_and_b32 v{a+r+1}, 0xffff0000, v{e}")
                p(f"v_pk_fma_f32 {rr('v', k+r, 2)}, {rr('v', a+r, 2)}, {rr('v', vS, 2)}, {rr('v', k+r, 2)} {sel}")
            p(f"v_cvt_pk_bf16_f32 v{k}, v{k}, v{k+1}\nv_cvt_pk_bf16_f32 v{k+1}, v{k+2}, v{k+3}")
            p(f"ds_write_b64 v{vL}, v[{k}:{k+1}] offset:{t*16*144 + F*32}")
        for n in range(2):
            p(f"ds_read_b128 {rr('v', 240 + (t*2+n)*4, 4)}, v{vL+1} offset:{(t*2+n)*8*144}")
    if 'tail' in dbg: p.add(Raw("; @stamp 2"))
    for n in range(4):
        p(f"buffer_store_dwordx4 {rr('v', 240 + n*4, 4)}, v{vG}, s[{sA}:{sA+3}], s{s_ro} offen")
        if n < 3: p(f"s_add_u32 s{s_ro}, s{s_ro}, {8 * 2048}")
    p(f"{name}_end:")
    p("s_endpgm")
    if 'nof2' not in dbg: p.add(f2blk)

    p.add(Raw(f"""{name}_rsx:
    s_lshl_b32 s{s_t0}, s{s_w}, 12
    s_add_u32 m0, s{s_t0}, {XT}
    s_lshl_b32 s{s_t1}, s{s_j}, 7
""" + "".join(f"    buffer_load_dwordx4 v{vD+i}, s[{sC}:{sC+3}], s{s_t1} offen offset:{i*1024} lds\n" for i in range(4)) + f"""    s_lshl_b32 s{s_t0}, s{s_hd}, 10
    s_add_u32 s{s_t0}, s{s_t0}, {ST_RS2}
    s_xor_b32 s{s_t1}, s{s_t0}, 1024
""" + "".join(f"    buffer_load_dwordx4 {rr('v', RSV + 16*x + 4*jj, 4)}, v{vRA}, s[{sT}:{sT+3}], s{s_t1 if x else s_t0} offen offset:{jj*256} sc1\n"
              for x in range(2) for jj in range(4)) + f"    s_branch {name}_rsxback"))

    slow = p.segment()
    p(f"{name}_slow:")
    p.fence()
    for x in range(2):
        p(f"v_mov_b32 v{Nb(x)}, 0xff800000")
    p(f"s_mov_b32 s{s_ko}, 0")
    p.begin_loop(f"{name}_max_loop", 64, align=False)
    p.add([kld(0, 0), kld(0, 1)])
    for x in range(2):
        p(mf32(rr('v', Sb(x), 16), Kf(0, 0), Q(x, 0), "0"))
        p(mf32(rr('v', Sb(x), 16), Kf(0, 1), Q(x, 1)))
    for x in range(2):
        for i in range(0, 16, 2):
            p(f"v_max3_f32 v{Nb(x)}, v{Nb(x)}, v{Sb(x)+i}, v{Sb(x)+i+1}")
    p(f"""
    s_add_u32 s{s_ko}, s{s_ko}, 4096
    s_cmp_lg_u32 s{s_ko}, {64 * 4096}
    s_cbranch_scc1 {name}_max_loop""")
    p.end_loop()
    for x in range(2):
        p(f"""
        v_mov_b32 v{vt}, v{Nb(x)}
        v_permlane32_swap_b32 v{Nb(x)}, v{vt}
        v_max_f32 v{Nb(x)}, v{Nb(x)}, v{vt}
        v_sub_f32 v{Nb(x)}, 0, v{Nb(x)}""")
        for i in range(1, 16):
            p(f"v_mov_b32 v{Nb(x)+i}, v{Nb(x)}")
    fill_kv()
    att_init()
    p(f"s_mov_b32 s{s_safe}, 1")
    attention('safe', lambda y: rr('v', Nb(y), 16), False, [Ins("s_nop 11")])
    p.fence()
    p(f"s_branch {name}_fin")
    p.paths = [[main, red_w, rest], [main, fin, fin_k, rest], [main, fin, fin_v, rest], [slow]]
    return p
```

```python
import sys, re
sys.path.insert(0, 'dev')
from common import *
import fused

NAME = 'sequential_preLN__grouped_kv_mqa__glu_gated_glu__prompt'
HDR = open(f'cdna_kernels/{NAME}.s.ref').read().split('; Override launch')[0]
STAMP = (0x4000000, 0x100000)

def add_stamps(c, d, n, dbgout=False, amp=None):
    c = c.replace(f"{n}:\n", f"{n}:\n    s_memrealtime s[96:97]\n    s_memtime s[94:95]\n", 1)
    tail = f"""    s_waitcnt vmcnt(0)
    s_memrealtime s[98:99]
    s_memtime s[100:101]
    s_add_u32 s28, s26, {STAMP[0]}
    s_addc_u32 s29, s27, 0
    s_mov_b32 s30, 0x100000
    s_mov_b32 s31, 0x20000
    s_waitcnt lgkmcnt(0)
    s_mov_b64 exec, 1
    s_lshl_b32 s56, s2, 2
    s_add_u32 s56, s56, s52
    s_lshl_b32 s56, s56, 7
    s_sub_u32 s93, s100, s94
    s_mov_b32 s92, s98
    s_mov_b32 s91, s96
    v_mov_b32 v0, 0
"""
    for q in range(5):
        tail += "".join(f"    v_mov_b32 v{4+4*q+i}, s{76+4*q+i}\n" for i in range(4))
        tail += f"    buffer_store_dwordx4 v[{4+4*q}:{7+4*q}], v0, s[28:31], s56 offen offset:{16*q}\n"
    if amp:
        a, b, k = amp
        tail += f"    s_sub_u32 s57, s{76+b}, s{76+a}\n    s_mul_i32 s57, s57, {k}\n    s_min_u32 s57, s57, 100000\nF_amp:\n    s_memrealtime s[98:99]\n    s_waitcnt lgkmcnt(0)\n    s_sub_u32 s58, s98, s92\n    s_cmp_lt_u32 s58, s57\n    s_cbranch_scc1 F_amp\n"
    if dbgout:
        tail += "    s_mov_b64 s[28:29], s[24:25]\n    s_mov_b32 s30, 64\n    s_mov_b32 s90, s92\n"
        for i in range(15):
            tail += f"    s_sub_u32 s57, s{76+i}, s91\n    v_mov_b32 v4, s57\n    buffer_store_dword v4, v0, s[28:31], s56 offen offset:{4+4*i}\n"
    c = c.replace("F_end:\n", tail + "F_end:\n", 1)
    c = re.sub(r"; @stamp (\d+)", lambda m: f"    s_memrealtime s[98:99]\n    s_waitcnt lgkmcnt(0)\n    s_mov_b32 s{76+int(m.group(1))}, s98", c)
    d = re.sub(r"next_free_sgpr \d+", "next_free_sgpr 102", d)
    return c, d

def build(o):
    n = NAME + '_kernel'
    pr = fused.gen_fused('F', o)
    txt = HDR + f"; @launch grid=(256,1,1) block=(256,1,1) lds={fused.LDS_TOTAL}\n"
    txt += '.amdgcn_target "amdgcn-amd-amdhsa--gfx950"\n.text\n'
    c, d = kernel_text(n, pr)
    if o.get('fine'):
        c = re.sub(r"; @stamp ([4-9]|1\d)\n", "", c).replace("; @fine", "; @stamp")
    else:
        c = re.sub(r"; @fine \d+\n", "", c)
    if o.get('both'):
        a, b = o['both']
        c = re.sub(r"; @stamp [01]\n", "", c)
        c = c.replace(f"; @stamp {a}\n", f"; @stamp {a}\n    s_memtime s[98:99]\n    s_waitcnt lgkmcnt(0)\n    s_mov_b32 s76, s98\n")
        c = c.replace(f"; @stamp {b}\n", f"; @stamp {b}\n    s_memtime s[98:99]\n    s_waitcnt lgkmcnt(0)\n    s_mov_b32 s77, s98\n")
    if o.get('stamp'):
        c, d = add_stamps(c, d, n, o.get('dbgout'), o.get('amp'))
        if o.get('cyc'):
            c = c.replace('s_memrealtime', 's_memtime')
    else:
        c = re.sub(r"; @stamp \d+\n", "", c)
    return txt + c + '.section .rodata,"a"\n.p2align 6\n' + d

if __name__ == '__main__':
    out = sys.argv[1] if len(sys.argv) > 1 else f'cdna_kernels/{NAME}.s'
    opts = eval(sys.argv[2]) if len(sys.argv) > 2 else {}
    open(out, 'w').write(build(opts))
    print('wrote', out)
```

```python
from common import *

LDS_TOTAL = 163840
ST_MR = 0x0000
ST_RS2 = 0x60000
ST_MP = 0x28000
ST_FO = 0x80000
ST_FC = 0xA0000
ST_FH = 0xC0000
ST_F2 = 0x100000
ST_FY = 0x120000
ST_FX = 0xE0000
ST_KVC = 0x4000
SPIN = 1 << 20

pX, pWQ, pWK, pWV, pWO, pWG, pWU, pWD, pOUT, pDBG, pWS = 4, 6, 8, 10, 12, 16, 18, 20, 22, 24, 26
sA, sB, sC, sD, sE, sT = 28, 32, 36, 40, 44, 48
s_w, s_b, s_j, s_tok, s_t0, s_t1, s_t2, s_cnt, s_spin = 52, 53, 54, 55, 56, 57, 58, 59, 60
vL16, vZ, vOne = 1, 2, 3
aMEAN, aHR, aA5 = 238, 240, 160


def srd(p, s, ptr, size, off=None, bias=0):
    if off is not None:
        p(f"s_add_u32 s{s}, s{ptr}, s{off}\ns_addc_u32 s{s+1}, s{ptr+1}, 0")
        ptr = s
    if bias > 0:
        p(f"s_add_u32 s{s}, s{ptr}, {hex(bias)}\ns_addc_u32 s{s+1}, s{ptr+1}, 0")
    elif bias < 0:
        p(f"s_sub_u32 s{s}, s{ptr}, {hex(-bias)}\ns_subb_u32 s{s+1}, s{ptr+1}, 0")
    elif off is None:
        p(f"s_mov_b64 s[{s}:{s+1}], s[{ptr}:{ptr+1}]")
    if isinstance(size, str):
        p(size.format(d=f"s{s+2}"))
    else:
        p(f"s_mov_b32 s{s+2}, {hex(size)}")
    p(f"s_mov_b32 s{s+3}, 0x20000")


PFL = ['sc1', 'sc1', 'buffer_store_dword']


def arrive(p, soff):
    p("s_waitcnt vmcnt(0)")
    p(f"{PFL[2]} v{vOne}, v{vZ}, s[{sT}:{sT+3}], s{soff} offen {PFL[1]}")


SLEEP = [0]


def poll(p, label, soff, n, vtmp):
    p(f"""
    s_mov_b32 s{s_spin}, {SPIN}
    v_lshlrev_b32 v{vtmp+1}, 7, v0
    s_mov_b64 exec, {hex((1 << n) - 1) if n < 32 else 0xffff}
    {'s_mov_b32 exec_lo, -1' if n == 32 else ''}""")
    p.add(Raw(f"""    s_branch {label}_go
{label}:
    {f's_sleep {SLEEP[0]}' if SLEEP[0] else ''}
{label}_go:
    buffer_load_dword v{vtmp}, v{vtmp+1}, s[{sT}:{sT+3}], s{soff} offen {PFL[0]}
    s_sub_u32 s{s_spin}, s{s_spin}, 1
    s_waitcnt vmcnt(0)
    v_cmp_eq_u32 vcc, 0, v{vtmp}
    s_cbranch_scc1 {label}_done
    s_cbranch_vccnz {label}
{label}_done:"""))
    p("s_mov_b64 exec, -1")
    p("s_waitcnt vmcnt(0)")


def spread(vm, start, step):
    fill, pos = {}, start
    for ins in vm:
        fill.setdefault(pos, []).append(ins)
        if ins.kind == 'vmem':
            pos += step
    return fill


def zz(f, nt, nk, on=True):
    if not on:
        return [(t, k) for t in range(nt) for k in range(nk)]
    ts = list(range(nt)) if f % 2 == 0 else list(range(nt - 1, -1, -1))
    return [(t, k if n % 2 == 0 else nk - 1 - k) for n, t in enumerate(ts) for k in range(nk)]


def gen_fused(name, o):
    ZZ = o.get('zz', True)
    dbg = o.get('dbg', '')
    SLEEP[0] = o.get('sleep', 0)
    PFL[:] = o.get('pfl', PFL)
    KVSC = 'sc1' if o.get('kvsc1', False) else ''
    p = Prog()
    main = p.segment()
    p(f"""
    s_cmp_ge_u32 s2, 256
    s_cbranch_scc1 {name}_end
    s_load_dwordx16 s[4:19], s[0:1], 0
    s_load_dwordx8 s[20:27], s[0:1], 64
    v_lshrrev_b32 v1, 6, v0
    v_and_b32 v0, 63, v0
    v_readfirstlane_b32 s{s_w}, v1
    s_and_b32 s{s_t0}, s2, 7
    s_lshr_b32 s{s_t1}, s2, 3
    s_lshr_b32 s{s_b}, s{s_t0}, 1
    s_lshl_b32 s{s_b}, s{s_b}, 2
    s_and_b32 s{s_j}, s{s_t1}, 3
    s_add_u32 s{s_b}, s{s_b}, s{s_j}
    s_and_b32 s{s_j}, s{s_t0}, 1
    s_lshl_b32 s{s_j}, s{s_j}, 3
    s_lshr_b32 s{s_t1}, s{s_t1}, 2
    s_add_u32 s{s_j}, s{s_j}, s{s_t1}
    {f"s_xor_b32 s{s_j}, s{s_j}, {o['jxor']}" if o.get('jxor') else ''}
    s_lshl_b32 s{s_tok}, s{s_b}, 2
    s_add_u32 s{s_tok}, s{s_tok}, s{s_w}
    s_lshl_b32 s{s_tok}, s{s_tok}, 5
    v_lshlrev_b32 v{vL16}, 4, v0
    v_cmp_eq_u32 vcc, 0, v0
    v_mov_b32 v{vOne}, 0x7ffffff0
    v_cndmask_b32 v{vZ}, v{vOne}, 0, vcc
    v_mov_b32 v{vOne}, 1
    """)

    R3 = o.get('rot3', False)
    SL = 24576
    RED, CSQ = 147456, 162816
    vt = 4
    vD = 12
    vD0 = 18
    vB = 22
    vA = 28
    vST = 34
    ONES = 36
    vRS = 40
    s_kv, s_xoff, s_woff, s_dm, s_pb, s_w6 = 61, 62, 63, 64, 65, 66
    s_hd, s_wdo, s_wm0, s_po, s_pk, s_ko, s_vo, s_pj = 67, 68, 69, 70, 71, 72, 73, 3
    p(f"""
    v_lshrrev_b32 v{vt}, 3, v0
    v_lshrrev_b32 v{vt+1}, 4, v0
    v_and_b32 v{vt+2}, 7, v0
    v_xor_b32 v{vt+3}, v{vt+1}, v{vt+2}
    v_lshlrev_b32 v{vt+3}, 4, v{vt+3}
    v_lshl_add_u32 v{vt+3}, v{vt}, 11, v{vt+3}
    v_xor_b32 v{vt+4}, 64, v{vt+3}
    v_add_u32 v{vD}, 4096, v{vt+3}
    v_add_u32 v{vD+1}, {16384 + 4096 - 1024}, v{vt+4}
    v_add_u32 v{vD0}, {128 + 4096 - 2048}, v{vt+3}
    v_add_u32 v{vD0+1}, {16384 + 128 + 4096 - 3072}, v{vt+4}
    v_lshrrev_b32 v{vt+5}, 5, v0
    v_lshlrev_b32 v{vt+5}, 1, v{vt+5}
    v_xor_b32 v{vt+5}, v{vt+5}, v0
    v_lshlrev_b32 v{vD0+2}, 4, v{vt+5}
    v_add_u32 v{vD+2}, {32768 + 4096 - 2048}, v{vt+3}
    v_add_u32 v{vD+3}, {32768 + 16384 + 4096 - 3072}, v{vt+4}
    v_and_b32 v{vt+1}, 1, v{vt+1}
    v_lshlrev_b32 v{vt+1}, 1, v{vt+1}
    v_xor_b32 v{vt+1}, v{vt+1}, v{vt+2}
    v_lshlrev_b32 v{vt+1}, 4, v{vt+1}
    v_lshl_add_u32 v{vD+4}, v{vt}, 11, v{vt+1}
    v_xor_b32 v{vD+5}, 64, v{vD+4}
    v_add_u32 v{vD+5}, {8*2048 - 1024}, v{vD+5}
    s_lshr_b32 s{s_t0}, s{s_j}, 1
    s_lshl_b32 s{s_kv}, s{s_b}, 3
    s_add_u32 s{s_kv}, s{s_kv}, s{s_t0}
    s_lshl_b32 s{s_kv}, s{s_kv}, 4
    s_lshl_b32 s{s_t0}, s{s_kv}, 11
    s_lshl_b32 s{s_t1}, s{s_w}, 9
    s_add_u32 s{s_t0}, s{s_t0}, s{s_t1}
    s_add_u32 s{s_t1}, s{s_w}, 2
    s_mul_i32 s{s_dm}, s{s_t1}, {SL}
    s_mov_b32 m0, s{s_dm}
    s_mul_i32 s{s_xoff}, s{s_b}, {128 * o.get('rotb', 4)}
    s_mul_i32 s{s_woff}, s{s_j}, {128 * o.get('rotj', 2)}
    s_add_u32 s{s_xoff}, s{s_xoff}, s{s_woff}
    s_and_b32 s{s_xoff}, s{s_xoff}, 2047
    s_mul_i32 s{s_w6}, s{s_w}, 6144
    s_lshl_b32 s{s_ko}, s{s_w}, 14
    s_bfe_u32 s{s_vo}, s{s_j}, 0x20001
    s_lshl_b32 s{s_vo}, s{s_vo}, 14
    s_and_b32 s{s_t1}, s{s_tok}, 0x1e0
    s_lshl_b32 s{s_t1}, s{s_t1}, 5
    s_add_u32 s{s_vo}, s{s_vo}, s{s_t1}
    v_lshlrev_b32 v{vt+6}, 7, v0
    """)
    srd(p, sA, pX, S * D * 2 + 4096, bias=-4096)
    p.add(Raw("; @fine 4"))
    p(f"""
    s_bitcmp0_b32 s{s_j}, 0
    s_cselect_b64 s[{sB}:{sB+1}], s[{pWK}:{pWK+1}], s[{pWV}:{pWV+1}]
    s_mov_b32 s{sB+2}, {D * 64}
    s_mov_b32 s{sB+3}, 0x20000
    """)
    if o.get('kvtouch', True):
        p("s_mov_b64 exec, 0xff")
        p(f"buffer_load_dword v255, v{vt+6}, s[{sB}:{sB+3}], s{s_vo} offen", nowaw=True)
        p.cur[-1].awr = set()
        p("s_mov_b64 exec, -1")
    xo = [vD, vD + 1, vD0, vD0 + 1]
    for n in range(8):
        if n == 4:
            p(f"s_add_u32 m0, m0, 4096\ns_add_u32 s{s_t0}, s{s_t0}, 256")
        p(f"buffer_load_dwordx4 v{xo[n & 3]}, s[{sA}:{sA+3}], s{s_t0} offen offset:{(n & 3) * 1024} lds", awr=['P00'], nowaw=True)

    def wkv(q):
        p("s_add_u32 m0, m0, 4096")
        if q: p(f"s_add_u32 s{s_ko}, s{s_ko}, 4096")
        for i in range(4):
            p(f"buffer_load_dwordx4 v{vD0+2}, s[{sB}:{sB+3}], s{s_ko} offen offset:{i*1024} lds", awr=[f'P0{q}'], nowaw=True)
    EARLY = o.get('early', 1)
    for q in range(EARLY): wkv(q)
    p.add(Raw("; @fine 5"))
    p(f"""
    s_lshl_b32 s{s_t0}, s{s_tok}, 11
    s_lshl_b32 s{s_t1}, s{s_w}, 15
    s_lshl_b32 s{s_t2}, s{s_j}, 7
    s_add_u32 s{s_t1}, s{s_t1}, s{s_t2}
    """)
    srd(p, sC, pX, 32 * 2048 + 4096, off=s_t0, bias=-4096)
    srd(p, sD, pWQ, f"s_sub_u32 {{d}}, {D * D * 2}, s{s_t1}", off=s_t1)

    def dma1(m0expr, tag):
        o_ = [Ins(m0expr), Ins(f"s_lshl_b32 s{s_woff}, s{s_xoff}, 10")]
        for i in range(4):
            o_.append(Ins(f"buffer_load_dwordx4 v{vD+i}, s[{sC}:{sC+3}], s{s_xoff} offen offset:{i*1024} lds", awr=[tag], nowaw=True))
        o_ += [Ins("s_add_u32 m0, m0, 4096"), Ins(f"s_add_u32 s{s_xoff}, s{s_xoff}, 128")]
        for i in range(2):
            o_.append(Ins(f"buffer_load_dwordx4 v{vD+4+i}, s[{sD}:{sD+3}], s{s_woff} offen offset:{i*1024} lds", awr=[tag], nowaw=True))
        o_.append(Ins(f"s_and_b32 s{s_xoff}, s{s_xoff}, 2047"))
        return o_
    if o.get('qtouch', True):
        srd(p, sE, pWQ, D * D * 2)
        p(f"""
        s_lshr_b32 s{s_t0}, s2, 3
        s_lshl_b32 s{s_t0}, s{s_t0}, 2
        s_add_u32 s{s_t0}, s{s_t0}, s{s_w}
        s_lshl_b32 s{s_t0}, s{s_t0}, 14
        s_and_b32 s{s_t1}, s{s_j}, 8
        s_lshl_b32 s{s_t1}, s{s_t1}, 7
        s_add_u32 s{s_t0}, s{s_t0}, s{s_t1}
        v_lshlrev_b32 v{vt+6}, 11, v0
        s_mov_b64 exec, 0xff""")
        p(f"buffer_load_dword v255, v{vt+6}, s[{sE}:{sE+3}], s{s_t0} offen offset:384", nowaw=True)
        p.cur[-1].awr = set()
        p("s_mov_b64 exec, -1")
    srd(p, sE, pWO, D * D * 2)

    def rs_loads():
        p(f"""
        s_lshl_b32 s{s_t0}, s2, 2
        s_add_u32 s{s_t0}, s{s_t0}, s{s_w}
        s_lshl_b32 s{s_t0}, s{s_t0}, {21 if 'nors' in dbg else 11}
        buffer_load_dwordx4 {rr('v', vRS, 4)}, v{vL16}, s[{sE}:{sE+3}], s{s_t0} offen
        buffer_load_dwordx4 {rr('v', vRS+4, 4)}, v{vL16}, s[{sE}:{sE+3}], s{s_t0} offen offset:1024
        """)
    if o.get('rsfirst', True): rs_loads()
    srd(p, sT, pWS, ST[1], bias=ST[0])
    srd(p, sA, pWS, KV[1], bias=KV[0])
    p(f"""
    v_and_b32 v{vt}, 15, v0
    v_lshrrev_b32 v{vt+1}, 1, v{vt}
    v_lshrrev_b32 v{vt+2}, 4, v0
    v_xor_b32 v{vt+1}, v{vt+1}, v{vt+2}
    v_lshlrev_b32 v{vt+1}, 4, v{vt+1}
    v_lshl_add_u32 v{vt+1}, v{vt}, 7, v{vt+1}
    v_xor_b32 v{vt+3}, 64, v{vt+1}
    v_add_u32 v{vB}, s{s_w6}, v{vt+1}
    v_add_u32 v{vB+1}, s{s_w6}, v{vt+3}
    v_add_u32 v{vA}, s{s_dm}, v{vt+1}
    v_add_u32 v{vA+1}, s{s_dm}, v{vt+3}
    v_lshrrev_b32 v{vt}, 5, v0
    v_and_b32 v{vt+1}, 3, v0
    v_lshlrev_b32 v{vt+1}, 3, v{vt+1}
    v_bfe_u32 v{vt+2}, v0, 2, 2
    v_bfe_u32 v{vt+3}, v0, 4, 1
    v_lshl_add_u32 v{vt+2}, v{vt+3}, 3, v{vt+2}
    v_lshl_add_u32 v{vt+4}, v{vt}, 10, v{vt+1}
    v_lshl_add_u32 v{vt+4}, v{vt+2}, 6, v{vt+4}
    v_lshl_add_u32 v{vt+4}, v{vt+3}, 5, v{vt+4}
    v_add_u32 v{vA+2}, s{s_dm}, v{vt+4}
    v_xor_b32 v{vA+3}, 32, v{vA+2}
    v_mul_u32_u24 v{vt}, 6144, v{vt}
    v_add_u32 v{vt}, v{vt}, v{vt+1}
    v_lshl_add_u32 v{vt}, v{vt+2}, 7, v{vt}
    v_bfe_u32 v{vt+4}, v0, 3, 2
    v_xor_b32 v{vt+4}, s{s_w}, v{vt+4}
    v_lshl_add_u32 v{vB+2}, v{vt+4}, 5, v{vt}
    v_xor_b32 v{vB+3}, 32, v{vB+2}
    v_xor_b32 v{vB+4}, 64, v{vB+2}
    v_xor_b32 v{vB+5}, 0x60, v{vB+2}
    """)
    for i in range(4):
        p(f"v_mov_b32 v{ONES+i}, 0x3f803f80")
    on = rr('v', ONES, 4)
    AB = 48
    CSA = 80
    PA = 84
    FB = 128
    TR = 112
    NR = 8
    Q = lambda x, m: rr('v', 16 + x * 8 + m * 4, 4)
    Sb = lambda x: 64 + 16 * x
    RSV = 112
    Nb = lambda x: 144 + 16 * x
    Ob = lambda x: 176 + 16 * x
    Lb = lambda x: 208 + 4 * x
    Pb = lambda x: 216 + 8 * x
    SEL, vWD, vPF, vDum, vOS, vPW, vCS, vGP, vMA, vRA, vFF = 232, 236, 240, 241, 242, 243, 244, 245, 246, 247, 248

    def att_init():
        for i in list(range(Ob(0), Lb(1) + 4, 2)) + list(range(Pb(1), Pb(1) + 8, 2)):
            p(f"v_pk_mov_b32 {rr('v', i, 2)}, 0, 0")
        for i in range(8): p(f"v_accvgpr_write_b32 a{64 + (NR-1)*8 + i}, 0")
    for i in range(AB, CSA + 4, 2):
        p(f"v_pk_mov_b32 {rr('v', i, 2)}, 0, 0")
    p.add(Raw(f"""    s_or_b32 s{s_t0}, s2, s{s_w}
    s_cbranch_scc1 {name}_noclr
    s_movk_i32 s{s_t0}, {ST_KVC}
""" + "".join(f"    buffer_store_dwordx4 {rr('v', AB, 4)}, v{vL16}, s[{sT}:{sT+3}], s{s_t0} offen offset:{i*1024} sc1\n" for i in range(4)) + f"{name}_noclr:"))
    att_init()
    for i in range(4):
        p(f"v_mov_b32 v{vFF+i}, -1")
    p(f"""
    v_lshrrev_b32 v{vt}, 2, v0
    v_and_b32 v{vt}, 4, v{vt}
    v_xor_b32 v{vt}, v{vt}, v0
    v_and_b32 v{vt}, 7, v{vt}
    v_cmp_eq_u32 vcc, 0, v{vt}
    v_lshrrev_b32 v{vt}, 3, v0
    v_and_b32 v{vt+1}, 6, v{vt}
    v_cndmask_b32 v{SEL}, 0, v{ONES}, vcc
    v_mov_b32 v{SEL+1}, v{SEL}
    v_mov_b32 v{SEL+2}, v{SEL}
    v_mov_b32 v{SEL+3}, v{SEL}
    v_and_b32 v{vt+2}, 7, v0
    v_xor_b32 v{vt+1}, v{vt+1}, v{vt+2}
    v_lshlrev_b32 v{vt+1}, 4, v{vt+1}
    v_lshl_add_u32 v{vWD}, v{vt}, 11, v{vt+1}
    v_add_u32 v{vWD+1}, {8*2048 - 1024}, v{vWD}
    v_add_u32 v{vWD+2}, {16*2048 - 2048}, v{vWD}
    v_add_u32 v{vWD+3}, {24*2048 - 3072}, v{vWD}
    s_lshl_b32 s{s_wdo}, s{s_w}, 16
    s_lshl_b32 s{s_t1}, s{s_j}, 7
    s_add_u32 s{s_wdo}, s{s_wdo}, s{s_t1}
    s_lshl_b32 s{s_wm0}, s{s_w}, 12
    {f's_and_b32 s{s_t0}, s{s_j}, 1' if R3 else ''}
    {f's_lshl_b32 s{s_t0}, s{s_t0}, 16' if R3 else ''}
    {f's_add_u32 s{s_wm0}, s{s_wm0}, s{s_t0}' if R3 else ''}
    s_lshl_b32 s{s_pj}, s{s_tok}, 6
    s_add_u32 s{s_pj}, s{s_pj}, s{s_t1}
    s_lshl_b32 s{s_hd}, s{s_j}, 1
    s_lshr_b32 s{s_t0}, s{s_w}, 1
    s_add_u32 s{s_hd}, s{s_hd}, s{s_t0}
    v_mul_u32_u24 v{vt}, 9363, v0
    v_lshrrev_b32 v{vt}, 16, v{vt}
    v_mul_u32_u24 v{vt+1}, {7168 - 7*128}, v{vt}
    v_cmp_gt_u32 vcc, 14, v0
    v_lshl_add_u32 v{vPF}, v0, 7, v{vt+1}
    s_lshr_b32 s{s_t0}, s2, 3
    v_cndmask_b32 v{vPF}, -1, v{vPF}, vcc
    v_and_b32 v{vPF}, 0x7fffff80, v{vPF}
    s_lshl_b32 s{s_t0}, s{s_t0}, 2
    s_add_u32 s{s_t0}, s{s_t0}, s{s_w}
    s_mul_i32 s{s_pk}, s{s_t0}, {2 * 7168}
    s_and_b32 s{s_t0}, s2, 7
    s_mul_i32 s{s_t0}, s{s_t0}, 896
    s_add_u32 s{s_pk}, s{s_pk}, s{s_t0}
    s_mov_b32 s{s_po}, s{s_pk}
    v_and_b32 v{vt}, 15, v0
    v_bfe_u32 v{vt+1}, v0, 4, 1
    v_lshrrev_b32 v{vt+2}, 5, v0
    v_lshrrev_b32 v{vt+3}, 4, v0
    v_lshlrev_b32 v{vMA}, 3, v{vt}
    v_lshlrev_b32 v{vRA}, 7, v{vt+2}
    v_add_u32 v253, 8192, v{vL16}
    v_lshl_add_u32 v{vPW}, v{vt+3}, 2, v{vMA}
    v_lshlrev_b32 v{vt}, 4, v{vt}
    v_lshl_add_u32 v{vOS}, v{vt+1}, 15, v{vt}
    v_lshl_add_u32 v{vOS}, v{vt+2}, 8, v{vOS}
    s_lshl_b32 s{s_t0}, s{s_w}, 6
    s_add_u32 s{s_t0}, s{s_t0}, {CSQ}
    v_lshl_add_u32 v{vCS}, v{vt+3}, 4, s{s_t0}
    v_lshlrev_b32 v{vGP}, 5, v{vMA}
    s_bitcmp1_b32 s{s_j}, 0
    s_cselect_b32 s{s_t0}, 9, 10
    s_cselect_b32 s{s_t1}, 8, 9
    v_lshl_add_u32 v{vST}, v{vt+1}, s{s_t0}, v{vt}
    v_lshl_add_u32 v{vST}, v{vt+2}, s{s_t1}, v{vST}
    s_mul_i32 s{s_t0}, s{s_w}, 5120
    s_add_u32 s{s_t0}, s{s_t0}, {RED - 5120}
    v_add_u32 v{vST+1}, s{s_t0}, v{vL16}
    v_and_b32 v{vt}, 3, v0
    v_cmp_eq_u32 s[0:1], 1, v{vt}
    v_cmp_eq_u32 s[14:15], 2, v{vt}
    v_cmp_eq_u32 s[74:75], 3, v{vt}
    v_bfe_u32 v{vt}, v0, 2, 2
    v_cmp_eq_u32 vcc, v{vt}, v{vt+3}
    """)
    SMF = o.get('smf', True)
    vIX = 252
    if SMF:
        p(f"""
        v_and_b32 v{vt+5}, 6, v0
        v_cmp_eq_u32 s[{sB}:{sB+1}], 0, v{vt+5}
        """.replace(f"s[{sB}:{sB+1}]", "s[76:77]" if False else "s[58:59]"))
        p(f"""
        v_cndmask_b32 v{SEL}, 0, v{ONES}, s[58:59]
        v_cndmask_b32 v{SEL+1}, 0, v{ONES}, s[58:59]
        v_cmp_eq_u32 s[58:59], 4, v{vt+5}
        v_and_b32 v{vIX}, 1, v0
        v_mul_u32_u24 v{vIX}, 0xaaaa, v{vIX}
        v_cndmask_b32 v{SEL+2}, 0, v{ONES}, s[58:59]
        v_cndmask_b32 v{SEL+3}, 0, v{ONES}, s[58:59]
        v_add_u32 v{vIX}, 0x4444, v{vIX}""")
    smf = lambda x: f"v_smfmac_f32_16x16x64_bf16 {rr('v', Lb(x), 4)}, {rr('v', SEL, 4)}, {rr('v', Pb(x), 8)}, v{vIX}"
    for q in range(EARLY, 4): wkv(q)
    srd(p, sB, pDBG, 256)
    if not o.get('rsfirst', True): rs_loads()
    p.add(Raw("; @stamp 0"))
    X0 = lambda G: rr('a', FB + 4 * G, 4)
    W0 = lambda G, e: rr('a', FB + 32 + (G * 2 + e) * 4, 4)
    acc0 = lambda k: rr('v', PA + 4 * k, 4)

    def rd0(q):
        o_ = []
        for G in (2 * q, 2 * q + 1):
            o_.append(Ins(f"ds_read_b128 {X0(G)}, v{vA + (G & 1)} offset:{q * 2048}", rd=[f'P0{q}']))
            o_ += [Ins(f"ds_read_b64_tr_b16 {rr('a', FB + 32 + (G*2+e)*4 + 2*b, 2)}, v{vA+2+e} offset:{8192 + G*2048 + b*256}")
                   for e in range(2) for b in range(2)]
        return o_

    def mf0(q):
        o_ = []
        for G in (2 * q, 2 * q + 1):
            c = "0" if G == 0 else None
            o_ += [mf16(acc0(4), on, X0(G), c), mf16(acc0(5), X0(G), X0(G), c), mf16(acc0(0), W0(G, 0), X0(G), c),
                   mf16(acc0(2), W0(G, 0), on, c), mf16(acc0(1), W0(G, 1), X0(G), c), mf16(acc0(3), W0(G, 1), on, c)]
        return o_
    p.add(rd0(0))
    p.add(Raw("; @fine 6"))
    later = dma1(f"s_mov_b32 m0, s{s_w6}", 'L0') + dma1(f"s_add_u32 m0, s{s_w6}, {SL}", 'Lx')

    def some(k):
        n = 0
        while later and n < k:
            x = later.pop(0); p.add(x); n += x.kind == 'vmem'
    RSA = PA + 24
    for q in range(4):
        rds = rd0(q + 1) if q < 3 else []
        for i, m in enumerate(mf0(q)):
            p(m)
            if rds: p.add(rds.pop(0))
            if i % 4 == 1: some(1)
    assert EARLY < 4
    p.add(Raw(f"""    s_or_b32 s{s_t0}, s2, s{s_w}
    s_cbranch_scc1 {name}_nordy
    buffer_store_dword v{vOne}, v{vZ}, s[{sB}:{sB+3}], 0 offen sc1
{name}_nordy:"""))
    p(mf16(rr('v', RSA, 4), on, rr('v', vRS, 4), "0"))
    p(mf16(rr('v', RSA, 4), on, rr('v', vRS + 4, 4)))
    some(99)
    p.add(Raw("; @fine 7"))
    g = PA + 20
    p(f"""
    v_cndmask_b32 v{g}, v{g}, v{g+1}, s[0:1]
    v_cndmask_b32 v{g}, v{g}, v{g+2}, s[14:15]
    v_cndmask_b32 v{g}, v{g}, v{g+3}, s[74:75]
    v_cndmask_b32 v{PA+17}, 0, v{g}, vcc
    v_cmp_eq_u32 vcc, s{s_w}, v0""")
    for k in (8, 4, 2, 1):
        p(f"v_add_f32_dpp v{RSA}, v{RSA}, v{RSA} row_ror:{k} row_mask:0xf bank_mask:0xf")
    p(f"""
    v_cndmask_b32 v{PA+18}, 0, v{RSA}, vcc
    s_cmp_eq_u32 s{s_w}, 0
    s_cbranch_scc1 {name}_p0fin
    """)
    red_w = p.segment()
    for k in (4, 0, 2, 1, 3):
        p(f"ds_write_b128 v{vST+1}, {acc0(k)} offset:{k*1024}")
    p("s_waitcnt lgkmcnt(0)")
    p("s_barrier")
    p(f"s_branch {name}_p1")
    fin = p.segment()
    p(f"{name}_p0fin:")
    p(f"""
    s_lshl_b32 s{s_t0}, s2, 11
    s_add_u32 s{s_t0}, s{s_t0}, {ST_FO}
    buffer_store_dwordx4 {rr('v', AB, 4)}, v{vL16}, s[{sT}:{sT+3}], s{s_t0} offen sc1
    buffer_store_dwordx4 {rr('v', AB, 4)}, v{vL16}, s[{sT}:{sT+3}], s{s_t0} offen offset:1024 sc1
    s_lshl_b32 s{s_t0}, s2, 10
    s_add_u32 s{s_t0}, s{s_t0}, {ST_F2}
    buffer_store_dwordx4 {rr('v', AB, 4)}, v{vL16}, s[{sT}:{sT+3}], s{s_t0} offen sc1
    s_lshl_b32 s{s_t0}, s2, 7
    s_mov_b32 s{s_t1}, {f32hex(1.0/1024)}
    v_lshlrev_b32 v{vt+3}, 2, v0
    s_add_u32 s{s_t0}, s{s_t0}, {ST_RS2}""")
    p("s_barrier")
    for k in (4, 0, 2, 1, 3):
        for w in range(3):
            p(f"ds_read_b128 {rr('v', TR + (k*3+w)*4, 4)}, v{vST+1} offset:{5120*(w+1) + k*1024}")

    def red(k):
        a, b = PA + 4 * k, TR + k * 12
        for h in (0, 2):
            p(f"v_pk_add_f32 {rr('v', a+h, 2)}, {rr('v', a+h, 2)}, {rr('v', b+h, 2)}")
            p(f"v_pk_add_f32 {rr('v', b+4+h, 2)}, {rr('v', b+4+h, 2)}, {rr('v', b+8+h, 2)}")
        for h in (0, 2):
            p(f"v_pk_add_f32 {rr('v', a+h, 2)}, {rr('v', a+h, 2)}, {rr('v', b+4+h, 2)}")
    vM, vR = PA + 20, PA + 21
    d = PA + 24
    red(4)
    p(f"""
    s_mov_b32 exec_hi, 0
    buffer_store_dword v{PA+18}, v{vt+3}, s[{sT}:{sT+3}], s{s_t0} offen sc1
    s_mov_b32 exec_hi, -1""")
    xsum16_32(p, f"v{PA+17}", f"v{vt}")
    p(f"""
    v_mul_f32 v{vM}, s{s_t1}, v{PA+16}
    v_mul_f32 v{vt}, v{vM}, v{vM}
    v_fma_f32 v{vt}, v{PA+17}, s{s_t1}, -v{vt}
    v_max_f32 v{vt}, 0, v{vt}
    v_add_f32 v{vt}, {f32hex(1e-5)}, v{vt}
    v_rsq_f32 v{vR}, v{vt}
    s_lshr_b32 s{s_t0}, s{s_kv}, 5
    s_lshl_b32 s{s_t0}, s{s_t0}, 12
    s_bfe_u32 s{s_t1}, s{s_kv}, 0x10004
    """)
    mr = rr('v', vM, 2)
    for e in range(2):
        red(e); red(2 + e)
        a = PA + 4 * e
        for r in (0, 2): p(f"v_pk_fma_f32 {rr('v', a+r, 2)}, {rr('v', a+8+r, 2)}, {mr}, {rr('v', a+r, 2)} op_sel_hi:[1,0,1] neg_lo:[0,1,0] neg_hi:[0,1,0]")
        for r in (0, 2): p(f"v_pk_mul_f32 {rr('v', a+r, 2)}, {rr('v', a+r, 2)}, {mr} op_sel:[0,1]")
        p(f"v_cvt_pk_bf16_f32 v{d+2*e}, v{a}, v{a+1}")
        p(f"v_cvt_pk_bf16_f32 v{d+2*e+1}, v{a+2}, v{a+3}")
    p(f"""
    s_bitcmp1_b32 s{s_j}, 0
    s_cbranch_scc1 {name}_p0v
    """)
    fin_k = p.segment()
    p(f"""
    s_lshl_b32 s{s_t1}, s{s_t1}, 8
    s_add_u32 s{s_t0}, s{s_t0}, s{s_t1}
    buffer_store_dwordx4 {rr('v', d, 4)}, v{vST}, s[{sA}:{sA+3}], s{s_t0} offen sc1
    s_lshl_b32 s{s_t0}, s{s_kv}, 3
    s_mov_b64 exec, 0xffff
    buffer_store_dwordx2 {mr}, v{vMA}, s[{sT}:{sT+3}], s{s_t0} offen offset:{ST_MR} sc1
    s_mov_b64 exec, -1
    s_branch {name}_p1""")
    fin_v = p.segment()
    p(f"""
    {name}_p0v:
    v_lshrrev_b32 v{vt+1}, 4, v0
    v_add_u32 v{vt}, v{vt+1}, v{vMA}
    v_lshlrev_b32 v{vt}, 3, v{vt}
    v_add_u32 v{vt}, {RED}, v{vt}
    ds_write_b64 v{vt}, {rr('v', d, 2)}
    ds_write_b64 v{vt}, {rr('v', d+2, 2)} offset:32
    v_lshrrev_b32 v{vt+3}, 2, v0
    v_lshlrev_b32 v{vt+3}, 6, v{vt+3}
    v_and_b32 v{vt+4}, 3, v0
    v_lshl_add_u32 v{vt+3}, v{vt+4}, 3, v{vt+3}
    v_add_u32 v{vt+3}, {RED}, v{vt+3}
    ds_read_b64_tr_b16 {rr('v', PA, 2)}, v{vt+3}
    ds_read_b64_tr_b16 {rr('v', PA+2, 2)}, v{vt+3} offset:32
    s_lshl_b32 s{s_t1}, s{s_t1}, 10
    s_add_u32 s{s_t0}, s{s_t0}, s{s_t1}
    v_permlane32_swap_b32 v{PA}, v{PA+2}
    v_permlane32_swap_b32 v{PA+1}, v{PA+3}
    buffer_store_dwordx4 {rr('v', PA, 4)}, v{vST}, s[{sA}:{sA+3}], s{s_t0} offen offset:2048 sc1
    """)

    rest = p.segment()
    p(f"{name}_p1:")
    p.add(Raw("; @stamp 1"))
    ACC = lambda F, t: rr('v', AB + (F * 2 + t) * 4, 4)
    X1 = lambda s, t, g: rr('a', FB + s * 48 + (t * 2 + g) * 4, 4)
    W1 = lambda s, F, g: rr('a', FB + s * 48 + 16 + (F * 2 + g) * 4, 4)

    def reads1(s, base, va):
        xr = lambda t, g: Ins(f"ds_read_b128 {X1(s, t, g)}, v{va+g} offset:{base + t*2048}")
        wr = lambda F, g, b: Ins(f"ds_read_b64_tr_b16 {rr('a', FB + s*48 + 16 + (F*2+g)*4 + 2*b, 2)}, v{va+2+F} offset:{base + 2*g*6144 + 4096 + b*512}")
        return [wr(0, 0, 0), wr(0, 0, 1), wr(0, 1, 0), wr(0, 1, 1), xr(0, 0), xr(0, 1), xr(1, 0), xr(1, 1)] + \
               [wr(F, g, b) for F in range(1, 4) for g in range(2) for b in range(2)]
    rdy = f"buffer_load_dword v{vt+5}, v{vZ}, s[{sB}:{sB+3}], 0 offen sc1"
    for u in range(2, 5):
        if u == 2: p.add(Raw(f"    s_cmp_lg_u32 s{s_w}, 0\n    s_cbranch_scc1 {name}_nor\n    {rdy}\n{name}_nor:"))
        p.add(dma1(f"s_add_u32 m0, s{s_w6}, {u*SL}", 'Lx'))
    p.add(Raw("; @fine 8"))
    p("s_barrier", rd=['L0'])
    p.add(Raw("; @fine 9"))
    p.add(reads1(0, 0, vB))
    for i in range(6):
        p(f"v_mov_b32 v{vA+i}, v{vB+i}")
    p(f"""
    s_mov_b32 s{s_pb}, {2 * SL}
    s_add_u32 s{s_dm}, s{s_w6}, {2 * 2 * SL}
    s_and_b32 s{s_kv}, s2, 15
    s_lshl_b32 s{s_kv}, s{s_kv}, 8
    s_add_u32 s{s_kv}, s{s_kv}, {ST_KVC}
    s_mov_b32 s{s_spin}, {SPIN}
    s_lshl_b32 s{s_t2}, s{s_w}, 8
    s_add_u32 s{s_t2}, s{s_t2}, 5
    s_mov_b32 s{s_cnt}, 5""")

    def stage1(s, head, fill, rds):
        mf = [mf16(rr('v', CSA, 4), W1(s, 0, g), on) for g in range(2)]
        for F in range(4):
            mf += [mf16(ACC(F, t), W1(s, F, g), X1(s, t, g)) for t, g in zz(F, 2, 2, ZZ)]
        p.add(head)
        rds = list(rds)
        for i, m in enumerate(mf):
            if 'p1nomf' not in dbg: p(m)
            for _ in range(2 if i in (0, 1) else 1):
                if rds:
                    x = rds.pop(0)
                    if 'p1nods' not in dbg: p.add(x)
            p.add([x for x in fill.get(i, []) if not ('p1nodma' in dbg and getattr(x, 'kind', '') == 'vmem')])

    def one_per_gap(lst, start):
        return {start + i: [x] for i, x in enumerate(lst)}

    def spaced(lst):
        pos = [0, 1, 2, 5, 8, 11, 12, 13, 14, 17, 17]
        out = {}
        for k, x in zip(pos, lst): out.setdefault(k, []).append(x)
        return out
    upd = lambda: {3: [Ins(f"v_add_u32 v{vA+2}, s{s_pb}, v{vB+2}")], 6: [Ins(f"v_add_u32 v{vA}, s{s_pb}, v{vB}")],
                   7: [Ins(f"v_add_u32 v{vA+1}, s{s_pb}, v{vB+1}")], 10: [Ins(f"v_add_u32 v{vA+3}, s{s_pb}, v{vB+3}")],
                   15: [Ins(f"v_add_u32 v{vA+4}, s{s_pb}, v{vB+4}")], 17: [Ins(f"v_add_u32 v{vA+5}, s{s_pb}, v{vB+5}")]}
    nextpb = lambda: [Ins(f"s_add_u32 s{s_pb}, s{s_pb}, {2*SL}"), Ins(f"s_cmp_eq_u32 s{s_pb}, {6*SL}"), Ins(f"s_cselect_b32 s{s_pb}, 0, s{s_pb}")]

    def merge(*fs):
        out = {}
        for f in fs:
            for k, v in f.items(): out.setdefault(k, []).extend(v)
        return out
    sync = lambda n: [Ins(f"s_waitcnt vmcnt({n}) lgkmcnt(12)"), Ins("s_barrier")]
    s_nx = s_t0
    p(f"s_mov_b32 s{s_nx}, s{s_w6}")
    p.add(Raw("; @fine 10"))
    p.begin_loop(f"{name}_p1loop", 5, align=False)
    stage1(0, sync(18), merge(spaced(dma1(f"s_add_u32 m0, s{s_dm}, {SL}", 'Lx')[:-1]), upd(), {16: [Ins(f"s_and_b32 s{s_xoff}, s{s_xoff}, 2047")]}), reads1(1, SL, vA))
    arr = Raw(f"""    s_cmp_lg_u32 s{s_cnt}, s{s_t2}
    s_cbranch_scc1 {name}_noarr
{name}_rchk:
    v_readfirstlane_b32 s{s_t1}, v{vt+5}
    s_sub_u32 s{s_spin}, s{s_spin}, 1
    s_cselect_b32 s{s_t1}, 1, s{s_t1}
    s_cmp_lg_u32 s{s_t1}, 0
    s_cbranch_scc1 {name}_arr
    {rdy}
    s_waitcnt vmcnt(0)
    s_branch {name}_rchk
{name}_arr:
    buffer_atomic_add v{vOne}, v{vZ}, s[{sT}:{sT+3}], s{s_kv} offen
{name}_noarr:""")
    stage1(1, sync(18) + [arr], merge({3: [Ins(f"s_mov_b32 s{s_dm}, s{s_nx}")], 4: [Ins(f"s_add_u32 s{s_nx}, s{s_pb}, s{s_w6}")],
                                        6: nextpb()[:1], 7: nextpb()[1:], 9: [Ins(f"s_sub_u32 s{s_cnt}, s{s_cnt}, 1")],
                                        15: [Ins(f"s_and_b32 s{s_xoff}, s{s_xoff}, 2047")], 16: [Ins(f"s_cmp_lg_u32 s{s_cnt}, 0")]},
                                       spaced(dma1(f"s_mov_b32 m0, s{s_nx}", 'Lx')[:-1])), reads1(0, 0, vA))
    p(f"s_cbranch_scc1 {name}_p1loop")
    p.end_loop()
    p.add(Raw("; @fine 11"))
    Kf = lambda b, m: rr('a', (b % NR) * 8 + m * 4, 4)
    Vf = lambda b, m: rr('a', 64 + (b % NR) * 8 + m * 4, 4)
    vMR = 84
    kld = lambda b, m: Ins(f"buffer_load_dwordx4 {Kf(b, m)}, v{vL16}, s[{sA}:{sA+3}], s{s_ko} offen offset:{m*1024} {KVSC}")
    vld = lambda b, m: Ins(f"buffer_load_dwordx4 {Vf(b, m)}, v{vL16}, s[{sA}:{sA+3}], s{s_vo} offen offset:{2048 + m*1024} {KVSC}")

    vK2 = 253
    kld2 = lambda b, m: Ins(f"buffer_load_dwordx4 {Kf(b, m)}, v{vK2}, s[{sA}:{sA+3}], s{s_vo} offen offset:{m*1024} {KVSC}")

    def kv_list():
        o_ = [Ins(f"s_mov_b32 s{s_ko}, 0"), Ins(f"s_mov_b32 s{s_vo}, 0")]
        for b in range(NR):
            o_ += [kld(b, 0), kld(b, 1), Ins(f"s_add_u32 s{s_ko}, s{s_ko}, 4096")]
            if b < NR - 2:
                o_ += [vld(b, 0), vld(b, 1), Ins(f"s_add_u32 s{s_vo}, s{s_vo}, 4096")]
        return o_

    def fill_kv():
        p.add(kv_list())
    gl = f"buffer_load_dword v{vt+5}, v{vGP}, s[{sT}:{sT+3}], s{s_kv} offen sc1"
    stage1(0, sync(18), merge(spaced(dma1(f"s_add_u32 m0, s{s_dm}, {SL}", 'Lx')[:-1]), upd(), {16: [Ins(f"s_and_b32 s{s_xoff}, s{s_xoff}, 2047")]}), reads1(1, SL, vA))
    gp = Raw(f"""    s_branch {name}_gchk
{name}_gpoll:
    {gl}
    s_waitcnt vmcnt(0)
{name}_gchk:
    v_cmp_gt_u32 vcc, 16, v{vt+5}
    s_sub_u32 s{s_spin}, s{s_spin}, 1
    s_cbranch_scc1 {name}_gdone
    s_cbranch_vccnz {name}_gpoll
{name}_gdone:""")
    todo = [Ins(f"buffer_load_dwordx2 {rr('v', vMR+2*t, 2)}, v{vMA}, s[{sT}:{sT+3}], s{s_t0} offen offset:{ST_MR + 128*t} sc1") for t in range(2)] + kv_list()

    def take(k):
        o_, n = [], 0
        while todo and n < k:
            x = todo.pop(0); o_.append(x); n += x.kind == 'vmem'
        return o_
    PS = o.get('pstage', 13)
    for u in range(11, 16):
        head = sync(6 * (14 - u)) if u < PS else [Raw("; @fine 12")] + sync(0) + [Raw("; @fine 13"), gp, Raw("; @fine 14")] if u == PS else []
        fill = {11: one_per_gap(nextpb(), 8), 12: upd(), 15: {10: [Ins(f"ds_write_b128 v{vCS}, {rr('v', CSA, 4)}")]}}.get(u, {})
        if u == PS - 1:
            fill = merge(fill, {2: [Ins(f"s_movk_i32 s{s_kv}, {ST_KVC}")], 4: [Ins(gl)], 5: [Ins(f"s_mov_b32 s{s_spin}, {SPIN}")],
                                11: [Ins(f"s_lshl_b32 s{s_t0}, s{s_tok}, 3")]})
        if u >= PS:
            fill = merge(fill, {i: take(1) for i in range(2, 18, 3)})
        stage1(u & 1, head, fill, reads1(1 - (u & 1), 0 if u & 1 else SL, vA) if u < 15 else [])
    p.add(Raw("; @stamp 2"))

    p("s_waitcnt lgkmcnt(0)")
    p("s_barrier")
    CS = 88
    for f in range(4):
        if f: p(f"v_xor_b32 v{vt+f}, {f*64}, v{vCS}")
        p(f"ds_read_b128 {rr('v', CS + 4*f, 4)}, v{vt+f if f else vCS}")
    XT = 131072
    QP = 112
    for t in range(2):
        p(f"v_accvgpr_write_b32 a{aMEAN+t}, v{vMR+2*t}")
        p(f"v_mul_f32 v{vMR+2*t+1}, {f32hex(LOG2E * DH ** -0.5)}, v{vMR+2*t+1}")
    p(f"s_bitcmp1_b32 s{s_w}, 0\ns_cselect_b64 vcc, -1, 0")
    for hd in range(2):
        for t in range(2):
            mr = rr('v', vMR + 2 * t, 2)
            for f in range(2):
                F = 2 * hd + f
                a = AB + (F * 2 + t) * 4
                dq = QP + hd * 8 + t * 4 + 2 * f
                for r in (0, 2): p(f"v_pk_fma_f32 {rr('v', a+r, 2)}, {rr('v', CS+4*F+r, 2)}, {mr}, {rr('v', a+r, 2)} op_sel_hi:[1,0,1] neg_lo:[0,1,0] neg_hi:[0,1,0]")
                for r in (0, 2): p(f"v_pk_mul_f32 {rr('v', a+r, 2)}, {rr('v', a+r, 2)}, {mr} op_sel:[0,1]")
                p(f"v_cvt_pk_bf16_f32 v{dq}, v{a}, v{a+1}")
                p(f"v_cvt_pk_bf16_f32 v{dq+1}, v{a+2}, v{a+3}")
                p.add(take(1))
        for i in range(8 * hd, 8 * hd + 8):
            p(f"v_cndmask_b32 v{16+i}, v{QP+i}, v{QP+(i^2)}, vcc")
        p.add(take(1))
        for i in range(4):
            p(f"v_permlane16_swap_b32 v{16+hd*8+i}, v{16+hd*8+4+i}")
    if 'Q' in dbg:
        srd(p, sB, pWS, QF[1], bias=QF[0])
        p(f"s_lshl_b32 s{s_t0}, s{s_hd}, 17\ns_lshl_b32 s{s_t1}, s{s_tok}, 6\ns_add_u32 s{s_t0}, s{s_t0}, s{s_t1}\ns_xor_b32 s{s_t1}, s{s_t0}, 0x20000")
        for x in range(2):
            for m in range(2):
                p(f"buffer_store_dwordx4 {Q(x, m)}, v{vL16}, s[{sB}:{sB+3}], s{s_t1 if x else s_t0} offen offset:{m*1024}")
    s_safe, s_fo = 65, 61
    SENT = o.get('sent', False)
    p(f"""
    s_mov_b64 s[{sD}:{sD+1}], s[{pWG}:{pWG+1}]
    s_mov_b32 s{sD+2}, {D * FF * 2 if o.get('prefetch', True) else 0}
    s_mov_b32 s{s_safe}, 0
    s_lshl_b32 s{s_fo}, s{s_b}, 4
    s_add_u32 s{s_fo}, s{s_fo}, s{s_j}
    s_lshl_b32 s{s_fo}, s{s_fo}, 2
    s_add_u32 s{s_fo}, s{s_fo}, s{s_w}
    s_lshl_b32 s{s_fo}, s{s_fo}, 13
    s_add_u32 s{s_fo}, s{s_fo}, {XC[0] - OF[0]}
    """)
    srd(p, sB, pWS, XC[0] + XC[1] - OF[0], bias=OF[0])

    def half(x, Kb, Vb, C, extra):
        y = 1 - x
        Sx, Px, Sy, Py = Sb(x), Pb(x), rr('v', Sb(y), 16), Pb(y)
        valu = []
        for i in range(8):
            valu.append(f"v_exp_f32 v{Sx+2*i}, v{Sx+2*i}")
            valu.append(f"v_exp_f32 v{Sx+2*i+1}, v{Sx+2*i+1}")
            if i > 0:
                valu.append(f"v_cvt_pk_bf16_f32 v{Px+i-1}, v{Sx+2*i-2}, v{Sx+2*i-1}")
        valu.append(f"v_cvt_pk_bf16_f32 v{Px+7}, v{Sx+14}, v{Sx+15}")
        Oy, Ly = rr('v', Ob(y), 16), rr('v', Lb(y), 4)
        sel = rr('v', SEL, 4)
        mf = [mf32(Sy, Kf(Kb, 0), Q(y, 0), C(y)), mf32(Sy, Kf(Kb, 1), Q(y, 1)),
              mf32(Oy, Vf(Vb, 0), rr('v', Py, 4)), mf16(Ly, sel, rr('v', Py, 4)),
              mf32(Oy, Vf(Vb, 1), rr('v', Py + 4, 4)), mf16(Ly, sel, rr('v', Py + 4, 4))]
        pos = (0, 4, 8, 12, 15, 19)
        if SMF:
            mf = [mf[0], mf[1], mf[2], mf[4], smf(y)]
            pos = o.get('apos', (0, 5, 10, 15, 20))
        for i, v in enumerate(valu):
            if i in pos:
                k = pos.index(i)
                p(mf[k])
                p.add(extra.get(k, []))
            p(v)

    def attention(tag, C, side, pre):
        p(mf32(rr('v', Sb(0), 16), Kf(0, 0), Q(0, 0), C(0)))
        p(mf32(rr('v', Sb(0), 16), Kf(0, 1), Q(0, 1)))
        p(f"s_mov_b32 s{s_cnt}, {64 // NR}")
        p.add(pre)
        p.begin_loop(f"{name}_{tag}_loop", 64 // NR)
        for kt in range(NR):
            e0 = {0: [vld(kt + NR - 2, 0)], 1: [vld(kt + NR - 2, 1)],
                  4: [Ins(f"wait {Kf(kt+1, 0)}, {Kf(kt+1, 1)}, {Vf(kt, 0)}, {Vf(kt, 1)}")]}
            e1 = {0: [kld2(kt, 0)], 1: [kld2(kt, 1)], 2: [Ins(f"s_add_u32 s{s_vo}, s{s_vo}, 4096")]}
            if side:
                if kt == 0: e0[2] = [Ins(f"s_and_b32 m0, s{s_wm0}, 0x1ffff")]
                if kt % 2 == 0 and 'nowodma' not in dbg:
                    i = kt // 2
                    e0[3] = [Ins(f"buffer_load_dwordx4 v{vWD+i}, s[{sE}:{sE+3}], s{s_wdo} offen offset:{i*1024} lds", awr=['LW'], nowaw=True)]
                if kt == 0: e1[3] = [Ins(f"s_add_u32 s{s_wm0}, s{s_wm0}, 16384")]
                if kt in (1, 3):
                    e0[2] = [Ins(f"buffer_load_dword v{vDum}, v{vPF}, s[{sD}:{sD+3}], s{s_po} offen", nowaw=True)]
                    e0[3] = [Ins(f"s_add_u32 s{s_po}, s{s_po}, {256 * 7168}")]
                if kt in (3, 4):
                    e1[3] = [Ins(f"s_cmp_eq_u32 s{s_cnt}, {7 if kt == 3 else 5}")]
                    e1[4] = [Ins(f"s_cselect_b32 s{s_po}, s{s_pk}, s{s_po}")]
                if kt in (4, 5):
                    w_ = pWU if kt == 4 else pWD
                    e0[2] = [Ins(f"s_cselect_b64 s[{sD}:{sD+1}], s[{w_}:{w_+1}], s[{sD}:{sD+1}]")]
                if kt == 6: e1[3] = [Ins(f"s_add_u32 s{s_wdo}, s{s_wdo}, {128 * 2048}")]
                if kt == 7:
                    e0[2] = [Ins(f"s_cmp_eq_u32 s{s_cnt}, 2")]
                    e0[3] = [Raw(f"    s_cbranch_scc1 {name}_rsx\n{name}_rsxback:")]
            if kt == NR - 1:
                e1[3] = [Ins(f"s_sub_u32 s{s_cnt}, s{s_cnt}, 1")]
                e1[4] = [Ins(f"s_cmp_lg_u32 s{s_cnt}, 0")]
            half(0, kt, kt - 1, C, e0)
            half(1, kt + 1, kt, C, e1)
        p(f"s_cbranch_scc1 {name}_{tag}_loop")
        p.end_loop()
        O1, L1, sel = rr('v', Ob(1), 16), rr('v', Lb(1), 4), rr('v', SEL, 4)
        p(mf32(O1, Vf(NR - 1, 0), rr('v', Pb(1), 4)))
        if not SMF: p(mf16(L1, sel, rr('v', Pb(1), 4)))
        p(mf32(O1, Vf(NR - 1, 1), rr('v', Pb(1) + 4, 4)))
        p(smf(1) if SMF else mf16(L1, sel, rr('v', Pb(1) + 4, 4)))

    pre = take(99)
    if o.get('ipf', True):
        pre += [Ins(x.strip()) for x in f"""s_getpc_b64 s[74:75]
        s_lshr_b32 s{s_t0}, s2, 3
        s_lshl_b32 s{s_t0}, s{s_t0}, 2
        s_add_u32 s{s_t0}, s{s_t0}, s{s_w}
        s_mul_i32 s{s_t0}, s{s_t0}, 384
        s_min_u32 s{s_t0}, s{s_t0}, {name}_end-{name}_fast_loop
        v_min_u32 v4, 2, v0
        v_lshl_add_u32 v4, v4, 7, s{s_t0}""".split("\n")]
        pre.append(Ins(f"global_load_dword v{vDum}, v4, s[74:75]", nowaw=True))
    if len(pre) < 12: pre.append(Ins(f"s_nop {11 - len(pre)}"))
    pre.append(Raw("; @stamp 3"))
    attention('fast', lambda y: "0", 'noside' not in dbg, pre)
    p.add(Raw("; @stamp 4"))
    p(f"""
    {name}_fin:
    v_add_f32 v{Lb(0)}, v{Lb(0)}, v{Lb(0)+1}
    v_rcp_f32 v{Lb(0)+2}, v{Lb(0)}
    s_lshl_b32 s{s_t0}, s{s_tok}, 1
    s_add_u32 s{s_t0}, s{s_t0}, s{s_hd}
    s_lshl_b32 s{s_t0}, s{s_t0}, 10
    s_xor_b32 s{s_t1}, s{s_t0}, 1024
    """)
    for x in range(2):
        if x: p(f"v_add_f32 v{Lb(1)}, v{Lb(1)}, v{Lb(1)+1}\nv_rcp_f32 v{Lb(1)+2}, v{Lb(1)}")
        for a in range(2):
            for i in range(8 * a, 8 * a + 8, 2):
                p(f"v_pk_mul_f32 {rr('v', Ob(x)+i, 2)}, {rr('v', Ob(x)+i, 2)}, {rr('v', Lb(x)+2, 2)} op_sel_hi:[1,0]")
            for i in range(4 * a, 4 * a + 4):
                p(f"v_cvt_pk_bf16_f32 v{Pb(x)+i}, v{Ob(x)+2*i}, v{Ob(x)+2*i+1}")
            p(f"buffer_store_dwordx4 {rr('v', Pb(x)+4*a, 4)}, v{vOS}, s[{sB}:{sB+3}], s{s_t1 if x else s_t0} offen offset:{a*512} sc1")
    p(f"v_pk_mul_f32 v[{vt+2}:{vt+3}], {rr('v', Ob(0), 2)}, {rr('v', RSV, 2)}")
    p(f"v_pk_mul_f32 v[{vt+4}:{vt+5}], {rr('v', Ob(0)+2, 2)}, {rr('v', RSV+2, 2)}")
    for i in range(2, 16):
        k = vt + 2 + 2 * (i & 1)
        p(f"v_pk_fma_f32 v[{k}:{k+1}], {rr('v', Ob(0)+2*i, 2)}, {rr('v', RSV+2*i, 2)}, v[{k}:{k+1}]")
    p(f"""
    v_pk_add_f32 v[{vt+2}:{vt+3}], v[{vt+2}:{vt+3}], v[{vt+4}:{vt+5}]
    v_add_f32 v{vt+2}, v{vt+2}, v{vt+3}
    v_mov_b32 v{vt+3}, v{vt+2}
    s_add_u32 s{s_t0}, s{s_pj}, {ST_MP}
    s_mov_b32 s{s_t1}, {f32hex(2.0**-40)}
    v_permlane32_swap_b32 v{vt+2}, v{vt+3}
    v_add_f32 v{vt+2}, v{vt+2}, v{vt+3}
    s_mov_b32 exec_hi, 0
    buffer_store_dword v{vt+2}, v{vPW}, s[{sT}:{sT+3}], s{s_t0} offen sc1
    s_mov_b32 exec_hi, -1
    """)
    p(f"""
    v_cmp_nle_f32 s[0:1], s{s_t1}, v{Lb(0)}
    v_cmp_nle_f32 s[14:15], s{s_t1}, v{Lb(1)}
    s_mov_b32 s{s_t1}, {f32hex(2.0**40)}
    v_cmp_nge_f32 s[74:75], s{s_t1}, v{Lb(0)}
    v_cmp_nge_f32 vcc, s{s_t1}, v{Lb(1)}
    s_or_b64 s[0:1], s[0:1], s[14:15]
    s_movk_i32 s{s_t1}, 0x207
    v_cmp_class_f32 s[14:15], v{vt+2}, s{s_t1}
    s_or_b64 s[0:1], s[0:1], s[74:75]
    s_or_b64 s[0:1], s[0:1], vcc
    s_or_b64 s[0:1], s[0:1], s[14:15]
    s_cselect_b32 s{s_t1}, 1, 0
    s_cmp_gt_u32 s{s_t1}, s{s_safe}
    {'' if 'nocheck' in dbg else f's_cbranch_scc1 {name}_slow'}
    """)

    SPLIT = True
    s_c, s_xo, s_xe, s_xend = 61, 62, 63, 64
    vX1, vA3 = 12, 16
    WB, AB3 = 40, 104
    vPT = 20
    LEAD = 12
    ACS = lambda F, t: rr('v', AB3 + (F * 2 + t) * 4, 4)

    class Shape:
        def __init__(self, NF, off):
            self.NF, self.NG, self.off = NF, 16 // NF, off
        def X(self, slot, t, G): return rr('a', slot * 8 * self.NG + (t * self.NG + G) * 4, 4)
        def Xall(self, slot): return ", ".join(self.X(slot, t, G) for t in range(2) for G in range(self.NG))
        def W(self, F, G): return rr('v', WB + (F * self.NG + G) * 4, 4)
        def rd(self, slot, n):
            F, G, b = n // (2 * self.NG), (n >> 1) % self.NG, n & 1
            return Ins(f"ds_read_b64_tr_b16 {rr('v', WB + 2*n, 2)}, v{vA3 + (F & 3)} offset:{slot*16384 + self.off(F, G, b)}")
        def xld(self, slot):
            o_ = [Ins(f"s_cmp_lt_u32 s{s_xo}, s{s_xend}"), Ins(f"s_cselect_b32 s{s_xe}, s{s_xo}, s{sB+2}")]
            for t in range(2):
                for G in range(self.NG):
                    o_.append(Ins(f"buffer_load_dwordx4 {self.X(slot, t, G)}, v{vX1 if t else vL16}, s[{sB}:{sB+3}], s{s_xe} offen offset:{G*1024} sc1"))
            o_.append(Ins(f"s_add_u32 s{s_xo}, s{s_xo}, {self.NG * 1024}"))
            return o_
    sh4 = Shape(4, lambda F, G, b: G * 4096 + b * 1024)
    sh8 = Shape(8, lambda F, G, b: G * 8192 + (F >> 2) * 2048 + b * 1024)

    def wread_addr(blk):
        p(f"""
        v_bfe_u32 v{vt}, v0, 2, 3
        v_lshrrev_b32 v{vt+1}, 1, v{vt}
        v_lshlrev_b32 v{vt+1}, 5, v{vt+1}
        v_lshl_add_u32 v{vt}, v{vt}, 7, v{vt+1}
        v_lshrrev_b32 v{vt+1}, 5, v0
        v_lshl_add_u32 v{vt}, v{vt+1}, {blk}, v{vt}
        v_and_b32 v{vt+1}, 3, v0
        v_lshl_add_u32 v{vA3}, v{vt+1}, 3, v{vt}
        v_xor_b32 v{vA3+1}, 32, v{vA3}
        v_xor_b32 v{vA3+2}, 64, v{vA3}
        v_xor_b32 v{vA3+3}, 0x60, v{vA3}""")

    def table_load(aq, soff, blk=0):
        for i in range(4):
            p(f"buffer_load_dwordx2 {rr('v', aq + 2*i, 2)}, v{vPT}, s[{sT}:{sT+3}], s{soff} offen offset:{blk*2048 + i*128} sc1")

    def table_sum(aq, dst):
        p(f"""
        v_pk_add_f32 {rr('v', aq, 2)}, {rr('v', aq, 2)}, {rr('v', aq+2, 2)}
        v_pk_add_f32 {rr('v', aq+4, 2)}, {rr('v', aq+4, 2)}, {rr('v', aq+6, 2)}
        v_pk_add_f32 {rr('v', dst, 2)}, {rr('v', aq, 2)}, {rr('v', aq+4, 2)}""")
        for sw in (16, 32):
            p(f"""
            v_pk_mov_b32 {rr('v', aq, 2)}, {rr('v', dst, 2)}, {rr('v', dst, 2)} op_sel:[0,1]
            v_permlane{sw}_swap_b32 v{dst}, v{aq}
            v_permlane{sw}_swap_b32 v{dst+1}, v{aq+1}
            v_pk_add_f32 {rr('v', dst, 2)}, {rr('v', dst, 2)}, {rr('v', aq, 2)}""")

    def rstd_from(aq, dst):
        table_sum(aq, dst)
        for t in range(2):
            p(f"v_fma_f32 v{dst+t}, v{dst+t}, s{s_t1}, v{vt+4}")
        for t in range(2):
            p(f"v_rsq_f32 v{dst+t}, v{dst+t}")

    p(f"""
    s_add_u32 s{s_xe}, s{s_pj}, {ST_FO}
    s_andn2_b32 s{s_c}, s{s_xe}, 2047
    s_lshl_b32 s{s_xo}, s{s_tok}, 11
    s_lshl_b32 s{s_xend}, s{s_tok}, 6
    s_add_u32 s{s_xend}, s{s_xend}, {ST_MP}""")
    if R3:
        p(f"s_and_b32 s{s_t0}, s{s_j}, 1\ns_lshl_b32 s{s_t0}, s{s_t0}, 14\ns_add_u32 s{s_xo}, s{s_xo}, s{s_t0}")
    vE = 136
    p(f"""
    v_add_u32 v{vX1}, 0x8000, v{vL16}
    s_lshl_b32 s{s_t0}, s{s_w}, 12
    s_add_u32 s{s_t0}, s{s_t0}, {XT}
    v_and_b32 v{vt+4}, 15, v0
    v_lshrrev_b32 v{vt+5}, 1, v{vt+4}
    v_lshrrev_b32 v{vt+6}, 5, v0
    v_xor_b32 v{vt+5}, v{vt+5}, v{vt+6}
    v_lshlrev_b32 v{vt+5}, 4, v{vt+5}
    v_lshl_add_u32 v{vt+5}, v{vt+4}, 7, v{vt+5}
    v_bfe_u32 v{vt+6}, v0, 4, 1
    v_lshl_add_u32 v{vt+5}, v{vt+6}, 3, v{vt+5}
    v_add_u32 v{vt}, s{s_t0}, v{vt+5}
    v_xor_b32 v{vt+1}, 32, v{vt}
    v_xor_b32 v{vt+2}, 64, v{vt}
    v_xor_b32 v{vt+3}, 0x60, v{vt}""")
    for t in range(2):
        for F in range(4):
            p(f"ds_read_b64 {rr('v', vE + (t*4+F)*2, 2)}, v{vt+F} offset:{t*2048}")
    p(f"""
    v_lshlrev_b32 v{vPT}, 3, v{vt+4}
    v_lshrrev_b32 v{vt+5}, 4, v0
    v_lshl_add_u32 v{vPT}, v{vt+5}, 9, v{vPT}""")
    wread_addr(11)
    for t in range(2):
        for F in range(4):
            a = AB3 + (F * 2 + t) * 4
            e = vE + (t * 4 + F) * 2
            p(f"""
            v_lshlrev_b32 v{a}, 16, v{e}
            v_and_b32 v{a+1}, 0xffff0000, v{e}
            v_lshlrev_b32 v{a+2}, 16, v{e+1}
            v_and_b32 v{a+3}, 0xffff0000, v{e+1}""")
    arrive(p, s_xe)
    p("s_barrier")
    for n in range(LEAD):
        p.add(sh4.rd(0, n))
    main_cur = p.cur
    bg = []
    p.cur = bg
    SLOT4, HI4, LEAD4 = 28672, 106496, 8
    s_nb, s_wo4, s_m04, s_dsl, s_rsl, s_tk4 = 66, 68, 69, 70, 71, 72
    vD4 = 21
    AB4 = 32
    p(f"""
    s_and_b32 s{s_t0}, s2, 7
    s_lshr_b32 s{s_t1}, s2, 3
    s_and_b32 s{s_tk4}, s{s_t1}, 7
    s_lshr_b32 s{s_t1}, s{s_t1}, 3
    s_lshl_b32 s{s_nb}, s{s_t0}, 2
    s_add_u32 s{s_nb}, s{s_nb}, s{s_t1}
    s_movk_i32 s{s_t1}, 4682
    s_movk_i32 s{s_t0}, {7168 - 14 * 16}
    """)
    for i in range(7):
        p(f"""
        v_add_u32 v{vt}, {64*i}, v0
        v_mul_u32_u24 v{vt+1}, s{s_t1}, v{vt}
        v_lshrrev_b32 v{vt+1}, 16, v{vt+1}
        v_add_u32 v{vt}, {1024 * (i - (i & 3))}, v{vL16}
        v_mad_u32_u24 v{vD4+i}, v{vt+1}, s{s_t0}, v{vt}
        """)
    p(f"""
    s_lshl_b32 s{s_tk4}, s{s_tk4}, 2
    s_add_u32 s{s_tk4}, s{s_tk4}, s{s_w}
    s_lshl_b32 s{s_tk4}, s{s_tk4}, 6
    s_and_b32 s{s_t0}, s{s_w}, 1
    s_mul_i32 s{s_wo4}, s{s_t0}, {32 * 7168}
    s_mul_i32 s{s_t1}, s{s_nb}, 224
    s_add_u32 s{s_wo4}, s{s_wo4}, s{s_t1}
    s_mul_i32 s{s_m04}, s{s_w}, 7168
    s_mov_b32 s{s_dsl}, s{s_m04}
    s_mov_b32 s{s_rsl}, {HI4}
    s_cmp_lt_u32 s{s_w}, 2
    s_cselect_b64 s[{sD}:{sD+1}], s[{pWG}:{pWG+1}], s[{pWU}:{pWU+1}]
    s_mov_b32 s{sD+2}, {hex(D * FF * 2)}
    """)
    srd(p, sA, pWS, HC[1], bias=HC[0])
    for i in range(4):
        p(f"v_accvgpr_write_b32 a{aMEAN-4+i}, v{vWD+i}")
    p(f"v_mov_b32 v36, v{vPW}")
    vPW = 36
    vX4 = [vL16, 12, 13, 14]
    vA4, vAb, vR4 = 15, 11, 28
    vS, vQ, vP = 28, 144, WB
    s_ho, s_c4, s_sq4 = 65, 67, 73
    p(f"""
    v_add_u32 v{vX4[2]}, 0x10000, v{vL16}
    v_add_u32 v{vX4[3]}, 0x18000, v{vL16}
    v_lshrrev_b32 v{vt}, 2, v0
    v_mul_u32_u24 v{vt}, 224, v{vt}
    v_and_b32 v{vt+1}, 3, v0
    v_lshl_add_u32 v{vAb}, v{vt+1}, 3, v{vt}
    v_mov_b32 v{vA4}, v{vAb}
    s_lshl_b32 s{s_sq4}, s{s_tk4}, 6
    s_add_u32 s{s_c4}, s{s_sq4}, {ST_FC}
    s_add_u32 s{s_sq4}, s{s_sq4}, {ST_SSQ}
    s_add_u32 s{s_ho}, s{s_tok}, s{s_j}
    s_lshl_b32 s{s_ho}, s{s_ho}, 11
    s_add_u32 s{s_c}, s{s_pj}, {ST_FC}
    s_add_u32 s{s_pj}, s{s_pj}, {ST_SSQ}
    s_mov_b32 s{s_t1}, {f32hex(-1.0/1024)}""")
    for t in range(2):
        p(f"""
        v_add_f32 v{vE+t}, v{vE+t}, v{vE+2+t}
        v_add_f32 v{vE+4+t}, v{vE+4+t}, v{vE+6+t}
        v_add_f32 v{vS+t}, v{vE+t}, v{vE+4+t}""")
        xsum16_32(p, f"v{vS+t}", f"v{vt}")
        p(f"v_accvgpr_read_b32 v{vt}, a{aMEAN+t}")
        p(f"v_fma_f32 v{vS+t}, v{vS+t}, s{s_t1}, -v{vt}")
    p(f"v_mov_b32 v{vt+4}, {f32hex(1e-5)}\ns_mov_b32 s{s_t1}, {f32hex(1.0/1024)}")
    for i in range(156, 256):
        p(f"v_mov_b32 v{i}, 0")
    p.cur = main_cur

    def units_of(lst):
        out = []
        for x in lst:
            if out and x.op.startswith(('s_addc', 's_subb', 's_cselect')): out[-1].append(x)
            else: out.append([x])
        return out
    bg = units_of(bg)
    p.add(Raw("; @stamp 5"))
    poll(p, f"{name}_opoll", s_c, 16, vt)
    if 'twice3' in dbg: p.add(Raw(f"    s_mov_b32 s{s_spin}, 2\n    s_mov_b32 s14, s{s_pj}\n    s_mov_b32 s15, s{s_xo}\n{name}_tw3:\n    s_mov_b32 s{s_pj}, s14\n    s_mov_b32 s{s_xo}, s15"))
    p.add(Raw("; @stamp 6"))

    def dma4(par):
        o_ = []
        for i in range(7):
            if i == 0: o_.append(Ins(f"s_add_u32 m0, s{s_dsl}, {par * SLOT4}"))
            if i == 4: o_.append(Ins("s_add_u32 m0, m0, 4096"))
            o_.append(Ins(f"buffer_load_dwordx4 v{vD4+i}, s[{sD}:{sD+3}], s{s_wo4} offen offset:{(i&3)*1024} lds", awr=['Lx'], nowaw=True))
        o_.append(Ins(f"s_add_u32 s{s_wo4}, s{s_wo4}, {64 * 7168}"))
        return o_

    def xld3(u):
        o_ = [Ins(f"buffer_load_dwordx4 {sh4.X(u % 4, t, G)}, v{vX1 if t else vL16}, s[{sB}:{sB+3}], s{s_xo} offen offset:{G*1024} sc1")
              for t in range(2) for G in range(4)]
        if R3 and u == 3:
            return o_ + [Ins(f"s_xor_b32 s{s_xo}, s{s_xo}, 0x7000")]
        return o_ + [Ins(f"s_add_u32 s{s_xo}, s{s_xo}, 4096")]
    p.add(xld3(0)); p.add(xld3(1))
    order = [(F, t, G) for F in range(4) for t, G in zz(F, 2, 4, ZZ)]
    for u in range(8):
        vm = xld3(u + 2) if u < 6 else []
        if u == 0:
            vm += [Ins(f"buffer_load_dwordx2 {rr('v', vE + 2*i, 2)}, v{vPT}, s[{sT}:{sT+3}], s{s_xend} offen offset:{i*128} sc1") for i in range(4)]
        D4 = o.get('d4', (7, 9))
        for q in range(2):
            if u == D4[q]: vm += dma4(q)
        fill, pos = {}, 0
        for ins in vm:
            fill.setdefault(pos, []).append(ins)
            pos += (4 if len(vm) <= 10 else 2 if len(vm) < 16 else 1) if ins.kind == 'vmem' and pos < 28 else 1
        for i, (F, t, G) in enumerate(order):
            p(mf16(ACS(F, t), sh4.W(F, G), sh4.X(u % 4, t, G)))
            n = i + LEAD
            if u == 5 and i == 0:
                p("s_barrier")
            if u * 32 + n < 256:
                p.add(sh4.rd((u + n // 32) % 4, n % 32))
            if u == 3 and i == 0: p(f"v_xor_b32 v{vA3}, 0x10000, v{vA3}")
            if u == 3 and n in (15, 23, 31): p(f"v_xor_b32 v{vA3 + n // 8}, 0x10000, v{vA3 + n // 8}")
            if u > 0 or i > 7:
                if i % 8 == 7 and u * 32 + i < 255:
                    p(f"wait {rr('v', WB + ((F + 1) % 4) * 16, 8)}" + (", " + sh4.Xall((u + 1) % 4) if i == 31 else ""))
                if i % 8 == 1:
                    p(f"wait {rr('v', WB + F * 16 + 8, 8)}")
            p.add(fill.get(i, []))
            if bg and i not in fill and (u > 0 or i > 7):
                p.add(bg.pop(0))
                if bg and u * 32 + i > 200: p.add(bg.pop(0))
    assert not bg, len(bg)
    p.add(Raw("; @stamp 7"))
    if 'twice3' in dbg: p.add(Raw(f"    s_waitcnt vmcnt(0)\n    s_sub_u32 s{s_spin}, s{s_spin}, 1\n    s_cmp_lg_u32 s{s_spin}, 0\n    s_cbranch_scc1 {name}_tw3"))

    for t in range(2):
        sel = "op_sel_hi:[1,0]" if t == 0 else "op_sel:[0,1]"
        q = rr('v', vQ + 2 * t, 2)
        for F in range(4):
            a = AB3 + (F * 2 + t) * 4
            k = vQ + 4 + (F & 1) * 4
            hc = vP + (t * 2 + (F >> 1)) * 4 + (F & 1) * 2
            p(f"""
            v_pk_add_f32 {rr('v', k, 2)}, {rr('v', a, 2)}, {rr('v', vS, 2)} {sel}
            v_pk_add_f32 {rr('v', k+2, 2)}, {rr('v', a+2, 2)}, {rr('v', vS, 2)} {sel}
            v_cvt_pk_bf16_f32 v{hc}, v{k}, v{k+1}
            v_cvt_pk_bf16_f32 v{hc+1}, v{k+2}, v{k+3}""")
            if F & 1:
                g = F >> 1
                p(f"buffer_store_dwordx4 {rr('v', hc-2, 4)}, v{vX1 if t else vL16}, s[{sA}:{sA+3}], s{s_ho} offen offset:{g*1024} sc1")
            p(f"v_pk_mul_f32 {q}, {rr('v', k, 2)}, {rr('v', k, 2)}" if F == 0 else f"v_pk_fma_f32 {q}, {rr('v', k, 2)}, {rr('v', k, 2)}, {q}")
            p(f"v_pk_fma_f32 {q}, {rr('v', k+2, 2)}, {rr('v', k+2, 2)}, {q}")
    p(f"""
    v_add_f32 v{vQ}, v{vQ}, v{vQ+1}
    v_add_f32 v{vQ+2}, v{vQ+2}, v{vQ+3}
    v_permlane16_swap_b32 v{vQ}, v{vQ+2}
    v_add_f32 v{vQ}, v{vQ}, v{vQ+2}
    v_mov_b32 v{vQ+1}, v{vQ}
    v_permlane32_swap_b32 v{vQ}, v{vQ+1}
    v_add_f32 v{vt}, v{vQ}, v{vQ+1}
    s_mov_b32 exec_hi, 0
    buffer_store_dword v{vt}, v{vPW}, s[{sT}:{sT+3}], s{s_pj} offen sc1
    s_mov_b32 exec_hi, -1
    """)
    for q in range(2):
        if D4[q] == 8: p.add(dma4(q))
    for t in range(2):
        for F in range(4):
            a = AB3 + (F * 2 + t) * 4
            hr = vP + 16 + (t * 2 + (F >> 1)) * 4 + (F & 1) * 2
            p(f"v_cvt_pk_bf16_f32 v{hr}, v{a}, v{a+1}\nv_cvt_pk_bf16_f32 v{hr+1}, v{a+2}, v{a+3}")
    for i in range(16):
        p(f"v_accvgpr_write_b32 a{aHR+i}, v{vP+16+i}")
    if 'H' in dbg:
        srd(p, sB, pWS, HR[1], bias=HR[0])
        for t in range(2):
            for g in range(2):
                p(f"buffer_store_dwordx4 {rr('v', vP + 16 + (t*2+g)*4, 4)}, v{vX1 if t else vL16}, s[{sB}:{sB+3}], s{s_ho} offen offset:{g*1024}")
    for i in range(AB4 + 16, 156, 2):
        p(f"v_pk_mov_b32 {rr('v', i, 2)}, 0, 0")
    p(f"""
    s_lshl_b32 s{s_xo}, s{s_tk4}, 11
    s_waitcnt vmcnt({7 * D4.count(8)})
    buffer_store_dword v{vOne}, v{vZ}, s[{sT}:{sT+3}], s{s_c} offen sc1""")
    assert D4[0] < 8
    if D4[1] == 9: p.add(dma4(1))
    p(f"s_add_u32 s{s_dsl}, s{s_m04}, {HI4}")
    PX = o.get('px', 8)
    BT = o.get('btouch', 1)
    vFL, vBT = vt + 5, vt + 6
    s_hf, s_x5, s_of, s_bt = 65, 63, 64, 3
    wread_addr(12)
    srd(p, sB, pWS, HH[1], bias=HH[0])
    srd(p, sC, pWS, XC[1], bias=XC[0])
    p(f"""
    s_bfe_u32 s{s_hf}, s{s_b}, 0x10002
    s_lshl_b32 s{s_hf}, s{s_hf}, 1
    s_lshr_b32 s{s_t0}, s{s_j}, 3
    s_add_u32 s{s_hf}, s{s_hf}, s{s_t0}
    s_and_b32 s{s_c}, s{s_tok}, 0x5c0
    s_lshl_b32 s{s_c}, s{s_c}, 6
    s_lshl_b32 s{s_t0}, s{s_hf}, 10
    s_add_u32 s{s_c}, s{s_c}, s{s_t0}
    s_add_u32 s{s_c}, s{s_c}, {ST_FH}
    s_xor_b32 s{s_x5}, s{s_tok}, 512
    s_mul_i32 s{s_x5}, s{s_x5}, {112 * 64}
    s_mul_i32 s{s_t0}, s{s_hf}, {28 * 1024}
    s_add_u32 s{s_x5}, s{s_x5}, s{s_t0}
    s_mul_i32 s{s_of}, s{s_tk4}, {112 * 64}
    s_lshr_b32 s{s_t0}, s{s_nb}, 3
    s_mul_i32 s{s_t0}, s{s_t0}, {56 - 8}
    s_add_u32 s{s_t0}, s{s_t0}, s{s_nb}
    s_lshl_b32 s{s_t0}, s{s_t0}, 9
    s_add_u32 s{s_of}, s{s_of}, s{s_t0}
    v_and_b32 v{vFL}, 7, v0
    v_lshlrev_b32 v{vFL}, 7, v{vFL}
    v_bfe_u32 v{vt}, v0, 3, 1
    v_lshl_add_u32 v{vFL}, v{vt}, 15, v{vFL}""")
    if BT:
        p(f"""
        v_cmp_gt_u32 vcc, 14, v0
        v_lshlrev_b32 v{vt}, 10, v0
        v_add_u32 v{vt}, {4096 + 384}, v{vt}
        v_mov_b32 v{vt+1}, 0x7ffffff0
        v_cndmask_b32 v{vBT}, v{vt+1}, v{vt}, vcc
        s_lshr_b32 s{s_bt}, s2, 3
        s_lshl_b32 s{s_bt}, s{s_bt}, 2
        s_add_u32 s{s_bt}, s{s_bt}, s{s_w}
        s_mul_i32 s{s_bt}, s{s_bt}, {7 * 2048}""")


    X4 = lambda slot, t, g: rr('a', slot * 32 + (t * 2 + g) * 4, 4)
    WB4, WB4B, NWR = 96, 128, 4
    W4 = lambda q, g: rr('a', WB4 + (q % NWR) * 8 + g * 4, 4)
    AC4 = lambda f, t: rr('v', AB4 + (f * 4 + t) * 4, 4)

    def xld4(slot):
        o_ = [Ins(f"buffer_load_dwordx4 {X4(slot, t, g)}, v{vX4[t]}, s[{sA}:{sA+3}], s{s_xo} offen offset:{g*1024} sc1")
              for t in range(4) for g in range(2)]
        return o_ + [Ins(f"s_add_u32 s{s_xo}, s{s_xo}, 2048")]

    def rd4(q, n, par=None, base=WB4):
        f = q % 14
        g, b = n >> 1, n & 1
        if par is None: par = (q // 14) & 1
        return Ins(f"ds_read_b64_tr_b16 {rr('a', base + (q % NWR)*8 + g*4 + 2*b, 2)}, v{vA4} offset:{par*SLOT4 + (f&1)*14336 + (32*g+16*b)*224 + (f>>1)*32}")
    p("s_barrier")
    for n in range(LEAD4):
        p.add(rd4(n >> 2, n & 3))
    p.add(Raw("; @stamp 8"))
    poll(p, f"{name}_hpoll", s_c4, 32, vt)
    p.add(Raw("; @stamp 9"))
    for q in range(2):
        table_load(AB4 + 8 * q, s_sq4, q)
    p.add(xld4(0))
    if o.get('b1', True): p("s_barrier")
    for q in range(2):
        rstd_from(AB4 + 8 * q, vR4 + 2 * q)
    for t in range(4):
        p(f"v_mul_f32 v{vR4+t}, {f32hex(-LOG2E)}, v{vR4+t}")
    for i in range(AB4, AB4 + 16, 2):
        p(f"v_pk_mov_b32 {rr('v', i, 2)}, 0, 0")
    p(f"s_mov_b32 s{s_cnt}, 7")
    p("wait " + ", ".join(X4(0, t, g) for t in range(4) for g in range(2)) + f", {W4(0, 0)}, {W4(0, 1)}")
    p.begin_loop(f"{name}_p4loop", 7)
    B1 = o.get('b1', True)
    BP = o.get('bpos', 99)
    for u in range(2):
        vm = dma4(u) + xld4(1 - u) if B1 and u == 1 else xld4(1 - u) + dma4(u)
        if 'p4nov' in dbg: vm = [x for x in vm if x.kind != 'vmem']
        fill, pos = {}, 1
        for ins in vm:
            fill.setdefault(pos, []).append(ins)
            pos += o.get('p4step', 4) if ins.kind == 'vmem' else 2
            if pos % 8 == 7: pos += 2
        assert pos < 91
        if u == 1:
            fill[97] = [Ins(f"s_sub_u32 s{s_rsl}, {HI4}, s{s_rsl}")]
            fill[107] = [Ins(f"s_add_u32 s{s_dsl}, s{s_m04}, s{s_rsl}")]
            fill[93] = [Ins(f"s_sub_u32 s{s_cnt}, s{s_cnt}, 1")]
            fill[109] = [Ins(f"s_cmp_lg_u32 s{s_cnt}, 0")]
            fill.setdefault(pos, []).append(Ins(f"s_cmp_eq_u32 s{s_cnt}, 1"))
            fill.setdefault(pos + 1, []).append(Raw(f"    s_cbranch_scc1 {name}_x15\n{name}_x15back:"))
            x15blk = Raw(f"{name}_x15:\n" + "".join(f"    {x.text}\n" for x in xld4(2)[:8]) + f"    s_branch {name}_x15back")
        order = [(f, t, g) for f in range(14) for t, g in zz(f, 4, 2, ZZ)]
        late = B1 and u == 1
        for i, (f, t, g) in enumerate(order):
            p(mf16(AC4(f, t), W4(u * 14 + f, g), X4(u, t, g)))
            if late and i == BP:
                p("s_waitcnt vmcnt(8) lgkmcnt(0)")
                p("s_barrier")
            if late and i >= 96:
                if BP <= i < BP + 8:
                    p.add(rd4(28 + ((i - BP) >> 2), (i - BP) & 3))
            elif i % 2 == 0:
                n = i // 2 + LEAD4
                p.add(rd4(u * 14 + (n >> 2), n & 3))
            if i == 95 and u == 1: p(f"v_add_u32 v{vA4}, s{s_rsl}, v{vAb}")
            if i == 95 and not B1:
                p("s_waitcnt vmcnt(15) lgkmcnt(4)")
                if 'p4nobar' not in dbg: p("s_barrier")
            elif i == 111:
                p(f"wait {W4(u*14 + 14, 0)}, {W4(u*14 + 14, 1)}, " + ", ".join(X4(1 - u, t_, g_) for t_ in range(4) for g_ in range(2)))
            elif i % 8 == 7:
                p(f"wait {W4(u*14 + f + 1, 0)}, {W4(u*14 + f + 1, 1)}")
            p.add(fill.get(i, []))
    p(f"s_cbranch_scc1 {name}_p4loop")
    p.end_loop()
    p.add(Raw("; @stamp 10"))
    main_cur = p.cur
    setup = []
    p.cur = setup

    vW5 = 21
    s_wo5, s_m05 = 68, 69
    vH = 13
    vFG, vTwo = 25, 26
    for i in range(2):
        p(f"v_accvgpr_read_b32 v{vW5+i}, a{aMEAN-4+i}")
    p(f"""
    s_mul_i32 s{s_t0}, s{s_hf}, {896 * 2048}
    s_xor_b32 s{s_t1}, s{s_j}, {PX}
    s_add_u32 s{s_t1}, s{s_t1}, 16
    s_sub_u32 s{s_t1}, s{s_t1}, s{s_j}
    s_lshl_b32 s{s_t1}, s{s_t1}, 7
    v_add_u32 v{vW5+2}, s{s_t1}, v{vW5}
    v_add_u32 v{vW5+3}, s{s_t1}, v{vW5+1}
    v_add_u32 v{vW5}, 4096, v{vW5}
    v_add_u32 v{vW5+1}, 4096, v{vW5+1}
    s_mul_i32 s{s_wo5}, s{s_w}, {112 * 2048}""")
    srd(p, sD, pWD, 896 * 2048 + 4096, off=s_t0, bias=-4096)
    p(f"""
    s_lshl_b32 s{s_t1}, s{s_j}, 7
    s_add_u32 s{s_wo5}, s{s_wo5}, s{s_t1}
    s_lshl_b32 s{s_m05}, s{s_w}, 12
    v_lshrrev_b32 v{vt}, 5, v0
    v_mul_u32_u24 v{vt}, {112 * 1024 - 512}, v{vt}
    v_add_u32 v{vH}, v{vt}, v{vL16}
    v_add_u32 v{vH+1}, {2 * 112 * 1024}, v{vH}
    v_add_u32 v{vX1}, {112 * 1024}, v{vL16}
    s_mul_i32 s{s_xo}, s{s_tok}, {112 * 64}
    s_mul_i32 s{s_t0}, s{s_hf}, {28 * 1024}
    s_add_u32 s{s_xo}, s{s_xo}, s{s_t0}
    s_mov_b32 s{s_spin}, {SPIN}
    s_lshl_b32 s{s_t0}, s{s_nb}, 7
    s_add_u32 s{s_sq4}, s{s_sq4}, s{s_t0}
    s_add_u32 s{s_sq4}, s{s_sq4}, {ST_FH - ST_SSQ}""")
    p.cur = main_cur
    btouch = lambda: Ins(f"buffer_load_dword v27, v{vBT}, s[{sD}:{sD+3}], s{s_bt} offen", nowaw=True)

    def dma5(st):
        o_ = [Ins(f"s_add_u32 m0, s{s_m05}, {(st % 8) * 16384}")]
        for i in range(4):
            o_.append(Ins(f"buffer_load_dwordx4 v{vW5+i}, s[{sD}:{sD+3}], s{s_wo5} offen offset:{i*1024} lds", awr=[f'L5_{st}'], nowaw=True))
        o_.append(Ins(f"s_add_u32 s{s_wo5}, s{s_wo5}, {448 * 2048}" if st & 1 == 0 else f"s_sub_u32 s{s_wo5}, s{s_wo5}, {(448 - 16) * 2048}"))
        return o_

    def glu(pr, packed):
        o_ = []
        for t in range(4):
            g = AB4 + ((2 * pr) * 4 + t) * 4
            u_ = AB4 + ((2 * pr + 1) * 4 + t) * 4
            rs_ = rr('v', vR4 + (t & 2), 2)
            sel = "op_sel_hi:[1,0]" if t % 2 == 0 else "op_sel:[0,1]"
            if packed:
                o_ += [f"v_pk_mul_f32 {rr('v', g+r, 2)}, {rr('v', g+r, 2)}, {rs_} {sel}" for r in (0, 2)]
                o_ += [f"v_exp_f32 v{g+r}, v{g+r}" for r in range(4)]
                o_ += [f"v_pk_add_f32 {rr('v', g+r, 2)}, {rr('v', g+r, 2)}, 1.0 op_sel_hi:[1,0]" for r in (0, 2)]
                o_ += [f"v_rcp_f32 v{g+r}, v{g+r}" for r in range(4)]
                o_ += [f"v_pk_mul_f32 {rr('v', u_+r, 2)}, {rr('v', u_+r, 2)}, {rr('v', g+r, 2)}" for r in (0, 2)]
            else:
                o_ += [f"v_mul_f32 v{g+r}, v{vR4+t}, v{g+r}" for r in range(4)]
                o_ += [f"v_exp_f32 v{g+r}, v{g+r}" for r in range(4)]
                o_ += [f"v_add_f32 v{g+r}, 1.0, v{g+r}" for r in range(4)]
                o_ += [f"v_rcp_f32 v{g+r}, v{g+r}" for r in range(4)]
                o_ += [f"v_mul_f32 v{u_+r}, v{u_+r}, v{g+r}" for r in range(4)]
            d_ = AB4 + ((2 * pr) * 4 + (t & 2)) * 4 + (t & 1) * 2
            o_ += [f"v_cvt_pk_bf16_f32 v{d_}, v{u_}, v{u_+1}", f"v_cvt_pk_bf16_f32 v{d_+1}, v{u_+2}, v{u_+3}"]
            if t & 1:
                o_ += [f"v_permlane32_swap_b32 v{d_-2}, v{d_}", f"v_permlane32_swap_b32 v{d_-1}, v{d_+1}",
                       f"buffer_store_dwordx4 {rr('v', d_-2, 4)}, v{vH + (t >> 1)}, s[{sB}:{sB+3}], s{s_of} offen sc1"]
        o_.append(f"s_add_u32 s{s_of}, s{s_of}, 4096")
        return [Ins(x, awr=[f'HS{pr}'], nowaw=True) if x.startswith('buffer') else Ins(x) for x in o_]

    W4B = lambda q, g: rr('a', WB4B + (q % NWR) * 8 + g * 4, 4)
    fgl = f"buffer_load_dword v{vFG}, v{vFL}, s[{sT}:{sT+3}], s{s_c} offen sc1"
    F1AT, FPAT = o.get('f1at', (4, 27)), o.get('fpat', (6, 13))
    if not B1:
        p("s_waitcnt vmcnt(0)")
        p("s_barrier")
    for n in range(4):
        p.add(rd4(0, n, 1, WB4B))
    cost = lambda x: 8 if x.kind == 'trans' else 0 if x.kind == 'vmem' else 4
    pend = []
    for pr in range(7):
        work = setup if pr == 0 else glu(pr - 1, False)
        side = dma5(pr - 1) if pr >= 1 else []
        if BT and pr == o.get('btat', 5): side.append(btouch())
        tot = sum(cost(x) for x in work)
        done, wi = 0, 0
        for ff in range(2):
            f = 2 * pr + ff
            if f == 0: order = [(t, k) for t in range(4) for k in (0, 1)] + [(t, k) for t in range(4) for k in (2, 3)]
            else: order = zz(f, 4, 4, ZZ)
            rds = [rd4(f + 1, n, 1, WB4B) for n in range(4)] if f + 1 < 14 else []
            rds += [rd4(f + 2, n, 0) for n in range(4)] if f + 2 < 14 else []
            for i, (t, k) in enumerate(order):
                p(mf16(AC4(f, t), W4(f, k) if k < 2 else W4B(f, k - 2), X4(0 if k < 2 else 2, t, k & 1)))
                if B1 and f == 0 and i == 7:
                    p("s_waitcnt vmcnt(0)")
                if i % 2 == 0:
                    if rds: p.add(rds.pop(0))
                elif i == 15:
                    if f < 13: p(f"wait {W4(f+1, 0)}, {W4(f+1, 1)}, {W4B(f+1, 0)}, {W4B(f+1, 1)}")
                elif (pr, ff * 16 + i) == F1AT:
                    p(f"buffer_store_dword v{vOne}, v{vZ}, s[{sT}:{sT+3}], s{s_sq4} offen sc1", rd=['HS0', 'HS1', 'HS2'])
                elif (pr, ff * 16 + i) == FPAT:
                    p(fgl)
                elif pend:
                    p.add(pend.pop(0))
                elif side:
                    p.add(side.pop(0))
                gap = ff * 16 + i + 1
                while wi < len(work) and done + cost(work[wi]) / 2 <= tot * gap / 32:
                    if work[wi].kind == 'vmem' or (pr and work[wi].kind == 'salu'): pend.append(work[wi])
                    else: p.add(work[wi])
                    done += cost(work[wi]); wi += 1
        assert wi == len(work) and not side
    p.add(pend)

    AC5, WB5, vHI, vHF = 96, 40, 72, 224
    XB5 = (160, 192, 32, 0, 64, 96, 128)
    A5 = lambda F, t: rr('v', AC5 + ((F >> 2) + 2 * (t >> 1)) * 32 + ((F & 3) * 2 + (t & 1)) * 4, 4)
    X5 = lambda st, t, G: rr('a', XB5[st % 7] + (t * 2 + G) * 4, 4)
    NT = o.get('nt5', 6)

    def xld5(st):
        o_ = [Ins(f"buffer_load_dwordx4 {X5(st, t, G)}, v{vX1 if t & 1 else vL16}, s[{sB}:{sB+3}], s{s_x5 if t >> 1 else s_xo} offen offset:{G*1024} sc1")
              for t in range(4) for G in range(2)]
        return o_[:4] + [Ins(f"s_add_u32 s{s_xo}, s{s_xo}, 2048")] + o_[4:] + [Ins(f"s_add_u32 s{s_x5}, s{s_x5}, 2048")]

    def spin(label, level, ld=None):
        return f"""    s_branch {label}_chk
{label}:
    {ld or fgl}
    s_waitcnt vmcnt(0)
{label}_chk:
    v_cmp_gt_u32 vcc, {level}, v{vFG}
    s_sub_u32 s{s_spin}, s{s_spin}, 1
    s_cbranch_scc1 {label}_done
    s_cbranch_vccnz {label}
{label}_done:"""
    last = list(range(14 - NT, 14))
    FO = o.get('fo5', 4)
    units = [(st, F, (0, 1, 2, 3)) for st in range(14 - NT) for F in range(8)]
    units += [(st, F, (0, 1, 2, 3)) for st in last[:-FO] for F in range(4, 8)]
    units += [(st, F, (0, 1, 2, 3)) for F in range(4, 8) for st in last[-FO:]]
    kB = len(units)
    kC = kB + 4 * NT
    units += [(st, F, (2, 3)) for F in range(4) for st in last]
    units += [(st, F, (0, 1)) for F in range(4) for st in last]

    def rd5(k):
        st, F = units[k][:2]
        return [Ins(f"ds_read_b64_tr_b16 {rr('v', WB5 + (k % 4)*8 + 2*n, 2)}, v{(vHI if st & 4 else vA3) + (F & 3)} "
                    f"offset:{(st & 3)*16384 + (n >> 1)*8192 + (F >> 2)*2048 + (n & 1)*1024}") for n in range(4)]
    p.add(Raw("; @stamp 11"))
    p(f"wait v{vFG}")
    p.add(Raw(spin(f"{name}_fpoll", 1)))
    p.add(Raw("; @stamp 12"))
    p.add(xld5(0))
    p("s_barrier", rd=['L5_0'])
    p.add(rd5(0) + rd5(1))
    g6, x1 = glu(6, True), xld5(1)
    for n, x in enumerate(g6):
        p.add(x)
        if n % 6 == 5 and x1: p.add(x1.pop(0))
    assert not x1
    p.add(Raw("; @stamp 13"))
    STG = 131072
    vL, vG, vXF = 30, 15, 26
    s_ro, s_fl, s_xs, s_fy, s_fb = 66, 67, 72, 70, 71
    SQ5 = 32
    bg = []
    p.cur = bg
    for i in range(4):
        p(f"v_xor_b32 v{vHI+i}, 0x10000, v{vA3+i}")
    p(f"""
    s_add_u32 s{s_sq4}, s{s_sq4}, {ST_F2 - ST_FH}
    s_add_u32 s{s_c}, s{s_c}, {ST_F2 - ST_FH}
    s_lshl_b32 s{s_of}, s{s_tok}, 6
    s_add_u32 s{s_of}, s{s_of}, {ST_SSQ}
    s_lshl_b32 s{s_t0}, s{s_b}, 4
    s_add_u32 s{s_t0}, s{s_t0}, s{s_j}
    s_lshl_b32 s{s_xs}, s{s_t0}, 2
    s_add_u32 s{s_xs}, s{s_xs}, s{s_w}
    s_lshl_b32 s{s_fl}, s{s_xs}, 7
    v_and_b32 v{vt+2}, 1, v0
    v_lshlrev_b32 v{vt+2}, 15, v{vt+2}
    v_xor_b32 v{vt+2}, {8 << 9}, v{vt+2}
    v_xor_b32 v{vXF}, s{s_fl}, v{vt+2}
    s_add_u32 s{s_fy}, s{s_fl}, {ST_FY}
    s_add_u32 s{s_fl}, s{s_fl}, {ST_FX}
    s_mov_b32 s{s_fb}, {ST_FY}
    s_lshl_b32 s{s_xs}, s{s_xs}, 14
    s_add_u32 s{s_nb+4}, s{s_xs}, 4096
    s_mul_i32 s{s_t0}, s{s_w}, 4608
    s_add_u32 s{s_t0}, s{s_t0}, {STG}
    v_and_b32 v{vt+2}, 15, v0
    v_mul_u32_u24 v{vt+2}, 144, v{vt+2}
    v_lshrrev_b32 v{vt+3}, 4, v0
    v_lshl_add_u32 v{vt+2}, v{vt+3}, 3, v{vt+2}
    v_add_u32 v{vL}, s{s_t0}, v{vt+2}
    v_lshrrev_b32 v{vt+2}, 3, v0
    v_and_b32 v{vt+3}, 7, v0
    v_lshlrev_b32 v{vt+3}, 4, v{vt+3}
    v_lshl_add_u32 v{vG}, v{vt+2}, 11, v{vt+3}
    v_mul_u32_u24 v{vt+2}, 144, v{vt+2}
    v_add3_u32 v{vL+1}, v{vt+2}, v{vt+3}, s{s_t0}
    s_lshl_b32 s{s_ro}, s{s_tok}, 11
    s_lshl_b32 s{s_t2}, s{s_j}, 7
    s_add_u32 s{s_ro}, s{s_ro}, s{s_t2}
    s_add_u32 s0, s{s_xs}, 4096
    s_add_u32 s1, s{s_xs}, 8192
    s_add_u32 s14, s{s_xs}, 12288
    s_mov_b32 s{s_t1}, {f32hex(1.0/1024)}
    v_mov_b32 v{vt+4}, {f32hex(1e-5)}
    """.replace(f"    s_add_u32 s{s_nb+4}, s{s_xs}, 4096\n", ""))
    srd(p, sA, pOUT, S * D * 2)
    for t in range(2):
        for F in range(4):
            e = aHR + (t * 2 + (F >> 1)) * 4 + (F & 1) * 2
            k = vHF + (F * 2 + t) * 4
            p(f"""
            v_accvgpr_read_b32 v{k+1}, a{e}
            v_accvgpr_read_b32 v{k+3}, a{e+1}
            v_lshlrev_b32 v{k}, 16, v{k+1}
            v_lshlrev_b32 v{k+2}, 16, v{k+3}
            v_and_b32 v{k+1}, 0xffff0000, v{k+1}
            v_and_b32 v{k+3}, 0xffff0000, v{k+3}""")
    bg2 = []
    p.cur = bg2
    for t in range(2):
        p(f"""
        v_add_f32 v{SQ5+t}, v{SQ5+t}, v{SQ5+2+t}
        v_add_f32 v{SQ5+4+t}, v{SQ5+4+t}, v{SQ5+6+t}
        v_add_f32 v{vS+t}, v{SQ5+t}, v{SQ5+4+t}""")
        xsum16_32(p, f"v{vS+t}", f"v{vt}")
        p(f"v_fma_f32 v{vS+t}, v{vS+t}, s{s_t1}, v{vt+4}\nv_rsq_f32 v{vS+t}, v{vS+t}")
    p.cur = main_cur
    sXQ = {1: 0, 2: 1, 3: 14}
    assert NT in (4, 5, 6)
    x3 = None
    f2st = Ins(f"buffer_store_dword v{vOne}, v{vZ}, s[{sT}:{sT+3}], s{s_sq4} offen sc1", rd=['HS6'])
    f2ck = [Ins(f"wait v{vFG}"), Raw(spin(f"{name}_f2poll", 1))]
    sql = [Ins(f"buffer_load_dwordx2 {rr('v', SQ5 + 2*i, 2)}, v{vPT}, s[{sT}:{sT+3}], s{s_of} offen offset:{i*128} sc1") for i in range(4)]
    X_ = {st: xld5(st) for st in range(2, 14)}
    plan = {0: X_[2] + dma5(6) + X_[3][:5], 1: X_[3][5:] + dma5(7) + X_[4], 2: [f2st] + X_[5] + sql,
            3: [Ins(fgl)] + dma5(8) + dma5(9) + [f2ck] + X_[6], 4: X_[7] + X_[8], 5: dma5(10) + dma5(11) + X_[9],
            6: X_[10] + X_[11], 7: dma5(12) + dma5(13) + X_[12], 8: X_[13]}
    bar_at = {0: range(1, 6), 2: [], 4: [6, 7], 6: [8, 9, 10, 11], 9: [12, 13]}
    if o.get('plan5') == 1:
        D_ = {st: dma5(st) for st in range(6, 14)}
        plan = {0: X_[2] + D_[6], 1: X_[3] + D_[7], 2: [f2st] + X_[4] + sql, 3: X_[5] + D_[8] + [Ins(fgl)], 4: D_[9] + [f2ck] + X_[6],
                5: X_[7] + D_[10] + X_[8][:5], 6: X_[8][5:] + D_[11] + X_[9][:5], 7: X_[9][5:] + D_[12] + X_[10][:5],
                8: X_[10][5:] + D_[13] + X_[11], 9: X_[12] + X_[13]}
        bar_at = {0: range(1, 6), 2: [], 4: [6, 7], 6: [8, 9], 8: [10, 11], 10: [12, 13]}
    start = {}
    for k, u_ in enumerate(units[:kB]): start.setdefault(u_[0], k)
    kstart = {k: st for st, k in start.items() if st < 12}
    kbar = {start[st + 1] - 2: v for st, v in bar_at.items()}
    RX = AC5 + 32
    rxl = lambda F, r: Ins(f"buffer_load_dwordx4 {rr('v', AC5 + r*32 + F*8, 4)}, v{vL16}, s[{sC}:{sC+3}], s{sXQ[r]} offen offset:{F*1024} sc1")
    fyl = f"buffer_load_dword v{vFG}, v{vXF}, s[{sT}:{sT+3}], s{s_fb} offen sc1"
    ev = {kB + o.get('kfa', 12): [Ins(f"buffer_store_dword v{vOne}, v{vZ}, s[{sT}:{sT+3}], s{s_fy} offen sc1", rd=['XS1', 'XS3']),
                                  Ins(f"s_xor_b32 s0, s0, {8 << 16}"), Ins(f"s_xor_b32 s14, s14, {72 << 16}")],
          kC + o.get('kla', 11): [Ins(fyl)]}
    ev.setdefault(kC + o.get('kfb', 12), []).extend(
        [Ins(f"buffer_store_dword v{vOne}, v{vZ}, s[{sT}:{sT+3}], s{s_fl} offen sc1", rd=['XS2']),
         Ins(f"s_xor_b32 s1, s1, {64 << 16}"), Ins(f"s_xor_b32 s{s_fl}, s{s_fl}, {64 << 9}")])
    ev.setdefault(kC + o.get('kca', 20), []).extend(
        [[Ins(f"wait v{vFG}"), Raw(spin(f"{name}_ypoll", 1, fyl))]] + [rxl(F, r) for F in range(4) for r in (1, 3)])
    side, seen, hold = [], set(), 0
    for k, (st, F, ts) in enumerate(units):
        if k in kstart:
            side += plan.get(st, [])
            if st == 5: bg += bg2
        assert all(x not in side for x in X_.get(st, [])[:-1])
        side += ev.get(k, [])
        if 'fine5' in dbg:
            mk = {start[3]: 3, start[4]: 4, start[8]: 5, kB: 6, kC: 7, kC + 8: 8, kC + 16: 9}
            if k in mk: p.add(Raw(f"; @stamp {mk[k]}"))
        rds = rd5(k + 2) if k + 2 < len(units) else []
        order = [(ts[t], G) for t, G in zz(k, len(ts), 2, ZZ)]
        for i, (t, G) in enumerate(order):
            c = None if (F, t) in seen else "0"
            seen.add((F, t))
            p(mf16(A5(F, t), rr('v', WB5 + (k % 4) * 8 + G * 4, 4), X5(st, t, G), c))
            if i == 0 and k in kbar:
                assert not any(f'L5_{x}' in getattr(y, 'awr', ()) for x in kbar[k] for y in side)
                p("s_barrier", rd=[f'L5_{x}' for x in kbar[k]])
            used = False
            if rds and (i % 2 == 0 or len(ts) == 2):
                p.add(rds.pop(0))
            if i == len(order) - 1:
                if k + 1 < len(units):
                    n_ = units[k + 1]
                    p(f"wait {rr('v', WB5 + ((k + 1) % 4) * 8, 8)}, " + ", ".join(X5(n_[0], t_, G_) for t_ in n_[2] for G_ in range(2)))
            if side and i % 2 == 1 and (getattr(side[0], 'kind', '') == 'vmem') == (i % 4 == 1):
                p.add(side.pop(0)); used = True
                while side and i % 4 == 3 and getattr(side[0], 'kind', '') == 'salu': p.add(side.pop(0))
            if bg and not used:
                x = bg.pop(0)
                if x.kind == 'vmem': side.append(x)
                else: p.add(x)
        if st == 13:
            for tp in sorted({t >> 1 for t in ts}):
                r = (F >> 2) + 2 * tp
                if r:
                    a = AC5 + r * 32 + (F & 3) * 8
                    bg += [Ins("wait v0") for _ in range(3 if not bg else 0)]
                    bg += [Ins(f"v_cvt_pk_bf16_f32 v{a+q}, v{a+2*q}, v{a+2*q+1}") for q in range(4)]
                    bg.append(Ins(f"buffer_store_dwordx4 {rr('v', a, 4)}, v{vL16}, s[{sC}:{sC+3}], s{sXQ[r]} offen offset:{(F & 3)*1024} sc1",
                                  awr=[f'XS{r}'], nowaw=True))
    assert not bg
    p.add(Raw("; @stamp 14"))
    p.add(side + ev.get(len(units), []))
    fxl = f"buffer_load_dword v{vFG}, v{vt+1}, s[{sT}:{sT+3}], s{s_fl} offen sc1"
    p(f"v_mov_b32 v{vt+1}, 0")
    p(fxl)
    sels = ("op_sel_hi:[1,0,1]", "op_sel:[0,1,0]")
    RU = 40

    def add_rx(F, r):
        for q in range(4):
            e, a, k = AC5 + r * 32 + F * 8 + q, RU + ((r * 4 + q) % 8) * 2, vHF + F * 8 + 2 * q
            p(f"v_lshlrev_b32 v{a}, 16, v{e}\nv_and_b32 v{a+1}, 0xffff0000, v{e}")
            p(f"v_pk_fma_f32 {rr('v', k, 2)}, {rr('v', a, 2)}, {rr('v', vS, 2)}, {rr('v', k, 2)} {sels[q >> 1]}")
    for i in range(0, 32, 2):
        p(f"v_pk_fma_f32 {rr('v', vHF+i, 2)}, {rr('v', AC5+i, 2)}, {rr('v', vS, 2)}, {rr('v', vHF+i, 2)} {sels[(i >> 2) & 1]}")
    for F in range(2):
        add_rx(F, 1); add_rx(F, 3)
    if 'tail' in dbg: p.add(Raw("; @stamp 0"))
    p(f"wait v{vFG}")
    p.add(Raw(spin(f"{name}_xpoll", 1, fxl)))
    p.add([rxl(F, 2) for F in range(4)])
    if 'tail' in dbg: p.add(Raw("; @stamp 1"))
    for F in range(2, 4):
        add_rx(F, 1); add_rx(F, 3)
    for F in range(4):
        add_rx(F, 2)
        for t in range(2):
            k = vHF + (F * 2 + t) * 4
            p(f"v_cvt_pk_bf16_f32 v{k}, v{k}, v{k+1}\nv_cvt_pk_bf16_f32 v{k+1}, v{k+2}, v{k+3}")
            p(f"ds_write_b64 v{vL}, v[{k}:{k+1}] offset:{t*16*144 + F*32}")
    for n in range(4):
        p(f"ds_read_b128 {rr('v', 128 + n*4, 4)}, v{vL+1} offset:{n*8*144}")
    if 'tail' in dbg: p.add(Raw("; @stamp 2"))
    for n in range(4):
        p(f"buffer_store_dwordx4 {rr('v', 128 + n*4, 4)}, v{vG}, s[{sA}:{sA+3}], s{s_ro} offen")
        if n < 3: p(f"s_add_u32 s{s_ro}, s{s_ro}, {8 * 2048}")
    p(f"{name}_end:")
    p("s_endpgm")
    p.add(x15blk)

    p.add(Raw(f"""{name}_rsx:
    s_lshl_b32 s{s_t0}, s{s_w}, 12
    s_add_u32 m0, s{s_t0}, {XT}
    s_lshl_b32 s{s_t1}, s{s_j}, 7
""" + "".join(f"    buffer_load_dwordx4 v{vD+i}, s[{sC}:{sC+3}], s{s_t1} offen offset:{i*1024} lds\n" for i in range(4)) + f"""    s_lshl_b32 s{s_t0}, s{s_hd}, 10
    s_add_u32 s{s_t0}, s{s_t0}, {ST_RS2}
    s_xor_b32 s{s_t1}, s{s_t0}, 1024
""" + "".join(f"    buffer_load_dwordx4 {rr('v', RSV + 16*x + 4*jj, 4)}, v{vRA}, s[{sT}:{sT+3}], s{s_t1 if x else s_t0} offen offset:{jj*256} sc1\n"
              for x in range(2) for jj in range(4)) + f"    s_branch {name}_rsxback"))

    slow = p.segment()
    p(f"{name}_slow:")
    p.fence()
    for x in range(2):
        p(f"v_mov_b32 v{Nb(x)}, 0xff800000")
    p(f"s_mov_b32 s{s_ko}, 0")
    p.begin_loop(f"{name}_max_loop", 64, align=False)
    p.add([kld(0, 0), kld(0, 1)])
    for x in range(2):
        p(mf32(rr('v', Sb(x), 16), Kf(0, 0), Q(x, 0), "0"))
        p(mf32(rr('v', Sb(x), 16), Kf(0, 1), Q(x, 1)))
    for x in range(2):
        for i in range(0, 16, 2):
            p(f"v_max3_f32 v{Nb(x)}, v{Nb(x)}, v{Sb(x)+i}, v{Sb(x)+i+1}")
    p(f"""
    s_add_u32 s{s_ko}, s{s_ko}, 4096
    s_cmp_lg_u32 s{s_ko}, {64 * 4096}
    s_cbranch_scc1 {name}_max_loop""")
    p.end_loop()
    for x in range(2):
        p(f"""
        v_mov_b32 v{vt}, v{Nb(x)}
        v_permlane32_swap_b32 v{Nb(x)}, v{vt}
        v_max_f32 v{Nb(x)}, v{Nb(x)}, v{vt}
        v_sub_f32 v{Nb(x)}, 0, v{Nb(x)}""")
        for i in range(1, 16):
            p(f"v_mov_b32 v{Nb(x)+i}, v{Nb(x)}")
    fill_kv()
    att_init()
    p(f"s_mov_b32 s{s_safe}, 1")
    attention('safe', lambda y: rr('v', Nb(y), 16), False, [Ins("s_nop 11")])
    p.fence()
    p(f"s_branch {name}_fin")
    p.paths = [[main, red_w, rest], [main, fin, fin_k, rest], [main, fin, fin_v, rest], [slow]]
    return p
```

```python
from common import *

LDS_TOTAL = 163840
ST_MR = 0x0000
ST_RS2 = 0x60000
ST_MP = 0x28000
ST_FO = 0x80000
ST_FC = 0xA0000
ST_FH = 0xC0000
ST_FY = 0x120000
ST_FX = 0xE0000
ST_KVC = 0x4000
SPIN = 1 << 20

pX, pWQ, pWK, pWV, pWO, pWG, pWU, pWD, pOUT, pDBG, pWS = 4, 6, 8, 10, 12, 16, 18, 20, 22, 24, 26
sA, sB, sC, sD, sE, sT = 28, 32, 36, 40, 44, 48
s_w, s_b, s_j, s_tok, s_t0, s_t1, s_t2, s_cnt, s_spin = 52, 53, 54, 55, 56, 57, 58, 59, 60
vL16, vZ, vOne = 1, 2, 3
aMEAN, aHR, aA5 = 238, 240, 160


def srd(p, s, ptr, size, off=None, bias=0):
    if off is not None:
        p(f"s_add_u32 s{s}, s{ptr}, s{off}\ns_addc_u32 s{s+1}, s{ptr+1}, 0")
        ptr = s
    if bias > 0:
        p(f"s_add_u32 s{s}, s{ptr}, {hex(bias)}\ns_addc_u32 s{s+1}, s{ptr+1}, 0")
    elif bias < 0:
        p(f"s_sub_u32 s{s}, s{ptr}, {hex(-bias)}\ns_subb_u32 s{s+1}, s{ptr+1}, 0")
    elif off is None:
        p(f"s_mov_b64 s[{s}:{s+1}], s[{ptr}:{ptr+1}]")
    if isinstance(size, str):
        p(size.format(d=f"s{s+2}"))
    else:
        p(f"s_mov_b32 s{s+2}, {hex(size)}")
    p(f"s_mov_b32 s{s+3}, 0x20000")


PFL = ['sc1', 'sc1', 'buffer_store_dword']


def arrive(p, soff):
    p("s_waitcnt vmcnt(0)")
    p(f"{PFL[2]} v{vOne}, v{vZ}, s[{sT}:{sT+3}], s{soff} offen {PFL[1]}")


SLEEP = [0]


def poll(p, label, soff, n, vtmp, target=1):
    p(f"""
    s_mov_b32 s{s_spin}, {SPIN}
    v_lshlrev_b32 v{vtmp+1}, 7, v0
    s_mov_b64 exec, {hex((1 << n) - 1) if n < 32 else 0xffff}
    {'s_mov_b32 exec_lo, -1' if n == 32 else ''}""")
    p.add(Raw(f"""    s_branch {label}_go
{label}:
    {f's_sleep {SLEEP[0]}' if SLEEP[0] else ''}
{label}_go:
    buffer_load_dword v{vtmp}, v{vtmp+1}, s[{sT}:{sT+3}], s{soff} offen {PFL[0]}
    s_sub_u32 s{s_spin}, s{s_spin}, 1
    s_waitcnt vmcnt(0)
    v_cmp_gt_u32 vcc, {target}, v{vtmp}
    s_cbranch_scc1 {label}_done
    s_cbranch_vccnz {label}
{label}_done:"""))
    p("s_mov_b64 exec, -1")
    p("s_waitcnt vmcnt(0)")


def spread(vm, start, step):
    fill, pos = {}, start
    for ins in vm:
        fill.setdefault(pos, []).append(ins)
        if ins.kind == 'vmem':
            pos += step
    return fill


def zz(f, nt, nk, on=True):
    if not on:
        return [(t, k) for t in range(nt) for k in range(nk)]
    ts = list(range(nt)) if f % 2 == 0 else list(range(nt - 1, -1, -1))
    return [(t, k if n % 2 == 0 else nk - 1 - k) for n, t in enumerate(ts) for k in range(nk)]


def gen_fused(name, o):
    ZZ = o.get('zz', True)
    dbg = o.get('dbg', '')
    SLEEP[0] = o.get('sleep', 0)
    PFL[:] = o.get('pfl', PFL)
    KVSC = 'sc1' if o.get('kvsc1', False) else ''
    p = Prog()
    main = p.segment()
    p(f"""
    s_cmp_ge_u32 s2, 256
    s_cbranch_scc1 {name}_end
    s_load_dwordx16 s[4:19], s[0:1], 0
    s_load_dwordx8 s[20:27], s[0:1], 64
    v_lshrrev_b32 v1, 6, v0
    v_and_b32 v0, 63, v0
    v_readfirstlane_b32 s{s_w}, v1
    s_and_b32 s{s_t0}, s2, 7
    s_lshr_b32 s{s_t1}, s2, 3
    s_lshr_b32 s{s_b}, s{s_t0}, 1
    s_lshl_b32 s{s_b}, s{s_b}, 2
    s_and_b32 s{s_j}, s{s_t1}, 3
    s_add_u32 s{s_b}, s{s_b}, s{s_j}
    s_and_b32 s{s_j}, s{s_t0}, 1
    s_lshl_b32 s{s_j}, s{s_j}, 3
    s_lshr_b32 s{s_t1}, s{s_t1}, 2
    s_add_u32 s{s_j}, s{s_j}, s{s_t1}
    {f"s_xor_b32 s{s_j}, s{s_j}, {o['jxor']}" if o.get('jxor') else ''}
    s_lshl_b32 s{s_tok}, s{s_b}, 2
    s_add_u32 s{s_tok}, s{s_tok}, s{s_w}
    s_lshl_b32 s{s_tok}, s{s_tok}, 5
    v_lshlrev_b32 v{vL16}, 4, v0
    v_cmp_eq_u32 vcc, 0, v0
    v_mov_b32 v{vOne}, 0x7ffffff0
    v_cndmask_b32 v{vZ}, v{vOne}, 0, vcc
    v_mov_b32 v{vOne}, 1
    """)

    R3 = o.get('rot3', False)
    SL = 24576
    RED, CSQ = 147456, 162816
    vt = 4
    vD = 12
    vD0 = 18
    vB = 22
    vA = 28
    vST = 34
    ONES = 36
    vRS = 40
    s_kv, s_xoff, s_woff, s_dm, s_pb, s_w6 = 61, 62, 63, 64, 65, 66
    s_hd, s_wdo, s_wm0, s_po, s_pk, s_ko, s_vo, s_pj = 67, 68, 69, 70, 71, 72, 73, 3
    p(f"""
    v_lshrrev_b32 v{vt}, 3, v0
    v_lshrrev_b32 v{vt+1}, 4, v0
    v_and_b32 v{vt+2}, 7, v0
    v_xor_b32 v{vt+3}, v{vt+1}, v{vt+2}
    v_lshlrev_b32 v{vt+3}, 4, v{vt+3}
    v_lshl_add_u32 v{vt+3}, v{vt}, 11, v{vt+3}
    v_xor_b32 v{vt+4}, 64, v{vt+3}
    v_add_u32 v{vD}, 4096, v{vt+3}
    v_add_u32 v{vD+1}, {16384 + 4096 - 1024}, v{vt+4}
    v_add_u32 v{vD0}, {128 + 4096 - 2048}, v{vt+3}
    v_add_u32 v{vD0+1}, {16384 + 128 + 4096 - 3072}, v{vt+4}
    v_lshrrev_b32 v{vt+5}, 5, v0
    v_lshlrev_b32 v{vt+5}, 1, v{vt+5}
    v_xor_b32 v{vt+5}, v{vt+5}, v0
    v_lshlrev_b32 v{vD0+2}, 4, v{vt+5}
    v_add_u32 v{vD+2}, {32768 + 4096 - 2048}, v{vt+3}
    v_add_u32 v{vD+3}, {32768 + 16384 + 4096 - 3072}, v{vt+4}
    v_and_b32 v{vt+1}, 1, v{vt+1}
    v_lshlrev_b32 v{vt+1}, 1, v{vt+1}
    v_xor_b32 v{vt+1}, v{vt+1}, v{vt+2}
    v_lshlrev_b32 v{vt+1}, 4, v{vt+1}
    v_lshl_add_u32 v{vD+4}, v{vt}, 11, v{vt+1}
    v_xor_b32 v{vD+5}, 64, v{vD+4}
    v_add_u32 v{vD+5}, {8*2048 - 1024}, v{vD+5}
    s_lshr_b32 s{s_t0}, s{s_j}, 1
    s_lshl_b32 s{s_kv}, s{s_b}, 3
    s_add_u32 s{s_kv}, s{s_kv}, s{s_t0}
    s_lshl_b32 s{s_kv}, s{s_kv}, 4
    s_lshl_b32 s{s_t0}, s{s_kv}, 11
    s_lshl_b32 s{s_t1}, s{s_w}, 9
    s_add_u32 s{s_t0}, s{s_t0}, s{s_t1}
    s_add_u32 s{s_t1}, s{s_w}, 2
    s_mul_i32 s{s_dm}, s{s_t1}, {SL}
    s_mov_b32 m0, s{s_dm}
    s_mul_i32 s{s_xoff}, s{s_b}, {128 * o.get('rotb', 4)}
    s_mul_i32 s{s_woff}, s{s_j}, {128 * o.get('rotj', 2)}
    s_add_u32 s{s_xoff}, s{s_xoff}, s{s_woff}
    s_and_b32 s{s_xoff}, s{s_xoff}, 2047
    s_mul_i32 s{s_w6}, s{s_w}, 6144
    s_lshl_b32 s{s_ko}, s{s_w}, 14
    s_bfe_u32 s{s_vo}, s{s_j}, 0x20001
    s_lshl_b32 s{s_vo}, s{s_vo}, 14
    s_and_b32 s{s_t1}, s{s_tok}, 0x1e0
    s_lshl_b32 s{s_t1}, s{s_t1}, 5
    s_add_u32 s{s_vo}, s{s_vo}, s{s_t1}
    v_lshlrev_b32 v{vt+6}, 7, v0
    """)
    srd(p, sA, pX, S * D * 2 + 4096, bias=-4096)
    p.add(Raw("; @fine 4"))
    p(f"""
    s_bitcmp0_b32 s{s_j}, 0
    s_cselect_b64 s[{sB}:{sB+1}], s[{pWK}:{pWK+1}], s[{pWV}:{pWV+1}]
    s_mov_b32 s{sB+2}, {D * 64}
    s_mov_b32 s{sB+3}, 0x20000
    """)
    if o.get('kvtouch', True):
        p("s_mov_b64 exec, 0xff")
        p(f"buffer_load_dword v255, v{vt+6}, s[{sB}:{sB+3}], s{s_vo} offen", nowaw=True)
        p.cur[-1].awr = set()
        p("s_mov_b64 exec, -1")
    xo = [vD, vD + 1, vD0, vD0 + 1]
    for n in range(8):
        if n == 4:
            p(f"s_add_u32 m0, m0, 4096\ns_add_u32 s{s_t0}, s{s_t0}, 256")
        p(f"buffer_load_dwordx4 v{xo[n & 3]}, s[{sA}:{sA+3}], s{s_t0} offen offset:{(n & 3) * 1024} lds", awr=['P00'], nowaw=True)

    def wkv(q):
        p("s_add_u32 m0, m0, 4096")
        if q: p(f"s_add_u32 s{s_ko}, s{s_ko}, 4096")
        for i in range(4):
            p(f"buffer_load_dwordx4 v{vD0+2}, s[{sB}:{sB+3}], s{s_ko} offen offset:{i*1024} lds", awr=[f'P0{q}'], nowaw=True)
    EARLY = o.get('early', 1)
    for q in range(EARLY): wkv(q)
    p.add(Raw("; @fine 5"))
    p(f"""
    s_lshl_b32 s{s_t0}, s{s_tok}, 11
    s_lshl_b32 s{s_t1}, s{s_w}, 15
    s_lshl_b32 s{s_t2}, s{s_j}, 7
    s_add_u32 s{s_t1}, s{s_t1}, s{s_t2}
    """)
    srd(p, sC, pX, 32 * 2048 + 4096, off=s_t0, bias=-4096)
    srd(p, sD, pWQ, f"s_sub_u32 {{d}}, {D * D * 2}, s{s_t1}", off=s_t1)

    def dma1(m0expr, tag):
        o_ = [Ins(m0expr), Ins(f"s_lshl_b32 s{s_woff}, s{s_xoff}, 10")]
        for i in range(4):
            o_.append(Ins(f"buffer_load_dwordx4 v{vD+i}, s[{sC}:{sC+3}], s{s_xoff} offen offset:{i*1024} lds", awr=[tag], nowaw=True))
        o_ += [Ins("s_add_u32 m0, m0, 4096"), Ins(f"s_add_u32 s{s_xoff}, s{s_xoff}, 128")]
        for i in range(2):
            o_.append(Ins(f"buffer_load_dwordx4 v{vD+4+i}, s[{sD}:{sD+3}], s{s_woff} offen offset:{i*1024} lds", awr=[tag], nowaw=True))
        o_.append(Ins(f"s_and_b32 s{s_xoff}, s{s_xoff}, 2047"))
        return o_
    if o.get('qtouch', True):
        srd(p, sE, pWQ, D * D * 2)
        p(f"""
        s_lshr_b32 s{s_t0}, s2, 3
        s_lshl_b32 s{s_t0}, s{s_t0}, 2
        s_add_u32 s{s_t0}, s{s_t0}, s{s_w}
        s_lshl_b32 s{s_t0}, s{s_t0}, 14
        s_and_b32 s{s_t1}, s{s_j}, 8
        s_lshl_b32 s{s_t1}, s{s_t1}, 7
        s_add_u32 s{s_t0}, s{s_t0}, s{s_t1}
        v_lshlrev_b32 v{vt+6}, 11, v0
        s_mov_b64 exec, 0xff""")
        p(f"buffer_load_dword v255, v{vt+6}, s[{sE}:{sE+3}], s{s_t0} offen offset:384", nowaw=True)
        p.cur[-1].awr = set()
        p("s_mov_b64 exec, -1")
    srd(p, sE, pWO, D * D * 2)

    def rs_loads():
        p(f"""
        s_lshl_b32 s{s_t0}, s2, 2
        s_add_u32 s{s_t0}, s{s_t0}, s{s_w}
        s_lshl_b32 s{s_t0}, s{s_t0}, {21 if 'nors' in dbg else 11}
        buffer_load_dwordx4 {rr('v', vRS, 4)}, v{vL16}, s[{sE}:{sE+3}], s{s_t0} offen
        buffer_load_dwordx4 {rr('v', vRS+4, 4)}, v{vL16}, s[{sE}:{sE+3}], s{s_t0} offen offset:1024
        """)
    if o.get('rsfirst', True): rs_loads()
    srd(p, sT, pWS, ST[1], bias=ST[0])
    srd(p, sA, pWS, KV[1], bias=KV[0])
    p(f"""
    v_and_b32 v{vt}, 15, v0
    v_lshrrev_b32 v{vt+1}, 1, v{vt}
    v_lshrrev_b32 v{vt+2}, 4, v0
    v_xor_b32 v{vt+1}, v{vt+1}, v{vt+2}
    v_lshlrev_b32 v{vt+1}, 4, v{vt+1}
    v_lshl_add_u32 v{vt+1}, v{vt}, 7, v{vt+1}
    v_xor_b32 v{vt+3}, 64, v{vt+1}
    v_add_u32 v{vB}, s{s_w6}, v{vt+1}
    v_add_u32 v{vB+1}, s{s_w6}, v{vt+3}
    v_add_u32 v{vA}, s{s_dm}, v{vt+1}
    v_add_u32 v{vA+1}, s{s_dm}, v{vt+3}
    v_lshrrev_b32 v{vt}, 5, v0
    v_and_b32 v{vt+1}, 3, v0
    v_lshlrev_b32 v{vt+1}, 3, v{vt+1}
    v_bfe_u32 v{vt+2}, v0, 2, 2
    v_bfe_u32 v{vt+3}, v0, 4, 1
    v_lshl_add_u32 v{vt+2}, v{vt+3}, 3, v{vt+2}
    v_lshl_add_u32 v{vt+4}, v{vt}, 10, v{vt+1}
    v_lshl_add_u32 v{vt+4}, v{vt+2}, 6, v{vt+4}
    v_lshl_add_u32 v{vt+4}, v{vt+3}, 5, v{vt+4}
    v_add_u32 v{vA+2}, s{s_dm}, v{vt+4}
    v_xor_b32 v{vA+3}, 32, v{vA+2}
    v_mul_u32_u24 v{vt}, 6144, v{vt}
    v_add_u32 v{vt}, v{vt}, v{vt+1}
    v_lshl_add_u32 v{vt}, v{vt+2}, 7, v{vt}
    v_bfe_u32 v{vt+4}, v0, 3, 2
    v_xor_b32 v{vt+4}, s{s_w}, v{vt+4}
    v_lshl_add_u32 v{vB+2}, v{vt+4}, 5, v{vt}
    v_xor_b32 v{vB+3}, 32, v{vB+2}
    v_xor_b32 v{vB+4}, 64, v{vB+2}
    v_xor_b32 v{vB+5}, 0x60, v{vB+2}
    """)
    for i in range(4):
        p(f"v_mov_b32 v{ONES+i}, 0x3f803f80")
    on = rr('v', ONES, 4)
    AB = 48
    CSA = 80
    PA = 84
    FB = 128
    TR = 112
    NR = 8
    Q = lambda x, m: rr('v', 16 + x * 8 + m * 4, 4)
    Sb = lambda x: 64 + 16 * x
    RSV = 112
    Nb = lambda x: 144 + 16 * x
    Ob = lambda x: 176 + 16 * x
    Lb = lambda x: 208 + 4 * x
    Pb = lambda x: 216 + 8 * x
    SEL, vWD, vPF, vDum, vOS, vPW, vCS, vGP, vMA, vRA, vFF = 232, 236, 240, 241, 242, 243, 244, 245, 246, 247, 248

    def att_init():
        for i in list(range(Ob(0), Lb(1) + 4, 2)) + list(range(Pb(1), Pb(1) + 8, 2)):
            p(f"v_pk_mov_b32 {rr('v', i, 2)}, 0, 0")
        for i in range(8): p(f"v_accvgpr_write_b32 a{64 + (NR-1)*8 + i}, 0")
    for i in range(AB, CSA + 4, 2):
        p(f"v_pk_mov_b32 {rr('v', i, 2)}, 0, 0")
    p.add(Raw(f"""    s_or_b32 s{s_t0}, s2, s{s_w}
    s_cbranch_scc1 {name}_noclr
    s_movk_i32 s{s_t0}, {ST_KVC}
""" + "".join(f"    buffer_store_dwordx4 {rr('v', AB, 4)}, v{vL16}, s[{sT}:{sT+3}], s{s_t0} offen offset:{i*1024} sc1\n" for i in range(4)) + f"{name}_noclr:"))
    att_init()
    for i in range(4):
        p(f"v_mov_b32 v{vFF+i}, -1")
    p(f"""
    v_lshrrev_b32 v{vt}, 2, v0
    v_and_b32 v{vt}, 4, v{vt}
    v_xor_b32 v{vt}, v{vt}, v0
    v_and_b32 v{vt}, 7, v{vt}
    v_cmp_eq_u32 vcc, 0, v{vt}
    v_lshrrev_b32 v{vt}, 3, v0
    v_and_b32 v{vt+1}, 6, v{vt}
    v_cndmask_b32 v{SEL}, 0, v{ONES}, vcc
    v_mov_b32 v{SEL+1}, v{SEL}
    v_mov_b32 v{SEL+2}, v{SEL}
    v_mov_b32 v{SEL+3}, v{SEL}
    v_and_b32 v{vt+2}, 7, v0
    v_xor_b32 v{vt+1}, v{vt+1}, v{vt+2}
    v_lshlrev_b32 v{vt+1}, 4, v{vt+1}
    v_lshl_add_u32 v{vWD}, v{vt}, 11, v{vt+1}
    v_add_u32 v{vWD+1}, {8*2048 - 1024}, v{vWD}
    v_add_u32 v{vWD+2}, {16*2048 - 2048}, v{vWD}
    v_add_u32 v{vWD+3}, {24*2048 - 3072}, v{vWD}
    s_lshl_b32 s{s_wdo}, s{s_w}, 16
    s_lshl_b32 s{s_t1}, s{s_j}, 7
    s_add_u32 s{s_wdo}, s{s_wdo}, s{s_t1}
    s_lshl_b32 s{s_wm0}, s{s_w}, 12
    {f's_and_b32 s{s_t0}, s{s_j}, 1' if R3 else ''}
    {f's_lshl_b32 s{s_t0}, s{s_t0}, 16' if R3 else ''}
    {f's_add_u32 s{s_wm0}, s{s_wm0}, s{s_t0}' if R3 else ''}
    s_lshl_b32 s{s_pj}, s{s_tok}, 6
    s_add_u32 s{s_pj}, s{s_pj}, s{s_t1}
    s_lshl_b32 s{s_hd}, s{s_j}, 1
    s_lshr_b32 s{s_t0}, s{s_w}, 1
    s_add_u32 s{s_hd}, s{s_hd}, s{s_t0}
    v_mul_u32_u24 v{vt}, 9363, v0
    v_lshrrev_b32 v{vt}, 16, v{vt}
    v_mul_u32_u24 v{vt+1}, {7168 - 7*128}, v{vt}
    v_cmp_gt_u32 vcc, 14, v0
    v_lshl_add_u32 v{vPF}, v0, 7, v{vt+1}
    s_lshr_b32 s{s_t0}, s2, 3
    v_cndmask_b32 v{vPF}, -1, v{vPF}, vcc
    v_and_b32 v{vPF}, 0x7fffff80, v{vPF}
    s_lshl_b32 s{s_t0}, s{s_t0}, 2
    s_add_u32 s{s_t0}, s{s_t0}, s{s_w}
    s_mul_i32 s{s_pk}, s{s_t0}, {2 * 7168}
    s_and_b32 s{s_t0}, s2, 7
    s_mul_i32 s{s_t0}, s{s_t0}, 896
    s_add_u32 s{s_pk}, s{s_pk}, s{s_t0}
    s_mov_b32 s{s_po}, s{s_pk}
    v_and_b32 v{vt}, 15, v0
    v_bfe_u32 v{vt+1}, v0, 4, 1
    v_lshrrev_b32 v{vt+2}, 5, v0
    v_lshrrev_b32 v{vt+3}, 4, v0
    v_lshlrev_b32 v{vMA}, 3, v{vt}
    v_lshlrev_b32 v{vRA}, 7, v{vt+2}
    v_add_u32 v253, 8192, v{vL16}
    v_lshl_add_u32 v{vPW}, v{vt+3}, 2, v{vMA}
    v_lshlrev_b32 v{vt}, 4, v{vt}
    v_lshl_add_u32 v{vOS}, v{vt+1}, 15, v{vt}
    v_lshl_add_u32 v{vOS}, v{vt+2}, 8, v{vOS}
    s_lshl_b32 s{s_t0}, s{s_w}, 6
    s_add_u32 s{s_t0}, s{s_t0}, {CSQ}
    v_lshl_add_u32 v{vCS}, v{vt+3}, 4, s{s_t0}
    v_lshlrev_b32 v{vGP}, 5, v{vMA}
    s_bitcmp1_b32 s{s_j}, 0
    s_cselect_b32 s{s_t0}, 9, 10
    s_cselect_b32 s{s_t1}, 8, 9
    v_lshl_add_u32 v{vST}, v{vt+1}, s{s_t0}, v{vt}
    v_lshl_add_u32 v{vST}, v{vt+2}, s{s_t1}, v{vST}
    s_mul_i32 s{s_t0}, s{s_w}, 5120
    s_add_u32 s{s_t0}, s{s_t0}, {RED - 5120}
    v_add_u32 v{vST+1}, s{s_t0}, v{vL16}
    v_and_b32 v{vt}, 3, v0
    v_cmp_eq_u32 s[0:1], 1, v{vt}
    v_cmp_eq_u32 s[14:15], 2, v{vt}
    v_cmp_eq_u32 s[74:75], 3, v{vt}
    v_bfe_u32 v{vt}, v0, 2, 2
    v_cmp_eq_u32 vcc, v{vt}, v{vt+3}
    """)
    SMF = o.get('smf', True)
    vIX = 252
    if SMF:
        p(f"""
        v_and_b32 v{vt+5}, 6, v0
        v_cmp_eq_u32 s[{sB}:{sB+1}], 0, v{vt+5}
        """.replace(f"s[{sB}:{sB+1}]", "s[76:77]" if False else "s[58:59]"))
        p(f"""
        v_cndmask_b32 v{SEL}, 0, v{ONES}, s[58:59]
        v_cndmask_b32 v{SEL+1}, 0, v{ONES}, s[58:59]
        v_cmp_eq_u32 s[58:59], 4, v{vt+5}
        v_and_b32 v{vIX}, 1, v0
        v_mul_u32_u24 v{vIX}, 0xaaaa, v{vIX}
        v_cndmask_b32 v{SEL+2}, 0, v{ONES}, s[58:59]
        v_cndmask_b32 v{SEL+3}, 0, v{ONES}, s[58:59]
        v_add_u32 v{vIX}, 0x4444, v{vIX}""")
    smf = lambda x: f"v_smfmac_f32_16x16x64_bf16 {rr('v', Lb(x), 4)}, {rr('v', SEL, 4)}, {rr('v', Pb(x), 8)}, v{vIX}"
    for q in range(EARLY, 4): wkv(q)
    srd(p, sB, pDBG, 256)
    if not o.get('rsfirst', True): rs_loads()
    p.add(Raw("; @stamp 0"))
    X0 = lambda G: rr('a', FB + 4 * G, 4)
    W0 = lambda G, e: rr('a', FB + 32 + (G * 2 + e) * 4, 4)
    acc0 = lambda k: rr('v', PA + 4 * k, 4)

    def rd0(q):
        o_ = []
        for G in (2 * q, 2 * q + 1):
            o_.append(Ins(f"ds_read_b128 {X0(G)}, v{vA + (G & 1)} offset:{q * 2048}", rd=[f'P0{q}']))
            o_ += [Ins(f"ds_read_b64_tr_b16 {rr('a', FB + 32 + (G*2+e)*4 + 2*b, 2)}, v{vA+2+e} offset:{8192 + G*2048 + b*256}")
                   for e in range(2) for b in range(2)]
        return o_

    def mf0(q):
        o_ = []
        for G in (2 * q, 2 * q + 1):
            c = "0" if G == 0 else None
            o_ += [mf16(acc0(4), on, X0(G), c), mf16(acc0(5), X0(G), X0(G), c), mf16(acc0(0), W0(G, 0), X0(G), c),
                   mf16(acc0(2), W0(G, 0), on, c), mf16(acc0(1), W0(G, 1), X0(G), c), mf16(acc0(3), W0(G, 1), on, c)]
        return o_
    p.add(rd0(0))
    p.add(Raw("; @fine 6"))
    later = dma1(f"s_mov_b32 m0, s{s_w6}", 'L0') + dma1(f"s_add_u32 m0, s{s_w6}, {SL}", 'Lx')

    def some(k):
        n = 0
        while later and n < k:
            x = later.pop(0); p.add(x); n += x.kind == 'vmem'
    RSA = PA + 24
    for q in range(4):
        rds = rd0(q + 1) if q < 3 else []
        for i, m in enumerate(mf0(q)):
            p(m)
            if rds: p.add(rds.pop(0))
            if i % 4 == 1: some(1)
    assert EARLY < 4
    p.add(Raw(f"""    s_or_b32 s{s_t0}, s2, s{s_w}
    s_cbranch_scc1 {name}_nordy
    buffer_store_dword v{vOne}, v{vZ}, s[{sB}:{sB+3}], 0 offen sc1
{name}_nordy:"""))
    p(mf16(rr('v', RSA, 4), on, rr('v', vRS, 4), "0"))
    p(mf16(rr('v', RSA, 4), on, rr('v', vRS + 4, 4)))
    some(99)
    p.add(Raw("; @fine 7"))
    g = PA + 20
    p(f"""
    v_cndmask_b32 v{g}, v{g}, v{g+1}, s[0:1]
    v_cndmask_b32 v{g}, v{g}, v{g+2}, s[14:15]
    v_cndmask_b32 v{g}, v{g}, v{g+3}, s[74:75]
    v_cndmask_b32 v{PA+17}, 0, v{g}, vcc
    v_cmp_eq_u32 vcc, s{s_w}, v0""")
    for k in (8, 4, 2, 1):
        p(f"v_add_f32_dpp v{RSA}, v{RSA}, v{RSA} row_ror:{k} row_mask:0xf bank_mask:0xf")
    p(f"""
    v_cndmask_b32 v{PA+18}, 0, v{RSA}, vcc
    s_cmp_eq_u32 s{s_w}, 0
    s_cbranch_scc1 {name}_p0fin
    """)
    red_w = p.segment()
    for k in (4, 0, 2, 1, 3):
        p(f"ds_write_b128 v{vST+1}, {acc0(k)} offset:{k*1024}")
    p("s_waitcnt lgkmcnt(0)")
    p("s_barrier")
    p(f"s_branch {name}_p1")
    fin = p.segment()
    p(f"{name}_p0fin:")
    p(f"""
    s_lshl_b32 s{s_t0}, s2, 7
    s_mov_b32 s{s_t1}, {f32hex(1.0/1024)}
    v_lshlrev_b32 v{vt+3}, 2, v0
    s_add_u32 s{s_t0}, s{s_t0}, {ST_RS2}""")
    p("s_barrier")
    for k in (4, 0, 2, 1, 3):
        for w in range(3):
            p(f"ds_read_b128 {rr('v', TR + (k*3+w)*4, 4)}, v{vST+1} offset:{5120*(w+1) + k*1024}")

    def red(k):
        a, b = PA + 4 * k, TR + k * 12
        for h in (0, 2):
            p(f"v_pk_add_f32 {rr('v', a+h, 2)}, {rr('v', a+h, 2)}, {rr('v', b+h, 2)}")
            p(f"v_pk_add_f32 {rr('v', b+4+h, 2)}, {rr('v', b+4+h, 2)}, {rr('v', b+8+h, 2)}")
        for h in (0, 2):
            p(f"v_pk_add_f32 {rr('v', a+h, 2)}, {rr('v', a+h, 2)}, {rr('v', b+4+h, 2)}")
    vM, vR = PA + 20, PA + 21
    d = PA + 24
    red(4)
    p(f"""
    s_mov_b32 exec_hi, 0
    buffer_store_dword v{PA+18}, v{vt+3}, s[{sT}:{sT+3}], s{s_t0} offen sc1
    s_mov_b32 exec_hi, -1""")
    xsum16_32(p, f"v{PA+17}", f"v{vt}")
    p(f"""
    v_mul_f32 v{vM}, s{s_t1}, v{PA+16}
    v_mul_f32 v{vt}, v{vM}, v{vM}
    v_fma_f32 v{vt}, v{PA+17}, s{s_t1}, -v{vt}
    v_max_f32 v{vt}, 0, v{vt}
    v_add_f32 v{vt}, {f32hex(1e-5)}, v{vt}
    v_rsq_f32 v{vR}, v{vt}
    s_lshr_b32 s{s_t0}, s{s_kv}, 5
    s_lshl_b32 s{s_t0}, s{s_t0}, 12
    s_bfe_u32 s{s_t1}, s{s_kv}, 0x10004
    """)
    mr = rr('v', vM, 2)
    for e in range(2):
        red(e); red(2 + e)
        a = PA + 4 * e
        for r in (0, 2): p(f"v_pk_fma_f32 {rr('v', a+r, 2)}, {rr('v', a+8+r, 2)}, {mr}, {rr('v', a+r, 2)} op_sel_hi:[1,0,1] neg_lo:[0,1,0] neg_hi:[0,1,0]")
        for r in (0, 2): p(f"v_pk_mul_f32 {rr('v', a+r, 2)}, {rr('v', a+r, 2)}, {mr} op_sel:[0,1]")
        p(f"v_cvt_pk_bf16_f32 v{d+2*e}, v{a}, v{a+1}")
        p(f"v_cvt_pk_bf16_f32 v{d+2*e+1}, v{a+2}, v{a+3}")
    p(f"""
    s_bitcmp1_b32 s{s_j}, 0
    s_cbranch_scc1 {name}_p0v
    """)
    fin_k = p.segment()
    p(f"""
    s_lshl_b32 s{s_t1}, s{s_t1}, 8
    s_add_u32 s{s_t0}, s{s_t0}, s{s_t1}
    buffer_store_dwordx4 {rr('v', d, 4)}, v{vST}, s[{sA}:{sA+3}], s{s_t0} offen sc1
    s_lshl_b32 s{s_t0}, s{s_kv}, 3
    s_mov_b64 exec, 0xffff
    buffer_store_dwordx2 {mr}, v{vMA}, s[{sT}:{sT+3}], s{s_t0} offen offset:{ST_MR} sc1
    s_mov_b64 exec, -1
    s_branch {name}_p1""")
    fin_v = p.segment()
    p(f"""
    {name}_p0v:
    v_lshrrev_b32 v{vt+1}, 4, v0
    v_add_u32 v{vt}, v{vt+1}, v{vMA}
    v_lshlrev_b32 v{vt}, 3, v{vt}
    v_add_u32 v{vt}, {RED}, v{vt}
    ds_write_b64 v{vt}, {rr('v', d, 2)}
    ds_write_b64 v{vt}, {rr('v', d+2, 2)} offset:32
    v_lshrrev_b32 v{vt+3}, 2, v0
    v_lshlrev_b32 v{vt+3}, 6, v{vt+3}
    v_and_b32 v{vt+4}, 3, v0
    v_lshl_add_u32 v{vt+3}, v{vt+4}, 3, v{vt+3}
    v_add_u32 v{vt+3}, {RED}, v{vt+3}
    ds_read_b64_tr_b16 {rr('v', PA, 2)}, v{vt+3}
    ds_read_b64_tr_b16 {rr('v', PA+2, 2)}, v{vt+3} offset:32
    s_lshl_b32 s{s_t1}, s{s_t1}, 10
    s_add_u32 s{s_t0}, s{s_t0}, s{s_t1}
    v_permlane32_swap_b32 v{PA}, v{PA+2}
    v_permlane32_swap_b32 v{PA+1}, v{PA+3}
    buffer_store_dwordx4 {rr('v', PA, 4)}, v{vST}, s[{sA}:{sA+3}], s{s_t0} offen offset:2048 sc1
    """)

    rest = p.segment()
    p(f"{name}_p1:")
    p.add(Raw("; @stamp 1"))
    ACC = lambda F, t: rr('v', AB + (F * 2 + t) * 4, 4)
    X1 = lambda s, t, g: rr('a', FB + s * 48 + (t * 2 + g) * 4, 4)
    W1 = lambda s, F, g: rr('a', FB + s * 48 + 16 + (F * 2 + g) * 4, 4)

    def reads1(s, base, va):
        xr = lambda t, g: Ins(f"ds_read_b128 {X1(s, t, g)}, v{va+g} offset:{base + t*2048}")
        wr = lambda F, g, b: Ins(f"ds_read_b64_tr_b16 {rr('a', FB + s*48 + 16 + (F*2+g)*4 + 2*b, 2)}, v{va+2+F} offset:{base + 2*g*6144 + 4096 + b*512}")
        return [wr(0, 0, 0), wr(0, 0, 1), wr(0, 1, 0), wr(0, 1, 1), xr(0, 0), xr(0, 1), xr(1, 0), xr(1, 1)] + \
               [wr(F, g, b) for F in range(1, 4) for g in range(2) for b in range(2)]
    p(f"""
    s_lshl_b32 s{s_t0}, s2, 2
    s_add_u32 s{s_t0}, s{s_t0}, s{s_w}
    s_lshl_b32 s{s_t0}, s{s_t0}, 10
    s_add_u32 s{s_t0}, s{s_t0}, {ST_FO}
    buffer_store_dwordx4 {rr('v', AB, 4)}, v{vL16}, s[{sT}:{sT+3}], s{s_t0} offen sc1""")
    rdy = f"buffer_load_dword v{vt+5}, v{vZ}, s[{sB}:{sB+3}], 0 offen sc1"
    for u in range(2, 5):
        if u == 2: p.add(Raw(f"    s_cmp_lg_u32 s{s_w}, 0\n    s_cbranch_scc1 {name}_nor\n    {rdy}\n{name}_nor:"))
        p.add(dma1(f"s_add_u32 m0, s{s_w6}, {u*SL}", 'Lx'))
    p.add(Raw("; @fine 8"))
    p("s_barrier", rd=['L0'])
    p.add(Raw("; @fine 9"))
    p.add(reads1(0, 0, vB))
    for i in range(6):
        p(f"v_mov_b32 v{vA+i}, v{vB+i}")
    p(f"""
    s_mov_b32 s{s_pb}, {2 * SL}
    s_add_u32 s{s_dm}, s{s_w6}, {2 * 2 * SL}
    s_and_b32 s{s_kv}, s2, 15
    s_lshl_b32 s{s_kv}, s{s_kv}, 8
    s_add_u32 s{s_kv}, s{s_kv}, {ST_KVC}
    s_mov_b32 s{s_spin}, {SPIN}
    s_lshl_b32 s{s_t2}, s{s_w}, 8
    s_add_u32 s{s_t2}, s{s_t2}, 5
    s_mov_b32 s{s_cnt}, 5""")

    def stage1(s, head, fill, rds):
        mf = [mf16(rr('v', CSA, 4), W1(s, 0, g), on) for g in range(2)]
        for F in range(4):
            mf += [mf16(ACC(F, t), W1(s, F, g), X1(s, t, g)) for t, g in zz(F, 2, 2, ZZ)]
        p.add(head)
        rds = list(rds)
        for i, m in enumerate(mf):
            if 'p1nomf' not in dbg: p(m)
            for _ in range(2 if i in (0, 1) else 1):
                if rds:
                    x = rds.pop(0)
                    if 'p1nods' not in dbg: p.add(x)
            p.add([x for x in fill.get(i, []) if not ('p1nodma' in dbg and getattr(x, 'kind', '') == 'vmem')])

    def one_per_gap(lst, start):
        return {start + i: [x] for i, x in enumerate(lst)}

    def spaced(lst):
        pos = [0, 1, 2, 5, 8, 11, 12, 13, 14, 17, 17]
        out = {}
        for k, x in zip(pos, lst): out.setdefault(k, []).append(x)
        return out
    upd = lambda: {3: [Ins(f"v_add_u32 v{vA+2}, s{s_pb}, v{vB+2}")], 6: [Ins(f"v_add_u32 v{vA}, s{s_pb}, v{vB}")],
                   7: [Ins(f"v_add_u32 v{vA+1}, s{s_pb}, v{vB+1}")], 10: [Ins(f"v_add_u32 v{vA+3}, s{s_pb}, v{vB+3}")],
                   15: [Ins(f"v_add_u32 v{vA+4}, s{s_pb}, v{vB+4}")], 17: [Ins(f"v_add_u32 v{vA+5}, s{s_pb}, v{vB+5}")]}
    nextpb = lambda: [Ins(f"s_add_u32 s{s_pb}, s{s_pb}, {2*SL}"), Ins(f"s_cmp_eq_u32 s{s_pb}, {6*SL}"), Ins(f"s_cselect_b32 s{s_pb}, 0, s{s_pb}")]

    def merge(*fs):
        out = {}
        for f in fs:
            for k, v in f.items(): out.setdefault(k, []).extend(v)
        return out
    sync = lambda n: [Ins(f"s_waitcnt vmcnt({n}) lgkmcnt(12)"), Ins("s_barrier")]
    s_nx = s_t0
    p(f"s_mov_b32 s{s_nx}, s{s_w6}")
    p.add(Raw("; @fine 10"))
    p.begin_loop(f"{name}_p1loop", 5, align=False)
    stage1(0, sync(18), merge(spaced(dma1(f"s_add_u32 m0, s{s_dm}, {SL}", 'Lx')[:-1]), upd(), {16: [Ins(f"s_and_b32 s{s_xoff}, s{s_xoff}, 2047")]}), reads1(1, SL, vA))
    arr = Raw(f"""    s_cmp_lg_u32 s{s_cnt}, s{s_t2}
    s_cbranch_scc1 {name}_noarr
{name}_rchk:
    v_readfirstlane_b32 s{s_t1}, v{vt+5}
    s_sub_u32 s{s_spin}, s{s_spin}, 1
    s_cselect_b32 s{s_t1}, 1, s{s_t1}
    s_cmp_lg_u32 s{s_t1}, 0
    s_cbranch_scc1 {name}_arr
    {rdy}
    s_waitcnt vmcnt(0)
    s_branch {name}_rchk
{name}_arr:
    buffer_atomic_add v{vOne}, v{vZ}, s[{sT}:{sT+3}], s{s_kv} offen
{name}_noarr:""")
    stage1(1, sync(18) + [arr], merge({3: [Ins(f"s_mov_b32 s{s_dm}, s{s_nx}")], 4: [Ins(f"s_add_u32 s{s_nx}, s{s_pb}, s{s_w6}")],
                                        6: nextpb()[:1], 7: nextpb()[1:], 9: [Ins(f"s_sub_u32 s{s_cnt}, s{s_cnt}, 1")],
                                        15: [Ins(f"s_and_b32 s{s_xoff}, s{s_xoff}, 2047")], 16: [Ins(f"s_cmp_lg_u32 s{s_cnt}, 0")]},
                                       spaced(dma1(f"s_mov_b32 m0, s{s_nx}", 'Lx')[:-1])), reads1(0, 0, vA))
    p(f"s_cbranch_scc1 {name}_p1loop")
    p.end_loop()
    p.add(Raw("; @fine 11"))
    Kf = lambda b, m: rr('a', (b % NR) * 8 + m * 4, 4)
    Vf = lambda b, m: rr('a', 64 + (b % NR) * 8 + m * 4, 4)
    vMR = 84
    kld = lambda b, m: Ins(f"buffer_load_dwordx4 {Kf(b, m)}, v{vL16}, s[{sA}:{sA+3}], s{s_ko} offen offset:{m*1024} {KVSC}")
    vld = lambda b, m: Ins(f"buffer_load_dwordx4 {Vf(b, m)}, v{vL16}, s[{sA}:{sA+3}], s{s_vo} offen offset:{2048 + m*1024} {KVSC}")

    vK2 = 253
    kld2 = lambda b, m: Ins(f"buffer_load_dwordx4 {Kf(b, m)}, v{vK2}, s[{sA}:{sA+3}], s{s_vo} offen offset:{m*1024} {KVSC}")

    def kv_list():
        o_ = [Ins(f"s_mov_b32 s{s_ko}, 0"), Ins(f"s_mov_b32 s{s_vo}, 0")]
        for b in range(NR):
            o_ += [kld(b, 0), kld(b, 1), Ins(f"s_add_u32 s{s_ko}, s{s_ko}, 4096")]
            if b < NR - 2:
                o_ += [vld(b, 0), vld(b, 1), Ins(f"s_add_u32 s{s_vo}, s{s_vo}, 4096")]
        return o_

    def fill_kv():
        p.add(kv_list())
    gl = f"buffer_load_dword v{vt+5}, v{vGP}, s[{sT}:{sT+3}], s{s_kv} offen sc1"
    stage1(0, sync(18), merge(spaced(dma1(f"s_add_u32 m0, s{s_dm}, {SL}", 'Lx')[:-1]), upd(), {16: [Ins(f"s_and_b32 s{s_xoff}, s{s_xoff}, 2047")]}), reads1(1, SL, vA))
    gp = Raw(f"""    s_branch {name}_gchk
{name}_gpoll:
    {gl}
    s_waitcnt vmcnt(0)
{name}_gchk:
    v_cmp_gt_u32 vcc, 16, v{vt+5}
    s_sub_u32 s{s_spin}, s{s_spin}, 1
    s_cbranch_scc1 {name}_gdone
    s_cbranch_vccnz {name}_gpoll
{name}_gdone:""")
    todo = [Ins(f"buffer_load_dwordx2 {rr('v', vMR+2*t, 2)}, v{vMA}, s[{sT}:{sT+3}], s{s_t0} offen offset:{ST_MR + 128*t} sc1") for t in range(2)] + kv_list()

    def take(k):
        o_, n = [], 0
        while todo and n < k:
            x = todo.pop(0); o_.append(x); n += x.kind == 'vmem'
        return o_
    PS = o.get('pstage', 13)
    for u in range(11, 16):
        head = sync(6 * (14 - u)) if u < PS else [Raw("; @fine 12")] + sync(0) + [Raw("; @fine 13"), gp, Raw("; @fine 14")] if u == PS else []
        fill = {11: one_per_gap(nextpb(), 8), 12: upd(), 15: {10: [Ins(f"ds_write_b128 v{vCS}, {rr('v', CSA, 4)}")]}}.get(u, {})
        if u == PS - 1:
            fill = merge(fill, {2: [Ins(f"s_movk_i32 s{s_kv}, {ST_KVC}")], 4: [Ins(gl)], 5: [Ins(f"s_mov_b32 s{s_spin}, {SPIN}")],
                                11: [Ins(f"s_lshl_b32 s{s_t0}, s{s_tok}, 3")]})
        if u >= PS:
            fill = merge(fill, {i: take(1) for i in range(2, 18, 3)})
        stage1(u & 1, head, fill, reads1(1 - (u & 1), 0 if u & 1 else SL, vA) if u < 15 else [])
    p.add(Raw("; @stamp 2"))

    p("s_waitcnt lgkmcnt(0)")
    p("s_barrier")
    CS = 88
    for f in range(4):
        if f: p(f"v_xor_b32 v{vt+f}, {f*64}, v{vCS}")
        p(f"ds_read_b128 {rr('v', CS + 4*f, 4)}, v{vt+f if f else vCS}")
    XT = 131072
    QP = 112
    for t in range(2):
        p(f"v_accvgpr_write_b32 a{aMEAN+t}, v{vMR+2*t}")
        p(f"v_mul_f32 v{vMR+2*t+1}, {f32hex(LOG2E * DH ** -0.5)}, v{vMR+2*t+1}")
    p(f"s_bitcmp1_b32 s{s_w}, 0\ns_cselect_b64 vcc, -1, 0")
    for hd in range(2):
        for t in range(2):
            mr = rr('v', vMR + 2 * t, 2)
            for f in range(2):
                F = 2 * hd + f
                a = AB + (F * 2 + t) * 4
                dq = QP + hd * 8 + t * 4 + 2 * f
                for r in (0, 2): p(f"v_pk_fma_f32 {rr('v', a+r, 2)}, {rr('v', CS+4*F+r, 2)}, {mr}, {rr('v', a+r, 2)} op_sel_hi:[1,0,1] neg_lo:[0,1,0] neg_hi:[0,1,0]")
                for r in (0, 2): p(f"v_pk_mul_f32 {rr('v', a+r, 2)}, {rr('v', a+r, 2)}, {mr} op_sel:[0,1]")
                p(f"v_cvt_pk_bf16_f32 v{dq}, v{a}, v{a+1}")
                p(f"v_cvt_pk_bf16_f32 v{dq+1}, v{a+2}, v{a+3}")
                p.add(take(1))
        for i in range(8 * hd, 8 * hd + 8):
            p(f"v_cndmask_b32 v{16+i}, v{QP+i}, v{QP+(i^2)}, vcc")
        p.add(take(1))
        for i in range(4):
            p(f"v_permlane16_swap_b32 v{16+hd*8+i}, v{16+hd*8+4+i}")
    if 'Q' in dbg:
        srd(p, sB, pWS, QF[1], bias=QF[0])
        p(f"s_lshl_b32 s{s_t0}, s{s_hd}, 17\ns_lshl_b32 s{s_t1}, s{s_tok}, 6\ns_add_u32 s{s_t0}, s{s_t0}, s{s_t1}\ns_xor_b32 s{s_t1}, s{s_t0}, 0x20000")
        for x in range(2):
            for m in range(2):
                p(f"buffer_store_dwordx4 {Q(x, m)}, v{vL16}, s[{sB}:{sB+3}], s{s_t1 if x else s_t0} offen offset:{m*1024}")
    s_safe, s_fo = 65, 61
    TO = {0: (pWG, pWU, pWD), 1: (pWD, pWG, pWU)}[o.get('torder', 0)]
    SENT = o.get('sent', False)
    p(f"""
    s_mov_b64 s[{sD}:{sD+1}], s[{TO[0]}:{TO[0]+1}]
    s_mov_b32 s{sD+2}, {D * FF * 2 if o.get('prefetch', True) else 0}
    s_mov_b32 s{s_safe}, 0
    s_lshl_b32 s{s_fo}, s{s_b}, 4
    s_add_u32 s{s_fo}, s{s_fo}, s{s_j}
    s_lshl_b32 s{s_fo}, s{s_fo}, 2
    s_add_u32 s{s_fo}, s{s_fo}, s{s_w}
    s_lshl_b32 s{s_fo}, s{s_fo}, 13
    s_add_u32 s{s_fo}, s{s_fo}, {XC[0] - OF[0]}
    """)
    srd(p, sB, pWS, XC[0] + XC[1] - OF[0], bias=OF[0])

    def half(x, Kb, Vb, C, extra):
        y = 1 - x
        Sx, Px, Sy, Py = Sb(x), Pb(x), rr('v', Sb(y), 16), Pb(y)
        valu = []
        for i in range(8):
            valu.append(f"v_exp_f32 v{Sx+2*i}, v{Sx+2*i}")
            valu.append(f"v_exp_f32 v{Sx+2*i+1}, v{Sx+2*i+1}")
            if i > 0:
                valu.append(f"v_cvt_pk_bf16_f32 v{Px+i-1}, v{Sx+2*i-2}, v{Sx+2*i-1}")
        valu.append(f"v_cvt_pk_bf16_f32 v{Px+7}, v{Sx+14}, v{Sx+15}")
        Oy, Ly = rr('v', Ob(y), 16), rr('v', Lb(y), 4)
        sel = rr('v', SEL, 4)
        mf = [mf32(Sy, Kf(Kb, 0), Q(y, 0), C(y)), mf32(Sy, Kf(Kb, 1), Q(y, 1)),
              mf32(Oy, Vf(Vb, 0), rr('v', Py, 4)), mf16(Ly, sel, rr('v', Py, 4)),
              mf32(Oy, Vf(Vb, 1), rr('v', Py + 4, 4)), mf16(Ly, sel, rr('v', Py + 4, 4))]
        pos = (0, 4, 8, 12, 15, 19)
        if SMF:
            mf = [mf[0], mf[1], mf[2], mf[4], smf(y)]
            pos = o.get('apos', (0, 5, 10, 15, 20))
        for i, v in enumerate(valu):
            if i in pos:
                k = pos.index(i)
                p(mf[k])
                p.add(extra.get(k, []))
            p(v)

    def attention(tag, C, side, pre):
        p(mf32(rr('v', Sb(0), 16), Kf(0, 0), Q(0, 0), C(0)))
        p(mf32(rr('v', Sb(0), 16), Kf(0, 1), Q(0, 1)))
        p(f"s_mov_b32 s{s_cnt}, {64 // NR}")
        p.add(pre)
        p.begin_loop(f"{name}_{tag}_loop", 64 // NR)
        for kt in range(NR):
            e0 = {0: [vld(kt + NR - 2, 0)], 1: [vld(kt + NR - 2, 1)],
                  4: [Ins(f"wait {Kf(kt+1, 0)}, {Kf(kt+1, 1)}, {Vf(kt, 0)}, {Vf(kt, 1)}")]}
            e1 = {0: [kld2(kt, 0)], 1: [kld2(kt, 1)], 2: [Ins(f"s_add_u32 s{s_vo}, s{s_vo}, 4096")]}
            if side:
                if kt == 0: e0[2] = [Ins(f"s_and_b32 m0, s{s_wm0}, 0x1ffff")]
                if kt % 2 == 0 and 'nowodma' not in dbg:
                    i = kt // 2
                    e0[3] = [Ins(f"buffer_load_dwordx4 v{vWD+i}, s[{sE}:{sE+3}], s{s_wdo} offen offset:{i*1024} lds", awr=['LW'], nowaw=True)]
                if kt == 0: e1[3] = [Ins(f"s_add_u32 s{s_wm0}, s{s_wm0}, 16384")]
                if kt in (1, 3):
                    e0[2] = [Ins(f"buffer_load_dword v{vDum}, v{vPF}, s[{sD}:{sD+3}], s{s_po} offen", nowaw=True)]
                    e0[3] = [Ins(f"s_add_u32 s{s_po}, s{s_po}, {256 * 7168}")]
                if kt in (3, 4):
                    e1[3] = [Ins(f"s_cmp_eq_u32 s{s_cnt}, {7 if kt == 3 else 5}")]
                    e1[4] = [Ins(f"s_cselect_b32 s{s_po}, s{s_pk}, s{s_po}")]
                if kt in (4, 5):
                    w_ = TO[1] if kt == 4 else TO[2]
                    e0[2] = [Ins(f"s_cselect_b64 s[{sD}:{sD+1}], s[{w_}:{w_+1}], s[{sD}:{sD+1}]")]
                if kt == 6: e1[3] = [Ins(f"s_add_u32 s{s_wdo}, s{s_wdo}, {128 * 2048}")]
                if kt == 7:
                    e0[2] = [Ins(f"s_cmp_eq_u32 s{s_cnt}, 2")]
                    e0[3] = [Raw(f"    s_cbranch_scc1 {name}_rsx\n{name}_rsxback:")]
            if kt == NR - 1:
                e1[3] = [Ins(f"s_sub_u32 s{s_cnt}, s{s_cnt}, 1")]
                e1[4] = [Ins(f"s_cmp_lg_u32 s{s_cnt}, 0")]
            half(0, kt, kt - 1, C, e0)
            half(1, kt + 1, kt, C, e1)
        p(f"s_cbranch_scc1 {name}_{tag}_loop")
        p.end_loop()
        O1, L1, sel = rr('v', Ob(1), 16), rr('v', Lb(1), 4), rr('v', SEL, 4)
        p(mf32(O1, Vf(NR - 1, 0), rr('v', Pb(1), 4)))
        if not SMF: p(mf16(L1, sel, rr('v', Pb(1), 4)))
        p(mf32(O1, Vf(NR - 1, 1), rr('v', Pb(1) + 4, 4)))
        p(smf(1) if SMF else mf16(L1, sel, rr('v', Pb(1) + 4, 4)))

    pre = take(99)
    if o.get('ipf', True):
        pre += [Ins(x.strip()) for x in f"""s_getpc_b64 s[74:75]
        s_lshr_b32 s{s_t0}, s2, 3
        s_lshl_b32 s{s_t0}, s{s_t0}, 2
        s_add_u32 s{s_t0}, s{s_t0}, s{s_w}
        s_mul_i32 s{s_t0}, s{s_t0}, 384
        s_min_u32 s{s_t0}, s{s_t0}, {name}_end-{name}_fast_loop
        v_min_u32 v4, 2, v0
        v_lshl_add_u32 v4, v4, 7, s{s_t0}""".split("\n")]
        pre.append(Ins(f"global_load_dword v{vDum}, v4, s[74:75]", nowaw=True))
    if len(pre) < 12: pre.append(Ins(f"s_nop {11 - len(pre)}"))
    pre.append(Raw("; @stamp 3"))
    attention('fast', lambda y: "0", 'noside' not in dbg, pre)
    p.add(Raw("; @stamp 4"))
    p(f"""
    {name}_fin:
    v_add_f32 v{Lb(0)}, v{Lb(0)}, v{Lb(0)+1}
    v_rcp_f32 v{Lb(0)+2}, v{Lb(0)}
    s_lshl_b32 s{s_t0}, s{s_tok}, 1
    s_add_u32 s{s_t0}, s{s_t0}, s{s_hd}
    s_lshl_b32 s{s_t0}, s{s_t0}, 10
    s_xor_b32 s{s_t1}, s{s_t0}, 1024
    """)
    for x in range(2):
        if x: p(f"v_add_f32 v{Lb(1)}, v{Lb(1)}, v{Lb(1)+1}\nv_rcp_f32 v{Lb(1)+2}, v{Lb(1)}")
        for a in range(2):
            for i in range(8 * a, 8 * a + 8, 2):
                p(f"v_pk_mul_f32 {rr('v', Ob(x)+i, 2)}, {rr('v', Ob(x)+i, 2)}, {rr('v', Lb(x)+2, 2)} op_sel_hi:[1,0]")
            for i in range(4 * a, 4 * a + 4):
                p(f"v_cvt_pk_bf16_f32 v{Pb(x)+i}, v{Ob(x)+2*i}, v{Ob(x)+2*i+1}")
            p(f"buffer_store_dwordx4 {rr('v', Pb(x)+4*a, 4)}, v{vOS}, s[{sB}:{sB+3}], s{s_t1 if x else s_t0} offen offset:{a*512} sc1")
    p(f"v_pk_mul_f32 v[{vt+2}:{vt+3}], {rr('v', Ob(0), 2)}, {rr('v', RSV, 2)}")
    p(f"v_pk_mul_f32 v[{vt+4}:{vt+5}], {rr('v', Ob(0)+2, 2)}, {rr('v', RSV+2, 2)}")
    for i in range(2, 16):
        k = vt + 2 + 2 * (i & 1)
        p(f"v_pk_fma_f32 v[{k}:{k+1}], {rr('v', Ob(0)+2*i, 2)}, {rr('v', RSV+2*i, 2)}, v[{k}:{k+1}]")
    p(f"""
    v_pk_add_f32 v[{vt+2}:{vt+3}], v[{vt+2}:{vt+3}], v[{vt+4}:{vt+5}]
    v_add_f32 v{vt+2}, v{vt+2}, v{vt+3}
    v_mov_b32 v{vt+3}, v{vt+2}
    s_add_u32 s{s_t0}, s{s_pj}, {ST_MP}
    s_mov_b32 s{s_t1}, {f32hex(2.0**-40)}
    v_permlane32_swap_b32 v{vt+2}, v{vt+3}
    v_add_f32 v{vt+2}, v{vt+2}, v{vt+3}
    s_mov_b32 exec_hi, 0
    buffer_store_dword v{vt+2}, v{vPW}, s[{sT}:{sT+3}], s{s_t0} offen sc1
    s_mov_b32 exec_hi, -1
    """)
    p(f"""
    v_cmp_nle_f32 s[0:1], s{s_t1}, v{Lb(0)}
    v_cmp_nle_f32 s[14:15], s{s_t1}, v{Lb(1)}
    s_mov_b32 s{s_t1}, {f32hex(2.0**40)}
    v_cmp_nge_f32 s[74:75], s{s_t1}, v{Lb(0)}
    v_cmp_nge_f32 vcc, s{s_t1}, v{Lb(1)}
    s_or_b64 s[0:1], s[0:1], s[14:15]
    s_movk_i32 s{s_t1}, 0x207
    v_cmp_class_f32 s[14:15], v{vt+2}, s{s_t1}
    s_or_b64 s[0:1], s[0:1], s[74:75]
    s_or_b64 s[0:1], s[0:1], vcc
    s_or_b64 s[0:1], s[0:1], s[14:15]
    s_cselect_b32 s{s_t1}, 1, 0
    s_cmp_gt_u32 s{s_t1}, s{s_safe}
    {'' if 'nocheck' in dbg else f's_cbranch_scc1 {name}_slow'}
    """)

    SPLIT = True
    s_c, s_xo, s_xe, s_xend = 61, 62, 63, 64
    vX1, vA3 = 12, 16
    WB, AB3 = 40, 104
    vPT = 20
    LEAD = 12
    ACS = lambda F, t: rr('v', AB3 + (F * 2 + t) * 4, 4)

    class Shape:
        def __init__(self, NF, off):
            self.NF, self.NG, self.off = NF, 16 // NF, off
        def X(self, slot, t, G): return rr('a', slot * 8 * self.NG + (t * self.NG + G) * 4, 4)
        def Xall(self, slot): return ", ".join(self.X(slot, t, G) for t in range(2) for G in range(self.NG))
        def W(self, F, G): return rr('v', WB + (F * self.NG + G) * 4, 4)
        def rd(self, slot, n):
            F, G, b = n // (2 * self.NG), (n >> 1) % self.NG, n & 1
            return Ins(f"ds_read_b64_tr_b16 {rr('v', WB + 2*n, 2)}, v{vA3 + (F & 3)} offset:{slot*16384 + self.off(F, G, b)}")
        def xld(self, slot):
            o_ = [Ins(f"s_cmp_lt_u32 s{s_xo}, s{s_xend}"), Ins(f"s_cselect_b32 s{s_xe}, s{s_xo}, s{sB+2}")]
            for t in range(2):
                for G in range(self.NG):
                    o_.append(Ins(f"buffer_load_dwordx4 {self.X(slot, t, G)}, v{vX1 if t else vL16}, s[{sB}:{sB+3}], s{s_xe} offen offset:{G*1024} sc1"))
            o_.append(Ins(f"s_add_u32 s{s_xo}, s{s_xo}, {self.NG * 1024}"))
            return o_
    sh4 = Shape(4, lambda F, G, b: G * 4096 + b * 1024)
    sh8 = Shape(8, lambda F, G, b: G * 8192 + (F >> 2) * 2048 + b * 1024)

    def wread_addr(blk):
        p(f"""
        v_bfe_u32 v{vt}, v0, 2, 3
        v_lshrrev_b32 v{vt+1}, 1, v{vt}
        v_lshlrev_b32 v{vt+1}, 5, v{vt+1}
        v_lshl_add_u32 v{vt}, v{vt}, 7, v{vt+1}
        v_lshrrev_b32 v{vt+1}, 5, v0
        v_lshl_add_u32 v{vt}, v{vt+1}, {blk}, v{vt}
        v_and_b32 v{vt+1}, 3, v0
        v_lshl_add_u32 v{vA3}, v{vt+1}, 3, v{vt}
        v_xor_b32 v{vA3+1}, 32, v{vA3}
        v_xor_b32 v{vA3+2}, 64, v{vA3}
        v_xor_b32 v{vA3+3}, 0x60, v{vA3}""")

    def table_load(aq, soff, blk=0):
        for i in range(4):
            p(f"buffer_load_dwordx2 {rr('v', aq + 2*i, 2)}, v{vPT}, s[{sT}:{sT+3}], s{soff} offen offset:{blk*2048 + i*128} sc1")

    def table_sum(aq, dst):
        p(f"""
        v_pk_add_f32 {rr('v', aq, 2)}, {rr('v', aq, 2)}, {rr('v', aq+2, 2)}
        v_pk_add_f32 {rr('v', aq+4, 2)}, {rr('v', aq+4, 2)}, {rr('v', aq+6, 2)}
        v_pk_add_f32 {rr('v', dst, 2)}, {rr('v', aq, 2)}, {rr('v', aq+4, 2)}""")
        for sw in (16, 32):
            p(f"""
            v_pk_mov_b32 {rr('v', aq, 2)}, {rr('v', dst, 2)}, {rr('v', dst, 2)} op_sel:[0,1]
            v_permlane{sw}_swap_b32 v{dst}, v{aq}
            v_permlane{sw}_swap_b32 v{dst+1}, v{aq+1}
            v_pk_add_f32 {rr('v', dst, 2)}, {rr('v', dst, 2)}, {rr('v', aq, 2)}""")

    def rstd_from(aq, dst):
        table_sum(aq, dst)
        for t in range(2):
            p(f"v_fma_f32 v{dst+t}, v{dst+t}, s{s_t1}, v{vt+4}")
        for t in range(2):
            p(f"v_rsq_f32 v{dst+t}, v{dst+t}")

    p(f"""
    s_add_u32 s{s_xe}, s{s_pj}, {ST_FO}
    s_andn2_b32 s{s_c}, s{s_xe}, 2047
    s_lshl_b32 s{s_xo}, s{s_tok}, 11
    s_lshl_b32 s{s_xend}, s{s_tok}, 6
    s_add_u32 s{s_xend}, s{s_xend}, {ST_MP}""")
    if R3:
        p(f"s_and_b32 s{s_t0}, s{s_j}, 1\ns_lshl_b32 s{s_t0}, s{s_t0}, 14\ns_add_u32 s{s_xo}, s{s_xo}, s{s_t0}")
    vE = 136
    p(f"""
    v_add_u32 v{vX1}, 0x8000, v{vL16}
    s_lshl_b32 s{s_t0}, s{s_w}, 12
    s_add_u32 s{s_t0}, s{s_t0}, {XT}
    v_and_b32 v{vt+4}, 15, v0
    v_lshrrev_b32 v{vt+5}, 1, v{vt+4}
    v_lshrrev_b32 v{vt+6}, 5, v0
    v_xor_b32 v{vt+5}, v{vt+5}, v{vt+6}
    v_lshlrev_b32 v{vt+5}, 4, v{vt+5}
    v_lshl_add_u32 v{vt+5}, v{vt+4}, 7, v{vt+5}
    v_bfe_u32 v{vt+6}, v0, 4, 1
    v_lshl_add_u32 v{vt+5}, v{vt+6}, 3, v{vt+5}
    v_add_u32 v{vt}, s{s_t0}, v{vt+5}
    v_xor_b32 v{vt+1}, 32, v{vt}
    v_xor_b32 v{vt+2}, 64, v{vt}
    v_xor_b32 v{vt+3}, 0x60, v{vt}""")
    for t in range(2):
        for F in range(4):
            p(f"ds_read_b64 {rr('v', vE + (t*4+F)*2, 2)}, v{vt+F} offset:{t*2048}")
    p(f"""
    v_lshlrev_b32 v{vPT}, 3, v{vt+4}
    v_lshrrev_b32 v{vt+5}, 4, v0
    v_lshl_add_u32 v{vPT}, v{vt+5}, 9, v{vPT}""")
    wread_addr(11)
    for t in range(2):
        for F in range(4):
            a = AB3 + (F * 2 + t) * 4
            e = vE + (t * 4 + F) * 2
            p(f"""
            v_lshlrev_b32 v{a}, 16, v{e}
            v_and_b32 v{a+1}, 0xffff0000, v{e}
            v_lshlrev_b32 v{a+2}, 16, v{e+1}
            v_and_b32 v{a+3}, 0xffff0000, v{e+1}""")
    arrive(p, s_xe)
    p("s_barrier")
    for n in range(LEAD):
        p.add(sh4.rd(0, n))
    main_cur = p.cur
    bg = []
    p.cur = bg
    SLOT4, HI4, LEAD4 = 28672, 106496, 8
    s_nb, s_wo4, s_m04, s_dsl, s_rsl, s_tk4 = 66, 68, 69, 70, 71, 72
    vD4 = 21
    AB4 = 32
    p(f"""
    s_and_b32 s{s_t0}, s2, 7
    s_lshr_b32 s{s_t1}, s2, 3
    s_and_b32 s{s_tk4}, s{s_t1}, 7
    s_lshr_b32 s{s_t1}, s{s_t1}, 3
    s_lshl_b32 s{s_nb}, s{s_t0}, 2
    s_add_u32 s{s_nb}, s{s_nb}, s{s_t1}
    s_movk_i32 s{s_t1}, 4682
    s_movk_i32 s{s_t0}, {7168 - 14 * 16}
    """)
    for i in range(7):
        p(f"""
        v_add_u32 v{vt}, {64*i}, v0
        v_mul_u32_u24 v{vt+1}, s{s_t1}, v{vt}
        v_lshrrev_b32 v{vt+1}, 16, v{vt+1}
        v_add_u32 v{vt}, {1024 * (i - (i & 3))}, v{vL16}
        v_mad_u32_u24 v{vD4+i}, v{vt+1}, s{s_t0}, v{vt}
        """)
    p(f"""
    s_lshl_b32 s{s_tk4}, s{s_tk4}, 2
    s_add_u32 s{s_tk4}, s{s_tk4}, s{s_w}
    s_lshl_b32 s{s_tk4}, s{s_tk4}, 6
    s_and_b32 s{s_t0}, s{s_w}, 1
    s_mul_i32 s{s_wo4}, s{s_t0}, {32 * 7168}
    s_mul_i32 s{s_t1}, s{s_nb}, 224
    s_add_u32 s{s_wo4}, s{s_wo4}, s{s_t1}
    s_mul_i32 s{s_m04}, s{s_w}, 7168
    s_mov_b32 s{s_dsl}, s{s_m04}
    s_mov_b32 s{s_rsl}, {HI4}
    s_cmp_lt_u32 s{s_w}, 2
    s_cselect_b64 s[{sD}:{sD+1}], s[{pWG}:{pWG+1}], s[{pWU}:{pWU+1}]
    s_mov_b32 s{sD+2}, {hex(D * FF * 2)}
    """)
    srd(p, sA, pWS, HC[1], bias=HC[0])
    for i in range(4):
        p(f"v_accvgpr_write_b32 a{aMEAN-4+i}, v{vWD+i}")
    p(f"v_mov_b32 v36, v{vPW}")
    vPW = 36
    vX4 = [vL16, 12, 13, 14]
    vA4, vAb, vR4 = 15, 11, 28
    vS, vQ, vP = 28, 144, WB
    s_ho, s_c4, s_sq4 = 65, 67, 73
    HCA = o.get('hca', False)
    p(f"""
    v_add_u32 v{vX4[2]}, 0x10000, v{vL16}
    v_add_u32 v{vX4[3]}, 0x18000, v{vL16}
    v_lshrrev_b32 v{vt}, 2, v0
    v_mul_u32_u24 v{vt}, 224, v{vt}
    v_and_b32 v{vt+1}, 3, v0
    v_lshl_add_u32 v{vAb}, v{vt+1}, 3, v{vt}
    v_mov_b32 v{vA4}, v{vAb}
    s_lshl_b32 s{s_sq4}, s{s_tk4}, 6
    s_add_u32 s{s_c4}, s{s_sq4}, {ST_FC}
    s_add_u32 s{s_sq4}, s{s_sq4}, {ST_SSQ}
    s_add_u32 s{s_ho}, s{s_tok}, s{s_j}
    s_lshl_b32 s{s_ho}, s{s_ho}, 11
    s_add_u32 s{s_c}, s{s_pj}, {ST_FC}
    {f's_andn2_b32 s{s_c}, s{s_c}, 4095' if HCA else ''}
    {f's_and_b32 s{s_t0}, s2, 7' if HCA else ''}
    {f's_lshl_b32 s{s_t0}, s{s_t0}, 9' if HCA else ''}
    {f's_add_u32 s{s_c4}, s{s_c4}, s{s_t0}' if HCA else ''}
    {f'v_lshlrev_b32 v{vt+6}, 9, v0' if HCA else ''}
    s_add_u32 s{s_pj}, s{s_pj}, {ST_SSQ}
    s_mov_b32 s{s_t1}, {f32hex(-1.0/1024)}""")
    for t in range(2):
        p(f"""
        v_add_f32 v{vE+t}, v{vE+t}, v{vE+2+t}
        v_add_f32 v{vE+4+t}, v{vE+4+t}, v{vE+6+t}
        v_add_f32 v{vS+t}, v{vE+t}, v{vE+4+t}""")
        xsum16_32(p, f"v{vS+t}", f"v{vt}")
        p(f"v_accvgpr_read_b32 v{vt}, a{aMEAN+t}")
        p(f"v_fma_f32 v{vS+t}, v{vS+t}, s{s_t1}, -v{vt}")
    p(f"v_mov_b32 v{vt+4}, {f32hex(1e-5)}\ns_mov_b32 s{s_t1}, {f32hex(1.0/1024)}")
    for i in range(156, 256):
        p(f"v_mov_b32 v{i}, 0")
    p.cur = main_cur

    def units_of(lst):
        out = []
        for x in lst:
            if out and x.op.startswith(('s_addc', 's_subb', 's_cselect')): out[-1].append(x)
            else: out.append([x])
        return out
    bg = units_of(bg)
    p.add(Raw("; @stamp 5"))
    poll(p, f"{name}_opoll", s_c, 16, vt)
    if 'twice3' in dbg: p.add(Raw(f"    s_mov_b32 s{s_spin}, 2\n    s_mov_b32 s14, s{s_pj}\n    s_mov_b32 s15, s{s_xo}\n{name}_tw3:\n    s_mov_b32 s{s_pj}, s14\n    s_mov_b32 s{s_xo}, s15"))
    p.add(Raw("; @stamp 6"))

    def dma4(par):
        o_ = []
        for i in range(7):
            if i == 0: o_.append(Ins(f"s_add_u32 m0, s{s_dsl}, {par * SLOT4}"))
            if i == 4: o_.append(Ins("s_add_u32 m0, m0, 4096"))
            o_.append(Ins(f"buffer_load_dwordx4 v{vD4+i}, s[{sD}:{sD+3}], s{s_wo4} offen offset:{(i&3)*1024} lds", awr=['Lx'], nowaw=True))
        o_.append(Ins(f"s_add_u32 s{s_wo4}, s{s_wo4}, {64 * 7168}"))
        return o_

    def xld3(u):
        o_ = [Ins(f"buffer_load_dwordx4 {sh4.X(u % 4, t, G)}, v{vX1 if t else vL16}, s[{sB}:{sB+3}], s{s_xo} offen offset:{G*1024} sc1")
              for t in range(2) for G in range(4)]
        if R3 and u == 3:
            return o_ + [Ins(f"s_xor_b32 s{s_xo}, s{s_xo}, 0x7000")]
        return o_ + [Ins(f"s_add_u32 s{s_xo}, s{s_xo}, 4096")]
    p.add(xld3(0)); p.add(xld3(1))
    order = [(F, t, G) for F in range(4) for t, G in zz(F, 2, 4, ZZ)]
    for u in range(8):
        vm = xld3(u + 2) if u < 6 else []
        if u == 0:
            vm += [Ins(f"buffer_load_dwordx2 {rr('v', vE + 2*i, 2)}, v{vPT}, s[{sT}:{sT+3}], s{s_xend} offen offset:{i*128} sc1") for i in range(4)]
        D4 = o.get('d4', (7, 9))
        for q in range(2):
            if u == D4[q]: vm += dma4(q)
        fill, pos = {}, 0
        for ins in vm:
            fill.setdefault(pos, []).append(ins)
            pos += (4 if len(vm) <= 10 else 2 if len(vm) < 16 else 1) if ins.kind == 'vmem' and pos < 28 else 1
        for i, (F, t, G) in enumerate(order):
            p(mf16(ACS(F, t), sh4.W(F, G), sh4.X(u % 4, t, G)))
            n = i + LEAD
            if u == 5 and i == 0:
                p("s_barrier")
            if u * 32 + n < 256:
                p.add(sh4.rd((u + n // 32) % 4, n % 32))
            if u == 3 and i == 0: p(f"v_xor_b32 v{vA3}, 0x10000, v{vA3}")
            if u == 3 and n in (15, 23, 31): p(f"v_xor_b32 v{vA3 + n // 8}, 0x10000, v{vA3 + n // 8}")
            if u > 0 or i > 7:
                if i % 8 == 7 and u * 32 + i < 255:
                    p(f"wait {rr('v', WB + ((F + 1) % 4) * 16, 8)}" + (", " + sh4.Xall((u + 1) % 4) if i == 31 else ""))
                if i % 8 == 1:
                    p(f"wait {rr('v', WB + F * 16 + 8, 8)}")
            p.add(fill.get(i, []))
            if bg and i not in fill and (u > 0 or i > 7):
                p.add(bg.pop(0))
                if bg and u * 32 + i > 200: p.add(bg.pop(0))
    assert not bg, len(bg)
    p.add(Raw("; @stamp 7"))
    if 'twice3' in dbg: p.add(Raw(f"    s_waitcnt vmcnt(0)\n    s_sub_u32 s{s_spin}, s{s_spin}, 1\n    s_cmp_lg_u32 s{s_spin}, 0\n    s_cbranch_scc1 {name}_tw3"))

    for t in range(2):
        sel = "op_sel_hi:[1,0]" if t == 0 else "op_sel:[0,1]"
        q = rr('v', vQ + 2 * t, 2)
        for F in range(4):
            a = AB3 + (F * 2 + t) * 4
            k = vQ + 4 + (F & 1) * 4
            hc = vP + (t * 2 + (F >> 1)) * 4 + (F & 1) * 2
            p(f"""
            v_pk_add_f32 {rr('v', k, 2)}, {rr('v', a, 2)}, {rr('v', vS, 2)} {sel}
            v_pk_add_f32 {rr('v', k+2, 2)}, {rr('v', a+2, 2)}, {rr('v', vS, 2)} {sel}
            v_cvt_pk_bf16_f32 v{hc}, v{k}, v{k+1}
            v_cvt_pk_bf16_f32 v{hc+1}, v{k+2}, v{k+3}""")
            if F & 1:
                g = F >> 1
                p(f"buffer_store_dwordx4 {rr('v', hc-2, 4)}, v{vX1 if t else vL16}, s[{sA}:{sA+3}], s{s_ho} offen offset:{g*1024} sc1")
            p(f"v_pk_mul_f32 {q}, {rr('v', k, 2)}, {rr('v', k, 2)}" if F == 0 else f"v_pk_fma_f32 {q}, {rr('v', k, 2)}, {rr('v', k, 2)}, {q}")
            p(f"v_pk_fma_f32 {q}, {rr('v', k+2, 2)}, {rr('v', k+2, 2)}, {q}")
    p(f"""
    v_add_f32 v{vQ}, v{vQ}, v{vQ+1}
    v_add_f32 v{vQ+2}, v{vQ+2}, v{vQ+3}
    v_permlane16_swap_b32 v{vQ}, v{vQ+2}
    v_add_f32 v{vQ}, v{vQ}, v{vQ+2}
    v_mov_b32 v{vQ+1}, v{vQ}
    v_permlane32_swap_b32 v{vQ}, v{vQ+1}
    v_add_f32 v{vt}, v{vQ}, v{vQ+1}
    s_mov_b32 exec_hi, 0
    buffer_store_dword v{vt}, v{vPW}, s[{sT}:{sT+3}], s{s_pj} offen sc1
    s_mov_b32 exec_hi, -1
    """)
    for q in range(2):
        if D4[q] == 8: p.add(dma4(q))
    for t in range(2):
        for F in range(4):
            a = AB3 + (F * 2 + t) * 4
            hr = vP + 16 + (t * 2 + (F >> 1)) * 4 + (F & 1) * 2
            p(f"v_cvt_pk_bf16_f32 v{hr}, v{a}, v{a+1}\nv_cvt_pk_bf16_f32 v{hr+1}, v{a+2}, v{a+3}")
    for i in range(16):
        p(f"v_accvgpr_write_b32 a{aHR+i}, v{vP+16+i}")
    if 'H' in dbg:
        srd(p, sB, pWS, HR[1], bias=HR[0])
        for t in range(2):
            for g in range(2):
                p(f"buffer_store_dwordx4 {rr('v', vP + 16 + (t*2+g)*4, 4)}, v{vX1 if t else vL16}, s[{sB}:{sB+3}], s{s_ho} offen offset:{g*1024}")
    for i in range(AB4 + (0 if o.get('ril', False) else 16), 156, 2):
        p(f"v_pk_mov_b32 {rr('v', i, 2)}, 0, 0")
    p(f"""
    s_lshl_b32 s{s_xo}, s{s_tk4}, 11
    s_waitcnt vmcnt({7 * D4.count(8)})
    """)
    if 'ack' in dbg: p.add(Raw("; @stamp 0"))
    if HCA:
        p(f"s_mov_b64 exec, 0xff\nbuffer_atomic_add v{vOne}, v{vt+6}, s[{sT}:{sT+3}], s{s_c} offen\ns_mov_b64 exec, -1")
    else:
        p(f"buffer_store_dword v{vOne}, v{vZ}, s[{sT}:{sT+3}], s{s_c} offen sc1")
    if 'ack' in dbg: p.add(Raw("    s_waitcnt vmcnt(0)\n; @stamp 1"))
    for q in range(2):
        if D4[q] == 9: p.add(dma4(q))
    if D4[1] < 10: p(f"s_add_u32 s{s_dsl}, s{s_m04}, {HI4}")
    PX = o.get('px', 8)
    BT = o.get('btouch', 1)
    vFL, vBT = vt + 5, vt + 6
    s_hf, s_x5, s_of, s_bt = 65, 63, 64, 3
    wread_addr(12)
    srd(p, sB, pWS, HH[1], bias=HH[0])
    srd(p, sC, pWS, XC[1], bias=XC[0])
    p(f"""
    s_bfe_u32 s{s_hf}, s{s_b}, 0x10002
    s_lshl_b32 s{s_hf}, s{s_hf}, 1
    s_lshr_b32 s{s_t0}, s{s_j}, 3
    s_add_u32 s{s_hf}, s{s_hf}, s{s_t0}
    s_and_b32 s{s_c}, s{s_tok}, 0x5c0
    s_lshl_b32 s{s_c}, s{s_c}, 6
    s_lshl_b32 s{s_t0}, s{s_hf}, 10
    s_add_u32 s{s_c}, s{s_c}, s{s_t0}
    s_add_u32 s{s_c}, s{s_c}, {ST_FH}
    s_xor_b32 s{s_x5}, s{s_tok}, 512
    s_mul_i32 s{s_x5}, s{s_x5}, {112 * 64}
    s_mul_i32 s{s_t0}, s{s_hf}, {28 * 1024}
    s_add_u32 s{s_x5}, s{s_x5}, s{s_t0}
    s_mul_i32 s{s_of}, s{s_tk4}, {112 * 64}
    s_lshr_b32 s{s_t0}, s{s_nb}, 3
    s_mul_i32 s{s_t0}, s{s_t0}, {56 - 8}
    s_add_u32 s{s_t0}, s{s_t0}, s{s_nb}
    s_lshl_b32 s{s_t0}, s{s_t0}, 9
    s_add_u32 s{s_of}, s{s_of}, s{s_t0}
    v_and_b32 v{vFL}, 7, v0
    v_lshlrev_b32 v{vFL}, 7, v{vFL}
    v_bfe_u32 v{vt}, v0, 3, 1
    v_lshl_add_u32 v{vFL}, v{vt}, 15, v{vFL}""")
    if BT:
        p(f"""
        v_cmp_gt_u32 vcc, 14, v0
        v_lshlrev_b32 v{vt}, 10, v0
        v_add_u32 v{vt}, {4096 + 384}, v{vt}
        v_mov_b32 v{vt+1}, 0x7ffffff0
        v_cndmask_b32 v{vBT}, v{vt+1}, v{vt}, vcc
        s_lshr_b32 s{s_bt}, s2, 3
        s_lshl_b32 s{s_bt}, s{s_bt}, 2
        s_add_u32 s{s_bt}, s{s_bt}, s{s_w}
        s_mul_i32 s{s_bt}, s{s_bt}, {7 * 2048}""")


    X4 = lambda slot, t, g: rr('a', slot * 32 + (t * 2 + g) * 4, 4)
    WB4, WB4B, NWR = 96, 128, 4
    W4 = lambda q, g: rr('a', WB4 + (q % NWR) * 8 + g * 4, 4)
    AC4 = lambda f, t: rr('v', AB4 + (f * 4 + t) * 4, 4)

    def xld4(slot):
        o_ = [Ins(f"buffer_load_dwordx4 {X4(slot, t, g)}, v{vX4[t]}, s[{sA}:{sA+3}], s{s_xo} offen offset:{g*1024} sc1")
              for t in range(4) for g in range(2)]
        return o_ + [Ins(f"s_add_u32 s{s_xo}, s{s_xo}, 2048")]

    def rd4(q, n, par=None, base=WB4):
        f = q % 14
        g, b = n >> 1, n & 1
        if par is None: par = (q // 14) & 1
        return Ins(f"ds_read_b64_tr_b16 {rr('a', base + (q % NWR)*8 + g*4 + 2*b, 2)}, v{vA4} offset:{par*SLOT4 + (f&1)*14336 + (32*g+16*b)*224 + (f>>1)*32}")
    if D4[0] < 8:
        p("s_barrier")
        for n in range(LEAD4):
            p.add(rd4(n >> 2, n & 3))
    p.add(Raw("; @stamp 8"))
    if HCA: poll(p, f"{name}_hpoll", s_c4, 1, vt, 32)
    else: poll(p, f"{name}_hpoll", s_c4, 32, vt)
    p.add(Raw("; @stamp 9"))
    RIL = o.get('ril', False)
    if not RIL:
        for q in range(2):
            table_load(AB4 + 8 * q, s_sq4, q)
    p.add(xld4(0))
    if RIL:
        for q in range(2):
            for i in range(4):
                p(f"buffer_load_dwordx2 {rr('a', WB4B + 8*q + 2*i, 2)}, v{vPT}, s[{sT}:{sT+3}], s{s_sq4} offen offset:{q*2048 + i*128} sc1")
    if o.get('b1', True): p("s_barrier")
    if D4[0] >= 8:
        for n in range(LEAD4):
            p.add(rd4(n >> 2, n & 3))
    ril = []
    if RIL:
        p.cur = ril
        for t in range(4):
            a_ = WB4B + 8 * (t >> 1) + (t & 1)
            for i in range(4): p(f"v_accvgpr_read_b32 v{vt+i}, a{a_ + 2*i}")
            p(f"v_add_f32 v{vt}, v{vt}, v{vt+1}\nv_add_f32 v{vt+2}, v{vt+2}, v{vt+3}\nv_add_f32 v{vt}, v{vt}, v{vt+2}")
            xsum16_32(p, f"v{vt}", f"v{vt+1}")
            p(f"v_fma_f32 v{vt}, v{vt}, s{s_t1}, v{vt+4}\nv_rsq_f32 v{vt}, v{vt}")
            p(f"v_mul_f32 v{vR4+t}, {f32hex(-LOG2E)}, v{vt}")
        p.cur = main_cur
    else:
        for q in range(2):
            rstd_from(AB4 + 8 * q, vR4 + 2 * q)
        for t in range(4):
            p(f"v_mul_f32 v{vR4+t}, {f32hex(-LOG2E)}, v{vR4+t}")
        for i in range(AB4, AB4 + 16, 2):
            p(f"v_pk_mov_b32 {rr('v', i, 2)}, 0, 0")
    p(f"s_mov_b32 s{s_cnt}, 7")
    p("wait " + ", ".join(X4(0, t, g) for t in range(4) for g in range(2)) + f", {W4(0, 0)}, {W4(0, 1)}")
    p.begin_loop(f"{name}_p4loop", 7)
    B1 = o.get('b1', True)
    BP = o.get('bpos', 99)
    for u in range(2):
        vm = dma4(u) + xld4(1 - u) if B1 and u == 1 else xld4(1 - u) + dma4(u)
        if 'p4nov' in dbg: vm = [x for x in vm if x.kind != 'vmem']
        fill, pos = {}, 1
        for ins in vm:
            fill.setdefault(pos, []).append(ins)
            pos += o.get('p4step', 4) if ins.kind == 'vmem' else 2
            if pos % 8 == 7: pos += 2
        assert pos < 91
        if u == 1:
            fill[97] = [Ins(f"s_sub_u32 s{s_rsl}, {HI4}, s{s_rsl}")]
            fill[107] = [Ins(f"s_add_u32 s{s_dsl}, s{s_m04}, s{s_rsl}")]
            fill[93] = [Ins(f"s_sub_u32 s{s_cnt}, s{s_cnt}, 1")]
            fill[109] = [Ins(f"s_cmp_lg_u32 s{s_cnt}, 0")]
            fill.setdefault(pos, []).append(Ins(f"s_cmp_eq_u32 s{s_cnt}, 1"))
            fill.setdefault(pos + 1, []).append(Raw(f"    s_cbranch_scc1 {name}_x15\n{name}_x15back:"))
            x15blk = Raw(f"{name}_x15:\n" + "".join(f"    {x.text}\n" for x in xld4(2)[:8]) + f"    s_branch {name}_x15back")
        order = [(f, t, g) for f in range(14) for t, g in zz(f, 4, 2, ZZ)]
        late = B1 and u == 1
        for i, (f, t, g) in enumerate(order):
            p(mf16(AC4(f, t), W4(u * 14 + f, g), X4(u, t, g)))
            if late and i == BP:
                p("s_waitcnt vmcnt(8) lgkmcnt(0)")
                p("s_barrier")
            if late and i >= 96:
                if BP <= i < BP + 8:
                    p.add(rd4(28 + ((i - BP) >> 2), (i - BP) & 3))
            elif i % 2 == 0:
                n = i // 2 + LEAD4
                p.add(rd4(u * 14 + (n >> 2), n & 3))
            if i == 95 and u == 1: p(f"v_add_u32 v{vA4}, s{s_rsl}, v{vAb}")
            if i == 95 and not B1:
                p("s_waitcnt vmcnt(15) lgkmcnt(4)")
                if 'p4nobar' not in dbg: p("s_barrier")
            elif i == 111:
                p(f"wait {W4(u*14 + 14, 0)}, {W4(u*14 + 14, 1)}, " + ", ".join(X4(1 - u, t_, g_) for t_ in range(4) for g_ in range(2)))
            elif i % 8 == 7:
                p(f"wait {W4(u*14 + f + 1, 0)}, {W4(u*14 + f + 1, 1)}")
            p.add(fill.get(i, []))
            if ril and u == 1 and i not in fill and i < 94: p.add(ril.pop(0))
    assert not ril
    p(f"s_cbranch_scc1 {name}_p4loop")
    p.end_loop()
    p.add(Raw("; @stamp 10"))
    main_cur = p.cur
    setup = []
    p.cur = setup

    vW5 = 21
    s_wo5, s_m05 = 68, 69
    vH = 13
    vFG, vTwo = 25, 26
    for i in range(2):
        p(f"v_accvgpr_read_b32 v{vW5+i}, a{aMEAN-4+i}")
    p(f"""
    s_mul_i32 s{s_t0}, s{s_hf}, {896 * 2048}
    s_xor_b32 s{s_t1}, s{s_j}, {PX}
    s_add_u32 s{s_t1}, s{s_t1}, 16
    s_sub_u32 s{s_t1}, s{s_t1}, s{s_j}
    s_lshl_b32 s{s_t1}, s{s_t1}, 7
    v_add_u32 v{vW5+2}, s{s_t1}, v{vW5}
    v_add_u32 v{vW5+3}, s{s_t1}, v{vW5+1}
    v_add_u32 v{vW5}, 4096, v{vW5}
    v_add_u32 v{vW5+1}, 4096, v{vW5+1}
    s_mul_i32 s{s_wo5}, s{s_w}, {112 * 2048}""")
    srd(p, sD, pWD, 896 * 2048 + 4096, off=s_t0, bias=-4096)
    p(f"""
    s_lshl_b32 s{s_t1}, s{s_j}, 7
    s_add_u32 s{s_wo5}, s{s_wo5}, s{s_t1}
    s_lshl_b32 s{s_m05}, s{s_w}, 12
    v_lshrrev_b32 v{vt}, 5, v0
    v_mul_u32_u24 v{vt}, {112 * 1024 - 512}, v{vt}
    v_add_u32 v{vH}, v{vt}, v{vL16}
    v_add_u32 v{vH+1}, {2 * 112 * 1024}, v{vH}
    v_add_u32 v{vX1}, {112 * 1024}, v{vL16}
    s_mul_i32 s{s_xo}, s{s_tok}, {112 * 64}
    s_mul_i32 s{s_t0}, s{s_hf}, {28 * 1024}
    s_add_u32 s{s_xo}, s{s_xo}, s{s_t0}
    s_mov_b32 s{s_spin}, {SPIN}
    s_lshl_b32 s{s_t0}, s{s_nb}, 7
    s_add_u32 s{s_sq4}, s{s_sq4}, s{s_t0}
    s_add_u32 s{s_sq4}, s{s_sq4}, {ST_FH - ST_SSQ}""")
    p.cur = main_cur
    btouch = lambda: Ins(f"buffer_load_dword v27, v{vBT}, s[{sD}:{sD+3}], s{s_bt} offen", nowaw=True)

    def dma5(st):
        o_ = [Ins(f"s_add_u32 m0, s{s_m05}, {(st % 8) * 16384}")]
        for i in range(4):
            o_.append(Ins(f"buffer_load_dwordx4 v{vW5+i}, s[{sD}:{sD+3}], s{s_wo5} offen offset:{i*1024} lds", awr=[f'L5_{st}'], nowaw=True))
        o_.append(Ins(f"s_add_u32 s{s_wo5}, s{s_wo5}, {448 * 2048}" if st & 1 == 0 else f"s_sub_u32 s{s_wo5}, s{s_wo5}, {(448 - 16) * 2048}"))
        return o_

    def glu(pr, packed):
        o_ = []
        for t in range(4):
            g = AB4 + ((2 * pr) * 4 + t) * 4
            u_ = AB4 + ((2 * pr + 1) * 4 + t) * 4
            rs_ = rr('v', vR4 + (t & 2), 2)
            sel = "op_sel_hi:[1,0]" if t % 2 == 0 else "op_sel:[0,1]"
            if packed:
                o_ += [f"v_pk_mul_f32 {rr('v', g+r, 2)}, {rr('v', g+r, 2)}, {rs_} {sel}" for r in (0, 2)]
                o_ += [f"v_exp_f32 v{g+r}, v{g+r}" for r in range(4)]
                o_ += [f"v_pk_add_f32 {rr('v', g+r, 2)}, {rr('v', g+r, 2)}, 1.0 op_sel_hi:[1,0]" for r in (0, 2)]
                o_ += [f"v_rcp_f32 v{g+r}, v{g+r}" for r in range(4)]
                o_ += [f"v_pk_mul_f32 {rr('v', u_+r, 2)}, {rr('v', u_+r, 2)}, {rr('v', g+r, 2)}" for r in (0, 2)]
            else:
                o_ += [f"v_mul_f32 v{g+r}, v{vR4+t}, v{g+r}" for r in range(4)]
                o_ += [f"v_exp_f32 v{g+r}, v{g+r}" for r in range(4)]
                o_ += [f"v_add_f32 v{g+r}, 1.0, v{g+r}" for r in range(4)]
                o_ += [f"v_rcp_f32 v{g+r}, v{g+r}" for r in range(4)]
                o_ += [f"v_mul_f32 v{u_+r}, v{u_+r}, v{g+r}" for r in range(4)]
            d_ = AB4 + ((2 * pr) * 4 + (t & 2)) * 4 + (t & 1) * 2
            o_ += [f"v_cvt_pk_bf16_f32 v{d_}, v{u_}, v{u_+1}", f"v_cvt_pk_bf16_f32 v{d_+1}, v{u_+2}, v{u_+3}"]
            if t & 1:
                o_ += [f"v_permlane32_swap_b32 v{d_-2}, v{d_}", f"v_permlane32_swap_b32 v{d_-1}, v{d_+1}",
                       f"buffer_store_dwordx4 {rr('v', d_-2, 4)}, v{vH + (t >> 1)}, s[{sB}:{sB+3}], s{s_of} offen sc1"]
        o_.append(f"s_add_u32 s{s_of}, s{s_of}, 4096")
        return [Ins(x, awr=[f'HS{pr}'], nowaw=True) if x.startswith('buffer') else Ins(x) for x in o_]

    AC5, WB5, vHI, vHF = 96, 40, 72, 224
    XB5 = (160, 192, 32, 0, 64, 96, 128)
    A5 = lambda F, t: rr('v', AC5 + ((F >> 2) + 2 * (t >> 1)) * 32 + ((F & 3) * 2 + (t & 1)) * 4, 4)
    X5 = lambda st, t, G: rr('a', XB5[st % 7] + (t * 2 + G) * 4, 4)
    NT = o.get('nt5', 6)

    def xld5(st):
        o_ = [Ins(f"buffer_load_dwordx4 {X5(st, t, G)}, v{vX1 if t & 1 else vL16}, s[{sB}:{sB+3}], s{s_x5 if t >> 1 else s_xo} offen offset:{G*1024} sc1")
              for t in range(4) for G in range(2)]
        return o_[:4] + [Ins(f"s_add_u32 s{s_xo}, s{s_xo}, 2048")] + o_[4:] + [Ins(f"s_add_u32 s{s_x5}, s{s_x5}, 2048")]

    def spin(label, level, ld=None):
        return f"""    s_branch {label}_chk
{label}:
    {ld or fgl}
    s_waitcnt vmcnt(0)
{label}_chk:
    v_cmp_gt_u32 vcc, {level}, v{vFG}
    s_sub_u32 s{s_spin}, s{s_spin}, 1
    s_cbranch_scc1 {label}_done
    s_cbranch_vccnz {label}
{label}_done:"""
    last = list(range(14 - NT, 14))
    FO = o.get('fo5', 4)
    units = [(st, F, (0, 1, 2, 3)) for st in range(14 - NT) for F in range(8)]
    units += [(st, F, (0, 1, 2, 3)) for st in last[:-FO] for F in range(4, 8)]
    units += [(st, F, (0, 1, 2, 3)) for F in range(4, 8) for st in last[-FO:]]
    kB = len(units)
    kC = kB + 4 * NT
    units += [(st, F, (2, 3)) for F in range(4) for st in last]
    units += [(st, F, (0, 1)) for F in range(4) for st in last]

    def rd5(k):
        st, F = units[k][:2]
        return [Ins(f"ds_read_b64_tr_b16 {rr('v', WB5 + (k % 4)*8 + 2*n, 2)}, v{(vHI if st & 4 else vA3) + (F & 3)} "
                    f"offset:{(st & 3)*16384 + (n >> 1)*8192 + (F >> 2)*2048 + (n & 1)*1024}") for n in range(4)]
    fgl = f"buffer_load_dword v{vFG}, v{vFL}, s[{sT}:{sT+3}], s{s_c} offen sc1"
    tell = lambda prs: [Ins(f"buffer_store_dword v{vOne}, v{vZ}, s[{sT}:{sT+3}], s{s_sq4} offen sc1", rd=[f'HS{q}' for q in prs]),
                        Ins(f"s_add_u32 s{s_sq4}, s{s_sq4}, 0x40000")]
    check = lambda n: [Ins(f"wait v{vFG}"), Raw(spin(f"{name}_fpoll{n}", 1)), Ins(f"s_add_u32 s{s_c}, s{s_c}, 0x40000")]

    W4B = lambda q, g: rr('a', WB4B + (q % NWR) * 8 + g * 4, 4)
    C0 = o.get('c0at', (5, 21))
    at = {o.get('t0at', (2, 27)): tell((0,)), o.get('l0at', (4, 29)): [Ins(fgl)],
          C0: [Raw("; @stamp 11")] + check(0) + [Raw("; @stamp 12")], o.get('t1at', (5, 29)): tell((1, 2, 3))}
    x01 = xld5(0) + xld5(1)
    if not B1:
        p("s_waitcnt vmcnt(0)")
        p("s_barrier")
    for n in range(4):
        p.add(rd4(0, n, 1, WB4B))
    cost = lambda x: 8 if x.kind == 'trans' else 0 if x.kind == 'vmem' else 4
    pend = []
    for pr in range(7):
        work = setup if pr == 0 else glu(pr - 1, False)
        side = dma5(pr - 1) if pr >= 1 else []
        if BT and pr == o.get('btat', 3): side.append(btouch())
        tot = sum(cost(x) for x in work)
        done, wi = 0, 0
        for ff in range(2):
            f = 2 * pr + ff
            if f == 0: order = [(t, k) for t in range(4) for k in (0, 1)] + [(t, k) for t in range(4) for k in (2, 3)]
            else: order = zz(f, 4, 4, ZZ)
            rds = [rd4(f + 1, n, 1, WB4B) for n in range(4)] if f + 1 < 14 else []
            rds += [rd4(f + 2, n, 0) for n in range(4)] if f + 2 < 14 else []
            for i, (t, k) in enumerate(order):
                p(mf16(AC4(f, t), W4(f, k) if k < 2 else W4B(f, k - 2), X4(0 if k < 2 else 2, t, k & 1)))
                if B1 and f == 0 and i == 7:
                    p("s_waitcnt vmcnt(0)")
                if f == 13 and i == 0:
                    p("s_barrier", rd=['L5_0', 'L5_1', 'L5_2', 'L5_3'])
                    rds = rd5(0) + rd5(1)

                def xnext():
                    p.add(x01.pop(0))
                    if x01 and x01[0].kind == 'salu': p.add(x01.pop(0))
                if i % 2 == 0 and rds:
                    p.add(rds.pop(0))
                elif i == 15:
                    if f < 13: p(f"wait {W4(f+1, 0)}, {W4(f+1, 1)}, {W4B(f+1, 0)}, {W4B(f+1, 1)}")
                elif (pr, ff * 16 + i) in at:
                    p.add(at[pr, ff * 16 + i])
                elif pend and i % 2:
                    p.add(pend.pop(0))
                    if pr >= 5 and pend and pend[0].kind == 'salu': p.add(pend.pop(0))
                elif x01 and (pr, ff * 16 + i) > C0 and (len(x01) > 10 or not side):
                    xnext()
                elif side and (i % 2 or pr == 6):
                    p.add(side.pop(0))
                    if pr >= 5 and side and side[0].kind == 'salu': p.add(side.pop(0))
                gap = ff * 16 + i + 1
                while wi < len(work) and done + cost(work[wi]) / 2 <= tot * gap / 32:
                    if work[wi].kind == 'vmem' or (pr and work[wi].kind == 'salu'): pend.append(work[wi])
                    else: p.add(work[wi])
                    done += cost(work[wi]); wi += 1
        assert wi == len(work) and (not side or pr == 6)
    carry = pend + side + x01

    p.add(Raw("; @stamp 13"))
    STG = 131072
    vL, vG, vXF = 30, 15, 26
    s_ro, s_fl, s_xs, s_fy, s_fb = 66, 67, 72, 70, 71
    SQ5 = 32
    bg = []
    p.cur = bg
    for i in range(4):
        p(f"v_xor_b32 v{vHI+i}, 0x10000, v{vA3+i}")
    p(f"""
    s_lshl_b32 s{s_of}, s{s_tok}, 6
    s_add_u32 s{s_of}, s{s_of}, {ST_SSQ}
    s_lshl_b32 s{s_t0}, s{s_b}, 4
    s_add_u32 s{s_t0}, s{s_t0}, s{s_j}
    s_lshl_b32 s{s_xs}, s{s_t0}, 2
    s_add_u32 s{s_xs}, s{s_xs}, s{s_w}
    s_lshl_b32 s{s_fl}, s{s_xs}, 7
    v_and_b32 v{vt+2}, 1, v0
    v_lshlrev_b32 v{vt+2}, 15, v{vt+2}
    v_xor_b32 v{vt+2}, {8 << 9}, v{vt+2}
    v_xor_b32 v{vXF}, s{s_fl}, v{vt+2}
    s_add_u32 s{s_fy}, s{s_fl}, {ST_FY}
    s_add_u32 s{s_fl}, s{s_fl}, {ST_FX}
    s_mov_b32 s{s_fb}, {ST_FY}
    s_lshl_b32 s{s_xs}, s{s_xs}, 14
    s_add_u32 s{s_nb+4}, s{s_xs}, 4096
    s_mul_i32 s{s_t0}, s{s_w}, 4608
    s_add_u32 s{s_t0}, s{s_t0}, {STG}
    v_and_b32 v{vt+2}, 15, v0
    v_mul_u32_u24 v{vt+2}, 144, v{vt+2}
    v_lshrrev_b32 v{vt+3}, 4, v0
    v_lshl_add_u32 v{vt+2}, v{vt+3}, 3, v{vt+2}
    v_add_u32 v{vL}, s{s_t0}, v{vt+2}
    v_lshrrev_b32 v{vt+2}, 3, v0
    v_and_b32 v{vt+3}, 7, v0
    v_lshlrev_b32 v{vt+3}, 4, v{vt+3}
    v_lshl_add_u32 v{vG}, v{vt+2}, 11, v{vt+3}
    v_mul_u32_u24 v{vt+2}, 144, v{vt+2}
    v_add3_u32 v{vL+1}, v{vt+2}, v{vt+3}, s{s_t0}
    s_lshl_b32 s{s_ro}, s{s_tok}, 11
    s_lshl_b32 s{s_t2}, s{s_j}, 7
    s_add_u32 s{s_ro}, s{s_ro}, s{s_t2}
    s_add_u32 s0, s{s_xs}, 4096
    s_add_u32 s1, s{s_xs}, 8192
    s_add_u32 s14, s{s_xs}, 12288
    s_xor_b32 s15, s0, {8 << 16}
    s_xor_b32 s74, s1, {64 << 16}
    s_xor_b32 s75, s14, {72 << 16}
    s_mov_b32 s{s_t1}, {f32hex(1.0/1024)}
    v_mov_b32 v{vt+4}, {f32hex(1e-5)}
    """.replace(f"    s_add_u32 s{s_nb+4}, s{s_xs}, 4096\n", ""))
    srd(p, sA, pOUT, S * D * 2)
    for t in range(2):
        for F in range(4):
            e = aHR + (t * 2 + (F >> 1)) * 4 + (F & 1) * 2
            k = vHF + (F * 2 + t) * 4
            p(f"""
            v_accvgpr_read_b32 v{k+1}, a{e}
            v_accvgpr_read_b32 v{k+3}, a{e+1}
            v_lshlrev_b32 v{k}, 16, v{k+1}
            v_lshlrev_b32 v{k+2}, 16, v{k+3}
            v_and_b32 v{k+1}, 0xffff0000, v{k+1}
            v_and_b32 v{k+3}, 0xffff0000, v{k+3}""")
    bg2 = []
    p.cur = bg2
    for t in range(2):
        p(f"""
        v_add_f32 v{SQ5+t}, v{SQ5+t}, v{SQ5+2+t}
        v_add_f32 v{SQ5+4+t}, v{SQ5+4+t}, v{SQ5+6+t}
        v_add_f32 v{vS+t}, v{SQ5+t}, v{SQ5+4+t}""")
        xsum16_32(p, f"v{vS+t}", f"v{vt}")
        p(f"v_fma_f32 v{vS+t}, v{vS+t}, s{s_t1}, v{vt+4}\nv_rsq_f32 v{vS+t}, v{vS+t}")
    p.cur = main_cur
    sXQ = {1: 0, 2: 1, 3: 14}
    assert NT in (4, 5, 6)
    sql = [Ins(f"buffer_load_dwordx2 {rr('v', SQ5 + 2*i, 2)}, v{vPT}, s[{sT}:{sT+3}], s{s_of} offen offset:{i*128} sc1") for i in range(4)]
    X_ = {st: xld5(st) for st in range(2, 14)}
    X_[1] = [x for x in x01]
    plan = {0: carry + dma5(6) + [Ins(fgl)] + dma5(7) + [check(1)] + X_[2][:5], 1: X_[2][5:] + X_[3] + X_[4][:5],
            2: tell((4, 5, 6)) + X_[4][5:] + X_[5], 3: dma5(8) + dma5(9) + X_[6], 4: [Ins(fgl)] + X_[7] + [check(2)] + X_[8],
            5: dma5(10) + dma5(11) + X_[9], 6: X_[10] + X_[11], 7: dma5(12) + dma5(13) + X_[12], 8: X_[13]}
    bar_at = {2: [4, 5, 6, 7], 4: [], 6: [8, 9, 10, 11], 9: [12, 13]}
    g6 = glu(6, False)
    g6tot, g6done = sum(cost(x) for x in g6), 0
    start = {}
    for k, u_ in enumerate(units[:kB]): start.setdefault(u_[0], k)
    kstart = {k: st for st, k in start.items() if st < 12}
    kbar = {start[st + 1] - 2: v for st, v in bar_at.items()}
    RX = AC5 + 32
    rxl = lambda F, r: Ins(f"buffer_load_dwordx4 {rr('v', AC5 + r*32 + F*8, 4)}, v{vL16}, s[{sC}:{sC+3}], s{(15, 74, 75)[r-1]} offen offset:{F*1024} sc1")
    fyl = f"buffer_load_dword v{vFG}, v{vXF}, s[{sT}:{sT+3}], s{s_fb} offen sc1"
    ev = {}
    YL = o.get('yl', [(-2, (0, 1), 15, 21), (12, (2, 3), 35, 42)])
    for n, (kt_, Fs, kl, kc) in enumerate(YL):
        ev.setdefault(kB + kt_, []).extend(
            [Ins(f"buffer_store_dword v{vOne}, v{vZ}, s[{sT}:{sT+3}], s{s_fy} offen sc1", rd=[f'XS{r}_{F}' for F in Fs for r in (1, 3)]),
             Ins(f"s_add_u32 s{s_fy}, s{s_fy}, 0x40000")])
        ev.setdefault(kB + kl, []).append(Ins(fyl))
        ev.setdefault(kB + kc, []).extend(
            [[Ins(f"wait v{vFG}"), Raw(spin(f"{name}_ypoll{n}", 1, fyl)), Ins(f"s_add_u32 s{s_fb}, s{s_fb}, 0x40000")]] +
            [rxl(F, r) for F in Fs for r in (1, 3)])
    ev.setdefault(kC + o.get('kfb', 12), []).extend(
        [Ins(f"buffer_store_dword v{vOne}, v{vZ}, s[{sT}:{sT+3}], s{s_fl} offen sc1", rd=[f'XS2_{F}' for F in range(4)]),
         Ins(f"s_xor_b32 s{s_fl}, s{s_fl}, {64 << 9}")])
    side, seen, hold = [], set(), 0
    for k, (st, F, ts) in enumerate(units):
        if k in kstart:
            side += plan.get(st, [])
        assert all(x not in side for x in X_.get(st, [])[:-1])
        side += ev.get(k, [])
        if k == kB - 14: side += sql
        if k == kB + 8: bg += bg2
        if 'fine5' in dbg:
            mk = {start[3]: 3, start[4]: 4, start[8]: 5, kB: 6, kC: 7, kC + 8: 8, kC + 16: 9}
            if k in mk: p.add(Raw(f"; @stamp {mk[k]}"))
        rds = rd5(k + 2) if k + 2 < len(units) else []
        order = [(ts[t], G) for t, G in zz(k, len(ts), 2, ZZ)]
        for i, (t, G) in enumerate(order):
            c = None if (F, t) in seen else "0"
            seen.add((F, t))
            p(mf16(A5(F, t), rr('v', WB5 + (k % 4) * 8 + G * 4, 4), X5(st, t, G), c))
            if i == 0 and k in kbar:
                assert not any(f'L5_{x}' in getattr(y, 'awr', ()) for x in kbar[k] for y in side)
                p("s_barrier", rd=[f'L5_{x}' for x in kbar[k]])
            used = False
            if rds and (i % 2 == 0 or len(ts) == 2):
                p.add(rds.pop(0))
            if i == len(order) - 1:
                if k + 1 < len(units):
                    n_ = units[k + 1]
                    p(f"wait {rr('v', WB5 + ((k + 1) % 4) * 8, 8)}, " + ", ".join(X5(n_[0], t_, G_) for t_ in n_[2] for G_ in range(2)))
            if side and i % 2 == 1 and (getattr(side[0], 'kind', '') == 'vmem') == (i % 4 == 1):
                p.add(side.pop(0)); used = True
                while side and i % 4 == 3 and getattr(side[0], 'kind', '') == 'salu': p.add(side.pop(0))
            while g6 and g6done + cost(g6[0]) / 2 <= g6tot * (k * 8 + i + 1) / 62:
                x = g6.pop(0); g6done += cost(x)
                if x.kind == 'vmem': side.insert(0, x)
                elif x.kind != 'salu': p.add(x)
            if bg and not used and k >= 9:
                x = bg.pop(0)
                if x.kind == 'vmem': side.append(x)
                else: p.add(x)
        if st == 13:
            for tp in sorted({t >> 1 for t in ts}):
                r = (F >> 2) + 2 * tp
                if r:
                    a = AC5 + r * 32 + (F & 3) * 8
                    bg += [Ins("wait v0") for _ in range(3 if not bg else 0)]
                    bg += [Ins(f"v_cvt_pk_bf16_f32 v{a+q}, v{a+2*q}, v{a+2*q+1}") for q in range(4)]
                    bg.append(Ins(f"buffer_store_dwordx4 {rr('v', a, 4)}, v{vL16}, s[{sC}:{sC+3}], s{sXQ[r]} offen offset:{(F & 3)*1024} sc1",
                                  awr=[f'XS{r}_{F & 3}'], nowaw=True))
    assert not bg
    p.add(Raw("; @stamp 14"))
    p.add(side + ev.get(len(units), []))
    fxl = f"buffer_load_dword v{vFG}, v{vt+1}, s[{sT}:{sT+3}], s{s_fl} offen sc1"
    p(f"v_mov_b32 v{vt+1}, 0")
    p(fxl)
    sels = ("op_sel_hi:[1,0,1]", "op_sel:[0,1,0]")
    RU = 40

    def add_rx(F, r):
        for q in range(4):
            e, a, k = AC5 + r * 32 + F * 8 + q, RU + ((r * 4 + q) % 8) * 2, vHF + F * 8 + 2 * q
            p(f"v_lshlrev_b32 v{a}, 16, v{e}\nv_and_b32 v{a+1}, 0xffff0000, v{e}")
            p(f"v_pk_fma_f32 {rr('v', k, 2)}, {rr('v', a, 2)}, {rr('v', vS, 2)}, {rr('v', k, 2)} {sels[q >> 1]}")
    for i in range(0, 32, 2):
        p(f"v_pk_fma_f32 {rr('v', vHF+i, 2)}, {rr('v', AC5+i, 2)}, {rr('v', vS, 2)}, {rr('v', vHF+i, 2)} {sels[(i >> 2) & 1]}")
    for F in range(2):
        add_rx(F, 1); add_rx(F, 3)
    if 'tail' in dbg: p.add(Raw("; @stamp 0"))
    p(f"wait v{vFG}")
    p.add(Raw(spin(f"{name}_xpoll", 1, fxl)))
    p.add([rxl(F, 2) for F in range(4)])
    if 'tail' in dbg: p.add(Raw("; @stamp 1"))
    for F in range(2, 4):
        add_rx(F, 1); add_rx(F, 3)
    for F in range(4):
        add_rx(F, 2)
        for t in range(2):
            k = vHF + (F * 2 + t) * 4
            p(f"v_cvt_pk_bf16_f32 v{k}, v{k}, v{k+1}\nv_cvt_pk_bf16_f32 v{k+1}, v{k+2}, v{k+3}")
            p(f"ds_write_b64 v{vL}, v[{k}:{k+1}] offset:{t*16*144 + F*32}")
    for n in range(4):
        p(f"ds_read_b128 {rr('v', 128 + n*4, 4)}, v{vL+1} offset:{n*8*144}")
    if 'tail' in dbg: p.add(Raw("; @stamp 2"))
    for n in range(4):
        p(f"buffer_store_dwordx4 {rr('v', 128 + n*4, 4)}, v{vG}, s[{sA}:{sA+3}], s{s_ro} offen")
        if n < 3: p(f"s_add_u32 s{s_ro}, s{s_ro}, {8 * 2048}")
    p(f"{name}_end:")
    p("s_endpgm")
    p.add(x15blk)

    p.add(Raw(f"""{name}_rsx:
    s_lshl_b32 s{s_t0}, s{s_w}, 12
    s_add_u32 m0, s{s_t0}, {XT}
    s_lshl_b32 s{s_t1}, s{s_j}, 7
""" + "".join(f"    buffer_load_dwordx4 v{vD+i}, s[{sC}:{sC+3}], s{s_t1} offen offset:{i*1024} lds\n" for i in range(4)) + f"""    s_lshl_b32 s{s_t0}, s{s_hd}, 10
    s_add_u32 s{s_t0}, s{s_t0}, {ST_RS2}
    s_xor_b32 s{s_t1}, s{s_t0}, 1024
""" + "".join(f"    buffer_load_dwordx4 {rr('v', RSV + 16*x + 4*jj, 4)}, v{vRA}, s[{sT}:{sT+3}], s{s_t1 if x else s_t0} offen offset:{jj*256} sc1\n"
              for x in range(2) for jj in range(4)) + f"    s_branch {name}_rsxback"))

    slow = p.segment()
    p(f"{name}_slow:")
    p.fence()
    for x in range(2):
        p(f"v_mov_b32 v{Nb(x)}, 0xff800000")
    p(f"s_mov_b32 s{s_ko}, 0")
    p.begin_loop(f"{name}_max_loop", 64, align=False)
    p.add([kld(0, 0), kld(0, 1)])
    for x in range(2):
        p(mf32(rr('v', Sb(x), 16), Kf(0, 0), Q(x, 0), "0"))
        p(mf32(rr('v', Sb(x), 16), Kf(0, 1), Q(x, 1)))
    for x in range(2):
        for i in range(0, 16, 2):
            p(f"v_max3_f32 v{Nb(x)}, v{Nb(x)}, v{Sb(x)+i}, v{Sb(x)+i+1}")
    p(f"""
    s_add_u32 s{s_ko}, s{s_ko}, 4096
    s_cmp_lg_u32 s{s_ko}, {64 * 4096}
    s_cbranch_scc1 {name}_max_loop""")
    p.end_loop()
    for x in range(2):
        p(f"""
        v_mov_b32 v{vt}, v{Nb(x)}
        v_permlane32_swap_b32 v{Nb(x)}, v{vt}
        v_max_f32 v{Nb(x)}, v{Nb(x)}, v{vt}
        v_sub_f32 v{Nb(x)}, 0, v{Nb(x)}""")
        for i in range(1, 16):
            p(f"v_mov_b32 v{Nb(x)+i}, v{Nb(x)}")
    fill_kv()
    att_init()
    p(f"s_mov_b32 s{s_safe}, 1")
    attention('safe', lambda y: rr('v', Nb(y), 16), False, [Ins("s_nop 11")])
    p.fence()
    p(f"s_branch {name}_fin")
    p.paths = [[main, red_w, rest], [main, fin, fin_k, rest], [main, fin, fin_v, rest], [slow]]
    return p
```

```python
from common import *

LDS_TOTAL = 163840
ST_MR = 0x0000
ST_RS2 = 0x60000
ST_MP = 0x28000
ST_FO = 0x80000
ST_FC = 0xA0000
ST_FH = 0xC0000
ST_FY = 0x120000
ST_FX = 0xE0000
ST_KVC = 0x4000
SPIN = 1 << 20

pX, pWQ, pWK, pWV, pWO, pWG, pWU, pWD, pOUT, pDBG, pWS = 4, 6, 8, 10, 12, 16, 18, 20, 22, 24, 26
sA, sB, sC, sD, sE, sT = 28, 32, 36, 40, 44, 48
s_w, s_b, s_j, s_tok, s_t0, s_t1, s_t2, s_cnt, s_spin = 52, 53, 54, 55, 56, 57, 58, 59, 60
vL16, vZ, vOne = 1, 2, 3
aMEAN, aHR, aA5 = 238, 240, 160


def srd(p, s, ptr, size, off=None, bias=0):
    if off is not None:
        p(f"s_add_u32 s{s}, s{ptr}, s{off}\ns_addc_u32 s{s+1}, s{ptr+1}, 0")
        ptr = s
    if bias > 0:
        p(f"s_add_u32 s{s}, s{ptr}, {hex(bias)}\ns_addc_u32 s{s+1}, s{ptr+1}, 0")
    elif bias < 0:
        p(f"s_sub_u32 s{s}, s{ptr}, {hex(-bias)}\ns_subb_u32 s{s+1}, s{ptr+1}, 0")
    elif off is None:
        p(f"s_mov_b64 s[{s}:{s+1}], s[{ptr}:{ptr+1}]")
    if isinstance(size, str):
        p(size.format(d=f"s{s+2}"))
    else:
        p(f"s_mov_b32 s{s+2}, {hex(size)}")
    p(f"s_mov_b32 s{s+3}, 0x20000")


PFL = ['sc1', 'sc1', 'buffer_store_dword']


def arrive(p, soff):
    p("s_waitcnt vmcnt(0)")
    p(f"{PFL[2]} v{vOne}, v{vZ}, s[{sT}:{sT+3}], s{soff} offen {PFL[1]}")


SLEEP = [0]


def poll(p, label, soff, n, vtmp, target=1):
    p(f"""
    s_mov_b32 s{s_spin}, {SPIN}
    v_lshlrev_b32 v{vtmp+1}, 7, v0
    s_mov_b64 exec, {hex((1 << n) - 1) if n < 32 else 0xffff}
    {'s_mov_b32 exec_lo, -1' if n == 32 else ''}""")
    p.add(Raw(f"""    s_branch {label}_go
{label}:
    {f's_sleep {SLEEP[0]}' if SLEEP[0] else ''}
{label}_go:
    buffer_load_dword v{vtmp}, v{vtmp+1}, s[{sT}:{sT+3}], s{soff} offen {PFL[0]}
    s_sub_u32 s{s_spin}, s{s_spin}, 1
    s_waitcnt vmcnt(0)
    v_cmp_gt_u32 vcc, {target}, v{vtmp}
    s_cbranch_scc1 {label}_done
    s_cbranch_vccnz {label}
{label}_done:"""))
    p("s_mov_b64 exec, -1")
    p("s_waitcnt vmcnt(0)")


def spread(vm, start, step):
    fill, pos = {}, start
    for ins in vm:
        fill.setdefault(pos, []).append(ins)
        if ins.kind == 'vmem':
            pos += step
    return fill


def zz(f, nt, nk, on=True):
    if not on:
        return [(t, k) for t in range(nt) for k in range(nk)]
    ts = list(range(nt)) if f % 2 == 0 else list(range(nt - 1, -1, -1))
    return [(t, k if n % 2 == 0 else nk - 1 - k) for n, t in enumerate(ts) for k in range(nk)]


def gen_fused(name, o):
    ZZ = o.get('zz', True)
    dbg = o.get('dbg', '')
    SLEEP[0] = o.get('sleep', 0)
    PFL[:] = o.get('pfl', PFL)
    KVSC = 'sc1' if o.get('kvsc1', False) else ''
    p = Prog()
    main = p.segment()
    p(f"""
    s_cmp_ge_u32 s2, 256
    s_cbranch_scc1 {name}_end
    s_load_dwordx16 s[4:19], s[0:1], 0
    s_load_dwordx8 s[20:27], s[0:1], 64
    v_lshrrev_b32 v1, 6, v0
    v_and_b32 v0, 63, v0
    v_readfirstlane_b32 s{s_w}, v1
    s_and_b32 s{s_t0}, s2, 7
    s_lshr_b32 s{s_t1}, s2, 3
    s_lshr_b32 s{s_b}, s{s_t0}, 1
    s_lshl_b32 s{s_b}, s{s_b}, 2
    s_and_b32 s{s_j}, s{s_t1}, 3
    s_add_u32 s{s_b}, s{s_b}, s{s_j}
    s_and_b32 s{s_j}, s{s_t0}, 1
    s_lshl_b32 s{s_j}, s{s_j}, 3
    s_lshr_b32 s{s_t1}, s{s_t1}, 2
    s_add_u32 s{s_j}, s{s_j}, s{s_t1}
    {f"s_xor_b32 s{s_j}, s{s_j}, {o['jxor']}" if o.get('jxor') else ''}
    s_lshl_b32 s{s_tok}, s{s_b}, 2
    s_add_u32 s{s_tok}, s{s_tok}, s{s_w}
    s_lshl_b32 s{s_tok}, s{s_tok}, 5
    v_lshlrev_b32 v{vL16}, 4, v0
    v_cmp_eq_u32 vcc, 0, v0
    v_mov_b32 v{vOne}, 0x7ffffff0
    v_cndmask_b32 v{vZ}, v{vOne}, 0, vcc
    v_mov_b32 v{vOne}, 1
    """)

    R3 = o.get('rot3', False)
    SL = 24576
    RED, CSQ = 147456, 162816
    vt = 4
    vD = 12
    vD0 = 18
    vB = 22
    vA = 28
    vST = 34
    ONES = 36
    vRS = 40
    s_kv, s_xoff, s_woff, s_dm, s_pb, s_w6 = 61, 62, 63, 64, 65, 66
    s_hd, s_wdo, s_wm0, s_po, s_pk, s_ko, s_vo, s_pj = 67, 68, 69, 70, 71, 72, 73, 3
    p(f"""
    v_lshrrev_b32 v{vt}, 3, v0
    v_lshrrev_b32 v{vt+1}, 4, v0
    v_and_b32 v{vt+2}, 7, v0
    v_xor_b32 v{vt+3}, v{vt+1}, v{vt+2}
    v_lshlrev_b32 v{vt+3}, 4, v{vt+3}
    v_lshl_add_u32 v{vt+3}, v{vt}, 11, v{vt+3}
    v_xor_b32 v{vt+4}, 64, v{vt+3}
    v_add_u32 v{vD}, 4096, v{vt+3}
    v_add_u32 v{vD+1}, {16384 + 4096 - 1024}, v{vt+4}
    v_add_u32 v{vD0}, {128 + 4096 - 2048}, v{vt+3}
    v_add_u32 v{vD0+1}, {16384 + 128 + 4096 - 3072}, v{vt+4}
    v_lshrrev_b32 v{vt+5}, 5, v0
    v_lshlrev_b32 v{vt+5}, 1, v{vt+5}
    v_xor_b32 v{vt+5}, v{vt+5}, v0
    v_lshlrev_b32 v{vD0+2}, 4, v{vt+5}
    v_add_u32 v{vD+2}, {32768 + 4096 - 2048}, v{vt+3}
    v_add_u32 v{vD+3}, {32768 + 16384 + 4096 - 3072}, v{vt+4}
    v_and_b32 v{vt+1}, 1, v{vt+1}
    v_lshlrev_b32 v{vt+1}, 1, v{vt+1}
    v_xor_b32 v{vt+1}, v{vt+1}, v{vt+2}
    v_lshlrev_b32 v{vt+1}, 4, v{vt+1}
    v_lshl_add_u32 v{vD+4}, v{vt}, 11, v{vt+1}
    v_xor_b32 v{vD+5}, 64, v{vD+4}
    v_add_u32 v{vD+5}, {8*2048 - 1024}, v{vD+5}
    s_lshr_b32 s{s_t0}, s{s_j}, 1
    s_lshl_b32 s{s_kv}, s{s_b}, 3
    s_add_u32 s{s_kv}, s{s_kv}, s{s_t0}
    s_lshl_b32 s{s_kv}, s{s_kv}, 4
    s_lshl_b32 s{s_t0}, s{s_kv}, 11
    s_lshl_b32 s{s_t1}, s{s_w}, 9
    s_add_u32 s{s_t0}, s{s_t0}, s{s_t1}
    s_add_u32 s{s_t1}, s{s_w}, 2
    s_mul_i32 s{s_dm}, s{s_t1}, {SL}
    s_mov_b32 m0, s{s_dm}
    s_mul_i32 s{s_xoff}, s{s_b}, {128 * o.get('rotb', 4)}
    s_mul_i32 s{s_woff}, s{s_j}, {128 * o.get('rotj', 2)}
    s_add_u32 s{s_xoff}, s{s_xoff}, s{s_woff}
    s_and_b32 s{s_xoff}, s{s_xoff}, 2047
    s_mul_i32 s{s_w6}, s{s_w}, 6144
    s_lshl_b32 s{s_ko}, s{s_w}, 14
    s_bfe_u32 s{s_vo}, s{s_j}, 0x20001
    s_lshl_b32 s{s_vo}, s{s_vo}, 14
    s_and_b32 s{s_t1}, s{s_tok}, 0x1e0
    s_lshl_b32 s{s_t1}, s{s_t1}, 5
    s_add_u32 s{s_vo}, s{s_vo}, s{s_t1}
    v_lshlrev_b32 v{vt+6}, 7, v0
    """)
    srd(p, sA, pX, S * D * 2 + 4096, bias=-4096)
    p.add(Raw("; @fine 4"))
    p(f"""
    s_bitcmp0_b32 s{s_j}, 0
    s_cselect_b64 s[{sB}:{sB+1}], s[{pWK}:{pWK+1}], s[{pWV}:{pWV+1}]
    s_mov_b32 s{sB+2}, {D * 64}
    s_mov_b32 s{sB+3}, 0x20000
    """)
    if o.get('kvtouch', True):
        p("s_mov_b64 exec, 0xff")
        p(f"buffer_load_dword v255, v{vt+6}, s[{sB}:{sB+3}], s{s_vo} offen", nowaw=True)
        p.cur[-1].awr = set()
        p("s_mov_b64 exec, -1")
    xo = [vD, vD + 1, vD0, vD0 + 1]
    for n in range(8):
        if n == 4:
            p(f"s_add_u32 m0, m0, 4096\ns_add_u32 s{s_t0}, s{s_t0}, 256")
        p(f"buffer_load_dwordx4 v{xo[n & 3]}, s[{sA}:{sA+3}], s{s_t0} offen offset:{(n & 3) * 1024} lds", awr=['P00'], nowaw=True)

    def wkv(q):
        p("s_add_u32 m0, m0, 4096")
        if q: p(f"s_add_u32 s{s_ko}, s{s_ko}, 4096")
        for i in range(4):
            p(f"buffer_load_dwordx4 v{vD0+2}, s[{sB}:{sB+3}], s{s_ko} offen offset:{i*1024} lds", awr=[f'P0{q}'], nowaw=True)
    EARLY = o.get('early', 0)
    for q in range(EARLY): wkv(q)
    p.add(Raw("; @fine 5"))
    p(f"""
    s_lshl_b32 s{s_t0}, s{s_tok}, 11
    s_lshl_b32 s{s_t1}, s{s_w}, 15
    s_lshl_b32 s{s_t2}, s{s_j}, 7
    s_add_u32 s{s_t1}, s{s_t1}, s{s_t2}
    """)
    srd(p, sC, pX, 32 * 2048 + 4096, off=s_t0, bias=-4096)
    srd(p, sD, pWQ, f"s_sub_u32 {{d}}, {D * D * 2}, s{s_t1}", off=s_t1)

    def dma1(m0expr, tag):
        o_ = [Ins(m0expr), Ins(f"s_lshl_b32 s{s_woff}, s{s_xoff}, 10")]
        for i in range(4):
            o_.append(Ins(f"buffer_load_dwordx4 v{vD+i}, s[{sC}:{sC+3}], s{s_xoff} offen offset:{i*1024} lds", awr=[tag], nowaw=True))
        o_ += [Ins("s_add_u32 m0, m0, 4096"), Ins(f"s_add_u32 s{s_xoff}, s{s_xoff}, 128")]
        for i in range(2):
            o_.append(Ins(f"buffer_load_dwordx4 v{vD+4+i}, s[{sD}:{sD+3}], s{s_woff} offen offset:{i*1024} lds", awr=[tag], nowaw=True))
        o_.append(Ins(f"s_and_b32 s{s_xoff}, s{s_xoff}, 2047"))
        return o_
    if o.get('qtouch', True):
        srd(p, sE, pWQ, D * D * 2)
        p(f"""
        s_lshr_b32 s{s_t0}, s2, 3
        s_lshl_b32 s{s_t0}, s{s_t0}, 2
        s_add_u32 s{s_t0}, s{s_t0}, s{s_w}
        s_lshl_b32 s{s_t0}, s{s_t0}, 14
        s_and_b32 s{s_t1}, s{s_j}, 8
        s_lshl_b32 s{s_t1}, s{s_t1}, 7
        s_add_u32 s{s_t0}, s{s_t0}, s{s_t1}
        v_lshlrev_b32 v{vt+6}, 11, v0
        s_mov_b64 exec, 0xff""")
        p(f"buffer_load_dword v255, v{vt+6}, s[{sE}:{sE+3}], s{s_t0} offen offset:384", nowaw=True)
        p.cur[-1].awr = set()
        if o.get('qlin', True):
            p(f"""
            s_lshl_b32 s{s_t0}, s2, 2
            s_add_u32 s{s_t0}, s{s_t0}, s{s_w}
            s_lshl_b32 s{s_t0}, s{s_t0}, 11
            s_mov_b64 exec, 0xffff
            v_lshlrev_b32 v{vt+6}, 7, v0""")
            p(f"buffer_load_dword v255, v{vt+6}, s[{sE}:{sE+3}], s{s_t0} offen", nowaw=True)
            p.cur[-1].awr = set()
        p("s_mov_b64 exec, -1")
    srd(p, sE, pWO, D * D * 2)

    srd(p, sT, pWS, ST[1], bias=ST[0])
    srd(p, sA, pWS, KV[1], bias=KV[0])
    p(f"""
    v_and_b32 v{vt}, 15, v0
    v_lshrrev_b32 v{vt+1}, 1, v{vt}
    v_lshrrev_b32 v{vt+2}, 4, v0
    v_xor_b32 v{vt+1}, v{vt+1}, v{vt+2}
    v_lshlrev_b32 v{vt+1}, 4, v{vt+1}
    v_lshl_add_u32 v{vt+1}, v{vt}, 7, v{vt+1}
    v_xor_b32 v{vt+3}, 64, v{vt+1}
    v_add_u32 v{vB}, s{s_w6}, v{vt+1}
    v_add_u32 v{vB+1}, s{s_w6}, v{vt+3}
    v_add_u32 v{vA}, s{s_dm}, v{vt+1}
    v_add_u32 v{vA+1}, s{s_dm}, v{vt+3}
    v_lshrrev_b32 v{vt}, 5, v0
    v_and_b32 v{vt+1}, 3, v0
    v_lshlrev_b32 v{vt+1}, 3, v{vt+1}
    v_bfe_u32 v{vt+2}, v0, 2, 2
    v_bfe_u32 v{vt+3}, v0, 4, 1
    v_lshl_add_u32 v{vt+2}, v{vt+3}, 3, v{vt+2}
    v_lshl_add_u32 v{vt+4}, v{vt}, 10, v{vt+1}
    v_lshl_add_u32 v{vt+4}, v{vt+2}, 6, v{vt+4}
    v_lshl_add_u32 v{vt+4}, v{vt+3}, 5, v{vt+4}
    v_add_u32 v{vA+2}, s{s_dm}, v{vt+4}
    v_xor_b32 v{vA+3}, 32, v{vA+2}
    v_mul_u32_u24 v{vt}, 6144, v{vt}
    v_add_u32 v{vt}, v{vt}, v{vt+1}
    v_lshl_add_u32 v{vt}, v{vt+2}, 7, v{vt}
    v_bfe_u32 v{vt+4}, v0, 3, 2
    v_xor_b32 v{vt+4}, s{s_w}, v{vt+4}
    v_lshl_add_u32 v{vB+2}, v{vt+4}, 5, v{vt}
    v_xor_b32 v{vB+3}, 32, v{vB+2}
    v_xor_b32 v{vB+4}, 64, v{vB+2}
    v_xor_b32 v{vB+5}, 0x60, v{vB+2}
    """)
    for i in range(4):
        p(f"v_mov_b32 v{ONES+i}, 0x3f803f80")
    on = rr('v', ONES, 4)
    AB = 48
    CSA = 80
    PA = 84
    FB = 128
    TR = 112
    NR = 8
    Q = lambda x, m: rr('v', 16 + x * 8 + m * 4, 4)
    Sb = lambda x: 64 + 16 * x
    RSV = 112
    Nb = lambda x: 144 + 16 * x
    Ob = lambda x: 176 + 16 * x
    Lb = lambda x: 208 + 4 * x
    Pb = lambda x: 216 + 8 * x
    SEL, vWD, vPF, vDum, vOS, vPW, vCS, vGP, vMA, vRA, vFF = 232, 236, 240, 241, 242, 243, 244, 245, 246, 247, 248

    def att_init():
        for i in list(range(Ob(0), Lb(1) + 4, 2)) + list(range(Pb(1), Pb(1) + 8, 2)):
            p(f"v_pk_mov_b32 {rr('v', i, 2)}, 0, 0")
        for i in range(8): p(f"v_accvgpr_write_b32 a{64 + (NR-1)*8 + i}, 0")
    for i in range(AB, CSA + 4, 2):
        p(f"v_pk_mov_b32 {rr('v', i, 2)}, 0, 0")
    p.add(Raw(f"""    s_or_b32 s{s_t0}, s2, s{s_w}
    s_cbranch_scc1 {name}_noclr
    s_movk_i32 s{s_t0}, {ST_KVC}
""" + "".join(f"    buffer_store_dwordx4 {rr('v', AB, 4)}, v{vL16}, s[{sT}:{sT+3}], s{s_t0} offen offset:{i*1024} sc1\n" for i in range(4)) + f"{name}_noclr:"))
    att_init()
    for i in range(4):
        p(f"v_mov_b32 v{vFF+i}, -1")
    p(f"""
    v_lshrrev_b32 v{vt}, 2, v0
    v_and_b32 v{vt}, 4, v{vt}
    v_xor_b32 v{vt}, v{vt}, v0
    v_and_b32 v{vt}, 7, v{vt}
    v_cmp_eq_u32 vcc, 0, v{vt}
    v_lshrrev_b32 v{vt}, 3, v0
    v_and_b32 v{vt+1}, 6, v{vt}
    v_cndmask_b32 v{SEL}, 0, v{ONES}, vcc
    v_mov_b32 v{SEL+1}, v{SEL}
    v_mov_b32 v{SEL+2}, v{SEL}
    v_mov_b32 v{SEL+3}, v{SEL}
    v_and_b32 v{vt+2}, 7, v0
    v_xor_b32 v{vt+1}, v{vt+1}, v{vt+2}
    v_lshlrev_b32 v{vt+1}, 4, v{vt+1}
    v_lshl_add_u32 v{vWD}, v{vt}, 11, v{vt+1}
    v_add_u32 v{vWD+1}, {8*2048 - 1024}, v{vWD}
    v_add_u32 v{vWD+2}, {16*2048 - 2048}, v{vWD}
    v_add_u32 v{vWD+3}, {24*2048 - 3072}, v{vWD}
    s_lshl_b32 s{s_wdo}, s{s_w}, 16
    s_lshl_b32 s{s_t1}, s{s_j}, 7
    s_add_u32 s{s_wdo}, s{s_wdo}, s{s_t1}
    s_lshl_b32 s{s_wm0}, s{s_w}, 12
    {f's_and_b32 s{s_t0}, s{s_j}, 1' if R3 else ''}
    {f's_lshl_b32 s{s_t0}, s{s_t0}, 16' if R3 else ''}
    {f's_add_u32 s{s_wm0}, s{s_wm0}, s{s_t0}' if R3 else ''}
    s_lshl_b32 s{s_pj}, s{s_tok}, 6
    s_add_u32 s{s_pj}, s{s_pj}, s{s_t1}
    s_lshl_b32 s{s_hd}, s{s_j}, 1
    s_lshr_b32 s{s_t0}, s{s_w}, 1
    s_add_u32 s{s_hd}, s{s_hd}, s{s_t0}
    v_mul_u32_u24 v{vt}, 9363, v0
    v_lshrrev_b32 v{vt}, 16, v{vt}
    v_mul_u32_u24 v{vt+1}, {7168 - 7*128}, v{vt}
    v_cmp_gt_u32 vcc, 14, v0
    v_lshl_add_u32 v{vPF}, v0, 7, v{vt+1}
    s_lshr_b32 s{s_t0}, s2, 3
    v_cndmask_b32 v{vPF}, -1, v{vPF}, vcc
    v_and_b32 v{vPF}, 0x7fffff80, v{vPF}
    s_lshl_b32 s{s_t0}, s{s_t0}, 2
    s_add_u32 s{s_t0}, s{s_t0}, s{s_w}
    s_mul_i32 s{s_pk}, s{s_t0}, {2 * 7168}
    s_and_b32 s{s_t0}, s2, 7
    s_mul_i32 s{s_t0}, s{s_t0}, 896
    s_add_u32 s{s_pk}, s{s_pk}, s{s_t0}
    v_and_b32 v{vt}, 15, v0
    v_bfe_u32 v{vt+1}, v0, 4, 1
    v_lshrrev_b32 v{vt+2}, 5, v0
    v_lshrrev_b32 v{vt+3}, 4, v0
    v_lshlrev_b32 v{vMA}, 3, v{vt}
    s_lshl_b32 s{s_t0}, s{s_w}, 8
    s_and_b32 s{s_t1}, s{s_w}, 2
    s_lshl_b32 s{s_t1}, s{s_t1}, 6
    s_add_u32 s{s_t0}, s{s_t0}, s{s_t1}
    s_add_u32 s{s_t0}, s{s_t0}, {RED}
    v_lshl_add_u32 v{vRA}, v{vt+2}, 4, s{s_t0}
    v_add_u32 v253, 8192, v{vL16}
    v_lshl_add_u32 v{vPW}, v{vt+3}, 2, v{vMA}
    v_lshlrev_b32 v{vt}, 4, v{vt}
    v_lshl_add_u32 v{vOS}, v{vt+1}, 15, v{vt}
    v_lshl_add_u32 v{vOS}, v{vt+2}, 8, v{vOS}
    s_lshl_b32 s{s_t0}, s{s_w}, 6
    s_add_u32 s{s_t0}, s{s_t0}, {CSQ}
    v_lshl_add_u32 v{vCS}, v{vt+3}, 4, s{s_t0}
    v_lshlrev_b32 v{vGP}, 5, v{vMA}
    s_bitcmp1_b32 s{s_j}, 0
    s_cselect_b32 s{s_t0}, 9, 10
    s_cselect_b32 s{s_t1}, 8, 9
    v_lshl_add_u32 v{vST}, v{vt+1}, s{s_t0}, v{vt}
    v_lshl_add_u32 v{vST}, v{vt+2}, s{s_t1}, v{vST}
    s_mul_i32 s{s_t0}, s{s_w}, 5120
    s_add_u32 s{s_t0}, s{s_t0}, {RED - 5120}
    v_add_u32 v{vST+1}, s{s_t0}, v{vL16}
    v_and_b32 v{vt}, 3, v0
    v_cmp_eq_u32 s[0:1], 1, v{vt}
    v_cmp_eq_u32 s[14:15], 2, v{vt}
    v_cmp_eq_u32 s[74:75], 3, v{vt}
    v_bfe_u32 v{vt}, v0, 2, 2
    v_cmp_eq_u32 vcc, v{vt}, v{vt+3}
    """)
    SMF = o.get('smf', True)
    vIX = 252
    if SMF:
        p(f"""
        v_and_b32 v{vt+5}, 6, v0
        v_cmp_eq_u32 s[{sB}:{sB+1}], 0, v{vt+5}
        """.replace(f"s[{sB}:{sB+1}]", "s[76:77]" if False else "s[58:59]"))
        p(f"""
        v_cndmask_b32 v{SEL}, 0, v{ONES}, s[58:59]
        v_cndmask_b32 v{SEL+1}, 0, v{ONES}, s[58:59]
        v_cmp_eq_u32 s[58:59], 4, v{vt+5}
        v_and_b32 v{vIX}, 1, v0
        v_mul_u32_u24 v{vIX}, 0xaaaa, v{vIX}
        v_cndmask_b32 v{SEL+2}, 0, v{ONES}, s[58:59]
        v_cndmask_b32 v{SEL+3}, 0, v{ONES}, s[58:59]
        v_add_u32 v{vIX}, 0x4444, v{vIX}""")
    smf = lambda x: f"v_smfmac_f32_16x16x64_bf16 {rr('v', Lb(x), 4)}, {rr('v', SEL, 4)}, {rr('v', Pb(x), 8)}, v{vIX}"
    for q in range(EARLY, 4): wkv(q)
    srd(p, sB, pDBG, 256)
    p.add(Raw("; @stamp 0"))
    X0 = lambda G: rr('a', FB + 4 * G, 4)
    W0 = lambda G, e: rr('a', FB + 32 + (G * 2 + e) * 4, 4)
    acc0 = lambda k: rr('v', PA + 4 * k, 4)

    def rd0(q):
        o_ = []
        for G in (2 * q, 2 * q + 1):
            o_.append(Ins(f"ds_read_b128 {X0(G)}, v{vA + (G & 1)} offset:{q * 2048}", rd=[f'P0{q}']))
            o_ += [Ins(f"ds_read_b64_tr_b16 {rr('a', FB + 32 + (G*2+e)*4 + 2*b, 2)}, v{vA+2+e} offset:{8192 + G*2048 + b*256}")
                   for e in range(2) for b in range(2)]
        return o_

    def mf0(q):
        o_ = []
        for G in (2 * q, 2 * q + 1):
            c = "0" if G == 0 else None
            o_ += [mf16(acc0(4), on, X0(G), c), mf16(acc0(5), X0(G), X0(G), c), mf16(acc0(0), W0(G, 0), X0(G), c),
                   mf16(acc0(2), W0(G, 0), on, c), mf16(acc0(1), W0(G, 1), X0(G), c), mf16(acc0(3), W0(G, 1), on, c)]
        return o_
    p.add(rd0(0))
    p.add(Raw("; @fine 6"))
    later = dma1(f"s_mov_b32 m0, s{s_w6}", 'L0') + dma1(f"s_add_u32 m0, s{s_w6}, {SL}", 'Lx')

    def some(k):
        n = 0
        while later and n < k:
            x = later.pop(0); p.add(x); n += x.kind == 'vmem'
    RSA = PA + 24
    for q in range(4):
        rds = rd0(q + 1) if q < 3 else []
        for i, m in enumerate(mf0(q)):
            p(m)
            if rds: p.add(rds.pop(0))
            if i % 4 == 1: some(1)
    assert EARLY < 4
    p.add(Raw(f"""    s_or_b32 s{s_t0}, s2, s{s_w}
    s_cbranch_scc1 {name}_nordy
    buffer_store_dword v{vOne}, v{vZ}, s[{sB}:{sB+3}], 0 offen sc1
{name}_nordy:"""))
    some(99)
    p.add(Raw("; @fine 7"))
    g = PA + 20
    p(f"""
    v_cndmask_b32 v{g}, v{g}, v{g+1}, s[0:1]
    v_cndmask_b32 v{g}, v{g}, v{g+2}, s[14:15]
    v_cndmask_b32 v{g}, v{g}, v{g+3}, s[74:75]
    v_cndmask_b32 v{PA+17}, 0, v{g}, vcc
    s_cmp_eq_u32 s{s_w}, 0
    s_cbranch_scc1 {name}_p0fin
    """)
    red_w = p.segment()
    for k in (4, 0, 2, 1, 3):
        p(f"ds_write_b128 v{vST+1}, {acc0(k)} offset:{k*1024}")
    p("s_waitcnt lgkmcnt(0)")
    p("s_barrier")
    p(f"s_branch {name}_p1")
    fin = p.segment()
    p(f"{name}_p0fin:")
    p(f"""
    s_mov_b32 s{s_t1}, {f32hex(1.0/1024)}""")
    p("s_barrier")
    for k in (4, 0, 2, 1, 3):
        for w in range(3):
            p(f"ds_read_b128 {rr('v', TR + (k*3+w)*4, 4)}, v{vST+1} offset:{5120*(w+1) + k*1024}")

    def red(k):
        a, b = PA + 4 * k, TR + k * 12
        for h in (0, 2):
            p(f"v_pk_add_f32 {rr('v', a+h, 2)}, {rr('v', a+h, 2)}, {rr('v', b+h, 2)}")
            p(f"v_pk_add_f32 {rr('v', b+4+h, 2)}, {rr('v', b+4+h, 2)}, {rr('v', b+8+h, 2)}")
        for h in (0, 2):
            p(f"v_pk_add_f32 {rr('v', a+h, 2)}, {rr('v', a+h, 2)}, {rr('v', b+4+h, 2)}")
    vM, vR = PA + 20, PA + 21
    d = PA + 24
    red(4)
    xsum16_32(p, f"v{PA+17}", f"v{vt}")
    p(f"""
    v_mul_f32 v{vM}, s{s_t1}, v{PA+16}
    v_mul_f32 v{vt}, v{vM}, v{vM}
    v_fma_f32 v{vt}, v{PA+17}, s{s_t1}, -v{vt}
    v_max_f32 v{vt}, 0, v{vt}
    v_add_f32 v{vt}, {f32hex(1e-5)}, v{vt}
    v_rsq_f32 v{vR}, v{vt}
    s_lshr_b32 s{s_t0}, s{s_kv}, 5
    s_lshl_b32 s{s_t0}, s{s_t0}, 12
    s_bfe_u32 s{s_t1}, s{s_kv}, 0x10004
    """)
    mr = rr('v', vM, 2)
    for e in range(2):
        red(e); red(2 + e)
        a = PA + 4 * e
        for r in (0, 2): p(f"v_pk_fma_f32 {rr('v', a+r, 2)}, {rr('v', a+8+r, 2)}, {mr}, {rr('v', a+r, 2)} op_sel_hi:[1,0,1] neg_lo:[0,1,0] neg_hi:[0,1,0]")
        for r in (0, 2): p(f"v_pk_mul_f32 {rr('v', a+r, 2)}, {rr('v', a+r, 2)}, {mr} op_sel:[0,1]")
        p(f"v_cvt_pk_bf16_f32 v{d+2*e}, v{a}, v{a+1}")
        p(f"v_cvt_pk_bf16_f32 v{d+2*e+1}, v{a+2}, v{a+3}")
    p(f"""
    s_bitcmp1_b32 s{s_j}, 0
    s_cbranch_scc1 {name}_p0v
    """)
    fin_k = p.segment()
    p(f"""
    s_lshl_b32 s{s_t1}, s{s_t1}, 8
    s_add_u32 s{s_t0}, s{s_t0}, s{s_t1}
    buffer_store_dwordx4 {rr('v', d, 4)}, v{vST}, s[{sA}:{sA+3}], s{s_t0} offen sc1
    s_lshl_b32 s{s_t0}, s{s_kv}, 3
    s_mov_b64 exec, 0xffff
    buffer_store_dwordx2 {mr}, v{vMA}, s[{sT}:{sT+3}], s{s_t0} offen offset:{ST_MR} sc1
    s_mov_b64 exec, -1
    s_branch {name}_p1""")
    fin_v = p.segment()
    p(f"""
    {name}_p0v:
    v_lshrrev_b32 v{vt+1}, 4, v0
    v_add_u32 v{vt}, v{vt+1}, v{vMA}
    v_lshlrev_b32 v{vt}, 3, v{vt}
    v_add_u32 v{vt}, {RED}, v{vt}
    ds_write_b64 v{vt}, {rr('v', d, 2)}
    ds_write_b64 v{vt}, {rr('v', d+2, 2)} offset:32
    v_lshrrev_b32 v{vt+3}, 2, v0
    v_lshlrev_b32 v{vt+3}, 6, v{vt+3}
    v_and_b32 v{vt+4}, 3, v0
    v_lshl_add_u32 v{vt+3}, v{vt+4}, 3, v{vt+3}
    v_add_u32 v{vt+3}, {RED}, v{vt+3}
    ds_read_b64_tr_b16 {rr('v', PA, 2)}, v{vt+3}
    ds_read_b64_tr_b16 {rr('v', PA+2, 2)}, v{vt+3} offset:32
    s_lshl_b32 s{s_t1}, s{s_t1}, 10
    s_add_u32 s{s_t0}, s{s_t0}, s{s_t1}
    v_permlane32_swap_b32 v{PA}, v{PA+2}
    v_permlane32_swap_b32 v{PA+1}, v{PA+3}
    buffer_store_dwordx4 {rr('v', PA, 4)}, v{vST}, s[{sA}:{sA+3}], s{s_t0} offen offset:2048 sc1
    """)

    rest = p.segment()
    p(f"{name}_p1:")
    p.add(Raw("; @stamp 1"))
    ACC = lambda F, t: rr('v', AB + (F * 2 + t) * 4, 4)
    X1 = lambda s, t, g: rr('a', FB + s * 48 + (t * 2 + g) * 4, 4)
    W1 = lambda s, F, g: rr('a', FB + s * 48 + 16 + (F * 2 + g) * 4, 4)

    def reads1(s, base, va):
        xr = lambda t, g: Ins(f"ds_read_b128 {X1(s, t, g)}, v{va+g} offset:{base + t*2048}")
        wr = lambda F, g, b: Ins(f"ds_read_b64_tr_b16 {rr('a', FB + s*48 + 16 + (F*2+g)*4 + 2*b, 2)}, v{va+2+F} offset:{base + 2*g*6144 + 4096 + b*512}")
        return [wr(0, 0, 0), wr(0, 0, 1), wr(0, 1, 0), wr(0, 1, 1), xr(0, 0), xr(0, 1), xr(1, 0), xr(1, 1)] + \
               [wr(F, g, b) for F in range(1, 4) for g in range(2) for b in range(2)]
    p(f"""
    s_lshl_b32 s{s_t0}, s2, 2
    s_add_u32 s{s_t0}, s{s_t0}, s{s_w}
    s_lshl_b32 s{s_t0}, s{s_t0}, 10
    s_add_u32 s{s_t0}, s{s_t0}, {ST_FO}
    buffer_store_dwordx4 {rr('v', AB, 4)}, v{vL16}, s[{sT}:{sT+3}], s{s_t0} offen sc1""")
    p.add(Raw(f"""    s_cmp_ge_u32 s2, 2
    s_cbranch_scc1 {name}_nogz
    s_sub_u32 s{s_t0}, s{s_t0}, {ST_FO - ST_RS2}
    buffer_store_dwordx4 {rr('v', AB, 4)}, v{vL16}, s[{sT}:{sT+3}], s{s_t0} offen sc1
{name}_nogz:"""))
    rdy = f"buffer_load_dword v{vt+5}, v{vZ}, s[{sB}:{sB+3}], 0 offen sc1"
    for u in range(2, 5):
        if u == 2: p.add(Raw(f"    s_cmp_lg_u32 s{s_w}, 0\n    s_cbranch_scc1 {name}_nor\n    {rdy}\n{name}_nor:"))
        p.add(dma1(f"s_add_u32 m0, s{s_w6}, {u*SL}", 'Lx'))
    p.add(Raw("; @fine 8"))
    p("s_barrier", rd=['L0'])
    p.add(Raw("; @fine 9"))
    p.add(reads1(0, 0, vB))
    for i in range(6):
        p(f"v_mov_b32 v{vA+i}, v{vB+i}")
    p(f"""
    s_mov_b32 s{s_pb}, {2 * SL}
    s_add_u32 s{s_dm}, s{s_w6}, {2 * 2 * SL}
    s_and_b32 s{s_kv}, s2, 15
    s_lshl_b32 s{s_kv}, s{s_kv}, 8
    s_add_u32 s{s_kv}, s{s_kv}, {ST_KVC}
    s_mov_b32 s{s_spin}, {SPIN}
    s_lshl_b32 s{s_t2}, s{s_w}, 8
    s_add_u32 s{s_t2}, s{s_t2}, 5
    s_mov_b32 s{s_cnt}, 5""")

    def stage1(s, head, fill, rds):
        mf = [mf16(rr('v', CSA, 4), W1(s, 0, g), on) for g in range(2)]
        for F in range(4):
            mf += [mf16(ACC(F, t), W1(s, F, g), X1(s, t, g)) for t, g in zz(F, 2, 2, ZZ)]
        p.add(head)
        rds = list(rds)
        for i, m in enumerate(mf):
            if 'p1nomf' not in dbg: p(m)
            for _ in range(2 if i in (0, 1) else 1):
                if rds:
                    x = rds.pop(0)
                    if 'p1nods' not in dbg: p.add(x)
            p.add([x for x in fill.get(i, []) if not ('p1nodma' in dbg and getattr(x, 'kind', '') == 'vmem')])

    def one_per_gap(lst, start):
        return {start + i: [x] for i, x in enumerate(lst)}

    def spaced(lst):
        pos = [0, 1, 2, 5, 8, 11, 12, 13, 14, 17, 17]
        out = {}
        for k, x in zip(pos, lst): out.setdefault(k, []).append(x)
        return out
    upd = lambda: {3: [Ins(f"v_add_u32 v{vA+2}, s{s_pb}, v{vB+2}")], 6: [Ins(f"v_add_u32 v{vA}, s{s_pb}, v{vB}")],
                   7: [Ins(f"v_add_u32 v{vA+1}, s{s_pb}, v{vB+1}")], 10: [Ins(f"v_add_u32 v{vA+3}, s{s_pb}, v{vB+3}")],
                   15: [Ins(f"v_add_u32 v{vA+4}, s{s_pb}, v{vB+4}")], 17: [Ins(f"v_add_u32 v{vA+5}, s{s_pb}, v{vB+5}")]}
    nextpb = lambda: [Ins(f"s_add_u32 s{s_pb}, s{s_pb}, {2*SL}"), Ins(f"s_cmp_eq_u32 s{s_pb}, {6*SL}"), Ins(f"s_cselect_b32 s{s_pb}, 0, s{s_pb}")]

    def merge(*fs):
        out = {}
        for f in fs:
            for k, v in f.items(): out.setdefault(k, []).extend(v)
        return out
    sync = lambda n: [Ins(f"s_waitcnt vmcnt({n}) lgkmcnt(12)"), Ins("s_barrier")]
    s_nx = s_t0
    p(f"s_mov_b32 s{s_nx}, s{s_w6}")
    p.add(Raw("; @fine 10"))
    p.begin_loop(f"{name}_p1loop", 5, align=False)
    stage1(0, sync(18), merge(spaced(dma1(f"s_add_u32 m0, s{s_dm}, {SL}", 'Lx')[:-1]), upd(), {16: [Ins(f"s_and_b32 s{s_xoff}, s{s_xoff}, 2047")]}), reads1(1, SL, vA))
    arr = Raw(f"""    s_cmp_lg_u32 s{s_cnt}, s{s_t2}
    s_cbranch_scc1 {name}_noarr
{name}_rchk:
    v_readfirstlane_b32 s{s_t1}, v{vt+5}
    s_sub_u32 s{s_spin}, s{s_spin}, 1
    s_cselect_b32 s{s_t1}, 1, s{s_t1}
    s_cmp_lg_u32 s{s_t1}, 0
    s_cbranch_scc1 {name}_arr
    {rdy}
    s_waitcnt vmcnt(0)
    s_branch {name}_rchk
{name}_arr:
    buffer_atomic_add v{vOne}, v{vZ}, s[{sT}:{sT+3}], s{s_kv} offen
{name}_noarr:""")
    stage1(1, sync(18) + [arr], merge({3: [Ins(f"s_mov_b32 s{s_dm}, s{s_nx}")], 4: [Ins(f"s_add_u32 s{s_nx}, s{s_pb}, s{s_w6}")],
                                        6: nextpb()[:1], 7: nextpb()[1:], 9: [Ins(f"s_sub_u32 s{s_cnt}, s{s_cnt}, 1")],
                                        15: [Ins(f"s_and_b32 s{s_xoff}, s{s_xoff}, 2047")], 16: [Ins(f"s_cmp_lg_u32 s{s_cnt}, 0")]},
                                       spaced(dma1(f"s_mov_b32 m0, s{s_nx}", 'Lx')[:-1])), reads1(0, 0, vA))
    p(f"s_cbranch_scc1 {name}_p1loop")
    p.end_loop()
    p.add(Raw("; @fine 11"))
    Kf = lambda b, m: rr('a', (b % NR) * 8 + m * 4, 4)
    Vf = lambda b, m: rr('a', 64 + (b % NR) * 8 + m * 4, 4)
    vMR = 84
    kld = lambda b, m: Ins(f"buffer_load_dwordx4 {Kf(b, m)}, v{vL16}, s[{sA}:{sA+3}], s{s_ko} offen offset:{m*1024} {KVSC}")
    vld = lambda b, m: Ins(f"buffer_load_dwordx4 {Vf(b, m)}, v{vL16}, s[{sA}:{sA+3}], s{s_vo} offen offset:{2048 + m*1024} {KVSC}")

    vK2 = 253
    kld2 = lambda b, m: Ins(f"buffer_load_dwordx4 {Kf(b, m)}, v{vK2}, s[{sA}:{sA+3}], s{s_vo} offen offset:{m*1024} {KVSC}")

    def kv_list():
        o_ = [Ins(f"s_mov_b32 s{s_ko}, 0"), Ins(f"s_mov_b32 s{s_vo}, 0")]
        for b in range(NR):
            o_ += [kld(b, 0), kld(b, 1), Ins(f"s_add_u32 s{s_ko}, s{s_ko}, 4096")]
            if b < NR - 2:
                o_ += [vld(b, 0), vld(b, 1), Ins(f"s_add_u32 s{s_vo}, s{s_vo}, 4096")]
        return o_

    def fill_kv():
        p.add(kv_list())
    gl = f"buffer_load_dword v{vt+5}, v{vGP}, s[{sT}:{sT+3}], s{s_kv} offen sc1"
    stage1(0, sync(18), merge(spaced(dma1(f"s_add_u32 m0, s{s_dm}, {SL}", 'Lx')[:-1]), upd(), {16: [Ins(f"s_and_b32 s{s_xoff}, s{s_xoff}, 2047")]}), reads1(1, SL, vA))
    gp = Raw(f"""    s_branch {name}_gchk
{name}_gpoll:
    {gl}
    s_waitcnt vmcnt(0)
{name}_gchk:
    v_cmp_gt_u32 vcc, 16, v{vt+5}
    s_sub_u32 s{s_spin}, s{s_spin}, 1
    s_cbranch_scc1 {name}_gdone
    s_cbranch_vccnz {name}_gpoll
{name}_gdone:""")
    todo = [Ins(f"buffer_load_dwordx2 {rr('v', vMR+2*t, 2)}, v{vMA}, s[{sT}:{sT+3}], s{s_t0} offen offset:{ST_MR + 128*t} sc1") for t in range(2)] + kv_list()

    def take(k):
        o_, n = [], 0
        while todo and n < k:
            x = todo.pop(0); o_.append(x); n += x.kind == 'vmem'
        return o_
    PS = o.get('pstage', 13)
    for u in range(11, 16):
        head = sync(6 * (14 - u)) if u < PS else [Raw("; @fine 12")] + sync(0) + [Raw("; @fine 13"), gp, Raw("; @fine 14")] if u == PS else []
        fill = {11: one_per_gap(nextpb(), 8), 12: upd(), 15: {10: [Ins(f"ds_write_b128 v{vCS}, {rr('v', CSA, 4)}")]}}.get(u, {})
        if u == PS - 1:
            fill = merge(fill, {2: [Ins(f"s_movk_i32 s{s_kv}, {ST_KVC}")], 4: [Ins(gl)], 5: [Ins(f"s_mov_b32 s{s_spin}, {SPIN}")],
                                11: [Ins(f"s_lshl_b32 s{s_t0}, s{s_tok}, 3")]})
        if u >= PS:
            fill = merge(fill, {i: take(1) for i in range(2, 18, 3)})
        stage1(u & 1, head, fill, reads1(1 - (u & 1), 0 if u & 1 else SL, vA) if u < 15 else [])
    p.add(Raw("; @stamp 2"))

    p("s_waitcnt lgkmcnt(0)")
    p("s_barrier")
    CS = 88
    for f in range(4):
        if f: p(f"v_xor_b32 v{vt+f}, {f*64}, v{vCS}")
        p(f"ds_read_b128 {rr('v', CS + 4*f, 4)}, v{vt+f if f else vCS}")
    XT = 131072
    QP = 112
    for t in range(2):
        p(f"v_accvgpr_write_b32 a{aMEAN+t}, v{vMR+2*t}")
        p(f"v_mul_f32 v{vMR+2*t+1}, {f32hex(LOG2E * DH ** -0.5)}, v{vMR+2*t+1}")
    p(f"s_bitcmp1_b32 s{s_w}, 0\ns_cselect_b64 vcc, -1, 0")
    for hd in range(2):
        for t in range(2):
            mr = rr('v', vMR + 2 * t, 2)
            for f in range(2):
                F = 2 * hd + f
                a = AB + (F * 2 + t) * 4
                dq = QP + hd * 8 + t * 4 + 2 * f
                for r in (0, 2): p(f"v_pk_fma_f32 {rr('v', a+r, 2)}, {rr('v', CS+4*F+r, 2)}, {mr}, {rr('v', a+r, 2)} op_sel_hi:[1,0,1] neg_lo:[0,1,0] neg_hi:[0,1,0]")
                for r in (0, 2): p(f"v_pk_mul_f32 {rr('v', a+r, 2)}, {rr('v', a+r, 2)}, {mr} op_sel:[0,1]")
                p(f"v_cvt_pk_bf16_f32 v{dq}, v{a}, v{a+1}")
                p(f"v_cvt_pk_bf16_f32 v{dq+1}, v{a+2}, v{a+3}")
                p.add(take(1))
        for i in range(8 * hd, 8 * hd + 8):
            p(f"v_cndmask_b32 v{16+i}, v{QP+i}, v{QP+(i^2)}, vcc")
        p.add(take(1))
        for i in range(4):
            p(f"v_permlane16_swap_b32 v{16+hd*8+i}, v{16+hd*8+4+i}")
    if 'Q' in dbg:
        srd(p, sB, pWS, QF[1], bias=QF[0])
        p(f"s_lshl_b32 s{s_t0}, s{s_hd}, 17\ns_lshl_b32 s{s_t1}, s{s_tok}, 6\ns_add_u32 s{s_t0}, s{s_t0}, s{s_t1}\ns_xor_b32 s{s_t1}, s{s_t0}, 0x20000")
        for x in range(2):
            for m in range(2):
                p(f"buffer_store_dwordx4 {Q(x, m)}, v{vL16}, s[{sB}:{sB+3}], s{s_t1 if x else s_t0} offen offset:{m*1024}")
    s_safe, s_fo = 65, 61
    TO = {0: (pWG, pWU, pWD), 1: (pWD, pWG, pWU)}[o.get('torder', 0)]
    SENT = o.get('sent', False)
    p(f"""
    s_mov_b64 s[{sD}:{sD+1}], s[{TO[0]}:{TO[0]+1}]
    s_mov_b32 s{sD+2}, {D * FF * 2 if o.get('prefetch', True) else 0}
    s_mov_b64 s[0:1], s[{TO[0]}:{TO[0]+1}]
    s_mov_b64 s[14:15], s[{TO[1]}:{TO[1]+1}]
    s_mov_b32 s{s_po}, {D * FF * 2}
    s_sub_u32 s{s_wdo}, s{s_wdo}, {128 * 2048}
    s_mov_b32 s{s_safe}, 0
    """)
    srd(p, sB, pWS, OF[1], bias=OF[0])

    def half(x, Kb, Vb, C, extra):
        y = 1 - x
        Sx, Px, Sy, Py = Sb(x), Pb(x), rr('v', Sb(y), 16), Pb(y)
        valu = []
        for i in range(8):
            valu.append(f"v_exp_f32 v{Sx+2*i}, v{Sx+2*i}")
            valu.append(f"v_exp_f32 v{Sx+2*i+1}, v{Sx+2*i+1}")
            if i > 0:
                valu.append(f"v_cvt_pk_bf16_f32 v{Px+i-1}, v{Sx+2*i-2}, v{Sx+2*i-1}")
        valu.append(f"v_cvt_pk_bf16_f32 v{Px+7}, v{Sx+14}, v{Sx+15}")
        Oy, Ly = rr('v', Ob(y), 16), rr('v', Lb(y), 4)
        sel = rr('v', SEL, 4)
        mf = [mf32(Sy, Kf(Kb, 0), Q(y, 0), C(y)), mf32(Sy, Kf(Kb, 1), Q(y, 1)),
              mf32(Oy, Vf(Vb, 0), rr('v', Py, 4)), mf16(Ly, sel, rr('v', Py, 4)),
              mf32(Oy, Vf(Vb, 1), rr('v', Py + 4, 4)), mf16(Ly, sel, rr('v', Py + 4, 4))]
        pos = (0, 4, 8, 12, 15, 19)
        if SMF:
            mf = [mf[0], mf[1], mf[2], mf[4], smf(y)]
            pos = o.get('apos', (0, 5, 10, 15, 20))
        for i, v in enumerate(valu):
            if i in pos:
                k = pos.index(i)
                p(mf[k])
                p.add(extra.get(k, []))
            p(v)

    def attention(tag, C, side, pre):
        p(mf32(rr('v', Sb(0), 16), Kf(0, 0), Q(0, 0), C(0)))
        p(mf32(rr('v', Sb(0), 16), Kf(0, 1), Q(0, 1)))
        p(f"s_mov_b32 s{s_cnt}, {64 // NR}")
        p.add(pre)
        p.begin_loop(f"{name}_{tag}_loop", 64 // NR)
        for kt in range(NR):
            e0 = {0: [vld(kt + NR - 2, 0)], 1: [vld(kt + NR - 2, 1)],
                  4: [Ins(f"wait {Kf(kt+1, 0)}, {Kf(kt+1, 1)}, {Vf(kt, 0)}, {Vf(kt, 1)}")]}
            e1 = {0: [kld2(kt, 0)], 1: [kld2(kt, 1)], 2: [Ins(f"s_add_u32 s{s_vo}, s{s_vo}, 4096")]}
            if side:
                WK, TK = o.get('wk', (3, 4, 5, 6)), o.get('tk', (0, 4))
                if kt == 0: e1[4] = [Ins(f"s_and_b32 m0, s{s_wm0}, 0x1ffff")]
                if kt in WK and 'nowodma' not in dbg:
                    i = WK.index(kt)
                    e0[3] = [Ins(f"buffer_load_dwordx4 v{vWD+i}, s[{sE}:{sE+3}], s{s_wdo} offen offset:{i*1024} lds", awr=['LW'], nowaw=True)]
                if kt == 1: e1[4] = [Ins(f"s_add_u32 s{s_wm0}, s{s_wm0}, 16384")]
                if kt == 2: e1[4] = [Ins(f"s_add_u32 s{s_wdo}, s{s_wdo}, {128 * 2048}")]
                if kt in TK and 'notouch' not in dbg:
                    e0[2] = [Ins(f"buffer_load_dword v{vDum}, v{vPF}, s[{sD}:{sD+3}], s{s_po} offen", nowaw=True)]
                    e1[3] = [Ins(f"s_add_u32 s{s_po}, s{s_po}, {256 * 7168}")]
                if kt == 5:
                    e1[3] = [Ins(f"s_bitcmp1_b32 0x150, s{s_cnt}")]
                    e1[4] = [Ins(f"s_cselect_b32 s{s_po}, s{s_pk}, s{s_po}")]
                if kt == 6:
                    e0[2] = [Ins(f"s_cselect_b64 s[{sD}:{sD+1}], s[0:1], s[{sD}:{sD+1}]")]
                    e1[4] = e1.pop(2)
                    e1[2] = [Ins("s_cselect_b64 s[0:1], s[14:15], s[0:1]")]
                    e1[3] = [Ins(f"s_cselect_b64 s[14:15], s[{TO[2]}:{TO[2]+1}], s[14:15]")]
                if kt == 7:
                    e0[2] = [Ins(f"s_bitcmp1_b32 {0 if 'nohook' in dbg else '0x10c'}, s{s_cnt}")]
                    e0[3] = [Raw(f"    s_cbranch_scc1 {name}_rsx\n{name}_rsxback:")]
            if kt == NR - 1:
                e1[3] = [Ins(f"s_sub_u32 s{s_cnt}, s{s_cnt}, 1")]
                e1[4] = [Ins(f"s_cmp_lg_u32 s{s_cnt}, 0")]
            half(0, kt, kt - 1, C, e0)
            half(1, kt + 1, kt, C, e1)
        p(f"s_cbranch_scc1 {name}_{tag}_loop")
        p.end_loop()
        O1, L1, sel = rr('v', Ob(1), 16), rr('v', Lb(1), 4), rr('v', SEL, 4)
        p(mf32(O1, Vf(NR - 1, 0), rr('v', Pb(1), 4)))
        if not SMF: p(mf16(L1, sel, rr('v', Pb(1), 4)))
        p(mf32(O1, Vf(NR - 1, 1), rr('v', Pb(1) + 4, 4)))
        p(smf(1) if SMF else mf16(L1, sel, rr('v', Pb(1) + 4, 4)))

    pre = take(99)
    pre += [Ins(x.strip()) for x in f"""s_lshl_b32 s{s_fo}, s2, 2
    s_add_u32 s{s_fo}, s{s_fo}, s{s_w}
    s_lshl_b32 s{s_t0}, s{s_fo}, 11
    buffer_load_dwordx4 {rr('v', vRS, 4)}, v{vL16}, s[{sE}:{sE+3}], s{s_t0} offen
    buffer_load_dwordx4 {rr('v', vRS+4, 4)}, v{vL16}, s[{sE}:{sE+3}], s{s_t0} offen offset:1024""".split("\n")]
    if o.get('ipf', True):
        pre += [Ins(x.strip()) for x in f"""s_getpc_b64 s[74:75]
        s_lshr_b32 s{s_t0}, s2, 3
        s_lshl_b32 s{s_t0}, s{s_t0}, 2
        s_add_u32 s{s_t0}, s{s_t0}, s{s_w}
        s_mul_i32 s{s_t0}, s{s_t0}, 384
        s_min_u32 s{s_t0}, s{s_t0}, {name}_end-{name}_fast_loop
        v_min_u32 v4, 2, v0
        v_lshl_add_u32 v4, v4, 7, s{s_t0}""".split("\n")]
        pre.append(Ins(f"global_load_dword v{vDum}, v4, s[74:75]", nowaw=True))
    if len(pre) < 12: pre.append(Ins(f"s_nop {11 - len(pre)}"))
    pre.append(Raw("; @stamp 3"))
    attention('fast', lambda y: "0", 'noside' not in dbg, pre)
    p.add(Raw("; @stamp 4"))
    p("s_waitcnt lgkmcnt(0)")
    p(f"""
    {name}_fin:
    v_add_f32 v{Lb(0)}, v{Lb(0)}, v{Lb(0)+1}
    v_rcp_f32 v{Lb(0)+2}, v{Lb(0)}
    s_lshl_b32 s{s_t0}, s{s_tok}, 1
    s_add_u32 s{s_t0}, s{s_t0}, s{s_hd}
    s_lshl_b32 s{s_t0}, s{s_t0}, 10
    s_xor_b32 s{s_t1}, s{s_t0}, 1024
    """)
    for x in range(2):
        if x: p(f"v_add_f32 v{Lb(1)}, v{Lb(1)}, v{Lb(1)+1}\nv_rcp_f32 v{Lb(1)+2}, v{Lb(1)}")
        for a in range(2):
            for i in range(8 * a, 8 * a + 8, 2):
                p(f"v_pk_mul_f32 {rr('v', Ob(x)+i, 2)}, {rr('v', Ob(x)+i, 2)}, {rr('v', Lb(x)+2, 2)} op_sel_hi:[1,0]")
            for i in range(4 * a, 4 * a + 4):
                p(f"v_cvt_pk_bf16_f32 v{Pb(x)+i}, v{Ob(x)+2*i}, v{Ob(x)+2*i+1}")
            p(f"buffer_store_dwordx4 {rr('v', Pb(x)+4*a, 4)}, v{vOS}, s[{sB}:{sB+3}], s{s_t1 if x else s_t0} offen offset:{a*512} sc1")
    p(f"v_pk_mul_f32 v[{vt+2}:{vt+3}], {rr('v', Ob(0), 2)}, {rr('v', RSV, 2)}")
    p(f"v_pk_mul_f32 v[{vt+4}:{vt+5}], {rr('v', Ob(0)+2, 2)}, {rr('v', RSV+2, 2)}")
    for i in range(2, 16):
        k = vt + 2 + 2 * (i & 1)
        p(f"v_pk_fma_f32 v[{k}:{k+1}], {rr('v', Ob(0)+2*i, 2)}, {rr('v', RSV+2*i, 2)}, v[{k}:{k+1}]")
    p(f"""
    v_pk_add_f32 v[{vt+2}:{vt+3}], v[{vt+2}:{vt+3}], v[{vt+4}:{vt+5}]
    v_add_f32 v{vt+2}, v{vt+2}, v{vt+3}
    v_mov_b32 v{vt+3}, v{vt+2}
    s_add_u32 s{s_t0}, s{s_pj}, {ST_MP}
    s_mov_b32 s{s_t1}, {f32hex(2.0**-40)}
    v_permlane32_swap_b32 v{vt+2}, v{vt+3}
    v_add_f32 v{vt+2}, v{vt+2}, v{vt+3}
    s_mov_b32 exec_hi, 0
    buffer_store_dword v{vt+2}, v{vPW}, s[{sT}:{sT+3}], s{s_t0} offen sc1
    s_mov_b32 exec_hi, -1
    """)
    p(f"""
    v_cmp_nle_f32 s[0:1], s{s_t1}, v{Lb(0)}
    v_cmp_nle_f32 s[14:15], s{s_t1}, v{Lb(1)}
    s_mov_b32 s{s_t1}, {f32hex(2.0**40)}
    v_cmp_nge_f32 s[74:75], s{s_t1}, v{Lb(0)}
    v_cmp_nge_f32 vcc, s{s_t1}, v{Lb(1)}
    s_or_b64 s[0:1], s[0:1], s[14:15]
    s_movk_i32 s{s_t1}, 0x207
    v_cmp_class_f32 s[14:15], v{vt+2}, s{s_t1}
    s_or_b64 s[0:1], s[0:1], s[74:75]
    s_or_b64 s[0:1], s[0:1], vcc
    s_or_b64 s[0:1], s[0:1], s[14:15]
    s_cselect_b32 s{s_t1}, 1, 0
    s_cmp_gt_u32 s{s_t1}, s{s_safe}
    {'' if 'nocheck' in dbg else f's_cbranch_scc1 {name}_slow'}
    """)

    SPLIT = True
    s_c, s_xo, s_xe, s_xend = 61, 62, 63, 64
    vX1, vA3 = 12, 16
    WB, AB3 = 40, 104
    vPT = 20
    LEAD = 12
    ACS = lambda F, t: rr('v', AB3 + (F * 2 + t) * 4, 4)

    class Shape:
        def __init__(self, NF, off):
            self.NF, self.NG, self.off = NF, 16 // NF, off
        def X(self, slot, t, G): return rr('a', slot * 8 * self.NG + (t * self.NG + G) * 4, 4)
        def Xall(self, slot): return ", ".join(self.X(slot, t, G) for t in range(2) for G in range(self.NG))
        def W(self, F, G): return rr('v', WB + (F * self.NG + G) * 4, 4)
        def rd(self, slot, n):
            F, G, b = n // (2 * self.NG), (n >> 1) % self.NG, n & 1
            return Ins(f"ds_read_b64_tr_b16 {rr('v', WB + 2*n, 2)}, v{vA3 + (F & 3)} offset:{slot*16384 + self.off(F, G, b)}")
        def xld(self, slot):
            o_ = [Ins(f"s_cmp_lt_u32 s{s_xo}, s{s_xend}"), Ins(f"s_cselect_b32 s{s_xe}, s{s_xo}, s{sB+2}")]
            for t in range(2):
                for G in range(self.NG):
                    o_.append(Ins(f"buffer_load_dwordx4 {self.X(slot, t, G)}, v{vX1 if t else vL16}, s[{sB}:{sB+3}], s{s_xe} offen offset:{G*1024} sc1"))
            o_.append(Ins(f"s_add_u32 s{s_xo}, s{s_xo}, {self.NG * 1024}"))
            return o_
    sh4 = Shape(4, lambda F, G, b: G * 4096 + b * 1024)
    sh8 = Shape(8, lambda F, G, b: G * 8192 + (F >> 2) * 2048 + b * 1024)

    def wread_addr(blk):
        p(f"""
        v_bfe_u32 v{vt}, v0, 2, 3
        v_lshrrev_b32 v{vt+1}, 1, v{vt}
        v_lshlrev_b32 v{vt+1}, 5, v{vt+1}
        v_lshl_add_u32 v{vt}, v{vt}, 7, v{vt+1}
        v_lshrrev_b32 v{vt+1}, 5, v0
        v_lshl_add_u32 v{vt}, v{vt+1}, {blk}, v{vt}
        v_and_b32 v{vt+1}, 3, v0
        v_lshl_add_u32 v{vA3}, v{vt+1}, 3, v{vt}
        v_xor_b32 v{vA3+1}, 32, v{vA3}
        v_xor_b32 v{vA3+2}, 64, v{vA3}
        v_xor_b32 v{vA3+3}, 0x60, v{vA3}""")

    def table_load(aq, soff, blk=0):
        for i in range(4):
            p(f"buffer_load_dwordx2 {rr('v', aq + 2*i, 2)}, v{vPT}, s[{sT}:{sT+3}], s{soff} offen offset:{blk*2048 + i*128} sc1")

    def table_sum(aq, dst):
        p(f"""
        v_pk_add_f32 {rr('v', aq, 2)}, {rr('v', aq, 2)}, {rr('v', aq+2, 2)}
        v_pk_add_f32 {rr('v', aq+4, 2)}, {rr('v', aq+4, 2)}, {rr('v', aq+6, 2)}
        v_pk_add_f32 {rr('v', dst, 2)}, {rr('v', aq, 2)}, {rr('v', aq+4, 2)}""")
        for sw in (16, 32):
            p(f"""
            v_pk_mov_b32 {rr('v', aq, 2)}, {rr('v', dst, 2)}, {rr('v', dst, 2)} op_sel:[0,1]
            v_permlane{sw}_swap_b32 v{dst}, v{aq}
            v_permlane{sw}_swap_b32 v{dst+1}, v{aq+1}
            v_pk_add_f32 {rr('v', dst, 2)}, {rr('v', dst, 2)}, {rr('v', aq, 2)}""")

    def rstd_from(aq, dst):
        table_sum(aq, dst)
        for t in range(2):
            p(f"v_fma_f32 v{dst+t}, v{dst+t}, s{s_t1}, v{vt+4}")
        for t in range(2):
            p(f"v_rsq_f32 v{dst+t}, v{dst+t}")

    p(f"""
    s_add_u32 s{s_xe}, s{s_pj}, {ST_FO}
    s_andn2_b32 s{s_c}, s{s_xe}, 2047
    s_lshl_b32 s{s_xo}, s{s_tok}, 11
    s_lshl_b32 s{s_xend}, s{s_tok}, 6
    s_add_u32 s{s_xend}, s{s_xend}, {ST_MP}""")
    if R3:
        p(f"s_and_b32 s{s_t0}, s{s_j}, 1\ns_lshl_b32 s{s_t0}, s{s_t0}, 14\ns_add_u32 s{s_xo}, s{s_xo}, s{s_t0}")
    vE = 136
    p(f"""
    v_add_u32 v{vX1}, 0x8000, v{vL16}
    s_lshl_b32 s{s_t0}, s{s_w}, 12
    s_add_u32 s{s_t0}, s{s_t0}, {XT}
    v_and_b32 v{vt+4}, 15, v0
    v_lshrrev_b32 v{vt+5}, 1, v{vt+4}
    v_lshrrev_b32 v{vt+6}, 5, v0
    v_xor_b32 v{vt+5}, v{vt+5}, v{vt+6}
    v_lshlrev_b32 v{vt+5}, 4, v{vt+5}
    v_lshl_add_u32 v{vt+5}, v{vt+4}, 7, v{vt+5}
    v_bfe_u32 v{vt+6}, v0, 4, 1
    v_lshl_add_u32 v{vt+5}, v{vt+6}, 3, v{vt+5}
    v_add_u32 v{vt}, s{s_t0}, v{vt+5}
    v_xor_b32 v{vt+1}, 32, v{vt}
    v_xor_b32 v{vt+2}, 64, v{vt}
    v_xor_b32 v{vt+3}, 0x60, v{vt}""")
    for t in range(2):
        for F in range(4):
            p(f"ds_read_b64 {rr('v', vE + (t*4+F)*2, 2)}, v{vt+F} offset:{t*2048}")
    p(f"""
    v_lshlrev_b32 v{vPT}, 3, v{vt+4}
    v_lshrrev_b32 v{vt+5}, 4, v0
    v_lshl_add_u32 v{vPT}, v{vt+5}, 9, v{vPT}""")
    wread_addr(11)
    for t in range(2):
        for F in range(4):
            a = AB3 + (F * 2 + t) * 4
            e = vE + (t * 4 + F) * 2
            p(f"""
            v_lshlrev_b32 v{a}, 16, v{e}
            v_and_b32 v{a+1}, 0xffff0000, v{e}
            v_lshlrev_b32 v{a+2}, 16, v{e+1}
            v_and_b32 v{a+3}, 0xffff0000, v{e+1}""")
    def rd3(n):
        q, F, g, b = n >> 4, (n >> 2) & 3, (n >> 1) & 1, n & 1
        return Ins(f"ds_read_b64_tr_b16 {rr('v', WB + 2 * (n % 32), 2)}, v{vA3 + F} offset:{(q & 7) * 8192 + g * 4096 + b * 1024}")
    arrive(p, s_xe)
    p("s_barrier")
    for n in range(LEAD):
        p.add(rd3(n))
    main_cur = p.cur
    bg = []
    p.cur = bg
    SLOT4, HI4, LEAD4 = 28672, 106496, 8
    s_nb, s_wo4, s_m04, s_dsl, s_rsl, s_tk4 = 66, 68, 69, 70, 71, 72
    vD4 = 21
    AB4 = 32
    p(f"""
    s_and_b32 s{s_t0}, s2, 7
    s_lshr_b32 s{s_t1}, s2, 3
    s_and_b32 s{s_tk4}, s{s_t1}, 7
    s_lshr_b32 s{s_t1}, s{s_t1}, 3
    s_lshl_b32 s{s_nb}, s{s_t0}, 2
    s_add_u32 s{s_nb}, s{s_nb}, s{s_t1}
    s_movk_i32 s{s_t1}, 4682
    s_movk_i32 s{s_t0}, {7168 - 14 * 16}
    """)
    for i in range(7):
        p(f"""
        v_add_u32 v{vt}, {64*i}, v0
        v_mul_u32_u24 v{vt+1}, s{s_t1}, v{vt}
        v_lshrrev_b32 v{vt+1}, 16, v{vt+1}
        v_add_u32 v{vt}, {1024 * (i - (i & 3))}, v{vL16}
        v_mad_u32_u24 v{vD4+i}, v{vt+1}, s{s_t0}, v{vt}
        """)
    p(f"""
    s_lshl_b32 s{s_tk4}, s{s_tk4}, 2
    s_add_u32 s{s_tk4}, s{s_tk4}, s{s_w}
    s_lshl_b32 s{s_tk4}, s{s_tk4}, 6
    s_and_b32 s{s_t0}, s{s_w}, 1
    s_mul_i32 s{s_wo4}, s{s_t0}, {32 * 7168}
    s_mul_i32 s{s_t1}, s{s_nb}, 224
    s_add_u32 s{s_wo4}, s{s_wo4}, s{s_t1}
    s_mul_i32 s{s_m04}, s{s_w}, 7168
    s_mov_b32 s{s_dsl}, s{s_m04}
    s_mov_b32 s{s_rsl}, {HI4}
    s_cmp_lt_u32 s{s_w}, 2
    s_cselect_b64 s[{sD}:{sD+1}], s[{pWG}:{pWG+1}], s[{pWU}:{pWU+1}]
    s_mov_b32 s{sD+2}, {hex(D * FF * 2)}
    """)
    srd(p, sA, pWS, HC[1], bias=HC[0])
    for i in range(4):
        p(f"v_accvgpr_write_b32 a{aMEAN-4+i}, v{vWD+i}")
    p(f"v_mov_b32 v36, v{vPW}")
    vPW = 36
    vX4 = [vL16, 12, 13, 14]
    vA4, vAb, vR4 = 15, 11, 28
    vS, vQ, vP = 28, 144, WB
    s_ho, s_c4, s_sq4 = 65, 67, 73
    HCA = o.get('hca', False)
    p(f"""
    v_add_u32 v{vX4[2]}, 0x10000, v{vL16}
    v_add_u32 v{vX4[3]}, 0x18000, v{vL16}
    v_lshrrev_b32 v{vt}, 2, v0
    v_mul_u32_u24 v{vt}, 224, v{vt}
    v_and_b32 v{vt+1}, 3, v0
    v_lshl_add_u32 v{vAb}, v{vt+1}, 3, v{vt}
    v_mov_b32 v{vA4}, v{vAb}
    s_lshl_b32 s{s_sq4}, s{s_tk4}, 6
    s_add_u32 s{s_c4}, s{s_sq4}, {ST_FC}
    s_add_u32 s{s_sq4}, s{s_sq4}, {ST_SSQ}
    s_add_u32 s{s_ho}, s{s_tok}, s{s_j}
    s_lshl_b32 s{s_ho}, s{s_ho}, 11
    s_add_u32 s{s_c}, s{s_pj}, {ST_FC}
    {f's_andn2_b32 s{s_c}, s{s_c}, 4095' if HCA else ''}
    {f's_and_b32 s{s_t0}, s2, 7' if HCA else ''}
    {f's_lshl_b32 s{s_t0}, s{s_t0}, 9' if HCA else ''}
    {f's_add_u32 s{s_c4}, s{s_c4}, s{s_t0}' if HCA else ''}
    {f'v_lshlrev_b32 v{vt+6}, 9, v0' if HCA else ''}
    s_add_u32 s{s_pj}, s{s_pj}, {ST_SSQ}
    s_mov_b32 s{s_t1}, {f32hex(-1.0/1024)}""")
    for t in range(2):
        p(f"""
        v_add_f32 v{vE+t}, v{vE+t}, v{vE+2+t}
        v_add_f32 v{vE+4+t}, v{vE+4+t}, v{vE+6+t}
        v_add_f32 v{vS+t}, v{vE+t}, v{vE+4+t}""")
        xsum16_32(p, f"v{vS+t}", f"v{vt}")
        p(f"v_accvgpr_read_b32 v{vt}, a{aMEAN+t}")
        p(f"v_fma_f32 v{vS+t}, v{vS+t}, s{s_t1}, -v{vt}")
    p(f"v_mov_b32 v{vt+4}, {f32hex(1e-5)}\ns_mov_b32 s{s_t1}, {f32hex(1.0/1024)}")
    for i in range(156, 256):
        p(f"v_mov_b32 v{i}, 0")
    p.cur = main_cur

    def units_of(lst):
        out = []
        for x in lst:
            if out and x.op.startswith(('s_addc', 's_subb', 's_cselect')): out[-1].append(x)
            else: out.append([x])
        return out
    bg = units_of(bg)
    p.add(Raw("; @stamp 5"))
    poll(p, f"{name}_opoll", s_c, 16, vt)
    if 'twice3' in dbg: p.add(Raw(f"    s_mov_b32 s{s_spin}, 2\n    s_mov_b32 s14, s{s_pj}\n    s_mov_b32 s15, s{s_xo}\n{name}_tw3:\n    s_mov_b32 s{s_pj}, s14\n    s_mov_b32 s{s_xo}, s15"))
    p.add(Raw("; @stamp 6"))

    def dma4(par):
        o_ = []
        for i in range(7):
            if i == 0: o_.append(Ins(f"s_add_u32 m0, s{s_dsl}, {par * SLOT4}"))
            if i == 4: o_.append(Ins("s_add_u32 m0, m0, 4096"))
            o_.append(Ins(f"buffer_load_dwordx4 v{vD4+i}, s[{sD}:{sD+3}], s{s_wo4} offen offset:{(i&3)*1024} lds", awr=['Lx'], nowaw=True))
        o_.append(Ins(f"s_add_u32 s{s_wo4}, s{s_wo4}, {64 * 7168}"))
        return o_

    X3 = lambda q, t, g: rr('a', (q % 8) * 16 + (t * 2 + g) * 4, 4)

    def xld3(q):
        o_ = [Ins(f"buffer_load_dwordx4 {X3(q, t, g)}, v{vX1 if t else vL16}, s[{sB}:{sB+3}], s{s_xo} offen offset:{(q & 1) * 2048 + g*1024} sc1")
              for t in range(2) for g in range(2)]
        return o_ + ([Ins(f"s_add_u32 s{s_xo}, s{s_xo}, 4096")] if q & 1 else [])
    L3 = o.get('l3', 3)
    D4 = o.get('d4', (9, 9))
    for q in range(L3): p.add(xld3(q))
    side = []
    for q in range(16):
        if q + L3 < 16: side += xld3(q + L3)
        if q == 16 - L3:
            pass
        for k in range(2):
            if q == 2 * D4[k]: side += dma4(k)
        mp = [Ins(f"buffer_load_dwordx2 {rr('v', vE + 2*i, 2)}, v{vPT}, s[{sT}:{sT+3}], s{s_xend} offen offset:{i*128} sc1") for i in range(4)] if q == 1 else []
        for i in range(16):
            F = i >> 2
            t, g = zz(F, 2, 2, ZZ)[i & 3]
            p(mf16(ACS(F, t), rr('v', WB + ((q & 1) * 8 + F * 2 + g) * 4, 4), X3(q, t, g)))
            n = q * 16 + i + LEAD
            if q == 10 and i == 0:
                p("s_barrier")
            if n < 256: p.add(rd3(n))
            if n in (115, 119, 123, 127): p(f"v_xor_b32 v{vA3 + (n - 112) // 4}, 0x10000, v{vA3 + (n - 112) // 4}")
            used = True
            if i % 4 == 3:
                if (q > 0 or i > 3) and q * 16 + i < 255:
                    m = (q * 16 + i + 1) % 32
                    p(f"wait {rr('v', WB + 2 * m, 8)}" + (", " + ", ".join(X3(q + 1, t_, g_) for t_ in range(2) for g_ in range(2)) if i == 15 else ""))
            if side and i % 4 == 0 and side[0].kind == 'vmem': p.add(side.pop(0))
            elif side and side[0].kind == 'salu': p.add(side.pop(0))
            elif mp and i % 4 == 2: p.add(mp.pop(0))
            else: used = False
            if bg and not used and q > 0:
                p.add(bg.pop(0))
                if bg and q * 16 + i > 200: p.add(bg.pop(0))
    p.add(side)
    assert not bg, len(bg)
    p.add(Raw("; @stamp 7"))
    if 'twice3' in dbg: p.add(Raw(f"    s_waitcnt vmcnt(0)\n    s_sub_u32 s{s_spin}, s{s_spin}, 1\n    s_cmp_lg_u32 s{s_spin}, 0\n    s_cbranch_scc1 {name}_tw3"))

    for t in range(2):
        sel = "op_sel_hi:[1,0]" if t == 0 else "op_sel:[0,1]"
        q = rr('v', vQ + 2 * t, 2)
        for F in range(4):
            a = AB3 + (F * 2 + t) * 4
            k = vQ + 4 + (F & 1) * 4
            hc = vP + (t * 2 + (F >> 1)) * 4 + (F & 1) * 2
            p(f"""
            v_pk_add_f32 {rr('v', k, 2)}, {rr('v', a, 2)}, {rr('v', vS, 2)} {sel}
            v_pk_add_f32 {rr('v', k+2, 2)}, {rr('v', a+2, 2)}, {rr('v', vS, 2)} {sel}
            v_cvt_pk_bf16_f32 v{hc}, v{k}, v{k+1}
            v_cvt_pk_bf16_f32 v{hc+1}, v{k+2}, v{k+3}""")
            if F & 1:
                g = F >> 1
                p(f"buffer_store_dwordx4 {rr('v', hc-2, 4)}, v{vX1 if t else vL16}, s[{sA}:{sA+3}], s{s_ho} offen offset:{g*1024} sc1")
            p(f"v_pk_mul_f32 {q}, {rr('v', k, 2)}, {rr('v', k, 2)}" if F == 0 else f"v_pk_fma_f32 {q}, {rr('v', k, 2)}, {rr('v', k, 2)}, {q}")
            p(f"v_pk_fma_f32 {q}, {rr('v', k+2, 2)}, {rr('v', k+2, 2)}, {q}")
    p(f"""
    v_add_f32 v{vQ}, v{vQ}, v{vQ+1}
    v_add_f32 v{vQ+2}, v{vQ+2}, v{vQ+3}
    v_permlane16_swap_b32 v{vQ}, v{vQ+2}
    v_add_f32 v{vQ}, v{vQ}, v{vQ+2}
    v_mov_b32 v{vQ+1}, v{vQ}
    v_permlane32_swap_b32 v{vQ}, v{vQ+1}
    v_add_f32 v{vt}, v{vQ}, v{vQ+1}
    s_mov_b32 exec_hi, 0
    buffer_store_dword v{vt}, v{vPW}, s[{sT}:{sT+3}], s{s_pj} offen sc1
    s_mov_b32 exec_hi, -1
    """)
    for q in range(2):
        if D4[q] == 8: p.add(dma4(q))
    for t in range(2):
        for F in range(4):
            a = AB3 + (F * 2 + t) * 4
            hr = vP + 16 + (t * 2 + (F >> 1)) * 4 + (F & 1) * 2
            p(f"v_cvt_pk_bf16_f32 v{hr}, v{a}, v{a+1}\nv_cvt_pk_bf16_f32 v{hr+1}, v{a+2}, v{a+3}")
    for i in range(16):
        p(f"v_accvgpr_write_b32 a{aHR+i}, v{vP+16+i}")
    if 'H' in dbg:
        srd(p, sB, pWS, HR[1], bias=HR[0])
        for t in range(2):
            for g in range(2):
                p(f"buffer_store_dwordx4 {rr('v', vP + 16 + (t*2+g)*4, 4)}, v{vX1 if t else vL16}, s[{sB}:{sB+3}], s{s_ho} offen offset:{g*1024}")
    for i in range(AB4 + (0 if o.get('ril', False) else 16), 156, 2):
        p(f"v_pk_mov_b32 {rr('v', i, 2)}, 0, 0")
    p(f"""
    s_lshl_b32 s{s_xo}, s{s_tk4}, 11
    s_waitcnt vmcnt({7 * D4.count(8)})
    """)
    if 'ack' in dbg: p.add(Raw("; @stamp 0"))
    if HCA:
        p(f"s_mov_b64 exec, 0xff\nbuffer_atomic_add v{vOne}, v{vt+6}, s[{sT}:{sT+3}], s{s_c} offen\ns_mov_b64 exec, -1")
    else:
        p(f"buffer_store_dword v{vOne}, v{vZ}, s[{sT}:{sT+3}], s{s_c} offen sc1")
    if 'ack' in dbg: p.add(Raw("    s_waitcnt vmcnt(0)\n; @stamp 1"))
    for q in range(2):
        if D4[q] == 9: p.add(dma4(q))
    if D4[1] < 10: p(f"s_add_u32 s{s_dsl}, s{s_m04}, {HI4}")
    PX = o.get('px', 8)
    BT = o.get('btouch', 0)
    vFL, vBT = vt + 5, vt + 6
    s_hf, s_x5, s_of, s_bt = 65, 63, 64, 3
    wread_addr(12)
    srd(p, sB, pWS, HH[1], bias=HH[0])
    srd(p, sC, pWS, XC[1], bias=XC[0])
    p(f"""
    s_bfe_u32 s{s_hf}, s{s_b}, 0x10002
    s_lshl_b32 s{s_hf}, s{s_hf}, 1
    s_lshr_b32 s{s_t0}, s{s_j}, 3
    s_add_u32 s{s_hf}, s{s_hf}, s{s_t0}
    s_and_b32 s{s_c}, s{s_tok}, 0x5c0
    s_lshl_b32 s{s_c}, s{s_c}, 6
    s_lshl_b32 s{s_t0}, s{s_hf}, 10
    s_add_u32 s{s_c}, s{s_c}, s{s_t0}
    s_add_u32 s{s_c}, s{s_c}, {ST_FH}
    s_xor_b32 s{s_x5}, s{s_tok}, 512
    s_mul_i32 s{s_x5}, s{s_x5}, {112 * 64}
    s_mul_i32 s{s_t0}, s{s_hf}, {28 * 1024}
    s_add_u32 s{s_x5}, s{s_x5}, s{s_t0}
    s_mul_i32 s{s_of}, s{s_tk4}, {112 * 64}
    s_lshr_b32 s{s_t0}, s{s_nb}, 3
    s_mul_i32 s{s_t0}, s{s_t0}, {56 - 8}
    s_add_u32 s{s_t0}, s{s_t0}, s{s_nb}
    s_lshl_b32 s{s_t0}, s{s_t0}, 9
    s_add_u32 s{s_of}, s{s_of}, s{s_t0}
    v_and_b32 v{vFL}, 7, v0
    v_lshlrev_b32 v{vFL}, 7, v{vFL}
    v_bfe_u32 v{vt}, v0, 3, 1
    v_lshl_add_u32 v{vFL}, v{vt}, 15, v{vFL}""")
    if BT:
        p(f"""
        v_cmp_gt_u32 vcc, 14, v0
        v_lshlrev_b32 v{vt}, 10, v0
        v_add_u32 v{vt}, {4096 + 384}, v{vt}
        v_mov_b32 v{vt+1}, 0x7ffffff0
        v_cndmask_b32 v{vBT}, v{vt+1}, v{vt}, vcc
        s_lshr_b32 s{s_bt}, s2, 3
        s_lshl_b32 s{s_bt}, s{s_bt}, 2
        s_add_u32 s{s_bt}, s{s_bt}, s{s_w}
        s_mul_i32 s{s_bt}, s{s_bt}, {7 * 2048}""")


    X4 = lambda slot, t, g: rr('a', slot * 32 + (t * 2 + g) * 4, 4)
    WB4, WB4B, NWR = 96, 128, 4
    W4 = lambda q, g: rr('a', WB4 + (q % NWR) * 8 + g * 4, 4)
    AC4 = lambda f, t: rr('v', AB4 + (f * 4 + t) * 4, 4)

    def xld4(slot):
        o_ = [Ins(f"buffer_load_dwordx4 {X4(slot, t, g)}, v{vX4[t]}, s[{sA}:{sA+3}], s{s_xo} offen offset:{g*1024} sc1")
              for t in range(4) for g in range(2)]
        return o_ + [Ins(f"s_add_u32 s{s_xo}, s{s_xo}, 2048")]

    def rd4(q, n, par=None, base=WB4):
        f = q % 14
        g, b = n >> 1, n & 1
        if par is None: par = (q // 14) & 1
        return Ins(f"ds_read_b64_tr_b16 {rr('a', base + (q % NWR)*8 + g*4 + 2*b, 2)}, v{vA4} offset:{par*SLOT4 + (f&1)*14336 + (32*g+16*b)*224 + (f>>1)*32}")
    if D4[0] < 8:
        p("s_barrier")
        for n in range(LEAD4):
            p.add(rd4(n >> 2, n & 3))
    p.add(Raw("; @stamp 8"))
    if HCA: poll(p, f"{name}_hpoll", s_c4, 1, vt, 32)
    else: poll(p, f"{name}_hpoll", s_c4, 32, vt)
    p.add(Raw("; @stamp 9"))
    RIL = o.get('ril', False)
    if not RIL:
        for q in range(2):
            table_load(AB4 + 8 * q, s_sq4, q)
    p.add(xld4(0))
    if RIL:
        for q in range(2):
            for i in range(4):
                p(f"buffer_load_dwordx2 {rr('a', WB4B + 8*q + 2*i, 2)}, v{vPT}, s[{sT}:{sT+3}], s{s_sq4} offen offset:{q*2048 + i*128} sc1")
    if o.get('b1', True): p("s_barrier")
    if D4[0] >= 8:
        for n in range(LEAD4):
            p.add(rd4(n >> 2, n & 3))
    ril = []
    if RIL:
        p.cur = ril
        for t in range(4):
            a_ = WB4B + 8 * (t >> 1) + (t & 1)
            for i in range(4): p(f"v_accvgpr_read_b32 v{vt+i}, a{a_ + 2*i}")
            p(f"v_add_f32 v{vt}, v{vt}, v{vt+1}\nv_add_f32 v{vt+2}, v{vt+2}, v{vt+3}\nv_add_f32 v{vt}, v{vt}, v{vt+2}")
            xsum16_32(p, f"v{vt}", f"v{vt+1}")
            p(f"v_fma_f32 v{vt}, v{vt}, s{s_t1}, v{vt+4}\nv_rsq_f32 v{vt}, v{vt}")
            p(f"v_mul_f32 v{vR4+t}, {f32hex(-LOG2E)}, v{vt}")
        p.cur = main_cur
    else:
        for q in range(2):
            rstd_from(AB4 + 8 * q, vR4 + 2 * q)
        for t in range(4):
            p(f"v_mul_f32 v{vR4+t}, {f32hex(-LOG2E)}, v{vR4+t}")
        for i in range(AB4, AB4 + 16, 2):
            p(f"v_pk_mov_b32 {rr('v', i, 2)}, 0, 0")
    p(f"s_mov_b32 s{s_cnt}, 7")
    p("wait " + ", ".join(X4(0, t, g) for t in range(4) for g in range(2)) + f", {W4(0, 0)}, {W4(0, 1)}")
    p.begin_loop(f"{name}_p4loop", 7)
    B1 = o.get('b1', True)
    BP = o.get('bpos', 99)
    for u in range(2):
        MV = o.get('p4mv', 0)
        if u == 0: d41 = dma4(1)
        vm = d41[MV:] + xld4(0) if u == 1 else xld4(1) + dma4(0) + d41[:MV]
        if 'p4nov' in dbg: vm = [x for x in vm if x.kind != 'vmem']
        fill, pos = {}, 1
        for ins in vm:
            fill.setdefault(pos, []).append(ins)
            pos += o.get('p4d', 4) if 'lds' in ins.mods else o.get('p4step', 4) if ins.kind == 'vmem' else 2
            if pos % 8 == 7: pos += 2
        assert pos < (91 if u else 118), pos
        if u == 1:
            fill[97] = [Ins(f"s_sub_u32 s{s_rsl}, {HI4}, s{s_rsl}")]
            fill[107] = [Ins(f"s_add_u32 s{s_dsl}, s{s_m04}, s{s_rsl}")]
            fill[93] = [Ins(f"s_sub_u32 s{s_cnt}, s{s_cnt}, 1")]
            fill[109] = [Ins(f"s_cmp_lg_u32 s{s_cnt}, 0")]
            fill.setdefault(pos, []).append(Ins(f"s_cmp_eq_u32 s{s_cnt}, 1"))
            fill.setdefault(pos + 1, []).append(Raw(f"    s_cbranch_scc1 {name}_x15\n{name}_x15back:"))
            x15blk = Raw(f"{name}_x15:\n" + "".join(f"    {x.text}\n" for x in xld4(2)[:8]) + f"    s_branch {name}_x15back")
        order = [(f, t, g) for f in range(14) for t, g in zz(f, 4, 2, ZZ)]
        late = B1 and u == 1
        for i, (f, t, g) in enumerate(order):
            p(mf16(AC4(f, t), W4(u * 14 + f, g), X4(u, t, g)))
            if late and i == BP:
                p("s_waitcnt vmcnt(8) lgkmcnt(0)")
                p("s_barrier")
            if late and i >= 96:
                if BP <= i < BP + 8:
                    p.add(rd4(28 + ((i - BP) >> 2), (i - BP) & 3))
            elif i % 2 == 0:
                n = i // 2 + LEAD4
                p.add(rd4(u * 14 + (n >> 2), n & 3))
            if i == 95 and u == 1: p(f"v_add_u32 v{vA4}, s{s_rsl}, v{vAb}")
            if i == 95 and not B1:
                p("s_waitcnt vmcnt(15) lgkmcnt(4)")
                if 'p4nobar' not in dbg: p("s_barrier")
            elif i == 111:
                p(f"wait {W4(u*14 + 14, 0)}, {W4(u*14 + 14, 1)}, " + ", ".join(X4(1 - u, t_, g_) for t_ in range(4) for g_ in range(2)))
            elif i % 8 == 7:
                p(f"wait {W4(u*14 + f + 1, 0)}, {W4(u*14 + f + 1, 1)}")
            p.add(fill.get(i, []))
            if ril and u == 1 and i not in fill and i < 94: p.add(ril.pop(0))
    assert not ril
    p(f"s_cbranch_scc1 {name}_p4loop")
    p.end_loop()
    p.add(Raw("; @stamp 10"))
    main_cur = p.cur
    setup = []
    p.cur = setup

    vW5 = 21
    s_wo5, s_m05 = 68, 69
    vH = 13
    vFG, vTwo = 25, 26
    for i in range(2):
        p(f"v_accvgpr_read_b32 v{vW5+i}, a{aMEAN-4+i}")
    p(f"""
    s_mul_i32 s{s_t0}, s{s_hf}, {896 * 2048}
    s_xor_b32 s{s_t1}, s{s_j}, {PX}
    s_add_u32 s{s_t1}, s{s_t1}, 16
    s_sub_u32 s{s_t1}, s{s_t1}, s{s_j}
    s_lshl_b32 s{s_t1}, s{s_t1}, 7
    v_add_u32 v{vW5+2}, s{s_t1}, v{vW5}
    v_add_u32 v{vW5+3}, s{s_t1}, v{vW5+1}
    v_add_u32 v{vW5}, 4096, v{vW5}
    v_add_u32 v{vW5+1}, 4096, v{vW5+1}
    s_mul_i32 s{s_wo5}, s{s_w}, {112 * 2048}""")
    srd(p, sD, pWD, 896 * 2048 + 4096, off=s_t0, bias=-4096)
    p(f"""
    s_lshl_b32 s{s_t1}, s{s_j}, 7
    s_add_u32 s{s_wo5}, s{s_wo5}, s{s_t1}
    s_lshl_b32 s{s_m05}, s{s_w}, 12
    v_lshrrev_b32 v{vt}, 5, v0
    v_mul_u32_u24 v{vt}, {112 * 1024 - 512}, v{vt}
    v_add_u32 v{vH}, v{vt}, v{vL16}
    v_add_u32 v{vH+1}, {2 * 112 * 1024}, v{vH}
    v_add_u32 v{vX1}, {112 * 1024}, v{vL16}
    s_mul_i32 s{s_xo}, s{s_tok}, {112 * 64}
    s_mul_i32 s{s_t0}, s{s_hf}, {28 * 1024}
    s_add_u32 s{s_xo}, s{s_xo}, s{s_t0}
    s_mov_b32 s{s_spin}, {SPIN}
    s_lshl_b32 s{s_t0}, s{s_nb}, 7
    s_add_u32 s{s_sq4}, s{s_sq4}, s{s_t0}
    s_add_u32 s{s_sq4}, s{s_sq4}, {ST_FH - ST_SSQ}""")
    p.cur = main_cur
    btouch = lambda: Ins(f"buffer_load_dword v27, v{vBT}, s[{sD}:{sD+3}], s{s_bt} offen", nowaw=True)

    def dma5(st):
        o_ = [Ins(f"s_add_u32 m0, s{s_m05}, {(st % 8) * 16384}")]
        for i in range(4):
            o_.append(Ins(f"buffer_load_dwordx4 v{vW5+i}, s[{sD}:{sD+3}], s{s_wo5} offen offset:{i*1024} lds", awr=[f'L5_{st}'], nowaw=True))
        o_.append(Ins(f"s_add_u32 s{s_wo5}, s{s_wo5}, {448 * 2048}" if st & 1 == 0 else f"s_sub_u32 s{s_wo5}, s{s_wo5}, {(448 - 16) * 2048}"))
        return o_

    def glu(pr, packed):
        o_ = []
        for t in range(4):
            g = AB4 + ((2 * pr) * 4 + t) * 4
            u_ = AB4 + ((2 * pr + 1) * 4 + t) * 4
            rs_ = rr('v', vR4 + (t & 2), 2)
            sel = "op_sel_hi:[1,0]" if t % 2 == 0 else "op_sel:[0,1]"
            if packed:
                o_ += [f"v_pk_mul_f32 {rr('v', g+r, 2)}, {rr('v', g+r, 2)}, {rs_} {sel}" for r in (0, 2)]
                o_ += [f"v_exp_f32 v{g+r}, v{g+r}" for r in range(4)]
                o_ += [f"v_pk_add_f32 {rr('v', g+r, 2)}, {rr('v', g+r, 2)}, 1.0 op_sel_hi:[1,0]" for r in (0, 2)]
                o_ += [f"v_rcp_f32 v{g+r}, v{g+r}" for r in range(4)]
                o_ += [f"v_pk_mul_f32 {rr('v', u_+r, 2)}, {rr('v', u_+r, 2)}, {rr('v', g+r, 2)}" for r in (0, 2)]
            else:
                o_ += [f"v_mul_f32 v{g+r}, v{vR4+t}, v{g+r}" for r in range(4)]
                o_ += [f"v_exp_f32 v{g+r}, v{g+r}" for r in range(4)]
                o_ += [f"v_add_f32 v{g+r}, 1.0, v{g+r}" for r in range(4)]
                o_ += [f"v_rcp_f32 v{g+r}, v{g+r}" for r in range(4)]
                o_ += [f"v_mul_f32 v{u_+r}, v{u_+r}, v{g+r}" for r in range(4)]
            d_ = AB4 + ((2 * pr) * 4 + (t & 2)) * 4 + (t & 1) * 2
            o_ += [f"v_cvt_pk_bf16_f32 v{d_}, v{u_}, v{u_+1}", f"v_cvt_pk_bf16_f32 v{d_+1}, v{u_+2}, v{u_+3}"]
            if t & 1:
                o_ += [f"v_permlane32_swap_b32 v{d_-2}, v{d_}", f"v_permlane32_swap_b32 v{d_-1}, v{d_+1}",
                       f"buffer_store_dwordx4 {rr('v', d_-2, 4)}, v{vH + (t >> 1)}, s[{sB}:{sB+3}], s{s_of} offen sc1"]
        o_.append(f"s_add_u32 s{s_of}, s{s_of}, 4096")
        return [Ins(x, awr=[f'HS{pr}'], nowaw=True) if x.startswith('buffer') else Ins(x) for x in o_]

    AC5, WB5, vHI, vHF = 96, 40, 72, 224
    XB5 = (160, 192, 32, 0, 64, 96, 128)
    A5 = lambda F, t: rr('v', AC5 + ((F >> 2) + 2 * (t >> 1)) * 32 + ((F & 3) * 2 + (t & 1)) * 4, 4)
    X5 = lambda st, t, G: rr('a', XB5[st % 7] + (t * 2 + G) * 4, 4)
    NT = o.get('nt5', 6)

    def xld5(st):
        o_ = [Ins(f"buffer_load_dwordx4 {X5(st, t, G)}, v{vX1 if t & 1 else vL16}, s[{sB}:{sB+3}], s{s_x5 if t >> 1 else s_xo} offen offset:{G*1024} sc1")
              for t in range(4) for G in range(2)]
        return o_[:4] + [Ins(f"s_add_u32 s{s_xo}, s{s_xo}, 2048")] + o_[4:] + [Ins(f"s_add_u32 s{s_x5}, s{s_x5}, 2048")]

    def spin(label, level, ld=None):
        return f"""    s_branch {label}_chk
{label}:
    {ld or fgl}
    s_waitcnt vmcnt(0)
{label}_chk:
    v_cmp_gt_u32 vcc, {level}, v{vFG}
    s_sub_u32 s{s_spin}, s{s_spin}, 1
    s_cbranch_scc1 {label}_done
    s_cbranch_vccnz {label}
{label}_done:"""
    last = list(range(14 - NT, 14))
    FO = o.get('fo5', 4)
    units = [(st, F, (0, 1, 2, 3)) for st in range(14 - NT) for F in range(8)]
    units += [(st, F, (0, 1, 2, 3)) for st in last[:-FO] for F in range(4, 8)]
    units += [(st, F, (0, 1, 2, 3)) for F in range(4, 8) for st in last[-FO:]]
    kB = len(units)
    kC = kB + 4 * NT
    units += [(st, F, (2, 3)) for F in range(4) for st in last]
    units += [(st, F, (0, 1)) for F in range(4) for st in last]

    def rd5(k):
        st, F = units[k][:2]
        return [Ins(f"ds_read_b64_tr_b16 {rr('v', WB5 + (k % 4)*8 + 2*n, 2)}, v{(vHI if st & 4 else vA3) + (F & 3)} "
                    f"offset:{(st & 3)*16384 + (n >> 1)*8192 + (F >> 2)*2048 + (n & 1)*1024}") for n in range(4)]
    fgl = f"buffer_load_dword v{vFG}, v{vFL}, s[{sT}:{sT+3}], s{s_c} offen sc1"
    tell = lambda prs: [Ins(f"buffer_store_dword v{vOne}, v{vZ}, s[{sT}:{sT+3}], s{s_sq4} offen sc1", rd=[f'HS{q}' for q in prs]),
                        Ins(f"s_add_u32 s{s_sq4}, s{s_sq4}, 0x40000")]
    check = lambda n: [Ins(f"wait v{vFG}"), Raw(spin(f"{name}_fpoll{n}", 1)), Ins(f"s_add_u32 s{s_c}, s{s_c}, 0x40000")]

    W4B = lambda q, g: rr('a', WB4B + (q % NWR) * 8 + g * 4, 4)
    C0 = o.get('c0at', (5, 21))
    at = {o.get('t0at', (2, 27)): tell((0,)), o.get('l0at', (4, 29)): [Ins(fgl)],
          C0: [Raw("; @stamp 11")] + check(0) + [Raw("; @stamp 12")], o.get('t1at', (5, 29)): tell((1, 2, 3))}
    x01 = xld5(0) + xld5(1)
    if not B1:
        p("s_waitcnt vmcnt(0)")
        p("s_barrier")
    for n in range(4):
        p.add(rd4(0, n, 1, WB4B))
    cost = lambda x: 8 if x.kind == 'trans' else 0 if x.kind == 'vmem' else 4
    pend = []
    for pr in range(7):
        work = setup if pr == 0 else glu(pr - 1, False)
        side = dma5(pr - 1) if pr >= 1 else []
        if BT and pr == o.get('btat', 3): side.append(btouch())
        tot = sum(cost(x) for x in work)
        done, wi = 0, 0
        for ff in range(2):
            f = 2 * pr + ff
            if f == 0: order = [(t, k) for t in range(4) for k in (0, 1)] + [(t, k) for t in range(4) for k in (2, 3)]
            else: order = zz(f, 4, 4, ZZ)
            rds = [rd4(f + 1, n, 1, WB4B) for n in range(4)] if f + 1 < 14 else []
            rds += [rd4(f + 2, n, 0) for n in range(4)] if f + 2 < 14 else []
            for i, (t, k) in enumerate(order):
                p(mf16(AC4(f, t), W4(f, k) if k < 2 else W4B(f, k - 2), X4(0 if k < 2 else 2, t, k & 1)))
                if B1 and f == 0 and i == 7:
                    p("s_waitcnt vmcnt(0)")
                if f == 13 and i == 0:
                    p("s_barrier", rd=['L5_0', 'L5_1', 'L5_2', 'L5_3'])
                    rds = rd5(0) + rd5(1)

                def xnext():
                    p.add(x01.pop(0))
                    if x01 and x01[0].kind == 'salu': p.add(x01.pop(0))
                if i % 2 == 0 and rds:
                    p.add(rds.pop(0))
                elif i == 15:
                    if f < 13: p(f"wait {W4(f+1, 0)}, {W4(f+1, 1)}, {W4B(f+1, 0)}, {W4B(f+1, 1)}")
                elif (pr, ff * 16 + i) in at:
                    p.add(at[pr, ff * 16 + i])
                elif pend and i % 2:
                    p.add(pend.pop(0))
                    if pr >= 5 and pend and pend[0].kind == 'salu': p.add(pend.pop(0))
                elif x01 and (pr, ff * 16 + i) > C0 and (len(x01) > 10 or not side):
                    xnext()
                elif side and (i % 2 or pr == 6):
                    p.add(side.pop(0))
                    if pr >= 5 and side and side[0].kind == 'salu': p.add(side.pop(0))
                gap = ff * 16 + i + 1
                while wi < len(work) and done + cost(work[wi]) / 2 <= tot * gap / 32:
                    if work[wi].kind == 'vmem' or (pr and work[wi].kind == 'salu'): pend.append(work[wi])
                    else: p.add(work[wi])
                    done += cost(work[wi]); wi += 1
        assert wi == len(work) and (not side or pr == 6)
    carry = pend + side + x01

    p.add(Raw("; @stamp 13"))
    STG = 131072
    vL, vG, vXF = 30, 15, 26
    s_ro, s_fl, s_xs, s_fy, s_fb = 66, 67, 72, 70, 71
    SQ5 = 32
    bg = []
    p.cur = bg
    for i in range(4):
        p(f"v_xor_b32 v{vHI+i}, 0x10000, v{vA3+i}")
    p(f"""
    s_lshl_b32 s{s_of}, s{s_tok}, 6
    s_add_u32 s{s_of}, s{s_of}, {ST_SSQ}
    s_lshl_b32 s{s_t0}, s{s_b}, 4
    s_add_u32 s{s_t0}, s{s_t0}, s{s_j}
    s_lshl_b32 s{s_xs}, s{s_t0}, 2
    s_add_u32 s{s_xs}, s{s_xs}, s{s_w}
    s_lshl_b32 s{s_fl}, s{s_xs}, 7
    v_and_b32 v{vt+2}, 1, v0
    v_lshlrev_b32 v{vt+2}, 15, v{vt+2}
    v_xor_b32 v{vt+2}, {8 << 9}, v{vt+2}
    v_xor_b32 v{vXF}, s{s_fl}, v{vt+2}
    s_add_u32 s{s_fy}, s{s_fl}, {ST_FY}
    s_add_u32 s{s_fl}, s{s_fl}, {ST_FX}
    s_mov_b32 s{s_fb}, {ST_FY}
    s_lshl_b32 s{s_xs}, s{s_xs}, 14
    s_add_u32 s{s_nb+4}, s{s_xs}, 4096
    s_mul_i32 s{s_t0}, s{s_w}, 4608
    s_add_u32 s{s_t0}, s{s_t0}, {STG}
    v_and_b32 v{vt+2}, 15, v0
    v_mul_u32_u24 v{vt+2}, 144, v{vt+2}
    v_lshrrev_b32 v{vt+3}, 4, v0
    v_lshl_add_u32 v{vt+2}, v{vt+3}, 3, v{vt+2}
    v_add_u32 v{vL}, s{s_t0}, v{vt+2}
    v_lshrrev_b32 v{vt+2}, 3, v0
    v_and_b32 v{vt+3}, 7, v0
    v_lshlrev_b32 v{vt+3}, 4, v{vt+3}
    v_lshl_add_u32 v{vG}, v{vt+2}, 11, v{vt+3}
    v_mul_u32_u24 v{vt+2}, 144, v{vt+2}
    v_add3_u32 v{vL+1}, v{vt+2}, v{vt+3}, s{s_t0}
    s_lshl_b32 s{s_ro}, s{s_tok}, 11
    s_lshl_b32 s{s_t2}, s{s_j}, 7
    s_add_u32 s{s_ro}, s{s_ro}, s{s_t2}
    s_add_u32 s0, s{s_xs}, 4096
    s_add_u32 s1, s{s_xs}, 8192
    s_add_u32 s14, s{s_xs}, 12288
    s_xor_b32 s15, s0, {8 << 16}
    s_xor_b32 s74, s1, {64 << 16}
    s_xor_b32 s75, s14, {72 << 16}
    s_mov_b32 s{s_t1}, {f32hex(1.0/1024)}
    v_mov_b32 v{vt+4}, {f32hex(1e-5)}
    """.replace(f"    s_add_u32 s{s_nb+4}, s{s_xs}, 4096\n", ""))
    srd(p, sA, pOUT, S * D * 2)
    for t in range(2):
        for F in range(4):
            e = aHR + (t * 2 + (F >> 1)) * 4 + (F & 1) * 2
            k = vHF + (F * 2 + t) * 4
            p(f"""
            v_accvgpr_read_b32 v{k+1}, a{e}
            v_accvgpr_read_b32 v{k+3}, a{e+1}
            v_lshlrev_b32 v{k}, 16, v{k+1}
            v_lshlrev_b32 v{k+2}, 16, v{k+3}
            v_and_b32 v{k+1}, 0xffff0000, v{k+1}
            v_and_b32 v{k+3}, 0xffff0000, v{k+3}""")
    bg2 = []
    p.cur = bg2
    for t in range(2):
        p(f"""
        v_add_f32 v{SQ5+t}, v{SQ5+t}, v{SQ5+2+t}
        v_add_f32 v{SQ5+4+t}, v{SQ5+4+t}, v{SQ5+6+t}
        v_add_f32 v{vS+t}, v{SQ5+t}, v{SQ5+4+t}""")
        xsum16_32(p, f"v{vS+t}", f"v{vt}")
        p(f"v_fma_f32 v{vS+t}, v{vS+t}, s{s_t1}, v{vt+4}\nv_rsq_f32 v{vS+t}, v{vS+t}")
    p.cur = main_cur
    sXQ = {1: 0, 2: 1, 3: 14}
    assert NT in (4, 5, 6)
    sql = [Ins(f"buffer_load_dwordx2 {rr('v', SQ5 + 2*i, 2)}, v{vPT}, s[{sT}:{sT+3}], s{s_of} offen offset:{i*128} sc1") for i in range(4)]
    X_ = {st: xld5(st) for st in range(2, 14)}
    X_[1] = [x for x in x01]
    plan = {0: carry + dma5(6) + [Ins(fgl)] + dma5(7) + [check(1)] + X_[2][:5], 1: X_[2][5:] + X_[3] + X_[4][:5],
            2: tell((4, 5, 6)) + X_[4][5:] + X_[5], 3: dma5(8) + dma5(9) + X_[6], 4: [Ins(fgl)] + X_[7] + [check(2)] + X_[8],
            5: dma5(10) + dma5(11) + X_[9], 6: X_[10] + X_[11], 7: dma5(12) + dma5(13) + X_[12], 8: X_[13]}
    bar_at = {2: [4, 5, 6, 7], 4: [], 6: [8, 9, 10, 11], 9: [12, 13]}
    g6 = glu(6, False)
    g6tot, g6done = sum(cost(x) for x in g6), 0
    start = {}
    for k, u_ in enumerate(units[:kB]): start.setdefault(u_[0], k)
    kstart = {k: st for st, k in start.items() if st < 12}
    kbar = {start[st + 1] - 2: v for st, v in bar_at.items()}
    RX = AC5 + 32
    rxl = lambda F, r: Ins(f"buffer_load_dwordx4 {rr('v', AC5 + r*32 + F*8, 4)}, v{vL16}, s[{sC}:{sC+3}], s{(15, 74, 75)[r-1]} offen offset:{F*1024} sc1")
    fyl = f"buffer_load_dword v{vFG}, v{vXF}, s[{sT}:{sT+3}], s{s_fb} offen sc1"
    ev = {}
    YL = o.get('yl', [(-2, (0, 1), 15, 21), (12, (2, 3), 35, 42)])
    for n, (kt_, Fs, kl, kc) in enumerate(YL):
        ev.setdefault(kB + kt_, []).extend(
            [Ins(f"buffer_store_dword v{vOne}, v{vZ}, s[{sT}:{sT+3}], s{s_fy} offen sc1", rd=[f'XS{r}_{F}' for F in Fs for r in (1, 3)]),
             Ins(f"s_add_u32 s{s_fy}, s{s_fy}, 0x40000")])
        ev.setdefault(kB + kl, []).append(Ins(fyl))
        ev.setdefault(kB + kc, []).extend(
            [[Ins(f"wait v{vFG}"), Raw(spin(f"{name}_ypoll{n}", 1, fyl)), Ins(f"s_add_u32 s{s_fb}, s{s_fb}, 0x40000")]] +
            [rxl(F, r) for F in Fs for r in (1, 3)])
    ev.setdefault(kC + o.get('kfb', 12), []).extend(
        [Ins(f"buffer_store_dword v{vOne}, v{vZ}, s[{sT}:{sT+3}], s{s_fl} offen sc1", rd=[f'XS2_{F}' for F in range(4)]),
         Ins(f"s_xor_b32 s{s_fl}, s{s_fl}, {64 << 9}")])
    side, seen, hold = [], set(), 0
    for k, (st, F, ts) in enumerate(units):
        if k in kstart:
            side += plan.get(st, [])
        assert all(x not in side for x in X_.get(st, [])[:-1])
        side += ev.get(k, [])
        if k == kB - 14: side += sql
        if k == kB + 8: bg += bg2
        if 'fine5' in dbg:
            mk = {start[3]: 3, start[4]: 4, start[8]: 5, kB: 6, kC: 7, kC + 8: 8, kC + 16: 9}
            if k in mk: p.add(Raw(f"; @stamp {mk[k]}"))
        rds = rd5(k + 2) if k + 2 < len(units) else []
        order = [(ts[t], G) for t, G in zz(k, len(ts), 2, ZZ)]
        for i, (t, G) in enumerate(order):
            c = None if (F, t) in seen else "0"
            seen.add((F, t))
            p(mf16(A5(F, t), rr('v', WB5 + (k % 4) * 8 + G * 4, 4), X5(st, t, G), c))
            if i == 0 and k in kbar:
                assert not any(f'L5_{x}' in getattr(y, 'awr', ()) for x in kbar[k] for y in side)
                p("s_barrier", rd=[f'L5_{x}' for x in kbar[k]])
            used = False
            if rds and (i % 2 == 0 or len(ts) == 2):
                p.add(rds.pop(0))
            if i == len(order) - 1:
                if k + 1 < len(units):
                    n_ = units[k + 1]
                    p(f"wait {rr('v', WB5 + ((k + 1) % 4) * 8, 8)}, " + ", ".join(X5(n_[0], t_, G_) for t_ in n_[2] for G_ in range(2)))
            if side and i % 2 == 1 and (getattr(side[0], 'kind', '') == 'vmem') == (i % 4 == 1):
                p.add(side.pop(0)); used = True
                while side and i % 4 == 3 and getattr(side[0], 'kind', '') == 'salu': p.add(side.pop(0))
            while g6 and g6done + cost(g6[0]) / 2 <= g6tot * (k * 8 + i + 1) / 62:
                x = g6.pop(0); g6done += cost(x)
                if x.kind == 'vmem': side.insert(0, x)
                elif x.kind != 'salu': p.add(x)
            if bg and not used and k >= 9:
                x = bg.pop(0)
                if x.kind == 'vmem': side.append(x)
                else: p.add(x)
        if st == 13:
            for tp in sorted({t >> 1 for t in ts}):
                r = (F >> 2) + 2 * tp
                if r:
                    a = AC5 + r * 32 + (F & 3) * 8
                    bg += [Ins("wait v0") for _ in range(3 if not bg else 0)]
                    bg += [Ins(f"v_cvt_pk_bf16_f32 v{a+q}, v{a+2*q}, v{a+2*q+1}") for q in range(4)]
                    bg.append(Ins(f"buffer_store_dwordx4 {rr('v', a, 4)}, v{vL16}, s[{sC}:{sC+3}], s{sXQ[r]} offen offset:{(F & 3)*1024} sc1",
                                  awr=[f'XS{r}_{F & 3}'], nowaw=True))
    assert not bg
    p.add(Raw("; @stamp 14"))
    p.add(side + ev.get(len(units), []))
    fxl = f"buffer_load_dword v{vFG}, v{vt+1}, s[{sT}:{sT+3}], s{s_fl} offen sc1"
    p(f"v_mov_b32 v{vt+1}, 0")
    p(fxl)
    sels = ("op_sel_hi:[1,0,1]", "op_sel:[0,1,0]")
    RU = 40

    def add_rx(F, r):
        for q in range(4):
            e, a, k = AC5 + r * 32 + F * 8 + q, RU + ((r * 4 + q) % 8) * 2, vHF + F * 8 + 2 * q
            p(f"v_lshlrev_b32 v{a}, 16, v{e}\nv_and_b32 v{a+1}, 0xffff0000, v{e}")
            p(f"v_pk_fma_f32 {rr('v', k, 2)}, {rr('v', a, 2)}, {rr('v', vS, 2)}, {rr('v', k, 2)} {sels[q >> 1]}")
    for i in range(0, 32, 2):
        p(f"v_pk_fma_f32 {rr('v', vHF+i, 2)}, {rr('v', AC5+i, 2)}, {rr('v', vS, 2)}, {rr('v', vHF+i, 2)} {sels[(i >> 2) & 1]}")
    for F in range(2):
        add_rx(F, 1); add_rx(F, 3)
    if 'tail' in dbg: p.add(Raw("; @stamp 0"))
    p(f"wait v{vFG}")
    p.add(Raw(spin(f"{name}_xpoll", 1, fxl)))
    p.add([rxl(F, 2) for F in range(4)])
    if 'tail' in dbg: p.add(Raw("; @stamp 1"))
    for F in range(2, 4):
        add_rx(F, 1); add_rx(F, 3)
    for F in range(4):
        add_rx(F, 2)
        for t in range(2):
            k = vHF + (F * 2 + t) * 4
            p(f"v_cvt_pk_bf16_f32 v{k}, v{k}, v{k+1}\nv_cvt_pk_bf16_f32 v{k+1}, v{k+2}, v{k+3}")
            p(f"ds_write_b64 v{vL}, v[{k}:{k+1}] offset:{t*16*144 + F*32}")
    for n in range(4):
        p(f"ds_read_b128 {rr('v', 128 + n*4, 4)}, v{vL+1} offset:{n*8*144}")
    if 'tail' in dbg: p.add(Raw("; @stamp 2"))
    for n in range(4):
        p(f"buffer_store_dwordx4 {rr('v', 128 + n*4, 4)}, v{vG}, s[{sA}:{sA+3}], s{s_ro} offen")
        if n < 3: p(f"s_add_u32 s{s_ro}, s{s_ro}, {8 * 2048}")
    p(f"{name}_end:")
    p("s_endpgm")
    p.add(x15blk)

    z = 48
    rgl = f"buffer_load_dwordx2 v[{z+4}:{z+5}], v{z+6}, s[{sT}:{sT+3}], s{s_fo} offen sc1"
    p.add(Raw(f"""{name}_rsx:
    s_cmp_eq_u32 s{s_cnt}, 3
    s_cbranch_scc1 {name}_rs5
    s_cmp_eq_u32 s{s_cnt}, 2
    s_cbranch_scc1 {name}_rs6
    {mf16(rr('v', z, 4), on, rr('v', vRS, 4), "0")}
    {mf16(rr('v', z, 4), on, rr('v', vRS + 4, 4))}
    s_lshl_b32 s{s_t0}, s{s_fo}, 3
    s_add_u32 s{s_t0}, s{s_t0}, {ST_RS2}
    s_lshl_b32 s{s_fo}, s{s_j}, 9
    s_add_u32 s{s_fo}, s{s_fo}, {ST_RS2}
    v_lshlrev_b32 v{z+6}, 3, v0
    s_mov_b32 s{s_spin}, {SPIN}
    s_nop 2
""" + "".join(f"    v_add_f32_dpp v{z}, v{z}, v{z} row_ror:{k} row_mask:0xf bank_mask:0xf\n    s_nop 1\n" for k in (8, 4, 2, 1)) + f"""    v_mov_b32 v{z+1}, 1
    buffer_store_dwordx2 v[{z}:{z+1}], v{vZ}, s[{sT}:{sT+3}], s{s_t0} offen sc1
    s_branch {name}_rsxback
{name}_rs5:
    {rgl}
    s_lshl_b32 s{s_t0}, s{s_w}, 12
    s_add_u32 m0, s{s_t0}, {XT}
    s_lshl_b32 s{s_t1}, s{s_j}, 7
""" + "".join(f"    buffer_load_dwordx4 v{vD+i}, s[{sC}:{sC+3}], s{s_t1} offen offset:{i*1024} lds\n" for i in range(4)) + f"""    s_branch {name}_rsxback
{name}_rspoll:
    {rgl}
    s_waitcnt vmcnt(0)
{name}_rs6:
    v_cmp_ne_u32 vcc, 1, v{z+5}
    s_sub_u32 s{s_spin}, s{s_spin}, 1
    s_cbranch_scc1 {name}_rsgo
    s_cbranch_vccnz {name}_rspoll
{name}_rsgo:
    s_lshl_b32 s{s_t0}, s{s_w}, 8
    s_add_u32 s{s_t0}, s{s_t0}, {RED}
    v_lshl_add_u32 v{z+6}, v0, 2, s{s_t0}
    v_xor_b32 v{z+7}, 128, v{vRA}
    ds_write_b32 v{z+6}, v{z+4}
""" + "".join(f"    ds_read_b128 {rr('v', RSV + 16*x + 4*jj, 4)}, v{z+7 if x else vRA} offset:{jj*32}\n" for x in range(2) for jj in range(4)) +
              f"    s_branch {name}_rsxback"))

    slow = p.segment()
    p(f"{name}_slow:")
    p.fence()
    for x in range(2):
        p(f"v_mov_b32 v{Nb(x)}, 0xff800000")
    p(f"s_mov_b32 s{s_ko}, 0")
    p.begin_loop(f"{name}_max_loop", 64, align=False)
    p.add([kld(0, 0), kld(0, 1)])
    for x in range(2):
        p(mf32(rr('v', Sb(x), 16), Kf(0, 0), Q(x, 0), "0"))
        p(mf32(rr('v', Sb(x), 16), Kf(0, 1), Q(x, 1)))
    for x in range(2):
        for i in range(0, 16, 2):
            p(f"v_max3_f32 v{Nb(x)}, v{Nb(x)}, v{Sb(x)+i}, v{Sb(x)+i+1}")
    p(f"""
    s_add_u32 s{s_ko}, s{s_ko}, 4096
    s_cmp_lg_u32 s{s_ko}, {64 * 4096}
    s_cbranch_scc1 {name}_max_loop""")
    p.end_loop()
    for x in range(2):
        p(f"""
        v_mov_b32 v{vt}, v{Nb(x)}
        v_permlane32_swap_b32 v{Nb(x)}, v{vt}
        v_max_f32 v{Nb(x)}, v{Nb(x)}, v{vt}
        v_sub_f32 v{Nb(x)}, 0, v{Nb(x)}""")
        for i in range(1, 16):
            p(f"v_mov_b32 v{Nb(x)+i}, v{Nb(x)}")
    fill_kv()
    att_init()
    p(f"s_mov_b32 s{s_safe}, 1")
    attention('safe', lambda y: rr('v', Nb(y), 16), False, [Ins("s_nop 11")])
    p.fence()
    p(f"s_branch {name}_fin")
    p.paths = [[main, red_w, rest], [main, fin, fin_k, rest], [main, fin, fin_v, rest], [slow]]
    return p
```

```python
import sys, re
sys.path.insert(0, 'dev')
from common import *
import fused

NAME = 'sequential_preLN__grouped_kv_mqa__glu_gated_glu__prompt'
HDR = open(f'cdna_kernels/{NAME}.s.ref').read().split('; Override launch')[0]
STAMP = (0x4000000, 0x100000)

def add_stamps(c, d, n, dbgout=False, amp=None):
    c = c.replace(f"{n}:\n", f"{n}:\n    s_memrealtime s[96:97]\n    s_memtime s[94:95]\n", 1)
    tail = f"""    s_waitcnt vmcnt(0)
    s_memrealtime s[98:99]
    s_memtime s[100:101]
    s_add_u32 s28, s26, {STAMP[0]}
    s_addc_u32 s29, s27, 0
    s_mov_b32 s30, 0x100000
    s_mov_b32 s31, 0x20000
    s_waitcnt lgkmcnt(0)
    s_mov_b64 exec, 1
    s_lshl_b32 s56, s2, 2
    s_add_u32 s56, s56, s52
    s_lshl_b32 s56, s56, 7
    s_sub_u32 s93, s100, s94
    s_mov_b32 s92, s98
    s_mov_b32 s91, s96
    v_mov_b32 v0, 0
"""
    for q in range(5):
        tail += "".join(f"    v_mov_b32 v{4+4*q+i}, s{76+4*q+i}\n" for i in range(4))
        tail += f"    buffer_store_dwordx4 v[{4+4*q}:{7+4*q}], v0, s[28:31], s56 offen offset:{16*q}\n"
    if amp:
        a, b, k = amp
        tail += f"    s_sub_u32 s57, s{76+b}, s{76+a}\n    s_mul_i32 s57, s57, {k}\n    s_min_u32 s57, s57, 100000\nF_amp:\n    s_memrealtime s[98:99]\n    s_waitcnt lgkmcnt(0)\n    s_sub_u32 s58, s98, s92\n    s_cmp_lt_u32 s58, s57\n    s_cbranch_scc1 F_amp\n"
    if dbgout:
        tail += "    s_mov_b64 s[28:29], s[24:25]\n    s_mov_b32 s30, 64\n    s_mov_b32 s90, s92\n"
        for i in range(15):
            tail += f"    s_sub_u32 s57, s{76+i}, s91\n    v_mov_b32 v4, s57\n    buffer_store_dword v4, v0, s[28:31], s56 offen offset:{4+4*i}\n"
    c = c.replace("F_end:\n", tail + "F_end:\n", 1)
    c = re.sub(r"; @stamp (\d+)", lambda m: f"    s_memrealtime s[98:99]\n    s_waitcnt lgkmcnt(0)\n    s_mov_b32 s{76+int(m.group(1))}, s98", c)
    d = re.sub(r"next_free_sgpr \d+", "next_free_sgpr 102", d)
    return c, d

def build(o):
    n = NAME + '_kernel'
    pr = fused.gen_fused('F', o)
    txt = HDR + f"; @launch grid=(256,1,1) block=(256,1,1) lds={fused.LDS_TOTAL}\n"
    txt += '.amdgcn_target "amdgcn-amd-amdhsa--gfx950"\n.text\n'
    c, d = kernel_text(n, pr)
    if o.get('fine'):
        c = re.sub(r"; @stamp ([4-9]|1\d)\n", "", c).replace("; @fine", "; @stamp")
    else:
        c = re.sub(r"; @fine \d+\n", "", c)
    if o.get('idle'):
        k, n = o['idle']
        c = c.replace(f"; @stamp {k}\n", f"; @stamp {k}\n    s_sleep {n}\n")
    if o.get('trips'):
        c = re.sub(r"; @stamp ([4-9]|1[0-4])\n", "", c)
        sh = "    s_memtime s[98:99]\n" + "".join(f"    s_mov_b32 s{76+k}, s{77+k}\n" for k in range(4, 12)) + "    s_waitcnt lgkmcnt(0)\n    s_mov_b32 s88, s98\n"
        c = c.replace("; @stamp 3\n", "; @stamp 3\n" + sh).replace("    s_cbranch_scc1 F_fast_loop\n", sh + "    s_cbranch_scc1 F_fast_loop\n")
    if o.get('both'):
        a, b = o['both']
        c = re.sub(r"; @stamp [01]\n", "", c)
        c = c.replace(f"; @stamp {a}\n", f"; @stamp {a}\n    s_memtime s[98:99]\n    s_waitcnt lgkmcnt(0)\n    s_mov_b32 s76, s98\n")
        c = c.replace(f"; @stamp {b}\n", f"; @stamp {b}\n    s_memtime s[98:99]\n    s_waitcnt lgkmcnt(0)\n    s_mov_b32 s77, s98\n")
    if o.get('stamp'):
        c, d = add_stamps(c, d, n, o.get('dbgout'), o.get('amp'))
        if o.get('cyc'):
            c = c.replace('s_memrealtime', 's_memtime')
    else:
        c = re.sub(r"; @stamp \d+\n", "", c)
    return txt + c + '.section .rodata,"a"\n.p2align 6\n' + d

if __name__ == '__main__':
    out = sys.argv[1] if len(sys.argv) > 1 else f'cdna_kernels/{NAME}.s'
    opts = eval(sys.argv[2]) if len(sys.argv) > 2 else {}
    open(out, 'w').write(build(opts))
    print('wrote', out)
```

```python
from common import *

LDS_TOTAL = 163840
ST_MR = 0x0000
ST_RS2 = 0x60000
ST_MP = 0x28000
ST_FO = 0x80000
ST_FC = 0xA0000
ST_FH = 0xC0000
ST_FY = 0x120000
ST_FX = 0xE0000
ST_KVC = 0x4000
SPIN = 1 << 20

pX, pWQ, pWK, pWV, pWO, pWG, pWU, pWD, pOUT, pDBG, pWS = 4, 6, 8, 10, 12, 16, 18, 20, 22, 24, 26
sA, sB, sC, sD, sE, sT = 28, 32, 36, 40, 44, 48
s_w, s_b, s_j, s_tok, s_t0, s_t1, s_t2, s_cnt, s_spin = 52, 53, 54, 55, 56, 57, 58, 59, 60
vL16, vZ, vOne = 1, 2, 3
aMEAN, aHR, aA5 = 238, 240, 160


def srd(p, s, ptr, size, off=None, bias=0):
    if off is not None:
        p(f"s_add_u32 s{s}, s{ptr}, s{off}\ns_addc_u32 s{s+1}, s{ptr+1}, 0")
        ptr = s
    if bias > 0:
        p(f"s_add_u32 s{s}, s{ptr}, {hex(bias)}\ns_addc_u32 s{s+1}, s{ptr+1}, 0")
    elif bias < 0:
        p(f"s_sub_u32 s{s}, s{ptr}, {hex(-bias)}\ns_subb_u32 s{s+1}, s{ptr+1}, 0")
    elif off is None:
        p(f"s_mov_b64 s[{s}:{s+1}], s[{ptr}:{ptr+1}]")
    if isinstance(size, str):
        p(size.format(d=f"s{s+2}"))
    else:
        p(f"s_mov_b32 s{s+2}, {hex(size)}")
    p(f"s_mov_b32 s{s+3}, 0x20000")


PFL = ['sc1', 'sc1', 'buffer_store_dword']


def arrive(p, soff):
    p("s_waitcnt vmcnt(0)")
    p(f"{PFL[2]} v{vOne}, v{vZ}, s[{sT}:{sT+3}], s{soff} offen {PFL[1]}")


SLEEP = [0]


def poll(p, label, soff, n, vtmp, target=1):
    p(f"""
    s_mov_b32 s{s_spin}, {SPIN}
    v_lshlrev_b32 v{vtmp+1}, 7, v0
    s_mov_b64 exec, {hex((1 << n) - 1) if n < 32 else 0xffff}
    {'s_mov_b32 exec_lo, -1' if n == 32 else ''}""")
    p.add(Raw(f"""    s_branch {label}_go
{label}:
    {f's_sleep {SLEEP[0]}' if SLEEP[0] else ''}
{label}_go:
    buffer_load_dword v{vtmp}, v{vtmp+1}, s[{sT}:{sT+3}], s{soff} offen {PFL[0]}
    s_sub_u32 s{s_spin}, s{s_spin}, 1
    s_waitcnt vmcnt(0)
    v_cmp_gt_u32 vcc, {target}, v{vtmp}
    s_cbranch_scc1 {label}_done
    s_cbranch_vccnz {label}
{label}_done:"""))
    p("s_mov_b64 exec, -1")
    p("s_waitcnt vmcnt(0)")


def spread(vm, start, step):
    fill, pos = {}, start
    for ins in vm:
        fill.setdefault(pos, []).append(ins)
        if ins.kind == 'vmem':
            pos += step
    return fill


def zz(f, nt, nk, on=True):
    if not on:
        return [(t, k) for t in range(nt) for k in range(nk)]
    ts = list(range(nt)) if f % 2 == 0 else list(range(nt - 1, -1, -1))
    return [(t, k if n % 2 == 0 else nk - 1 - k) for n, t in enumerate(ts) for k in range(nk)]


def code_touch(tag, first, last, lines, vtmp, vdst):
    return f"""    s_getpc_b64 s[74:75]
{tag}:
    s_lshr_b32 s{s_t0}, s2, 3
    s_lshl_b32 s{s_t0}, s{s_t0}, 2
    s_add_u32 s{s_t0}, s{s_t0}, s{s_w}
    s_mul_i32 s{s_t0}, s{s_t0}, {128 * lines}
    s_min_u32 s{s_t0}, s{s_t0}, {last}-{first}
    s_sub_u32 s74, s74, {tag}-{first}
    s_subb_u32 s75, s75, 0
    v_min_u32 v{vtmp}, {lines - 1}, v0
    v_lshl_add_u32 v{vtmp}, v{vtmp}, 7, s{s_t0}
    global_load_dword v{vdst}, v{vtmp}, s[74:75]
"""


def gen_fused(name, o):
    ZZ = o.get('zz', True)
    dbg = o.get('dbg', '')
    SLEEP[0] = o.get('sleep', 0)
    PFL[:] = o.get('pfl', PFL)
    KVSC = 'sc1' if o.get('kvsc1', False) else ''
    p = Prog()
    main = p.segment()
    p(f"""
    s_cmp_ge_u32 s2, 256
    s_cbranch_scc1 {name}_end
    s_load_dwordx16 s[4:19], s[0:1], 0
    s_load_dwordx8 s[20:27], s[0:1], 64
    v_lshrrev_b32 v1, 6, v0
    v_and_b32 v0, 63, v0
    v_readfirstlane_b32 s{s_w}, v1
    s_and_b32 s{s_t0}, s2, 7
    s_lshr_b32 s{s_t1}, s2, 3
    s_lshr_b32 s{s_b}, s{s_t0}, 1
    s_lshl_b32 s{s_b}, s{s_b}, 2
    s_and_b32 s{s_j}, s{s_t1}, 3
    s_add_u32 s{s_b}, s{s_b}, s{s_j}
    s_and_b32 s{s_j}, s{s_t0}, 1
    s_lshl_b32 s{s_j}, s{s_j}, 3
    s_lshr_b32 s{s_t1}, s{s_t1}, 2
    s_add_u32 s{s_j}, s{s_j}, s{s_t1}
    {f"s_xor_b32 s{s_j}, s{s_j}, {o['jxor']}" if o.get('jxor') else ''}
    s_lshl_b32 s{s_tok}, s{s_b}, 2
    s_add_u32 s{s_tok}, s{s_tok}, s{s_w}
    s_lshl_b32 s{s_tok}, s{s_tok}, 5
    v_lshlrev_b32 v{vL16}, 4, v0
    v_cmp_eq_u32 vcc, 0, v0
    v_mov_b32 v{vOne}, 0x7ffffff0
    v_cndmask_b32 v{vZ}, v{vOne}, 0, vcc
    v_mov_b32 v{vOne}, 1
    """)

    R3 = o.get('rot3', False)
    SL = 24576
    RED, CSQ = 147456, 162816
    vt = 4
    vD = 12
    vD0 = 18
    vB = 22
    vA = 28
    vST = 34
    ONES = 36
    vRS = 40
    s_kv, s_xoff, s_woff, s_dm, s_pb, s_w6 = 61, 62, 63, 64, 65, 66
    s_hd, s_wdo, s_wm0, s_po, s_pk, s_ko, s_vo, s_pj = 67, 68, 69, 70, 71, 72, 73, 3
    p(f"""
    v_lshrrev_b32 v{vt}, 3, v0
    v_lshrrev_b32 v{vt+1}, 4, v0
    v_and_b32 v{vt+2}, 7, v0
    v_xor_b32 v{vt+3}, v{vt+1}, v{vt+2}
    v_lshlrev_b32 v{vt+3}, 4, v{vt+3}
    v_lshl_add_u32 v{vt+3}, v{vt}, 11, v{vt+3}
    v_xor_b32 v{vt+4}, 64, v{vt+3}
    v_add_u32 v{vD}, 4096, v{vt+3}
    v_add_u32 v{vD+1}, {16384 + 4096 - 1024}, v{vt+4}
    v_add_u32 v{vD0}, {128 + 4096 - 2048}, v{vt+3}
    v_add_u32 v{vD0+1}, {16384 + 128 + 4096 - 3072}, v{vt+4}
    v_lshrrev_b32 v{vt+5}, 5, v0
    v_lshlrev_b32 v{vt+5}, 1, v{vt+5}
    v_xor_b32 v{vt+5}, v{vt+5}, v0
    v_lshlrev_b32 v{vD0+2}, 4, v{vt+5}
    v_add_u32 v{vD+2}, {32768 + 4096 - 2048}, v{vt+3}
    v_add_u32 v{vD+3}, {32768 + 16384 + 4096 - 3072}, v{vt+4}
    v_and_b32 v{vt+1}, 1, v{vt+1}
    v_lshlrev_b32 v{vt+1}, 1, v{vt+1}
    v_xor_b32 v{vt+1}, v{vt+1}, v{vt+2}
    v_lshlrev_b32 v{vt+1}, 4, v{vt+1}
    v_lshl_add_u32 v{vD+4}, v{vt}, 11, v{vt+1}
    v_xor_b32 v{vD+5}, 64, v{vD+4}
    v_add_u32 v{vD+5}, {8*2048 - 1024}, v{vD+5}
    s_lshr_b32 s{s_t0}, s{s_j}, 1
    s_lshl_b32 s{s_kv}, s{s_b}, 3
    s_add_u32 s{s_kv}, s{s_kv}, s{s_t0}
    s_lshl_b32 s{s_kv}, s{s_kv}, 4
    s_lshl_b32 s{s_t0}, s{s_kv}, 11
    s_lshl_b32 s{s_t1}, s{s_w}, 9
    s_add_u32 s{s_t0}, s{s_t0}, s{s_t1}
    s_add_u32 s{s_t1}, s{s_w}, 2
    s_mul_i32 s{s_dm}, s{s_t1}, {SL}
    s_mov_b32 m0, s{s_dm}
    s_mul_i32 s{s_xoff}, s{s_b}, {128 * o.get('rotb', 4)}
    s_mul_i32 s{s_woff}, s{s_j}, {128 * o.get('rotj', 2)}
    s_add_u32 s{s_xoff}, s{s_xoff}, s{s_woff}
    s_and_b32 s{s_xoff}, s{s_xoff}, 2047
    s_mul_i32 s{s_w6}, s{s_w}, 6144
    s_lshl_b32 s{s_ko}, s{s_w}, 14
    s_bfe_u32 s{s_vo}, s{s_j}, 0x20001
    s_lshl_b32 s{s_vo}, s{s_vo}, 14
    s_and_b32 s{s_t1}, s{s_tok}, 0x1e0
    s_lshl_b32 s{s_t1}, s{s_t1}, 5
    s_add_u32 s{s_vo}, s{s_vo}, s{s_t1}
    v_lshlrev_b32 v{vt+6}, 7, v0
    """)
    srd(p, sA, pX, S * D * 2 + 4096, bias=-4096)
    p.add(Raw("; @fine 4"))
    p(f"""
    s_bitcmp0_b32 s{s_j}, 0
    s_cselect_b64 s[{sB}:{sB+1}], s[{pWK}:{pWK+1}], s[{pWV}:{pWV+1}]
    s_mov_b32 s{sB+2}, {D * 64}
    s_mov_b32 s{sB+3}, 0x20000
    """)
    if o.get('kvtouch', True):
        p("s_mov_b64 exec, 0xff")
        p(f"buffer_load_dword v255, v{vt+6}, s[{sB}:{sB+3}], s{s_vo} offen", nowaw=True)
        p.cur[-1].awr = set()
        p("s_mov_b64 exec, -1")
    xo = [vD, vD + 1, vD0, vD0 + 1]
    for n in range(8):
        if n == 4:
            p(f"s_add_u32 m0, m0, 4096\ns_add_u32 s{s_t0}, s{s_t0}, 256")
        p(f"buffer_load_dwordx4 v{xo[n & 3]}, s[{sA}:{sA+3}], s{s_t0} offen offset:{(n & 3) * 1024} lds", awr=['P00'], nowaw=True)

    def wkv(q):
        p("s_add_u32 m0, m0, 4096")
        if q: p(f"s_add_u32 s{s_ko}, s{s_ko}, 4096")
        for i in range(4):
            p(f"buffer_load_dwordx4 v{vD0+2}, s[{sB}:{sB+3}], s{s_ko} offen offset:{i*1024} lds", awr=[f'P0{q}'], nowaw=True)
    EARLY = o.get('early', 0)
    for q in range(EARLY): wkv(q)
    if o.get('sipf', 2):
        p(f"""
        s_getpc_b64 s[0:1]
        s_lshr_b32 s{s_t0}, s2, 3
        s_lshl_b32 s{s_t0}, s{s_t0}, 2
        s_add_u32 s{s_t0}, s{s_t0}, s{s_w}
        s_lshl_b32 s{s_t0}, s{s_t0}, 7
        s_add_u32 s0, s0, s{s_t0}
        s_addc_u32 s1, s1, 0
        s_and_b32 s0, s0, 0xffffff80
        s_load_dword s{s_spin}, s[0:1], 0""")
        if o.get('sipf', 2) == 2: p(f"s_load_dword s{s_cnt}, s[0:1], 64")
    p.add(Raw("; @fine 5"))
    p(f"""
    s_lshl_b32 s{s_t0}, s{s_tok}, 11
    s_lshl_b32 s{s_t1}, s{s_w}, 15
    s_lshl_b32 s{s_t2}, s{s_j}, 7
    s_add_u32 s{s_t1}, s{s_t1}, s{s_t2}
    """)
    srd(p, sC, pX, 32 * 2048 + 4096, off=s_t0, bias=-4096)
    srd(p, sD, pWQ, f"s_sub_u32 {{d}}, {D * D * 2}, s{s_t1}", off=s_t1)

    def dma1(m0expr, tag):
        o_ = [Ins(m0expr), Ins(f"s_lshl_b32 s{s_woff}, s{s_xoff}, 10")]
        for i in range(4):
            o_.append(Ins(f"buffer_load_dwordx4 v{vD+i}, s[{sC}:{sC+3}], s{s_xoff} offen offset:{i*1024} lds", awr=[tag], nowaw=True))
        o_ += [Ins("s_add_u32 m0, m0, 4096"), Ins(f"s_add_u32 s{s_xoff}, s{s_xoff}, 128")]
        for i in range(2):
            o_.append(Ins(f"buffer_load_dwordx4 v{vD+4+i}, s[{sD}:{sD+3}], s{s_woff} offen offset:{i*1024} lds", awr=[tag], nowaw=True))
        o_.append(Ins(f"s_and_b32 s{s_xoff}, s{s_xoff}, 2047"))
        return o_
    if o.get('qtouch', True):
        srd(p, sE, pWQ, D * D * 2)
        p(f"""
        s_lshr_b32 s{s_t0}, s2, 3
        s_lshl_b32 s{s_t0}, s{s_t0}, 2
        s_add_u32 s{s_t0}, s{s_t0}, s{s_w}
        s_lshl_b32 s{s_t0}, s{s_t0}, 14
        s_and_b32 s{s_t1}, s{s_j}, 8
        s_lshl_b32 s{s_t1}, s{s_t1}, 7
        s_add_u32 s{s_t0}, s{s_t0}, s{s_t1}
        v_lshlrev_b32 v{vt+6}, 11, v0
        s_mov_b64 exec, 0xff""")
        p(f"buffer_load_dword v255, v{vt+6}, s[{sE}:{sE+3}], s{s_t0} offen offset:384", nowaw=True)
        p.cur[-1].awr = set()
        if o.get('qlin', True):
            p(f"""
            s_lshl_b32 s{s_t0}, s2, 2
            s_add_u32 s{s_t0}, s{s_t0}, s{s_w}
            s_lshl_b32 s{s_t0}, s{s_t0}, 11
            s_mov_b64 exec, 0xffff
            v_lshlrev_b32 v{vt+6}, 7, v0""")
            p(f"buffer_load_dword v255, v{vt+6}, s[{sE}:{sE+3}], s{s_t0} offen", nowaw=True)
            p.cur[-1].awr = set()
        p("s_mov_b64 exec, -1")
    srd(p, sE, pWO, D * D * 2)

    srd(p, sT, pWS, ST[1], bias=ST[0])
    srd(p, sA, pWS, KV[1], bias=KV[0])
    p(f"""
    v_and_b32 v{vt}, 15, v0
    v_lshrrev_b32 v{vt+1}, 1, v{vt}
    v_lshrrev_b32 v{vt+2}, 4, v0
    v_xor_b32 v{vt+1}, v{vt+1}, v{vt+2}
    v_lshlrev_b32 v{vt+1}, 4, v{vt+1}
    v_lshl_add_u32 v{vt+1}, v{vt}, 7, v{vt+1}
    v_xor_b32 v{vt+3}, 64, v{vt+1}
    v_add_u32 v{vB}, s{s_w6}, v{vt+1}
    v_add_u32 v{vB+1}, s{s_w6}, v{vt+3}
    v_add_u32 v{vA}, s{s_dm}, v{vt+1}
    v_add_u32 v{vA+1}, s{s_dm}, v{vt+3}
    v_lshrrev_b32 v{vt}, 5, v0
    v_and_b32 v{vt+1}, 3, v0
    v_lshlrev_b32 v{vt+1}, 3, v{vt+1}
    v_bfe_u32 v{vt+2}, v0, 2, 2
    v_bfe_u32 v{vt+3}, v0, 4, 1
    v_lshl_add_u32 v{vt+2}, v{vt+3}, 3, v{vt+2}
    v_lshl_add_u32 v{vt+4}, v{vt}, 10, v{vt+1}
    v_lshl_add_u32 v{vt+4}, v{vt+2}, 6, v{vt+4}
    v_lshl_add_u32 v{vt+4}, v{vt+3}, 5, v{vt+4}
    v_add_u32 v{vA+2}, s{s_dm}, v{vt+4}
    v_xor_b32 v{vA+3}, 32, v{vA+2}
    v_mul_u32_u24 v{vt}, 6144, v{vt}
    v_add_u32 v{vt}, v{vt}, v{vt+1}
    v_lshl_add_u32 v{vt}, v{vt+2}, 7, v{vt}
    v_bfe_u32 v{vt+4}, v0, 3, 2
    v_xor_b32 v{vt+4}, s{s_w}, v{vt+4}
    v_lshl_add_u32 v{vB+2}, v{vt+4}, 5, v{vt}
    v_xor_b32 v{vB+3}, 32, v{vB+2}
    v_xor_b32 v{vB+4}, 64, v{vB+2}
    v_xor_b32 v{vB+5}, 0x60, v{vB+2}
    """)
    for i in range(4):
        p(f"v_mov_b32 v{ONES+i}, 0x3f803f80")
    on = rr('v', ONES, 4)
    AB = 48
    CSA = 80
    PA = 84
    FB = 128
    TR = 112
    NR = 8
    Q = lambda x, m: rr('v', 16 + x * 8 + m * 4, 4)
    Sb = lambda x: 64 + 16 * x
    RSV = 112
    Nb = lambda x: 144 + 16 * x
    Ob = lambda x: 176 + 16 * x
    Lb = lambda x: 208 + 4 * x
    Pb = lambda x: 216 + 8 * x
    SEL, vWD, vPF, vDum, vOS, vPW, vCS, vGP, vMA, vRA, vFF = 232, 236, 240, 241, 242, 243, 244, 245, 246, 247, 248

    def att_init():
        for i in list(range(Ob(0), Lb(1) + 4, 2)) + list(range(Pb(1), Pb(1) + 8, 2)):
            p(f"v_pk_mov_b32 {rr('v', i, 2)}, 0, 0")
        for i in range(8): p(f"v_accvgpr_write_b32 a{64 + (NR-1)*8 + i}, 0")
    for i in range(AB, CSA + 4, 2):
        p(f"v_pk_mov_b32 {rr('v', i, 2)}, 0, 0")
    p.add(Raw(f"""    s_or_b32 s{s_t0}, s2, s{s_w}
    s_cbranch_scc1 {name}_noclr
    s_movk_i32 s{s_t0}, {ST_KVC}
""" + "".join(f"    buffer_store_dwordx4 {rr('v', AB, 4)}, v{vL16}, s[{sT}:{sT+3}], s{s_t0} offen offset:{i*1024} sc1\n" for i in range(4)) + f"{name}_noclr:"))
    att_init()
    for i in range(4):
        p(f"v_mov_b32 v{vFF+i}, -1")
    p(f"""
    v_lshrrev_b32 v{vt}, 2, v0
    v_and_b32 v{vt}, 4, v{vt}
    v_xor_b32 v{vt}, v{vt}, v0
    v_and_b32 v{vt}, 7, v{vt}
    v_cmp_eq_u32 vcc, 0, v{vt}
    v_lshrrev_b32 v{vt}, 3, v0
    v_and_b32 v{vt+1}, 6, v{vt}
    v_cndmask_b32 v{SEL}, 0, v{ONES}, vcc
    v_mov_b32 v{SEL+1}, v{SEL}
    v_mov_b32 v{SEL+2}, v{SEL}
    v_mov_b32 v{SEL+3}, v{SEL}
    v_and_b32 v{vt+2}, 7, v0
    v_xor_b32 v{vt+1}, v{vt+1}, v{vt+2}
    v_lshlrev_b32 v{vt+1}, 4, v{vt+1}
    v_lshl_add_u32 v{vWD}, v{vt}, 11, v{vt+1}
    v_add_u32 v{vWD+1}, {8*2048 - 1024}, v{vWD}
    v_add_u32 v{vWD+2}, {16*2048 - 2048}, v{vWD}
    v_add_u32 v{vWD+3}, {24*2048 - 3072}, v{vWD}
    s_lshl_b32 s{s_wdo}, s{s_w}, 16
    s_lshl_b32 s{s_t1}, s{s_j}, 7
    s_add_u32 s{s_wdo}, s{s_wdo}, s{s_t1}
    s_lshl_b32 s{s_wm0}, s{s_w}, 12
    {f's_and_b32 s{s_t0}, s{s_j}, 1' if R3 else ''}
    {f's_lshl_b32 s{s_t0}, s{s_t0}, 16' if R3 else ''}
    {f's_add_u32 s{s_wm0}, s{s_wm0}, s{s_t0}' if R3 else ''}
    s_lshl_b32 s{s_pj}, s{s_tok}, 6
    s_add_u32 s{s_pj}, s{s_pj}, s{s_t1}
    s_lshl_b32 s{s_hd}, s{s_j}, 1
    s_lshr_b32 s{s_t0}, s{s_w}, 1
    s_add_u32 s{s_hd}, s{s_hd}, s{s_t0}
    v_mul_u32_u24 v{vt}, 9363, v0
    v_lshrrev_b32 v{vt}, 16, v{vt}
    v_mul_u32_u24 v{vt+1}, {7168 - 7*128}, v{vt}
    v_cmp_gt_u32 vcc, 14, v0
    v_lshl_add_u32 v{vPF}, v0, 7, v{vt+1}
    s_lshr_b32 s{s_t0}, s2, 3
    v_cndmask_b32 v{vPF}, -1, v{vPF}, vcc
    v_and_b32 v{vPF}, 0x7fffff80, v{vPF}
    s_lshl_b32 s{s_t0}, s{s_t0}, 2
    s_add_u32 s{s_t0}, s{s_t0}, s{s_w}
    s_mul_i32 s{s_pk}, s{s_t0}, {2 * 7168}
    s_and_b32 s{s_t0}, s2, 7
    s_mul_i32 s{s_t0}, s{s_t0}, 896
    s_add_u32 s{s_pk}, s{s_pk}, s{s_t0}
    v_and_b32 v{vt}, 15, v0
    v_bfe_u32 v{vt+1}, v0, 4, 1
    v_lshrrev_b32 v{vt+2}, 5, v0
    v_lshrrev_b32 v{vt+3}, 4, v0
    v_lshlrev_b32 v{vMA}, 3, v{vt}
    s_lshl_b32 s{s_t0}, s{s_w}, 8
    s_and_b32 s{s_t1}, s{s_w}, 2
    s_lshl_b32 s{s_t1}, s{s_t1}, 6
    s_add_u32 s{s_t0}, s{s_t0}, s{s_t1}
    s_add_u32 s{s_t0}, s{s_t0}, {RED}
    v_lshl_add_u32 v{vRA}, v{vt+2}, 4, s{s_t0}
    v_add_u32 v253, 8192, v{vL16}
    v_lshl_add_u32 v{vPW}, v{vt+3}, 2, v{vMA}
    v_lshlrev_b32 v{vt}, 4, v{vt}
    v_lshl_add_u32 v{vOS}, v{vt+1}, 15, v{vt}
    v_lshl_add_u32 v{vOS}, v{vt+2}, 8, v{vOS}
    s_lshl_b32 s{s_t0}, s{s_w}, 6
    s_add_u32 s{s_t0}, s{s_t0}, {CSQ}
    v_lshl_add_u32 v{vCS}, v{vt+3}, 4, s{s_t0}
    v_lshlrev_b32 v{vGP}, 5, v{vMA}
    s_bitcmp1_b32 s{s_j}, 0
    s_cselect_b32 s{s_t0}, 9, 10
    s_cselect_b32 s{s_t1}, 8, 9
    v_lshl_add_u32 v{vST}, v{vt+1}, s{s_t0}, v{vt}
    v_lshl_add_u32 v{vST}, v{vt+2}, s{s_t1}, v{vST}
    s_mul_i32 s{s_t0}, s{s_w}, 5120
    s_add_u32 s{s_t0}, s{s_t0}, {RED - 5120}
    v_add_u32 v{vST+1}, s{s_t0}, v{vL16}
    v_and_b32 v{vt}, 3, v0
    v_cmp_eq_u32 s[0:1], 1, v{vt}
    v_cmp_eq_u32 s[14:15], 2, v{vt}
    v_cmp_eq_u32 s[74:75], 3, v{vt}
    v_bfe_u32 v{vt}, v0, 2, 2
    v_cmp_eq_u32 vcc, v{vt}, v{vt+3}
    """)
    SMF = o.get('smf', True)
    vIX = 252
    if SMF:
        p(f"""
        v_and_b32 v{vt+5}, 6, v0
        v_cmp_eq_u32 s[{sB}:{sB+1}], 0, v{vt+5}
        """.replace(f"s[{sB}:{sB+1}]", "s[76:77]" if False else "s[58:59]"))
        p(f"""
        v_cndmask_b32 v{SEL}, 0, v{ONES}, s[58:59]
        v_cndmask_b32 v{SEL+1}, 0, v{ONES}, s[58:59]
        v_cmp_eq_u32 s[58:59], 4, v{vt+5}
        v_and_b32 v{vIX}, 1, v0
        v_mul_u32_u24 v{vIX}, 0xaaaa, v{vIX}
        v_cndmask_b32 v{SEL+2}, 0, v{ONES}, s[58:59]
        v_cndmask_b32 v{SEL+3}, 0, v{ONES}, s[58:59]
        v_add_u32 v{vIX}, 0x4444, v{vIX}""")
    smf = lambda x: f"v_smfmac_f32_16x16x64_bf16 {rr('v', Lb(x), 4)}, {rr('v', SEL, 4)}, {rr('v', Pb(x), 8)}, v{vIX}"
    for q in range(EARLY, 4): wkv(q)
    srd(p, sB, pDBG, 256)
    p.add(Raw("; @stamp 0"))
    X0 = lambda G: rr('a', FB + 4 * G, 4)
    W0 = lambda G, e: rr('a', FB + 32 + (G * 2 + e) * 4, 4)
    acc0 = lambda k: rr('v', PA + 4 * k, 4)

    def rd0(q):
        o_ = []
        for G in (2 * q, 2 * q + 1):
            o_.append(Ins(f"ds_read_b128 {X0(G)}, v{vA + (G & 1)} offset:{q * 2048}", rd=[f'P0{q}']))
            o_ += [Ins(f"ds_read_b64_tr_b16 {rr('a', FB + 32 + (G*2+e)*4 + 2*b, 2)}, v{vA+2+e} offset:{8192 + G*2048 + b*256}")
                   for e in range(2) for b in range(2)]
        return o_

    def mf0(q):
        o_ = []
        for G in (2 * q, 2 * q + 1):
            c = "0" if G == 0 else None
            o_ += [mf16(acc0(4), on, X0(G), c), mf16(acc0(5), X0(G), X0(G), c), mf16(acc0(0), W0(G, 0), X0(G), c),
                   mf16(acc0(2), W0(G, 0), on, c), mf16(acc0(1), W0(G, 1), X0(G), c), mf16(acc0(3), W0(G, 1), on, c)]
        return o_
    p.add(rd0(0))
    p.add(Raw("; @fine 6"))
    later = dma1(f"s_mov_b32 m0, s{s_w6}", 'L0') + dma1(f"s_add_u32 m0, s{s_w6}, {SL}", 'Lx')

    def some(k):
        n = 0
        while later and n < k:
            x = later.pop(0); p.add(x); n += x.kind == 'vmem'
    RSA = PA + 24
    for q in range(4):
        rds = rd0(q + 1) if q < 3 else []
        for i, m in enumerate(mf0(q)):
            p(m)
            if rds: p.add(rds.pop(0))
            if i % 4 == 1: some(1)
    assert EARLY < 4
    p.add(Raw(f"""    s_or_b32 s{s_t0}, s2, s{s_w}
    s_cbranch_scc1 {name}_nordy
    buffer_store_dword v{vOne}, v{vZ}, s[{sB}:{sB+3}], 0 offen sc1
{name}_nordy:"""))
    some(99)
    p.add(Raw("; @fine 7"))
    g = PA + 20
    p(f"""
    v_cndmask_b32 v{g}, v{g}, v{g+1}, s[0:1]
    v_cndmask_b32 v{g}, v{g}, v{g+2}, s[14:15]
    v_cndmask_b32 v{g}, v{g}, v{g+3}, s[74:75]
    v_cndmask_b32 v{PA+17}, 0, v{g}, vcc
    s_cmp_eq_u32 s{s_w}, 0
    s_cbranch_scc1 {name}_p0fin
    """)
    red_w = p.segment()
    for k in (4, 0, 2, 1, 3):
        p(f"ds_write_b128 v{vST+1}, {acc0(k)} offset:{k*1024}")
    p("s_waitcnt lgkmcnt(0)")
    p("s_barrier")
    p(f"s_branch {name}_p1")
    fin = p.segment()
    p(f"{name}_p0fin:")
    p(f"""
    s_mov_b32 s{s_t1}, {f32hex(1.0/1024)}""")
    p("s_barrier")
    for k in (4, 0, 2, 1, 3):
        for w in range(3):
            p(f"ds_read_b128 {rr('v', TR + (k*3+w)*4, 4)}, v{vST+1} offset:{5120*(w+1) + k*1024}")

    def red(k):
        a, b = PA + 4 * k, TR + k * 12
        for h in (0, 2):
            p(f"v_pk_add_f32 {rr('v', a+h, 2)}, {rr('v', a+h, 2)}, {rr('v', b+h, 2)}")
            p(f"v_pk_add_f32 {rr('v', b+4+h, 2)}, {rr('v', b+4+h, 2)}, {rr('v', b+8+h, 2)}")
        for h in (0, 2):
            p(f"v_pk_add_f32 {rr('v', a+h, 2)}, {rr('v', a+h, 2)}, {rr('v', b+4+h, 2)}")
    vM, vR = PA + 20, PA + 21
    d = PA + 24
    red(4)
    xsum16_32(p, f"v{PA+17}", f"v{vt}")
    p(f"""
    v_mul_f32 v{vM}, s{s_t1}, v{PA+16}
    v_mul_f32 v{vt}, v{vM}, v{vM}
    v_fma_f32 v{vt}, v{PA+17}, s{s_t1}, -v{vt}
    v_max_f32 v{vt}, 0, v{vt}
    v_add_f32 v{vt}, {f32hex(1e-5)}, v{vt}
    v_rsq_f32 v{vR}, v{vt}
    s_lshr_b32 s{s_t0}, s{s_kv}, 5
    s_lshl_b32 s{s_t0}, s{s_t0}, 12
    s_bfe_u32 s{s_t1}, s{s_kv}, 0x10004
    """)
    mr = rr('v', vM, 2)
    for e in range(2):
        red(e); red(2 + e)
        a = PA + 4 * e
        for r in (0, 2): p(f"v_pk_fma_f32 {rr('v', a+r, 2)}, {rr('v', a+8+r, 2)}, {mr}, {rr('v', a+r, 2)} op_sel_hi:[1,0,1] neg_lo:[0,1,0] neg_hi:[0,1,0]")
        for r in (0, 2): p(f"v_pk_mul_f32 {rr('v', a+r, 2)}, {rr('v', a+r, 2)}, {mr} op_sel:[0,1]")
        p(f"v_cvt_pk_bf16_f32 v{d+2*e}, v{a}, v{a+1}")
        p(f"v_cvt_pk_bf16_f32 v{d+2*e+1}, v{a+2}, v{a+3}")
    p(f"""
    s_bitcmp1_b32 s{s_j}, 0
    s_cbranch_scc1 {name}_p0v
    """)
    fin_k = p.segment()
    p(f"""
    s_lshl_b32 s{s_t1}, s{s_t1}, 8
    s_add_u32 s{s_t0}, s{s_t0}, s{s_t1}
    buffer_store_dwordx4 {rr('v', d, 4)}, v{vST}, s[{sA}:{sA+3}], s{s_t0} offen sc1
    s_lshl_b32 s{s_t0}, s{s_kv}, 3
    s_mov_b64 exec, 0xffff
    buffer_store_dwordx2 {mr}, v{vMA}, s[{sT}:{sT+3}], s{s_t0} offen offset:{ST_MR} sc1
    s_mov_b64 exec, -1
    s_branch {name}_p1""")
    fin_v = p.segment()
    p(f"""
    {name}_p0v:
    v_lshrrev_b32 v{vt+1}, 4, v0
    v_add_u32 v{vt}, v{vt+1}, v{vMA}
    v_lshlrev_b32 v{vt}, 3, v{vt}
    v_add_u32 v{vt}, {RED}, v{vt}
    ds_write_b64 v{vt}, {rr('v', d, 2)}
    ds_write_b64 v{vt}, {rr('v', d+2, 2)} offset:32
    v_lshrrev_b32 v{vt+3}, 2, v0
    v_lshlrev_b32 v{vt+3}, 6, v{vt+3}
    v_and_b32 v{vt+4}, 3, v0
    v_lshl_add_u32 v{vt+3}, v{vt+4}, 3, v{vt+3}
    v_add_u32 v{vt+3}, {RED}, v{vt+3}
    ds_read_b64_tr_b16 {rr('v', PA, 2)}, v{vt+3}
    ds_read_b64_tr_b16 {rr('v', PA+2, 2)}, v{vt+3} offset:32
    s_lshl_b32 s{s_t1}, s{s_t1}, 10
    s_add_u32 s{s_t0}, s{s_t0}, s{s_t1}
    v_permlane32_swap_b32 v{PA}, v{PA+2}
    v_permlane32_swap_b32 v{PA+1}, v{PA+3}
    buffer_store_dwordx4 {rr('v', PA, 4)}, v{vST}, s[{sA}:{sA+3}], s{s_t0} offen offset:2048 sc1
    """)

    rest = p.segment()
    p(f"{name}_p1:")
    p.add(Raw("; @stamp 1"))
    ACC = lambda F, t: rr('v', AB + (F * 2 + t) * 4, 4)
    X1 = lambda s, t, g: rr('a', FB + s * 48 + (t * 2 + g) * 4, 4)
    W1 = lambda s, F, g: rr('a', FB + s * 48 + 16 + (F * 2 + g) * 4, 4)

    def reads1(s, base, va):
        xr = lambda t, g: Ins(f"ds_read_b128 {X1(s, t, g)}, v{va+g} offset:{base + t*2048}")
        wr = lambda F, g, b: Ins(f"ds_read_b64_tr_b16 {rr('a', FB + s*48 + 16 + (F*2+g)*4 + 2*b, 2)}, v{va+2+F} offset:{base + 2*g*6144 + 4096 + b*512}")
        return [wr(0, 0, 0), wr(0, 0, 1), wr(0, 1, 0), wr(0, 1, 1), xr(0, 0), xr(0, 1), xr(1, 0), xr(1, 1)] + \
               [wr(F, g, b) for F in range(1, 4) for g in range(2) for b in range(2)]
    p(f"""
    s_lshl_b32 s{s_t0}, s2, 2
    s_add_u32 s{s_t0}, s{s_t0}, s{s_w}
    s_lshl_b32 s{s_t0}, s{s_t0}, 10
    s_add_u32 s{s_t0}, s{s_t0}, {ST_FO}
    buffer_store_dwordx4 {rr('v', AB, 4)}, v{vL16}, s[{sT}:{sT+3}], s{s_t0} offen sc1""")
    p.add(Raw(f"""    s_cmp_ge_u32 s2, 2
    s_cbranch_scc1 {name}_nogz
    s_sub_u32 s{s_t0}, s{s_t0}, {ST_FO - ST_RS2}
    buffer_store_dwordx4 {rr('v', AB, 4)}, v{vL16}, s[{sT}:{sT+3}], s{s_t0} offen sc1
{name}_nogz:"""))
    rdy = f"buffer_load_dword v{vt+5}, v{vZ}, s[{sB}:{sB+3}], 0 offen sc1"
    for u in range(2, 5):
        if u == 2: p.add(Raw(f"    s_cmp_lg_u32 s{s_w}, 0\n    s_cbranch_scc1 {name}_nor\n    {rdy}\n{name}_nor:"))
        p.add(dma1(f"s_add_u32 m0, s{s_w6}, {u*SL}", 'Lx'))
    p.add(Raw("; @fine 8"))
    p("s_barrier", rd=['L0'])
    p.add(Raw("; @fine 9"))
    p.add(reads1(0, 0, vB))
    for i in range(6):
        p(f"v_mov_b32 v{vA+i}, v{vB+i}")
    p(f"""
    s_mov_b32 s{s_pb}, {2 * SL}
    s_add_u32 s{s_dm}, s{s_w6}, {2 * 2 * SL}
    s_and_b32 s{s_kv}, s2, 15
    s_lshl_b32 s{s_kv}, s{s_kv}, 8
    s_add_u32 s{s_kv}, s{s_kv}, {ST_KVC}
    s_mov_b32 s{s_spin}, {SPIN}
    s_lshl_b32 s{s_t2}, s{s_w}, 8
    s_add_u32 s{s_t2}, s{s_t2}, 5
    s_mov_b32 s{s_cnt}, 5""")

    def stage1(s, head, fill, rds):
        mf = [mf16(rr('v', CSA, 4), W1(s, 0, g), on) for g in range(2)]
        for F in range(4):
            mf += [mf16(ACC(F, t), W1(s, F, g), X1(s, t, g)) for t, g in zz(F, 2, 2, ZZ)]
        p.add(head)
        rds = list(rds)
        for i, m in enumerate(mf):
            if 'p1nomf' not in dbg: p(m)
            for _ in range(2 if i in (0, 1) else 1):
                if rds:
                    x = rds.pop(0)
                    if 'p1nods' not in dbg: p.add(x)
            p.add([x for x in fill.get(i, []) if not ('p1nodma' in dbg and getattr(x, 'kind', '') == 'vmem')])

    def one_per_gap(lst, start):
        return {start + i: [x] for i, x in enumerate(lst)}

    def spaced(lst):
        pos = [0, 1, 2, 5, 8, 11, 12, 13, 14, 17, 17]
        out = {}
        for k, x in zip(pos, lst): out.setdefault(k, []).append(x)
        return out
    upd = lambda: {3: [Ins(f"v_add_u32 v{vA+2}, s{s_pb}, v{vB+2}")], 6: [Ins(f"v_add_u32 v{vA}, s{s_pb}, v{vB}")],
                   7: [Ins(f"v_add_u32 v{vA+1}, s{s_pb}, v{vB+1}")], 10: [Ins(f"v_add_u32 v{vA+3}, s{s_pb}, v{vB+3}")],
                   15: [Ins(f"v_add_u32 v{vA+4}, s{s_pb}, v{vB+4}")], 17: [Ins(f"v_add_u32 v{vA+5}, s{s_pb}, v{vB+5}")]}
    nextpb = lambda: [Ins(f"s_add_u32 s{s_pb}, s{s_pb}, {2*SL}"), Ins(f"s_cmp_eq_u32 s{s_pb}, {6*SL}"), Ins(f"s_cselect_b32 s{s_pb}, 0, s{s_pb}")]

    def merge(*fs):
        out = {}
        for f in fs:
            for k, v in f.items(): out.setdefault(k, []).extend(v)
        return out
    sync = lambda n: [Ins(f"s_waitcnt vmcnt({n}) lgkmcnt(12)"), Ins("s_barrier")]
    s_nx = s_t0
    p(f"s_mov_b32 s{s_nx}, s{s_w6}")
    p.add(Raw("; @fine 10"))
    p.begin_loop(f"{name}_p1loop", 5, align=False)
    stage1(0, sync(18), merge(spaced(dma1(f"s_add_u32 m0, s{s_dm}, {SL}", 'Lx')[:-1]), upd(), {16: [Ins(f"s_and_b32 s{s_xoff}, s{s_xoff}, 2047")]}), reads1(1, SL, vA))
    arr = Raw(f"""    s_cmp_lg_u32 s{s_cnt}, s{s_t2}
    s_cbranch_scc1 {name}_noarr
{name}_rchk:
    v_readfirstlane_b32 s{s_t1}, v{vt+5}
    s_sub_u32 s{s_spin}, s{s_spin}, 1
    s_cselect_b32 s{s_t1}, 1, s{s_t1}
    s_cmp_lg_u32 s{s_t1}, 0
    s_cbranch_scc1 {name}_arr
    {rdy}
    s_waitcnt vmcnt(0)
    s_branch {name}_rchk
{name}_arr:
    buffer_atomic_add v{vOne}, v{vZ}, s[{sT}:{sT+3}], s{s_kv} offen
{name}_noarr:""")
    stage1(1, sync(18) + [arr], merge({3: [Ins(f"s_mov_b32 s{s_dm}, s{s_nx}")], 4: [Ins(f"s_add_u32 s{s_nx}, s{s_pb}, s{s_w6}")],
                                        6: nextpb()[:1], 7: nextpb()[1:], 9: [Ins(f"s_sub_u32 s{s_cnt}, s{s_cnt}, 1")],
                                        15: [Ins(f"s_and_b32 s{s_xoff}, s{s_xoff}, 2047")], 16: [Ins(f"s_cmp_lg_u32 s{s_cnt}, 0")]},
                                       spaced(dma1(f"s_mov_b32 m0, s{s_nx}", 'Lx')[:-1])), reads1(0, 0, vA))
    p(f"s_cbranch_scc1 {name}_p1loop")
    p.end_loop()
    p.add(Raw("; @fine 11"))
    Kf = lambda b, m: rr('a', (b % NR) * 8 + m * 4, 4)
    Vf = lambda b, m: rr('a', 64 + (b % NR) * 8 + m * 4, 4)
    vMR = 84
    kld = lambda b, m: Ins(f"buffer_load_dwordx4 {Kf(b, m)}, v{vL16}, s[{sA}:{sA+3}], s{s_ko} offen offset:{m*1024} {KVSC}")
    vld = lambda b, m: Ins(f"buffer_load_dwordx4 {Vf(b, m)}, v{vL16}, s[{sA}:{sA+3}], s{s_vo} offen offset:{2048 + m*1024} {KVSC}")

    vK2 = 253
    kld2 = lambda b, m: Ins(f"buffer_load_dwordx4 {Kf(b, m)}, v{vK2}, s[{sA}:{sA+3}], s{s_vo} offen offset:{m*1024} {KVSC}")

    def kv_list():
        o_ = [Ins(f"s_mov_b32 s{s_ko}, 0"), Ins(f"s_mov_b32 s{s_vo}, 0")]
        for b in range(NR):
            o_ += [kld(b, 0), kld(b, 1), Ins(f"s_add_u32 s{s_ko}, s{s_ko}, 4096")]
            if b < NR - 2:
                o_ += [vld(b, 0), vld(b, 1), Ins(f"s_add_u32 s{s_vo}, s{s_vo}, 4096")]
        return o_

    def fill_kv():
        p.add(kv_list())
    gl = f"buffer_load_dword v{vt+5}, v{vGP}, s[{sT}:{sT+3}], s{s_kv} offen sc1"
    stage1(0, sync(18), merge(spaced(dma1(f"s_add_u32 m0, s{s_dm}, {SL}", 'Lx')[:-1]), upd(), {16: [Ins(f"s_and_b32 s{s_xoff}, s{s_xoff}, 2047")]}), reads1(1, SL, vA))
    gp = Raw(f"""    s_branch {name}_gchk
{name}_gpoll:
    {gl}
    s_waitcnt vmcnt(0)
{name}_gchk:
    v_cmp_gt_u32 vcc, 16, v{vt+5}
    s_sub_u32 s{s_spin}, s{s_spin}, 1
    s_cbranch_scc1 {name}_gdone
    s_cbranch_vccnz {name}_gpoll
{name}_gdone:""")
    todo = [Ins(f"buffer_load_dwordx2 {rr('v', vMR+2*t, 2)}, v{vMA}, s[{sT}:{sT+3}], s{s_t0} offen offset:{ST_MR + 128*t} sc1") for t in range(2)] + kv_list()

    def take(k):
        o_, n = [], 0
        while todo and n < k:
            x = todo.pop(0); o_.append(x); n += x.kind == 'vmem'
        return o_
    PS = o.get('pstage', 13)
    for u in range(11, 16):
        head = sync(6 * (14 - u)) if u < PS else [Raw("; @fine 12")] + sync(0) + [Raw("; @fine 13"), gp, Raw("; @fine 14")] if u == PS else []
        fill = {11: one_per_gap(nextpb(), 8), 12: upd(), 15: {10: [Ins(f"ds_write_b128 v{vCS}, {rr('v', CSA, 4)}")]}}.get(u, {})
        if u == PS - 1:
            fill = merge(fill, {2: [Ins(f"s_movk_i32 s{s_kv}, {ST_KVC}")], 4: [Ins(gl)], 5: [Ins(f"s_mov_b32 s{s_spin}, {SPIN}")],
                                11: [Ins(f"s_lshl_b32 s{s_t0}, s{s_tok}, 3")]})
        if u >= PS:
            fill = merge(fill, {i: take(1) for i in range(2, 18, 3)})
        stage1(u & 1, head, fill, reads1(1 - (u & 1), 0 if u & 1 else SL, vA) if u < 15 else [])
    p.add(Raw("; @stamp 2"))

    p("s_waitcnt lgkmcnt(0)")
    p("s_barrier")
    CS = 88
    for f in range(4):
        if f: p(f"v_xor_b32 v{vt+f}, {f*64}, v{vCS}")
        p(f"ds_read_b128 {rr('v', CS + 4*f, 4)}, v{vt+f if f else vCS}")
    XT = 131072
    QP = 112
    for t in range(2):
        p(f"v_accvgpr_write_b32 a{aMEAN+t}, v{vMR+2*t}")
        p(f"v_mul_f32 v{vMR+2*t+1}, {f32hex(LOG2E * DH ** -0.5)}, v{vMR+2*t+1}")
    p(f"s_bitcmp1_b32 s{s_w}, 0\ns_cselect_b64 vcc, -1, 0")
    for hd in range(2):
        for t in range(2):
            mr = rr('v', vMR + 2 * t, 2)
            for f in range(2):
                F = 2 * hd + f
                a = AB + (F * 2 + t) * 4
                dq = QP + hd * 8 + t * 4 + 2 * f
                for r in (0, 2): p(f"v_pk_fma_f32 {rr('v', a+r, 2)}, {rr('v', CS+4*F+r, 2)}, {mr}, {rr('v', a+r, 2)} op_sel_hi:[1,0,1] neg_lo:[0,1,0] neg_hi:[0,1,0]")
                for r in (0, 2): p(f"v_pk_mul_f32 {rr('v', a+r, 2)}, {rr('v', a+r, 2)}, {mr} op_sel:[0,1]")
                p(f"v_cvt_pk_bf16_f32 v{dq}, v{a}, v{a+1}")
                p(f"v_cvt_pk_bf16_f32 v{dq+1}, v{a+2}, v{a+3}")
                p.add(take(1))
        for i in range(8 * hd, 8 * hd + 8):
            p(f"v_cndmask_b32 v{16+i}, v{QP+i}, v{QP+(i^2)}, vcc")
        p.add(take(1))
        for i in range(4):
            p(f"v_permlane16_swap_b32 v{16+hd*8+i}, v{16+hd*8+4+i}")
    if 'Q' in dbg:
        srd(p, sB, pWS, QF[1], bias=QF[0])
        p(f"s_lshl_b32 s{s_t0}, s{s_hd}, 17\ns_lshl_b32 s{s_t1}, s{s_tok}, 6\ns_add_u32 s{s_t0}, s{s_t0}, s{s_t1}\ns_xor_b32 s{s_t1}, s{s_t0}, 0x20000")
        for x in range(2):
            for m in range(2):
                p(f"buffer_store_dwordx4 {Q(x, m)}, v{vL16}, s[{sB}:{sB+3}], s{s_t1 if x else s_t0} offen offset:{m*1024}")
    s_safe, s_fo = 65, 61
    TO = {0: (pWG, pWU, pWD), 1: (pWD, pWG, pWU)}[o.get('torder', 0)]
    SENT = o.get('sent', False)
    p(f"""
    s_mov_b64 s[{sD}:{sD+1}], s[{TO[0]}:{TO[0]+1}]
    s_mov_b32 s{sD+2}, {D * FF * 2 if o.get('prefetch', True) else 0}
    s_mov_b64 s[0:1], s[{TO[0]}:{TO[0]+1}]
    s_mov_b64 s[14:15], s[{TO[1]}:{TO[1]+1}]
    s_mov_b32 s{s_po}, {D * FF * 2}
    s_sub_u32 s{s_wdo}, s{s_wdo}, {128 * 2048}
    s_mov_b32 s{s_safe}, 0
    """)
    srd(p, sB, pWS, OF[1], bias=OF[0])

    def half(x, Kb, Vb, C, extra):
        y = 1 - x
        Sx, Px, Sy, Py = Sb(x), Pb(x), rr('v', Sb(y), 16), Pb(y)
        valu = []
        for i in range(8):
            valu.append(f"v_exp_f32 v{Sx+2*i}, v{Sx+2*i}")
            valu.append(f"v_exp_f32 v{Sx+2*i+1}, v{Sx+2*i+1}")
            if i > 0:
                valu.append(f"v_cvt_pk_bf16_f32 v{Px+i-1}, v{Sx+2*i-2}, v{Sx+2*i-1}")
        valu.append(f"v_cvt_pk_bf16_f32 v{Px+7}, v{Sx+14}, v{Sx+15}")
        Oy, Ly = rr('v', Ob(y), 16), rr('v', Lb(y), 4)
        sel = rr('v', SEL, 4)
        mf = [mf32(Sy, Kf(Kb, 0), Q(y, 0), C(y)), mf32(Sy, Kf(Kb, 1), Q(y, 1)),
              mf32(Oy, Vf(Vb, 0), rr('v', Py, 4)), mf16(Ly, sel, rr('v', Py, 4)),
              mf32(Oy, Vf(Vb, 1), rr('v', Py + 4, 4)), mf16(Ly, sel, rr('v', Py + 4, 4))]
        pos = (0, 4, 8, 12, 15, 19)
        if SMF:
            mf = [mf[0], mf[1], mf[2], mf[4], smf(y)]
            pos = o.get('apos', (0, 5, 10, 15, 20))
        for i, v in enumerate(valu):
            if i in pos:
                k = pos.index(i)
                p(mf[k])
                p.add(extra.get(k, []))
            p(v)

    def attention(tag, C, side, pre):
        p(mf32(rr('v', Sb(0), 16), Kf(0, 0), Q(0, 0), C(0)))
        p(mf32(rr('v', Sb(0), 16), Kf(0, 1), Q(0, 1)))
        p(f"s_mov_b32 s{s_cnt}, {64 // NR}")
        p.add(pre)
        p.begin_loop(f"{name}_{tag}_loop", 64 // NR)
        for kt in range(NR):
            e0 = {0: [vld(kt + NR - 2, 0)], 1: [vld(kt + NR - 2, 1)],
                  4: [Ins(f"wait {Kf(kt+1, 0)}, {Kf(kt+1, 1)}, {Vf(kt, 0)}, {Vf(kt, 1)}")]}
            e1 = {0: [kld2(kt, 0)], 1: [kld2(kt, 1)], 2: [Ins(f"s_add_u32 s{s_vo}, s{s_vo}, 4096")]}
            if side:
                WK, TK = o.get('wk', (3, 4, 5, 6)), o.get('tk', (0, 4))
                if kt == 0: e1[4] = [Ins(f"s_and_b32 m0, s{s_wm0}, 0x1ffff")]
                if kt in WK and 'nowodma' not in dbg:
                    i = WK.index(kt)
                    e0[3] = [Ins(f"buffer_load_dwordx4 v{vWD+i}, s[{sE}:{sE+3}], s{s_wdo} offen offset:{i*1024} lds", awr=['LW'], nowaw=True)]
                if kt == 1: e1[4] = [Ins(f"s_add_u32 s{s_wm0}, s{s_wm0}, 16384")]
                if kt == 2: e1[4] = [Ins(f"s_add_u32 s{s_wdo}, s{s_wdo}, {128 * 2048}")]
                if kt in TK and 'notouch' not in dbg:
                    e0[2] = [Ins(f"buffer_load_dword v{vDum}, v{vPF}, s[{sD}:{sD+3}], s{s_po} offen", nowaw=True)]
                    e1[3] = [Ins(f"s_add_u32 s{s_po}, s{s_po}, {256 * 7168}")]
                if kt == 5:
                    e1[3] = [Ins(f"s_bitcmp1_b32 0x150, s{s_cnt}")]
                    e1[4] = [Ins(f"s_cselect_b32 s{s_po}, s{s_pk}, s{s_po}")]
                if kt == 6:
                    e0[2] = [Ins(f"s_cselect_b64 s[{sD}:{sD+1}], s[0:1], s[{sD}:{sD+1}]")]
                    e1[4] = e1.pop(2)
                    e1[2] = [Ins("s_cselect_b64 s[0:1], s[14:15], s[0:1]")]
                    e1[3] = [Ins(f"s_cselect_b64 s[14:15], s[{TO[2]}:{TO[2]+1}], s[14:15]")]
                if kt == 7:
                    e0[2] = [Ins(f"s_bitcmp1_b32 {0 if 'nohook' in dbg else '0x10c'}, s{s_cnt}")]
                    e0[3] = [Raw(f"    s_cbranch_scc1 {name}_rsx\n{name}_rsxback:")]
            if kt == NR - 1:
                e1[3] = [Ins(f"s_sub_u32 s{s_cnt}, s{s_cnt}, 1")]
                e1[4] = [Ins(f"s_cmp_lg_u32 s{s_cnt}, 0")]
            half(0, kt, kt - 1, C, e0)
            half(1, kt + 1, kt, C, e1)
        p(f"s_cbranch_scc1 {name}_{tag}_loop")
        p.end_loop()
        O1, L1, sel = rr('v', Ob(1), 16), rr('v', Lb(1), 4), rr('v', SEL, 4)
        p(mf32(O1, Vf(NR - 1, 0), rr('v', Pb(1), 4)))
        if not SMF: p(mf16(L1, sel, rr('v', Pb(1), 4)))
        p(mf32(O1, Vf(NR - 1, 1), rr('v', Pb(1) + 4, 4)))
        p(smf(1) if SMF else mf16(L1, sel, rr('v', Pb(1) + 4, 4)))

    pre = take(99)
    pre += [Ins(x.strip()) for x in f"""s_lshl_b32 s{s_fo}, s2, 2
    s_add_u32 s{s_fo}, s{s_fo}, s{s_w}
    s_lshl_b32 s{s_t0}, s{s_fo}, 11
    buffer_load_dwordx4 {rr('v', vRS, 4)}, v{vL16}, s[{sE}:{sE+3}], s{s_t0} offen
    buffer_load_dwordx4 {rr('v', vRS+4, 4)}, v{vL16}, s[{sE}:{sE+3}], s{s_t0} offen offset:1024""".split("\n")]
    if o.get('ipf', True):
        pre += [Ins(x.strip()) for x in f"""s_getpc_b64 s[74:75]
        s_lshr_b32 s{s_t0}, s2, 3
        s_lshl_b32 s{s_t0}, s{s_t0}, 2
        s_add_u32 s{s_t0}, s{s_t0}, s{s_w}
        s_mul_i32 s{s_t0}, s{s_t0}, 384
        s_min_u32 s{s_t0}, s{s_t0}, {name}_end-{name}_fast_loop
        v_min_u32 v4, 2, v0
        v_lshl_add_u32 v4, v4, 7, s{s_t0}""".split("\n")]
        pre.append(Ins(f"global_load_dword v{vDum}, v4, s[74:75]", nowaw=True))
    if len(pre) < 12: pre.append(Ins(f"s_nop {11 - len(pre)}"))
    pre.append(Raw("; @stamp 3"))
    attention('fast', lambda y: "0", 'noside' not in dbg, pre)
    p.add(Raw("; @stamp 4"))
    p("s_waitcnt lgkmcnt(0)")
    p(f"""
    {name}_fin:
    v_add_f32 v{Lb(0)}, v{Lb(0)}, v{Lb(0)+1}
    v_rcp_f32 v{Lb(0)+2}, v{Lb(0)}
    s_lshl_b32 s{s_t0}, s{s_tok}, 1
    s_add_u32 s{s_t0}, s{s_t0}, s{s_hd}
    s_lshl_b32 s{s_t0}, s{s_t0}, 10
    s_xor_b32 s{s_t1}, s{s_t0}, 1024
    """)
    for x in range(2):
        if x: p(f"v_add_f32 v{Lb(1)}, v{Lb(1)}, v{Lb(1)+1}\nv_rcp_f32 v{Lb(1)+2}, v{Lb(1)}")
        for a in range(2):
            for i in range(8 * a, 8 * a + 8, 2):
                p(f"v_pk_mul_f32 {rr('v', Ob(x)+i, 2)}, {rr('v', Ob(x)+i, 2)}, {rr('v', Lb(x)+2, 2)} op_sel_hi:[1,0]")
            for i in range(4 * a, 4 * a + 4):
                p(f"v_cvt_pk_bf16_f32 v{Pb(x)+i}, v{Ob(x)+2*i}, v{Ob(x)+2*i+1}")
            p(f"buffer_store_dwordx4 {rr('v', Pb(x)+4*a, 4)}, v{vOS}, s[{sB}:{sB+3}], s{s_t1 if x else s_t0} offen offset:{a*512} sc1")
    p(f"v_pk_mul_f32 v[{vt+2}:{vt+3}], {rr('v', Ob(0), 2)}, {rr('v', RSV, 2)}")
    p(f"v_pk_mul_f32 v[{vt+4}:{vt+5}], {rr('v', Ob(0)+2, 2)}, {rr('v', RSV+2, 2)}")
    for i in range(2, 16):
        k = vt + 2 + 2 * (i & 1)
        p(f"v_pk_fma_f32 v[{k}:{k+1}], {rr('v', Ob(0)+2*i, 2)}, {rr('v', RSV+2*i, 2)}, v[{k}:{k+1}]")
    p(f"""
    v_pk_add_f32 v[{vt+2}:{vt+3}], v[{vt+2}:{vt+3}], v[{vt+4}:{vt+5}]
    v_add_f32 v{vt+2}, v{vt+2}, v{vt+3}
    v_mov_b32 v{vt+3}, v{vt+2}
    s_add_u32 s{s_t0}, s{s_pj}, {ST_MP}
    s_mov_b32 s{s_t1}, {f32hex(2.0**-40)}
    v_permlane32_swap_b32 v{vt+2}, v{vt+3}
    v_add_f32 v{vt+2}, v{vt+2}, v{vt+3}
    s_mov_b32 exec_hi, 0
    buffer_store_dword v{vt+2}, v{vPW}, s[{sT}:{sT+3}], s{s_t0} offen sc1
    s_mov_b32 exec_hi, -1
    """)
    p(f"""
    v_cmp_nle_f32 s[0:1], s{s_t1}, v{Lb(0)}
    v_cmp_nle_f32 s[14:15], s{s_t1}, v{Lb(1)}
    s_mov_b32 s{s_t1}, {f32hex(2.0**40)}
    v_cmp_nge_f32 s[74:75], s{s_t1}, v{Lb(0)}
    v_cmp_nge_f32 vcc, s{s_t1}, v{Lb(1)}
    s_or_b64 s[0:1], s[0:1], s[14:15]
    s_movk_i32 s{s_t1}, 0x207
    v_cmp_class_f32 s[14:15], v{vt+2}, s{s_t1}
    s_or_b64 s[0:1], s[0:1], s[74:75]
    s_or_b64 s[0:1], s[0:1], vcc
    s_or_b64 s[0:1], s[0:1], s[14:15]
    s_cselect_b32 s{s_t1}, 1, 0
    s_cmp_gt_u32 s{s_t1}, s{s_safe}
    {'' if 'nocheck' in dbg else f's_cbranch_scc1 {name}_slow'}
    """)

    SPLIT = True
    s_c, s_xo, s_xe, s_xend = 61, 62, 63, 64
    vX1, vA3 = 12, 16
    WB, AB3 = 40, 104
    vPT = 20
    LEAD = 12
    ACS = lambda F, t: rr('v', AB3 + (F * 2 + t) * 4, 4)

    class Shape:
        def __init__(self, NF, off):
            self.NF, self.NG, self.off = NF, 16 // NF, off
        def X(self, slot, t, G): return rr('a', slot * 8 * self.NG + (t * self.NG + G) * 4, 4)
        def Xall(self, slot): return ", ".join(self.X(slot, t, G) for t in range(2) for G in range(self.NG))
        def W(self, F, G): return rr('v', WB + (F * self.NG + G) * 4, 4)
        def rd(self, slot, n):
            F, G, b = n // (2 * self.NG), (n >> 1) % self.NG, n & 1
            return Ins(f"ds_read_b64_tr_b16 {rr('v', WB + 2*n, 2)}, v{vA3 + (F & 3)} offset:{slot*16384 + self.off(F, G, b)}")
        def xld(self, slot):
            o_ = [Ins(f"s_cmp_lt_u32 s{s_xo}, s{s_xend}"), Ins(f"s_cselect_b32 s{s_xe}, s{s_xo}, s{sB+2}")]
            for t in range(2):
                for G in range(self.NG):
                    o_.append(Ins(f"buffer_load_dwordx4 {self.X(slot, t, G)}, v{vX1 if t else vL16}, s[{sB}:{sB+3}], s{s_xe} offen offset:{G*1024} sc1"))
            o_.append(Ins(f"s_add_u32 s{s_xo}, s{s_xo}, {self.NG * 1024}"))
            return o_
    sh4 = Shape(4, lambda F, G, b: G * 4096 + b * 1024)
    sh8 = Shape(8, lambda F, G, b: G * 8192 + (F >> 2) * 2048 + b * 1024)

    def wread_addr(blk):
        p(f"""
        v_bfe_u32 v{vt}, v0, 2, 3
        v_lshrrev_b32 v{vt+1}, 1, v{vt}
        v_lshlrev_b32 v{vt+1}, 5, v{vt+1}
        v_lshl_add_u32 v{vt}, v{vt}, 7, v{vt+1}
        v_lshrrev_b32 v{vt+1}, 5, v0
        v_lshl_add_u32 v{vt}, v{vt+1}, {blk}, v{vt}
        v_and_b32 v{vt+1}, 3, v0
        v_lshl_add_u32 v{vA3}, v{vt+1}, 3, v{vt}
        v_xor_b32 v{vA3+1}, 32, v{vA3}
        v_xor_b32 v{vA3+2}, 64, v{vA3}
        v_xor_b32 v{vA3+3}, 0x60, v{vA3}""")

    def table_load(aq, soff, blk=0):
        for i in range(4):
            p(f"buffer_load_dwordx2 {rr('v', aq + 2*i, 2)}, v{vPT}, s[{sT}:{sT+3}], s{soff} offen offset:{blk*2048 + i*128} sc1")

    def table_sum(aq, dst):
        p(f"""
        v_pk_add_f32 {rr('v', aq, 2)}, {rr('v', aq, 2)}, {rr('v', aq+2, 2)}
        v_pk_add_f32 {rr('v', aq+4, 2)}, {rr('v', aq+4, 2)}, {rr('v', aq+6, 2)}
        v_pk_add_f32 {rr('v', dst, 2)}, {rr('v', aq, 2)}, {rr('v', aq+4, 2)}""")
        for sw in (16, 32):
            p(f"""
            v_pk_mov_b32 {rr('v', aq, 2)}, {rr('v', dst, 2)}, {rr('v', dst, 2)} op_sel:[0,1]
            v_permlane{sw}_swap_b32 v{dst}, v{aq}
            v_permlane{sw}_swap_b32 v{dst+1}, v{aq+1}
            v_pk_add_f32 {rr('v', dst, 2)}, {rr('v', dst, 2)}, {rr('v', aq, 2)}""")

    def rstd_from(aq, dst):
        table_sum(aq, dst)
        for t in range(2):
            p(f"v_fma_f32 v{dst+t}, v{dst+t}, s{s_t1}, v{vt+4}")
        for t in range(2):
            p(f"v_rsq_f32 v{dst+t}, v{dst+t}")

    p(f"""
    s_add_u32 s{s_xe}, s{s_pj}, {ST_FO}
    s_andn2_b32 s{s_c}, s{s_xe}, 2047
    s_lshl_b32 s{s_xo}, s{s_tok}, 11
    s_lshl_b32 s{s_xend}, s{s_tok}, 6
    s_add_u32 s{s_xend}, s{s_xend}, {ST_MP}""")
    if R3:
        p(f"s_and_b32 s{s_t0}, s{s_j}, 1\ns_lshl_b32 s{s_t0}, s{s_t0}, 14\ns_add_u32 s{s_xo}, s{s_xo}, s{s_t0}")
    vE = 136
    p(f"""
    v_add_u32 v{vX1}, 0x8000, v{vL16}
    s_lshl_b32 s{s_t0}, s{s_w}, 12
    s_add_u32 s{s_t0}, s{s_t0}, {XT}
    v_and_b32 v{vt+4}, 15, v0
    v_lshrrev_b32 v{vt+5}, 1, v{vt+4}
    v_lshrrev_b32 v{vt+6}, 5, v0
    v_xor_b32 v{vt+5}, v{vt+5}, v{vt+6}
    v_lshlrev_b32 v{vt+5}, 4, v{vt+5}
    v_lshl_add_u32 v{vt+5}, v{vt+4}, 7, v{vt+5}
    v_bfe_u32 v{vt+6}, v0, 4, 1
    v_lshl_add_u32 v{vt+5}, v{vt+6}, 3, v{vt+5}
    v_add_u32 v{vt}, s{s_t0}, v{vt+5}
    v_xor_b32 v{vt+1}, 32, v{vt}
    v_xor_b32 v{vt+2}, 64, v{vt}
    v_xor_b32 v{vt+3}, 0x60, v{vt}""")
    for t in range(2):
        for F in range(4):
            p(f"ds_read_b64 {rr('v', vE + (t*4+F)*2, 2)}, v{vt+F} offset:{t*2048}")
    p(f"""
    v_lshlrev_b32 v{vPT}, 3, v{vt+4}
    v_lshrrev_b32 v{vt+5}, 4, v0
    v_lshl_add_u32 v{vPT}, v{vt+5}, 9, v{vPT}""")
    wread_addr(11)
    for t in range(2):
        for F in range(4):
            a = AB3 + (F * 2 + t) * 4
            e = vE + (t * 4 + F) * 2
            p(f"""
            v_lshlrev_b32 v{a}, 16, v{e}
            v_and_b32 v{a+1}, 0xffff0000, v{e}
            v_lshlrev_b32 v{a+2}, 16, v{e+1}
            v_and_b32 v{a+3}, 0xffff0000, v{e+1}""")
    def rd3(n):
        q, F, g, b = n >> 4, (n >> 2) & 3, (n >> 1) & 1, n & 1
        return Ins(f"ds_read_b64_tr_b16 {rr('v', WB + 2 * (n % 32), 2)}, v{vA3 + F} offset:{(q & 7) * 8192 + g * 4096 + b * 1024}")
    arrive(p, s_xe)
    p("s_barrier")
    for n in range(LEAD):
        p.add(rd3(n))
    main_cur = p.cur
    bg = []
    p.cur = bg
    SLOT4, HI4, LEAD4 = 28672, 106496, 8
    s_nb, s_wo4, s_m04, s_dsl, s_rsl, s_tk4 = 66, 68, 69, 70, 71, 72
    vD4 = 21
    AB4 = 32
    p(f"""
    s_and_b32 s{s_t0}, s2, 7
    s_lshr_b32 s{s_t1}, s2, 3
    s_and_b32 s{s_tk4}, s{s_t1}, 7
    s_lshr_b32 s{s_t1}, s{s_t1}, 3
    s_lshl_b32 s{s_nb}, s{s_t0}, 2
    s_add_u32 s{s_nb}, s{s_nb}, s{s_t1}
    s_movk_i32 s{s_t1}, 4682
    s_movk_i32 s{s_t0}, {7168 - 14 * 16}
    """)
    for i in range(7):
        p(f"""
        v_add_u32 v{vt}, {64*i}, v0
        v_mul_u32_u24 v{vt+1}, s{s_t1}, v{vt}
        v_lshrrev_b32 v{vt+1}, 16, v{vt+1}
        v_add_u32 v{vt}, {1024 * (i - (i & 3))}, v{vL16}
        v_mad_u32_u24 v{vD4+i}, v{vt+1}, s{s_t0}, v{vt}
        """)
    p(f"""
    s_lshl_b32 s{s_tk4}, s{s_tk4}, 2
    s_add_u32 s{s_tk4}, s{s_tk4}, s{s_w}
    s_lshl_b32 s{s_tk4}, s{s_tk4}, 6
    s_and_b32 s{s_t0}, s{s_w}, 1
    s_mul_i32 s{s_wo4}, s{s_t0}, {32 * 7168}
    s_mul_i32 s{s_t1}, s{s_nb}, 224
    s_add_u32 s{s_wo4}, s{s_wo4}, s{s_t1}
    s_mul_i32 s{s_m04}, s{s_w}, 7168
    s_mov_b32 s{s_dsl}, s{s_m04}
    s_mov_b32 s{s_rsl}, {HI4}
    s_cmp_lt_u32 s{s_w}, 2
    s_cselect_b64 s[{sD}:{sD+1}], s[{pWG}:{pWG+1}], s[{pWU}:{pWU+1}]
    s_mov_b32 s{sD+2}, {hex(D * FF * 2)}
    """)
    srd(p, sA, pWS, HC[1], bias=HC[0])
    for i in range(4):
        p(f"v_accvgpr_write_b32 a{aMEAN-4+i}, v{vWD+i}")
    p(f"v_mov_b32 v36, v{vPW}")
    vPW = 36
    vX4 = [vL16, 12, 13, 14]
    vA4, vAb, vR4 = 15, 11, 28
    vS, vQ, vP = 28, 144, WB
    s_ho, s_c4, s_sq4 = 65, 67, 73
    HCA = o.get('hca', False)
    p(f"""
    v_add_u32 v{vX4[2]}, 0x10000, v{vL16}
    v_add_u32 v{vX4[3]}, 0x18000, v{vL16}
    v_lshrrev_b32 v{vt}, 2, v0
    v_mul_u32_u24 v{vt}, 224, v{vt}
    v_and_b32 v{vt+1}, 3, v0
    v_lshl_add_u32 v{vAb}, v{vt+1}, 3, v{vt}
    v_mov_b32 v{vA4}, v{vAb}
    s_lshl_b32 s{s_sq4}, s{s_tk4}, 6
    s_add_u32 s{s_c4}, s{s_sq4}, {ST_FC}
    s_add_u32 s{s_sq4}, s{s_sq4}, {ST_SSQ}
    s_add_u32 s{s_ho}, s{s_tok}, s{s_j}
    s_lshl_b32 s{s_ho}, s{s_ho}, 11
    s_add_u32 s{s_c}, s{s_pj}, {ST_FC}
    {f's_andn2_b32 s{s_c}, s{s_c}, 4095' if HCA else ''}
    {f's_and_b32 s{s_t0}, s2, 7' if HCA else ''}
    {f's_lshl_b32 s{s_t0}, s{s_t0}, 9' if HCA else ''}
    {f's_add_u32 s{s_c4}, s{s_c4}, s{s_t0}' if HCA else ''}
    {f'v_lshlrev_b32 v{vt+6}, 9, v0' if HCA else ''}
    s_add_u32 s{s_pj}, s{s_pj}, {ST_SSQ}
    s_mov_b32 s{s_t1}, {f32hex(-1.0/1024)}""")
    for t in range(2):
        p(f"""
        v_add_f32 v{vE+t}, v{vE+t}, v{vE+2+t}
        v_add_f32 v{vE+4+t}, v{vE+4+t}, v{vE+6+t}
        v_add_f32 v{vS+t}, v{vE+t}, v{vE+4+t}""")
        xsum16_32(p, f"v{vS+t}", f"v{vt}")
        p(f"v_accvgpr_read_b32 v{vt}, a{aMEAN+t}")
        p(f"v_fma_f32 v{vS+t}, v{vS+t}, s{s_t1}, -v{vt}")
    p(f"v_mov_b32 v{vt+4}, {f32hex(1e-5)}\ns_mov_b32 s{s_t1}, {f32hex(1.0/1024)}")
    for i in range(156, 256):
        p(f"v_mov_b32 v{i}, 0")
    p.cur = main_cur

    def units_of(lst):
        out = []
        for x in lst:
            if out and x.op.startswith(('s_addc', 's_subb', 's_cselect')): out[-1].append(x)
            else: out.append([x])
        return out
    bg = units_of(bg)
    p.add(Raw("; @stamp 5"))
    poll(p, f"{name}_opoll", s_c, 16, vt)
    if 'twice3' in dbg: p.add(Raw(f"    s_mov_b32 s{s_spin}, 2\n    s_mov_b32 s14, s{s_pj}\n    s_mov_b32 s15, s{s_xo}\n{name}_tw3:\n    s_mov_b32 s{s_pj}, s14\n    s_mov_b32 s{s_xo}, s15"))
    p.add(Raw("; @stamp 6"))

    def dma4(par):
        o_ = []
        for i in range(7):
            if i == 0: o_.append(Ins(f"s_add_u32 m0, s{s_dsl}, {par * SLOT4}"))
            if i == 4: o_.append(Ins("s_add_u32 m0, m0, 4096"))
            o_.append(Ins(f"buffer_load_dwordx4 v{vD4+i}, s[{sD}:{sD+3}], s{s_wo4} offen offset:{(i&3)*1024} lds", awr=['Lx'], nowaw=True))
        o_.append(Ins(f"s_add_u32 s{s_wo4}, s{s_wo4}, {64 * 7168}"))
        return o_

    X3 = lambda q, t, g: rr('a', (q % 8) * 16 + (t * 2 + g) * 4, 4)

    def xld3(q):
        o_ = [Ins(f"buffer_load_dwordx4 {X3(q, t, g)}, v{vX1 if t else vL16}, s[{sB}:{sB+3}], s{s_xo} offen offset:{(q & 1) * 2048 + g*1024} sc1")
              for t in range(2) for g in range(2)]
        return o_ + ([Ins(f"s_add_u32 s{s_xo}, s{s_xo}, 4096")] if q & 1 else [])
    L3 = o.get('l3', 3)
    D4 = o.get('d4', (9, 9))
    for q in range(L3): p.add(xld3(q))
    side = []
    for q in range(16):
        if q + L3 < 16: side += xld3(q + L3)
        if q == 16 - L3:
            pass
        for k in range(2):
            if q == 2 * D4[k]: side += dma4(k)
        mp = [Ins(f"buffer_load_dwordx2 {rr('v', vE + 2*i, 2)}, v{vPT}, s[{sT}:{sT+3}], s{s_xend} offen offset:{i*128} sc1") for i in range(4)] if q == 1 else []
        for i in range(16):
            F = i >> 2
            t, g = zz(F, 2, 2, ZZ)[i & 3]
            p(mf16(ACS(F, t), rr('v', WB + ((q & 1) * 8 + F * 2 + g) * 4, 4), X3(q, t, g)))
            n = q * 16 + i + LEAD
            if q == 10 and i == 0:
                p("s_barrier")
            if n < 256: p.add(rd3(n))
            if n in (115, 119, 123, 127): p(f"v_xor_b32 v{vA3 + (n - 112) // 4}, 0x10000, v{vA3 + (n - 112) // 4}")
            used = True
            if i % 4 == 3:
                if (q > 0 or i > 3) and q * 16 + i < 255:
                    m = (q * 16 + i + 1) % 32
                    p(f"wait {rr('v', WB + 2 * m, 8)}" + (", " + ", ".join(X3(q + 1, t_, g_) for t_ in range(2) for g_ in range(2)) if i == 15 else ""))
            if side and i % 4 == 0 and side[0].kind == 'vmem': p.add(side.pop(0))
            elif side and side[0].kind == 'salu': p.add(side.pop(0))
            elif mp and i % 4 == 2: p.add(mp.pop(0))
            else: used = False
            if bg and not used and q > 0:
                p.add(bg.pop(0))
                if bg and q * 16 + i > 200: p.add(bg.pop(0))
    p.add(side)
    assert not bg, len(bg)
    p.add(Raw("; @stamp 7"))
    if 'twice3' in dbg: p.add(Raw(f"    s_waitcnt vmcnt(0)\n    s_sub_u32 s{s_spin}, s{s_spin}, 1\n    s_cmp_lg_u32 s{s_spin}, 0\n    s_cbranch_scc1 {name}_tw3"))

    for t in range(2):
        sel = "op_sel_hi:[1,0]" if t == 0 else "op_sel:[0,1]"
        q = rr('v', vQ + 2 * t, 2)
        for F in range(4):
            a = AB3 + (F * 2 + t) * 4
            k = vQ + 4 + (F & 1) * 4
            hc = vP + (t * 2 + (F >> 1)) * 4 + (F & 1) * 2
            p(f"""
            v_pk_add_f32 {rr('v', k, 2)}, {rr('v', a, 2)}, {rr('v', vS, 2)} {sel}
            v_pk_add_f32 {rr('v', k+2, 2)}, {rr('v', a+2, 2)}, {rr('v', vS, 2)} {sel}
            v_cvt_pk_bf16_f32 v{hc}, v{k}, v{k+1}
            v_cvt_pk_bf16_f32 v{hc+1}, v{k+2}, v{k+3}""")
            if F & 1:
                g = F >> 1
                p(f"buffer_store_dwordx4 {rr('v', hc-2, 4)}, v{vX1 if t else vL16}, s[{sA}:{sA+3}], s{s_ho} offen offset:{g*1024} sc1")
            p(f"v_pk_mul_f32 {q}, {rr('v', k, 2)}, {rr('v', k, 2)}" if F == 0 else f"v_pk_fma_f32 {q}, {rr('v', k, 2)}, {rr('v', k, 2)}, {q}")
            p(f"v_pk_fma_f32 {q}, {rr('v', k+2, 2)}, {rr('v', k+2, 2)}, {q}")
    p(f"""
    v_add_f32 v{vQ}, v{vQ}, v{vQ+1}
    v_add_f32 v{vQ+2}, v{vQ+2}, v{vQ+3}
    v_permlane16_swap_b32 v{vQ}, v{vQ+2}
    v_add_f32 v{vQ}, v{vQ}, v{vQ+2}
    v_mov_b32 v{vQ+1}, v{vQ}
    v_permlane32_swap_b32 v{vQ}, v{vQ+1}
    v_add_f32 v{vt}, v{vQ}, v{vQ+1}
    s_mov_b32 exec_hi, 0
    buffer_store_dword v{vt}, v{vPW}, s[{sT}:{sT+3}], s{s_pj} offen sc1
    s_mov_b32 exec_hi, -1
    """)
    for q in range(2):
        if D4[q] == 8: p.add(dma4(q))
    for t in range(2):
        for F in range(4):
            a = AB3 + (F * 2 + t) * 4
            hr = vP + 16 + (t * 2 + (F >> 1)) * 4 + (F & 1) * 2
            p(f"v_cvt_pk_bf16_f32 v{hr}, v{a}, v{a+1}\nv_cvt_pk_bf16_f32 v{hr+1}, v{a+2}, v{a+3}")
    for i in range(16):
        p(f"v_accvgpr_write_b32 a{aHR+i}, v{vP+16+i}")
    if 'H' in dbg:
        srd(p, sB, pWS, HR[1], bias=HR[0])
        for t in range(2):
            for g in range(2):
                p(f"buffer_store_dwordx4 {rr('v', vP + 16 + (t*2+g)*4, 4)}, v{vX1 if t else vL16}, s[{sB}:{sB+3}], s{s_ho} offen offset:{g*1024}")
    for i in range(AB4 + (0 if o.get('ril', False) else 16), 156, 2):
        p(f"v_pk_mov_b32 {rr('v', i, 2)}, 0, 0")
    p(f"""
    s_lshl_b32 s{s_xo}, s{s_tk4}, 11
    s_waitcnt vmcnt({7 * D4.count(8)})
    """)
    if 'ack' in dbg: p.add(Raw("; @stamp 0"))
    if HCA:
        p(f"s_mov_b64 exec, 0xff\nbuffer_atomic_add v{vOne}, v{vt+6}, s[{sT}:{sT+3}], s{s_c} offen\ns_mov_b64 exec, -1")
    else:
        p(f"buffer_store_dword v{vOne}, v{vZ}, s[{sT}:{sT+3}], s{s_c} offen sc1")
    if 'ack' in dbg: p.add(Raw("    s_waitcnt vmcnt(0)\n; @stamp 1"))
    for q in range(2):
        if D4[q] == 9: p.add(dma4(q))
    if D4[1] < 10: p(f"s_add_u32 s{s_dsl}, s{s_m04}, {HI4}")
    PX = o.get('px', 8)
    BT = o.get('btouch', 0)
    vFL, vBT = vt + 5, vt + 6
    s_hf, s_x5, s_of, s_bt = 65, 63, 64, 3
    wread_addr(12)
    srd(p, sB, pWS, HH[1], bias=HH[0])
    srd(p, sC, pWS, XC[1], bias=XC[0])
    p(f"""
    s_bfe_u32 s{s_hf}, s{s_b}, 0x10002
    s_lshl_b32 s{s_hf}, s{s_hf}, 1
    s_lshr_b32 s{s_t0}, s{s_j}, 3
    s_add_u32 s{s_hf}, s{s_hf}, s{s_t0}
    s_and_b32 s{s_c}, s{s_tok}, 0x5c0
    s_lshl_b32 s{s_c}, s{s_c}, 6
    s_lshl_b32 s{s_t0}, s{s_hf}, 10
    s_add_u32 s{s_c}, s{s_c}, s{s_t0}
    s_add_u32 s{s_c}, s{s_c}, {ST_FH}
    s_xor_b32 s{s_x5}, s{s_tok}, 512
    s_mul_i32 s{s_x5}, s{s_x5}, {112 * 64}
    s_mul_i32 s{s_t0}, s{s_hf}, {28 * 1024}
    s_add_u32 s{s_x5}, s{s_x5}, s{s_t0}
    s_mul_i32 s{s_of}, s{s_tk4}, {112 * 64}
    s_lshr_b32 s{s_t0}, s{s_nb}, 3
    s_mul_i32 s{s_t0}, s{s_t0}, {56 - 8}
    s_add_u32 s{s_t0}, s{s_t0}, s{s_nb}
    s_lshl_b32 s{s_t0}, s{s_t0}, 9
    s_add_u32 s{s_of}, s{s_of}, s{s_t0}
    v_and_b32 v{vFL}, 7, v0
    v_lshlrev_b32 v{vFL}, 7, v{vFL}
    v_bfe_u32 v{vt}, v0, 3, 1
    v_lshl_add_u32 v{vFL}, v{vt}, 15, v{vFL}""")
    if BT:
        p(f"""
        v_cmp_gt_u32 vcc, 14, v0
        v_lshlrev_b32 v{vt}, 10, v0
        v_add_u32 v{vt}, {4096 + 384}, v{vt}
        v_mov_b32 v{vt+1}, 0x7ffffff0
        v_cndmask_b32 v{vBT}, v{vt+1}, v{vt}, vcc
        s_lshr_b32 s{s_bt}, s2, 3
        s_lshl_b32 s{s_bt}, s{s_bt}, 2
        s_add_u32 s{s_bt}, s{s_bt}, s{s_w}
        s_mul_i32 s{s_bt}, s{s_bt}, {7 * 2048}""")


    X4 = lambda slot, t, g: rr('a', slot * 32 + (t * 2 + g) * 4, 4)
    WB4, WB4B, NWR = 96, 128, 4
    W4 = lambda q, g: rr('a', WB4 + (q % NWR) * 8 + g * 4, 4)
    AC4 = lambda f, t: rr('v', AB4 + (f * 4 + t) * 4, 4)

    def xld4(slot):
        o_ = [Ins(f"buffer_load_dwordx4 {X4(slot, t, g)}, v{vX4[t]}, s[{sA}:{sA+3}], s{s_xo} offen offset:{g*1024} sc1")
              for t in range(4) for g in range(2)]
        return o_ + [Ins(f"s_add_u32 s{s_xo}, s{s_xo}, 2048")]

    def rd4(q, n, par=None, base=WB4):
        f = q % 14
        g, b = n >> 1, n & 1
        if par is None: par = (q // 14) & 1
        return Ins(f"ds_read_b64_tr_b16 {rr('a', base + (q % NWR)*8 + g*4 + 2*b, 2)}, v{vA4} offset:{par*SLOT4 + (f&1)*14336 + (32*g+16*b)*224 + (f>>1)*32}")
    if D4[0] < 8:
        p("s_barrier")
        for n in range(LEAD4):
            p.add(rd4(n >> 2, n & 3))
    p.add(Raw("; @stamp 8"))
    if HCA: poll(p, f"{name}_hpoll", s_c4, 1, vt, 32)
    else: poll(p, f"{name}_hpoll", s_c4, 32, vt)
    p.add(Raw("; @stamp 9"))
    RIL = o.get('ril', False)
    if not RIL:
        for q in range(2):
            table_load(AB4 + 8 * q, s_sq4, q)
    p.add(xld4(0))
    if RIL:
        for q in range(2):
            for i in range(4):
                p(f"buffer_load_dwordx2 {rr('a', WB4B + 8*q + 2*i, 2)}, v{vPT}, s[{sT}:{sT+3}], s{s_sq4} offen offset:{q*2048 + i*128} sc1")
    if o.get('b1', True): p("s_barrier")
    if D4[0] >= 8:
        for n in range(LEAD4):
            p.add(rd4(n >> 2, n & 3))
    ril = []
    if RIL:
        p.cur = ril
        for t in range(4):
            a_ = WB4B + 8 * (t >> 1) + (t & 1)
            for i in range(4): p(f"v_accvgpr_read_b32 v{vt+i}, a{a_ + 2*i}")
            p(f"v_add_f32 v{vt}, v{vt}, v{vt+1}\nv_add_f32 v{vt+2}, v{vt+2}, v{vt+3}\nv_add_f32 v{vt}, v{vt}, v{vt+2}")
            xsum16_32(p, f"v{vt}", f"v{vt+1}")
            p(f"v_fma_f32 v{vt}, v{vt}, s{s_t1}, v{vt+4}\nv_rsq_f32 v{vt}, v{vt}")
            p(f"v_mul_f32 v{vR4+t}, {f32hex(-LOG2E)}, v{vt}")
        p.cur = main_cur
    else:
        for q in range(2):
            rstd_from(AB4 + 8 * q, vR4 + 2 * q)
        for t in range(4):
            p(f"v_mul_f32 v{vR4+t}, {f32hex(-LOG2E)}, v{vR4+t}")
        for i in range(AB4, AB4 + 16, 2):
            p(f"v_pk_mov_b32 {rr('v', i, 2)}, 0, 0")
    p(f"s_mov_b32 s{s_cnt}, 7")
    p("wait " + ", ".join(X4(0, t, g) for t in range(4) for g in range(2)) + f", {W4(0, 0)}, {W4(0, 1)}")
    p.begin_loop(f"{name}_p4loop", 7)
    B1 = o.get('b1', True)
    BP = o.get('bpos', 99)
    for u in range(2):
        MV = o.get('p4mv', 0)
        if u == 0: d41 = dma4(1)
        vm = d41[MV:] + xld4(0) if u == 1 else xld4(1) + dma4(0) + d41[:MV]
        if 'p4nov' in dbg: vm = [x for x in vm if x.kind != 'vmem']
        fill, pos = {}, 1
        for ins in vm:
            fill.setdefault(pos, []).append(ins)
            pos += o.get('p4d', 4) if 'lds' in ins.mods else o.get('p4step', 4) if ins.kind == 'vmem' else 2
            if pos % 8 == 7: pos += 2
        assert pos < (91 if u else 118), pos
        if u == 1:
            fill[97] = [Ins(f"s_sub_u32 s{s_rsl}, {HI4}, s{s_rsl}")]
            fill[107] = [Ins(f"s_add_u32 s{s_dsl}, s{s_m04}, s{s_rsl}")]
            fill[93] = [Ins(f"s_sub_u32 s{s_cnt}, s{s_cnt}, 1")]
            fill[109] = [Ins(f"s_cmp_lg_u32 s{s_cnt}, 0")]
            fill.setdefault(pos, []).append(Ins(f"s_cmp_eq_u32 s{s_cnt}, 1"))
            fill.setdefault(pos + 1, []).append(Raw(f"    s_cbranch_scc1 {name}_x15\n{name}_x15back:"))
            x15blk = Raw(f"{name}_x15:\n" + "".join(f"    {x.text}\n" for x in xld4(2)[:8]) +
                         (code_touch(f"{name}_ct5", f"{name}_tail4", f"{name}_end", 2, vt, vt + 1) if o.get('ipf5', False) else "") +
                         f"    s_branch {name}_x15back")
        order = [(f, t, g) for f in range(14) for t, g in zz(f, 4, 2, ZZ)]
        late = B1 and u == 1
        for i, (f, t, g) in enumerate(order):
            p(mf16(AC4(f, t), W4(u * 14 + f, g), X4(u, t, g)))
            if late and i == BP:
                p("s_waitcnt vmcnt(8) lgkmcnt(0)")
                p("s_barrier")
            if late and i >= 96:
                if BP <= i < BP + 8:
                    p.add(rd4(28 + ((i - BP) >> 2), (i - BP) & 3))
            elif i % 2 == 0:
                n = i // 2 + LEAD4
                p.add(rd4(u * 14 + (n >> 2), n & 3))
            if i == 95 and u == 1: p(f"v_add_u32 v{vA4}, s{s_rsl}, v{vAb}")
            if i == 95 and not B1:
                p("s_waitcnt vmcnt(15) lgkmcnt(4)")
                if 'p4nobar' not in dbg: p("s_barrier")
            elif i == 111:
                p(f"wait {W4(u*14 + 14, 0)}, {W4(u*14 + 14, 1)}, " + ", ".join(X4(1 - u, t_, g_) for t_ in range(4) for g_ in range(2)))
            elif i % 8 == 7:
                p(f"wait {W4(u*14 + f + 1, 0)}, {W4(u*14 + f + 1, 1)}")
            p.add(fill.get(i, []))
            if ril and u == 1 and i not in fill and i < 94: p.add(ril.pop(0))
    assert not ril
    p(f"s_cbranch_scc1 {name}_p4loop")
    p.end_loop()
    p(f"{name}_tail4:")
    p.add(Raw("; @stamp 10"))
    main_cur = p.cur
    setup = []
    p.cur = setup

    vW5 = 21
    s_wo5, s_m05 = 68, 69
    vH = 13
    vFG, vTwo = 25, 26
    for i in range(2):
        p(f"v_accvgpr_read_b32 v{vW5+i}, a{aMEAN-4+i}")
    p(f"""
    s_mul_i32 s{s_t0}, s{s_hf}, {896 * 2048}
    s_xor_b32 s{s_t1}, s{s_j}, {PX}
    s_add_u32 s{s_t1}, s{s_t1}, 16
    s_sub_u32 s{s_t1}, s{s_t1}, s{s_j}
    s_lshl_b32 s{s_t1}, s{s_t1}, 7
    v_add_u32 v{vW5+2}, s{s_t1}, v{vW5}
    v_add_u32 v{vW5+3}, s{s_t1}, v{vW5+1}
    v_add_u32 v{vW5}, 4096, v{vW5}
    v_add_u32 v{vW5+1}, 4096, v{vW5+1}
    s_mul_i32 s{s_wo5}, s{s_w}, {112 * 2048}""")
    srd(p, sD, pWD, 896 * 2048 + 4096, off=s_t0, bias=-4096)
    p(f"""
    s_lshl_b32 s{s_t1}, s{s_j}, 7
    s_add_u32 s{s_wo5}, s{s_wo5}, s{s_t1}
    s_lshl_b32 s{s_m05}, s{s_w}, 12
    v_lshrrev_b32 v{vt}, 5, v0
    v_mul_u32_u24 v{vt}, {112 * 1024 - 512}, v{vt}
    v_add_u32 v{vH}, v{vt}, v{vL16}
    v_add_u32 v{vH+1}, {2 * 112 * 1024}, v{vH}
    v_add_u32 v{vX1}, {112 * 1024}, v{vL16}
    s_mul_i32 s{s_xo}, s{s_tok}, {112 * 64}
    s_mul_i32 s{s_t0}, s{s_hf}, {28 * 1024}
    s_add_u32 s{s_xo}, s{s_xo}, s{s_t0}
    s_mov_b32 s{s_spin}, {SPIN}
    s_lshl_b32 s{s_t0}, s{s_nb}, 7
    s_add_u32 s{s_sq4}, s{s_sq4}, s{s_t0}
    s_add_u32 s{s_sq4}, s{s_sq4}, {ST_FH - ST_SSQ}""")
    p.cur = main_cur
    btouch = lambda: Ins(f"buffer_load_dword v27, v{vBT}, s[{sD}:{sD+3}], s{s_bt} offen", nowaw=True)

    def dma5(st):
        o_ = [Ins(f"s_add_u32 m0, s{s_m05}, {(st % 8) * 16384}")]
        for i in range(4):
            o_.append(Ins(f"buffer_load_dwordx4 v{vW5+i}, s[{sD}:{sD+3}], s{s_wo5} offen offset:{i*1024} lds", awr=[f'L5_{st}'], nowaw=True))
        o_.append(Ins(f"s_add_u32 s{s_wo5}, s{s_wo5}, {448 * 2048}" if st & 1 == 0 else f"s_sub_u32 s{s_wo5}, s{s_wo5}, {(448 - 16) * 2048}"))
        return o_

    def glu(pr, packed):
        o_ = []
        for t in range(4):
            g = AB4 + ((2 * pr) * 4 + t) * 4
            u_ = AB4 + ((2 * pr + 1) * 4 + t) * 4
            rs_ = rr('v', vR4 + (t & 2), 2)
            sel = "op_sel_hi:[1,0]" if t % 2 == 0 else "op_sel:[0,1]"
            if packed:
                o_ += [f"v_pk_mul_f32 {rr('v', g+r, 2)}, {rr('v', g+r, 2)}, {rs_} {sel}" for r in (0, 2)]
                o_ += [f"v_exp_f32 v{g+r}, v{g+r}" for r in range(4)]
                o_ += [f"v_pk_add_f32 {rr('v', g+r, 2)}, {rr('v', g+r, 2)}, 1.0 op_sel_hi:[1,0]" for r in (0, 2)]
                o_ += [f"v_rcp_f32 v{g+r}, v{g+r}" for r in range(4)]
                o_ += [f"v_pk_mul_f32 {rr('v', u_+r, 2)}, {rr('v', u_+r, 2)}, {rr('v', g+r, 2)}" for r in (0, 2)]
            else:
                o_ += [f"v_mul_f32 v{g+r}, v{vR4+t}, v{g+r}" for r in range(4)]
                o_ += [f"v_exp_f32 v{g+r}, v{g+r}" for r in range(4)]
                o_ += [f"v_add_f32 v{g+r}, 1.0, v{g+r}" for r in range(4)]
                o_ += [f"v_rcp_f32 v{g+r}, v{g+r}" for r in range(4)]
                o_ += [f"v_mul_f32 v{u_+r}, v{u_+r}, v{g+r}" for r in range(4)]
            d_ = AB4 + ((2 * pr) * 4 + (t & 2)) * 4 + (t & 1) * 2
            o_ += [f"v_cvt_pk_bf16_f32 v{d_}, v{u_}, v{u_+1}", f"v_cvt_pk_bf16_f32 v{d_+1}, v{u_+2}, v{u_+3}"]
            if t & 1:
                o_ += [f"v_permlane32_swap_b32 v{d_-2}, v{d_}", f"v_permlane32_swap_b32 v{d_-1}, v{d_+1}",
                       f"buffer_store_dwordx4 {rr('v', d_-2, 4)}, v{vH + (t >> 1)}, s[{sB}:{sB+3}], s{s_of} offen sc1"]
        o_.append(f"s_add_u32 s{s_of}, s{s_of}, 4096")
        return [Ins(x, awr=[f'HS{pr}'], nowaw=True) if x.startswith('buffer') else Ins(x) for x in o_]

    AC5, WB5, vHI, vHF = 96, 40, 72, 224
    XB5 = (160, 192, 32, 0, 64, 96, 128)
    A5 = lambda F, t: rr('v', AC5 + ((F >> 2) + 2 * (t >> 1)) * 32 + ((F & 3) * 2 + (t & 1)) * 4, 4)
    X5 = lambda st, t, G: rr('a', XB5[st % 7] + (t * 2 + G) * 4, 4)
    NT = o.get('nt5', 6)

    def xld5(st):
        o_ = [Ins(f"buffer_load_dwordx4 {X5(st, t, G)}, v{vX1 if t & 1 else vL16}, s[{sB}:{sB+3}], s{s_x5 if t >> 1 else s_xo} offen offset:{G*1024} sc1")
              for t in range(4) for G in range(2)]
        return o_[:4] + [Ins(f"s_add_u32 s{s_xo}, s{s_xo}, 2048")] + o_[4:] + [Ins(f"s_add_u32 s{s_x5}, s{s_x5}, 2048")]

    outl = []

    def spin(label, level, ld=None):
        outl.append(Raw(f"""{label}:
    s_cmp_eq_u32 s{s_spin}, 0
    s_cbranch_scc1 {label}_done
    s_sub_u32 s{s_spin}, s{s_spin}, 1
    {ld or fgl}
    s_waitcnt vmcnt(0)
    v_cmp_gt_u32 vcc, {level}, v{vFG}
    s_nop 0
    s_cbranch_vccnz {label}
    s_branch {label}_done"""))
        return f"""    v_cmp_gt_u32 vcc, {level}, v{vFG}
    s_nop 0
    s_cbranch_vccnz {label}
{label}_done:"""
    last = list(range(14 - NT, 14))
    FO = o.get('fo5', 4)
    units = [(st, F, (0, 1, 2, 3)) for st in range(14 - NT) for F in range(8)]
    units += [(st, F, (0, 1, 2, 3)) for st in last[:-FO] for F in range(4, 8)]
    units += [(st, F, (0, 1, 2, 3)) for F in range(4, 8) for st in last[-FO:]]
    kB = len(units)
    kC = kB + 4 * NT
    units += [(st, F, (2, 3)) for F in range(4) for st in last]
    units += [(st, F, (0, 1)) for F in range(4) for st in last]

    def rd5(k):
        st, F = units[k][:2]
        return [Ins(f"ds_read_b64_tr_b16 {rr('v', WB5 + (k % 4)*8 + 2*n, 2)}, v{(vHI if st & 4 else vA3) + (F & 3)} "
                    f"offset:{(st & 3)*16384 + (n >> 1)*8192 + (F >> 2)*2048 + (n & 1)*1024}") for n in range(4)]
    fgl = f"buffer_load_dword v{vFG}, v{vFL}, s[{sT}:{sT+3}], s{s_c} offen sc1"
    tell = lambda prs: [Ins(f"buffer_store_dword v{vOne}, v{vZ}, s[{sT}:{sT+3}], s{s_sq4} offen sc1", rd=[f'HS{q}' for q in prs]),
                        Ins(f"s_add_u32 s{s_sq4}, s{s_sq4}, 0x40000")]
    check = lambda n: [Ins(f"wait v{vFG}"), Raw(spin(f"{name}_fpoll{n}", 1)), Ins(f"s_add_u32 s{s_c}, s{s_c}, 0x40000")]

    W4B = lambda q, g: rr('a', WB4B + (q % NWR) * 8 + g * 4, 4)
    C0 = o.get('c0at', (5, 21))
    at = {o.get('t0at', (2, 27)): tell((0,)), o.get('l0at', (4, 29)): [Ins(fgl)],
          C0: [Raw("; @stamp 11")] + check(0) + [Raw("; @stamp 12")], o.get('t1at', (5, 29)): tell((1, 2, 3))}
    x01 = xld5(0) + xld5(1)
    if not B1:
        p("s_waitcnt vmcnt(0)")
        p("s_barrier")
    for n in range(4):
        p.add(rd4(0, n, 1, WB4B))
    cost = lambda x: 8 if x.kind == 'trans' else 0 if x.kind == 'vmem' else 4
    pend = []
    for pr in range(7):
        work = setup if pr == 0 else glu(pr - 1, False)
        side = dma5(pr - 1) if pr >= 1 else []
        if BT and pr == o.get('btat', 3): side.append(btouch())
        tot = sum(cost(x) for x in work)
        done, wi = 0, 0
        for ff in range(2):
            f = 2 * pr + ff
            if f == 0: order = [(t, k) for t in range(4) for k in (0, 1)] + [(t, k) for t in range(4) for k in (2, 3)]
            else: order = zz(f, 4, 4, ZZ)
            rds = [rd4(f + 1, n, 1, WB4B) for n in range(4)] if f + 1 < 14 else []
            rds += [rd4(f + 2, n, 0) for n in range(4)] if f + 2 < 14 else []
            for i, (t, k) in enumerate(order):
                p(mf16(AC4(f, t), W4(f, k) if k < 2 else W4B(f, k - 2), X4(0 if k < 2 else 2, t, k & 1)))
                if B1 and f == 0 and i == 7:
                    p("s_waitcnt vmcnt(0)")
                if f == 13 and i == 0:
                    p("s_barrier", rd=['L5_0', 'L5_1', 'L5_2', 'L5_3'])
                    rds = rd5(0) + rd5(1)

                def xnext():
                    p.add(x01.pop(0))
                    if x01 and x01[0].kind == 'salu': p.add(x01.pop(0))
                if i % 2 == 0 and rds:
                    p.add(rds.pop(0))
                elif i == 15:
                    if f < 13: p(f"wait {W4(f+1, 0)}, {W4(f+1, 1)}, {W4B(f+1, 0)}, {W4B(f+1, 1)}")
                elif (pr, ff * 16 + i) in at:
                    p.add(at[pr, ff * 16 + i])
                elif pend and i % 2:
                    p.add(pend.pop(0))
                    if pr >= 5 and pend and pend[0].kind == 'salu': p.add(pend.pop(0))
                elif x01 and (pr, ff * 16 + i) > C0 and (len(x01) > 10 or not side):
                    xnext()
                elif side and (i % 2 or pr == 6):
                    p.add(side.pop(0))
                    if pr >= 5 and side and side[0].kind == 'salu': p.add(side.pop(0))
                gap = ff * 16 + i + 1
                while wi < len(work) and done + cost(work[wi]) / 2 <= tot * gap / 32:
                    if work[wi].kind == 'vmem' or (pr and work[wi].kind == 'salu'): pend.append(work[wi])
                    else: p.add(work[wi])
                    done += cost(work[wi]); wi += 1
        assert wi == len(work) and (not side or pr == 6)
    carry = pend + side + x01

    p.add(Raw("; @stamp 13"))
    STG = 131072
    vL, vG, vXF = 30, 15, 26
    s_ro, s_fl, s_xs, s_fy, s_fb = 66, 67, 72, 70, 71
    SQ5 = 32
    bg = []
    p.cur = bg
    for i in range(4):
        p(f"v_xor_b32 v{vHI+i}, 0x10000, v{vA3+i}")
    p(f"""
    s_lshl_b32 s{s_of}, s{s_tok}, 6
    s_add_u32 s{s_of}, s{s_of}, {ST_SSQ}
    s_lshl_b32 s{s_t0}, s{s_b}, 4
    s_add_u32 s{s_t0}, s{s_t0}, s{s_j}
    s_lshl_b32 s{s_xs}, s{s_t0}, 2
    s_add_u32 s{s_xs}, s{s_xs}, s{s_w}
    s_lshl_b32 s{s_fl}, s{s_xs}, 7
    v_and_b32 v{vt+2}, 1, v0
    v_lshlrev_b32 v{vt+2}, 15, v{vt+2}
    v_xor_b32 v{vt+2}, {8 << 9}, v{vt+2}
    v_xor_b32 v{vXF}, s{s_fl}, v{vt+2}
    s_add_u32 s{s_fy}, s{s_fl}, {ST_FY}
    s_add_u32 s{s_fl}, s{s_fl}, {ST_FX}
    s_mov_b32 s{s_fb}, {ST_FY}
    s_lshl_b32 s{s_xs}, s{s_xs}, 14
    s_add_u32 s{s_nb+4}, s{s_xs}, 4096
    s_mul_i32 s{s_t0}, s{s_w}, 4608
    s_add_u32 s{s_t0}, s{s_t0}, {STG}
    v_and_b32 v{vt+2}, 15, v0
    v_mul_u32_u24 v{vt+2}, 144, v{vt+2}
    v_lshrrev_b32 v{vt+3}, 4, v0
    v_lshl_add_u32 v{vt+2}, v{vt+3}, 3, v{vt+2}
    v_add_u32 v{vL}, s{s_t0}, v{vt+2}
    v_lshrrev_b32 v{vt+2}, 3, v0
    v_and_b32 v{vt+3}, 7, v0
    v_lshlrev_b32 v{vt+3}, 4, v{vt+3}
    v_lshl_add_u32 v{vG}, v{vt+2}, 11, v{vt+3}
    v_mul_u32_u24 v{vt+2}, 144, v{vt+2}
    v_add3_u32 v{vL+1}, v{vt+2}, v{vt+3}, s{s_t0}
    s_lshl_b32 s{s_ro}, s{s_tok}, 11
    s_lshl_b32 s{s_t2}, s{s_j}, 7
    s_add_u32 s{s_ro}, s{s_ro}, s{s_t2}
    s_add_u32 s0, s{s_xs}, 4096
    s_add_u32 s1, s{s_xs}, 8192
    s_add_u32 s14, s{s_xs}, 12288
    s_xor_b32 s15, s0, {8 << 16}
    s_xor_b32 s74, s1, {64 << 16}
    s_xor_b32 s75, s14, {72 << 16}
    s_mov_b32 s{s_t1}, {f32hex(1.0/1024)}
    v_mov_b32 v{vt+4}, {f32hex(1e-5)}
    """.replace(f"    s_add_u32 s{s_nb+4}, s{s_xs}, 4096\n", ""))
    srd(p, sA, pOUT, S * D * 2)
    for t in range(2):
        for F in range(4):
            e = aHR + (t * 2 + (F >> 1)) * 4 + (F & 1) * 2
            k = vHF + (F * 2 + t) * 4
            p(f"""
            v_accvgpr_read_b32 v{k+1}, a{e}
            v_accvgpr_read_b32 v{k+3}, a{e+1}
            v_lshlrev_b32 v{k}, 16, v{k+1}
            v_lshlrev_b32 v{k+2}, 16, v{k+3}
            v_and_b32 v{k+1}, 0xffff0000, v{k+1}
            v_and_b32 v{k+3}, 0xffff0000, v{k+3}""")
    bg2 = []
    p.cur = bg2
    for t in range(2):
        p(f"""
        v_add_f32 v{SQ5+t}, v{SQ5+t}, v{SQ5+2+t}
        v_add_f32 v{SQ5+4+t}, v{SQ5+4+t}, v{SQ5+6+t}
        v_add_f32 v{vS+t}, v{SQ5+t}, v{SQ5+4+t}""")
        xsum16_32(p, f"v{vS+t}", f"v{vt}")
        p(f"v_fma_f32 v{vS+t}, v{vS+t}, s{s_t1}, v{vt+4}\nv_rsq_f32 v{vS+t}, v{vS+t}")
    p.cur = main_cur
    sXQ = {1: 0, 2: 1, 3: 14}
    assert NT in (4, 5, 6)
    sql = [Ins(f"buffer_load_dwordx2 {rr('v', SQ5 + 2*i, 2)}, v{vPT}, s[{sT}:{sT+3}], s{s_of} offen offset:{i*128} sc1") for i in range(4)]
    X_ = {st: xld5(st) for st in range(2, 14)}
    X_[1] = [x for x in x01]
    plan = {0: carry + dma5(6) + [Ins(fgl)] + dma5(7) + [check(1)] + X_[2][:5], 1: X_[2][5:] + X_[3] + X_[4][:5],
            2: tell((4, 5, 6)) + X_[4][5:] + X_[5], 3: dma5(8) + dma5(9) + X_[6], 4: [Ins(fgl)] + X_[7] + [check(2)] + X_[8],
            5: dma5(10) + dma5(11) + X_[9], 6: X_[10] + X_[11], 7: dma5(12) + dma5(13) + X_[12], 8: X_[13]}
    bar_at = {2: [4, 5, 6, 7], 4: [], 6: [8, 9, 10, 11], 9: [12, 13]}
    g6 = glu(6, False)
    g6tot, g6done = sum(cost(x) for x in g6), 0
    start = {}
    for k, u_ in enumerate(units[:kB]): start.setdefault(u_[0], k)
    kstart = {k: st for st, k in start.items() if st < 12}
    kbar = {start[st + 1] - 2: v for st, v in bar_at.items()}
    RX = AC5 + 32
    rxl = lambda F, r: Ins(f"buffer_load_dwordx4 {rr('v', AC5 + r*32 + F*8, 4)}, v{vL16}, s[{sC}:{sC+3}], s{(15, 74, 75)[r-1]} offen offset:{F*1024} sc1")
    fyl = f"buffer_load_dword v{vFG}, v{vXF}, s[{sT}:{sT+3}], s{s_fb} offen sc1"
    ev = {}
    YL = o.get('yl', [(-2, (0, 1), 15, 21), (12, (2, 3), 35, 42)])
    for n, (kt_, Fs, kl, kc) in enumerate(YL):
        ev.setdefault(kB + kt_, []).extend(
            [Ins(f"buffer_store_dword v{vOne}, v{vZ}, s[{sT}:{sT+3}], s{s_fy} offen sc1", rd=[f'XS{r}_{F}' for F in Fs for r in (1, 3)]),
             Ins(f"s_add_u32 s{s_fy}, s{s_fy}, 0x40000")])
        ev.setdefault(kB + kl, []).append(Ins(fyl))
        ev.setdefault(kB + kc, []).extend(
            [[Ins(f"wait v{vFG}"), Raw(spin(f"{name}_ypoll{n}", 1, fyl)), Ins(f"s_add_u32 s{s_fb}, s{s_fb}, 0x40000")]] +
            [rxl(F, r) for F in Fs for r in (1, 3)])
    ev.setdefault(kC + o.get('kfb', 12), []).extend(
        [Ins(f"buffer_store_dword v{vOne}, v{vZ}, s[{sT}:{sT+3}], s{s_fl} offen sc1", rd=[f'XS2_{F}' for F in range(4)]),
         Ins(f"s_xor_b32 s{s_fl}, s{s_fl}, {64 << 9}")])
    side, seen, hold = [], set(), 0
    for k, (st, F, ts) in enumerate(units):
        if k in kstart:
            side += plan.get(st, [])
        assert all(x not in side for x in X_.get(st, [])[:-1])
        side += ev.get(k, [])
        if k == kB - 14: side += sql
        if k == kB + 8: bg += bg2
        if 'fine5' in dbg:
            mk = {start[3]: 3, start[4]: 4, start[8]: 5, kB: 6, kC: 7, kC + 8: 8, kC + 16: 9}
            if k in mk: p.add(Raw(f"; @stamp {mk[k]}"))
        rds = rd5(k + 2) if k + 2 < len(units) else []
        order = [(ts[t], G) for t, G in zz(k, len(ts), 2, ZZ)]
        for i, (t, G) in enumerate(order):
            c = None if (F, t) in seen else "0"
            seen.add((F, t))
            p(mf16(A5(F, t), rr('v', WB5 + (k % 4) * 8 + G * 4, 4), X5(st, t, G), c))
            if i == 0 and k in kbar:
                assert not any(f'L5_{x}' in getattr(y, 'awr', ()) for x in kbar[k] for y in side)
                p("s_barrier", rd=[f'L5_{x}' for x in kbar[k]])
            used = False
            if rds and (i % 2 == 0 or len(ts) == 2):
                p.add(rds.pop(0))
            if i == len(order) - 1:
                if k + 1 < len(units):
                    n_ = units[k + 1]
                    p(f"wait {rr('v', WB5 + ((k + 1) % 4) * 8, 8)}, " + ", ".join(X5(n_[0], t_, G_) for t_ in n_[2] for G_ in range(2)))
            if side and i % 2 == 1 and (getattr(side[0], 'kind', '') == 'vmem') == (i % 4 == 1):
                p.add(side.pop(0)); used = True
                while side and i % 4 == 3 and getattr(side[0], 'kind', '') == 'salu': p.add(side.pop(0))
            while g6 and g6done + cost(g6[0]) / 2 <= g6tot * (k * 8 + i + 1) / 62:
                x = g6.pop(0); g6done += cost(x)
                if x.kind == 'vmem': side.insert(0, x)
                elif x.kind != 'salu': p.add(x)
            if bg and not used and k >= 9:
                x = bg.pop(0)
                if x.kind == 'vmem': side.append(x)
                else: p.add(x)
        if st == 13:
            for tp in sorted({t >> 1 for t in ts}):
                r = (F >> 2) + 2 * tp
                if r:
                    a = AC5 + r * 32 + (F & 3) * 8
                    bg += [Ins("wait v0") for _ in range(3 if not bg else 0)]
                    bg += [Ins(f"v_cvt_pk_bf16_f32 v{a+q}, v{a+2*q}, v{a+2*q+1}") for q in range(4)]
                    bg.append(Ins(f"buffer_store_dwordx4 {rr('v', a, 4)}, v{vL16}, s[{sC}:{sC+3}], s{sXQ[r]} offen offset:{(F & 3)*1024} sc1",
                                  awr=[f'XS{r}_{F & 3}'], nowaw=True))
    assert not bg
    p.add(Raw("; @stamp 14"))
    p.add(side + ev.get(len(units), []))
    fxl = f"buffer_load_dword v{vFG}, v{vt+1}, s[{sT}:{sT+3}], s{s_fl} offen sc1"
    p(f"v_mov_b32 v{vt+1}, 0")
    p(fxl)
    sels = ("op_sel_hi:[1,0,1]", "op_sel:[0,1,0]")
    RU = 40

    def add_rx(F, r):
        for q in range(4):
            e, a, k = AC5 + r * 32 + F * 8 + q, RU + ((r * 4 + q) % 8) * 2, vHF + F * 8 + 2 * q
            p(f"v_lshlrev_b32 v{a}, 16, v{e}\nv_and_b32 v{a+1}, 0xffff0000, v{e}")
            p(f"v_pk_fma_f32 {rr('v', k, 2)}, {rr('v', a, 2)}, {rr('v', vS, 2)}, {rr('v', k, 2)} {sels[q >> 1]}")
    for i in range(0, 32, 2):
        p(f"v_pk_fma_f32 {rr('v', vHF+i, 2)}, {rr('v', AC5+i, 2)}, {rr('v', vS, 2)}, {rr('v', vHF+i, 2)} {sels[(i >> 2) & 1]}")
    for F in range(2):
        add_rx(F, 1); add_rx(F, 3)
    if 'tail' in dbg: p.add(Raw("; @stamp 0"))
    p(f"wait v{vFG}")
    p.add(Raw(spin(f"{name}_xpoll", 1, fxl)))
    p.add([rxl(F, 2) for F in range(4)])
    if 'tail' in dbg: p.add(Raw("; @stamp 1"))
    for F in range(2, 4):
        add_rx(F, 1); add_rx(F, 3)
    for F in range(4):
        add_rx(F, 2)
        for t in range(2):
            k = vHF + (F * 2 + t) * 4
            p(f"v_cvt_pk_bf16_f32 v{k}, v{k}, v{k+1}\nv_cvt_pk_bf16_f32 v{k+1}, v{k+2}, v{k+3}")
            p(f"ds_write_b64 v{vL}, v[{k}:{k+1}] offset:{t*16*144 + F*32}")
    for n in range(4):
        p(f"ds_read_b128 {rr('v', 128 + n*4, 4)}, v{vL+1} offset:{n*8*144}")
    if 'tail' in dbg: p.add(Raw("; @stamp 2"))
    for n in range(4):
        p(f"buffer_store_dwordx4 {rr('v', 128 + n*4, 4)}, v{vG}, s[{sA}:{sA+3}], s{s_ro} offen")
        if n < 3: p(f"s_add_u32 s{s_ro}, s{s_ro}, {8 * 2048}")
    p(f"{name}_end:")
    p("s_endpgm")
    p.add(x15blk)
    p.add(outl)

    z = 48
    rgl = f"buffer_load_dwordx2 v[{z+4}:{z+5}], v{z+6}, s[{sT}:{sT+3}], s{s_fo} offen sc1"
    p.add(Raw(f"""{name}_rsx:
    s_cmp_eq_u32 s{s_cnt}, 3
    s_cbranch_scc1 {name}_rs5
    s_cmp_eq_u32 s{s_cnt}, 2
    s_cbranch_scc1 {name}_rs6
    {mf16(rr('v', z, 4), on, rr('v', vRS, 4), "0")}
    {mf16(rr('v', z, 4), on, rr('v', vRS + 4, 4))}
    s_lshl_b32 s{s_t0}, s{s_fo}, 3
    s_add_u32 s{s_t0}, s{s_t0}, {ST_RS2}
    s_lshl_b32 s{s_fo}, s{s_j}, 9
    s_add_u32 s{s_fo}, s{s_fo}, {ST_RS2}
    v_lshlrev_b32 v{z+6}, 3, v0
    s_mov_b32 s{s_spin}, {SPIN}
    s_nop 2
""" + "".join(f"    v_add_f32_dpp v{z}, v{z}, v{z} row_ror:{k} row_mask:0xf bank_mask:0xf\n    s_nop 1\n" for k in (8, 4, 2, 1)) + f"""    v_mov_b32 v{z+1}, 1
    buffer_store_dwordx2 v[{z}:{z+1}], v{vZ}, s[{sT}:{sT+3}], s{s_t0} offen sc1
    s_branch {name}_rsxback
{name}_rs5:
    {rgl}
    s_lshl_b32 s{s_t0}, s{s_w}, 12
    s_add_u32 m0, s{s_t0}, {XT}
    s_lshl_b32 s{s_t1}, s{s_j}, 7
""" + "".join(f"    buffer_load_dwordx4 v{vD+i}, s[{sC}:{sC+3}], s{s_t1} offen offset:{i*1024} lds\n" for i in range(4)) +
              (code_touch(f"{name}_ct3", f"{name}_fin", f"{name}_tail4", 1, z + 7, vDum) if o.get('ipf3', False) else "") + f"""    s_branch {name}_rsxback
{name}_rspoll:
    {rgl}
    s_waitcnt vmcnt(0)
{name}_rs6:
    v_cmp_ne_u32 vcc, 1, v{z+5}
    s_sub_u32 s{s_spin}, s{s_spin}, 1
    s_cbranch_scc1 {name}_rsgo
    s_cbranch_vccnz {name}_rspoll
{name}_rsgo:
    s_lshl_b32 s{s_t0}, s{s_w}, 8
    s_add_u32 s{s_t0}, s{s_t0}, {RED}
    v_lshl_add_u32 v{z+6}, v0, 2, s{s_t0}
    v_xor_b32 v{z+7}, 128, v{vRA}
    ds_write_b32 v{z+6}, v{z+4}
""" + "".join(f"    ds_read_b128 {rr('v', RSV + 16*x + 4*jj, 4)}, v{z+7 if x else vRA} offset:{jj*32}\n" for x in range(2) for jj in range(4)) +
              f"    s_branch {name}_rsxback"))

    slow = p.segment()
    p(f"{name}_slow:")
    p.fence()
    for x in range(2):
        p(f"v_mov_b32 v{Nb(x)}, 0xff800000")
    p(f"s_mov_b32 s{s_ko}, 0")
    p.begin_loop(f"{name}_max_loop", 64, align=False)
    p.add([kld(0, 0), kld(0, 1)])
    for x in range(2):
        p(mf32(rr('v', Sb(x), 16), Kf(0, 0), Q(x, 0), "0"))
        p(mf32(rr('v', Sb(x), 16), Kf(0, 1), Q(x, 1)))
    for x in range(2):
        for i in range(0, 16, 2):
            p(f"v_max3_f32 v{Nb(x)}, v{Nb(x)}, v{Sb(x)+i}, v{Sb(x)+i+1}")
    p(f"""
    s_add_u32 s{s_ko}, s{s_ko}, 4096
    s_cmp_lg_u32 s{s_ko}, {64 * 4096}
    s_cbranch_scc1 {name}_max_loop""")
    p.end_loop()
    for x in range(2):
        p(f"""
        v_mov_b32 v{vt}, v{Nb(x)}
        v_permlane32_swap_b32 v{Nb(x)}, v{vt}
        v_max_f32 v{Nb(x)}, v{Nb(x)}, v{vt}
        v_sub_f32 v{Nb(x)}, 0, v{Nb(x)}""")
        for i in range(1, 16):
            p(f"v_mov_b32 v{Nb(x)+i}, v{Nb(x)}")
    fill_kv()
    att_init()
    p(f"s_mov_b32 s{s_safe}, 1")
    attention('safe', lambda y: rr('v', Nb(y), 16), False, [Ins("s_nop 11")])
    p.fence()
    p(f"s_branch {name}_fin")
    p.paths = [[main, red_w, rest], [main, fin, fin_k, rest], [main, fin, fin_v, rest], [slow]]
    return p
```

```python
from common import *

LDS_TOTAL = 163840
ST_MR = 0x0000
ST_RS2 = 0x60000
ST_MP = 0x28000
ST_FO = 0x80000
ST_FC = 0xA0000
ST_FH = 0xC0000
ST_FY = 0x120000
ST_FX = 0xE0000
ST_KVC = 0x4000
SPIN = 1 << 20

pX, pWQ, pWK, pWV, pWO, pWG, pWU, pWD, pOUT, pDBG, pWS = 4, 6, 8, 10, 12, 16, 18, 20, 22, 24, 26
sA, sB, sC, sD, sE, sT = 28, 32, 36, 40, 44, 48
s_w, s_b, s_j, s_tok, s_t0, s_t1, s_t2, s_cnt, s_spin = 52, 53, 54, 55, 56, 57, 58, 59, 60
vL16, vZ, vOne = 1, 2, 3
aMEAN, aHR, aA5 = 238, 240, 160


def srd(p, s, ptr, size, off=None, bias=0):
    if off is not None:
        p(f"s_add_u32 s{s}, s{ptr}, s{off}\ns_addc_u32 s{s+1}, s{ptr+1}, 0")
        ptr = s
    if bias > 0:
        p(f"s_add_u32 s{s}, s{ptr}, {hex(bias)}\ns_addc_u32 s{s+1}, s{ptr+1}, 0")
    elif bias < 0:
        p(f"s_sub_u32 s{s}, s{ptr}, {hex(-bias)}\ns_subb_u32 s{s+1}, s{ptr+1}, 0")
    elif off is None:
        p(f"s_mov_b64 s[{s}:{s+1}], s[{ptr}:{ptr+1}]")
    if isinstance(size, str):
        p(size.format(d=f"s{s+2}"))
    else:
        p(f"s_mov_b32 s{s+2}, {hex(size)}")
    p(f"s_mov_b32 s{s+3}, 0x20000")


PFL = ['sc1', 'sc1', 'buffer_store_dword']


def arrive(p, soff):
    p("s_waitcnt vmcnt(0)")
    p(f"{PFL[2]} v{vOne}, v{vZ}, s[{sT}:{sT+3}], s{soff} offen {PFL[1]}")


SLEEP = [0]


def poll(p, label, soff, n, vtmp, target=1, skip=None):
    p(f"""
    s_mov_b32 s{s_spin}, {SPIN}
    v_lshlrev_b32 v{vtmp+1}, 7, v0
    s_mov_b64 exec, {hex((1 << n) - 1) if n < 32 else 0xffff}
    {'s_mov_b32 exec_lo, -1' if n == 32 else ''}
    {f's_bitset0_b32 exec_lo, s{skip}' if skip else ''}""")
    p.add(Raw(f"""    s_branch {label}_go
{label}:
    {f's_sleep {SLEEP[0]}' if SLEEP[0] else ''}
{label}_go:
    buffer_load_dword v{vtmp}, v{vtmp+1}, s[{sT}:{sT+3}], s{soff} offen {PFL[0]}
    s_sub_u32 s{s_spin}, s{s_spin}, 1
    s_waitcnt vmcnt(0)
    v_cmp_gt_u32 vcc, {target}, v{vtmp}
    s_cbranch_scc1 {label}_done
    s_cbranch_vccnz {label}
{label}_done:"""))
    p("s_mov_b64 exec, -1")
    p("s_waitcnt vmcnt(0)")


def spread(vm, start, step):
    fill, pos = {}, start
    for ins in vm:
        fill.setdefault(pos, []).append(ins)
        if ins.kind == 'vmem':
            pos += step
    return fill


def zz(f, nt, nk, on=True):
    if not on:
        return [(t, k) for t in range(nt) for k in range(nk)]
    ts = list(range(nt)) if f % 2 == 0 else list(range(nt - 1, -1, -1))
    return [(t, k if n % 2 == 0 else nk - 1 - k) for n, t in enumerate(ts) for k in range(nk)]


def code_touch(tag, first, last, lines, vtmp, vdst):
    return f"""    s_getpc_b64 s[74:75]
{tag}:
    s_lshr_b32 s{s_t0}, s2, 3
    s_lshl_b32 s{s_t0}, s{s_t0}, 2
    s_add_u32 s{s_t0}, s{s_t0}, s{s_w}
    s_mul_i32 s{s_t0}, s{s_t0}, {128 * lines}
    s_min_u32 s{s_t0}, s{s_t0}, {last}-{first}
    s_sub_u32 s74, s74, {tag}-{first}
    s_subb_u32 s75, s75, 0
    v_min_u32 v{vtmp}, {lines - 1}, v0
    v_lshl_add_u32 v{vtmp}, v{vtmp}, 7, s{s_t0}
    global_load_dword v{vdst}, v{vtmp}, s[74:75]
"""


def gen_fused(name, o):
    ZZ = o.get('zz', True)
    dbg = o.get('dbg', '')
    SLEEP[0] = o.get('sleep', 0)
    PFL[:] = o.get('pfl', PFL)
    KVSC = 'sc1' if o.get('kvsc1', False) else ''
    p = Prog()
    main = p.segment()
    p(f"""
    s_cmp_ge_u32 s2, 256
    s_cbranch_scc1 {name}_end
    s_load_dwordx16 s[4:19], s[0:1], 0
    s_load_dwordx8 s[20:27], s[0:1], 64
    v_lshrrev_b32 v1, 6, v0
    v_and_b32 v0, 63, v0
    v_readfirstlane_b32 s{s_w}, v1
    s_and_b32 s{s_t0}, s2, 7
    s_lshr_b32 s{s_t1}, s2, 3
    s_lshr_b32 s{s_b}, s{s_t0}, 1
    s_lshl_b32 s{s_b}, s{s_b}, 2
    s_and_b32 s{s_j}, s{s_t1}, 3
    s_add_u32 s{s_b}, s{s_b}, s{s_j}
    s_and_b32 s{s_j}, s{s_t0}, 1
    s_lshl_b32 s{s_j}, s{s_j}, 3
    s_lshr_b32 s{s_t1}, s{s_t1}, 2
    s_add_u32 s{s_j}, s{s_j}, s{s_t1}
    {f"s_xor_b32 s{s_j}, s{s_j}, {o['jxor']}" if o.get('jxor') else ''}
    s_lshl_b32 s{s_tok}, s{s_b}, 2
    s_add_u32 s{s_tok}, s{s_tok}, s{s_w}
    s_lshl_b32 s{s_tok}, s{s_tok}, 5
    v_lshlrev_b32 v{vL16}, 4, v0
    v_cmp_eq_u32 vcc, 0, v0
    v_mov_b32 v{vOne}, 0x7ffffff0
    v_cndmask_b32 v{vZ}, v{vOne}, 0, vcc
    v_mov_b32 v{vOne}, 1
    """)

    R3 = o.get('rot3', False)
    SL = 24576
    RED, CSQ = 147456, 162816
    vt = 4
    vD = 12
    vD0 = 18
    vB = 22
    vA = 28
    vST = 34
    ONES = 36
    vRS = 40
    s_kv, s_xoff, s_woff, s_dm, s_pb, s_w6 = 61, 62, 63, 64, 65, 66
    s_hd, s_wdo, s_wm0, s_po, s_pk, s_ko, s_vo, s_pj = 67, 68, 69, 70, 71, 72, 73, 3
    p(f"""
    v_lshrrev_b32 v{vt}, 3, v0
    v_lshrrev_b32 v{vt+1}, 4, v0
    v_and_b32 v{vt+2}, 7, v0
    v_xor_b32 v{vt+3}, v{vt+1}, v{vt+2}
    v_lshlrev_b32 v{vt+3}, 4, v{vt+3}
    v_lshl_add_u32 v{vt+3}, v{vt}, 11, v{vt+3}
    v_xor_b32 v{vt+4}, 64, v{vt+3}
    v_add_u32 v{vD}, 4096, v{vt+3}
    v_add_u32 v{vD+1}, {16384 + 4096 - 1024}, v{vt+4}
    v_add_u32 v{vD0}, {128 + 4096 - 2048}, v{vt+3}
    v_add_u32 v{vD0+1}, {16384 + 128 + 4096 - 3072}, v{vt+4}
    v_lshrrev_b32 v{vt+5}, 5, v0
    v_lshlrev_b32 v{vt+5}, 1, v{vt+5}
    v_xor_b32 v{vt+5}, v{vt+5}, v0
    v_lshlrev_b32 v{vD0+2}, 4, v{vt+5}
    v_add_u32 v{vD+2}, {32768 + 4096 - 2048}, v{vt+3}
    v_add_u32 v{vD+3}, {32768 + 16384 + 4096 - 3072}, v{vt+4}
    v_and_b32 v{vt+1}, 1, v{vt+1}
    v_lshlrev_b32 v{vt+1}, 1, v{vt+1}
    v_xor_b32 v{vt+1}, v{vt+1}, v{vt+2}
    v_lshlrev_b32 v{vt+1}, 4, v{vt+1}
    v_lshl_add_u32 v{vD+4}, v{vt}, 11, v{vt+1}
    v_xor_b32 v{vD+5}, 64, v{vD+4}
    v_add_u32 v{vD+5}, {8*2048 - 1024}, v{vD+5}
    s_lshr_b32 s{s_t0}, s{s_j}, 1
    s_lshl_b32 s{s_kv}, s{s_b}, 3
    s_add_u32 s{s_kv}, s{s_kv}, s{s_t0}
    s_lshl_b32 s{s_kv}, s{s_kv}, 4
    s_lshl_b32 s{s_t0}, s{s_kv}, 11
    s_lshl_b32 s{s_t1}, s{s_w}, 9
    s_add_u32 s{s_t0}, s{s_t0}, s{s_t1}
    s_add_u32 s{s_t1}, s{s_w}, 2
    s_mul_i32 s{s_dm}, s{s_t1}, {SL}
    s_mov_b32 m0, s{s_dm}
    s_mul_i32 s{s_xoff}, s{s_b}, {128 * o.get('rotb', 4)}
    s_mul_i32 s{s_woff}, s{s_j}, {128 * o.get('rotj', 2)}
    s_add_u32 s{s_xoff}, s{s_xoff}, s{s_woff}
    s_and_b32 s{s_xoff}, s{s_xoff}, 2047
    s_mul_i32 s{s_w6}, s{s_w}, 6144
    s_lshl_b32 s{s_ko}, s{s_w}, 14
    s_bfe_u32 s{s_vo}, s{s_j}, 0x20001
    s_lshl_b32 s{s_vo}, s{s_vo}, 14
    s_and_b32 s{s_t1}, s{s_tok}, 0x1e0
    s_lshl_b32 s{s_t1}, s{s_t1}, 5
    s_add_u32 s{s_vo}, s{s_vo}, s{s_t1}
    v_lshlrev_b32 v{vt+6}, 7, v0
    """)
    srd(p, sA, pX, S * D * 2 + 4096, bias=-4096)
    p.add(Raw("; @fine 4"))
    p(f"""
    s_bitcmp0_b32 s{s_j}, 0
    s_cselect_b64 s[{sB}:{sB+1}], s[{pWK}:{pWK+1}], s[{pWV}:{pWV+1}]
    s_mov_b32 s{sB+2}, {D * 64}
    s_mov_b32 s{sB+3}, 0x20000
    """)
    if o.get('kvtouch', True):
        p("s_mov_b64 exec, 0xff")
        p(f"buffer_load_dword v255, v{vt+6}, s[{sB}:{sB+3}], s{s_vo} offen", nowaw=True)
        p.cur[-1].awr = set()
        p("s_mov_b64 exec, -1")
    xo = [vD, vD + 1, vD0, vD0 + 1]
    for n in range(8):
        if n == 4:
            p(f"s_add_u32 m0, m0, 4096\ns_add_u32 s{s_t0}, s{s_t0}, 256")
        p(f"buffer_load_dwordx4 v{xo[n & 3]}, s[{sA}:{sA+3}], s{s_t0} offen offset:{(n & 3) * 1024} lds", awr=['P00'], nowaw=True)

    def wkv(q):
        p("s_add_u32 m0, m0, 4096")
        if q: p(f"s_add_u32 s{s_ko}, s{s_ko}, 4096")
        for i in range(4):
            p(f"buffer_load_dwordx4 v{vD0+2}, s[{sB}:{sB+3}], s{s_ko} offen offset:{i*1024} lds", awr=[f'P0{q}'], nowaw=True)
    EARLY = o.get('early', 0)
    for q in range(EARLY): wkv(q)
    if o.get('sipf', 2):
        p(f"""
        s_getpc_b64 s[0:1]
        s_lshr_b32 s{s_t0}, s2, 3
        s_lshl_b32 s{s_t0}, s{s_t0}, 2
        s_add_u32 s{s_t0}, s{s_t0}, s{s_w}
        s_lshl_b32 s{s_t0}, s{s_t0}, 7
        s_add_u32 s0, s0, s{s_t0}
        s_addc_u32 s1, s1, 0
        s_and_b32 s0, s0, 0xffffff80
        s_load_dword s{s_spin}, s[0:1], 0""")
        if o.get('sipf', 2) == 2: p(f"s_load_dword s{s_cnt}, s[0:1], 64")
    p.add(Raw("; @fine 5"))
    p(f"""
    s_lshl_b32 s{s_t0}, s{s_tok}, 11
    s_lshl_b32 s{s_t1}, s{s_w}, 15
    s_lshl_b32 s{s_t2}, s{s_j}, 7
    s_add_u32 s{s_t1}, s{s_t1}, s{s_t2}
    """)
    srd(p, sC, pX, 32 * 2048 + 4096, off=s_t0, bias=-4096)
    srd(p, sD, pWQ, f"s_sub_u32 {{d}}, {D * D * 2}, s{s_t1}", off=s_t1)

    def dma1(m0expr, tag):
        o_ = [Ins(m0expr), Ins(f"s_lshl_b32 s{s_woff}, s{s_xoff}, 10")]
        for i in range(4):
            o_.append(Ins(f"buffer_load_dwordx4 v{vD+i}, s[{sC}:{sC+3}], s{s_xoff} offen offset:{i*1024} lds", awr=[tag], nowaw=True))
        o_ += [Ins("s_add_u32 m0, m0, 4096"), Ins(f"s_add_u32 s{s_xoff}, s{s_xoff}, 128")]
        for i in range(2):
            o_.append(Ins(f"buffer_load_dwordx4 v{vD+4+i}, s[{sD}:{sD+3}], s{s_woff} offen offset:{i*1024} lds", awr=[tag], nowaw=True))
        o_.append(Ins(f"s_and_b32 s{s_xoff}, s{s_xoff}, 2047"))
        return o_
    if o.get('qtouch', True):
        srd(p, sE, pWQ, D * D * 2)
        p(f"""
        s_lshr_b32 s{s_t0}, s2, 3
        s_lshl_b32 s{s_t0}, s{s_t0}, 2
        s_add_u32 s{s_t0}, s{s_t0}, s{s_w}
        s_lshl_b32 s{s_t0}, s{s_t0}, 14
        s_and_b32 s{s_t1}, s{s_j}, 8
        s_lshl_b32 s{s_t1}, s{s_t1}, 7
        s_add_u32 s{s_t0}, s{s_t0}, s{s_t1}
        v_lshlrev_b32 v{vt+6}, 11, v0
        s_mov_b64 exec, 0xff""")
        p(f"buffer_load_dword v255, v{vt+6}, s[{sE}:{sE+3}], s{s_t0} offen offset:384", nowaw=True)
        p.cur[-1].awr = set()
        if o.get('qlin', True):
            p(f"""
            s_lshl_b32 s{s_t0}, s2, 2
            s_add_u32 s{s_t0}, s{s_t0}, s{s_w}
            s_lshl_b32 s{s_t0}, s{s_t0}, 11
            s_mov_b64 exec, 0xffff
            v_lshlrev_b32 v{vt+6}, 7, v0""")
            p(f"buffer_load_dword v255, v{vt+6}, s[{sE}:{sE+3}], s{s_t0} offen", nowaw=True)
            p.cur[-1].awr = set()
        p("s_mov_b64 exec, -1")
    srd(p, sE, pWO, D * D * 2)

    srd(p, sT, pWS, ST[1], bias=ST[0])
    srd(p, sA, pWS, KV[1], bias=KV[0])
    p(f"""
    v_and_b32 v{vt}, 15, v0
    v_lshrrev_b32 v{vt+1}, 1, v{vt}
    v_lshrrev_b32 v{vt+2}, 4, v0
    v_xor_b32 v{vt+1}, v{vt+1}, v{vt+2}
    v_lshlrev_b32 v{vt+1}, 4, v{vt+1}
    v_lshl_add_u32 v{vt+1}, v{vt}, 7, v{vt+1}
    v_xor_b32 v{vt+3}, 64, v{vt+1}
    v_add_u32 v{vB}, s{s_w6}, v{vt+1}
    v_add_u32 v{vB+1}, s{s_w6}, v{vt+3}
    v_add_u32 v{vA}, s{s_dm}, v{vt+1}
    v_add_u32 v{vA+1}, s{s_dm}, v{vt+3}
    v_lshrrev_b32 v{vt}, 5, v0
    v_and_b32 v{vt+1}, 3, v0
    v_lshlrev_b32 v{vt+1}, 3, v{vt+1}
    v_bfe_u32 v{vt+2}, v0, 2, 2
    v_bfe_u32 v{vt+3}, v0, 4, 1
    v_lshl_add_u32 v{vt+2}, v{vt+3}, 3, v{vt+2}
    v_lshl_add_u32 v{vt+4}, v{vt}, 10, v{vt+1}
    v_lshl_add_u32 v{vt+4}, v{vt+2}, 6, v{vt+4}
    v_lshl_add_u32 v{vt+4}, v{vt+3}, 5, v{vt+4}
    v_add_u32 v{vA+2}, s{s_dm}, v{vt+4}
    v_xor_b32 v{vA+3}, 32, v{vA+2}
    v_mul_u32_u24 v{vt}, 6144, v{vt}
    v_add_u32 v{vt}, v{vt}, v{vt+1}
    v_lshl_add_u32 v{vt}, v{vt+2}, 7, v{vt}
    v_bfe_u32 v{vt+4}, v0, 3, 2
    v_xor_b32 v{vt+4}, s{s_w}, v{vt+4}
    v_lshl_add_u32 v{vB+2}, v{vt+4}, 5, v{vt}
    v_xor_b32 v{vB+3}, 32, v{vB+2}
    v_xor_b32 v{vB+4}, 64, v{vB+2}
    v_xor_b32 v{vB+5}, 0x60, v{vB+2}
    """)
    for i in range(4):
        p(f"v_mov_b32 v{ONES+i}, 0x3f803f80")
    on = rr('v', ONES, 4)
    AB = 48
    CSA = 80
    PA = 84
    FB = 128
    TR = 112
    NR = 8
    Q = lambda x, m: rr('v', 16 + x * 8 + m * 4, 4) if x < 2 else rr('a', 112 + (x - 2) * 8 + m * 4, 4)
    Sb = lambda x: 64 + 16 * x
    RSV = 112
    Nb = lambda x: 144 + 16 * x
    Ob = lambda x: 176 + 16 * x if x < 2 else 144 + 16 * (x - 2)
    Lb = lambda x: 208 + 4 * x if x < 2 else 96 + 4 * (x - 2)
    XT = 131072
    Pb = lambda x: 216 + 8 * x
    SEL, vWD, vPF, vDum, vOS, vPW, vCS, vGP, vMA, vRA, vXS, vXR, vXA = 232, 236, 240, 241, 242, 243, 244, 245, 246, 247, 248, 249, 250

    def att_init(nr):
        for i in list(range(Ob(0), Lb(1) + 4, 2)) + list(range(Pb(1), Pb(1) + 8, 2)):
            p(f"v_pk_mov_b32 {rr('v', i, 2)}, 0, 0")
        for i in range(8): p(f"v_accvgpr_write_b32 a{64 + (nr-1)*8 + i}, 0")
    for i in range(AB, CSA + 4, 2):
        p(f"v_pk_mov_b32 {rr('v', i, 2)}, 0, 0")
    p.add(Raw(f"""    s_or_b32 s{s_t0}, s2, s{s_w}
    s_cbranch_scc1 {name}_noclr
    s_movk_i32 s{s_t0}, {ST_KVC}
""" + "".join(f"    buffer_store_dwordx4 {rr('v', AB, 4)}, v{vL16}, s[{sT}:{sT+3}], s{s_t0} offen offset:{i*1024} sc1\n" for i in range(4)) + f"{name}_noclr:"))
    att_init(4)
    p(f"""
    v_lshrrev_b32 v{vt}, 2, v0
    v_and_b32 v{vt}, 4, v{vt}
    v_xor_b32 v{vt}, v{vt}, v0
    v_and_b32 v{vt}, 7, v{vt}
    v_cmp_eq_u32 vcc, 0, v{vt}
    v_lshrrev_b32 v{vt}, 3, v0
    v_and_b32 v{vt+1}, 6, v{vt}
    v_cndmask_b32 v{SEL}, 0, v{ONES}, vcc
    v_mov_b32 v{SEL+1}, v{SEL}
    v_mov_b32 v{SEL+2}, v{SEL}
    v_mov_b32 v{SEL+3}, v{SEL}
    v_and_b32 v{vt+2}, 7, v0
    v_xor_b32 v{vt+1}, v{vt+1}, v{vt+2}
    v_lshlrev_b32 v{vt+1}, 4, v{vt+1}
    v_lshl_add_u32 v{vWD}, v{vt}, 11, v{vt+1}
    v_add_u32 v{vWD+1}, {8*2048 - 1024}, v{vWD}
    v_add_u32 v{vWD+2}, {16*2048 - 2048}, v{vWD}
    v_add_u32 v{vWD+3}, {24*2048 - 3072}, v{vWD}
    s_lshl_b32 s{s_wdo}, s{s_w}, 16
    s_lshl_b32 s{s_t1}, s{s_j}, 7
    s_add_u32 s{s_wdo}, s{s_wdo}, s{s_t1}
    s_lshl_b32 s{s_wm0}, s{s_w}, 12
    {f's_and_b32 s{s_t0}, s{s_j}, 1' if R3 else ''}
    {f's_lshl_b32 s{s_t0}, s{s_t0}, 16' if R3 else ''}
    {f's_add_u32 s{s_wm0}, s{s_wm0}, s{s_t0}' if R3 else ''}
    s_lshl_b32 s{s_pj}, s{s_tok}, 6
    s_add_u32 s{s_pj}, s{s_pj}, s{s_t1}
    s_lshl_b32 s{s_hd}, s{s_j}, 1
    s_lshr_b32 s{s_t0}, s{s_w}, 1
    s_add_u32 s{s_hd}, s{s_hd}, s{s_t0}
    v_mul_u32_u24 v{vt}, 9363, v0
    v_lshrrev_b32 v{vt}, 16, v{vt}
    v_mul_u32_u24 v{vt+1}, {7168 - 7*128}, v{vt}
    v_cmp_gt_u32 vcc, 14, v0
    v_lshl_add_u32 v{vPF}, v0, 7, v{vt+1}
    s_lshr_b32 s{s_t0}, s2, 3
    v_cndmask_b32 v{vPF}, -1, v{vPF}, vcc
    v_and_b32 v{vPF}, 0x7fffff80, v{vPF}
    s_lshl_b32 s{s_t0}, s{s_t0}, 2
    s_add_u32 s{s_t0}, s{s_t0}, s{s_w}
    s_mul_i32 s{s_pk}, s{s_t0}, {2 * 7168}
    s_and_b32 s{s_t0}, s2, 7
    s_mul_i32 s{s_t0}, s{s_t0}, 896
    s_add_u32 s{s_pk}, s{s_pk}, s{s_t0}
    v_and_b32 v{vt}, 15, v0
    v_bfe_u32 v{vt+1}, v0, 4, 1
    v_lshrrev_b32 v{vt+2}, 5, v0
    v_lshrrev_b32 v{vt+3}, 4, v0
    v_lshlrev_b32 v{vMA}, 3, v{vt}
    s_lshl_b32 s{s_t0}, s{s_w}, 13
    s_add_u32 s{s_t0}, s{s_t0}, {XT}
    v_add_u32 v{vXS}, s{s_t0}, v{vL16}
    v_xor_b32 v{vXR}, 0x2000, v{vXS}
    v_lshrrev_b32 v{vt+4}, 1, v{vt}
    v_xor_b32 v{vt+4}, v{vt+4}, v{vt+2}
    v_lshlrev_b32 v{vt+4}, 4, v{vt+4}
    v_lshl_add_u32 v{vt+4}, v{vt}, 7, v{vt+4}
    v_lshl_add_u32 v{vt+4}, v{vt+1}, 3, v{vt+4}
    v_add_u32 v{vXA}, s{s_t0}, v{vt+4}
    s_and_b32 s{s_t1}, s{s_w}, 2
    s_lshl_b32 s{s_t1}, s{s_t1}, 6
    s_add_u32 s{s_t0}, s{s_t0}, s{s_t1}
    s_add_u32 s{s_t0}, s{s_t0}, 4096
    v_lshl_add_u32 v{vRA}, v{vt+2}, 4, s{s_t0}
    v_add_u32 v253, 8192, v{vL16}
    v_lshl_add_u32 v{vPW}, v{vt+3}, 2, v{vMA}
    v_lshlrev_b32 v{vt}, 4, v{vt}
    v_lshl_add_u32 v{vOS}, v{vt+1}, 15, v{vt}
    v_lshl_add_u32 v{vOS}, v{vt+2}, 8, v{vOS}
    s_lshl_b32 s{s_t0}, s{s_w}, 6
    s_add_u32 s{s_t0}, s{s_t0}, {CSQ}
    v_lshl_add_u32 v{vCS}, v{vt+3}, 4, s{s_t0}
    v_lshlrev_b32 v{vGP}, 5, v{vMA}
    s_bitcmp1_b32 s{s_j}, 0
    s_cselect_b32 s{s_t0}, 9, 10
    s_cselect_b32 s{s_t1}, 8, 9
    v_lshl_add_u32 v{vST}, v{vt+1}, s{s_t0}, v{vt}
    v_lshl_add_u32 v{vST}, v{vt+2}, s{s_t1}, v{vST}
    s_mul_i32 s{s_t0}, s{s_w}, 5120
    s_add_u32 s{s_t0}, s{s_t0}, {RED - 5120}
    v_add_u32 v{vST+1}, s{s_t0}, v{vL16}
    v_and_b32 v{vt}, 3, v0
    v_cmp_eq_u32 s[0:1], 1, v{vt}
    v_cmp_eq_u32 s[14:15], 2, v{vt}
    v_cmp_eq_u32 s[74:75], 3, v{vt}
    v_bfe_u32 v{vt}, v0, 2, 2
    v_cmp_eq_u32 vcc, v{vt}, v{vt+3}
    """)
    SMF = o.get('smf', True)
    vIX = 252
    if SMF:
        p(f"""
        v_and_b32 v{vt+5}, 6, v0
        v_cmp_eq_u32 s[{sB}:{sB+1}], 0, v{vt+5}
        """.replace(f"s[{sB}:{sB+1}]", "s[76:77]" if False else "s[58:59]"))
        p(f"""
        v_cndmask_b32 v{SEL}, 0, v{ONES}, s[58:59]
        v_cndmask_b32 v{SEL+1}, 0, v{ONES}, s[58:59]
        v_cmp_eq_u32 s[58:59], 4, v{vt+5}
        v_and_b32 v{vIX}, 1, v0
        v_mul_u32_u24 v{vIX}, 0xaaaa, v{vIX}
        v_cndmask_b32 v{SEL+2}, 0, v{ONES}, s[58:59]
        v_cndmask_b32 v{SEL+3}, 0, v{ONES}, s[58:59]
        v_add_u32 v{vIX}, 0x4444, v{vIX}""")
    smf = lambda x: f"v_smfmac_f32_16x16x64_bf16 {rr('v', Lb(x), 4)}, {rr('v', SEL, 4)}, {rr('v', Pb(x & 1), 8)}, v{vIX}"
    for q in range(EARLY, 4): wkv(q)
    srd(p, sB, pDBG, 256)
    p.add(Raw("; @stamp 0"))
    X0 = lambda G: rr('a', FB + 4 * G, 4)
    W0 = lambda G, e: rr('a', FB + 32 + (G * 2 + e) * 4, 4)
    acc0 = lambda k: rr('v', PA + 4 * k, 4)

    def rd0(q):
        o_ = []
        for G in (2 * q, 2 * q + 1):
            o_.append(Ins(f"ds_read_b128 {X0(G)}, v{vA + (G & 1)} offset:{q * 2048}", rd=[f'P0{q}']))
            o_ += [Ins(f"ds_read_b64_tr_b16 {rr('a', FB + 32 + (G*2+e)*4 + 2*b, 2)}, v{vA+2+e} offset:{8192 + G*2048 + b*256}")
                   for e in range(2) for b in range(2)]
        return o_

    def mf0(q):
        o_ = []
        for G in (2 * q, 2 * q + 1):
            c = "0" if G == 0 else None
            o_ += [mf16(acc0(4), on, X0(G), c), mf16(acc0(5), X0(G), X0(G), c), mf16(acc0(0), W0(G, 0), X0(G), c),
                   mf16(acc0(2), W0(G, 0), on, c), mf16(acc0(1), W0(G, 1), X0(G), c), mf16(acc0(3), W0(G, 1), on, c)]
        return o_
    p.add(rd0(0))
    p.add(Raw("; @fine 6"))
    later = dma1(f"s_mov_b32 m0, s{s_w6}", 'L0') + dma1(f"s_add_u32 m0, s{s_w6}, {SL}", 'Lx')

    def some(k):
        n = 0
        while later and n < k:
            x = later.pop(0); p.add(x); n += x.kind == 'vmem'
    RSA = PA + 24
    for q in range(4):
        rds = rd0(q + 1) if q < 3 else []
        for i, m in enumerate(mf0(q)):
            p(m)
            if rds: p.add(rds.pop(0))
            if i % 4 == 1: some(1)
    assert EARLY < 4
    p.add(Raw(f"""    s_or_b32 s{s_t0}, s2, s{s_w}
    s_cbranch_scc1 {name}_nordy
    buffer_store_dword v{vOne}, v{vZ}, s[{sB}:{sB+3}], 0 offen sc1
{name}_nordy:"""))
    some(99)
    p.add(Raw("; @fine 7"))
    g = PA + 20
    p(f"""
    v_cndmask_b32 v{g}, v{g}, v{g+1}, s[0:1]
    v_cndmask_b32 v{g}, v{g}, v{g+2}, s[14:15]
    v_cndmask_b32 v{g}, v{g}, v{g+3}, s[74:75]
    v_cndmask_b32 v{PA+17}, 0, v{g}, vcc
    s_cmp_eq_u32 s{s_w}, 0
    s_cbranch_scc1 {name}_p0fin
    """)
    red_w = p.segment()
    for k in (4, 0, 2, 1, 3):
        p(f"ds_write_b128 v{vST+1}, {acc0(k)} offset:{k*1024}")
    p("s_waitcnt lgkmcnt(0)")
    p("s_barrier")
    p(f"s_branch {name}_p1")
    fin = p.segment()
    p(f"{name}_p0fin:")
    p(f"""
    s_mov_b32 s{s_t1}, {f32hex(1.0/1024)}""")
    p("s_barrier")
    for k in (4, 0, 2, 1, 3):
        for w in range(3):
            p(f"ds_read_b128 {rr('v', TR + (k*3+w)*4, 4)}, v{vST+1} offset:{5120*(w+1) + k*1024}")

    def red(k):
        a, b = PA + 4 * k, TR + k * 12
        for h in (0, 2):
            p(f"v_pk_add_f32 {rr('v', a+h, 2)}, {rr('v', a+h, 2)}, {rr('v', b+h, 2)}")
            p(f"v_pk_add_f32 {rr('v', b+4+h, 2)}, {rr('v', b+4+h, 2)}, {rr('v', b+8+h, 2)}")
        for h in (0, 2):
            p(f"v_pk_add_f32 {rr('v', a+h, 2)}, {rr('v', a+h, 2)}, {rr('v', b+4+h, 2)}")
    vM, vR = PA + 20, PA + 21
    d = PA + 24
    red(4)
    xsum16_32(p, f"v{PA+17}", f"v{vt}")
    p(f"""
    v_mul_f32 v{vM}, s{s_t1}, v{PA+16}
    v_mul_f32 v{vt}, v{vM}, v{vM}
    v_fma_f32 v{vt}, v{PA+17}, s{s_t1}, -v{vt}
    v_max_f32 v{vt}, 0, v{vt}
    v_add_f32 v{vt}, {f32hex(1e-5)}, v{vt}
    v_rsq_f32 v{vR}, v{vt}
    s_lshr_b32 s{s_t0}, s{s_kv}, 5
    s_lshl_b32 s{s_t0}, s{s_t0}, 12
    s_bfe_u32 s{s_t1}, s{s_kv}, 0x10004
    """)
    mr = rr('v', vM, 2)
    for e in range(2):
        red(e); red(2 + e)
        a = PA + 4 * e
        for r in (0, 2): p(f"v_pk_fma_f32 {rr('v', a+r, 2)}, {rr('v', a+8+r, 2)}, {mr}, {rr('v', a+r, 2)} op_sel_hi:[1,0,1] neg_lo:[0,1,0] neg_hi:[0,1,0]")
        for r in (0, 2): p(f"v_pk_mul_f32 {rr('v', a+r, 2)}, {rr('v', a+r, 2)}, {mr} op_sel:[0,1]")
        p(f"v_cvt_pk_bf16_f32 v{d+2*e}, v{a}, v{a+1}")
        p(f"v_cvt_pk_bf16_f32 v{d+2*e+1}, v{a+2}, v{a+3}")
    p(f"""
    s_bitcmp1_b32 s{s_j}, 0
    s_cbranch_scc1 {name}_p0v
    """)
    fin_k = p.segment()
    p(f"""
    s_lshl_b32 s{s_t1}, s{s_t1}, 8
    s_add_u32 s{s_t0}, s{s_t0}, s{s_t1}
    buffer_store_dwordx4 {rr('v', d, 4)}, v{vST}, s[{sA}:{sA+3}], s{s_t0} offen sc1
    s_lshl_b32 s{s_t0}, s{s_kv}, 3
    s_mov_b64 exec, 0xffff
    buffer_store_dwordx2 {mr}, v{vMA}, s[{sT}:{sT+3}], s{s_t0} offen offset:{ST_MR} sc1
    s_mov_b64 exec, -1
    s_branch {name}_p1""")
    fin_v = p.segment()
    p(f"""
    {name}_p0v:
    v_lshrrev_b32 v{vt+1}, 4, v0
    v_add_u32 v{vt}, v{vt+1}, v{vMA}
    v_lshlrev_b32 v{vt}, 3, v{vt}
    v_add_u32 v{vt}, {RED}, v{vt}
    ds_write_b64 v{vt}, {rr('v', d, 2)}
    ds_write_b64 v{vt}, {rr('v', d+2, 2)} offset:32
    v_lshrrev_b32 v{vt+3}, 2, v0
    v_lshlrev_b32 v{vt+3}, 6, v{vt+3}
    v_and_b32 v{vt+4}, 3, v0
    v_lshl_add_u32 v{vt+3}, v{vt+4}, 3, v{vt+3}
    v_add_u32 v{vt+3}, {RED}, v{vt+3}
    ds_read_b64_tr_b16 {rr('v', PA, 2)}, v{vt+3}
    ds_read_b64_tr_b16 {rr('v', PA+2, 2)}, v{vt+3} offset:32
    s_lshl_b32 s{s_t1}, s{s_t1}, 10
    s_add_u32 s{s_t0}, s{s_t0}, s{s_t1}
    v_permlane32_swap_b32 v{PA}, v{PA+2}
    v_permlane32_swap_b32 v{PA+1}, v{PA+3}
    buffer_store_dwordx4 {rr('v', PA, 4)}, v{vST}, s[{sA}:{sA+3}], s{s_t0} offen offset:2048 sc1
    """)

    rest = p.segment()
    p(f"{name}_p1:")
    p.add(Raw("; @stamp 1"))
    ACC = lambda F, t: rr('v', AB + (F * 2 + t) * 4, 4)
    X1 = lambda s, t, g: rr('a', FB + s * 48 + (t * 2 + g) * 4, 4)
    W1 = lambda s, F, g: rr('a', FB + s * 48 + 16 + (F * 2 + g) * 4, 4)

    def reads1(s, base, va):
        xr = lambda t, g: Ins(f"ds_read_b128 {X1(s, t, g)}, v{va+g} offset:{base + t*2048}")
        wr = lambda F, g, b: Ins(f"ds_read_b64_tr_b16 {rr('a', FB + s*48 + 16 + (F*2+g)*4 + 2*b, 2)}, v{va+2+F} offset:{base + 2*g*6144 + 4096 + b*512}")
        return [wr(0, 0, 0), wr(0, 0, 1), wr(0, 1, 0), wr(0, 1, 1), xr(0, 0), xr(0, 1), xr(1, 0), xr(1, 1)] + \
               [wr(F, g, b) for F in range(1, 4) for g in range(2) for b in range(2)]
    p(f"""
    s_lshl_b32 s{s_t0}, s2, 2
    s_add_u32 s{s_t0}, s{s_t0}, s{s_w}
    s_lshl_b32 s{s_t0}, s{s_t0}, 10
    s_add_u32 s{s_t0}, s{s_t0}, {ST_FO}
    buffer_store_dwordx4 {rr('v', AB, 4)}, v{vL16}, s[{sT}:{sT+3}], s{s_t0} offen sc1""")
    p.add(Raw(f"""    s_cmp_ge_u32 s2, 2
    s_cbranch_scc1 {name}_nogz
    s_sub_u32 s{s_t0}, s{s_t0}, {ST_FO - ST_RS2}
    buffer_store_dwordx4 {rr('v', AB, 4)}, v{vL16}, s[{sT}:{sT+3}], s{s_t0} offen sc1
{name}_nogz:"""))
    rdy = f"buffer_load_dword v{vt+5}, v{vZ}, s[{sB}:{sB+3}], 0 offen sc1"
    LA = o.get('la1', 4)
    for u in range(2, LA):
        if u == 2: p.add(Raw(f"    s_cmp_lg_u32 s{s_w}, 0\n    s_cbranch_scc1 {name}_nor\n    {rdy}\n{name}_nor:"))
        p.add(dma1(f"s_add_u32 m0, s{s_w6}, {u*SL}", 'Lx'))
    for i in range(Ob(2), Ob(2) + 32, 2):
        p(f"v_pk_mov_b32 {rr('v', i, 2)}, 0, 0")
    p.add(Raw("; @fine 8"))
    p("s_barrier", rd=['L0'])
    p.add(Raw("; @fine 9"))
    p.add(reads1(0, 0, vB))
    for i in range(6):
        p(f"v_mov_b32 v{vA+i}, v{vB+i}")
    p(f"""
    s_mov_b32 s{s_pb}, {2 * SL}
    s_add_u32 s{s_dm}, s{s_w6}, {2 * 2 * SL}
    s_and_b32 s{s_kv}, s2, 15
    s_lshl_b32 s{s_kv}, s{s_kv}, 8
    s_add_u32 s{s_kv}, s{s_kv}, {ST_KVC}
    s_mov_b32 s{s_spin}, {SPIN}
    s_lshl_b32 s{s_t2}, s{s_w}, 8
    s_add_u32 s{s_t2}, s{s_t2}, {10 - LA}
    s_mov_b32 s{s_cnt}, {10 - LA}""")

    def stage1(s, head, fill, rds):
        mf = [mf16(rr('v', CSA, 4), W1(s, 0, g), on) for g in range(2)]
        for F in range(4):
            mf += [mf16(ACC(F, t), W1(s, F, g), X1(s, t, g)) for t, g in zz(F, 2, 2, ZZ)]
        p.add(head)
        rds = list(rds)
        for i, m in enumerate(mf):
            if 'p1nomf' not in dbg: p(m)
            for _ in range(2 if i in (0, 1) else 1):
                if rds:
                    x = rds.pop(0)
                    if 'p1nods' not in dbg: p.add(x)
            p.add([x for x in fill.get(i, []) if not ('p1nodma' in dbg and getattr(x, 'kind', '') == 'vmem')])

    def one_per_gap(lst, start):
        return {start + i: [x] for i, x in enumerate(lst)}

    def spaced(lst):
        pos = [0, 1, 2, 5, 8, 11, 12, 13, 14, 17, 17]
        out = {}
        for k, x in zip(pos, lst): out.setdefault(k, []).append(x)
        return out
    upd = lambda: {3: [Ins(f"v_add_u32 v{vA+2}, s{s_pb}, v{vB+2}")], 6: [Ins(f"v_add_u32 v{vA}, s{s_pb}, v{vB}")],
                   7: [Ins(f"v_add_u32 v{vA+1}, s{s_pb}, v{vB+1}")], 10: [Ins(f"v_add_u32 v{vA+3}, s{s_pb}, v{vB+3}")],
                   15: [Ins(f"v_add_u32 v{vA+4}, s{s_pb}, v{vB+4}")], 17: [Ins(f"v_add_u32 v{vA+5}, s{s_pb}, v{vB+5}")]}
    nextpb = lambda: [Ins(f"s_add_u32 s{s_pb}, s{s_pb}, {2*SL}"), Ins(f"s_cmp_eq_u32 s{s_pb}, {6*SL}"), Ins(f"s_cselect_b32 s{s_pb}, 0, s{s_pb}")]

    def merge(*fs):
        out = {}
        for f in fs:
            for k, v in f.items(): out.setdefault(k, []).extend(v)
        return out
    sync = lambda n: [Ins(f"s_waitcnt vmcnt({n}) lgkmcnt(12)"), Ins("s_barrier")]
    s_nx = s_t0
    p(f"s_mov_b32 s{s_nx}, s{s_w6}")
    p.add(Raw("; @fine 10"))
    p.begin_loop(f"{name}_p1loop", 10 - LA, align=False)
    stage1(0, sync(6 * LA - 12), merge(spaced(dma1(f"s_add_u32 m0, s{s_dm}, {SL * (LA - 4)}", 'Lx')[:-1]), upd(), {16: [Ins(f"s_and_b32 s{s_xoff}, s{s_xoff}, 2047")]}), reads1(1, SL, vA))
    arr = Raw(f"""    s_cmp_lg_u32 s{s_cnt}, s{s_t2}
    s_cbranch_scc1 {name}_noarr
{name}_rchk:
    v_readfirstlane_b32 s{s_t1}, v{vt+5}
    s_sub_u32 s{s_spin}, s{s_spin}, 1
    s_cselect_b32 s{s_t1}, 1, s{s_t1}
    s_cmp_lg_u32 s{s_t1}, 0
    s_cbranch_scc1 {name}_arr
    {rdy}
    s_waitcnt vmcnt(0)
    s_branch {name}_rchk
{name}_arr:
    buffer_atomic_add v{vOne}, v{vZ}, s[{sT}:{sT+3}], s{s_kv} offen
{name}_noarr:""")
    stage1(1, sync(6 * LA - 12) + [arr], merge({3: [Ins(f"s_mov_b32 s{s_dm}, s{s_nx}")], 4: [Ins(f"s_add_u32 s{s_nx}, s{s_pb}, s{s_w6}")],
                                        6: nextpb()[:1], 7: nextpb()[1:], 9: [Ins(f"s_sub_u32 s{s_cnt}, s{s_cnt}, 1")],
                                        15: [Ins(f"s_and_b32 s{s_xoff}, s{s_xoff}, 2047")], 16: [Ins(f"s_cmp_lg_u32 s{s_cnt}, 0")]},
                                       spaced(dma1(f"s_mov_b32 m0, s{s_nx}" if LA == 5 else f"s_add_u32 m0, s{s_dm}, {SL}", 'Lx')[:-1])), reads1(0, 0, vA))
    p(f"s_cbranch_scc1 {name}_p1loop")
    p.end_loop()
    p.add(Raw("; @fine 11"))
    Kf = lambda b, m: rr('a', (b % NR) * 8 + m * 4, 4)
    Vf = lambda b, m: rr('a', 64 + (b % NR) * 8 + m * 4, 4)
    vMR = 84
    kld = lambda b, m: Ins(f"buffer_load_dwordx4 {Kf(b, m)}, v{vL16}, s[{sA}:{sA+3}], s{s_ko} offen offset:{m*1024} {KVSC}")
    vld = lambda b, m: Ins(f"buffer_load_dwordx4 {Vf(b, m)}, v{vL16}, s[{sA}:{sA+3}], s{s_vo} offen offset:{2048 + m*1024} {KVSC}")

    vK2 = 253
    kld2 = lambda b, m: Ins(f"buffer_load_dwordx4 {Kf(b, m)}, v{vK2}, s[{sA}:{sA+3}], s{s_vo} offen offset:{m*1024} {KVSC}")

    def kv_list():
        o_ = [Ins(f"s_mov_b32 s{s_ko}, 0"), Ins(f"s_mov_b32 s{s_vo}, 0")]
        for b in range(NR):
            o_ += [kld(b, 0), kld(b, 1), Ins(f"s_add_u32 s{s_ko}, s{s_ko}, 4096")]
            if b < NR - 2:
                o_ += [vld(b, 0), vld(b, 1), Ins(f"s_add_u32 s{s_vo}, s{s_vo}, 4096")]
        return o_

    def fill_kv():
        p.add(kv_list())
    gl = f"buffer_load_dword v{vt+5}, v{vGP}, s[{sT}:{sT+3}], s{s_kv} offen sc1"
    if LA == 5: stage1(0, sync(18), merge(spaced(dma1(f"s_add_u32 m0, s{s_dm}, {SL}", 'Lx')[:-1]), upd(), {16: [Ins(f"s_and_b32 s{s_xoff}, s{s_xoff}, 2047")]}), reads1(1, SL, vA))
    gp = Raw(f"""    s_branch {name}_gchk
{name}_gpoll:
    {gl}
    s_waitcnt vmcnt(0)
{name}_gchk:
    v_cmp_gt_u32 vcc, 16, v{vt+5}
    s_sub_u32 s{s_spin}, s{s_spin}, 1
    s_cbranch_scc1 {name}_gdone
    s_cbranch_vccnz {name}_gpoll
{name}_gdone:""")
    todo = [Ins(f"buffer_load_dwordx2 {rr('v', vMR+2*t, 2)}, v{vMA}, s[{sT}:{sT+3}], s{s_t0} offen offset:{ST_MR + 128*t} sc1") for t in range(2)]
    kv4 = lambda b, n: Ins(f"buffer_load_dwordx4 {(Kf, Vf)[n >> 1](b % 4, n & 1)}, v{vL16}, s[{sA}:{sA+3}], s{s_vo} offen offset:{n*1024} {KVSC}")
    todo += [Ins(f"s_and_b32 s{s_vo}, s{s_w}, 1"), Ins(f"s_lshl_b32 s{s_vo}, s{s_vo}, 17"), Ins(f"s_add_u32 s{sA+2}, s{s_vo}, 0x20000")]
    for b in range(3):
        todo += [kv4(b, n) for n in range(4)] + [Ins(f"s_add_u32 s{s_vo}, s{s_vo}, 4096")]
    todo.append(kv4(3, 0))

    def take(k):
        o_, n = [], 0
        while todo and n < k:
            x = todo.pop(0); o_.append(x); n += x.kind == 'vmem'
        return o_
    PS = o.get('pstage', 13)
    for u in range(16 - LA, 16):
        head = sync(6 * (14 - u)) if u < PS else [Raw("; @fine 12")] + sync(0) + [Raw("; @fine 13"), gp, Raw("; @fine 14")] if u == PS else []
        fill = {11: one_per_gap(nextpb(), 8), 12: upd(), 15: {10: [Ins(f"ds_write_b128 v{vCS}, {rr('v', CSA, 4)}")]}}.get(u, {})
        if u == PS - 1:
            fill = merge(fill, {2: [Ins(f"s_movk_i32 s{s_kv}, {ST_KVC}")], 4: [Ins(gl)], 5: [Ins(f"s_mov_b32 s{s_spin}, {SPIN}")],
                                11: [Ins(f"s_lshl_b32 s{s_t0}, s{s_tok}, 3")]})
        if u >= PS:
            fill = merge(fill, {i: take(1) for i in range(2, 18, 3 if PS < 14 else 2)})
        stage1(u & 1, head, fill, reads1(1 - (u & 1), 0 if u & 1 else SL, vA) if u < 15 else [])
    p.add(Raw("; @stamp 2"))

    p("s_waitcnt lgkmcnt(0)")
    p("s_barrier")
    CS = 88
    for f in range(4):
        if f: p(f"v_xor_b32 v{vt+f}, {f*64}, v{vCS}")
        p(f"ds_read_b128 {rr('v', CS + 4*f, 4)}, v{vt+f if f else vCS}")
    QP = 112
    for t in range(2):
        p(f"v_accvgpr_write_b32 a{aMEAN+t}, v{vMR+2*t}")
        p(f"v_mul_f32 v{vMR+2*t+1}, {f32hex(LOG2E * DH ** -0.5)}, v{vMR+2*t+1}")
    p(f"s_bitcmp1_b32 s{s_w}, 0\ns_cselect_b64 vcc, -1, 0")
    for hd in range(2):
        for t in range(2):
            mr = rr('v', vMR + 2 * t, 2)
            for f in range(2):
                F = 2 * hd + f
                a = AB + (F * 2 + t) * 4
                dq = QP + hd * 8 + t * 4 + 2 * f
                for r in (0, 2): p(f"v_pk_fma_f32 {rr('v', a+r, 2)}, {rr('v', CS+4*F+r, 2)}, {mr}, {rr('v', a+r, 2)} op_sel_hi:[1,0,1] neg_lo:[0,1,0] neg_hi:[0,1,0]")
                for r in (0, 2): p(f"v_pk_mul_f32 {rr('v', a+r, 2)}, {rr('v', a+r, 2)}, {mr} op_sel:[0,1]")
                p(f"v_cvt_pk_bf16_f32 v{dq}, v{a}, v{a+1}")
                p(f"v_cvt_pk_bf16_f32 v{dq+1}, v{a+2}, v{a+3}")
                p.add(take(1))
        for i in range(8 * hd, 8 * hd + 8):
            p(f"v_cndmask_b32 v{16+i}, v{QP+i}, v{QP+(i^2)}, vcc")
        p.add(take(1))
        for i in range(4):
            p(f"v_permlane16_swap_b32 v{16+hd*8+i}, v{16+hd*8+4+i}")
        for m in range(2):
            p(f"ds_write_b128 v{vXS}, {Q(hd, m)} offset:{(hd*2+m)*1024}")
    for i in range(Lb(2), Lb(2) + 8, 2):
        p(f"v_pk_mov_b32 {rr('v', i, 2)}, 0, 0")
    p("s_waitcnt lgkmcnt(0)")
    p("s_barrier")
    for n in range(4):
        p(f"ds_read_b128 {Q(2 + (n >> 1), n & 1)}, v{vXR} offset:{n*1024}")
    if 'Q' in dbg:
        srd(p, sB, pWS, QF[1], bias=QF[0])
        p(f"s_lshl_b32 s{s_t0}, s{s_hd}, 17\ns_lshl_b32 s{s_t1}, s{s_tok}, 6\ns_add_u32 s{s_t0}, s{s_t0}, s{s_t1}\ns_xor_b32 s{s_t1}, s{s_t0}, 0x20000")
        for x in range(2):
            for m in range(2):
                p(f"buffer_store_dwordx4 {Q(x, m)}, v{vL16}, s[{sB}:{sB+3}], s{s_t1 if x else s_t0} offen offset:{m*1024}")
    s_safe, s_fo = 65, 61
    TO = {0: (pWG, pWU, pWD), 1: (pWD, pWG, pWU)}[o.get('torder', 0)]
    SENT = o.get('sent', False)
    p(f"""
    s_mov_b64 s[{sD}:{sD+1}], s[{TO[0]}:{TO[0]+1}]
    s_mov_b32 s{sD+2}, {D * FF * 2 if o.get('prefetch', True) else 0}
    s_mov_b64 s[0:1], s[{TO[0]}:{TO[0]+1}]
    s_mov_b64 s[14:15], s[{TO[1]}:{TO[1]+1}]
    s_mov_b32 s{s_po}, {D * FF * 2}
    s_sub_u32 s{s_wdo}, s{s_wdo}, {128 * 2048}
    s_mov_b32 s{s_safe}, 0
    """)
    srd(p, sB, pWS, OF[1], bias=OF[0])

    def half(x, Kb, Vb, C, extra, tq=None, tv=None):
        y = 1 - x
        if tq is None: tq = tv = y
        Sx, Px, Sy, Py = Sb(x), Pb(x), rr('v', Sb(y), 16), Pb(y)
        valu = []
        for i in range(8):
            valu.append(f"v_exp_f32 v{Sx+2*i}, v{Sx+2*i}")
            valu.append(f"v_exp_f32 v{Sx+2*i+1}, v{Sx+2*i+1}")
            if i > 0:
                valu.append(f"v_cvt_pk_bf16_f32 v{Px+i-1}, v{Sx+2*i-2}, v{Sx+2*i-1}")
        valu.append(f"v_cvt_pk_bf16_f32 v{Px+7}, v{Sx+14}, v{Sx+15}")
        Oy, Ly = rr('v', Ob(tv), 16), rr('v', Lb(tv), 4)
        sel = rr('v', SEL, 4)
        mf = [mf32(Sy, Kf(Kb, 0), Q(tq, 0), C(tq)), mf32(Sy, Kf(Kb, 1), Q(tq, 1)),
              mf32(Oy, Vf(Vb, 0), rr('v', Py, 4)), mf16(Ly, sel, rr('v', Py, 4)),
              mf32(Oy, Vf(Vb, 1), rr('v', Py + 4, 4)), mf16(Ly, sel, rr('v', Py + 4, 4))]
        pos = (0, 4, 8, 12, 15, 19)
        if SMF:
            mf = [mf[0], mf[1], mf[2], mf[4], smf(tv)]
            pos = o.get('apos', (0, 5, 10, 15, 20))
        for i, v in enumerate(valu):
            if i in pos:
                k = pos.index(i)
                p(mf[k])
                p.add(extra.get(k, []))
            p(v)

    def attention(tag, C, side, pre):
        p(mf32(rr('v', Sb(0), 16), Kf(0, 0), Q(0, 0), C(0)))
        p(mf32(rr('v', Sb(0), 16), Kf(0, 1), Q(0, 1)))
        p(f"s_mov_b32 s{s_cnt}, {64 // NR}")
        p.add(pre)
        p.begin_loop(f"{name}_{tag}_loop", 64 // NR)
        for kt in range(NR):
            e0 = {0: [vld(kt + NR - 2, 0)], 1: [vld(kt + NR - 2, 1)],
                  4: [Ins(f"wait {Kf(kt+1, 0)}, {Kf(kt+1, 1)}, {Vf(kt, 0)}, {Vf(kt, 1)}")]}
            e1 = {0: [kld2(kt, 0)], 1: [kld2(kt, 1)], 2: [Ins(f"s_add_u32 s{s_vo}, s{s_vo}, 4096")]}
            if kt == NR - 1:
                e1[3] = [Ins(f"s_sub_u32 s{s_cnt}, s{s_cnt}, 1")]
                e1[4] = [Ins(f"s_cmp_lg_u32 s{s_cnt}, 0")]
            half(0, kt, kt - 1, C, e0)
            half(1, kt + 1, kt, C, e1)
        p(f"s_cbranch_scc1 {name}_{tag}_loop")
        p.end_loop()
        O1, L1, sel = rr('v', Ob(1), 16), rr('v', Lb(1), 4), rr('v', SEL, 4)
        p(mf32(O1, Vf(NR - 1, 0), rr('v', Pb(1), 4)))
        if not SMF: p(mf16(L1, sel, rr('v', Pb(1), 4)))
        p(mf32(O1, Vf(NR - 1, 1), rr('v', Pb(1) + 4, 4)))
        p(smf(1) if SMF else mf16(L1, sel, rr('v', Pb(1) + 4, 4)))

    def attention4(pre):
        T = (2, 3, 0, 1)
        LS = o.get('lslot', 4)
        p(mf32(rr('v', Sb(0), 16), Kf(0, 0), Q(2, 0), "0"))
        p(mf32(rr('v', Sb(0), 16), Kf(0, 1), Q(2, 1)))
        p("s_waitcnt lgkmcnt(0)")
        p("s_barrier")
        p(f"s_mov_b32 s{s_cnt}, 8")
        p.add(pre)
        wdma = lambda i: Ins(f"buffer_load_dwordx4 v{vWD+i}, s[{sE}:{sE+3}], s{s_wdo} offen offset:{i*1024} lds", awr=['LW'], nowaw=True)
        tch = lambda: Ins(f"buffer_load_dword v{vDum}, v{vPF}, s[{sD}:{sD+3}], s{s_po} offen", nowaw=True)
        nxt = lambda: Ins(f"s_add_u32 s{s_po}, s{s_po}, {256 * 7168}")
        side = {0: {1: [tch()], 2: [nxt()]}, 1: {1: [Ins(f"s_and_b32 m0, s{s_wm0}, 0x1ffff")], 2: [Ins(f"s_add_u32 s{s_wm0}, s{s_wm0}, 16384")]},
                2: {1: [Ins(f"s_add_u32 s{s_wdo}, s{s_wdo}, {128 * 2048}")]},
                5: {1: [wdma(0)]}, 7: {1: [wdma(1)]}, 8: {1: [tch()], 2: [nxt()]}, 9: {1: [wdma(2)]}, 11: {1: [wdma(3)]},
                12: {0: [Ins(f"s_bitcmp1_b32 0x150, s{s_cnt}")], 1: [Ins(f"s_cselect_b32 s{s_po}, s{s_pk}, s{s_po}")],
                     2: [Ins(f"s_cselect_b64 s[{sD}:{sD+1}], s[0:1], s[{sD}:{sD+1}]")]},
                13: {0: [Ins("s_cselect_b64 s[0:1], s[14:15], s[0:1]")], 1: [Ins(f"s_cselect_b64 s[14:15], s[{TO[2]}:{TO[2]+1}], s[14:15]")]},
                14: {1: [Ins(f"s_bitcmp1_b32 0x10c, s{s_cnt}")], 2: [Raw(f"    s_cbranch_scc1 {name}_rsx\n{name}_rsxback:")]},
                15: {1: [Ins(f"s_sub_u32 s{s_cnt}, s{s_cnt}, 1")], 2: [Ins(f"s_cmp_lg_u32 s{s_cnt}, 0")]}}
        p.begin_loop(f"{name}_fast_loop", 8)
        for kt in range(4):
            for i in range(4):
                e = dict(side.get(kt * 4 + i, {}))
                e[LS] = [kv4(kt + 3 + (i == 3), (i + 1) & 3)]
                if i == 3: e[0] = [Ins(f"s_add_u32 s{s_vo}, s{s_vo}, 4096")]
                if i == 2: e[7 - LS] = [Ins(f"wait {Kf((kt+1) % 4, 0)}, {Kf((kt+1) % 4, 1)}")]
                if i == 0: e[7 - LS] = [Ins(f"wait {Vf(kt, 0)}, {Vf(kt, 1)}")]
                half(i & 1, (kt + (i == 3)) % 4, (kt - (i == 0)) % 4, lambda y: "0", e, T[(i + 1) % 4], T[(i - 1) % 4])
        p(f"s_cbranch_scc1 {name}_fast_loop")
        p.end_loop()
        p.add(Raw("; @stamp 4"))
        O1 = rr('v', Ob(1), 16)
        p(mf32(O1, Vf(3, 0), rr('v', Pb(1), 4)))
        p(mf32(O1, Vf(3, 1), rr('v', Pb(1) + 4, 4)))
        p(smf(1))
        B = Ob(2)
        p("s_waitcnt lgkmcnt(0)")
        for n in range(7):
            p(f"ds_write_b128 v{vXS}, {rr('v', B + 4*n, 4)} offset:{n*1024}")
        p(f"""
        v_add_f32 v{Lb(2)}, v{Lb(2)}, v{Lb(2)+1}
        v_add_f32 v{Lb(3)}, v{Lb(3)}, v{Lb(3)+1}
        v_cvt_pk_bf16_f32 v{B+30}, v{B+30}, v{B+31}
        v_permlane32_swap_b32 v{Lb(2)}, v{Lb(3)}
        v_mov_b32 v{B+31}, v{Lb(2)}
        ds_write_b128 v{vXS}, {rr('v', B + 28, 4)} offset:7168
        s_waitcnt lgkmcnt(0)""")
        p("s_barrier", rd=['LW'])
        for n in (7, 0, 1, 2, 3, 4, 5, 6):
            p(f"ds_read_b128 {rr('v', B + 4*n, 4)}, v{vXR} offset:{n*1024}")
        p(f"""
        v_mov_b32 v{vt}, v{B+31}
        v_mov_b32 v{vt+1}, v{B+31}
        v_and_b32 v{B+31}, 0xffff0000, v{B+30}
        v_lshlrev_b32 v{B+30}, 16, v{B+30}
        v_permlane32_swap_b32 v{vt}, v{vt+1}
        v_add_f32 v{Lb(0)}, v{Lb(0)}, v{vt}
        v_add_f32 v{Lb(1)}, v{Lb(1)}, v{vt+1}""")
        for i in range(0, 32, 2):
            p(f"v_pk_add_f32 {rr('v', Ob(0)+i, 2)}, {rr('v', Ob(0)+i, 2)}, {rr('v', B+i, 2)}")

    pre = take(99)
    pre += [Ins(x.strip()) for x in f"""s_lshl_b32 s{s_fo}, s2, 2
    s_add_u32 s{s_fo}, s{s_fo}, s{s_w}
    s_lshl_b32 s{s_t0}, s{s_fo}, 11
    buffer_load_dwordx4 {rr('v', vRS, 4)}, v{vL16}, s[{sE}:{sE+3}], s{s_t0} offen
    buffer_load_dwordx4 {rr('v', vRS+4, 4)}, v{vL16}, s[{sE}:{sE+3}], s{s_t0} offen offset:1024""".split("\n")]
    if o.get('ipf', True):
        pre += [Ins(x.strip()) for x in f"""s_getpc_b64 s[74:75]
        s_lshr_b32 s{s_t0}, s2, 3
        s_lshl_b32 s{s_t0}, s{s_t0}, 2
        s_add_u32 s{s_t0}, s{s_t0}, s{s_w}
        s_mul_i32 s{s_t0}, s{s_t0}, 384
        s_min_u32 s{s_t0}, s{s_t0}, {name}_end-{name}_fast_loop
        v_min_u32 v4, 2, v0
        v_lshl_add_u32 v4, v4, 7, s{s_t0}""".split("\n")]
        pre.append(Ins(f"global_load_dword v{vDum}, v4, s[74:75]", nowaw=True))
    if len(pre) < 12: pre.append(Ins(f"s_nop {11 - len(pre)}"))
    pre.append(Raw("; @stamp 3"))
    attention4(pre)
    p(f"""
    {name}_fin:
    v_add_f32 v{Lb(0)}, v{Lb(0)}, v{Lb(0)+1}
    v_rcp_f32 v{Lb(0)+2}, v{Lb(0)}
    s_lshl_b32 s{s_t0}, s{s_tok}, 1
    s_add_u32 s{s_t0}, s{s_t0}, s{s_hd}
    s_lshl_b32 s{s_t0}, s{s_t0}, 10
    s_xor_b32 s{s_t1}, s{s_t0}, 1024
    """)
    for x in range(2):
        if x: p(f"v_add_f32 v{Lb(1)}, v{Lb(1)}, v{Lb(1)+1}\nv_rcp_f32 v{Lb(1)+2}, v{Lb(1)}")
        for a in range(2):
            for i in range(8 * a, 8 * a + 8, 2):
                p(f"v_pk_mul_f32 {rr('v', Ob(x)+i, 2)}, {rr('v', Ob(x)+i, 2)}, {rr('v', Lb(x)+2, 2)} op_sel_hi:[1,0]")
            for i in range(4 * a, 4 * a + 4):
                p(f"v_cvt_pk_bf16_f32 v{Pb(x)+i}, v{Ob(x)+2*i}, v{Ob(x)+2*i+1}")
            p(f"buffer_store_dwordx4 {rr('v', Pb(x)+4*a, 4)}, v{vOS}, s[{sB}:{sB+3}], s{s_t1 if x else s_t0} offen offset:{a*512} sc1")
    p(f"v_pk_mul_f32 v[{vt+2}:{vt+3}], {rr('v', Ob(0), 2)}, {rr('v', RSV, 2)}")
    p(f"v_pk_mul_f32 v[{vt+4}:{vt+5}], {rr('v', Ob(0)+2, 2)}, {rr('v', RSV+2, 2)}")
    for i in range(2, 16):
        k = vt + 2 + 2 * (i & 1)
        p(f"v_pk_fma_f32 v[{k}:{k+1}], {rr('v', Ob(0)+2*i, 2)}, {rr('v', RSV+2*i, 2)}, v[{k}:{k+1}]")
    p(f"""
    v_pk_add_f32 v[{vt+2}:{vt+3}], v[{vt+2}:{vt+3}], v[{vt+4}:{vt+5}]
    v_add_f32 v{vt+2}, v{vt+2}, v{vt+3}
    v_mov_b32 v{vt+3}, v{vt+2}
    s_add_u32 s{s_t0}, s{s_pj}, {ST_MP}
    s_mov_b32 s{s_t1}, {f32hex(2.0**-40)}
    v_permlane32_swap_b32 v{vt+2}, v{vt+3}
    v_add_f32 v{vt+2}, v{vt+2}, v{vt+3}
    s_mov_b32 exec_hi, 0
    buffer_store_dword v{vt+2}, v{vPW}, s[{sT}:{sT+3}], s{s_t0} offen sc1
    s_mov_b32 exec_hi, -1
    """)
    p(f"""
    v_cmp_nle_f32 s[0:1], s{s_t1}, v{Lb(0)}
    v_cmp_nle_f32 s[14:15], s{s_t1}, v{Lb(1)}
    s_mov_b32 s{s_t1}, {f32hex(2.0**40)}
    v_cmp_nge_f32 s[74:75], s{s_t1}, v{Lb(0)}
    v_cmp_nge_f32 vcc, s{s_t1}, v{Lb(1)}
    s_or_b64 s[0:1], s[0:1], s[14:15]
    s_movk_i32 s{s_t1}, 0x207
    v_cmp_class_f32 s[14:15], v{vt+2}, s{s_t1}
    s_or_b64 s[0:1], s[0:1], s[74:75]
    s_or_b64 s[0:1], s[0:1], vcc
    s_or_b64 s[0:1], s[0:1], s[14:15]
    s_cselect_b32 s{s_t1}, 1, 0
    s_cmp_gt_u32 s{s_t1}, s{s_safe}
    {'' if 'nocheck' in dbg else f's_cbranch_scc1 {name}_slow'}
    """)

    SPLIT = True
    s_c, s_xo, s_xe, s_xend = 61, 62, 63, 64
    vX1, vA3 = 12, 16
    WB, AB3 = 40, 104
    vPT = 20
    LEAD = 12
    ACS = lambda F, t: rr('v', AB3 + (F * 2 + t) * 4, 4)

    class Shape:
        def __init__(self, NF, off):
            self.NF, self.NG, self.off = NF, 16 // NF, off
        def X(self, slot, t, G): return rr('a', slot * 8 * self.NG + (t * self.NG + G) * 4, 4)
        def Xall(self, slot): return ", ".join(self.X(slot, t, G) for t in range(2) for G in range(self.NG))
        def W(self, F, G): return rr('v', WB + (F * self.NG + G) * 4, 4)
        def rd(self, slot, n):
            F, G, b = n // (2 * self.NG), (n >> 1) % self.NG, n & 1
            return Ins(f"ds_read_b64_tr_b16 {rr('v', WB + 2*n, 2)}, v{vA3 + (F & 3)} offset:{slot*16384 + self.off(F, G, b)}")
        def xld(self, slot):
            o_ = [Ins(f"s_cmp_lt_u32 s{s_xo}, s{s_xend}"), Ins(f"s_cselect_b32 s{s_xe}, s{s_xo}, s{sB+2}")]
            for t in range(2):
                for G in range(self.NG):
                    o_.append(Ins(f"buffer_load_dwordx4 {self.X(slot, t, G)}, v{vX1 if t else vL16}, s[{sB}:{sB+3}], s{s_xe} offen offset:{G*1024} sc1"))
            o_.append(Ins(f"s_add_u32 s{s_xo}, s{s_xo}, {self.NG * 1024}"))
            return o_
    sh4 = Shape(4, lambda F, G, b: G * 4096 + b * 1024)
    sh8 = Shape(8, lambda F, G, b: G * 8192 + (F >> 2) * 2048 + b * 1024)

    def wread_addr(blk):
        p(f"""
        v_bfe_u32 v{vt}, v0, 2, 3
        v_lshrrev_b32 v{vt+1}, 1, v{vt}
        v_lshlrev_b32 v{vt+1}, 5, v{vt+1}
        v_lshl_add_u32 v{vt}, v{vt}, 7, v{vt+1}
        v_lshrrev_b32 v{vt+1}, 5, v0
        v_lshl_add_u32 v{vt}, v{vt+1}, {blk}, v{vt}
        v_and_b32 v{vt+1}, 3, v0
        v_lshl_add_u32 v{vA3}, v{vt+1}, 3, v{vt}
        v_xor_b32 v{vA3+1}, 32, v{vA3}
        v_xor_b32 v{vA3+2}, 64, v{vA3}
        v_xor_b32 v{vA3+3}, 0x60, v{vA3}""")

    def table_load(aq, soff, blk=0):
        for i in range(4):
            p(f"buffer_load_dwordx2 {rr('v', aq + 2*i, 2)}, v{vPT}, s[{sT}:{sT+3}], s{soff} offen offset:{blk*2048 + i*128} sc1")

    def table_sum(aq, dst):
        p(f"""
        v_pk_add_f32 {rr('v', aq, 2)}, {rr('v', aq, 2)}, {rr('v', aq+2, 2)}
        v_pk_add_f32 {rr('v', aq+4, 2)}, {rr('v', aq+4, 2)}, {rr('v', aq+6, 2)}
        v_pk_add_f32 {rr('v', dst, 2)}, {rr('v', aq, 2)}, {rr('v', aq+4, 2)}""")
        for sw in (16, 32):
            p(f"""
            v_pk_mov_b32 {rr('v', aq, 2)}, {rr('v', dst, 2)}, {rr('v', dst, 2)} op_sel:[0,1]
            v_permlane{sw}_swap_b32 v{dst}, v{aq}
            v_permlane{sw}_swap_b32 v{dst+1}, v{aq+1}
            v_pk_add_f32 {rr('v', dst, 2)}, {rr('v', dst, 2)}, {rr('v', aq, 2)}""")

    def rstd_from(aq, dst):
        table_sum(aq, dst)
        for t in range(2):
            p(f"v_fma_f32 v{dst+t}, v{dst+t}, s{s_t1}, v{vt+4}")
        for t in range(2):
            p(f"v_rsq_f32 v{dst+t}, v{dst+t}")

    p(f"""
    s_add_u32 s{s_xe}, s{s_pj}, {ST_FO}
    s_andn2_b32 s{s_c}, s{s_xe}, 2047
    s_lshl_b32 s{s_xo}, s{s_tok}, 11
    s_lshl_b32 s{s_xend}, s{s_tok}, 6
    s_add_u32 s{s_xend}, s{s_xend}, {ST_MP}""")
    if R3:
        p(f"s_and_b32 s{s_t0}, s{s_j}, 1\ns_lshl_b32 s{s_t0}, s{s_t0}, 14\ns_add_u32 s{s_xo}, s{s_xo}, s{s_t0}")
    vE = 136
    p(f"""
    v_add_u32 v{vX1}, 0x8000, v{vL16}
    v_and_b32 v{vt+4}, 15, v0
    v_lshlrev_b32 v{vPT}, 3, v{vt+4}
    v_lshrrev_b32 v{vt+5}, 4, v0
    v_lshl_add_u32 v{vPT}, v{vt+5}, 9, v{vPT}""")
    wread_addr(11)
    for t in range(2):
        for F in range(4):
            a = AB3 + (F * 2 + t) * 4
            e = 40 + t * 16 + F * 2
            p(f"""
            v_lshlrev_b32 v{a}, 16, v{e}
            v_and_b32 v{a+1}, 0xffff0000, v{e}
            v_lshlrev_b32 v{a+2}, 16, v{e+1}
            v_and_b32 v{a+3}, 0xffff0000, v{e+1}""")
    def rd3(n):
        q, F, g, b = n >> 4, (n >> 2) & 3, (n >> 1) & 1, n & 1
        return Ins(f"ds_read_b64_tr_b16 {rr('v', WB + 2 * (n % 32), 2)}, v{vA3 + F} offset:{(q & 7) * 8192 + g * 4096 + b * 1024}")
    for n in range(LEAD):
        p.add(rd3(n))
    OM = o.get('omode', 2)
    if OM == 2:
        p(f"""
        v_lshlrev_b32 v{vt}, 10, v0
        s_and_b32 s{s_t0}, s{s_j}, 8
        s_lshl_b32 s{s_t0}, s{s_t0}, 7
        s_mov_b64 exec, 3
        s_waitcnt vmcnt(0)
        buffer_atomic_add v{vOne}, v{vt}, s[{sT}:{sT+3}], s{s_c} offen
        s_mov_b64 exec, -1
        s_add_u32 s{s_c}, s{s_c}, s{s_t0}""")
    elif OM == 3:
        p(f"""
        s_andn2_b32 s{s_c}, s{s_c}, 0x1800
        s_waitcnt vmcnt(0)
        s_barrier""")
        p.add(Raw(f"    s_cmp_lg_u32 s{s_w}, 0\n    s_cbranch_scc1 {name}_nofo\n    buffer_store_dword v{vOne}, v{vZ}, s[{sT}:{sT+3}], s{s_xe} offen sc1\n{name}_nofo:"))
    else:
        arrive(p, s_xe)
    main_cur = p.cur
    bg = []
    p.cur = bg
    SLOT4, HI4, LEAD4 = 28672, 106496, 8
    s_nb, s_wo4, s_m04, s_dsl, s_rsl, s_tk4 = 66, 68, 69, 70, 71, 72
    vD4 = 21
    AB4 = 32
    p(f"""
    s_and_b32 s{s_t0}, s2, 7
    s_lshr_b32 s{s_t1}, s2, 3
    s_and_b32 s{s_tk4}, s{s_t1}, 7
    s_lshr_b32 s{s_t1}, s{s_t1}, 3
    s_lshl_b32 s{s_nb}, s{s_t0}, 2
    s_add_u32 s{s_nb}, s{s_nb}, s{s_t1}
    s_movk_i32 s{s_t1}, 4682
    s_movk_i32 s{s_t0}, {7168 - 14 * 16}
    """)
    for i in range(7):
        p(f"""
        v_add_u32 v{vt}, {64*i}, v0
        v_mul_u32_u24 v{vt+1}, s{s_t1}, v{vt}
        v_lshrrev_b32 v{vt+1}, 16, v{vt+1}
        v_add_u32 v{vt}, {1024 * (i - (i & 3))}, v{vL16}
        v_mad_u32_u24 v{vD4+i}, v{vt+1}, s{s_t0}, v{vt}
        """)
    p(f"""
    s_lshl_b32 s{s_tk4}, s{s_tk4}, 2
    s_add_u32 s{s_tk4}, s{s_tk4}, s{s_w}
    s_lshl_b32 s{s_tk4}, s{s_tk4}, 6
    s_and_b32 s{s_t0}, s{s_w}, 1
    s_mul_i32 s{s_wo4}, s{s_t0}, {32 * 7168}
    s_mul_i32 s{s_t1}, s{s_nb}, 224
    s_add_u32 s{s_wo4}, s{s_wo4}, s{s_t1}
    s_mul_i32 s{s_m04}, s{s_w}, 7168
    s_mov_b32 s{s_dsl}, s{s_m04}
    s_mov_b32 s{s_rsl}, {HI4}
    s_cmp_lt_u32 s{s_w}, 2
    s_cselect_b64 s[{sD}:{sD+1}], s[{pWG}:{pWG+1}], s[{pWU}:{pWU+1}]
    s_mov_b32 s{sD+2}, {hex(D * FF * 2)}
    """)
    srd(p, sA, pWS, HC[1], bias=HC[0])
    for i in range(4):
        p(f"v_accvgpr_write_b32 a{aMEAN-4+i}, v{vWD+i}")
    p(f"v_mov_b32 v36, v{vPW}")
    vPW = 36
    vX4 = [vL16, 12, 13, 14]
    vA4, vAb, vR4 = 15, 11, 28
    vS, vQ, vP = 28, 144, WB
    s_ho, s_c4, s_sq4 = 65, 67, 73
    HCA = o.get('hca', False)
    p(f"""
    v_add_u32 v{vX4[2]}, 0x10000, v{vL16}
    v_add_u32 v{vX4[3]}, 0x18000, v{vL16}
    v_lshrrev_b32 v{vt}, 2, v0
    v_mul_u32_u24 v{vt}, 224, v{vt}
    v_and_b32 v{vt+1}, 3, v0
    v_lshl_add_u32 v{vAb}, v{vt+1}, 3, v{vt}
    v_mov_b32 v{vA4}, v{vAb}
    s_lshl_b32 s{s_sq4}, s{s_tk4}, 6
    s_add_u32 s{s_c4}, s{s_sq4}, {ST_FC}
    s_add_u32 s{s_sq4}, s{s_sq4}, {ST_SSQ}
    s_add_u32 s{s_ho}, s{s_tok}, s{s_j}
    s_lshl_b32 s{s_ho}, s{s_ho}, 11
    s_add_u32 s{s_c}, s{s_pj}, {ST_FC}
    {f's_andn2_b32 s{s_c}, s{s_c}, 4095' if HCA else ''}
    {f's_and_b32 s{s_t0}, s2, 7' if HCA else ''}
    {f's_lshl_b32 s{s_t0}, s{s_t0}, 9' if HCA else ''}
    {f's_add_u32 s{s_c4}, s{s_c4}, s{s_t0}' if HCA else ''}
    {f'v_lshlrev_b32 v{vt+6}, 9, v0' if HCA else ''}
    s_add_u32 s{s_pj}, s{s_pj}, {ST_SSQ}
    s_mov_b32 s{s_t1}, {f32hex(-1.0/1024)}""")
    for t in range(2):
        p(f"""
        v_add_f32 v{vE+t}, v{vE+t}, v{vE+2+t}
        v_add_f32 v{vE+4+t}, v{vE+4+t}, v{vE+6+t}
        v_add_f32 v{vS+t}, v{vE+t}, v{vE+4+t}""")
        xsum16_32(p, f"v{vS+t}", f"v{vt}")
        p(f"v_accvgpr_read_b32 v{vt}, a{aMEAN+t}")
        p(f"v_fma_f32 v{vS+t}, v{vS+t}, s{s_t1}, -v{vt}")
    p(f"v_mov_b32 v{vt+4}, {f32hex(1e-5)}\ns_mov_b32 s{s_t1}, {f32hex(1.0/1024)}")
    for i in range(156, 256):
        p(f"v_mov_b32 v{i}, 0")
    p.cur = main_cur

    def units_of(lst):
        out = []
        for x in lst:
            if out and x.op.startswith(('s_addc', 's_subb', 's_cselect')): out[-1].append(x)
            else: out.append([x])
        return out
    bg = units_of(bg)
    p.add(Raw("; @stamp 5"))
    if OM == 2: poll(p, f"{name}_opoll", s_c, 1, vt, 16)
    else: poll(p, f"{name}_opoll", s_c, 16, vt, 1, s_j if OM else None)
    if 'twice3' in dbg: p.add(Raw(f"    s_mov_b32 s{s_spin}, 2\n    s_mov_b32 s14, s{s_pj}\n    s_mov_b32 s15, s{s_xo}\n{name}_tw3:\n    s_mov_b32 s{s_pj}, s14\n    s_mov_b32 s{s_xo}, s15"))
    p.add(Raw("; @stamp 6"))

    def dma4(par):
        o_ = []
        for i in range(7):
            if i == 0: o_.append(Ins(f"s_add_u32 m0, s{s_dsl}, {par * SLOT4}"))
            if i == 4: o_.append(Ins("s_add_u32 m0, m0, 4096"))
            o_.append(Ins(f"buffer_load_dwordx4 v{vD4+i}, s[{sD}:{sD+3}], s{s_wo4} offen offset:{(i&3)*1024} lds", awr=['Lx'], nowaw=True))
        o_.append(Ins(f"s_add_u32 s{s_wo4}, s{s_wo4}, {64 * 7168}"))
        return o_

    X3 = lambda q, t, g: rr('a', (q % 8) * 16 + (t * 2 + g) * 4, 4)

    def xld3(q):
        o_ = [Ins(f"buffer_load_dwordx4 {X3(q, t, g)}, v{vX1 if t else vL16}, s[{sB}:{sB+3}], s{s_xo} offen offset:{(q & 1) * 2048 + g*1024} sc1")
              for t in range(2) for g in range(2)]
        return o_ + ([Ins(f"s_add_u32 s{s_xo}, s{s_xo}, 4096")] if q & 1 else [])
    L3 = o.get('l3', 3)
    D4 = o.get('d4', (9, 9))
    for q in range(L3): p.add(xld3(q))
    side = []
    for q in range(16):
        if q + L3 < 16: side += xld3(q + L3)
        if q == 16 - L3:
            pass
        for k in range(2):
            if q == 2 * D4[k]: side += dma4(k)
        mp = [Ins(f"buffer_load_dwordx2 {rr('v', vE + 2*i, 2)}, v{vPT}, s[{sT}:{sT+3}], s{s_xend} offen offset:{i*128} sc1") for i in range(4)] if q == 1 else []
        for i in range(16):
            F = i >> 2
            t, g = zz(F, 2, 2, ZZ)[i & 3]
            p(mf16(ACS(F, t), rr('v', WB + ((q & 1) * 8 + F * 2 + g) * 4, 4), X3(q, t, g)))
            n = q * 16 + i + LEAD
            if q == 10 and i == 0:
                p("s_barrier")
            if n < 256: p.add(rd3(n))
            if n in (115, 119, 123, 127): p(f"v_xor_b32 v{vA3 + (n - 112) // 4}, 0x10000, v{vA3 + (n - 112) // 4}")
            used = True
            if i % 4 == 3:
                if (q > 0 or i > 3) and q * 16 + i < 255:
                    m = (q * 16 + i + 1) % 32
                    p(f"wait {rr('v', WB + 2 * m, 8)}" + (", " + ", ".join(X3(q + 1, t_, g_) for t_ in range(2) for g_ in range(2)) if i == 15 else ""))
            if side and i % 4 == 0 and side[0].kind == 'vmem': p.add(side.pop(0))
            elif side and side[0].kind == 'salu': p.add(side.pop(0))
            elif mp and i % 4 == 2: p.add(mp.pop(0))
            else: used = False
            if bg and not used and q > 0:
                p.add(bg.pop(0))
                if bg and q * 16 + i > 200: p.add(bg.pop(0))
    p.add(side)
    assert not bg, len(bg)
    p.add(Raw("; @stamp 7"))
    if 'twice3' in dbg: p.add(Raw(f"    s_waitcnt vmcnt(0)\n    s_sub_u32 s{s_spin}, s{s_spin}, 1\n    s_cmp_lg_u32 s{s_spin}, 0\n    s_cbranch_scc1 {name}_tw3"))

    for t in range(2):
        sel = "op_sel_hi:[1,0]" if t == 0 else "op_sel:[0,1]"
        q = rr('v', vQ + 2 * t, 2)
        for F in range(4):
            a = AB3 + (F * 2 + t) * 4
            k = vQ + 4 + (F & 1) * 4
            hc = vP + (t * 2 + (F >> 1)) * 4 + (F & 1) * 2
            p(f"""
            v_pk_add_f32 {rr('v', k, 2)}, {rr('v', a, 2)}, {rr('v', vS, 2)} {sel}
            v_pk_add_f32 {rr('v', k+2, 2)}, {rr('v', a+2, 2)}, {rr('v', vS, 2)} {sel}
            v_cvt_pk_bf16_f32 v{hc}, v{k}, v{k+1}
            v_cvt_pk_bf16_f32 v{hc+1}, v{k+2}, v{k+3}""")
            if F & 1:
                g = F >> 1
                p(f"buffer_store_dwordx4 {rr('v', hc-2, 4)}, v{vX1 if t else vL16}, s[{sA}:{sA+3}], s{s_ho} offen offset:{g*1024} sc1")
            p(f"v_pk_mul_f32 {q}, {rr('v', k, 2)}, {rr('v', k, 2)}" if F == 0 else f"v_pk_fma_f32 {q}, {rr('v', k, 2)}, {rr('v', k, 2)}, {q}")
            p(f"v_pk_fma_f32 {q}, {rr('v', k+2, 2)}, {rr('v', k+2, 2)}, {q}")
    p(f"""
    v_add_f32 v{vQ}, v{vQ}, v{vQ+1}
    v_add_f32 v{vQ+2}, v{vQ+2}, v{vQ+3}
    v_permlane16_swap_b32 v{vQ}, v{vQ+2}
    v_add_f32 v{vQ}, v{vQ}, v{vQ+2}
    v_mov_b32 v{vQ+1}, v{vQ}
    v_permlane32_swap_b32 v{vQ}, v{vQ+1}
    v_add_f32 v{vt}, v{vQ}, v{vQ+1}
    s_mov_b32 exec_hi, 0
    buffer_store_dword v{vt}, v{vPW}, s[{sT}:{sT+3}], s{s_pj} offen sc1
    s_mov_b32 exec_hi, -1
    """)
    for q in range(2):
        if D4[q] == 8: p.add(dma4(q))
    for t in range(2):
        for F in range(4):
            a = AB3 + (F * 2 + t) * 4
            hr = vP + 16 + (t * 2 + (F >> 1)) * 4 + (F & 1) * 2
            p(f"v_cvt_pk_bf16_f32 v{hr}, v{a}, v{a+1}\nv_cvt_pk_bf16_f32 v{hr+1}, v{a+2}, v{a+3}")
    for i in range(16):
        p(f"v_accvgpr_write_b32 a{aHR+i}, v{vP+16+i}")
    if 'H' in dbg:
        srd(p, sB, pWS, HR[1], bias=HR[0])
        for t in range(2):
            for g in range(2):
                p(f"buffer_store_dwordx4 {rr('v', vP + 16 + (t*2+g)*4, 4)}, v{vX1 if t else vL16}, s[{sB}:{sB+3}], s{s_ho} offen offset:{g*1024}")
    for i in range(AB4 + (0 if o.get('ril', False) else 16), 156, 2):
        p(f"v_pk_mov_b32 {rr('v', i, 2)}, 0, 0")
    p(f"""
    s_lshl_b32 s{s_xo}, s{s_tk4}, 11
    s_waitcnt vmcnt({7 * D4.count(8)})
    """)
    if 'ack' in dbg: p.add(Raw("; @stamp 0"))
    if HCA:
        p(f"s_mov_b64 exec, 0xff\nbuffer_atomic_add v{vOne}, v{vt+6}, s[{sT}:{sT+3}], s{s_c} offen\ns_mov_b64 exec, -1")
    else:
        p(f"buffer_store_dword v{vOne}, v{vZ}, s[{sT}:{sT+3}], s{s_c} offen sc1")
    if 'ack' in dbg: p.add(Raw("    s_waitcnt vmcnt(0)\n; @stamp 1"))
    for q in range(2):
        if D4[q] == 9: p.add(dma4(q))
    if D4[1] < 10: p(f"s_add_u32 s{s_dsl}, s{s_m04}, {HI4}")
    PX = o.get('px', 8)
    BT = o.get('btouch', 0)
    vFL, vBT = vt + 5, vt + 6
    s_hf, s_x5, s_of, s_bt = 65, 63, 64, 3
    wread_addr(12)
    srd(p, sB, pWS, HH[1], bias=HH[0])
    srd(p, sC, pWS, XC[1], bias=XC[0])
    p(f"""
    s_bfe_u32 s{s_hf}, s{s_b}, 0x10002
    s_lshl_b32 s{s_hf}, s{s_hf}, 1
    s_lshr_b32 s{s_t0}, s{s_j}, 3
    s_add_u32 s{s_hf}, s{s_hf}, s{s_t0}
    s_and_b32 s{s_c}, s{s_tok}, 0x5c0
    s_lshl_b32 s{s_c}, s{s_c}, 6
    s_lshl_b32 s{s_t0}, s{s_hf}, 10
    s_add_u32 s{s_c}, s{s_c}, s{s_t0}
    s_add_u32 s{s_c}, s{s_c}, {ST_FH}
    s_xor_b32 s{s_x5}, s{s_tok}, 512
    s_mul_i32 s{s_x5}, s{s_x5}, {112 * 64}
    s_mul_i32 s{s_t0}, s{s_hf}, {28 * 1024}
    s_add_u32 s{s_x5}, s{s_x5}, s{s_t0}
    s_mul_i32 s{s_of}, s{s_tk4}, {112 * 64}
    s_lshr_b32 s{s_t0}, s{s_nb}, 3
    s_mul_i32 s{s_t0}, s{s_t0}, {56 - 8}
    s_add_u32 s{s_t0}, s{s_t0}, s{s_nb}
    s_lshl_b32 s{s_t0}, s{s_t0}, 9
    s_add_u32 s{s_of}, s{s_of}, s{s_t0}
    v_and_b32 v{vFL}, 7, v0
    v_lshlrev_b32 v{vFL}, 7, v{vFL}
    v_bfe_u32 v{vt}, v0, 3, 1
    v_lshl_add_u32 v{vFL}, v{vt}, 15, v{vFL}""")
    if BT:
        p(f"""
        v_cmp_gt_u32 vcc, 14, v0
        v_lshlrev_b32 v{vt}, 10, v0
        v_add_u32 v{vt}, {4096 + 384}, v{vt}
        v_mov_b32 v{vt+1}, 0x7ffffff0
        v_cndmask_b32 v{vBT}, v{vt+1}, v{vt}, vcc
        s_lshr_b32 s{s_bt}, s2, 3
        s_lshl_b32 s{s_bt}, s{s_bt}, 2
        s_add_u32 s{s_bt}, s{s_bt}, s{s_w}
        s_mul_i32 s{s_bt}, s{s_bt}, {7 * 2048}""")


    X4 = lambda slot, t, g: rr('a', slot * 32 + (t * 2 + g) * 4, 4)
    WB4, WB4B, NWR = 96, 128, 4
    W4 = lambda q, g: rr('a', WB4 + (q % NWR) * 8 + g * 4, 4)
    AC4 = lambda f, t: rr('v', AB4 + (f * 4 + t) * 4, 4)

    def xld4(slot):
        o_ = [Ins(f"buffer_load_dwordx4 {X4(slot, t, g)}, v{vX4[t]}, s[{sA}:{sA+3}], s{s_xo} offen offset:{g*1024} sc1")
              for t in range(4) for g in range(2)]
        return o_ + [Ins(f"s_add_u32 s{s_xo}, s{s_xo}, 2048")]

    def rd4(q, n, par=None, base=WB4):
        f = q % 14
        g, b = n >> 1, n & 1
        if par is None: par = (q // 14) & 1
        return Ins(f"ds_read_b64_tr_b16 {rr('a', base + (q % NWR)*8 + g*4 + 2*b, 2)}, v{vA4} offset:{par*SLOT4 + (f&1)*14336 + (32*g+16*b)*224 + (f>>1)*32}")
    if D4[0] < 8:
        p("s_barrier")
        for n in range(LEAD4):
            p.add(rd4(n >> 2, n & 3))
    p.add(Raw("; @stamp 8"))
    if HCA: poll(p, f"{name}_hpoll", s_c4, 1, vt, 32)
    else: poll(p, f"{name}_hpoll", s_c4, 32, vt)
    p.add(Raw("; @stamp 9"))
    RIL = o.get('ril', False)
    if not RIL:
        for q in range(2):
            table_load(AB4 + 8 * q, s_sq4, q)
    p.add(xld4(0))
    if RIL:
        for q in range(2):
            for i in range(4):
                p(f"buffer_load_dwordx2 {rr('a', WB4B + 8*q + 2*i, 2)}, v{vPT}, s[{sT}:{sT+3}], s{s_sq4} offen offset:{q*2048 + i*128} sc1")
    if o.get('b1', True): p("s_barrier")
    if D4[0] >= 8:
        for n in range(LEAD4):
            p.add(rd4(n >> 2, n & 3))
    ril = []
    if RIL:
        p.cur = ril
        for t in range(4):
            a_ = WB4B + 8 * (t >> 1) + (t & 1)
            for i in range(4): p(f"v_accvgpr_read_b32 v{vt+i}, a{a_ + 2*i}")
            p(f"v_add_f32 v{vt}, v{vt}, v{vt+1}\nv_add_f32 v{vt+2}, v{vt+2}, v{vt+3}\nv_add_f32 v{vt}, v{vt}, v{vt+2}")
            xsum16_32(p, f"v{vt}", f"v{vt+1}")
            p(f"v_fma_f32 v{vt}, v{vt}, s{s_t1}, v{vt+4}\nv_rsq_f32 v{vt}, v{vt}")
            p(f"v_mul_f32 v{vR4+t}, {f32hex(-LOG2E)}, v{vt}")
        p.cur = main_cur
    else:
        for q in range(2):
            rstd_from(AB4 + 8 * q, vR4 + 2 * q)
        for t in range(4):
            p(f"v_mul_f32 v{vR4+t}, {f32hex(-LOG2E)}, v{vR4+t}")
        for i in range(AB4, AB4 + 16, 2):
            p(f"v_pk_mov_b32 {rr('v', i, 2)}, 0, 0")
    p(f"s_mov_b32 s{s_cnt}, 7")
    p("wait " + ", ".join(X4(0, t, g) for t in range(4) for g in range(2)) + f", {W4(0, 0)}, {W4(0, 1)}")
    p.begin_loop(f"{name}_p4loop", 7)
    B1 = o.get('b1', True)
    BP = o.get('bpos', 99)
    for u in range(2):
        MV = o.get('p4mv', 0)
        if u == 0: d41 = dma4(1)
        vm = d41[MV:] + xld4(0) if u == 1 else xld4(1) + dma4(0) + d41[:MV]
        if 'p4nov' in dbg: vm = [x for x in vm if x.kind != 'vmem']
        fill, pos = {}, 1
        for ins in vm:
            fill.setdefault(pos, []).append(ins)
            pos += o.get('p4d', 4) if 'lds' in ins.mods else o.get('p4step', 4) if ins.kind == 'vmem' else 2
            if pos % 8 == 7: pos += 2
        assert pos < (91 if u else 118), pos
        if u == 1:
            fill[97] = [Ins(f"s_sub_u32 s{s_rsl}, {HI4}, s{s_rsl}")]
            fill[107] = [Ins(f"s_add_u32 s{s_dsl}, s{s_m04}, s{s_rsl}")]
            fill[93] = [Ins(f"s_sub_u32 s{s_cnt}, s{s_cnt}, 1")]
            fill[109] = [Ins(f"s_cmp_lg_u32 s{s_cnt}, 0")]
            fill.setdefault(pos, []).append(Ins(f"s_cmp_eq_u32 s{s_cnt}, 1"))
            fill.setdefault(pos + 1, []).append(Raw(f"    s_cbranch_scc1 {name}_x15\n{name}_x15back:"))
            x15blk = Raw(f"{name}_x15:\n" + "".join(f"    {x.text}\n" for x in xld4(2)[:8]) +
                         (code_touch(f"{name}_ct5", f"{name}_tail4", f"{name}_end", 2, vt, vt + 1) if o.get('ipf5', False) else "") +
                         f"    s_branch {name}_x15back")
        order = [(f, t, g) for f in range(14) for t, g in zz(f, 4, 2, ZZ)]
        late = B1 and u == 1
        for i, (f, t, g) in enumerate(order):
            p(mf16(AC4(f, t), W4(u * 14 + f, g), X4(u, t, g)))
            if late and i == BP:
                p("s_waitcnt vmcnt(8) lgkmcnt(0)")
                p("s_barrier")
            if late and i >= 96:
                if BP <= i < BP + 8:
                    p.add(rd4(28 + ((i - BP) >> 2), (i - BP) & 3))
            elif i % 2 == 0:
                n = i // 2 + LEAD4
                p.add(rd4(u * 14 + (n >> 2), n & 3))
            if i == 95 and u == 1: p(f"v_add_u32 v{vA4}, s{s_rsl}, v{vAb}")
            if i == 95 and not B1:
                p("s_waitcnt vmcnt(15) lgkmcnt(4)")
                if 'p4nobar' not in dbg: p("s_barrier")
            elif i == 111:
                p(f"wait {W4(u*14 + 14, 0)}, {W4(u*14 + 14, 1)}, " + ", ".join(X4(1 - u, t_, g_) for t_ in range(4) for g_ in range(2)))
            elif i % 8 == 7:
                p(f"wait {W4(u*14 + f + 1, 0)}, {W4(u*14 + f + 1, 1)}")
            p.add(fill.get(i, []))
            if ril and u == 1 and i not in fill and i < 94: p.add(ril.pop(0))
    assert not ril
    p(f"s_cbranch_scc1 {name}_p4loop")
    p.end_loop()
    p(f"{name}_tail4:")
    p.add(Raw("; @stamp 10"))
    main_cur = p.cur
    setup = []
    p.cur = setup

    vW5 = 21
    s_wo5, s_m05 = 68, 69
    vH = 13
    vFG, vTwo = 25, 26
    for i in range(2):
        p(f"v_accvgpr_read_b32 v{vW5+i}, a{aMEAN-4+i}")
    p(f"""
    s_mul_i32 s{s_t0}, s{s_hf}, {896 * 2048}
    s_xor_b32 s{s_t1}, s{s_j}, {PX}
    s_add_u32 s{s_t1}, s{s_t1}, 16
    s_sub_u32 s{s_t1}, s{s_t1}, s{s_j}
    s_lshl_b32 s{s_t1}, s{s_t1}, 7
    v_add_u32 v{vW5+2}, s{s_t1}, v{vW5}
    v_add_u32 v{vW5+3}, s{s_t1}, v{vW5+1}
    v_add_u32 v{vW5}, 4096, v{vW5}
    v_add_u32 v{vW5+1}, 4096, v{vW5+1}
    s_mul_i32 s{s_wo5}, s{s_w}, {112 * 2048}""")
    srd(p, sD, pWD, 896 * 2048 + 4096, off=s_t0, bias=-4096)
    p(f"""
    s_lshl_b32 s{s_t1}, s{s_j}, 7
    s_add_u32 s{s_wo5}, s{s_wo5}, s{s_t1}
    s_lshl_b32 s{s_m05}, s{s_w}, 12
    v_lshrrev_b32 v{vt}, 5, v0
    v_mul_u32_u24 v{vt}, {112 * 1024 - 512}, v{vt}
    v_add_u32 v{vH}, v{vt}, v{vL16}
    v_add_u32 v{vH+1}, {2 * 112 * 1024}, v{vH}
    v_add_u32 v{vX1}, {112 * 1024}, v{vL16}
    s_mul_i32 s{s_xo}, s{s_tok}, {112 * 64}
    s_mul_i32 s{s_t0}, s{s_hf}, {28 * 1024}
    s_add_u32 s{s_xo}, s{s_xo}, s{s_t0}
    s_mov_b32 s{s_spin}, {SPIN}
    s_lshl_b32 s{s_t0}, s{s_nb}, 7
    s_add_u32 s{s_sq4}, s{s_sq4}, s{s_t0}
    s_add_u32 s{s_sq4}, s{s_sq4}, {ST_FH - ST_SSQ}""")
    p.cur = main_cur
    btouch = lambda: Ins(f"buffer_load_dword v27, v{vBT}, s[{sD}:{sD+3}], s{s_bt} offen", nowaw=True)

    def dma5(st):
        o_ = [Ins(f"s_add_u32 m0, s{s_m05}, {(st % 8) * 16384}")]
        for i in range(4):
            o_.append(Ins(f"buffer_load_dwordx4 v{vW5+i}, s[{sD}:{sD+3}], s{s_wo5} offen offset:{i*1024} lds", awr=[f'L5_{st}'], nowaw=True))
        o_.append(Ins(f"s_add_u32 s{s_wo5}, s{s_wo5}, {448 * 2048}" if st & 1 == 0 else f"s_sub_u32 s{s_wo5}, s{s_wo5}, {(448 - 16) * 2048}"))
        return o_

    def glu(pr, packed):
        o_ = []
        for t in range(4):
            g = AB4 + ((2 * pr) * 4 + t) * 4
            u_ = AB4 + ((2 * pr + 1) * 4 + t) * 4
            rs_ = rr('v', vR4 + (t & 2), 2)
            sel = "op_sel_hi:[1,0]" if t % 2 == 0 else "op_sel:[0,1]"
            if packed:
                o_ += [f"v_pk_mul_f32 {rr('v', g+r, 2)}, {rr('v', g+r, 2)}, {rs_} {sel}" for r in (0, 2)]
                o_ += [f"v_exp_f32 v{g+r}, v{g+r}" for r in range(4)]
                o_ += [f"v_pk_add_f32 {rr('v', g+r, 2)}, {rr('v', g+r, 2)}, 1.0 op_sel_hi:[1,0]" for r in (0, 2)]
                o_ += [f"v_rcp_f32 v{g+r}, v{g+r}" for r in range(4)]
                o_ += [f"v_pk_mul_f32 {rr('v', u_+r, 2)}, {rr('v', u_+r, 2)}, {rr('v', g+r, 2)}" for r in (0, 2)]
            else:
                o_ += [f"v_mul_f32 v{g+r}, v{vR4+t}, v{g+r}" for r in range(4)]
                o_ += [f"v_exp_f32 v{g+r}, v{g+r}" for r in range(4)]
                o_ += [f"v_add_f32 v{g+r}, 1.0, v{g+r}" for r in range(4)]
                o_ += [f"v_rcp_f32 v{g+r}, v{g+r}" for r in range(4)]
                o_ += [f"v_mul_f32 v{u_+r}, v{u_+r}, v{g+r}" for r in range(4)]
            d_ = AB4 + ((2 * pr) * 4 + (t & 2)) * 4 + (t & 1) * 2
            o_ += [f"v_cvt_pk_bf16_f32 v{d_}, v{u_}, v{u_+1}", f"v_cvt_pk_bf16_f32 v{d_+1}, v{u_+2}, v{u_+3}"]
            if t & 1:
                o_ += [f"v_permlane32_swap_b32 v{d_-2}, v{d_}", f"v_permlane32_swap_b32 v{d_-1}, v{d_+1}",
                       f"buffer_store_dwordx4 {rr('v', d_-2, 4)}, v{vH + (t >> 1)}, s[{sB}:{sB+3}], s{s_of} offen sc1"]
        o_.append(f"s_add_u32 s{s_of}, s{s_of}, 4096")
        return [Ins(x, awr=[f'HS{pr}'], nowaw=True) if x.startswith('buffer') else Ins(x) for x in o_]

    AC5, WB5, vHI, vHF = 96, 40, 72, 224
    XB5 = (160, 192, 32, 0, 64, 96, 128)
    A5 = lambda F, t: rr('v', AC5 + ((F >> 2) + 2 * (t >> 1)) * 32 + ((F & 3) * 2 + (t & 1)) * 4, 4)
    X5 = lambda st, t, G: rr('a', XB5[st % 7] + (t * 2 + G) * 4, 4)
    NT = o.get('nt5', 6)

    def xld5(st):
        o_ = [Ins(f"buffer_load_dwordx4 {X5(st, t, G)}, v{vX1 if t & 1 else vL16}, s[{sB}:{sB+3}], s{s_x5 if t >> 1 else s_xo} offen offset:{G*1024} sc1")
              for t in range(4) for G in range(2)]
        return o_[:4] + [Ins(f"s_add_u32 s{s_xo}, s{s_xo}, 2048")] + o_[4:] + [Ins(f"s_add_u32 s{s_x5}, s{s_x5}, 2048")]

    outl = []

    def spin(label, level, ld=None):
        outl.append(Raw(f"""{label}:
    s_cmp_eq_u32 s{s_spin}, 0
    s_cbranch_scc1 {label}_done
    s_sub_u32 s{s_spin}, s{s_spin}, 1
    {ld or fgl}
    s_waitcnt vmcnt(0)
    v_cmp_gt_u32 vcc, {level}, v{vFG}
    s_nop 0
    s_cbranch_vccnz {label}
    s_branch {label}_done"""))
        return f"""    v_cmp_gt_u32 vcc, {level}, v{vFG}
    s_nop 0
    s_cbranch_vccnz {label}
{label}_done:"""
    last = list(range(14 - NT, 14))
    FO = o.get('fo5', 4)
    units = [(st, F, (0, 1, 2, 3)) for st in range(14 - NT) for F in range(8)]
    units += [(st, F, (0, 1, 2, 3)) for st in last[:-FO] for F in range(4, 8)]
    units += [(st, F, (0, 1, 2, 3)) for F in range(4, 8) for st in last[-FO:]]
    kB = len(units)
    kC = kB + 4 * NT
    units += [(st, F, (2, 3)) for F in range(4) for st in last]
    units += [(st, F, (0, 1)) for F in range(4) for st in last]

    def rd5(k):
        st, F = units[k][:2]
        return [Ins(f"ds_read_b64_tr_b16 {rr('v', WB5 + (k % 4)*8 + 2*n, 2)}, v{(vHI if st & 4 else vA3) + (F & 3)} "
                    f"offset:{(st & 3)*16384 + (n >> 1)*8192 + (F >> 2)*2048 + (n & 1)*1024}") for n in range(4)]
    fgl = f"buffer_load_dword v{vFG}, v{vFL}, s[{sT}:{sT+3}], s{s_c} offen sc1"
    tell = lambda prs: [Ins(f"buffer_store_dword v{vOne}, v{vZ}, s[{sT}:{sT+3}], s{s_sq4} offen sc1", rd=[f'HS{q}' for q in prs]),
                        Ins(f"s_add_u32 s{s_sq4}, s{s_sq4}, 0x40000")]
    check = lambda n: [Ins(f"wait v{vFG}"), Raw(spin(f"{name}_fpoll{n}", 1)), Ins(f"s_add_u32 s{s_c}, s{s_c}, 0x40000")]

    W4B = lambda q, g: rr('a', WB4B + (q % NWR) * 8 + g * 4, 4)
    C0 = o.get('c0at', (5, 21))
    at = {o.get('t0at', (2, 27)): tell((0,)), o.get('l0at', (4, 29)): [Ins(fgl)],
          C0: [Raw("; @stamp 11")] + check(0) + [Raw("; @stamp 12")], o.get('t1at', (5, 29)): tell((1, 2, 3))}
    x01 = xld5(0) + xld5(1)
    if not B1:
        p("s_waitcnt vmcnt(0)")
        p("s_barrier")
    for n in range(4):
        p.add(rd4(0, n, 1, WB4B))
    cost = lambda x: 8 if x.kind == 'trans' else 0 if x.kind == 'vmem' else 4
    pend = []
    for pr in range(7):
        work = setup if pr == 0 else glu(pr - 1, False)
        side = dma5(pr - 1) if pr >= 1 else []
        if BT and pr == o.get('btat', 3): side.append(btouch())
        tot = sum(cost(x) for x in work)
        done, wi = 0, 0
        for ff in range(2):
            f = 2 * pr + ff
            if f == 0: order = [(t, k) for t in range(4) for k in (0, 1)] + [(t, k) for t in range(4) for k in (2, 3)]
            else: order = zz(f, 4, 4, ZZ)
            rds = [rd4(f + 1, n, 1, WB4B) for n in range(4)] if f + 1 < 14 else []
            rds += [rd4(f + 2, n, 0) for n in range(4)] if f + 2 < 14 else []
            for i, (t, k) in enumerate(order):
                p(mf16(AC4(f, t), W4(f, k) if k < 2 else W4B(f, k - 2), X4(0 if k < 2 else 2, t, k & 1)))
                if B1 and f == 0 and i == 7:
                    p("s_waitcnt vmcnt(0)")
                if f == 13 and i == 0:
                    p("s_barrier", rd=['L5_0', 'L5_1', 'L5_2', 'L5_3'])
                    rds = rd5(0) + rd5(1)

                def xnext():
                    p.add(x01.pop(0))
                    if x01 and x01[0].kind == 'salu': p.add(x01.pop(0))
                if i % 2 == 0 and rds:
                    p.add(rds.pop(0))
                elif i == 15:
                    if f < 13: p(f"wait {W4(f+1, 0)}, {W4(f+1, 1)}, {W4B(f+1, 0)}, {W4B(f+1, 1)}")
                elif (pr, ff * 16 + i) in at:
                    p.add(at[pr, ff * 16 + i])
                elif pend and i % 2:
                    p.add(pend.pop(0))
                    if pr >= 5 and pend and pend[0].kind == 'salu': p.add(pend.pop(0))
                elif x01 and (pr, ff * 16 + i) > C0 and (len(x01) > 10 or not side):
                    xnext()
                elif side and (i % 2 or pr == 6):
                    p.add(side.pop(0))
                    if pr >= 5 and side and side[0].kind == 'salu': p.add(side.pop(0))
                gap = ff * 16 + i + 1
                while wi < len(work) and done + cost(work[wi]) / 2 <= tot * gap / 32:
                    if work[wi].kind == 'vmem' or (pr and work[wi].kind == 'salu'): pend.append(work[wi])
                    else: p.add(work[wi])
                    done += cost(work[wi]); wi += 1
        assert wi == len(work) and (not side or pr == 6)
    carry = pend + side + x01

    p.add(Raw("; @stamp 13"))
    STG = 131072
    vL, vG, vXF = 30, 15, 26
    s_ro, s_fl, s_xs, s_fy, s_fb = 66, 67, 72, 70, 71
    SQ5 = 32
    bg = []
    p.cur = bg
    for i in range(4):
        p(f"v_xor_b32 v{vHI+i}, 0x10000, v{vA3+i}")
    p(f"""
    s_lshl_b32 s{s_of}, s{s_tok}, 6
    s_add_u32 s{s_of}, s{s_of}, {ST_SSQ}
    s_lshl_b32 s{s_t0}, s{s_b}, 4
    s_add_u32 s{s_t0}, s{s_t0}, s{s_j}
    s_lshl_b32 s{s_xs}, s{s_t0}, 2
    s_add_u32 s{s_xs}, s{s_xs}, s{s_w}
    s_lshl_b32 s{s_fl}, s{s_xs}, 7
    v_and_b32 v{vt+2}, 1, v0
    v_lshlrev_b32 v{vt+2}, 15, v{vt+2}
    v_xor_b32 v{vt+2}, {8 << 9}, v{vt+2}
    v_xor_b32 v{vXF}, s{s_fl}, v{vt+2}
    s_add_u32 s{s_fy}, s{s_fl}, {ST_FY}
    s_add_u32 s{s_fl}, s{s_fl}, {ST_FX}
    s_mov_b32 s{s_fb}, {ST_FY}
    s_lshl_b32 s{s_xs}, s{s_xs}, 14
    s_add_u32 s{s_nb+4}, s{s_xs}, 4096
    s_mul_i32 s{s_t0}, s{s_w}, 4608
    s_add_u32 s{s_t0}, s{s_t0}, {STG}
    v_and_b32 v{vt+2}, 15, v0
    v_mul_u32_u24 v{vt+2}, 144, v{vt+2}
    v_lshrrev_b32 v{vt+3}, 4, v0
    v_lshl_add_u32 v{vt+2}, v{vt+3}, 3, v{vt+2}
    v_add_u32 v{vL}, s{s_t0}, v{vt+2}
    v_lshrrev_b32 v{vt+2}, 3, v0
    v_and_b32 v{vt+3}, 7, v0
    v_lshlrev_b32 v{vt+3}, 4, v{vt+3}
    v_lshl_add_u32 v{vG}, v{vt+2}, 11, v{vt+3}
    v_mul_u32_u24 v{vt+2}, 144, v{vt+2}
    v_add3_u32 v{vL+1}, v{vt+2}, v{vt+3}, s{s_t0}
    s_lshl_b32 s{s_ro}, s{s_tok}, 11
    s_lshl_b32 s{s_t2}, s{s_j}, 7
    s_add_u32 s{s_ro}, s{s_ro}, s{s_t2}
    s_add_u32 s0, s{s_xs}, 4096
    s_add_u32 s1, s{s_xs}, 8192
    s_add_u32 s14, s{s_xs}, 12288
    s_xor_b32 s15, s0, {8 << 16}
    s_xor_b32 s74, s1, {64 << 16}
    s_xor_b32 s75, s14, {72 << 16}
    s_mov_b32 s{s_t1}, {f32hex(1.0/1024)}
    v_mov_b32 v{vt+4}, {f32hex(1e-5)}
    """.replace(f"    s_add_u32 s{s_nb+4}, s{s_xs}, 4096\n", ""))
    srd(p, sA, pOUT, S * D * 2)
    for t in range(2):
        for F in range(4):
            e = aHR + (t * 2 + (F >> 1)) * 4 + (F & 1) * 2
            k = vHF + (F * 2 + t) * 4
            p(f"""
            v_accvgpr_read_b32 v{k+1}, a{e}
            v_accvgpr_read_b32 v{k+3}, a{e+1}
            v_lshlrev_b32 v{k}, 16, v{k+1}
            v_lshlrev_b32 v{k+2}, 16, v{k+3}
            v_and_b32 v{k+1}, 0xffff0000, v{k+1}
            v_and_b32 v{k+3}, 0xffff0000, v{k+3}""")
    bg2 = []
    p.cur = bg2
    for t in range(2):
        p(f"""
        v_add_f32 v{SQ5+t}, v{SQ5+t}, v{SQ5+2+t}
        v_add_f32 v{SQ5+4+t}, v{SQ5+4+t}, v{SQ5+6+t}
        v_add_f32 v{vS+t}, v{SQ5+t}, v{SQ5+4+t}""")
        xsum16_32(p, f"v{vS+t}", f"v{vt}")
        p(f"v_fma_f32 v{vS+t}, v{vS+t}, s{s_t1}, v{vt+4}\nv_rsq_f32 v{vS+t}, v{vS+t}")
    p.cur = main_cur
    sXQ = {1: 0, 2: 1, 3: 14}
    assert NT in (4, 5, 6)
    sql = [Ins(f"buffer_load_dwordx2 {rr('v', SQ5 + 2*i, 2)}, v{vPT}, s[{sT}:{sT+3}], s{s_of} offen offset:{i*128} sc1") for i in range(4)]
    X_ = {st: xld5(st) for st in range(2, 14)}
    X_[1] = [x for x in x01]
    plan = {0: carry + dma5(6) + [Ins(fgl)] + dma5(7) + [check(1)] + X_[2][:5], 1: X_[2][5:] + X_[3] + X_[4][:5],
            2: tell((4, 5, 6)) + X_[4][5:] + X_[5], 3: dma5(8) + dma5(9) + X_[6], 4: [Ins(fgl)] + X_[7] + [check(2)] + X_[8],
            5: dma5(10) + dma5(11) + X_[9], 6: X_[10] + X_[11], 7: dma5(12) + dma5(13) + X_[12], 8: X_[13]}
    bar_at = {2: [4, 5, 6, 7], 4: [], 6: [8, 9, 10, 11], 9: [12, 13]}
    g6 = glu(6, False)
    g6tot, g6done = sum(cost(x) for x in g6), 0
    start = {}
    for k, u_ in enumerate(units[:kB]): start.setdefault(u_[0], k)
    kstart = {k: st for st, k in start.items() if st < 12}
    kbar = {start[st + 1] - 2: v for st, v in bar_at.items()}
    RX = AC5 + 32
    rxl = lambda F, r: Ins(f"buffer_load_dwordx4 {rr('v', AC5 + r*32 + F*8, 4)}, v{vL16}, s[{sC}:{sC+3}], s{(15, 74, 75)[r-1]} offen offset:{F*1024} sc1")
    fyl = f"buffer_load_dword v{vFG}, v{vXF}, s[{sT}:{sT+3}], s{s_fb} offen sc1"
    ev = {}
    YL = o.get('yl', [(-2, (0, 1), 15, 21), (12, (2, 3), 35, 42)])
    for n, (kt_, Fs, kl, kc) in enumerate(YL):
        ev.setdefault(kB + kt_, []).extend(
            [Ins(f"buffer_store_dword v{vOne}, v{vZ}, s[{sT}:{sT+3}], s{s_fy} offen sc1", rd=[f'XS{r}_{F}' for F in Fs for r in (1, 3)]),
             Ins(f"s_add_u32 s{s_fy}, s{s_fy}, 0x40000")])
        ev.setdefault(kB + kl, []).append(Ins(fyl))
        ev.setdefault(kB + kc, []).extend(
            [[Ins(f"wait v{vFG}"), Raw(spin(f"{name}_ypoll{n}", 1, fyl)), Ins(f"s_add_u32 s{s_fb}, s{s_fb}, 0x40000")]] +
            [rxl(F, r) for F in Fs for r in (1, 3)])
    ev.setdefault(kC + o.get('kfb', 12), []).extend(
        [Ins(f"buffer_store_dword v{vOne}, v{vZ}, s[{sT}:{sT+3}], s{s_fl} offen sc1", rd=[f'XS2_{F}' for F in range(4)]),
         Ins(f"s_xor_b32 s{s_fl}, s{s_fl}, {64 << 9}")])
    side, seen, hold = [], set(), 0
    for k, (st, F, ts) in enumerate(units):
        if k in kstart:
            side += plan.get(st, [])
        assert all(x not in side for x in X_.get(st, [])[:-1])
        side += ev.get(k, [])
        if k == kB - 14: side += sql
        if k == kB + 8: bg += bg2
        if 'fine5' in dbg:
            mk = {start[3]: 3, start[4]: 4, start[8]: 5, kB: 6, kC: 7, kC + 8: 8, kC + 16: 9}
            if k in mk: p.add(Raw(f"; @stamp {mk[k]}"))
        rds = rd5(k + 2) if k + 2 < len(units) else []
        order = [(ts[t], G) for t, G in zz(k, len(ts), 2, ZZ)]
        for i, (t, G) in enumerate(order):
            c = None if (F, t) in seen else "0"
            seen.add((F, t))
            p(mf16(A5(F, t), rr('v', WB5 + (k % 4) * 8 + G * 4, 4), X5(st, t, G), c))
            if i == 0 and k in kbar:
                assert not any(f'L5_{x}' in getattr(y, 'awr', ()) for x in kbar[k] for y in side)
                p("s_barrier", rd=[f'L5_{x}' for x in kbar[k]])
            used = False
            if rds and (i % 2 == 0 or len(ts) == 2):
                p.add(rds.pop(0))
            if i == len(order) - 1:
                if k + 1 < len(units):
                    n_ = units[k + 1]
                    p(f"wait {rr('v', WB5 + ((k + 1) % 4) * 8, 8)}, " + ", ".join(X5(n_[0], t_, G_) for t_ in n_[2] for G_ in range(2)))
            if side and i % 2 == 1 and (getattr(side[0], 'kind', '') == 'vmem') == (i % 4 == 1):
                p.add(side.pop(0)); used = True
                while side and i % 4 == 3 and getattr(side[0], 'kind', '') == 'salu': p.add(side.pop(0))
            while g6 and g6done + cost(g6[0]) / 2 <= g6tot * (k * 8 + i + 1) / 62:
                x = g6.pop(0); g6done += cost(x)
                if x.kind == 'vmem': side.insert(0, x)
                elif x.kind != 'salu': p.add(x)
            if bg and not used and k >= 9:
                x = bg.pop(0)
                if x.kind == 'vmem': side.append(x)
                else: p.add(x)
        if st == 13:
            for tp in sorted({t >> 1 for t in ts}):
                r = (F >> 2) + 2 * tp
                if r:
                    a = AC5 + r * 32 + (F & 3) * 8
                    bg += [Ins("wait v0") for _ in range(3 if not bg else 0)]
                    bg += [Ins(f"v_cvt_pk_bf16_f32 v{a+q}, v{a+2*q}, v{a+2*q+1}") for q in range(4)]
                    bg.append(Ins(f"buffer_store_dwordx4 {rr('v', a, 4)}, v{vL16}, s[{sC}:{sC+3}], s{sXQ[r]} offen offset:{(F & 3)*1024} sc1",
                                  awr=[f'XS{r}_{F & 3}'], nowaw=True))
    assert not bg
    p.add(Raw("; @stamp 14"))
    p.add(side + ev.get(len(units), []))
    fxl = f"buffer_load_dword v{vFG}, v{vt+1}, s[{sT}:{sT+3}], s{s_fl} offen sc1"
    p(f"v_mov_b32 v{vt+1}, 0")
    p(fxl)
    sels = ("op_sel_hi:[1,0,1]", "op_sel:[0,1,0]")
    RU = 40

    def add_rx(F, r):
        for q in range(4):
            e, a, k = AC5 + r * 32 + F * 8 + q, RU + ((r * 4 + q) % 8) * 2, vHF + F * 8 + 2 * q
            p(f"v_lshlrev_b32 v{a}, 16, v{e}\nv_and_b32 v{a+1}, 0xffff0000, v{e}")
            p(f"v_pk_fma_f32 {rr('v', k, 2)}, {rr('v', a, 2)}, {rr('v', vS, 2)}, {rr('v', k, 2)} {sels[q >> 1]}")
    for i in range(0, 32, 2):
        p(f"v_pk_fma_f32 {rr('v', vHF+i, 2)}, {rr('v', AC5+i, 2)}, {rr('v', vS, 2)}, {rr('v', vHF+i, 2)} {sels[(i >> 2) & 1]}")
    for F in range(2):
        add_rx(F, 1); add_rx(F, 3)
    if 'tail' in dbg: p.add(Raw("; @stamp 0"))
    p(f"wait v{vFG}")
    p.add(Raw(spin(f"{name}_xpoll", 1, fxl)))
    p.add([rxl(F, 2) for F in range(4)])
    if 'tail' in dbg: p.add(Raw("; @stamp 1"))
    for F in range(2, 4):
        add_rx(F, 1); add_rx(F, 3)
    for F in range(4):
        add_rx(F, 2)
        for t in range(2):
            k = vHF + (F * 2 + t) * 4
            p(f"v_cvt_pk_bf16_f32 v{k}, v{k}, v{k+1}\nv_cvt_pk_bf16_f32 v{k+1}, v{k+2}, v{k+3}")
            p(f"ds_write_b64 v{vL}, v[{k}:{k+1}] offset:{t*16*144 + F*32}")
    for n in range(4):
        p(f"ds_read_b128 {rr('v', 128 + n*4, 4)}, v{vL+1} offset:{n*8*144}")
    if 'tail' in dbg: p.add(Raw("; @stamp 2"))
    for n in range(4):
        p(f"buffer_store_dwordx4 {rr('v', 128 + n*4, 4)}, v{vG}, s[{sA}:{sA+3}], s{s_ro} offen")
        if n < 3: p(f"s_add_u32 s{s_ro}, s{s_ro}, {8 * 2048}")
    p(f"{name}_end:")
    p("s_endpgm")
    p.add(x15blk)
    p.add(outl)

    z = 48
    rgl = f"buffer_load_dwordx2 v[{z+4}:{z+5}], v{z+6}, s[{sT}:{sT+3}], s{s_fo} offen sc1"
    p.add(Raw(f"""{name}_rsx:
    s_cmp_eq_u32 s{s_cnt}, 3
    s_cbranch_scc1 {name}_rs5
    s_cmp_eq_u32 s{s_cnt}, 2
    s_cbranch_scc1 {name}_rs6
    {mf16(rr('v', z, 4), on, rr('v', vRS, 4), "0")}
    {mf16(rr('v', z, 4), on, rr('v', vRS + 4, 4))}
    s_lshl_b32 s{s_t0}, s{s_fo}, 3
    s_add_u32 s{s_t0}, s{s_t0}, {ST_RS2}
    s_lshl_b32 s{s_fo}, s{s_j}, 9
    s_add_u32 s{s_fo}, s{s_fo}, {ST_RS2}
    v_lshlrev_b32 v{z+6}, 3, v0
    s_mov_b32 s{s_spin}, {SPIN}
    s_nop 2
""" + "".join(f"    v_add_f32_dpp v{z}, v{z}, v{z} row_ror:{k} row_mask:0xf bank_mask:0xf\n    s_nop 1\n" for k in (8, 4, 2, 1)) + f"""    v_mov_b32 v{z+1}, 1
    buffer_store_dwordx2 v[{z}:{z+1}], v{vZ}, s[{sT}:{sT+3}], s{s_t0} offen sc1
    s_branch {name}_rsxback
{name}_rs5:
    {rgl}
    s_lshl_b32 s{s_t0}, s{s_w}, 13
    s_add_u32 m0, s{s_t0}, {XT}
    s_lshl_b32 s{s_t1}, s{s_j}, 7
""" + "".join(f"    buffer_load_dwordx4 v{vD+i}, s[{sC}:{sC+3}], s{s_t1} offen offset:{i*1024} lds\n" for i in range(4)) +
              (code_touch(f"{name}_ct3", f"{name}_fin", f"{name}_tail4", 1, z + 7, vDum) if o.get('ipf3', False) else "") + f"""    s_branch {name}_rsxback
{name}_rspoll:
    {rgl}
    s_waitcnt vmcnt(0)
{name}_rs6:
    v_cmp_ne_u32 vcc, 1, v{z+5}
    s_sub_u32 s{s_spin}, s{s_spin}, 1
    s_cbranch_scc1 {name}_rsgo
    s_cbranch_vccnz {name}_rspoll
{name}_rsgo:
    s_lshl_b32 s{s_t0}, s{s_w}, 13
    s_add_u32 s{s_t0}, s{s_t0}, {XT + 4096}
    v_lshl_add_u32 v{z+6}, v0, 2, s{s_t0}
    v_xor_b32 v{z+7}, 128, v{vRA}
    ds_write_b32 v{z+6}, v{z+4}
""" + "".join(f"    ds_read_b128 {rr('v', RSV + 16*x + 4*jj, 4)}, v{z+7 if x else vRA} offset:{jj*32}\n" for x in range(2) for jj in range(4)) +
              "".join(f"    v_xor_b32 v{z+F}, {32*F}, v{vXA}\n" + "".join(f"    ds_read_b64 {rr('v', 40 + t*16 + F*2, 2)}, v{z+F} offset:{t*2048}\n" for t in range(2))
                      for F in range(4)) + f"    s_branch {name}_rsxback"))

    slow = p.segment()
    p(f"{name}_slow:")
    p.fence()
    for x in range(2):
        p(f"v_mov_b32 v{Nb(x)}, 0xff800000")
    p(f"s_mov_b32 s{s_ko}, 0\ns_mov_b32 s{sA+2}, {KV[1]}")
    p.begin_loop(f"{name}_max_loop", 64, align=False)
    p.add([kld(0, 0), kld(0, 1)])
    for x in range(2):
        p(mf32(rr('v', Sb(x), 16), Kf(0, 0), Q(x, 0), "0"))
        p(mf32(rr('v', Sb(x), 16), Kf(0, 1), Q(x, 1)))
    for x in range(2):
        for i in range(0, 16, 2):
            p(f"v_max3_f32 v{Nb(x)}, v{Nb(x)}, v{Sb(x)+i}, v{Sb(x)+i+1}")
    p(f"""
    s_add_u32 s{s_ko}, s{s_ko}, 4096
    s_cmp_lg_u32 s{s_ko}, {64 * 4096}
    s_cbranch_scc1 {name}_max_loop""")
    p.end_loop()
    for x in range(2):
        p(f"""
        v_mov_b32 v{vt}, v{Nb(x)}
        v_permlane32_swap_b32 v{Nb(x)}, v{vt}
        v_max_f32 v{Nb(x)}, v{Nb(x)}, v{vt}
        v_sub_f32 v{Nb(x)}, 0, v{Nb(x)}""")
        for i in range(1, 16):
            p(f"v_mov_b32 v{Nb(x)+i}, v{Nb(x)}")
    p(f"s_mov_b32 s{sA+2}, {KV[1]}")
    fill_kv()
    att_init(NR)
    p(f"s_mov_b32 s{s_safe}, 1")
    attention('safe', lambda y: rr('v', Nb(y), 16), False, [Ins("s_nop 11")])
    p.fence()
    p(f"s_branch {name}_fin")
    p.paths = [[main, red_w, rest], [main, fin, fin_k, rest], [main, fin, fin_v, rest], [slow]]
    return p
```

```python
import re

REG_RE = re.compile(r'^(-|abs\(|\|)*([vas])(\d+)\)?\|?$')
RNG_RE = re.compile(r'^(-|abs\(|\|)*([vas])\[(\d+):(\d+)\]\)?\|?$')
TRANS = ('v_exp_', 'v_log_', 'v_rcp_', 'v_rsq_', 'v_sqrt_', 'v_sin_', 'v_cos_')


def regs_of(tok):
    tok = tok.strip()
    m = REG_RE.match(tok)
    if m:
        return [m.group(2) + m.group(3)]
    m = RNG_RE.match(tok)
    if m:
        return [m.group(2) + str(i) for i in range(int(m.group(3)), int(m.group(4)) + 1)]
    if tok in ('vcc', 'vcc_lo', 'vcc_hi'):
        return ['vcc']
    if tok in ('exec', 'exec_lo', 'exec_hi'):
        return ['exec']
    if tok == 'm0':
        return ['m0']
    return []


class Ins:
    def __init__(self, text, rd=(), wr=(), awr=(), nowaw=False, pend_rd=()):
        self.text = text
        t = text.split(';')[0].strip()
        parts = t.split(None, 1)
        self.op = op = parts[0]
        rest = parts[1] if len(parts) > 1 else ''
        rest = re.sub(r'((?:op_sel|op_sel_hi|neg_lo|neg_hi|quad_perm):\[[^\]]*\])', lambda m: m.group(1).replace(',', '|'), rest)
        toks = [x.strip() for x in rest.split(',')]
        mods = []
        if toks and toks[-1]:
            l = toks[-1].split()
            toks[-1] = l[0]
            mods = l[1:]
        self.toks, self.mods = toks, mods
        R = [regs_of(x) for x in toks]
        self.rd, self.wr, self.awr = set(), set(), set()
        self.q = None
        self.passes = 0
        self.kind = 'salu'
        self.mf_ab, self.mf_c = set(), []
        self.store_data = set()
        self.dpp = any(m.startswith(('row_', 'quad_perm', 'wave_', 'bank_mask')) for m in mods) or op.endswith('_dpp')
        flat = lambda L: [r for x in L for r in x]
        if op.startswith('v_smfmac'):
            self.kind = 'mfma'
            self.passes = 8
            self.wr = set(R[0]); self.mf_d = R[0]
            self.mf_ab = set(R[1] + R[2] + R[3]); self.mf_c = R[0]
            self.rd = self.mf_ab | set(self.mf_c)
        elif op.startswith('v_mfma'):
            self.kind = 'mfma'
            self.passes = 8 if '32x32x16' in op else 4 if '16x16x32' in op else None
            assert self.passes, op
            self.wr = set(R[0]); self.mf_d = R[0]
            self.mf_ab = set(R[1] + R[2]); self.mf_c = R[3]
            self.rd = self.mf_ab | set(self.mf_c)
        elif op.startswith('v_'):
            self.kind = 'trans' if op.startswith(TRANS) else 'valu'
            if op.startswith(('v_permlane16_swap', 'v_permlane32_swap', 'v_swap')):
                self.wr = set(R[0] + R[1]); self.rd = set(R[0] + R[1])
            elif op.startswith(('v_add_co', 'v_sub_co', 'v_addc_co', 'v_subb_co')):
                self.wr = set(R[0] + R[1]); self.rd = set(flat(R[2:]))
            elif op == 'v_nop':
                pass
            else:
                self.wr = set(R[0]); self.rd = set(flat(R[1:]))
                if op.startswith(('v_fmac', 'v_dot2c', 'v_writelane', 'v_mac')) or self.dpp or any('PRESERVE' in m for m in mods) \
                        or any(m.startswith('op_sel') for m in mods) and op.startswith('v_cvt'):
                    self.rd |= set(R[0])
        elif op.startswith('ds_'):
            self.kind = 'ds'; self.q = 'lg'
            if op.startswith(('ds_read', 'ds_bpermute', 'ds_permute', 'ds_swizzle')) or '_rtn' in op:
                self.awr = set(R[0]); self.rd = set(flat(R[1:]))
            else:
                self.rd = set(flat(R))
        elif op.startswith('buffer_') or op.startswith('global_'):
            self.kind = 'vmem'; self.q = 'vm'
            if op in ('buffer_inv', 'buffer_wbl2'):
                pass
            elif 'lds' in mods:
                self.rd = set(flat(R)) | {'m0'}; self.dma = True
            elif '_load' in op:
                self.awr = set(R[0]); self.rd = set(flat(R[1:]))
            elif '_atomic' in op and 'sc0' in mods:
                self.awr = set(R[0]); self.rd = set(flat(R))
            else:
                self.rd = set(flat(R))
                if op.endswith(('x3', 'x4')):
                    self.store_data = set(R[0] if op.startswith('buffer_') else R[1])
        elif op.startswith(('s_load', 's_buffer_load', 's_memtime', 's_memrealtime')):
            self.kind = 'smem'; self.q = 'sm'
            self.awr = set(R[0]); self.rd = set(flat(R[1:]))
        elif op.startswith(('s_cmp', 's_bitcmp')):
            self.rd = set(flat(R))
        elif op == 'wait':
            self.kind = 'pseudo'
            self.rd = set(flat(R))
        elif op.startswith(('s_waitcnt', 's_barrier', 's_nop', 's_setprio', 's_endpgm', 's_sleep', 's_branch')):
            pass
        elif op.startswith('s_cbranch'):
            if 'vcc' in op: self.rd = {'vcc'}
        elif op.startswith('s_'):
            self.wr = set(R[0]); self.rd = set(flat(R[1:]))
            if 'saveexec' in op:
                self.wr |= {'exec'}
            if op.startswith(('s_addk', 's_mulk', 's_cmov', 's_bitset')):
                self.rd |= set(R[0])
        else:
            raise ValueError('unknown op ' + text)
        self.rd |= set(rd); self.wr |= set(wr); self.awr |= set(awr)
        self.pend_rd = set(pend_rd)
        self.nowaw = nowaw
        self.wait_vm = None; self.wait_lg = None; self.nops = 0


class Label:
    def __init__(self, name): self.name = name


class Loop:
    def __init__(self, label, count, body, align=True):
        self.label, self.count, self.body, self.align = label, count, body, align
        self.exit_at = None


class Raw:
    def __init__(self, text): self.text = text


class Fence:
    pass


class Seg:
    def __init__(self): self.body = []


class Prog:
    def __init__(self):
        self.paths = None
        self.items = []
        self.cur = self.items
        self.stack = []

    def __call__(self, text, **kw):
        for line in text.strip().split('\n'):
            line = line.strip()
            if not line or line.startswith(';'):
                continue
            if line.endswith(':'):
                self.cur.append(Label(line[:-1]))
            else:
                self.cur.append(Ins(line, **kw))

    def add(self, x):
        if isinstance(x, str):
            self(x)
        elif isinstance(x, (list, tuple)):
            for y in x: self.add(y)
        else:
            self.cur.append(x)

    def begin_loop(self, label, count, align=True):
        lp = Loop(label, count, [], align)
        self.cur.append(lp)
        self.stack.append(self.cur)
        self.cur = lp.body

    def mark_exit(self):
        self.stack[-1][-1].exit_at = len(self.cur)

    def end_loop(self):
        self.cur = self.stack.pop()

    def fence(self):
        self.cur.append(Fence())

    def trace(self, items=None):
        for it in (self.items if items is None else items):
            if isinstance(it, Loop):
                for _ in range(min(it.count, 6)):
                    yield from self.trace(it.body)
                if it.exit_at is not None:
                    yield from self.trace(it.body[:it.exit_at])
            elif isinstance(it, Seg):
                yield from self.trace(it.body)
            else:
                yield it

    def all_paths(self):
        for path in (self.paths or [self.items]):
            yield from self.trace(path)
            yield Fence()

    def segment(self):
        seg = Seg()
        self.items.append(seg)
        self.cur = seg.body
        return seg

    def auto_waits(self):
        changed = True
        while changed:
            changed = False
            vm, lg = [], []
            for it in self.all_paths():
                if isinstance(it, Fence):
                    vm, lg = [], []
                    continue
                if not isinstance(it, Ins):
                    continue
                if it.op == 's_waitcnt':
                    m = re.search(r'vmcnt\((\d+)\)', it.text)
                    if m: vm = vm[len(vm) - min(len(vm), int(m.group(1))):]
                    m = re.search(r'lgkmcnt\((\d+)\)', it.text)
                    if m:
                        n = int(m.group(1))
                        if n == 0 or not any(o.q == 'sm' for o in lg):
                            lg = lg[len(lg) - min(len(lg), n):]
                    continue
                touch = it.rd | it.wr | (set() if it.nowaw else it.awr)
                wrs = it.wr | it.awr

                def need(q):
                    k = -1
                    for i, o in enumerate(q):
                        if (o.awr & touch) or (o.pend_rd & wrs):
                            k = i
                    return k
                k = need(vm)
                if k >= 0:
                    n = min(62, len(vm) - k - 1)
                    if it.wait_vm is None or n < it.wait_vm:
                        it.wait_vm = n; changed = True
                k = need(lg)
                if k >= 0:
                    n = 0 if any(o.q == 'sm' for o in lg) else min(14, len(lg) - k - 1)
                    if it.wait_lg is None or n < it.wait_lg:
                        it.wait_lg = n; changed = True
                if it.wait_vm is not None:
                    vm = vm[len(vm) - min(len(vm), it.wait_vm):]
                if it.wait_lg is not None:
                    if it.wait_lg == 0 or not any(o.q == 'sm' for o in lg):
                        lg = lg[len(lg) - min(len(lg), it.wait_lg):]
                if it.q == 'vm': vm.append(it)
                elif it.q in ('lg', 'sm'): lg.append(it)

    def auto_nops(self):
        changed = True
        while changed:
            changed = False
            pos = 0
            lw = {}
            lc = {}
            ls = {}
            for it in self.all_paths():
                if isinstance(it, Fence):
                    pos += 40
                    continue
                if not isinstance(it, Ins):
                    continue
                if it.wait_vm is not None or it.wait_lg is not None:
                    pos += 1
                if it.kind == 'pseudo':
                    continue
                base = pos
                req = 0

                def after(p, n):
                    nonlocal req
                    req = max(req, p + 1 + n)
                isvalu = it.kind in ('valu', 'trans')
                for r in it.rd | it.wr | it.awr:
                    if r not in lw: continue
                    p, w = lw[r]
                    if w.kind == 'mfma':
                        big = 12 if w.passes == 8 else 8
                        if it.kind == 'mfma':
                            if r in it.mf_ab: after(p, big)
                            if r in it.mf_c:
                                if it.mf_c == w.mf_d and it.passes == w.passes: pass
                                else: after(p, big - 2)
                            elif r in it.wr and r not in it.rd:
                                after(p, big - 2)
                        else:
                            after(p, big)
                    elif w.kind in ('valu', 'trans'):
                        if r in it.rd:
                            if r[0] in 'va' and r != 'vcc':
                                if it.kind == 'mfma': after(p, 2)
                                if it.op.startswith(('v_readfirstlane', 'v_readlane')): after(p, 1)
                                if it.op.startswith('v_permlane') or it.dpp: after(p, 2)
                                if w.kind == 'trans' and it.kind != 'trans': after(p, 1)
                                if w.kind == 'trans' and it.kind == 'trans': after(p, 1)
                                if any(m.startswith(('op_sel', 'dst_sel')) for m in w.mods) and isvalu and not w.op.startswith('v_pk_'): after(p, 1)
                            else:
                                if it.kind == 'vmem': after(p, 5)
                                if isvalu: after(p, 4 if it.op.startswith(('v_readlane', 'v_writelane')) else 2)
                                if it.kind in ('salu', 'smem'): after(p, 1)
                    elif w.kind == 'salu':
                        if r == 'm0' and r in it.rd and it.kind in ('vmem', 'ds'): after(p, 1)
                if isvalu or it.awr:
                    for r in it.wr | it.awr:
                        if r in lc and isvalu:
                            p, ps = lc[r]
                            after(p, 7 if ps == 8 else 3)
                        if r in ls: after(ls[r], 2)
                n = max(0, req - base)
                if n > it.nops:
                    it.nops = n; changed = True
                pos = base + it.nops
                for r in it.wr: lw[r] = (pos, it)
                for r in it.awr: lw.pop(r, None)
                if it.kind == 'mfma':
                    for r in it.mf_c: lc[r] = (pos, it.passes)
                for r in it.store_data: ls[r] = pos
                if it.op == 's_nop':
                    pos += int(it.toks[0])
                pos += 1

    def emit(self, items=None, ind='    '):
        out = []
        for it in (self.items if items is None else items):
            if isinstance(it, Loop):
                if it.align:
                    out.append('.p2align 6')
                out.append(it.label + ':')
                out += self.emit(it.body, ind)
            elif isinstance(it, Seg):
                out += self.emit(it.body, ind)
            elif isinstance(it, Label):
                out.append(it.name + ':')
            elif isinstance(it, Raw):
                out.append(it.text)
            elif isinstance(it, Fence):
                out += [ind + 's_waitcnt vmcnt(0) lgkmcnt(0)', ind + 's_nop 15']
            else:
                w = []
                if it.wait_vm is not None: w.append(f'vmcnt({it.wait_vm})')
                if it.wait_lg is not None: w.append(f'lgkmcnt({it.wait_lg})')
                if w: out.append(ind + 's_waitcnt ' + ' '.join(w))
                n = it.nops
                while n > 0:
                    k = min(n, 16)
                    out.append(ind + f's_nop {k - 1}')
                    n -= k
                if it.kind != 'pseudo':
                    out.append(ind + it.text)
        return out

    def finish(self):
        self.auto_waits()
        self.auto_nops()
        return '\n'.join(self.emit())

    def max_regs(self):
        mx = {'v': -1, 'a': -1, 's': -1}
        for it in self.trace():
            if isinstance(it, Ins):
                for r in it.rd | it.wr | it.awr:
                    if r[0] in mx and r[1:].isdigit():
                        mx[r[0]] = max(mx[r[0]], int(r[1:]))
        return mx


def rr(kind, base, n=1):
    return f'{kind}{base}' if n == 1 else f'{kind}[{base}:{base + n - 1}]'


def kernel_text(name, prog, min_v=0):
    body = prog.finish()
    mx = prog.max_regs()
    nv = max(mx['v'] + 1, min_v, 4)
    acc = (nv + 3) // 4 * 4
    tot = acc + mx['a'] + 1 if mx['a'] >= 0 else nv
    code = f""".globl {name}
.p2align 8
.type {name},@function
{name}:
{body}
"""
    desc = f""".amdhsa_kernel {name}
  .amdhsa_next_free_vgpr {tot}
  .amdhsa_next_free_sgpr {max(mx['s'] + 1, 16)}
  .amdhsa_accum_offset {acc}
  .amdhsa_group_segment_fixed_size 0
  .amdhsa_kernarg_size 96
  .amdhsa_user_sgpr_count 2
  .amdhsa_user_sgpr_kernarg_segment_ptr 1
  .amdhsa_system_sgpr_workgroup_id_x 1
  .amdhsa_float_denorm_mode_32 3
.end_amdhsa_kernel
"""
    return code, desc
```

```python
from common import *

LDS_TOTAL = 163840
ST_MR = 0x0000
ST_RS2 = 0x60000
ST_MP = 0x28000
ST_FO = 0x80000
ST_FC = 0xA0000
ST_FH = 0xC0000
ST_FY = 0x120000
ST_FX = 0xE0000
ST_KVC = 0x4000
SPIN = 1 << 20

pX, pWQ, pWK, pWV, pWO, pWG, pWU, pWD, pOUT, pDBG, pWS = 4, 6, 8, 10, 12, 16, 18, 20, 22, 24, 26
sA, sB, sC, sD, sE, sT = 28, 32, 36, 40, 44, 48
s_w, s_b, s_j, s_tok, s_t0, s_t1, s_t2, s_cnt, s_spin = 52, 53, 54, 55, 56, 57, 58, 59, 60
vL16, vZ, vOne = 1, 2, 3
aMEAN, aHR, aA5 = 238, 240, 160


def srd(p, s, ptr, size, off=None, bias=0):
    if off is not None:
        p(f"s_add_u32 s{s}, s{ptr}, s{off}\ns_addc_u32 s{s+1}, s{ptr+1}, 0")
        ptr = s
    if bias > 0:
        p(f"s_add_u32 s{s}, s{ptr}, {hex(bias)}\ns_addc_u32 s{s+1}, s{ptr+1}, 0")
    elif bias < 0:
        p(f"s_sub_u32 s{s}, s{ptr}, {hex(-bias)}\ns_subb_u32 s{s+1}, s{ptr+1}, 0")
    elif off is None:
        p(f"s_mov_b64 s[{s}:{s+1}], s[{ptr}:{ptr+1}]")
    if isinstance(size, str):
        p(size.format(d=f"s{s+2}"))
    else:
        p(f"s_mov_b32 s{s+2}, {hex(size)}")
    p(f"s_mov_b32 s{s+3}, 0x20000")


PFL = ['sc1', 'sc1', 'buffer_store_dword']


def arrive(p, soff):
    p("s_waitcnt vmcnt(0)")
    p(f"{PFL[2]} v{vOne}, v{vZ}, s[{sT}:{sT+3}], s{soff} offen {PFL[1]}")


SLEEP = [0]


def poll(p, label, soff, n, vtmp, target=1, skip=None):
    p(f"""
    s_mov_b32 s{s_spin}, {SPIN}
    v_lshlrev_b32 v{vtmp+1}, 7, v0
    s_mov_b64 exec, {hex((1 << n) - 1) if n < 32 else 0xffff}
    {'s_mov_b32 exec_lo, -1' if n == 32 else ''}
    {f's_bitset0_b32 exec_lo, s{skip}' if skip else ''}""")
    p.add(Raw(f"""    s_branch {label}_go
{label}:
    {f's_sleep {SLEEP[0]}' if SLEEP[0] else ''}
{label}_go:
    buffer_load_dword v{vtmp}, v{vtmp+1}, s[{sT}:{sT+3}], s{soff} offen {PFL[0]}
    s_sub_u32 s{s_spin}, s{s_spin}, 1
    s_waitcnt vmcnt(0)
    v_cmp_gt_u32 vcc, {target}, v{vtmp}
    s_cbranch_scc1 {label}_done
    s_cbranch_vccnz {label}
{label}_done:"""))
    p("s_mov_b64 exec, -1")
    p("s_waitcnt vmcnt(0)")


def spread(vm, start, step):
    fill, pos = {}, start
    for ins in vm:
        fill.setdefault(pos, []).append(ins)
        if ins.kind == 'vmem':
            pos += step
    return fill


def zz(f, nt, nk, on=True):
    if not on:
        return [(t, k) for t in range(nt) for k in range(nk)]
    ts = list(range(nt)) if f % 2 == 0 else list(range(nt - 1, -1, -1))
    return [(t, k if n % 2 == 0 else nk - 1 - k) for n, t in enumerate(ts) for k in range(nk)]


def code_touch(tag, first, last, lines, vtmp, vdst):
    return f"""    s_getpc_b64 s[74:75]
{tag}:
    s_lshr_b32 s{s_t0}, s2, 3
    s_lshl_b32 s{s_t0}, s{s_t0}, 2
    s_add_u32 s{s_t0}, s{s_t0}, s{s_w}
    s_mul_i32 s{s_t0}, s{s_t0}, {128 * lines}
    s_min_u32 s{s_t0}, s{s_t0}, {last}-{first}
    s_sub_u32 s74, s74, {tag}-{first}
    s_subb_u32 s75, s75, 0
    v_min_u32 v{vtmp}, {lines - 1}, v0
    v_lshl_add_u32 v{vtmp}, v{vtmp}, 7, s{s_t0}
    global_load_dword v{vdst}, v{vtmp}, s[74:75]
"""


def gen_fused(name, o):
    ZZ = o.get('zz', True)
    dbg = o.get('dbg', '')
    SLEEP[0] = o.get('sleep', 0)
    PFL[:] = o.get('pfl', PFL)
    KVSC = 'sc1' if o.get('kvsc1', False) else ''
    p = Prog()
    main = p.segment()
    p(f"""
    s_cmp_ge_u32 s2, 256
    s_cbranch_scc1 {name}_end
    s_load_dwordx16 s[4:19], s[0:1], 0
    s_load_dwordx8 s[20:27], s[0:1], 64
    v_lshrrev_b32 v1, 6, v0
    v_and_b32 v0, 63, v0
    v_readfirstlane_b32 s{s_w}, v1
    s_and_b32 s{s_t0}, s2, 7
    s_lshr_b32 s{s_t1}, s2, 3
    s_lshr_b32 s{s_b}, s{s_t0}, 1
    s_lshl_b32 s{s_b}, s{s_b}, 2
    s_and_b32 s{s_j}, s{s_t1}, 3
    s_add_u32 s{s_b}, s{s_b}, s{s_j}
    s_and_b32 s{s_j}, s{s_t0}, 1
    s_lshl_b32 s{s_j}, s{s_j}, 3
    s_lshr_b32 s{s_t1}, s{s_t1}, 2
    s_add_u32 s{s_j}, s{s_j}, s{s_t1}
    {f"s_xor_b32 s{s_j}, s{s_j}, {o['jxor']}" if o.get('jxor') else ''}
    s_lshl_b32 s{s_tok}, s{s_b}, 2
    s_add_u32 s{s_tok}, s{s_tok}, s{s_w}
    s_lshl_b32 s{s_tok}, s{s_tok}, 5
    v_lshlrev_b32 v{vL16}, 4, v0
    v_cmp_eq_u32 vcc, 0, v0
    v_mov_b32 v{vOne}, 0x7ffffff0
    v_cndmask_b32 v{vZ}, v{vOne}, 0, vcc
    v_mov_b32 v{vOne}, 1
    """)

    R3 = o.get('rot3', False)
    SL = 24576
    RED, CSQ = 147456, 162816
    vt = 4
    vD = 12
    vD0 = 18
    vB = 22
    vA = 28
    vST = 34
    ONES = 36
    vRS = 40
    s_kv, s_xoff, s_woff, s_dm, s_pb, s_w6 = 61, 62, 63, 64, 65, 66
    s_hd, s_wdo, s_wm0, s_po, s_pk, s_ko, s_vo, s_pj = 67, 68, 69, 70, 71, 72, 73, 3
    p(f"""
    v_lshrrev_b32 v{vt}, 3, v0
    v_lshrrev_b32 v{vt+1}, 4, v0
    v_and_b32 v{vt+2}, 7, v0
    v_xor_b32 v{vt+3}, v{vt+1}, v{vt+2}
    v_lshlrev_b32 v{vt+3}, 4, v{vt+3}
    v_lshl_add_u32 v{vt+3}, v{vt}, 11, v{vt+3}
    v_xor_b32 v{vt+4}, 64, v{vt+3}
    v_add_u32 v{vD}, 4096, v{vt+3}
    v_add_u32 v{vD+1}, {16384 + 4096 - 1024}, v{vt+4}
    v_add_u32 v{vD0}, {128 + 4096 - 2048}, v{vt+3}
    v_add_u32 v{vD0+1}, {16384 + 128 + 4096 - 3072}, v{vt+4}
    v_lshrrev_b32 v{vt+5}, 5, v0
    v_lshlrev_b32 v{vt+5}, 1, v{vt+5}
    v_xor_b32 v{vt+5}, v{vt+5}, v0
    v_lshlrev_b32 v{vD0+2}, 4, v{vt+5}
    v_add_u32 v{vD+2}, {32768 + 4096 - 2048}, v{vt+3}
    v_add_u32 v{vD+3}, {32768 + 16384 + 4096 - 3072}, v{vt+4}
    v_and_b32 v{vt+1}, 1, v{vt+1}
    v_lshlrev_b32 v{vt+1}, 1, v{vt+1}
    v_xor_b32 v{vt+1}, v{vt+1}, v{vt+2}
    v_lshlrev_b32 v{vt+1}, 4, v{vt+1}
    v_lshl_add_u32 v{vD+4}, v{vt}, 11, v{vt+1}
    v_xor_b32 v{vD+5}, 64, v{vD+4}
    v_add_u32 v{vD+5}, {8*2048 - 1024}, v{vD+5}
    s_lshr_b32 s{s_t0}, s{s_j}, 1
    s_lshl_b32 s{s_kv}, s{s_b}, 3
    s_add_u32 s{s_kv}, s{s_kv}, s{s_t0}
    s_lshl_b32 s{s_kv}, s{s_kv}, 4
    s_lshl_b32 s{s_t0}, s{s_kv}, 11
    s_lshl_b32 s{s_t1}, s{s_w}, 9
    s_add_u32 s{s_t0}, s{s_t0}, s{s_t1}
    s_add_u32 s{s_t1}, s{s_w}, 2
    s_mul_i32 s{s_dm}, s{s_t1}, {SL}
    s_mov_b32 m0, s{s_dm}
    s_mul_i32 s{s_xoff}, s{s_b}, {128 * o.get('rotb', 4)}
    s_mul_i32 s{s_woff}, s{s_j}, {128 * o.get('rotj', 2)}
    s_add_u32 s{s_xoff}, s{s_xoff}, s{s_woff}
    s_and_b32 s{s_xoff}, s{s_xoff}, 2047
    s_mul_i32 s{s_w6}, s{s_w}, 6144
    s_lshl_b32 s{s_ko}, s{s_w}, 14
    s_bfe_u32 s{s_vo}, s{s_j}, 0x20001
    s_lshl_b32 s{s_vo}, s{s_vo}, 14
    s_and_b32 s{s_t1}, s{s_tok}, 0x1e0
    s_lshl_b32 s{s_t1}, s{s_t1}, 5
    s_add_u32 s{s_vo}, s{s_vo}, s{s_t1}
    v_lshlrev_b32 v{vt+6}, 7, v0
    """)
    srd(p, sA, pX, S * D * 2 + 4096, bias=-4096)
    p.add(Raw("; @fine 4"))
    p(f"""
    s_bitcmp0_b32 s{s_j}, 0
    s_cselect_b64 s[{sB}:{sB+1}], s[{pWK}:{pWK+1}], s[{pWV}:{pWV+1}]
    s_mov_b32 s{sB+2}, {D * 64}
    s_mov_b32 s{sB+3}, 0x20000
    """)
    if o.get('kvtouch', True):
        p("s_mov_b64 exec, 0xff")
        p(f"buffer_load_dword v255, v{vt+6}, s[{sB}:{sB+3}], s{s_vo} offen", nowaw=True)
        p.cur[-1].awr = set()
        p("s_mov_b64 exec, -1")
    xo = [vD, vD + 1, vD0, vD0 + 1]
    for n in range(8):
        if n == 4:
            p(f"s_add_u32 m0, m0, 4096\ns_add_u32 s{s_t0}, s{s_t0}, 256")
        p(f"buffer_load_dwordx4 v{xo[n & 3]}, s[{sA}:{sA+3}], s{s_t0} offen offset:{(n & 3) * 1024} lds", awr=['P00'], nowaw=True)

    def wkv(q):
        p("s_add_u32 m0, m0, 4096")
        if q: p(f"s_add_u32 s{s_ko}, s{s_ko}, 4096")
        for i in range(4):
            p(f"buffer_load_dwordx4 v{vD0+2}, s[{sB}:{sB+3}], s{s_ko} offen offset:{i*1024} lds", awr=[f'P0{q}'], nowaw=True)
    EARLY = o.get('early', 0)
    for q in range(EARLY): wkv(q)
    if o.get('sipf', 2):
        p(f"""
        s_getpc_b64 s[0:1]
        s_lshr_b32 s{s_t0}, s2, 3
        s_lshl_b32 s{s_t0}, s{s_t0}, 2
        s_add_u32 s{s_t0}, s{s_t0}, s{s_w}
        s_lshl_b32 s{s_t0}, s{s_t0}, 7
        s_add_u32 s0, s0, s{s_t0}
        s_addc_u32 s1, s1, 0
        s_and_b32 s0, s0, 0xffffff80
        s_load_dword s{s_spin}, s[0:1], 0""")
        if o.get('sipf', 2) == 2: p(f"s_load_dword s{s_cnt}, s[0:1], 64")
    p.add(Raw("; @fine 5"))
    p(f"""
    s_lshl_b32 s{s_t0}, s{s_tok}, 11
    s_lshl_b32 s{s_t1}, s{s_w}, 15
    s_lshl_b32 s{s_t2}, s{s_j}, 7
    s_add_u32 s{s_t1}, s{s_t1}, s{s_t2}
    """)
    srd(p, sC, pX, 32 * 2048 + 4096, off=s_t0, bias=-4096)
    srd(p, sD, pWQ, f"s_sub_u32 {{d}}, {D * D * 2}, s{s_t1}", off=s_t1)

    def dma1(m0expr, tag):
        o_ = [Ins(m0expr), Ins(f"s_lshl_b32 s{s_woff}, s{s_xoff}, 10")]
        for i in range(4):
            o_.append(Ins(f"buffer_load_dwordx4 v{vD+i}, s[{sC}:{sC+3}], s{s_xoff} offen offset:{i*1024} lds", awr=[tag], nowaw=True))
        o_ += [Ins("s_add_u32 m0, m0, 4096"), Ins(f"s_add_u32 s{s_xoff}, s{s_xoff}, 128")]
        for i in range(2):
            o_.append(Ins(f"buffer_load_dwordx4 v{vD+4+i}, s[{sD}:{sD+3}], s{s_woff} offen offset:{i*1024} lds", awr=[tag], nowaw=True))
        o_.append(Ins(f"s_and_b32 s{s_xoff}, s{s_xoff}, 2047"))
        return o_
    if o.get('qtouch', True):
        srd(p, sE, pWQ, D * D * 2)
        p(f"""
        s_lshr_b32 s{s_t0}, s2, 3
        s_lshl_b32 s{s_t0}, s{s_t0}, 2
        s_add_u32 s{s_t0}, s{s_t0}, s{s_w}
        s_lshl_b32 s{s_t0}, s{s_t0}, 14
        s_and_b32 s{s_t1}, s{s_j}, 8
        s_lshl_b32 s{s_t1}, s{s_t1}, 7
        s_add_u32 s{s_t0}, s{s_t0}, s{s_t1}
        v_lshlrev_b32 v{vt+6}, 11, v0
        s_mov_b64 exec, 0xff""")
        p(f"buffer_load_dword v255, v{vt+6}, s[{sE}:{sE+3}], s{s_t0} offen offset:384", nowaw=True)
        p.cur[-1].awr = set()
        if o.get('qlin', True):
            p(f"""
            s_lshl_b32 s{s_t0}, s2, 2
            s_add_u32 s{s_t0}, s{s_t0}, s{s_w}
            s_lshl_b32 s{s_t0}, s{s_t0}, 11
            s_mov_b64 exec, 0xffff
            v_lshlrev_b32 v{vt+6}, 7, v0""")
            p(f"buffer_load_dword v255, v{vt+6}, s[{sE}:{sE+3}], s{s_t0} offen", nowaw=True)
            p.cur[-1].awr = set()
        p("s_mov_b64 exec, -1")
    srd(p, sE, pWO, D * D * 2)

    srd(p, sT, pWS, ST[1], bias=ST[0])
    srd(p, sA, pWS, KV[1], bias=KV[0])
    p(f"""
    v_and_b32 v{vt}, 15, v0
    v_lshrrev_b32 v{vt+1}, 1, v{vt}
    v_lshrrev_b32 v{vt+2}, 4, v0
    v_xor_b32 v{vt+1}, v{vt+1}, v{vt+2}
    v_lshlrev_b32 v{vt+1}, 4, v{vt+1}
    v_lshl_add_u32 v{vt+1}, v{vt}, 7, v{vt+1}
    v_xor_b32 v{vt+3}, 64, v{vt+1}
    v_add_u32 v{vB}, s{s_w6}, v{vt+1}
    v_add_u32 v{vB+1}, s{s_w6}, v{vt+3}
    v_add_u32 v{vA}, s{s_dm}, v{vt+1}
    v_add_u32 v{vA+1}, s{s_dm}, v{vt+3}
    v_lshrrev_b32 v{vt}, 5, v0
    v_and_b32 v{vt+1}, 3, v0
    v_lshlrev_b32 v{vt+1}, 3, v{vt+1}
    v_bfe_u32 v{vt+2}, v0, 2, 2
    v_bfe_u32 v{vt+3}, v0, 4, 1
    v_lshl_add_u32 v{vt+2}, v{vt+3}, 3, v{vt+2}
    v_lshl_add_u32 v{vt+4}, v{vt}, 10, v{vt+1}
    v_lshl_add_u32 v{vt+4}, v{vt+2}, 6, v{vt+4}
    v_lshl_add_u32 v{vt+4}, v{vt+3}, 5, v{vt+4}
    v_add_u32 v{vA+2}, s{s_dm}, v{vt+4}
    v_xor_b32 v{vA+3}, 32, v{vA+2}
    v_mul_u32_u24 v{vt}, 6144, v{vt}
    v_add_u32 v{vt}, v{vt}, v{vt+1}
    v_lshl_add_u32 v{vt}, v{vt+2}, 7, v{vt}
    v_bfe_u32 v{vt+4}, v0, 3, 2
    v_xor_b32 v{vt+4}, s{s_w}, v{vt+4}
    v_lshl_add_u32 v{vB+2}, v{vt+4}, 5, v{vt}
    v_xor_b32 v{vB+3}, 32, v{vB+2}
    v_xor_b32 v{vB+4}, 64, v{vB+2}
    v_xor_b32 v{vB+5}, 0x60, v{vB+2}
    """)
    for i in range(4):
        p(f"v_mov_b32 v{ONES+i}, 0x3f803f80")
    on = rr('v', ONES, 4)
    AB = 48
    CSA = 80
    PA = 84
    FB = 128
    TR = 112
    NR = 8
    Q = lambda x, m: rr('v', 16 + x * 8 + m * 4, 4) if x < 2 else rr('a', 112 + (x - 2) * 8 + m * 4, 4)
    Sb = lambda x: 64 + 16 * x
    RSV = 112
    Nb = lambda x: 144 + 16 * x
    Ob = lambda x: 176 + 16 * x if x < 2 else 144 + 16 * (x - 2)
    Lb = lambda x: 208 + 4 * x if x < 2 else 96 + 4 * (x - 2)
    XT = 131072
    Pb = lambda x: 216 + 8 * x
    SEL, vWD, vPF, vDum, vOS, vPW, vCS, vGP, vMA, vRA, vXS, vXR, vXA = 232, 236, 240, 241, 242, 243, 244, 245, 246, 247, 248, 249, 250

    def att_init(nr):
        for i in list(range(Ob(0), Lb(1) + 4, 2)) + list(range(Pb(1), Pb(1) + 8, 2)):
            p(f"v_pk_mov_b32 {rr('v', i, 2)}, 0, 0")
        for i in range(8): p(f"v_accvgpr_write_b32 a{64 + (nr-1)*8 + i}, 0")
    for i in range(AB, CSA + 4, 2):
        p(f"v_pk_mov_b32 {rr('v', i, 2)}, 0, 0")
    p.add(Raw(f"""    s_or_b32 s{s_t0}, s2, s{s_w}
    s_cbranch_scc1 {name}_noclr
    s_movk_i32 s{s_t0}, {ST_KVC}
""" + "".join(f"    buffer_store_dwordx4 {rr('v', AB, 4)}, v{vL16}, s[{sT}:{sT+3}], s{s_t0} offen offset:{i*1024} sc1\n" for i in range(4)) + f"{name}_noclr:"))
    att_init(4)
    p(f"""
    v_lshrrev_b32 v{vt}, 2, v0
    v_and_b32 v{vt}, 4, v{vt}
    v_xor_b32 v{vt}, v{vt}, v0
    v_and_b32 v{vt}, 7, v{vt}
    v_cmp_eq_u32 vcc, 0, v{vt}
    v_lshrrev_b32 v{vt}, 3, v0
    v_and_b32 v{vt+1}, 6, v{vt}
    v_cndmask_b32 v{SEL}, 0, v{ONES}, vcc
    v_mov_b32 v{SEL+1}, v{SEL}
    v_mov_b32 v{SEL+2}, v{SEL}
    v_mov_b32 v{SEL+3}, v{SEL}
    v_and_b32 v{vt+2}, 7, v0
    v_xor_b32 v{vt+1}, v{vt+1}, v{vt+2}
    v_lshlrev_b32 v{vt+1}, 4, v{vt+1}
    v_lshl_add_u32 v{vWD}, v{vt}, 11, v{vt+1}
    v_add_u32 v{vWD+1}, {8*2048 - 1024}, v{vWD}
    v_add_u32 v{vWD+2}, {16*2048 - 2048}, v{vWD}
    v_add_u32 v{vWD+3}, {24*2048 - 3072}, v{vWD}
    s_lshl_b32 s{s_wdo}, s{s_w}, 16
    s_lshl_b32 s{s_t1}, s{s_j}, 7
    s_add_u32 s{s_wdo}, s{s_wdo}, s{s_t1}
    s_lshl_b32 s{s_wm0}, s{s_w}, 12
    {f's_and_b32 s{s_t0}, s{s_j}, 1' if R3 else ''}
    {f's_lshl_b32 s{s_t0}, s{s_t0}, 16' if R3 else ''}
    {f's_add_u32 s{s_wm0}, s{s_wm0}, s{s_t0}' if R3 else ''}
    s_lshl_b32 s{s_pj}, s{s_tok}, 6
    s_add_u32 s{s_pj}, s{s_pj}, s{s_t1}
    s_lshl_b32 s{s_hd}, s{s_j}, 1
    s_lshr_b32 s{s_t0}, s{s_w}, 1
    s_add_u32 s{s_hd}, s{s_hd}, s{s_t0}
    v_mul_u32_u24 v{vt}, 9363, v0
    v_lshrrev_b32 v{vt}, 16, v{vt}
    v_mul_u32_u24 v{vt+1}, {7168 - 7*128}, v{vt}
    v_cmp_gt_u32 vcc, 14, v0
    v_lshl_add_u32 v{vPF}, v0, 7, v{vt+1}
    s_lshr_b32 s{s_t0}, s2, 3
    v_cndmask_b32 v{vPF}, -1, v{vPF}, vcc
    v_and_b32 v{vPF}, 0x7fffff80, v{vPF}
    s_lshl_b32 s{s_t0}, s{s_t0}, 2
    s_add_u32 s{s_t0}, s{s_t0}, s{s_w}
    s_mul_i32 s{s_pk}, s{s_t0}, {2 * 7168}
    s_and_b32 s{s_t0}, s2, 7
    s_mul_i32 s{s_t0}, s{s_t0}, 896
    s_add_u32 s{s_pk}, s{s_pk}, s{s_t0}
    v_and_b32 v{vt}, 15, v0
    v_bfe_u32 v{vt+1}, v0, 4, 1
    v_lshrrev_b32 v{vt+2}, 5, v0
    v_lshrrev_b32 v{vt+3}, 4, v0
    v_lshlrev_b32 v{vMA}, 3, v{vt}
    s_lshl_b32 s{s_t0}, s{s_w}, 13
    s_add_u32 s{s_t0}, s{s_t0}, {XT}
    v_add_u32 v{vXS}, s{s_t0}, v{vL16}
    v_xor_b32 v{vXR}, 0x2000, v{vXS}
    v_lshrrev_b32 v{vt+4}, 1, v{vt}
    v_xor_b32 v{vt+4}, v{vt+4}, v{vt+2}
    v_lshlrev_b32 v{vt+4}, 4, v{vt+4}
    v_lshl_add_u32 v{vt+4}, v{vt}, 7, v{vt+4}
    v_lshl_add_u32 v{vt+4}, v{vt+1}, 3, v{vt+4}
    v_add_u32 v{vXA}, s{s_t0}, v{vt+4}
    s_and_b32 s{s_t1}, s{s_w}, 2
    s_lshl_b32 s{s_t1}, s{s_t1}, 6
    s_add_u32 s{s_t0}, s{s_t0}, s{s_t1}
    s_add_u32 s{s_t0}, s{s_t0}, 4096
    v_lshl_add_u32 v{vRA}, v{vt+2}, 4, s{s_t0}
    v_add_u32 v253, 8192, v{vL16}
    v_lshl_add_u32 v{vPW}, v{vt+3}, 2, v{vMA}
    v_lshlrev_b32 v{vt}, 4, v{vt}
    v_lshl_add_u32 v{vOS}, v{vt+1}, 15, v{vt}
    v_lshl_add_u32 v{vOS}, v{vt+2}, 8, v{vOS}
    s_lshl_b32 s{s_t0}, s{s_w}, 6
    s_add_u32 s{s_t0}, s{s_t0}, {CSQ}
    v_lshl_add_u32 v{vCS}, v{vt+3}, 4, s{s_t0}
    v_lshlrev_b32 v{vGP}, 5, v{vMA}
    s_bitcmp1_b32 s{s_j}, 0
    s_cselect_b32 s{s_t0}, 9, 10
    s_cselect_b32 s{s_t1}, 8, 9
    v_lshl_add_u32 v{vST}, v{vt+1}, s{s_t0}, v{vt}
    v_lshl_add_u32 v{vST}, v{vt+2}, s{s_t1}, v{vST}
    s_mul_i32 s{s_t0}, s{s_w}, 5120
    s_add_u32 s{s_t0}, s{s_t0}, {RED - 5120}
    v_add_u32 v{vST+1}, s{s_t0}, v{vL16}
    v_and_b32 v{vt}, 3, v0
    v_cmp_eq_u32 s[0:1], 1, v{vt}
    v_cmp_eq_u32 s[14:15], 2, v{vt}
    v_cmp_eq_u32 s[74:75], 3, v{vt}
    v_bfe_u32 v{vt}, v0, 2, 2
    v_cmp_eq_u32 vcc, v{vt}, v{vt+3}
    """)
    SMF = o.get('smf', True)
    vIX = 252
    if SMF:
        p(f"""
        v_and_b32 v{vt+5}, 6, v0
        v_cmp_eq_u32 s[{sB}:{sB+1}], 0, v{vt+5}
        """.replace(f"s[{sB}:{sB+1}]", "s[76:77]" if False else "s[58:59]"))
        p(f"""
        v_cndmask_b32 v{SEL}, 0, v{ONES}, s[58:59]
        v_cndmask_b32 v{SEL+1}, 0, v{ONES}, s[58:59]
        v_cmp_eq_u32 s[58:59], 4, v{vt+5}
        v_and_b32 v{vIX}, 1, v0
        v_mul_u32_u24 v{vIX}, 0xaaaa, v{vIX}
        v_cndmask_b32 v{SEL+2}, 0, v{ONES}, s[58:59]
        v_cndmask_b32 v{SEL+3}, 0, v{ONES}, s[58:59]
        v_add_u32 v{vIX}, 0x4444, v{vIX}""")
    smf = lambda x: f"v_smfmac_f32_16x16x64_bf16 {rr('v', Lb(x), 4)}, {rr('v', SEL, 4)}, {rr('v', Pb(x & 1), 8)}, v{vIX}"
    for q in range(EARLY, 4): wkv(q)
    srd(p, sB, pDBG, 256)
    p.add(Raw("; @stamp 0"))
    X0 = lambda G: rr('a', FB + 4 * G, 4)
    W0 = lambda G, e: rr('a', FB + 32 + (G * 2 + e) * 4, 4)
    acc0 = lambda k: rr('v', PA + 4 * k, 4)

    def rd0(q):
        o_ = []
        for G in (2 * q, 2 * q + 1):
            o_.append(Ins(f"ds_read_b128 {X0(G)}, v{vA + (G & 1)} offset:{q * 2048}", rd=[f'P0{q}']))
            o_ += [Ins(f"ds_read_b64_tr_b16 {rr('a', FB + 32 + (G*2+e)*4 + 2*b, 2)}, v{vA+2+e} offset:{8192 + G*2048 + b*256}")
                   for e in range(2) for b in range(2)]
        return o_

    def mf0(q):
        o_ = []
        for G in (2 * q, 2 * q + 1):
            c = "0" if G == 0 else None
            o_ += [mf16(acc0(4), on, X0(G), c), mf16(acc0(5), X0(G), X0(G), c), mf16(acc0(0), W0(G, 0), X0(G), c),
                   mf16(acc0(2), W0(G, 0), on, c), mf16(acc0(1), W0(G, 1), X0(G), c), mf16(acc0(3), W0(G, 1), on, c)]
        return o_
    p.add(rd0(0))
    p.add(Raw("; @fine 6"))
    later = dma1(f"s_mov_b32 m0, s{s_w6}", 'L0') + dma1(f"s_add_u32 m0, s{s_w6}, {SL}", 'Lx')

    def some(k):
        n = 0
        while later and n < k:
            x = later.pop(0); p.add(x); n += x.kind == 'vmem'
    RSA = PA + 24
    for q in range(4):
        rds = rd0(q + 1) if q < 3 else []
        for i, m in enumerate(mf0(q)):
            p(m)
            if rds: p.add(rds.pop(0))
            if i % 4 == 1: some(1)
    assert EARLY < 4
    p.add(Raw(f"""    s_or_b32 s{s_t0}, s2, s{s_w}
    s_cbranch_scc1 {name}_nordy
    buffer_store_dword v{vOne}, v{vZ}, s[{sB}:{sB+3}], 0 offen sc1
{name}_nordy:"""))
    some(99)
    p.add(Raw("; @fine 7"))
    g = PA + 20
    p(f"""
    v_cndmask_b32 v{g}, v{g}, v{g+1}, s[0:1]
    v_cndmask_b32 v{g}, v{g}, v{g+2}, s[14:15]
    v_cndmask_b32 v{g}, v{g}, v{g+3}, s[74:75]
    v_cndmask_b32 v{PA+17}, 0, v{g}, vcc
    s_cmp_eq_u32 s{s_w}, 0
    s_cbranch_scc1 {name}_p0fin
    """)
    red_w = p.segment()
    for k in (4, 0, 2, 1, 3):
        p(f"ds_write_b128 v{vST+1}, {acc0(k)} offset:{k*1024}")
    p("s_waitcnt lgkmcnt(0)")
    p("s_barrier")
    p(f"s_branch {name}_p1")
    fin = p.segment()
    p(f"{name}_p0fin:")
    p(f"""
    s_mov_b32 s{s_t1}, {f32hex(1.0/1024)}""")
    p("s_barrier")
    for k in (4, 0, 2, 1, 3):
        for w in range(3):
            p(f"ds_read_b128 {rr('v', TR + (k*3+w)*4, 4)}, v{vST+1} offset:{5120*(w+1) + k*1024}")

    def red(k):
        a, b = PA + 4 * k, TR + k * 12
        for h in (0, 2):
            p(f"v_pk_add_f32 {rr('v', a+h, 2)}, {rr('v', a+h, 2)}, {rr('v', b+h, 2)}")
            p(f"v_pk_add_f32 {rr('v', b+4+h, 2)}, {rr('v', b+4+h, 2)}, {rr('v', b+8+h, 2)}")
        for h in (0, 2):
            p(f"v_pk_add_f32 {rr('v', a+h, 2)}, {rr('v', a+h, 2)}, {rr('v', b+4+h, 2)}")
    vM, vR = PA + 20, PA + 21
    d = PA + 24
    red(4)
    xsum16_32(p, f"v{PA+17}", f"v{vt}")
    p(f"""
    v_mul_f32 v{vM}, s{s_t1}, v{PA+16}
    v_mul_f32 v{vt}, v{vM}, v{vM}
    v_fma_f32 v{vt}, v{PA+17}, s{s_t1}, -v{vt}
    v_max_f32 v{vt}, 0, v{vt}
    v_add_f32 v{vt}, {f32hex(1e-5)}, v{vt}
    v_rsq_f32 v{vR}, v{vt}
    s_lshr_b32 s{s_t0}, s{s_kv}, 5
    s_lshl_b32 s{s_t0}, s{s_t0}, 12
    s_bfe_u32 s{s_t1}, s{s_kv}, 0x10004
    """)
    mr = rr('v', vM, 2)
    for e in range(2):
        red(e); red(2 + e)
        a = PA + 4 * e
        for r in (0, 2): p(f"v_pk_fma_f32 {rr('v', a+r, 2)}, {rr('v', a+8+r, 2)}, {mr}, {rr('v', a+r, 2)} op_sel_hi:[1,0,1] neg_lo:[0,1,0] neg_hi:[0,1,0]")
        for r in (0, 2): p(f"v_pk_mul_f32 {rr('v', a+r, 2)}, {rr('v', a+r, 2)}, {mr} op_sel:[0,1]")
        p(f"v_cvt_pk_bf16_f32 v{d+2*e}, v{a}, v{a+1}")
        p(f"v_cvt_pk_bf16_f32 v{d+2*e+1}, v{a+2}, v{a+3}")
    p(f"""
    s_bitcmp1_b32 s{s_j}, 0
    s_cbranch_scc1 {name}_p0v
    """)
    fin_k = p.segment()
    p(f"""
    s_lshl_b32 s{s_t1}, s{s_t1}, 8
    s_add_u32 s{s_t0}, s{s_t0}, s{s_t1}
    buffer_store_dwordx4 {rr('v', d, 4)}, v{vST}, s[{sA}:{sA+3}], s{s_t0} offen sc1
    s_lshl_b32 s{s_t0}, s{s_kv}, 3
    s_mov_b64 exec, 0xffff
    buffer_store_dwordx2 {mr}, v{vMA}, s[{sT}:{sT+3}], s{s_t0} offen offset:{ST_MR} sc1
    s_mov_b64 exec, -1
    s_branch {name}_p1""")
    fin_v = p.segment()
    p(f"""
    {name}_p0v:
    v_lshrrev_b32 v{vt+1}, 4, v0
    v_add_u32 v{vt}, v{vt+1}, v{vMA}
    v_lshlrev_b32 v{vt}, 3, v{vt}
    v_add_u32 v{vt}, {RED}, v{vt}
    ds_write_b64 v{vt}, {rr('v', d, 2)}
    ds_write_b64 v{vt}, {rr('v', d+2, 2)} offset:32
    v_lshrrev_b32 v{vt+3}, 2, v0
    v_lshlrev_b32 v{vt+3}, 6, v{vt+3}
    v_and_b32 v{vt+4}, 3, v0
    v_lshl_add_u32 v{vt+3}, v{vt+4}, 3, v{vt+3}
    v_add_u32 v{vt+3}, {RED}, v{vt+3}
    ds_read_b64_tr_b16 {rr('v', PA, 2)}, v{vt+3}
    ds_read_b64_tr_b16 {rr('v', PA+2, 2)}, v{vt+3} offset:32
    s_lshl_b32 s{s_t1}, s{s_t1}, 10
    s_add_u32 s{s_t0}, s{s_t0}, s{s_t1}
    v_permlane32_swap_b32 v{PA}, v{PA+2}
    v_permlane32_swap_b32 v{PA+1}, v{PA+3}
    buffer_store_dwordx4 {rr('v', PA, 4)}, v{vST}, s[{sA}:{sA+3}], s{s_t0} offen offset:2048 sc1
    """)

    rest = p.segment()
    p(f"{name}_p1:")
    p.add(Raw("; @stamp 1"))
    ACC = lambda F, t: rr('v', AB + (F * 2 + t) * 4, 4)
    X1 = lambda s, t, g: rr('a', FB + s * 48 + (t * 2 + g) * 4, 4)
    W1 = lambda s, F, g: rr('a', FB + s * 48 + 16 + (F * 2 + g) * 4, 4)

    def reads1(s, base, va):
        xr = lambda t, g: Ins(f"ds_read_b128 {X1(s, t, g)}, v{va+g} offset:{base + t*2048}")
        wr = lambda F, g, b: Ins(f"ds_read_b64_tr_b16 {rr('a', FB + s*48 + 16 + (F*2+g)*4 + 2*b, 2)}, v{va+2+F} offset:{base + 2*g*6144 + 4096 + b*512}")
        return [wr(0, 0, 0), wr(0, 0, 1), wr(0, 1, 0), wr(0, 1, 1), xr(0, 0), xr(0, 1), xr(1, 0), xr(1, 1)] + \
               [wr(F, g, b) for F in range(1, 4) for g in range(2) for b in range(2)]
    p(f"""
    s_lshl_b32 s{s_t0}, s2, 2
    s_add_u32 s{s_t0}, s{s_t0}, s{s_w}
    s_lshl_b32 s{s_t0}, s{s_t0}, 10
    s_add_u32 s{s_t0}, s{s_t0}, {ST_FO}
    buffer_store_dwordx4 {rr('v', AB, 4)}, v{vL16}, s[{sT}:{sT+3}], s{s_t0} offen sc1""")
    p.add(Raw(f"""    s_cmp_ge_u32 s2, 2
    s_cbranch_scc1 {name}_nogz
    s_sub_u32 s{s_t0}, s{s_t0}, {ST_FO - ST_RS2}
    buffer_store_dwordx4 {rr('v', AB, 4)}, v{vL16}, s[{sT}:{sT+3}], s{s_t0} offen sc1
{name}_nogz:"""))
    rdy = f"buffer_load_dword v{vt+5}, v{vZ}, s[{sB}:{sB+3}], 0 offen sc1"
    LA = o.get('la1', 4)
    for u in range(2, LA):
        if u == 2: p.add(Raw(f"    s_cmp_lg_u32 s{s_w}, 0\n    s_cbranch_scc1 {name}_nor\n    {rdy}\n{name}_nor:"))
        p.add(dma1(f"s_add_u32 m0, s{s_w6}, {u*SL}", 'Lx'))
    for i in range(Ob(2), Ob(2) + 32, 2):
        p(f"v_pk_mov_b32 {rr('v', i, 2)}, 0, 0")
    p.add(Raw("; @fine 8"))
    p("s_barrier", rd=['L0'])
    p.add(Raw("; @fine 9"))
    p.add(reads1(0, 0, vB))
    for i in range(6):
        p(f"v_mov_b32 v{vA+i}, v{vB+i}")
    p(f"""
    s_mov_b32 s{s_pb}, {2 * SL}
    s_add_u32 s{s_dm}, s{s_w6}, {2 * 2 * SL}
    s_and_b32 s{s_kv}, s2, 15
    s_lshl_b32 s{s_kv}, s{s_kv}, 8
    s_add_u32 s{s_kv}, s{s_kv}, {ST_KVC}
    s_mov_b32 s{s_spin}, {SPIN}
    s_lshl_b32 s{s_t2}, s{s_w}, 8
    s_add_u32 s{s_t2}, s{s_t2}, {10 - LA}
    s_mov_b32 s{s_cnt}, {10 - LA}""")

    def stage1(s, head, fill, rds):
        mf = [mf16(rr('v', CSA, 4), W1(s, 0, g), on) for g in range(2)]
        for F in range(4):
            mf += [mf16(ACC(F, t), W1(s, F, g), X1(s, t, g)) for t, g in zz(F, 2, 2, ZZ)]
        p.add(head)
        rds = list(rds)
        for i, m in enumerate(mf):
            if 'p1nomf' not in dbg: p(m)
            for _ in range(2 if i in (0, 1) else 1):
                if rds:
                    x = rds.pop(0)
                    if 'p1nods' not in dbg: p.add(x)
            p.add([x for x in fill.get(i, []) if not ('p1nodma' in dbg and getattr(x, 'kind', '') == 'vmem')])

    def one_per_gap(lst, start):
        return {start + i: [x] for i, x in enumerate(lst)}

    def spaced(lst):
        pos = [0, 1, 2, 5, 8, 11, 12, 13, 14, 17, 17]
        out = {}
        for k, x in zip(pos, lst): out.setdefault(k, []).append(x)
        return out
    upd = lambda: {3: [Ins(f"v_add_u32 v{vA+2}, s{s_pb}, v{vB+2}")], 6: [Ins(f"v_add_u32 v{vA}, s{s_pb}, v{vB}")],
                   7: [Ins(f"v_add_u32 v{vA+1}, s{s_pb}, v{vB+1}")], 10: [Ins(f"v_add_u32 v{vA+3}, s{s_pb}, v{vB+3}")],
                   15: [Ins(f"v_add_u32 v{vA+4}, s{s_pb}, v{vB+4}")], 17: [Ins(f"v_add_u32 v{vA+5}, s{s_pb}, v{vB+5}")]}
    nextpb = lambda: [Ins(f"s_add_u32 s{s_pb}, s{s_pb}, {2*SL}"), Ins(f"s_cmp_eq_u32 s{s_pb}, {6*SL}"), Ins(f"s_cselect_b32 s{s_pb}, 0, s{s_pb}")]

    def merge(*fs):
        out = {}
        for f in fs:
            for k, v in f.items(): out.setdefault(k, []).extend(v)
        return out
    sync = lambda n: [Ins(f"s_waitcnt vmcnt({n}) lgkmcnt(12)"), Ins("s_barrier")]
    s_nx = s_t0
    p(f"s_mov_b32 s{s_nx}, s{s_w6}")
    p.add(Raw("; @fine 10"))
    p.begin_loop(f"{name}_p1loop", 10 - LA, align=False)
    stage1(0, sync(6 * LA - 12), merge(spaced(dma1(f"s_add_u32 m0, s{s_dm}, {SL * (LA - 4)}", 'Lx')[:-1]), upd(), {16: [Ins(f"s_and_b32 s{s_xoff}, s{s_xoff}, 2047")]}), reads1(1, SL, vA))
    arr = Raw(f"""    s_cmp_lg_u32 s{s_cnt}, s{s_t2}
    s_cbranch_scc1 {name}_noarr
{name}_rchk:
    v_readfirstlane_b32 s{s_t1}, v{vt+5}
    s_sub_u32 s{s_spin}, s{s_spin}, 1
    s_cselect_b32 s{s_t1}, 1, s{s_t1}
    s_cmp_lg_u32 s{s_t1}, 0
    s_cbranch_scc1 {name}_arr
    {rdy}
    s_waitcnt vmcnt(0)
    s_branch {name}_rchk
{name}_arr:
    buffer_atomic_add v{vOne}, v{vZ}, s[{sT}:{sT+3}], s{s_kv} offen
{name}_noarr:""")
    stage1(1, sync(6 * LA - 12) + [arr], merge({3: [Ins(f"s_mov_b32 s{s_dm}, s{s_nx}")], 4: [Ins(f"s_add_u32 s{s_nx}, s{s_pb}, s{s_w6}")],
                                        6: nextpb()[:1], 7: nextpb()[1:], 9: [Ins(f"s_sub_u32 s{s_cnt}, s{s_cnt}, 1")],
                                        15: [Ins(f"s_and_b32 s{s_xoff}, s{s_xoff}, 2047")], 16: [Ins(f"s_cmp_lg_u32 s{s_cnt}, 0")]},
                                       spaced(dma1(f"s_mov_b32 m0, s{s_nx}" if LA == 5 else f"s_add_u32 m0, s{s_dm}, {SL}", 'Lx')[:-1])), reads1(0, 0, vA))
    p(f"s_cbranch_scc1 {name}_p1loop")
    p.end_loop()
    p.add(Raw("; @fine 11"))
    Kf = lambda b, m: rr('a', (b % NR) * 8 + m * 4, 4)
    Vf = lambda b, m: rr('a', 64 + (b % NR) * 8 + m * 4, 4)
    vMR = 84
    kld = lambda b, m: Ins(f"buffer_load_dwordx4 {Kf(b, m)}, v{vL16}, s[{sA}:{sA+3}], s{s_ko} offen offset:{m*1024} {KVSC}")
    vld = lambda b, m: Ins(f"buffer_load_dwordx4 {Vf(b, m)}, v{vL16}, s[{sA}:{sA+3}], s{s_vo} offen offset:{2048 + m*1024} {KVSC}")

    vK2 = 253
    kld2 = lambda b, m: Ins(f"buffer_load_dwordx4 {Kf(b, m)}, v{vK2}, s[{sA}:{sA+3}], s{s_vo} offen offset:{m*1024} {KVSC}")

    def kv_list():
        o_ = [Ins(f"s_mov_b32 s{s_ko}, 0"), Ins(f"s_mov_b32 s{s_vo}, 0")]
        for b in range(NR):
            o_ += [kld(b, 0), kld(b, 1), Ins(f"s_add_u32 s{s_ko}, s{s_ko}, 4096")]
            if b < NR - 2:
                o_ += [vld(b, 0), vld(b, 1), Ins(f"s_add_u32 s{s_vo}, s{s_vo}, 4096")]
        return o_

    def fill_kv():
        p.add(kv_list())
    gl = f"buffer_load_dword v{vt+5}, v{vGP}, s[{sT}:{sT+3}], s{s_kv} offen sc1"
    if LA == 5: stage1(0, sync(18), merge(spaced(dma1(f"s_add_u32 m0, s{s_dm}, {SL}", 'Lx')[:-1]), upd(), {16: [Ins(f"s_and_b32 s{s_xoff}, s{s_xoff}, 2047")]}), reads1(1, SL, vA))
    gp = Raw(f"""    s_branch {name}_gchk
{name}_gpoll:
    {gl}
    s_waitcnt vmcnt(0)
{name}_gchk:
    v_cmp_gt_u32 vcc, 16, v{vt+5}
    s_sub_u32 s{s_spin}, s{s_spin}, 1
    s_cbranch_scc1 {name}_gdone
    s_cbranch_vccnz {name}_gpoll
{name}_gdone:""")
    todo = [Ins(f"buffer_load_dwordx2 {rr('v', vMR+2*t, 2)}, v{vMA}, s[{sT}:{sT+3}], s{s_t0} offen offset:{ST_MR + 128*t} sc1") for t in range(2)]
    kv4 = lambda b, n: Ins(f"buffer_load_dwordx4 {(Kf, Vf)[n >> 1](b % 4, n & 1)}, v{vL16}, s[{sA}:{sA+3}], s{s_vo} offen offset:{n*1024} {KVSC}")
    todo += [Ins(f"s_and_b32 s{s_vo}, s{s_w}, 1"), Ins(f"s_lshl_b32 s{s_vo}, s{s_vo}, 17"), Ins(f"s_add_u32 s{sA+2}, s{s_vo}, 0x20000")]
    for b in range(3):
        todo += [kv4(b, n) for n in range(4)] + [Ins(f"s_add_u32 s{s_vo}, s{s_vo}, 4096")]
    todo.append(kv4(3, 0))

    def take(k):
        o_, n = [], 0
        while todo and n < k:
            x = todo.pop(0); o_.append(x); n += x.kind == 'vmem'
        return o_
    PS = o.get('pstage', 13)
    for u in range(16 - LA, 16):
        head = sync(6 * (14 - u)) if u < PS else [Raw("; @fine 12")] + sync(0) + [Raw("; @fine 13"), gp, Raw("; @fine 14")] if u == PS else []
        fill = {11: one_per_gap(nextpb(), 8), 12: upd(), 15: {10: [Ins(f"ds_write_b128 v{vCS}, {rr('v', CSA, 4)}")]}}.get(u, {})
        if u == PS - 1:
            fill = merge(fill, {2: [Ins(f"s_movk_i32 s{s_kv}, {ST_KVC}")], 4: [Ins(gl)], 5: [Ins(f"s_mov_b32 s{s_spin}, {SPIN}")],
                                11: [Ins(f"s_lshl_b32 s{s_t0}, s{s_tok}, 3")]})
        if u >= PS:
            fill = merge(fill, {i: take(1) for i in range(2, 18, 3 if PS < 14 else 2)})
        stage1(u & 1, head, fill, reads1(1 - (u & 1), 0 if u & 1 else SL, vA) if u < 15 else [])
    p.add(Raw("; @stamp 2"))

    p("s_waitcnt lgkmcnt(0)")
    p("s_barrier")
    CS = 88
    for f in range(4):
        if f: p(f"v_xor_b32 v{vt+f}, {f*64}, v{vCS}")
        p(f"ds_read_b128 {rr('v', CS + 4*f, 4)}, v{vt+f if f else vCS}")
    QP = 112
    for t in range(2):
        p(f"v_accvgpr_write_b32 a{aMEAN+t}, v{vMR+2*t}")
        p(f"v_mul_f32 v{vMR+2*t+1}, {f32hex(LOG2E * DH ** -0.5)}, v{vMR+2*t+1}")
    p(f"s_bitcmp1_b32 s{s_w}, 0\ns_cselect_b64 vcc, -1, 0")
    for hd in range(2):
        for t in range(2):
            mr = rr('v', vMR + 2 * t, 2)
            for f in range(2):
                F = 2 * hd + f
                a = AB + (F * 2 + t) * 4
                dq = QP + hd * 8 + t * 4 + 2 * f
                for r in (0, 2): p(f"v_pk_fma_f32 {rr('v', a+r, 2)}, {rr('v', CS+4*F+r, 2)}, {mr}, {rr('v', a+r, 2)} op_sel_hi:[1,0,1] neg_lo:[0,1,0] neg_hi:[0,1,0]")
                for r in (0, 2): p(f"v_pk_mul_f32 {rr('v', a+r, 2)}, {rr('v', a+r, 2)}, {mr} op_sel:[0,1]")
                p(f"v_cvt_pk_bf16_f32 v{dq}, v{a}, v{a+1}")
                p(f"v_cvt_pk_bf16_f32 v{dq+1}, v{a+2}, v{a+3}")
                p.add(take(1))
        for i in range(8 * hd, 8 * hd + 8):
            p(f"v_cndmask_b32 v{16+i}, v{QP+i}, v{QP+(i^2)}, vcc")
        p.add(take(1))
        for i in range(4):
            p(f"v_permlane16_swap_b32 v{16+hd*8+i}, v{16+hd*8+4+i}")
        for m in range(2):
            p(f"ds_write_b128 v{vXS}, {Q(hd, m)} offset:{(hd*2+m)*1024}")
    for i in range(Lb(2), Lb(2) + 8, 2):
        p(f"v_pk_mov_b32 {rr('v', i, 2)}, 0, 0")
    p("s_waitcnt lgkmcnt(0)")
    p("s_barrier")
    for n in range(4):
        p(f"ds_read_b128 {Q(2 + (n >> 1), n & 1)}, v{vXR} offset:{n*1024}")
    if 'Q' in dbg:
        srd(p, sB, pWS, QF[1], bias=QF[0])
        p(f"s_lshl_b32 s{s_t0}, s{s_hd}, 17\ns_lshl_b32 s{s_t1}, s{s_tok}, 6\ns_add_u32 s{s_t0}, s{s_t0}, s{s_t1}\ns_xor_b32 s{s_t1}, s{s_t0}, 0x20000")
        for x in range(2):
            for m in range(2):
                p(f"buffer_store_dwordx4 {Q(x, m)}, v{vL16}, s[{sB}:{sB+3}], s{s_t1 if x else s_t0} offen offset:{m*1024}")
    s_safe, s_fo = 65, 61
    WH = o.get('wohalf', False)
    TO = {0: (pWG, pWU, pWD), 1: (pWD, pWG, pWU)}[o.get('torder', 0)]
    SENT = o.get('sent', False)
    p(f"""
    s_mov_b64 s[{sD}:{sD+1}], s[{TO[0]}:{TO[0]+1}]
    s_mov_b32 s{sD+2}, {D * FF * 2 if o.get('prefetch', True) else 0}
    s_mov_b64 s[0:1], s[{TO[0]}:{TO[0]+1}]
    s_mov_b64 s[14:15], s[{TO[1]}:{TO[1]+1}]
    s_mov_b32 s{s_po}, {D * FF * 2}
    {f's_lshl_b32 s{s_t0}, s{s_w}, 15' if WH else ''}
    {f's_sub_u32 s{s_wdo}, s{s_wdo}, s{s_t0}' if WH else ''}
    {f's_lshr_b32 s{s_wm0}, s{s_wm0}, 1' if WH else ''}
    s_sub_u32 s{s_wdo}, s{s_wdo}, {(64 if WH else 128) * 2048}
    s_mov_b32 s{s_safe}, 0
    """)
    srd(p, sB, pWS, OF[1], bias=OF[0])

    def half(x, Kb, Vb, C, extra, tq=None, tv=None, noqk=False):
        y = 1 - x
        if tq is None: tq = tv = y
        Sx, Px, Sy, Py = Sb(x), Pb(x), rr('v', Sb(y), 16), Pb(y)
        valu = []
        for i in range(8):
            valu.append(f"v_exp_f32 v{Sx+2*i}, v{Sx+2*i}")
            valu.append(f"v_exp_f32 v{Sx+2*i+1}, v{Sx+2*i+1}")
            if i > 0:
                valu.append(f"v_cvt_pk_bf16_f32 v{Px+i-1}, v{Sx+2*i-2}, v{Sx+2*i-1}")
        valu.append(f"v_cvt_pk_bf16_f32 v{Px+7}, v{Sx+14}, v{Sx+15}")
        Oy, Ly = rr('v', Ob(tv), 16), rr('v', Lb(tv), 4)
        sel = rr('v', SEL, 4)
        mf = [mf32(Sy, Kf(Kb, 0), Q(tq, 0), C(tq)), mf32(Sy, Kf(Kb, 1), Q(tq, 1)),
              mf32(Oy, Vf(Vb, 0), rr('v', Py, 4)), mf16(Ly, sel, rr('v', Py, 4)),
              mf32(Oy, Vf(Vb, 1), rr('v', Py + 4, 4)), mf16(Ly, sel, rr('v', Py + 4, 4))]
        pos = (0, 4, 8, 12, 15, 19)
        if SMF:
            mf = [mf[0], mf[1], mf[2], mf[4], smf(tv)]
            if noqk: mf[0] = mf[1] = ""
            pos = o.get('apos', (0, 5, 10, 15, 20))
        for i, v in enumerate(valu):
            if i in pos:
                k = pos.index(i)
                p(mf[k])
                p.add(extra.get(k, []))
            p(v)

    def attention(tag, C, side, pre):
        p(mf32(rr('v', Sb(0), 16), Kf(0, 0), Q(0, 0), C(0)))
        p(mf32(rr('v', Sb(0), 16), Kf(0, 1), Q(0, 1)))
        p(f"s_mov_b32 s{s_cnt}, {64 // NR}")
        p.add(pre)
        p.begin_loop(f"{name}_{tag}_loop", 64 // NR)
        for kt in range(NR):
            e0 = {0: [vld(kt + NR - 2, 0)], 1: [vld(kt + NR - 2, 1)],
                  4: [Ins(f"wait {Kf(kt+1, 0)}, {Kf(kt+1, 1)}, {Vf(kt, 0)}, {Vf(kt, 1)}")]}
            e1 = {0: [kld2(kt, 0)], 1: [kld2(kt, 1)], 2: [Ins(f"s_add_u32 s{s_vo}, s{s_vo}, 4096")]}
            if kt == NR - 1:
                e1[3] = [Ins(f"s_sub_u32 s{s_cnt}, s{s_cnt}, 1")]
                e1[4] = [Ins(f"s_cmp_lg_u32 s{s_cnt}, 0")]
            half(0, kt, kt - 1, C, e0)
            half(1, kt + 1, kt, C, e1)
        p(f"s_cbranch_scc1 {name}_{tag}_loop")
        p.end_loop()
        O1, L1, sel = rr('v', Ob(1), 16), rr('v', Lb(1), 4), rr('v', SEL, 4)
        p(mf32(O1, Vf(NR - 1, 0), rr('v', Pb(1), 4)))
        if not SMF: p(mf16(L1, sel, rr('v', Pb(1), 4)))
        p(mf32(O1, Vf(NR - 1, 1), rr('v', Pb(1) + 4, 4)))
        p(smf(1) if SMF else mf16(L1, sel, rr('v', Pb(1) + 4, 4)))

    def attention4(pre):
        T = (2, 3, 0, 1)
        LS = o.get('lslot', 4)
        p(mf32(rr('v', Sb(0), 16), Kf(0, 0), Q(2, 0), "0"))
        p(mf32(rr('v', Sb(0), 16), Kf(0, 1), Q(2, 1)))
        p("s_waitcnt lgkmcnt(0)")
        p("s_barrier")
        p(f"s_mov_b32 s{s_cnt}, 8")
        p.add(pre)
        wdma = lambda i: Ins(f"buffer_load_dwordx4 v{vWD+i}, s[{sE}:{sE+3}], s{s_wdo} offen offset:{i*1024} lds", awr=['LW'], nowaw=True)
        tch = lambda: Ins(f"buffer_load_dword v{vDum}, v{vPF}, s[{sD}:{sD+3}], s{s_po} offen", nowaw=True)
        nxt = lambda: Ins(f"s_add_u32 s{s_po}, s{s_po}, {256 * 7168}")
        side = {0: {1: [tch()], 2: [nxt()]}, 1: {1: [Ins(f"s_and_b32 m0, s{s_wm0}, 0x1ffff")], 2: [Ins(f"s_add_u32 s{s_wm0}, s{s_wm0}, 16384")]},
                2: {1: [Ins(f"s_add_u32 s{s_wdo}, s{s_wdo}, {128 * 2048}")]},
                5: {1: [wdma(0)]}, 7: {1: [wdma(1)]}, 8: {1: [tch()], 2: [nxt()]}, 9: {1: [wdma(2)]}, 11: {1: [wdma(3)]},
                12: {0: [Ins(f"s_bitcmp1_b32 0x150, s{s_cnt}")], 1: [Ins(f"s_cselect_b32 s{s_po}, s{s_pk}, s{s_po}")],
                     2: [Ins(f"s_cselect_b64 s[{sD}:{sD+1}], s[0:1], s[{sD}:{sD+1}]")]},
                13: {0: [Ins("s_cselect_b64 s[0:1], s[14:15], s[0:1]")], 1: [Ins(f"s_cselect_b64 s[14:15], s[{TO[2]}:{TO[2]+1}], s[14:15]")]},
                14: {1: [Ins(f"s_bitcmp1_b32 0x104, s{s_cnt}")], 2: [Raw(f"    s_cbranch_scc1 {name}_rsx\n{name}_rsxback:")]},
                15: {1: [Ins(f"s_sub_u32 s{s_cnt}, s{s_cnt}, 1")], 2: [Ins(f"s_cmp_lg_u32 s{s_cnt}, 0")]}}
        if WH:
            del side[7], side[11]
            side[9] = {1: [wdma(1)]}
            side[1][2] = [Ins(f"s_add_u32 s{s_wm0}, s{s_wm0}, 8192")]
            side[2] = {1: [Ins(f"s_add_u32 s{s_wdo}, s{s_wdo}, {64 * 2048}")]}
        side.setdefault(11, {})[2] = [Ins(f"s_cmp_eq_u32 s{s_cnt}, 1")]
        del side[15][2]
        p.begin_loop(f"{name}_fast_loop", 7)
        for kt in range(4):
            for i in range(4):
                e = dict(side.get(kt * 4 + i, {}))
                e[LS] = [kv4(kt + 3 + (i == 3), (i + 1) & 3)]
                if i == 3: e[0] = [Ins(f"s_add_u32 s{s_vo}, s{s_vo}, 4096")]
                if i == 2: e[7 - LS] = [Ins(f"wait {Kf((kt+1) % 4, 0)}, {Kf((kt+1) % 4, 1)}")]
                if i == 0: e[7 - LS] = [Ins(f"wait {Vf(kt, 0)}, {Vf(kt, 1)}")]
                half(i & 1, (kt + (i == 3)) % 4, (kt - (i == 0)) % 4, lambda y: "0", e, T[(i + 1) % 4], T[(i - 1) % 4])
            if kt == 2:
                p(f"s_cbranch_scc1 {name}_fast_last")
                p.mark_exit()
        p(f"s_branch {name}_fast_loop")
        p.end_loop()
        p(f"{name}_fast_last:")
        B, z = Ob(2), 48
        xr = [Ins(f"ds_read_b64 {rr('v', 40 + t*16 + F*2, 2)}, v{z+F if F else vXA} offset:{t*2048}") for F in range(4) for t in range(2)]
        rsr = [Ins(f"ds_read_b128 {rr('v', RSV + 16*x + 4*jj, 4)}, v{z+7 if x else vRA} offset:{jj*32}") for x in range(2) for jj in range(4)]
        wr = lambda n: Ins(f"ds_write_b128 v{vXS}, {rr('v', B + 4*n, 4)} offset:{n*1024}")
        tagchk = [Raw(f"    v_cmp_ne_u32 vcc, 1, v{z+5}\n    s_nop 0\n    s_cbranch_vccnz {name}_rspoll\n{name}_rsgo:"), Ins(f"ds_write_b32 v{z}, v{z+4}")]
        ex = [{0: xr[0:2], 1: xr[2:4], 2: xr[4:6], 3: [Ins(f"wait {Vf(3, 0)}, {Vf(3, 1)}")] + xr[6:8], 4: tagchk},
              {0: rsr[0:1], 1: rsr[1:3], 2: rsr[3:4], 3: rsr[4:6], 4: rsr[6:8]},
              {1: [wr(0)], 2: [wr(1)], 3: [wr(2)], 4: [wr(3)]},
              {2: [wr(4), wr(5)], 3: [wr(6)] + [Ins(x) for x in (f"v_add_f32 v{Lb(2)}, v{Lb(2)}, v{Lb(2)+1}", f"v_add_f32 v{Lb(3)}, v{Lb(3)}, v{Lb(3)+1}",
                                                                   f"v_cvt_pk_bf16_f32 v{B+30}, v{B+30}, v{B+31}")],
               4: [Ins(f"v_permlane32_swap_b32 v{Lb(2)}, v{Lb(3)}"), Ins(f"v_mov_b32 v{B+31}, v{Lb(2)}"), wr(7)]}]
        for i in range(4):
            half(i & 1, 3, 3 - (i == 0), lambda y: "0", ex[i], T[(i + 1) % 4], T[(i - 1) % 4], i == 3)
        p.add(Raw("; @stamp 4"))
        O1 = rr('v', Ob(1), 16)
        p(mf32(O1, Vf(3, 0), rr('v', Pb(1), 4)))
        p(mf32(O1, Vf(3, 1), rr('v', Pb(1) + 4, 4)))
        p(smf(1))
        p("s_waitcnt lgkmcnt(0)")
        if 'fineo' in dbg: p.add(Raw("; @stamp 0"))
        p("s_barrier", rd=['LW'])
        if 'fineo' in dbg: p.add(Raw("; @stamp 1"))
        for n in (7, 0, 1, 2, 3, 4, 5, 6):
            p(f"ds_read_b128 {rr('v', B + 4*n, 4)}, v{vXR} offset:{n*1024}")
        p(f"""
        v_mov_b32 v{vt}, v{B+31}
        v_mov_b32 v{vt+1}, v{B+31}
        v_and_b32 v{B+31}, 0xffff0000, v{B+30}
        v_lshlrev_b32 v{B+30}, 16, v{B+30}
        v_permlane32_swap_b32 v{vt}, v{vt+1}
        v_add_f32 v{Lb(0)}, v{Lb(0)}, v{vt}
        v_add_f32 v{Lb(1)}, v{Lb(1)}, v{vt+1}""")
        for i in range(0, 32, 2):
            p(f"v_pk_add_f32 {rr('v', Ob(0)+i, 2)}, {rr('v', Ob(0)+i, 2)}, {rr('v', B+i, 2)}")

    pre = take(99)
    pre += [Ins(x.strip()) for x in f"""s_lshl_b32 s{s_fo}, s2, 2
    s_add_u32 s{s_fo}, s{s_fo}, s{s_w}
    s_lshl_b32 s{s_t0}, s{s_fo}, 11
    buffer_load_dwordx4 {rr('v', vRS, 4)}, v{vL16}, s[{sE}:{sE+3}], s{s_t0} offen
    buffer_load_dwordx4 {rr('v', vRS+4, 4)}, v{vL16}, s[{sE}:{sE+3}], s{s_t0} offen offset:1024""".split("\n")]
    if o.get('ipf', True):
        pre += [Ins(x.strip()) for x in f"""s_getpc_b64 s[74:75]
        s_lshr_b32 s{s_t0}, s2, 3
        s_lshl_b32 s{s_t0}, s{s_t0}, 2
        s_add_u32 s{s_t0}, s{s_t0}, s{s_w}
        s_mul_i32 s{s_t0}, s{s_t0}, 384
        s_min_u32 s{s_t0}, s{s_t0}, {name}_end-{name}_fast_loop
        v_min_u32 v4, 2, v0
        v_lshl_add_u32 v4, v4, 7, s{s_t0}""".split("\n")]
        pre.append(Ins(f"global_load_dword v{vDum}, v4, s[74:75]", nowaw=True))
    if len(pre) < 12: pre.append(Ins(f"s_nop {11 - len(pre)}"))
    pre.append(Raw("; @stamp 3"))
    attention4(pre)
    p(f"""
    {name}_fin:
    v_add_f32 v{Lb(0)}, v{Lb(0)}, v{Lb(0)+1}
    v_rcp_f32 v{Lb(0)+2}, v{Lb(0)}
    s_lshl_b32 s{s_t0}, s{s_tok}, 1
    s_add_u32 s{s_t0}, s{s_t0}, s{s_hd}
    s_lshl_b32 s{s_t0}, s{s_t0}, 10
    s_xor_b32 s{s_t1}, s{s_t0}, 1024
    """)
    for x in range(2):
        if x: p(f"v_add_f32 v{Lb(1)}, v{Lb(1)}, v{Lb(1)+1}\nv_rcp_f32 v{Lb(1)+2}, v{Lb(1)}")
        for a in range(2):
            for i in range(8 * a, 8 * a + 8, 2):
                p(f"v_pk_mul_f32 {rr('v', Ob(x)+i, 2)}, {rr('v', Ob(x)+i, 2)}, {rr('v', Lb(x)+2, 2)} op_sel_hi:[1,0]")
            for i in range(4 * a, 4 * a + 4):
                p(f"v_cvt_pk_bf16_f32 v{Pb(x)+i}, v{Ob(x)+2*i}, v{Ob(x)+2*i+1}")
            p(f"buffer_store_dwordx4 {rr('v', Pb(x)+4*a, 4)}, v{vOS}, s[{sB}:{sB+3}], s{s_t1 if x else s_t0} offen offset:{a*512} sc1")
    p(f"v_pk_mul_f32 v[{vt+2}:{vt+3}], {rr('v', Ob(0), 2)}, {rr('v', RSV, 2)}")
    p(f"v_pk_mul_f32 v[{vt+4}:{vt+5}], {rr('v', Ob(0)+2, 2)}, {rr('v', RSV+2, 2)}")
    for i in range(2, 16):
        k = vt + 2 + 2 * (i & 1)
        p(f"v_pk_fma_f32 v[{k}:{k+1}], {rr('v', Ob(0)+2*i, 2)}, {rr('v', RSV+2*i, 2)}, v[{k}:{k+1}]")
    p(f"""
    v_pk_add_f32 v[{vt+2}:{vt+3}], v[{vt+2}:{vt+3}], v[{vt+4}:{vt+5}]
    v_add_f32 v{vt+2}, v{vt+2}, v{vt+3}
    v_mov_b32 v{vt+3}, v{vt+2}
    s_add_u32 s{s_t0}, s{s_pj}, {ST_MP}
    s_mov_b32 s{s_t1}, {f32hex(2.0**-40)}
    v_permlane32_swap_b32 v{vt+2}, v{vt+3}
    v_add_f32 v{vt+2}, v{vt+2}, v{vt+3}
    s_mov_b32 exec_hi, 0
    buffer_store_dword v{vt+2}, v{vPW}, s[{sT}:{sT+3}], s{s_t0} offen sc1
    s_mov_b32 exec_hi, -1
    """)
    if 'fineo' in dbg: p.add(Raw("; @stamp 2"))
    p(f"""
    v_cmp_nle_f32 s[0:1], s{s_t1}, v{Lb(0)}
    v_cmp_nle_f32 s[14:15], s{s_t1}, v{Lb(1)}
    s_mov_b32 s{s_t1}, {f32hex(2.0**40)}
    v_cmp_nge_f32 s[74:75], s{s_t1}, v{Lb(0)}
    v_cmp_nge_f32 vcc, s{s_t1}, v{Lb(1)}
    s_or_b64 s[0:1], s[0:1], s[14:15]
    s_movk_i32 s{s_t1}, 0x207
    v_cmp_class_f32 s[14:15], v{vt+2}, s{s_t1}
    s_or_b64 s[0:1], s[0:1], s[74:75]
    s_or_b64 s[0:1], s[0:1], vcc
    s_or_b64 s[0:1], s[0:1], s[14:15]
    s_cselect_b32 s{s_t1}, 1, 0
    s_cmp_gt_u32 s{s_t1}, s{s_safe}
    {'' if 'nocheck' in dbg else f's_cbranch_scc1 {name}_slow'}
    """)

    SPLIT = True
    s_c, s_xo, s_xe, s_xend = 61, 62, 63, 64
    vX1, vA3 = 12, 16
    WB, AB3 = 40, 104
    vPT = 20
    LEAD = 12
    ACS = lambda F, t: rr('v', AB3 + (F * 2 + t) * 4, 4)

    class Shape:
        def __init__(self, NF, off):
            self.NF, self.NG, self.off = NF, 16 // NF, off
        def X(self, slot, t, G): return rr('a', slot * 8 * self.NG + (t * self.NG + G) * 4, 4)
        def Xall(self, slot): return ", ".join(self.X(slot, t, G) for t in range(2) for G in range(self.NG))
        def W(self, F, G): return rr('v', WB + (F * self.NG + G) * 4, 4)
        def rd(self, slot, n):
            F, G, b = n // (2 * self.NG), (n >> 1) % self.NG, n & 1
            return Ins(f"ds_read_b64_tr_b16 {rr('v', WB + 2*n, 2)}, v{vA3 + (F & 3)} offset:{slot*16384 + self.off(F, G, b)}")
        def xld(self, slot):
            o_ = [Ins(f"s_cmp_lt_u32 s{s_xo}, s{s_xend}"), Ins(f"s_cselect_b32 s{s_xe}, s{s_xo}, s{sB+2}")]
            for t in range(2):
                for G in range(self.NG):
                    o_.append(Ins(f"buffer_load_dwordx4 {self.X(slot, t, G)}, v{vX1 if t else vL16}, s[{sB}:{sB+3}], s{s_xe} offen offset:{G*1024} sc1"))
            o_.append(Ins(f"s_add_u32 s{s_xo}, s{s_xo}, {self.NG * 1024}"))
            return o_
    sh4 = Shape(4, lambda F, G, b: G * 4096 + b * 1024)
    sh8 = Shape(8, lambda F, G, b: G * 8192 + (F >> 2) * 2048 + b * 1024)

    def wread_addr(blk):
        p(f"""
        v_bfe_u32 v{vt}, v0, 2, 3
        v_lshrrev_b32 v{vt+1}, 1, v{vt}
        v_lshlrev_b32 v{vt+1}, 5, v{vt+1}
        v_lshl_add_u32 v{vt}, v{vt}, 7, v{vt+1}
        v_lshrrev_b32 v{vt+1}, 5, v0
        v_lshl_add_u32 v{vt}, v{vt+1}, {blk}, v{vt}
        v_and_b32 v{vt+1}, 3, v0
        v_lshl_add_u32 v{vA3}, v{vt+1}, 3, v{vt}
        v_xor_b32 v{vA3+1}, 32, v{vA3}
        v_xor_b32 v{vA3+2}, 64, v{vA3}
        v_xor_b32 v{vA3+3}, 0x60, v{vA3}""")

    def table_load(aq, soff, blk=0):
        for i in range(4):
            p(f"buffer_load_dwordx2 {rr('v', aq + 2*i, 2)}, v{vPT}, s[{sT}:{sT+3}], s{soff} offen offset:{blk*2048 + i*128} sc1")

    def table_sum(aq, dst):
        p(f"""
        v_pk_add_f32 {rr('v', aq, 2)}, {rr('v', aq, 2)}, {rr('v', aq+2, 2)}
        v_pk_add_f32 {rr('v', aq+4, 2)}, {rr('v', aq+4, 2)}, {rr('v', aq+6, 2)}
        v_pk_add_f32 {rr('v', dst, 2)}, {rr('v', aq, 2)}, {rr('v', aq+4, 2)}""")
        for sw in (16, 32):
            p(f"""
            v_pk_mov_b32 {rr('v', aq, 2)}, {rr('v', dst, 2)}, {rr('v', dst, 2)} op_sel:[0,1]
            v_permlane{sw}_swap_b32 v{dst}, v{aq}
            v_permlane{sw}_swap_b32 v{dst+1}, v{aq+1}
            v_pk_add_f32 {rr('v', dst, 2)}, {rr('v', dst, 2)}, {rr('v', aq, 2)}""")

    def rstd_from(aq, dst):
        table_sum(aq, dst)
        for t in range(2):
            p(f"v_fma_f32 v{dst+t}, v{dst+t}, s{s_t1}, v{vt+4}")
        for t in range(2):
            p(f"v_rsq_f32 v{dst+t}, v{dst+t}")

    p(f"""
    s_add_u32 s{s_xe}, s{s_pj}, {ST_FO}
    s_andn2_b32 s{s_c}, s{s_xe}, 2047
    s_lshl_b32 s{s_xo}, s{s_tok}, 11
    s_lshl_b32 s{s_xend}, s{s_tok}, 6
    s_add_u32 s{s_xend}, s{s_xend}, {ST_MP}""")
    if R3:
        p(f"s_and_b32 s{s_t0}, s{s_j}, 1\ns_lshl_b32 s{s_t0}, s{s_t0}, 14\ns_add_u32 s{s_xo}, s{s_xo}, s{s_t0}")
    AF = o.get('arrfirst', False)
    OM = o.get('omode', 2)

    def o_arrive():
        if 'fineo' in dbg: p.add(Raw("; @stamp 3"))
        if OM == 2:
            p(f"""
            v_lshlrev_b32 v{vt}, 10, v0
            s_and_b32 s{s_t0}, s{s_j}, 8
            s_lshl_b32 s{s_t0}, s{s_t0}, 7
            s_mov_b64 exec, 3
            s_waitcnt vmcnt(0)
            buffer_atomic_add v{vOne}, v{vt}, s[{sT}:{sT+3}], s{s_c} offen
            s_mov_b64 exec, -1
            s_add_u32 s{s_c}, s{s_c}, s{s_t0}""")
        elif OM == 3:
            p(f"""
            s_andn2_b32 s{s_c}, s{s_c}, 0x1800
            s_waitcnt vmcnt(0)
            s_barrier""")
            p.add(Raw(f"    s_cmp_lg_u32 s{s_w}, 0\n    s_cbranch_scc1 {name}_nofo\n    buffer_store_dword v{vOne}, v{vZ}, s[{sT}:{sT+3}], s{s_xe} offen sc1\n{name}_nofo:"))
        else:
            arrive(p, s_xe)
    if AF: o_arrive()
    vE = 136
    p(f"""
    v_add_u32 v{vX1}, 0x8000, v{vL16}
    v_and_b32 v{vt+4}, 15, v0
    v_lshlrev_b32 v{vPT}, 3, v{vt+4}
    v_lshrrev_b32 v{vt+5}, 4, v0
    v_lshl_add_u32 v{vPT}, v{vt+5}, 9, v{vPT}""")
    wread_addr(11)
    for t in range(2):
        for F in range(4):
            a = AB3 + (F * 2 + t) * 4
            e = 40 + t * 16 + F * 2
            p(f"""
            v_lshlrev_b32 v{a}, 16, v{e}
            v_and_b32 v{a+1}, 0xffff0000, v{e}
            v_lshlrev_b32 v{a+2}, 16, v{e+1}
            v_and_b32 v{a+3}, 0xffff0000, v{e+1}""")
    def rd3(n):
        q, F, g, b = n >> 4, (n >> 2) & 3, (n >> 1) & 1, n & 1
        return Ins(f"ds_read_b64_tr_b16 {rr('v', WB + 2 * (n % 32), 2)}, v{vA3 + F} offset:{(q & 7) * 8192 + g * 4096 + b * 1024}")
    for n in range(LEAD):
        p.add(rd3(n))
    if not AF: o_arrive()
    if WH:
        p(f"""
        s_lshl_b32 s{s_wdo}, s{s_w}, 16
        s_lshl_b32 s{s_t0}, s{s_j}, 7
        s_add_u32 s{s_wdo}, s{s_wdo}, s{s_t0}
        s_lshl_b32 s{s_wm0}, s{s_w}, 12""")
        for q in range(4, 8):
            p(f"s_add_u32 m0, s{s_wm0}, {q * 16384}\ns_add_u32 s{s_t0}, s{s_wdo}, {q * 128 * 2048}")
            for i in range(4):
                p(f"buffer_load_dwordx4 v{vWD+i}, s[{sE}:{sE+3}], s{s_t0} offen offset:{i*1024} lds", awr=['LW2'], nowaw=True)
    main_cur = p.cur
    bg = []
    BW = o.get('bgwin', 1)
    if BW: p(f"s_mov_b32 s{s_xe}, s{s_c}")
    else: p.cur = bg
    SLOT4, HI4, LEAD4 = 28672, 106496, 8
    s_nb, s_wo4, s_m04, s_dsl, s_rsl, s_tk4 = 66, 68, 69, 70, 71, 72
    vD4 = 21
    AB4 = 32
    p(f"""
    s_and_b32 s{s_t0}, s2, 7
    s_lshr_b32 s{s_t1}, s2, 3
    s_and_b32 s{s_tk4}, s{s_t1}, 7
    s_lshr_b32 s{s_t1}, s{s_t1}, 3
    s_lshl_b32 s{s_nb}, s{s_t0}, 2
    s_add_u32 s{s_nb}, s{s_nb}, s{s_t1}
    s_movk_i32 s{s_t1}, 4682
    s_movk_i32 s{s_t0}, {7168 - 14 * 16}
    """)
    for i in range(7):
        p(f"""
        v_add_u32 v{vt}, {64*i}, v0
        v_mul_u32_u24 v{vt+1}, s{s_t1}, v{vt}
        v_lshrrev_b32 v{vt+1}, 16, v{vt+1}
        v_add_u32 v{vt}, {1024 * (i - (i & 3))}, v{vL16}
        v_mad_u32_u24 v{vD4+i}, v{vt+1}, s{s_t0}, v{vt}
        """)
    p(f"""
    s_lshl_b32 s{s_tk4}, s{s_tk4}, 2
    s_add_u32 s{s_tk4}, s{s_tk4}, s{s_w}
    s_lshl_b32 s{s_tk4}, s{s_tk4}, 6
    s_and_b32 s{s_t0}, s{s_w}, 1
    s_mul_i32 s{s_wo4}, s{s_t0}, {32 * 7168}
    s_mul_i32 s{s_t1}, s{s_nb}, 224
    s_add_u32 s{s_wo4}, s{s_wo4}, s{s_t1}
    s_mul_i32 s{s_m04}, s{s_w}, 7168
    s_mov_b32 s{s_dsl}, s{s_m04}
    s_mov_b32 s{s_rsl}, {HI4}
    s_cmp_lt_u32 s{s_w}, 2
    s_cselect_b64 s[{sD}:{sD+1}], s[{pWG}:{pWG+1}], s[{pWU}:{pWU+1}]
    s_mov_b32 s{sD+2}, {hex(D * FF * 2)}
    """)
    srd(p, sA, pWS, HC[1], bias=HC[0])
    for i in range(4):
        p(f"v_accvgpr_write_b32 a{aMEAN-4+i}, v{vWD+i}")
    p(f"v_mov_b32 v36, v{vPW}")
    vPW = 36
    vX4 = [vL16, 12, 13, 14]
    vA4, vAb, vR4 = 15, 11, 28
    vS, vQ, vP = 28, 144, WB
    s_ho, s_c4, s_sq4 = 65, 67, 73
    HCA = o.get('hca', False)
    p(f"""
    v_add_u32 v{vX4[2]}, 0x10000, v{vL16}
    v_add_u32 v{vX4[3]}, 0x18000, v{vL16}
    v_lshrrev_b32 v{vt}, 2, v0
    v_mul_u32_u24 v{vt}, 224, v{vt}
    v_and_b32 v{vt+1}, 3, v0
    v_lshl_add_u32 v{vAb}, v{vt+1}, 3, v{vt}
    v_mov_b32 v{vA4}, v{vAb}
    s_lshl_b32 s{s_sq4}, s{s_tk4}, 6
    s_add_u32 s{s_c4}, s{s_sq4}, {ST_FC}
    s_add_u32 s{s_sq4}, s{s_sq4}, {ST_SSQ}
    s_add_u32 s{s_ho}, s{s_tok}, s{s_j}
    s_lshl_b32 s{s_ho}, s{s_ho}, 11
    s_add_u32 s{s_c}, s{s_pj}, {ST_FC}
    {f's_andn2_b32 s{s_c}, s{s_c}, 4095' if HCA else ''}
    {f's_and_b32 s{s_t0}, s2, 7' if HCA else ''}
    {f's_lshl_b32 s{s_t0}, s{s_t0}, 9' if HCA else ''}
    {f's_add_u32 s{s_c4}, s{s_c4}, s{s_t0}' if HCA else ''}
    {f'v_lshlrev_b32 v{vt+6}, 9, v0' if HCA else ''}
    s_add_u32 s{s_pj}, s{s_pj}, {ST_SSQ}
    s_mov_b32 s{s_t1}, {f32hex(-1.0/1024)}""")
    if BW:
        for i in range(156, 256, 2 if BW == 1 else 1):
            p(f"v_pk_mov_b32 {rr('v', i, 2)}, 0, 0" if BW == 1 else f"v_mov_b32 v{i}, 0")
        p.cur = bg
    for t in range(2):
        p(f"""
        v_add_f32 v{vE+t}, v{vE+t}, v{vE+2+t}
        v_add_f32 v{vE+4+t}, v{vE+4+t}, v{vE+6+t}
        v_add_f32 v{vS+t}, v{vE+t}, v{vE+4+t}""")
        xsum16_32(p, f"v{vS+t}", f"v{vt}")
        p(f"v_accvgpr_read_b32 v{vt}, a{aMEAN+t}")
        p(f"v_fma_f32 v{vS+t}, v{vS+t}, s{s_t1}, -v{vt}")
    p(f"v_mov_b32 v{vt+4}, {f32hex(1e-5)}\ns_mov_b32 s{s_t1}, {f32hex(1.0/1024)}")
    if not BW:
        for i in range(156, 256):
            p(f"v_mov_b32 v{i}, 0")
    p.cur = main_cur

    def units_of(lst):
        out = []
        for x in lst:
            if out and x.op.startswith(('s_addc', 's_subb', 's_cselect')): out[-1].append(x)
            else: out.append([x])
        return out
    bg = units_of(bg)
    p.add(Raw("; @stamp 5"))
    if OM == 2: poll(p, f"{name}_opoll", s_xe if BW else s_c, 1, vt, 16)
    else: poll(p, f"{name}_opoll", s_xe if BW else s_c, 16, vt, 1, s_j if OM else None)
    if 'twice3' in dbg: p.add(Raw(f"    s_mov_b32 s{s_spin}, 2\n    s_mov_b32 s14, s{s_pj}\n    s_mov_b32 s15, s{s_xo}\n{name}_tw3:\n    s_mov_b32 s{s_pj}, s14\n    s_mov_b32 s{s_xo}, s15"))
    p.add(Raw("; @stamp 6"))

    def dma4(par):
        o_ = []
        for i in range(7):
            if i == 0: o_.append(Ins(f"s_add_u32 m0, s{s_dsl}, {par * SLOT4}"))
            if i == 4: o_.append(Ins("s_add_u32 m0, m0, 4096"))
            o_.append(Ins(f"buffer_load_dwordx4 v{vD4+i}, s[{sD}:{sD+3}], s{s_wo4} offen offset:{(i&3)*1024} lds", awr=['Lx'], nowaw=True))
        o_.append(Ins(f"s_add_u32 s{s_wo4}, s{s_wo4}, {64 * 7168}"))
        return o_

    X3 = lambda q, t, g: rr('a', (q % 8) * 16 + (t * 2 + g) * 4, 4)

    def xld3(q):
        o_ = [Ins(f"buffer_load_dwordx4 {X3(q, t, g)}, v{vX1 if t else vL16}, s[{sB}:{sB+3}], s{s_xo} offen offset:{(q & 1) * 2048 + g*1024} sc1")
              for t in range(2) for g in range(2)]
        return o_ + ([Ins(f"s_add_u32 s{s_xo}, s{s_xo}, 4096")] if q & 1 else [])
    L3 = o.get('l3', 3)
    D4 = o.get('d4', (9, 9))
    for q in range(L3): p.add(xld3(q))
    side = []
    for q in range(16):
        if q + L3 < 16: side += xld3(q + L3)
        if q == 16 - L3:
            pass
        for k in range(2):
            if q == 2 * D4[k]: side += dma4(k)
        mp = [Ins(f"buffer_load_dwordx2 {rr('v', vE + 2*i, 2)}, v{vPT}, s[{sT}:{sT+3}], s{s_xend} offen offset:{i*128} sc1") for i in range(4)] if q == 1 else []
        for i in range(16):
            F = i >> 2
            t, g = zz(F, 2, 2, ZZ)[i & 3]
            p(mf16(ACS(F, t), rr('v', WB + ((q & 1) * 8 + F * 2 + g) * 4, 4), X3(q, t, g)))
            n = q * 16 + i + LEAD
            if q == 10 and i == 0:
                p("s_barrier")
            if WH and n == 128: p("s_barrier", rd=['LW2'])
            if n < 256: p.add(rd3(n))
            if n in (115, 119, 123, 127): p(f"v_xor_b32 v{vA3 + (n - 112) // 4}, 0x10000, v{vA3 + (n - 112) // 4}")
            used = True
            if i % 4 == 3:
                if (q > 0 or i > 3) and q * 16 + i < 255:
                    m = (q * 16 + i + 1) % 32
                    p(f"wait {rr('v', WB + 2 * m, 8)}" + (", " + ", ".join(X3(q + 1, t_, g_) for t_ in range(2) for g_ in range(2)) if i == 15 else ""))
            if side and i % 4 == 0 and side[0].kind == 'vmem': p.add(side.pop(0))
            elif side and side[0].kind == 'salu': p.add(side.pop(0))
            elif mp and i % 4 == 2: p.add(mp.pop(0))
            else: used = False
            if bg and not used and q > (7 if BW else 0):
                p.add(bg.pop(0))
                if bg and q * 16 + i > 200: p.add(bg.pop(0))
    p.add(side)
    assert not bg, len(bg)
    p.add(Raw("; @stamp 7"))
    if 'twice3' in dbg: p.add(Raw(f"    s_waitcnt vmcnt(0)\n    s_sub_u32 s{s_spin}, s{s_spin}, 1\n    s_cmp_lg_u32 s{s_spin}, 0\n    s_cbranch_scc1 {name}_tw3"))

    for t in range(2):
        sel = "op_sel_hi:[1,0]" if t == 0 else "op_sel:[0,1]"
        q = rr('v', vQ + 2 * t, 2)
        for F in range(4):
            a = AB3 + (F * 2 + t) * 4
            k = vQ + 4 + (F & 1) * 4
            hc = vP + (t * 2 + (F >> 1)) * 4 + (F & 1) * 2
            p(f"""
            v_pk_add_f32 {rr('v', k, 2)}, {rr('v', a, 2)}, {rr('v', vS, 2)} {sel}
            v_pk_add_f32 {rr('v', k+2, 2)}, {rr('v', a+2, 2)}, {rr('v', vS, 2)} {sel}
            v_cvt_pk_bf16_f32 v{hc}, v{k}, v{k+1}
            v_cvt_pk_bf16_f32 v{hc+1}, v{k+2}, v{k+3}""")
            if F & 1:
                g = F >> 1
                p(f"buffer_store_dwordx4 {rr('v', hc-2, 4)}, v{vX1 if t else vL16}, s[{sA}:{sA+3}], s{s_ho} offen offset:{g*1024} sc1")
            p(f"v_pk_mul_f32 {q}, {rr('v', k, 2)}, {rr('v', k, 2)}" if F == 0 else f"v_pk_fma_f32 {q}, {rr('v', k, 2)}, {rr('v', k, 2)}, {q}")
            p(f"v_pk_fma_f32 {q}, {rr('v', k+2, 2)}, {rr('v', k+2, 2)}, {q}")
    p(f"""
    v_add_f32 v{vQ}, v{vQ}, v{vQ+1}
    v_add_f32 v{vQ+2}, v{vQ+2}, v{vQ+3}
    v_permlane16_swap_b32 v{vQ}, v{vQ+2}
    v_add_f32 v{vQ}, v{vQ}, v{vQ+2}
    v_mov_b32 v{vQ+1}, v{vQ}
    v_permlane32_swap_b32 v{vQ}, v{vQ+1}
    v_add_f32 v{vt}, v{vQ}, v{vQ+1}
    s_mov_b32 exec_hi, 0
    buffer_store_dword v{vt}, v{vPW}, s[{sT}:{sT+3}], s{s_pj} offen sc1
    s_mov_b32 exec_hi, -1
    """)
    for q in range(2):
        if D4[q] == 8: p.add(dma4(q))
    for t in range(2):
        for F in range(4):
            a = AB3 + (F * 2 + t) * 4
            hr = vP + 16 + (t * 2 + (F >> 1)) * 4 + (F & 1) * 2
            p(f"v_cvt_pk_bf16_f32 v{hr}, v{a}, v{a+1}\nv_cvt_pk_bf16_f32 v{hr+1}, v{a+2}, v{a+3}")
    for i in range(16):
        p(f"v_accvgpr_write_b32 a{aHR+i}, v{vP+16+i}")
    if 'H' in dbg:
        srd(p, sB, pWS, HR[1], bias=HR[0])
        for t in range(2):
            for g in range(2):
                p(f"buffer_store_dwordx4 {rr('v', vP + 16 + (t*2+g)*4, 4)}, v{vX1 if t else vL16}, s[{sB}:{sB+3}], s{s_ho} offen offset:{g*1024}")
    for i in range(AB4 + (0 if o.get('ril', False) else 16), 156, 2):
        p(f"v_pk_mov_b32 {rr('v', i, 2)}, 0, 0")
    p(f"""
    s_lshl_b32 s{s_xo}, s{s_tk4}, 11
    s_waitcnt vmcnt({7 * D4.count(8)})
    """)
    if 'ack' in dbg: p.add(Raw("; @stamp 0"))
    if HCA:
        p(f"s_mov_b64 exec, 0xff\nbuffer_atomic_add v{vOne}, v{vt+6}, s[{sT}:{sT+3}], s{s_c} offen\ns_mov_b64 exec, -1")
    else:
        p(f"buffer_store_dword v{vOne}, v{vZ}, s[{sT}:{sT+3}], s{s_c} offen sc1")
    if 'ack' in dbg: p.add(Raw("    s_waitcnt vmcnt(0)\n; @stamp 1"))
    for q in range(2):
        if D4[q] == 9: p.add(dma4(q))
    if D4[1] < 10: p(f"s_add_u32 s{s_dsl}, s{s_m04}, {HI4}")
    PX = o.get('px', 8)
    BT = o.get('btouch', 0)
    vFL, vBT = vt + 5, vt + 6
    s_hf, s_x5, s_of, s_bt = 65, 63, 64, 3
    wread_addr(12)
    srd(p, sB, pWS, HH[1], bias=HH[0])
    srd(p, sC, pWS, XC[1], bias=XC[0])
    p(f"""
    s_bfe_u32 s{s_hf}, s{s_b}, 0x10002
    s_lshl_b32 s{s_hf}, s{s_hf}, 1
    s_lshr_b32 s{s_t0}, s{s_j}, 3
    s_add_u32 s{s_hf}, s{s_hf}, s{s_t0}
    s_and_b32 s{s_c}, s{s_tok}, 0x5c0
    s_lshl_b32 s{s_c}, s{s_c}, 6
    s_lshl_b32 s{s_t0}, s{s_hf}, 10
    s_add_u32 s{s_c}, s{s_c}, s{s_t0}
    s_add_u32 s{s_c}, s{s_c}, {ST_FH}
    s_xor_b32 s{s_x5}, s{s_tok}, 512
    s_mul_i32 s{s_x5}, s{s_x5}, {112 * 64}
    s_mul_i32 s{s_t0}, s{s_hf}, {28 * 1024}
    s_add_u32 s{s_x5}, s{s_x5}, s{s_t0}
    s_mul_i32 s{s_of}, s{s_tk4}, {112 * 64}
    s_lshr_b32 s{s_t0}, s{s_nb}, 3
    s_mul_i32 s{s_t0}, s{s_t0}, {56 - 8}
    s_add_u32 s{s_t0}, s{s_t0}, s{s_nb}
    s_lshl_b32 s{s_t0}, s{s_t0}, 9
    s_add_u32 s{s_of}, s{s_of}, s{s_t0}
    v_and_b32 v{vFL}, 7, v0
    v_lshlrev_b32 v{vFL}, 7, v{vFL}
    v_bfe_u32 v{vt}, v0, 3, 1
    v_lshl_add_u32 v{vFL}, v{vt}, 15, v{vFL}""")
    if BT:
        p(f"""
        v_cmp_gt_u32 vcc, 14, v0
        v_lshlrev_b32 v{vt}, 10, v0
        v_add_u32 v{vt}, {4096 + 384}, v{vt}
        v_mov_b32 v{vt+1}, 0x7ffffff0
        v_cndmask_b32 v{vBT}, v{vt+1}, v{vt}, vcc
        s_lshr_b32 s{s_bt}, s2, 3
        s_lshl_b32 s{s_bt}, s{s_bt}, 2
        s_add_u32 s{s_bt}, s{s_bt}, s{s_w}
        s_mul_i32 s{s_bt}, s{s_bt}, {7 * 2048}""")


    X4 = lambda slot, t, g: rr('a', slot * 32 + (t * 2 + g) * 4, 4)
    WB4, WB4B, NWR = 96, 128, 4
    W4 = lambda q, g: rr('a', WB4 + (q % NWR) * 8 + g * 4, 4)
    AC4 = lambda f, t: rr('v', AB4 + (f * 4 + t) * 4, 4)

    def xld4(slot):
        o_ = [Ins(f"buffer_load_dwordx4 {X4(slot, t, g)}, v{vX4[t]}, s[{sA}:{sA+3}], s{s_xo} offen offset:{g*1024} sc1")
              for t in range(4) for g in range(2)]
        return o_ + [Ins(f"s_add_u32 s{s_xo}, s{s_xo}, 2048")]

    def rd4(q, n, par=None, base=WB4):
        f = q % 14
        g, b = n >> 1, n & 1
        if par is None: par = (q // 14) & 1
        return Ins(f"ds_read_b64_tr_b16 {rr('a', base + (q % NWR)*8 + g*4 + 2*b, 2)}, v{vA4} offset:{par*SLOT4 + (f&1)*14336 + (32*g+16*b)*224 + (f>>1)*32}")
    if D4[0] < 8:
        p("s_barrier")
        for n in range(LEAD4):
            p.add(rd4(n >> 2, n & 3))
    p.add(Raw("; @stamp 8"))
    if HCA: poll(p, f"{name}_hpoll", s_c4, 1, vt, 32)
    else: poll(p, f"{name}_hpoll", s_c4, 32, vt)
    p.add(Raw("; @stamp 9"))
    RIL = o.get('ril', False)
    if not RIL:
        for q in range(2):
            table_load(AB4 + 8 * q, s_sq4, q)
    p.add(xld4(0))
    if RIL:
        for q in range(2):
            for i in range(4):
                p(f"buffer_load_dwordx2 {rr('a', WB4B + 8*q + 2*i, 2)}, v{vPT}, s[{sT}:{sT+3}], s{s_sq4} offen offset:{q*2048 + i*128} sc1")
    if o.get('b1', True): p("s_barrier")
    if D4[0] >= 8:
        for n in range(LEAD4):
            p.add(rd4(n >> 2, n & 3))
    ril = []
    if RIL:
        p.cur = ril
        for t in range(4):
            a_ = WB4B + 8 * (t >> 1) + (t & 1)
            for i in range(4): p(f"v_accvgpr_read_b32 v{vt+i}, a{a_ + 2*i}")
            p(f"v_add_f32 v{vt}, v{vt}, v{vt+1}\nv_add_f32 v{vt+2}, v{vt+2}, v{vt+3}\nv_add_f32 v{vt}, v{vt}, v{vt+2}")
            xsum16_32(p, f"v{vt}", f"v{vt+1}")
            p(f"v_fma_f32 v{vt}, v{vt}, s{s_t1}, v{vt+4}\nv_rsq_f32 v{vt}, v{vt}")
            p(f"v_mul_f32 v{vR4+t}, {f32hex(-LOG2E)}, v{vt}")
        p.cur = main_cur
    else:
        for q in range(2):
            rstd_from(AB4 + 8 * q, vR4 + 2 * q)
        for t in range(4):
            p(f"v_mul_f32 v{vR4+t}, {f32hex(-LOG2E)}, v{vR4+t}")
        for i in range(AB4, AB4 + 16, 2):
            p(f"v_pk_mov_b32 {rr('v', i, 2)}, 0, 0")
    p(f"s_mov_b32 s{s_cnt}, 7")
    p("wait " + ", ".join(X4(0, t, g) for t in range(4) for g in range(2)) + f", {W4(0, 0)}, {W4(0, 1)}")
    p.begin_loop(f"{name}_p4loop", 7)
    B1 = o.get('b1', True)
    BP = o.get('bpos', 99)
    for u in range(2):
        MV = o.get('p4mv', 0)
        if u == 0: d41 = dma4(1)
        vm = d41[MV:] + xld4(0) if u == 1 else xld4(1) + dma4(0) + d41[:MV]
        if 'p4nov' in dbg: vm = [x for x in vm if x.kind != 'vmem']
        fill, pos = {}, 1
        for ins in vm:
            fill.setdefault(pos, []).append(ins)
            pos += o.get('p4d', 4) if 'lds' in ins.mods else o.get('p4step', 4) if ins.kind == 'vmem' else 2
            if pos % 8 == 7: pos += 2
        assert pos < (91 if u else 118), pos
        if u == 1:
            fill[97] = [Ins(f"s_sub_u32 s{s_rsl}, {HI4}, s{s_rsl}")]
            fill[107] = [Ins(f"s_add_u32 s{s_dsl}, s{s_m04}, s{s_rsl}")]
            fill[93] = [Ins(f"s_sub_u32 s{s_cnt}, s{s_cnt}, 1")]
            fill[109] = [Ins(f"s_cmp_lg_u32 s{s_cnt}, 0")]
            fill.setdefault(pos, []).append(Ins(f"s_cmp_eq_u32 s{s_cnt}, 1"))
            fill.setdefault(pos + 1, []).append(Raw(f"    s_cbranch_scc1 {name}_x15\n{name}_x15back:"))
            x15blk = Raw(f"{name}_x15:\n" + "".join(f"    {x.text}\n" for x in xld4(2)[:8]) +
                         (code_touch(f"{name}_ct5", f"{name}_tail4", f"{name}_end", 2, vt, vt + 1) if o.get('ipf5', False) else "") +
                         f"    s_branch {name}_x15back")
        order = [(f, t, g) for f in range(14) for t, g in zz(f, 4, 2, ZZ)]
        late = B1 and u == 1
        for i, (f, t, g) in enumerate(order):
            p(mf16(AC4(f, t), W4(u * 14 + f, g), X4(u, t, g)))
            if late and i == BP:
                p("s_waitcnt vmcnt(8) lgkmcnt(0)")
                p("s_barrier")
            if late and i >= 96:
                if BP <= i < BP + 8:
                    p.add(rd4(28 + ((i - BP) >> 2), (i - BP) & 3))
            elif i % 2 == 0:
                n = i // 2 + LEAD4
                p.add(rd4(u * 14 + (n >> 2), n & 3))
            if i == 95 and u == 1: p(f"v_add_u32 v{vA4}, s{s_rsl}, v{vAb}")
            if i == 95 and not B1:
                p("s_waitcnt vmcnt(15) lgkmcnt(4)")
                if 'p4nobar' not in dbg: p("s_barrier")
            elif i == 111:
                p(f"wait {W4(u*14 + 14, 0)}, {W4(u*14 + 14, 1)}, " + ", ".join(X4(1 - u, t_, g_) for t_ in range(4) for g_ in range(2)))
            elif i % 8 == 7:
                p(f"wait {W4(u*14 + f + 1, 0)}, {W4(u*14 + f + 1, 1)}")
            p.add(fill.get(i, []))
            if ril and u == 1 and i not in fill and i < 94: p.add(ril.pop(0))
    assert not ril
    p(f"s_cbranch_scc1 {name}_p4loop")
    p.end_loop()
    p(f"{name}_tail4:")
    p.add(Raw("; @stamp 10"))
    main_cur = p.cur
    setup = []
    p.cur = setup

    vW5 = 21
    s_wo5, s_m05 = 68, 69
    vH = 13
    vFG, vTwo = 25, 26
    for i in range(2):
        p(f"v_accvgpr_read_b32 v{vW5+i}, a{aMEAN-4+i}")
    p(f"""
    s_mul_i32 s{s_t0}, s{s_hf}, {896 * 2048}
    s_xor_b32 s{s_t1}, s{s_j}, {PX}
    s_add_u32 s{s_t1}, s{s_t1}, 16
    s_sub_u32 s{s_t1}, s{s_t1}, s{s_j}
    s_lshl_b32 s{s_t1}, s{s_t1}, 7
    v_add_u32 v{vW5+2}, s{s_t1}, v{vW5}
    v_add_u32 v{vW5+3}, s{s_t1}, v{vW5+1}
    v_add_u32 v{vW5}, 4096, v{vW5}
    v_add_u32 v{vW5+1}, 4096, v{vW5+1}
    s_mul_i32 s{s_wo5}, s{s_w}, {112 * 2048}""")
    srd(p, sD, pWD, 896 * 2048 + 4096, off=s_t0, bias=-4096)
    p(f"""
    s_lshl_b32 s{s_t1}, s{s_j}, 7
    s_add_u32 s{s_wo5}, s{s_wo5}, s{s_t1}
    s_lshl_b32 s{s_m05}, s{s_w}, 12
    v_lshrrev_b32 v{vt}, 5, v0
    v_mul_u32_u24 v{vt}, {112 * 1024 - 512}, v{vt}
    v_add_u32 v{vH}, v{vt}, v{vL16}
    v_add_u32 v{vH+1}, {2 * 112 * 1024}, v{vH}
    v_add_u32 v{vX1}, {112 * 1024}, v{vL16}
    s_mul_i32 s{s_xo}, s{s_tok}, {112 * 64}
    s_mul_i32 s{s_t0}, s{s_hf}, {28 * 1024}
    s_add_u32 s{s_xo}, s{s_xo}, s{s_t0}
    s_mov_b32 s{s_spin}, {SPIN}
    s_lshl_b32 s{s_t0}, s{s_nb}, 7
    s_add_u32 s{s_sq4}, s{s_sq4}, s{s_t0}
    s_add_u32 s{s_sq4}, s{s_sq4}, {ST_FH - ST_SSQ}""")
    p.cur = main_cur
    btouch = lambda: Ins(f"buffer_load_dword v27, v{vBT}, s[{sD}:{sD+3}], s{s_bt} offen", nowaw=True)

    def dma5(st):
        o_ = [Ins(f"s_add_u32 m0, s{s_m05}, {(st % 8) * 16384}")]
        for i in range(4):
            o_.append(Ins(f"buffer_load_dwordx4 v{vW5+i}, s[{sD}:{sD+3}], s{s_wo5} offen offset:{i*1024} lds", awr=[f'L5_{st}'], nowaw=True))
        o_.append(Ins(f"s_add_u32 s{s_wo5}, s{s_wo5}, {448 * 2048}" if st & 1 == 0 else f"s_sub_u32 s{s_wo5}, s{s_wo5}, {(448 - 16) * 2048}"))
        return o_

    def glu(pr, packed):
        o_ = []
        for t in range(4):
            g = AB4 + ((2 * pr) * 4 + t) * 4
            u_ = AB4 + ((2 * pr + 1) * 4 + t) * 4
            rs_ = rr('v', vR4 + (t & 2), 2)
            sel = "op_sel_hi:[1,0]" if t % 2 == 0 else "op_sel:[0,1]"
            if packed:
                o_ += [f"v_pk_mul_f32 {rr('v', g+r, 2)}, {rr('v', g+r, 2)}, {rs_} {sel}" for r in (0, 2)]
                o_ += [f"v_exp_f32 v{g+r}, v{g+r}" for r in range(4)]
                o_ += [f"v_pk_add_f32 {rr('v', g+r, 2)}, {rr('v', g+r, 2)}, 1.0 op_sel_hi:[1,0]" for r in (0, 2)]
                o_ += [f"v_rcp_f32 v{g+r}, v{g+r}" for r in range(4)]
                o_ += [f"v_pk_mul_f32 {rr('v', u_+r, 2)}, {rr('v', u_+r, 2)}, {rr('v', g+r, 2)}" for r in (0, 2)]
            else:
                o_ += [f"v_mul_f32 v{g+r}, v{vR4+t}, v{g+r}" for r in range(4)]
                o_ += [f"v_exp_f32 v{g+r}, v{g+r}" for r in range(4)]
                o_ += [f"v_add_f32 v{g+r}, 1.0, v{g+r}" for r in range(4)]
                o_ += [f"v_rcp_f32 v{g+r}, v{g+r}" for r in range(4)]
                o_ += [f"v_mul_f32 v{u_+r}, v{u_+r}, v{g+r}" for r in range(4)]
            d_ = AB4 + ((2 * pr) * 4 + (t & 2)) * 4 + (t & 1) * 2
            o_ += [f"v_cvt_pk_bf16_f32 v{d_}, v{u_}, v{u_+1}", f"v_cvt_pk_bf16_f32 v{d_+1}, v{u_+2}, v{u_+3}"]
            if t & 1:
                o_ += [f"v_permlane32_swap_b32 v{d_-2}, v{d_}", f"v_permlane32_swap_b32 v{d_-1}, v{d_+1}",
                       f"buffer_store_dwordx4 {rr('v', d_-2, 4)}, v{vH + (t >> 1)}, s[{sB}:{sB+3}], s{s_of} offen sc1"]
        o_.append(f"s_add_u32 s{s_of}, s{s_of}, 4096")
        return [Ins(x, awr=[f'HS{pr}'], nowaw=True) if x.startswith('buffer') else Ins(x) for x in o_]

    AC5, WB5, vHI, vHF = 96, 40, 72, 224
    XB5 = (160, 192, 32, 0, 64, 96, 128)
    A5 = lambda F, t: rr('v', AC5 + ((F >> 2) + 2 * (t >> 1)) * 32 + ((F & 3) * 2 + (t & 1)) * 4, 4)
    X5 = lambda st, t, G: rr('a', XB5[st % 7] + (t * 2 + G) * 4, 4)
    NT = o.get('nt5', 6)

    def xld5(st):
        o_ = [Ins(f"buffer_load_dwordx4 {X5(st, t, G)}, v{vX1 if t & 1 else vL16}, s[{sB}:{sB+3}], s{s_x5 if t >> 1 else s_xo} offen offset:{G*1024} sc1")
              for t in range(4) for G in range(2)]
        return o_[:4] + [Ins(f"s_add_u32 s{s_xo}, s{s_xo}, 2048")] + o_[4:] + [Ins(f"s_add_u32 s{s_x5}, s{s_x5}, 2048")]

    outl = []

    def spin(label, level, ld=None):
        outl.append(Raw(f"""{label}:
    s_cmp_eq_u32 s{s_spin}, 0
    s_cbranch_scc1 {label}_done
    s_sub_u32 s{s_spin}, s{s_spin}, 1
    {ld or fgl}
    s_waitcnt vmcnt(0)
    v_cmp_gt_u32 vcc, {level}, v{vFG}
    s_nop 0
    s_cbranch_vccnz {label}
    s_branch {label}_done"""))
        return f"""    v_cmp_gt_u32 vcc, {level}, v{vFG}
    s_nop 0
    s_cbranch_vccnz {label}
{label}_done:"""
    last = list(range(14 - NT, 14))
    FO = o.get('fo5', 4)
    units = [(st, F, (0, 1, 2, 3)) for st in range(14 - NT) for F in range(8)]
    units += [(st, F, (0, 1, 2, 3)) for st in last[:-FO] for F in range(4, 8)]
    units += [(st, F, (0, 1, 2, 3)) for F in range(4, 8) for st in last[-FO:]]
    kB = len(units)
    kC = kB + 4 * NT
    units += [(st, F, (2, 3)) for F in range(4) for st in last]
    units += [(st, F, (0, 1)) for F in range(4) for st in last]

    def rd5(k):
        st, F = units[k][:2]
        return [Ins(f"ds_read_b64_tr_b16 {rr('v', WB5 + (k % 4)*8 + 2*n, 2)}, v{(vHI if st & 4 else vA3) + (F & 3)} "
                    f"offset:{(st & 3)*16384 + (n >> 1)*8192 + (F >> 2)*2048 + (n & 1)*1024}") for n in range(4)]
    fgl = f"buffer_load_dword v{vFG}, v{vFL}, s[{sT}:{sT+3}], s{s_c} offen sc1"
    tell = lambda prs: [Ins(f"buffer_store_dword v{vOne}, v{vZ}, s[{sT}:{sT+3}], s{s_sq4} offen sc1", rd=[f'HS{q}' for q in prs]),
                        Ins(f"s_add_u32 s{s_sq4}, s{s_sq4}, 0x40000")]
    check = lambda n: [Ins(f"wait v{vFG}"), Raw(spin(f"{name}_fpoll{n}", 1)), Ins(f"s_add_u32 s{s_c}, s{s_c}, 0x40000")]

    W4B = lambda q, g: rr('a', WB4B + (q % NWR) * 8 + g * 4, 4)
    C0 = o.get('c0at', (5, 21))
    at = {o.get('t0at', (2, 27)): tell((0,)), o.get('l0at', (4, 29)): [Ins(fgl)],
          C0: [Raw("; @stamp 11")] + check(0) + [Raw("; @stamp 12")], o.get('t1at', (5, 29)): tell((1, 2, 3))}
    x01 = xld5(0) + xld5(1)
    if not B1:
        p("s_waitcnt vmcnt(0)")
        p("s_barrier")
    for n in range(4):
        p.add(rd4(0, n, 1, WB4B))
    cost = lambda x: 8 if x.kind == 'trans' else 0 if x.kind == 'vmem' else 4
    pend = []
    for pr in range(7):
        work = setup if pr == 0 else glu(pr - 1, False)
        side = dma5(pr - 1) if pr >= 1 else []
        if BT and pr == o.get('btat', 3): side.append(btouch())
        tot = sum(cost(x) for x in work)
        done, wi = 0, 0
        for ff in range(2):
            f = 2 * pr + ff
            if f == 0: order = [(t, k) for t in range(4) for k in (0, 1)] + [(t, k) for t in range(4) for k in (2, 3)]
            else: order = zz(f, 4, 4, ZZ)
            rds = [rd4(f + 1, n, 1, WB4B) for n in range(4)] if f + 1 < 14 else []
            rds += [rd4(f + 2, n, 0) for n in range(4)] if f + 2 < 14 else []
            for i, (t, k) in enumerate(order):
                p(mf16(AC4(f, t), W4(f, k) if k < 2 else W4B(f, k - 2), X4(0 if k < 2 else 2, t, k & 1)))
                if B1 and f == 0 and i == 7:
                    p("s_waitcnt vmcnt(0)")
                if f == 13 and i == 0:
                    p("s_barrier", rd=['L5_0', 'L5_1', 'L5_2', 'L5_3'])
                    rds = rd5(0) + rd5(1)

                def xnext():
                    p.add(x01.pop(0))
                    if x01 and x01[0].kind == 'salu': p.add(x01.pop(0))
                if i % 2 == 0 and rds:
                    p.add(rds.pop(0))
                elif i == 15:
                    if f < 13: p(f"wait {W4(f+1, 0)}, {W4(f+1, 1)}, {W4B(f+1, 0)}, {W4B(f+1, 1)}")
                elif (pr, ff * 16 + i) in at:
                    p.add(at[pr, ff * 16 + i])
                elif pend and i % 2:
                    p.add(pend.pop(0))
                    if pr >= 5 and pend and pend[0].kind == 'salu': p.add(pend.pop(0))
                elif x01 and (pr, ff * 16 + i) > C0 and (len(x01) > 10 or not side):
                    xnext()
                elif side and (i % 2 or pr == 6):
                    p.add(side.pop(0))
                    if pr >= 5 and side and side[0].kind == 'salu': p.add(side.pop(0))
                gap = ff * 16 + i + 1
                while wi < len(work) and done + cost(work[wi]) / 2 <= tot * gap / 32:
                    if work[wi].kind == 'vmem' or (pr and work[wi].kind == 'salu'): pend.append(work[wi])
                    else: p.add(work[wi])
                    done += cost(work[wi]); wi += 1
        assert wi == len(work) and (not side or pr == 6)
    carry = pend + side + x01

    p.add(Raw("; @stamp 13"))
    STG = 131072
    vL, vG, vXF = 30, 15, 26
    s_ro, s_fl, s_xs, s_fy, s_fb = 66, 67, 72, 70, 71
    SQ5 = 32
    bg = []
    p.cur = bg
    for i in range(4):
        p(f"v_xor_b32 v{vHI+i}, 0x10000, v{vA3+i}")
    p(f"""
    s_lshl_b32 s{s_of}, s{s_tok}, 6
    s_add_u32 s{s_of}, s{s_of}, {ST_SSQ}
    s_lshl_b32 s{s_t0}, s{s_b}, 4
    s_add_u32 s{s_t0}, s{s_t0}, s{s_j}
    s_lshl_b32 s{s_xs}, s{s_t0}, 2
    s_add_u32 s{s_xs}, s{s_xs}, s{s_w}
    s_lshl_b32 s{s_fl}, s{s_xs}, 7
    v_and_b32 v{vt+2}, 1, v0
    v_lshlrev_b32 v{vt+2}, 15, v{vt+2}
    v_xor_b32 v{vt+2}, {8 << 9}, v{vt+2}
    v_xor_b32 v{vXF}, s{s_fl}, v{vt+2}
    s_add_u32 s{s_fy}, s{s_fl}, {ST_FY}
    s_add_u32 s{s_fl}, s{s_fl}, {ST_FX}
    s_mov_b32 s{s_fb}, {ST_FY}
    s_lshl_b32 s{s_xs}, s{s_xs}, 14
    s_add_u32 s{s_nb+4}, s{s_xs}, 4096
    s_mul_i32 s{s_t0}, s{s_w}, 4608
    s_add_u32 s{s_t0}, s{s_t0}, {STG}
    v_and_b32 v{vt+2}, 15, v0
    v_mul_u32_u24 v{vt+2}, 144, v{vt+2}
    v_lshrrev_b32 v{vt+3}, 4, v0
    v_lshl_add_u32 v{vt+2}, v{vt+3}, 3, v{vt+2}
    v_add_u32 v{vL}, s{s_t0}, v{vt+2}
    v_lshrrev_b32 v{vt+2}, 3, v0
    v_and_b32 v{vt+3}, 7, v0
    v_lshlrev_b32 v{vt+3}, 4, v{vt+3}
    v_lshl_add_u32 v{vG}, v{vt+2}, 11, v{vt+3}
    v_mul_u32_u24 v{vt+2}, 144, v{vt+2}
    v_add3_u32 v{vL+1}, v{vt+2}, v{vt+3}, s{s_t0}
    s_lshl_b32 s{s_ro}, s{s_tok}, 11
    s_lshl_b32 s{s_t2}, s{s_j}, 7
    s_add_u32 s{s_ro}, s{s_ro}, s{s_t2}
    s_add_u32 s0, s{s_xs}, 4096
    s_add_u32 s1, s{s_xs}, 8192
    s_add_u32 s14, s{s_xs}, 12288
    s_xor_b32 s15, s0, {8 << 16}
    s_xor_b32 s74, s1, {64 << 16}
    s_xor_b32 s75, s14, {72 << 16}
    s_mov_b32 s{s_t1}, {f32hex(1.0/1024)}
    v_mov_b32 v{vt+4}, {f32hex(1e-5)}
    """.replace(f"    s_add_u32 s{s_nb+4}, s{s_xs}, 4096\n", ""))
    srd(p, sA, pOUT, S * D * 2)
    for t in range(2):
        for F in range(4):
            e = aHR + (t * 2 + (F >> 1)) * 4 + (F & 1) * 2
            k = vHF + (F * 2 + t) * 4
            p(f"""
            v_accvgpr_read_b32 v{k+1}, a{e}
            v_accvgpr_read_b32 v{k+3}, a{e+1}
            v_lshlrev_b32 v{k}, 16, v{k+1}
            v_lshlrev_b32 v{k+2}, 16, v{k+3}
            v_and_b32 v{k+1}, 0xffff0000, v{k+1}
            v_and_b32 v{k+3}, 0xffff0000, v{k+3}""")
    bg2 = []
    p.cur = bg2
    for t in range(2):
        p(f"""
        v_add_f32 v{SQ5+t}, v{SQ5+t}, v{SQ5+2+t}
        v_add_f32 v{SQ5+4+t}, v{SQ5+4+t}, v{SQ5+6+t}
        v_add_f32 v{vS+t}, v{SQ5+t}, v{SQ5+4+t}""")
        xsum16_32(p, f"v{vS+t}", f"v{vt}")
        p(f"v_fma_f32 v{vS+t}, v{vS+t}, s{s_t1}, v{vt+4}\nv_rsq_f32 v{vS+t}, v{vS+t}")
    p.cur = main_cur
    sXQ = {1: 0, 2: 1, 3: 14}
    assert NT in (4, 5, 6)
    sql = [Ins(f"buffer_load_dwordx2 {rr('v', SQ5 + 2*i, 2)}, v{vPT}, s[{sT}:{sT+3}], s{s_of} offen offset:{i*128} sc1") for i in range(4)]
    X_ = {st: xld5(st) for st in range(2, 14)}
    X_[1] = [x for x in x01]
    plan = {0: carry + dma5(6) + [Ins(fgl)] + dma5(7) + [check(1)] + X_[2][:5], 1: X_[2][5:] + X_[3] + X_[4][:5],
            2: tell((4, 5, 6)) + X_[4][5:] + X_[5], 3: dma5(8) + dma5(9) + X_[6], 4: [Ins(fgl)] + X_[7] + [check(2)] + X_[8],
            5: dma5(10) + dma5(11) + X_[9], 6: X_[10] + X_[11], 7: dma5(12) + dma5(13) + X_[12], 8: X_[13]}
    bar_at = {2: [4, 5, 6, 7], 4: [], 6: [8, 9, 10, 11], 9: [12, 13]}
    g6 = glu(6, False)
    g6tot, g6done = sum(cost(x) for x in g6), 0
    start = {}
    for k, u_ in enumerate(units[:kB]): start.setdefault(u_[0], k)
    kstart = {k: st for st, k in start.items() if st < 12}
    kbar = {start[st + 1] - 2: v for st, v in bar_at.items()}
    RX = AC5 + 32
    rxl = lambda F, r: Ins(f"buffer_load_dwordx4 {rr('v', AC5 + r*32 + F*8, 4)}, v{vL16}, s[{sC}:{sC+3}], s{(15, 74, 75)[r-1]} offen offset:{F*1024} sc1")
    fyl = f"buffer_load_dword v{vFG}, v{vXF}, s[{sT}:{sT+3}], s{s_fb} offen sc1"
    ev = {}
    YL = o.get('yl', [(-2, (0, 1), 15, 21), (12, (2, 3), 35, 42)])
    for n, (kt_, Fs, kl, kc) in enumerate(YL):
        ev.setdefault(kB + kt_, []).extend(
            [Ins(f"buffer_store_dword v{vOne}, v{vZ}, s[{sT}:{sT+3}], s{s_fy} offen sc1", rd=[f'XS{r}_{F}' for F in Fs for r in (1, 3)]),
             Ins(f"s_add_u32 s{s_fy}, s{s_fy}, 0x40000")])
        ev.setdefault(kB + kl, []).append(Ins(fyl))
        ev.setdefault(kB + kc, []).extend(
            [[Ins(f"wait v{vFG}"), Raw(spin(f"{name}_ypoll{n}", 1, fyl)), Ins(f"s_add_u32 s{s_fb}, s{s_fb}, 0x40000")]] +
            [rxl(F, r) for F in Fs for r in (1, 3)])
    ev.setdefault(kC + o.get('kfb', 12), []).extend(
        [Ins(f"buffer_store_dword v{vOne}, v{vZ}, s[{sT}:{sT+3}], s{s_fl} offen sc1", rd=[f'XS2_{F}' for F in range(4)]),
         Ins(f"s_xor_b32 s{s_fl}, s{s_fl}, {64 << 9}")])
    side, seen, hold = [], set(), 0
    for k, (st, F, ts) in enumerate(units):
        if k in kstart:
            side += plan.get(st, [])
        assert all(x not in side for x in X_.get(st, [])[:-1])
        side += ev.get(k, [])
        if k == kB - 14: side += sql
        if k == kB + 8: bg += bg2
        if 'fine5' in dbg:
            mk = {start[3]: 3, start[4]: 4, start[8]: 5, kB: 6, kC: 7, kC + 8: 8, kC + 16: 9}
            if k in mk: p.add(Raw(f"; @stamp {mk[k]}"))
        rds = rd5(k + 2) if k + 2 < len(units) else []
        order = [(ts[t], G) for t, G in zz(k, len(ts), 2, ZZ)]
        for i, (t, G) in enumerate(order):
            c = None if (F, t) in seen else "0"
            seen.add((F, t))
            p(mf16(A5(F, t), rr('v', WB5 + (k % 4) * 8 + G * 4, 4), X5(st, t, G), c))
            if i == 0 and k in kbar:
                assert not any(f'L5_{x}' in getattr(y, 'awr', ()) for x in kbar[k] for y in side)
                p("s_barrier", rd=[f'L5_{x}' for x in kbar[k]])
            used = False
            if rds and (i % 2 == 0 or len(ts) == 2):
                p.add(rds.pop(0))
            if i == len(order) - 1:
                if k + 1 < len(units):
                    n_ = units[k + 1]
                    p(f"wait {rr('v', WB5 + ((k + 1) % 4) * 8, 8)}, " + ", ".join(X5(n_[0], t_, G_) for t_ in n_[2] for G_ in range(2)))
            if side and i % 2 == 1 and (getattr(side[0], 'kind', '') == 'vmem') == (i % 4 == 1):
                p.add(side.pop(0)); used = True
                while side and i % 4 == 3 and getattr(side[0], 'kind', '') == 'salu': p.add(side.pop(0))
            while g6 and g6done + cost(g6[0]) / 2 <= g6tot * (k * 8 + i + 1) / 62:
                x = g6.pop(0); g6done += cost(x)
                if x.kind == 'vmem': side.insert(0, x)
                elif x.kind != 'salu': p.add(x)
            if bg and not used and k >= 9:
                x = bg.pop(0)
                if x.kind == 'vmem': side.append(x)
                else: p.add(x)
        if st == 13:
            for tp in sorted({t >> 1 for t in ts}):
                r = (F >> 2) + 2 * tp
                if r:
                    a = AC5 + r * 32 + (F & 3) * 8
                    bg += [Ins("wait v0") for _ in range(3 if not bg else 0)]
                    bg += [Ins(f"v_cvt_pk_bf16_f32 v{a+q}, v{a+2*q}, v{a+2*q+1}") for q in range(4)]
                    bg.append(Ins(f"buffer_store_dwordx4 {rr('v', a, 4)}, v{vL16}, s[{sC}:{sC+3}], s{sXQ[r]} offen offset:{(F & 3)*1024} sc1",
                                  awr=[f'XS{r}_{F & 3}'], nowaw=True))
    assert not bg
    p.add(Raw("; @stamp 14"))
    p.add(side + ev.get(len(units), []))
    fxl = f"buffer_load_dword v{vFG}, v{vt+1}, s[{sT}:{sT+3}], s{s_fl} offen sc1"
    p(f"v_mov_b32 v{vt+1}, 0")
    p(fxl)
    sels = ("op_sel_hi:[1,0,1]", "op_sel:[0,1,0]")
    RU = 40

    def add_rx(F, r):
        for q in range(4):
            e, a, k = AC5 + r * 32 + F * 8 + q, RU + ((r * 4 + q) % 8) * 2, vHF + F * 8 + 2 * q
            p(f"v_lshlrev_b32 v{a}, 16, v{e}\nv_and_b32 v{a+1}, 0xffff0000, v{e}")
            p(f"v_pk_fma_f32 {rr('v', k, 2)}, {rr('v', a, 2)}, {rr('v', vS, 2)}, {rr('v', k, 2)} {sels[q >> 1]}")
    for i in range(0, 32, 2):
        p(f"v_pk_fma_f32 {rr('v', vHF+i, 2)}, {rr('v', AC5+i, 2)}, {rr('v', vS, 2)}, {rr('v', vHF+i, 2)} {sels[(i >> 2) & 1]}")
    for F in range(2):
        add_rx(F, 1); add_rx(F, 3)
    if 'tail' in dbg: p.add(Raw("; @stamp 0"))
    p(f"wait v{vFG}")
    p.add(Raw(spin(f"{name}_xpoll", 1, fxl)))
    p.add([rxl(F, 2) for F in range(4)])
    if 'tail' in dbg: p.add(Raw("; @stamp 1"))
    for F in range(2, 4):
        add_rx(F, 1); add_rx(F, 3)
    for F in range(4):
        add_rx(F, 2)
        for t in range(2):
            k = vHF + (F * 2 + t) * 4
            p(f"v_cvt_pk_bf16_f32 v{k}, v{k}, v{k+1}\nv_cvt_pk_bf16_f32 v{k+1}, v{k+2}, v{k+3}")
            p(f"ds_write_b64 v{vL}, v[{k}:{k+1}] offset:{t*16*144 + F*32}")
    for n in range(4):
        p(f"ds_read_b128 {rr('v', 128 + n*4, 4)}, v{vL+1} offset:{n*8*144}")
    if 'tail' in dbg: p.add(Raw("; @stamp 2"))
    for n in range(4):
        p(f"buffer_store_dwordx4 {rr('v', 128 + n*4, 4)}, v{vG}, s[{sA}:{sA+3}], s{s_ro} offen")
        if n < 3: p(f"s_add_u32 s{s_ro}, s{s_ro}, {8 * 2048}")
    p(f"{name}_end:")
    p("s_endpgm")
    p.add(x15blk)
    p.add(outl)

    z = 48
    rgl = f"buffer_load_dwordx2 v[{z+4}:{z+5}], v{z+6}, s[{sT}:{sT+3}], s{s_fo} offen sc1"
    p.add(Raw(f"""{name}_rsx:
    s_cmp_eq_u32 s{s_cnt}, 2
    s_cbranch_scc1 {name}_rs5
    {mf16(rr('v', z, 4), on, rr('v', vRS, 4), "0")}
    {mf16(rr('v', z, 4), on, rr('v', vRS + 4, 4))}
    s_lshl_b32 s{s_t0}, s{s_fo}, 3
    s_add_u32 s{s_t0}, s{s_t0}, {ST_RS2}
    s_lshl_b32 s{s_fo}, s{s_j}, 9
    s_add_u32 s{s_fo}, s{s_fo}, {ST_RS2}
    v_lshlrev_b32 v{z+6}, 3, v0
    s_mov_b32 s{s_spin}, {SPIN}
    s_nop 2
""" + "".join(f"    v_add_f32_dpp v{z}, v{z}, v{z} row_ror:{k} row_mask:0xf bank_mask:0xf\n    s_nop 1\n" for k in (8, 4, 2, 1)) + f"""    v_mov_b32 v{z+1}, 1
    buffer_store_dwordx2 v[{z}:{z+1}], v{vZ}, s[{sT}:{sT+3}], s{s_t0} offen sc1
    s_branch {name}_rsxback
{name}_rs5:
    {rgl}
    s_lshl_b32 s{s_t0}, s{s_w}, 13
    s_add_u32 m0, s{s_t0}, {XT}
    s_add_u32 s{s_t0}, s{s_t0}, {XT + 4096}
    s_lshl_b32 s{s_t1}, s{s_j}, 7
    v_lshl_add_u32 v{z}, v0, 2, s{s_t0}
    v_xor_b32 v{z+1}, 32, v{vXA}
    v_xor_b32 v{z+2}, 64, v{vXA}
    v_xor_b32 v{z+3}, 0x60, v{vXA}
    v_xor_b32 v{z+7}, 128, v{vRA}
""" + "".join(f"    buffer_load_dwordx4 v{vD+i}, s[{sC}:{sC+3}], s{s_t1} offen offset:{i*1024} lds\n" for i in range(4)) +
              (code_touch(f"{name}_ct3", f"{name}_fin", f"{name}_tail4", 1, z + 7, vDum) if o.get('ipf3', False) else "") + f"""    s_branch {name}_rsxback
{name}_rspoll:
    s_sub_u32 s{s_spin}, s{s_spin}, 1
    s_cbranch_scc1 {name}_rsgo
    {rgl}
    s_waitcnt vmcnt(0)
    v_cmp_ne_u32 vcc, 1, v{z+5}
    s_nop 0
    s_cbranch_vccnz {name}_rspoll
    s_branch {name}_rsgo"""))

    slow = p.segment()
    p(f"{name}_slow:")
    p.fence()
    for x in range(2):
        p(f"v_mov_b32 v{Nb(x)}, 0xff800000")
    p(f"s_mov_b32 s{s_ko}, 0\ns_mov_b32 s{sA+2}, {KV[1]}")
    p.begin_loop(f"{name}_max_loop", 64, align=False)
    p.add([kld(0, 0), kld(0, 1)])
    for x in range(2):
        p(mf32(rr('v', Sb(x), 16), Kf(0, 0), Q(x, 0), "0"))
        p(mf32(rr('v', Sb(x), 16), Kf(0, 1), Q(x, 1)))
    for x in range(2):
        for i in range(0, 16, 2):
            p(f"v_max3_f32 v{Nb(x)}, v{Nb(x)}, v{Sb(x)+i}, v{Sb(x)+i+1}")
    p(f"""
    s_add_u32 s{s_ko}, s{s_ko}, 4096
    s_cmp_lg_u32 s{s_ko}, {64 * 4096}
    s_cbranch_scc1 {name}_max_loop""")
    p.end_loop()
    for x in range(2):
        p(f"""
        v_mov_b32 v{vt}, v{Nb(x)}
        v_permlane32_swap_b32 v{Nb(x)}, v{vt}
        v_max_f32 v{Nb(x)}, v{Nb(x)}, v{vt}
        v_sub_f32 v{Nb(x)}, 0, v{Nb(x)}""")
        for i in range(1, 16):
            p(f"v_mov_b32 v{Nb(x)+i}, v{Nb(x)}")
    p(f"s_mov_b32 s{sA+2}, {KV[1]}")
    fill_kv()
    att_init(NR)
    p(f"s_mov_b32 s{s_safe}, 1")
    attention('safe', lambda y: rr('v', Nb(y), 16), False, [Ins("s_nop 11")])
    p.fence()
    p(f"s_branch {name}_fin")
    p.paths = [[main, red_w, rest], [main, fin, fin_k, rest], [main, fin, fin_v, rest], [slow]]
    return p
```

```python
from common import *

LDS_TOTAL = 163840
ST_MR = 0x0000
ST_RS2 = 0x60000
ST_MP = 0x28000
ST_FO = 0x80000
ST_FC = 0xA0000
ST_FH = 0xC0000
ST_FY = 0x120000
ST_FX = 0xE0000
ST_KVC = 0x4000
SPIN = 1 << 20

pX, pWQ, pWK, pWV, pWO, pWG, pWU, pWD, pOUT, pDBG, pWS = 4, 6, 8, 10, 12, 16, 18, 20, 22, 24, 26
sA, sB, sC, sD, sE, sT = 28, 32, 36, 40, 44, 48
s_w, s_b, s_j, s_tok, s_t0, s_t1, s_t2, s_cnt, s_spin = 52, 53, 54, 55, 56, 57, 58, 59, 60
vL16, vZ, vOne = 1, 2, 3
aMEAN, aHR, aA5 = 238, 240, 160


def srd(p, s, ptr, size, off=None, bias=0):
    if off is not None:
        p(f"s_add_u32 s{s}, s{ptr}, s{off}\ns_addc_u32 s{s+1}, s{ptr+1}, 0")
        ptr = s
    if bias > 0:
        p(f"s_add_u32 s{s}, s{ptr}, {hex(bias)}\ns_addc_u32 s{s+1}, s{ptr+1}, 0")
    elif bias < 0:
        p(f"s_sub_u32 s{s}, s{ptr}, {hex(-bias)}\ns_subb_u32 s{s+1}, s{ptr+1}, 0")
    elif off is None:
        p(f"s_mov_b64 s[{s}:{s+1}], s[{ptr}:{ptr+1}]")
    if isinstance(size, str):
        p(size.format(d=f"s{s+2}"))
    else:
        p(f"s_mov_b32 s{s+2}, {hex(size)}")
    p(f"s_mov_b32 s{s+3}, 0x20000")


PFL = ['sc1', 'sc1', 'buffer_store_dword']


def arrive(p, soff):
    p("s_waitcnt vmcnt(0)")
    p(f"{PFL[2]} v{vOne}, v{vZ}, s[{sT}:{sT+3}], s{soff} offen {PFL[1]}")


SLEEP = [0]


def poll(p, label, soff, n, vtmp, target=1, skip=None):
    p(f"""
    s_mov_b32 s{s_spin}, {SPIN}
    v_lshlrev_b32 v{vtmp+1}, 7, v0
    s_mov_b64 exec, {hex((1 << n) - 1) if n < 32 else 0xffff}
    {'s_mov_b32 exec_lo, -1' if n == 32 else ''}
    {f's_bitset0_b32 exec_lo, s{skip}' if skip else ''}""")
    p.add(Raw(f"""    s_branch {label}_go
{label}:
    {f's_sleep {SLEEP[0]}' if SLEEP[0] else ''}
{label}_go:
    buffer_load_dword v{vtmp}, v{vtmp+1}, s[{sT}:{sT+3}], s{soff} offen {PFL[0]}
    s_sub_u32 s{s_spin}, s{s_spin}, 1
    s_waitcnt vmcnt(0)
    v_cmp_gt_u32 vcc, {target}, v{vtmp}
    s_cbranch_scc1 {label}_done
    s_cbranch_vccnz {label}
{label}_done:"""))
    p("s_mov_b64 exec, -1")
    p("s_waitcnt vmcnt(0)")


def spread(vm, start, step):
    fill, pos = {}, start
    for ins in vm:
        fill.setdefault(pos, []).append(ins)
        if ins.kind == 'vmem':
            pos += step
    return fill


def zz(f, nt, nk, on=True):
    if not on:
        return [(t, k) for t in range(nt) for k in range(nk)]
    ts = list(range(nt)) if f % 2 == 0 else list(range(nt - 1, -1, -1))
    return [(t, k if n % 2 == 0 else nk - 1 - k) for n, t in enumerate(ts) for k in range(nk)]


def code_touch(tag, first, last, lines, vtmp, vdst):
    return f"""    s_getpc_b64 s[74:75]
{tag}:
    s_lshr_b32 s{s_t0}, s2, 3
    s_lshl_b32 s{s_t0}, s{s_t0}, 2
    s_add_u32 s{s_t0}, s{s_t0}, s{s_w}
    s_mul_i32 s{s_t0}, s{s_t0}, {128 * lines}
    s_min_u32 s{s_t0}, s{s_t0}, {last}-{first}
    s_sub_u32 s74, s74, {tag}-{first}
    s_subb_u32 s75, s75, 0
    v_min_u32 v{vtmp}, {lines - 1}, v0
    v_lshl_add_u32 v{vtmp}, v{vtmp}, 7, s{s_t0}
    global_load_dword v{vdst}, v{vtmp}, s[74:75]
"""


def gen_fused(name, o):
    ZZ = o.get('zz', True)
    dbg = o.get('dbg', '')
    SLEEP[0] = o.get('sleep', 0)
    PFL[:] = o.get('pfl', PFL)
    KVSC = 'sc1' if o.get('kvsc1', False) else ''
    outl = []

    def spin2(label, level, ld, v):
        outl.append(Raw(f"""{label}:
    s_cmp_eq_u32 s{s_spin}, 0
    s_cbranch_scc1 {label}_done
    s_sub_u32 s{s_spin}, s{s_spin}, 1
    {ld}
    s_waitcnt vmcnt(0)
    v_cmp_gt_u32 vcc, {level}, v{v}
    s_nop 0
    s_cbranch_vccnz {label}
    s_branch {label}_done"""))
        return f"""    v_cmp_gt_u32 vcc, {level}, v{v}
    s_nop 0
    s_cbranch_vccnz {label}
{label}_done:"""
    p = Prog()
    main = p.segment()
    p(f"""
    s_cmp_ge_u32 s2, 256
    s_cbranch_scc1 {name}_end
    s_load_dwordx16 s[4:19], s[0:1], 0
    s_load_dwordx8 s[20:27], s[0:1], 64
    v_lshrrev_b32 v1, 6, v0
    v_and_b32 v0, 63, v0
    v_readfirstlane_b32 s{s_w}, v1
    s_and_b32 s{s_t0}, s2, 7
    s_lshr_b32 s{s_t1}, s2, 3
    s_lshr_b32 s{s_b}, s{s_t0}, 1
    s_lshl_b32 s{s_b}, s{s_b}, 2
    s_and_b32 s{s_j}, s{s_t1}, 3
    s_add_u32 s{s_b}, s{s_b}, s{s_j}
    s_and_b32 s{s_j}, s{s_t0}, 1
    s_lshl_b32 s{s_j}, s{s_j}, 3
    s_lshr_b32 s{s_t1}, s{s_t1}, 2
    s_add_u32 s{s_j}, s{s_j}, s{s_t1}
    {f"s_xor_b32 s{s_j}, s{s_j}, {o['jxor']}" if o.get('jxor') else ''}
    s_lshl_b32 s{s_tok}, s{s_b}, 2
    s_add_u32 s{s_tok}, s{s_tok}, s{s_w}
    s_lshl_b32 s{s_tok}, s{s_tok}, 5
    v_lshlrev_b32 v{vL16}, 4, v0
    v_cmp_eq_u32 vcc, 0, v0
    v_mov_b32 v{vOne}, 0x7ffffff0
    v_cndmask_b32 v{vZ}, v{vOne}, 0, vcc
    v_mov_b32 v{vOne}, 1
    """)

    R3 = o.get('rot3', False)
    SL = 24576
    RED, CSQ = 147456, 162816
    vt = 4
    vD = 12
    vD0 = 18
    vB = 22
    vA = 28
    vST = 34
    ONES = 36
    vRS = 40
    s_kv, s_xoff, s_woff, s_dm, s_pb, s_w6 = 61, 62, 63, 64, 65, 66
    s_hd, s_wdo, s_wm0, s_po, s_pk, s_ko, s_vo, s_pj = 67, 68, 69, 70, 71, 72, 73, 3
    p(f"""
    v_lshrrev_b32 v{vt}, 3, v0
    v_lshrrev_b32 v{vt+1}, 4, v0
    v_and_b32 v{vt+2}, 7, v0
    v_xor_b32 v{vt+3}, v{vt+1}, v{vt+2}
    v_lshlrev_b32 v{vt+3}, 4, v{vt+3}
    v_lshl_add_u32 v{vt+3}, v{vt}, 11, v{vt+3}
    v_xor_b32 v{vt+4}, 64, v{vt+3}
    v_add_u32 v{vD}, 4096, v{vt+3}
    v_add_u32 v{vD+1}, {16384 + 4096 - 1024}, v{vt+4}
    v_add_u32 v{vD0}, {128 + 4096 - 2048}, v{vt+3}
    v_add_u32 v{vD0+1}, {16384 + 128 + 4096 - 3072}, v{vt+4}
    v_lshrrev_b32 v{vt+5}, 5, v0
    v_lshlrev_b32 v{vt+5}, 1, v{vt+5}
    v_xor_b32 v{vt+5}, v{vt+5}, v0
    v_lshlrev_b32 v{vD0+2}, 4, v{vt+5}
    v_add_u32 v{vD+2}, {32768 + 4096 - 2048}, v{vt+3}
    v_add_u32 v{vD+3}, {32768 + 16384 + 4096 - 3072}, v{vt+4}
    v_and_b32 v{vt+1}, 1, v{vt+1}
    v_lshlrev_b32 v{vt+1}, 1, v{vt+1}
    v_xor_b32 v{vt+1}, v{vt+1}, v{vt+2}
    v_lshlrev_b32 v{vt+1}, 4, v{vt+1}
    v_lshl_add_u32 v{vD+4}, v{vt}, 11, v{vt+1}
    v_xor_b32 v{vD+5}, 64, v{vD+4}
    v_add_u32 v{vD+5}, {8*2048 - 1024}, v{vD+5}
    s_lshr_b32 s{s_t0}, s{s_j}, 1
    s_lshl_b32 s{s_kv}, s{s_b}, 3
    s_add_u32 s{s_kv}, s{s_kv}, s{s_t0}
    s_lshl_b32 s{s_kv}, s{s_kv}, 4
    s_lshl_b32 s{s_t0}, s{s_kv}, 11
    s_lshl_b32 s{s_t1}, s{s_w}, 9
    s_add_u32 s{s_t0}, s{s_t0}, s{s_t1}
    s_add_u32 s{s_t1}, s{s_w}, 2
    s_mul_i32 s{s_dm}, s{s_t1}, {SL}
    s_mov_b32 m0, s{s_dm}
    s_mul_i32 s{s_xoff}, s{s_b}, {128 * o.get('rotb', 4)}
    s_mul_i32 s{s_woff}, s{s_j}, {128 * o.get('rotj', 2)}
    s_add_u32 s{s_xoff}, s{s_xoff}, s{s_woff}
    s_and_b32 s{s_xoff}, s{s_xoff}, 2047
    s_mul_i32 s{s_w6}, s{s_w}, 6144
    s_lshl_b32 s{s_ko}, s{s_w}, 14
    s_bfe_u32 s{s_vo}, s{s_j}, 0x20001
    s_lshl_b32 s{s_vo}, s{s_vo}, 14
    s_and_b32 s{s_t1}, s{s_tok}, 0x1e0
    s_lshl_b32 s{s_t1}, s{s_t1}, 5
    s_add_u32 s{s_vo}, s{s_vo}, s{s_t1}
    v_lshlrev_b32 v{vt+6}, 7, v0
    """)
    srd(p, sA, pX, S * D * 2 + 4096, bias=-4096)
    p.add(Raw("; @fine 4"))
    p(f"""
    s_bitcmp0_b32 s{s_j}, 0
    s_cselect_b64 s[{sB}:{sB+1}], s[{pWK}:{pWK+1}], s[{pWV}:{pWV+1}]
    s_mov_b32 s{sB+2}, {D * 64}
    s_mov_b32 s{sB+3}, 0x20000
    """)
    if o.get('kvtouch', True):
        p("s_mov_b64 exec, 0xff")
        p(f"buffer_load_dword v255, v{vt+6}, s[{sB}:{sB+3}], s{s_vo} offen", nowaw=True)
        p.cur[-1].awr = set()
        p("s_mov_b64 exec, -1")
    xo = [vD, vD + 1, vD0, vD0 + 1]
    for n in range(8):
        if n == 4:
            p(f"s_add_u32 m0, m0, 4096\ns_add_u32 s{s_t0}, s{s_t0}, 256")
        p(f"buffer_load_dwordx4 v{xo[n & 3]}, s[{sA}:{sA+3}], s{s_t0} offen offset:{(n & 3) * 1024} lds", awr=['P00'], nowaw=True)

    def wkv(q):
        p("s_add_u32 m0, m0, 4096")
        if q: p(f"s_add_u32 s{s_ko}, s{s_ko}, 4096")
        for i in range(4):
            p(f"buffer_load_dwordx4 v{vD0+2}, s[{sB}:{sB+3}], s{s_ko} offen offset:{i*1024} lds", awr=[f'P0{q}'], nowaw=True)
    EARLY = o.get('early', 0)
    for q in range(EARLY): wkv(q)
    if o.get('sipf', 2):
        p(f"""
        s_getpc_b64 s[0:1]
        s_lshr_b32 s{s_t0}, s2, 3
        s_lshl_b32 s{s_t0}, s{s_t0}, 2
        s_add_u32 s{s_t0}, s{s_t0}, s{s_w}
        s_lshl_b32 s{s_t0}, s{s_t0}, 7
        s_add_u32 s0, s0, s{s_t0}
        s_addc_u32 s1, s1, 0
        s_and_b32 s0, s0, 0xffffff80
        s_load_dword s{s_spin}, s[0:1], 0""")
        if o.get('sipf', 2) == 2: p(f"s_load_dword s{s_cnt}, s[0:1], 64")
    p.add(Raw("; @fine 5"))
    p(f"""
    s_lshl_b32 s{s_t0}, s{s_tok}, 11
    s_lshl_b32 s{s_t1}, s{s_w}, 15
    s_lshl_b32 s{s_t2}, s{s_j}, 7
    s_add_u32 s{s_t1}, s{s_t1}, s{s_t2}
    """)
    srd(p, sC, pX, 32 * 2048 + 4096, off=s_t0, bias=-4096)
    srd(p, sD, pWQ, f"s_sub_u32 {{d}}, {D * D * 2}, s{s_t1}", off=s_t1)

    def dma1(m0expr, tag):
        o_ = [Ins(m0expr), Ins(f"s_lshl_b32 s{s_woff}, s{s_xoff}, 10")]
        for i in range(4):
            o_.append(Ins(f"buffer_load_dwordx4 v{vD+i}, s[{sC}:{sC+3}], s{s_xoff} offen offset:{i*1024} lds", awr=[tag], nowaw=True))
        o_ += [Ins("s_add_u32 m0, m0, 4096"), Ins(f"s_add_u32 s{s_xoff}, s{s_xoff}, 128")]
        for i in range(2):
            o_.append(Ins(f"buffer_load_dwordx4 v{vD+4+i}, s[{sD}:{sD+3}], s{s_woff} offen offset:{i*1024} lds", awr=[tag], nowaw=True))
        o_.append(Ins(f"s_and_b32 s{s_xoff}, s{s_xoff}, 2047"))
        return o_
    if o.get('qtouch', True):
        srd(p, sE, pWQ, D * D * 2)
        p(f"""
        s_lshr_b32 s{s_t0}, s2, 3
        s_lshl_b32 s{s_t0}, s{s_t0}, 2
        s_add_u32 s{s_t0}, s{s_t0}, s{s_w}
        s_lshl_b32 s{s_t0}, s{s_t0}, 14
        s_and_b32 s{s_t1}, s{s_j}, 8
        s_lshl_b32 s{s_t1}, s{s_t1}, 7
        s_add_u32 s{s_t0}, s{s_t0}, s{s_t1}
        v_lshlrev_b32 v{vt+6}, 11, v0
        s_mov_b64 exec, 0xff""")
        p(f"buffer_load_dword v255, v{vt+6}, s[{sE}:{sE+3}], s{s_t0} offen offset:384", nowaw=True)
        p.cur[-1].awr = set()
        if o.get('qlin', True):
            p(f"""
            s_lshl_b32 s{s_t0}, s2, 2
            s_add_u32 s{s_t0}, s{s_t0}, s{s_w}
            s_lshl_b32 s{s_t0}, s{s_t0}, 11
            s_mov_b64 exec, 0xffff
            v_lshlrev_b32 v{vt+6}, 7, v0""")
            p(f"buffer_load_dword v255, v{vt+6}, s[{sE}:{sE+3}], s{s_t0} offen", nowaw=True)
            p.cur[-1].awr = set()
        p("s_mov_b64 exec, -1")
    srd(p, sE, pWO, D * D * 2)

    srd(p, sT, pWS, ST[1], bias=ST[0])
    srd(p, sA, pWS, KV[1], bias=KV[0])
    p(f"""
    v_and_b32 v{vt}, 15, v0
    v_lshrrev_b32 v{vt+1}, 1, v{vt}
    v_lshrrev_b32 v{vt+2}, 4, v0
    v_xor_b32 v{vt+1}, v{vt+1}, v{vt+2}
    v_lshlrev_b32 v{vt+1}, 4, v{vt+1}
    v_lshl_add_u32 v{vt+1}, v{vt}, 7, v{vt+1}
    v_xor_b32 v{vt+3}, 64, v{vt+1}
    v_add_u32 v{vB}, s{s_w6}, v{vt+1}
    v_add_u32 v{vB+1}, s{s_w6}, v{vt+3}
    v_add_u32 v{vA}, s{s_dm}, v{vt+1}
    v_add_u32 v{vA+1}, s{s_dm}, v{vt+3}
    v_lshrrev_b32 v{vt}, 5, v0
    v_and_b32 v{vt+1}, 3, v0
    v_lshlrev_b32 v{vt+1}, 3, v{vt+1}
    v_bfe_u32 v{vt+2}, v0, 2, 2
    v_bfe_u32 v{vt+3}, v0, 4, 1
    v_lshl_add_u32 v{vt+2}, v{vt+3}, 3, v{vt+2}
    v_lshl_add_u32 v{vt+4}, v{vt}, 10, v{vt+1}
    v_lshl_add_u32 v{vt+4}, v{vt+2}, 6, v{vt+4}
    v_lshl_add_u32 v{vt+4}, v{vt+3}, 5, v{vt+4}
    v_add_u32 v{vA+2}, s{s_dm}, v{vt+4}
    v_xor_b32 v{vA+3}, 32, v{vA+2}
    v_mul_u32_u24 v{vt}, 6144, v{vt}
    v_add_u32 v{vt}, v{vt}, v{vt+1}
    v_lshl_add_u32 v{vt}, v{vt+2}, 7, v{vt}
    v_bfe_u32 v{vt+4}, v0, 3, 2
    v_xor_b32 v{vt+4}, s{s_w}, v{vt+4}
    v_lshl_add_u32 v{vB+2}, v{vt+4}, 5, v{vt}
    v_xor_b32 v{vB+3}, 32, v{vB+2}
    v_xor_b32 v{vB+4}, 64, v{vB+2}
    v_xor_b32 v{vB+5}, 0x60, v{vB+2}
    """)
    for i in range(4):
        p(f"v_mov_b32 v{ONES+i}, 0x3f803f80")
    on = rr('v', ONES, 4)
    AB = 48
    CSA = 80
    PA = 84
    FB = 128
    TR = 112
    NR = 8
    Q = lambda x, m: rr('v', 16 + x * 8 + m * 4, 4) if x < 2 else rr('a', 112 + (x - 2) * 8 + m * 4, 4)
    Sb = lambda x: 64 + 16 * x
    RSV = 112
    Nb = lambda x: 144 + 16 * x
    Ob = lambda x: 176 + 16 * x if x < 2 else 144 + 16 * (x - 2)
    Lb = lambda x: 208 + 4 * x if x < 2 else 96 + 4 * (x - 2)
    XT = 131072
    Pb = lambda x: 216 + 8 * x
    SEL, vWD, vPF, vDum, vOS, vPW, vCS, vGP, vMA, vRA, vXS, vXR, vXA = 232, 236, 240, 241, 242, 243, 244, 245, 246, 247, 248, 249, 250

    def att_init(nr):
        for i in list(range(Ob(0), Lb(1) + 4, 2)) + list(range(Pb(1), Pb(1) + 8, 2)):
            p(f"v_pk_mov_b32 {rr('v', i, 2)}, 0, 0")
        for i in range(8): p(f"v_accvgpr_write_b32 a{64 + (nr-1)*8 + i}, 0")
    for i in range(AB, CSA + 4, 2):
        p(f"v_pk_mov_b32 {rr('v', i, 2)}, 0, 0")
    p.add(Raw(f"""    s_or_b32 s{s_t0}, s2, s{s_w}
    s_cbranch_scc1 {name}_noclr
    s_movk_i32 s{s_t0}, {ST_KVC}
""" + "".join(f"    buffer_store_dwordx4 {rr('v', AB, 4)}, v{vL16}, s[{sT}:{sT+3}], s{s_t0} offen offset:{i*1024} sc1\n" for i in range(4)) + f"{name}_noclr:"))
    att_init(4)
    p(f"""
    v_lshrrev_b32 v{vt}, 2, v0
    v_and_b32 v{vt}, 4, v{vt}
    v_xor_b32 v{vt}, v{vt}, v0
    v_and_b32 v{vt}, 7, v{vt}
    v_cmp_eq_u32 vcc, 0, v{vt}
    v_lshrrev_b32 v{vt}, 3, v0
    v_and_b32 v{vt+1}, 6, v{vt}
    v_cndmask_b32 v{SEL}, 0, v{ONES}, vcc
    v_mov_b32 v{SEL+1}, v{SEL}
    v_mov_b32 v{SEL+2}, v{SEL}
    v_mov_b32 v{SEL+3}, v{SEL}
    v_and_b32 v{vt+2}, 7, v0
    v_xor_b32 v{vt+1}, v{vt+1}, v{vt+2}
    v_lshlrev_b32 v{vt+1}, 4, v{vt+1}
    v_lshl_add_u32 v{vWD}, v{vt}, 11, v{vt+1}
    v_add_u32 v{vWD+1}, {8*2048 - 1024}, v{vWD}
    v_add_u32 v{vWD+2}, {16*2048 - 2048}, v{vWD}
    v_add_u32 v{vWD+3}, {24*2048 - 3072}, v{vWD}
    s_lshl_b32 s{s_wdo}, s{s_w}, 16
    s_lshl_b32 s{s_t1}, s{s_j}, 7
    s_add_u32 s{s_wdo}, s{s_wdo}, s{s_t1}
    s_lshl_b32 s{s_wm0}, s{s_w}, 12
    {f's_and_b32 s{s_t0}, s{s_j}, 1' if R3 else ''}
    {f's_lshl_b32 s{s_t0}, s{s_t0}, 16' if R3 else ''}
    {f's_add_u32 s{s_wm0}, s{s_wm0}, s{s_t0}' if R3 else ''}
    s_lshl_b32 s{s_pj}, s{s_tok}, 6
    s_add_u32 s{s_pj}, s{s_pj}, s{s_t1}
    s_lshl_b32 s{s_hd}, s{s_j}, 1
    s_lshr_b32 s{s_t0}, s{s_w}, 1
    s_add_u32 s{s_hd}, s{s_hd}, s{s_t0}
    v_mul_u32_u24 v{vt}, 9363, v0
    v_lshrrev_b32 v{vt}, 16, v{vt}
    v_mul_u32_u24 v{vt+1}, {7168 - 7*128}, v{vt}
    v_cmp_gt_u32 vcc, 14, v0
    v_lshl_add_u32 v{vPF}, v0, 7, v{vt+1}
    s_lshr_b32 s{s_t0}, s2, 3
    v_cndmask_b32 v{vPF}, -1, v{vPF}, vcc
    v_and_b32 v{vPF}, 0x7fffff80, v{vPF}
    s_lshl_b32 s{s_t0}, s{s_t0}, 2
    s_add_u32 s{s_t0}, s{s_t0}, s{s_w}
    s_mul_i32 s{s_pk}, s{s_t0}, {2 * 7168}
    s_and_b32 s{s_t0}, s2, 7
    s_mul_i32 s{s_t0}, s{s_t0}, 896
    s_add_u32 s{s_pk}, s{s_pk}, s{s_t0}
    v_and_b32 v{vt}, 15, v0
    v_bfe_u32 v{vt+1}, v0, 4, 1
    v_lshrrev_b32 v{vt+2}, 5, v0
    v_lshrrev_b32 v{vt+3}, 4, v0
    v_lshlrev_b32 v{vMA}, 3, v{vt}
    s_lshl_b32 s{s_t0}, s{s_w}, 13
    s_add_u32 s{s_t0}, s{s_t0}, {XT}
    v_add_u32 v{vXS}, s{s_t0}, v{vL16}
    v_xor_b32 v{vXR}, 0x2000, v{vXS}
    v_lshrrev_b32 v{vt+4}, 1, v{vt}
    v_xor_b32 v{vt+4}, v{vt+4}, v{vt+2}
    v_lshlrev_b32 v{vt+4}, 4, v{vt+4}
    v_lshl_add_u32 v{vt+4}, v{vt}, 7, v{vt+4}
    v_lshl_add_u32 v{vt+4}, v{vt+1}, 3, v{vt+4}
    v_add_u32 v{vXA}, s{s_t0}, v{vt+4}
    s_and_b32 s{s_t1}, s{s_w}, 2
    s_lshl_b32 s{s_t1}, s{s_t1}, 6
    s_add_u32 s{s_t0}, s{s_t0}, s{s_t1}
    s_add_u32 s{s_t0}, s{s_t0}, 4096
    v_lshl_add_u32 v{vRA}, v{vt+2}, 4, s{s_t0}
    v_add_u32 v253, 8192, v{vL16}
    v_lshl_add_u32 v{vPW}, v{vt+3}, 2, v{vMA}
    v_lshlrev_b32 v{vt}, 4, v{vt}
    v_lshl_add_u32 v{vOS}, v{vt+1}, 15, v{vt}
    v_lshl_add_u32 v{vOS}, v{vt+2}, 8, v{vOS}
    s_lshl_b32 s{s_t0}, s{s_w}, 6
    s_add_u32 s{s_t0}, s{s_t0}, {CSQ}
    v_lshl_add_u32 v{vCS}, v{vt+3}, 4, s{s_t0}
    v_lshlrev_b32 v{vGP}, 5, v{vMA}
    s_bitcmp1_b32 s{s_j}, 0
    s_cselect_b32 s{s_t0}, 9, 10
    s_cselect_b32 s{s_t1}, 8, 9
    v_lshl_add_u32 v{vST}, v{vt+1}, s{s_t0}, v{vt}
    v_lshl_add_u32 v{vST}, v{vt+2}, s{s_t1}, v{vST}
    s_mul_i32 s{s_t0}, s{s_w}, 5120
    s_add_u32 s{s_t0}, s{s_t0}, {RED - 5120}
    v_add_u32 v{vST+1}, s{s_t0}, v{vL16}
    v_and_b32 v{vt}, 3, v0
    v_cmp_eq_u32 s[0:1], 1, v{vt}
    v_cmp_eq_u32 s[14:15], 2, v{vt}
    v_cmp_eq_u32 s[74:75], 3, v{vt}
    v_bfe_u32 v{vt}, v0, 2, 2
    v_cmp_eq_u32 vcc, v{vt}, v{vt+3}
    """)
    SMF = o.get('smf', True)
    vIX = 252
    if SMF:
        p(f"""
        v_and_b32 v{vt+5}, 6, v0
        v_cmp_eq_u32 s[{sB}:{sB+1}], 0, v{vt+5}
        """.replace(f"s[{sB}:{sB+1}]", "s[76:77]" if False else "s[58:59]"))
        p(f"""
        v_cndmask_b32 v{SEL}, 0, v{ONES}, s[58:59]
        v_cndmask_b32 v{SEL+1}, 0, v{ONES}, s[58:59]
        v_cmp_eq_u32 s[58:59], 4, v{vt+5}
        v_and_b32 v{vIX}, 1, v0
        v_mul_u32_u24 v{vIX}, 0xaaaa, v{vIX}
        v_cndmask_b32 v{SEL+2}, 0, v{ONES}, s[58:59]
        v_cndmask_b32 v{SEL+3}, 0, v{ONES}, s[58:59]
        v_add_u32 v{vIX}, 0x4444, v{vIX}""")
    smf = lambda x: f"v_smfmac_f32_16x16x64_bf16 {rr('v', Lb(x), 4)}, {rr('v', SEL, 4)}, {rr('v', Pb(x & 1), 8)}, v{vIX}"
    for q in range(EARLY, 4): wkv(q)
    srd(p, sB, pDBG, 256)
    p.add(Raw("; @stamp 0"))
    X0 = lambda G: rr('a', FB + 4 * G, 4)
    W0 = lambda G, e: rr('a', FB + 32 + (G * 2 + e) * 4, 4)
    acc0 = lambda k: rr('v', PA + 4 * k, 4)

    def rd0(q):
        o_ = []
        for G in (2 * q, 2 * q + 1):
            o_.append(Ins(f"ds_read_b128 {X0(G)}, v{vA + (G & 1)} offset:{q * 2048}", rd=[f'P0{q}']))
            o_ += [Ins(f"ds_read_b64_tr_b16 {rr('a', FB + 32 + (G*2+e)*4 + 2*b, 2)}, v{vA+2+e} offset:{8192 + G*2048 + b*256}")
                   for e in range(2) for b in range(2)]
        return o_

    def mf0(q):
        o_ = []
        for G in (2 * q, 2 * q + 1):
            c = "0" if G == 0 else None
            o_ += [mf16(acc0(4), on, X0(G), c), mf16(acc0(5), X0(G), X0(G), c), mf16(acc0(0), W0(G, 0), X0(G), c),
                   mf16(acc0(2), W0(G, 0), on, c), mf16(acc0(1), W0(G, 1), X0(G), c), mf16(acc0(3), W0(G, 1), on, c)]
        return o_
    p.add(rd0(0))
    p.add(Raw("; @fine 6"))
    later = dma1(f"s_mov_b32 m0, s{s_w6}", 'L0') + dma1(f"s_add_u32 m0, s{s_w6}, {SL}", 'Lx')

    def some(k):
        n = 0
        while later and n < k:
            x = later.pop(0); p.add(x); n += x.kind == 'vmem'
    RSA = PA + 24
    for q in range(4):
        rds = rd0(q + 1) if q < 3 else []
        for i, m in enumerate(mf0(q)):
            p(m)
            if rds: p.add(rds.pop(0))
            if i % 4 == 1: some(1)
    assert EARLY < 4
    p.add(Raw(f"""    s_or_b32 s{s_t0}, s2, s{s_w}
    s_cbranch_scc1 {name}_nordy
    buffer_store_dword v{vOne}, v{vZ}, s[{sB}:{sB+3}], 0 offen sc1
{name}_nordy:"""))
    some(99)
    p.add(Raw("; @fine 7"))
    g = PA + 20
    p(f"""
    v_cndmask_b32 v{g}, v{g}, v{g+1}, s[0:1]
    v_cndmask_b32 v{g}, v{g}, v{g+2}, s[14:15]
    v_cndmask_b32 v{g}, v{g}, v{g+3}, s[74:75]
    v_cndmask_b32 v{PA+17}, 0, v{g}, vcc
    s_cmp_eq_u32 s{s_w}, 0
    s_cbranch_scc1 {name}_p0fin
    """)
    red_w = p.segment()
    for k in (4, 0, 2, 1, 3):
        p(f"ds_write_b128 v{vST+1}, {acc0(k)} offset:{k*1024}")
    p("s_waitcnt lgkmcnt(0)")
    p("s_barrier")
    p(f"s_branch {name}_p1")
    fin = p.segment()
    p(f"{name}_p0fin:")
    p(f"""
    s_mov_b32 s{s_t1}, {f32hex(1.0/1024)}""")
    p("s_barrier")
    for k in (4, 0, 2, 1, 3):
        for w in range(3):
            p(f"ds_read_b128 {rr('v', TR + (k*3+w)*4, 4)}, v{vST+1} offset:{5120*(w+1) + k*1024}")

    def red(k):
        a, b = PA + 4 * k, TR + k * 12
        for h in (0, 2):
            p(f"v_pk_add_f32 {rr('v', a+h, 2)}, {rr('v', a+h, 2)}, {rr('v', b+h, 2)}")
            p(f"v_pk_add_f32 {rr('v', b+4+h, 2)}, {rr('v', b+4+h, 2)}, {rr('v', b+8+h, 2)}")
        for h in (0, 2):
            p(f"v_pk_add_f32 {rr('v', a+h, 2)}, {rr('v', a+h, 2)}, {rr('v', b+4+h, 2)}")
    vM, vR = PA + 20, PA + 21
    d = PA + 24
    red(4)
    xsum16_32(p, f"v{PA+17}", f"v{vt}")
    p(f"""
    v_mul_f32 v{vM}, s{s_t1}, v{PA+16}
    v_mul_f32 v{vt}, v{vM}, v{vM}
    v_fma_f32 v{vt}, v{PA+17}, s{s_t1}, -v{vt}
    v_max_f32 v{vt}, 0, v{vt}
    v_add_f32 v{vt}, {f32hex(1e-5)}, v{vt}
    v_rsq_f32 v{vR}, v{vt}
    s_lshr_b32 s{s_t0}, s{s_kv}, 5
    s_lshl_b32 s{s_t0}, s{s_t0}, 12
    s_bfe_u32 s{s_t1}, s{s_kv}, 0x10004
    """)
    mr = rr('v', vM, 2)
    for e in range(2):
        red(e); red(2 + e)
        a = PA + 4 * e
        for r in (0, 2): p(f"v_pk_fma_f32 {rr('v', a+r, 2)}, {rr('v', a+8+r, 2)}, {mr}, {rr('v', a+r, 2)} op_sel_hi:[1,0,1] neg_lo:[0,1,0] neg_hi:[0,1,0]")
        for r in (0, 2): p(f"v_pk_mul_f32 {rr('v', a+r, 2)}, {rr('v', a+r, 2)}, {mr} op_sel:[0,1]")
        p(f"v_cvt_pk_bf16_f32 v{d+2*e}, v{a}, v{a+1}")
        p(f"v_cvt_pk_bf16_f32 v{d+2*e+1}, v{a+2}, v{a+3}")
    p(f"""
    s_bitcmp1_b32 s{s_j}, 0
    s_cbranch_scc1 {name}_p0v
    """)
    fin_k = p.segment()
    p(f"""
    s_lshl_b32 s{s_t1}, s{s_t1}, 8
    s_add_u32 s{s_t0}, s{s_t0}, s{s_t1}
    buffer_store_dwordx4 {rr('v', d, 4)}, v{vST}, s[{sA}:{sA+3}], s{s_t0} offen sc1
    s_lshl_b32 s{s_t0}, s{s_kv}, 3
    s_mov_b64 exec, 0xffff
    buffer_store_dwordx2 {mr}, v{vMA}, s[{sT}:{sT+3}], s{s_t0} offen offset:{ST_MR} sc1
    s_mov_b64 exec, -1
    s_branch {name}_p1""")
    fin_v = p.segment()
    p(f"""
    {name}_p0v:
    v_lshrrev_b32 v{vt+1}, 4, v0
    v_add_u32 v{vt}, v{vt+1}, v{vMA}
    v_lshlrev_b32 v{vt}, 3, v{vt}
    v_add_u32 v{vt}, {RED}, v{vt}
    ds_write_b64 v{vt}, {rr('v', d, 2)}
    ds_write_b64 v{vt}, {rr('v', d+2, 2)} offset:32
    v_lshrrev_b32 v{vt+3}, 2, v0
    v_lshlrev_b32 v{vt+3}, 6, v{vt+3}
    v_and_b32 v{vt+4}, 3, v0
    v_lshl_add_u32 v{vt+3}, v{vt+4}, 3, v{vt+3}
    v_add_u32 v{vt+3}, {RED}, v{vt+3}
    ds_read_b64_tr_b16 {rr('v', PA, 2)}, v{vt+3}
    ds_read_b64_tr_b16 {rr('v', PA+2, 2)}, v{vt+3} offset:32
    s_lshl_b32 s{s_t1}, s{s_t1}, 10
    s_add_u32 s{s_t0}, s{s_t0}, s{s_t1}
    v_permlane32_swap_b32 v{PA}, v{PA+2}
    v_permlane32_swap_b32 v{PA+1}, v{PA+3}
    buffer_store_dwordx4 {rr('v', PA, 4)}, v{vST}, s[{sA}:{sA+3}], s{s_t0} offen offset:2048 sc1
    """)

    rest = p.segment()
    p(f"{name}_p1:")
    p.add(Raw("; @stamp 1"))
    ACC = lambda F, t: rr('v', AB + (F * 2 + t) * 4, 4)
    X1 = lambda s, t, g: rr('a', FB + s * 48 + (t * 2 + g) * 4, 4)
    W1 = lambda s, F, g: rr('a', FB + s * 48 + 16 + (F * 2 + g) * 4, 4)

    def reads1(s, base, va):
        xr = lambda t, g: Ins(f"ds_read_b128 {X1(s, t, g)}, v{va+g} offset:{base + t*2048}")
        wr = lambda F, g, b: Ins(f"ds_read_b64_tr_b16 {rr('a', FB + s*48 + 16 + (F*2+g)*4 + 2*b, 2)}, v{va+2+F} offset:{base + 2*g*6144 + 4096 + b*512}")
        return [wr(0, 0, 0), wr(0, 0, 1), wr(0, 1, 0), wr(0, 1, 1), xr(0, 0), xr(0, 1), xr(1, 0), xr(1, 1)] + \
               [wr(F, g, b) for F in range(1, 4) for g in range(2) for b in range(2)]
    p(f"""
    s_lshl_b32 s{s_t0}, s2, 2
    s_add_u32 s{s_t0}, s{s_t0}, s{s_w}
    s_lshl_b32 s{s_t0}, s{s_t0}, 10
    s_add_u32 s{s_t0}, s{s_t0}, {ST_FO}
    buffer_store_dwordx4 {rr('v', AB, 4)}, v{vL16}, s[{sT}:{sT+3}], s{s_t0} offen sc1""")
    p.add(Raw(f"""    s_cmp_ge_u32 s2, 2
    s_cbranch_scc1 {name}_nogz
    s_sub_u32 s{s_t0}, s{s_t0}, {ST_FO - ST_RS2}
    buffer_store_dwordx4 {rr('v', AB, 4)}, v{vL16}, s[{sT}:{sT+3}], s{s_t0} offen sc1
{name}_nogz:"""))
    rdy = f"buffer_load_dword v{vt+5}, v{vZ}, s[{sB}:{sB+3}], 0 offen sc1"
    LA = o.get('la1', 4)
    for u in range(2, LA):
        if u == 2: p.add(Raw(f"    s_cmp_lg_u32 s{s_w}, 0\n    s_cbranch_scc1 {name}_nor\n    {rdy}\n{name}_nor:"))
        p.add(dma1(f"s_add_u32 m0, s{s_w6}, {u*SL}", 'Lx'))
    for i in range(Ob(2), Ob(2) + 32, 2):
        p(f"v_pk_mov_b32 {rr('v', i, 2)}, 0, 0")
    p.add(Raw("; @fine 8"))
    p("s_barrier", rd=['L0'])
    p.add(Raw("; @fine 9"))
    p.add(reads1(0, 0, vB))
    for i in range(6):
        p(f"v_mov_b32 v{vA+i}, v{vB+i}")
    p(f"""
    s_mov_b32 s{s_pb}, {2 * SL}
    s_add_u32 s{s_dm}, s{s_w6}, {2 * 2 * SL}
    s_and_b32 s{s_kv}, s2, 15
    s_lshl_b32 s{s_kv}, s{s_kv}, 8
    s_add_u32 s{s_kv}, s{s_kv}, {ST_KVC}
    s_mov_b32 s{s_spin}, {SPIN}
    s_lshl_b32 s{s_t2}, s{s_w}, 8
    s_add_u32 s{s_t2}, s{s_t2}, {10 - LA}
    s_mov_b32 s{s_cnt}, {10 - LA}""")

    def stage1(s, head, fill, rds):
        mf = [mf16(rr('v', CSA, 4), W1(s, 0, g), on) for g in range(2)]
        for F in range(4):
            mf += [mf16(ACC(F, t), W1(s, F, g), X1(s, t, g)) for t, g in zz(F, 2, 2, ZZ)]
        p.add(head)
        rds = list(rds)
        for i, m in enumerate(mf):
            if 'p1nomf' not in dbg: p(m)
            for _ in range(2 if i in (0, 1) else 1):
                if rds:
                    x = rds.pop(0)
                    if 'p1nods' not in dbg: p.add(x)
            p.add([x for x in fill.get(i, []) if not ('p1nodma' in dbg and getattr(x, 'kind', '') == 'vmem')])

    def one_per_gap(lst, start):
        return {start + i: [x] for i, x in enumerate(lst)}

    def spaced(lst):
        pos = [0, 1, 2, 5, 8, 11, 12, 13, 14, 17, 17]
        out = {}
        for k, x in zip(pos, lst): out.setdefault(k, []).append(x)
        return out
    upd = lambda: {3: [Ins(f"v_add_u32 v{vA+2}, s{s_pb}, v{vB+2}")], 6: [Ins(f"v_add_u32 v{vA}, s{s_pb}, v{vB}")],
                   7: [Ins(f"v_add_u32 v{vA+1}, s{s_pb}, v{vB+1}")], 10: [Ins(f"v_add_u32 v{vA+3}, s{s_pb}, v{vB+3}")],
                   15: [Ins(f"v_add_u32 v{vA+4}, s{s_pb}, v{vB+4}")], 17: [Ins(f"v_add_u32 v{vA+5}, s{s_pb}, v{vB+5}")]}
    nextpb = lambda: [Ins(f"s_add_u32 s{s_pb}, s{s_pb}, {2*SL}"), Ins(f"s_cmp_eq_u32 s{s_pb}, {6*SL}"), Ins(f"s_cselect_b32 s{s_pb}, 0, s{s_pb}")]

    def merge(*fs):
        out = {}
        for f in fs:
            for k, v in f.items(): out.setdefault(k, []).extend(v)
        return out
    sync = lambda n: [Ins(f"s_waitcnt vmcnt({n}) lgkmcnt(12)"), Ins("s_barrier")]
    s_nx = s_t0
    p(f"s_mov_b32 s{s_nx}, s{s_w6}")
    p.add(Raw("; @fine 10"))
    p.begin_loop(f"{name}_p1loop", 10 - LA, align=False)
    stage1(0, sync(6 * LA - 12), merge(spaced(dma1(f"s_add_u32 m0, s{s_dm}, {SL * (LA - 4)}", 'Lx')[:-1]), upd(), {16: [Ins(f"s_and_b32 s{s_xoff}, s{s_xoff}, 2047")]}), reads1(1, SL, vA))
    arr = Raw(f"""    s_cmp_lg_u32 s{s_cnt}, s{s_t2}
    s_cbranch_scc1 {name}_noarr
{name}_rchk:
    v_readfirstlane_b32 s{s_t1}, v{vt+5}
    s_sub_u32 s{s_spin}, s{s_spin}, 1
    s_cselect_b32 s{s_t1}, 1, s{s_t1}
    s_cmp_lg_u32 s{s_t1}, 0
    s_cbranch_scc1 {name}_arr
    {rdy}
    s_waitcnt vmcnt(0)
    s_branch {name}_rchk
{name}_arr:
    buffer_atomic_add v{vOne}, v{vZ}, s[{sT}:{sT+3}], s{s_kv} offen
{name}_noarr:""")
    stage1(1, sync(6 * LA - 12) + [arr], merge({3: [Ins(f"s_mov_b32 s{s_dm}, s{s_nx}")], 4: [Ins(f"s_add_u32 s{s_nx}, s{s_pb}, s{s_w6}")],
                                        6: nextpb()[:1], 7: nextpb()[1:], 9: [Ins(f"s_sub_u32 s{s_cnt}, s{s_cnt}, 1")],
                                        15: [Ins(f"s_and_b32 s{s_xoff}, s{s_xoff}, 2047")], 16: [Ins(f"s_cmp_lg_u32 s{s_cnt}, 0")]},
                                       spaced(dma1(f"s_mov_b32 m0, s{s_nx}" if LA == 5 else f"s_add_u32 m0, s{s_dm}, {SL}", 'Lx')[:-1])), reads1(0, 0, vA))
    p(f"s_cbranch_scc1 {name}_p1loop")
    p.end_loop()
    p.add(Raw("; @fine 11"))
    Kf = lambda b, m: rr('a', (b % NR) * 8 + m * 4, 4)
    Vf = lambda b, m: rr('a', 64 + (b % NR) * 8 + m * 4, 4)
    vMR = 84
    kld = lambda b, m: Ins(f"buffer_load_dwordx4 {Kf(b, m)}, v{vL16}, s[{sA}:{sA+3}], s{s_ko} offen offset:{m*1024} {KVSC}")
    vld = lambda b, m: Ins(f"buffer_load_dwordx4 {Vf(b, m)}, v{vL16}, s[{sA}:{sA+3}], s{s_vo} offen offset:{2048 + m*1024} {KVSC}")

    vK2 = 253
    kld2 = lambda b, m: Ins(f"buffer_load_dwordx4 {Kf(b, m)}, v{vK2}, s[{sA}:{sA+3}], s{s_vo} offen offset:{m*1024} {KVSC}")

    def kv_list():
        o_ = [Ins(f"s_mov_b32 s{s_ko}, 0"), Ins(f"s_mov_b32 s{s_vo}, 0")]
        for b in range(NR):
            o_ += [kld(b, 0), kld(b, 1), Ins(f"s_add_u32 s{s_ko}, s{s_ko}, 4096")]
            if b < NR - 2:
                o_ += [vld(b, 0), vld(b, 1), Ins(f"s_add_u32 s{s_vo}, s{s_vo}, 4096")]
        return o_

    def fill_kv():
        p.add(kv_list())
    gl = f"buffer_load_dword v{vt+5}, v{vGP}, s[{sT}:{sT+3}], s{s_kv} offen sc1"
    if LA == 5: stage1(0, sync(18), merge(spaced(dma1(f"s_add_u32 m0, s{s_dm}, {SL}", 'Lx')[:-1]), upd(), {16: [Ins(f"s_and_b32 s{s_xoff}, s{s_xoff}, 2047")]}), reads1(1, SL, vA))
    gp = Raw(f"""    s_branch {name}_gchk
{name}_gpoll:
    {gl}
    s_waitcnt vmcnt(0)
{name}_gchk:
    v_cmp_gt_u32 vcc, 16, v{vt+5}
    s_sub_u32 s{s_spin}, s{s_spin}, 1
    s_cbranch_scc1 {name}_gdone
    s_cbranch_vccnz {name}_gpoll
{name}_gdone:""")
    todo = [Ins(f"buffer_load_dwordx2 {rr('v', vMR+2*t, 2)}, v{vMA}, s[{sT}:{sT+3}], s{s_t0} offen offset:{ST_MR + 128*t} sc1") for t in range(2)]
    kv4 = lambda b, n: Ins(f"buffer_load_dwordx4 {(Kf, Vf)[n >> 1](b % 4, n & 1)}, v{vL16}, s[{sA}:{sA+3}], s{s_vo} offen offset:{n*1024} {KVSC}")
    todo += [Ins(f"s_and_b32 s{s_vo}, s{s_w}, 1"), Ins(f"s_lshl_b32 s{s_vo}, s{s_vo}, 17"), Ins(f"s_add_u32 s{sA+2}, s{s_vo}, 0x20000")]
    for b in range(3):
        todo += [kv4(b, n) for n in range(4)] + [Ins(f"s_add_u32 s{s_vo}, s{s_vo}, 4096")]
    todo.append(kv4(3, 0))

    def take(k):
        o_, n = [], 0
        while todo and n < k:
            x = todo.pop(0); o_.append(x); n += x.kind == 'vmem'
        return o_
    PS = o.get('pstage', 13)
    for u in range(16 - LA, 16):
        head = sync(6 * (14 - u)) if u < PS else [Raw("; @fine 12")] + sync(0) + [Raw("; @fine 13"), gp, Raw("; @fine 14")] if u == PS else []
        fill = {11: one_per_gap(nextpb(), 8), 12: upd(), 15: {10: [Ins(f"ds_write_b128 v{vCS}, {rr('v', CSA, 4)}")]}}.get(u, {})
        if u == PS - 1:
            fill = merge(fill, {2: [Ins(f"s_movk_i32 s{s_kv}, {ST_KVC}")], 4: [Ins(gl)], 5: [Ins(f"s_mov_b32 s{s_spin}, {SPIN}")],
                                11: [Ins(f"s_lshl_b32 s{s_t0}, s{s_tok}, 3")]})
        if u >= PS:
            fill = merge(fill, {i: take(1) for i in range(2, 18, 3 if PS < 14 else 2)})
        stage1(u & 1, head, fill, reads1(1 - (u & 1), 0 if u & 1 else SL, vA) if u < 15 else [])
    p.add(Raw("; @stamp 2"))

    p("s_waitcnt lgkmcnt(0)")
    p("s_barrier")
    CS = 88
    for f in range(4):
        if f: p(f"v_xor_b32 v{vt+f}, {f*64}, v{vCS}")
        p(f"ds_read_b128 {rr('v', CS + 4*f, 4)}, v{vt+f if f else vCS}")
    QP = 112
    for t in range(2):
        p(f"v_accvgpr_write_b32 a{aMEAN+t}, v{vMR+2*t}")
        p(f"v_mul_f32 v{vMR+2*t+1}, {f32hex(LOG2E * DH ** -0.5)}, v{vMR+2*t+1}")
    p(f"s_bitcmp1_b32 s{s_w}, 0\ns_cselect_b64 vcc, -1, 0")
    for hd in range(2):
        for t in range(2):
            mr = rr('v', vMR + 2 * t, 2)
            for f in range(2):
                F = 2 * hd + f
                a = AB + (F * 2 + t) * 4
                dq = QP + hd * 8 + t * 4 + 2 * f
                for r in (0, 2): p(f"v_pk_fma_f32 {rr('v', a+r, 2)}, {rr('v', CS+4*F+r, 2)}, {mr}, {rr('v', a+r, 2)} op_sel_hi:[1,0,1] neg_lo:[0,1,0] neg_hi:[0,1,0]")
                for r in (0, 2): p(f"v_pk_mul_f32 {rr('v', a+r, 2)}, {rr('v', a+r, 2)}, {mr} op_sel:[0,1]")
                p(f"v_cvt_pk_bf16_f32 v{dq}, v{a}, v{a+1}")
                p(f"v_cvt_pk_bf16_f32 v{dq+1}, v{a+2}, v{a+3}")
                p.add(take(1))
        for i in range(8 * hd, 8 * hd + 8):
            p(f"v_cndmask_b32 v{16+i}, v{QP+i}, v{QP+(i^2)}, vcc")
        p.add(take(1))
        for i in range(4):
            p(f"v_permlane16_swap_b32 v{16+hd*8+i}, v{16+hd*8+4+i}")
        for m in range(2):
            p(f"ds_write_b128 v{vXS}, {Q(hd, m)} offset:{(hd*2+m)*1024}")
    for i in range(Lb(2), Lb(2) + 8, 2):
        p(f"v_pk_mov_b32 {rr('v', i, 2)}, 0, 0")
    p("s_waitcnt lgkmcnt(0)")
    p("s_barrier")
    for n in range(4):
        p(f"ds_read_b128 {Q(2 + (n >> 1), n & 1)}, v{vXR} offset:{n*1024}")
    if 'Q' in dbg:
        srd(p, sB, pWS, QF[1], bias=QF[0])
        p(f"s_lshl_b32 s{s_t0}, s{s_hd}, 17\ns_lshl_b32 s{s_t1}, s{s_tok}, 6\ns_add_u32 s{s_t0}, s{s_t0}, s{s_t1}\ns_xor_b32 s{s_t1}, s{s_t0}, 0x20000")
        for x in range(2):
            for m in range(2):
                p(f"buffer_store_dwordx4 {Q(x, m)}, v{vL16}, s[{sB}:{sB+3}], s{s_t1 if x else s_t0} offen offset:{m*1024}")
    s_safe, s_fo = 65, 61
    WH = o.get('wohalf', False)
    TO = {0: (pWG, pWU, pWD), 1: (pWD, pWG, pWU)}[o.get('torder', 0)]
    SENT = o.get('sent', False)
    p(f"""
    s_mov_b64 s[{sD}:{sD+1}], s[{TO[0]}:{TO[0]+1}]
    s_mov_b32 s{sD+2}, {D * FF * 2 if o.get('prefetch', True) else 0}
    s_mov_b64 s[0:1], s[{TO[0]}:{TO[0]+1}]
    s_mov_b64 s[14:15], s[{TO[1]}:{TO[1]+1}]
    s_mov_b32 s{s_po}, {D * FF * 2}
    {f's_lshl_b32 s{s_t0}, s{s_w}, 15' if WH else ''}
    {f's_sub_u32 s{s_wdo}, s{s_wdo}, s{s_t0}' if WH else ''}
    {f's_lshr_b32 s{s_wm0}, s{s_wm0}, 1' if WH else ''}
    s_sub_u32 s{s_wdo}, s{s_wdo}, {(64 if WH else 128) * 2048}
    s_mov_b32 s{s_safe}, 0
    """)
    srd(p, sB, pWS, OF[1], bias=OF[0])

    def half(x, Kb, Vb, C, extra, tq=None, tv=None, noqk=False):
        y = 1 - x
        if tq is None: tq = tv = y
        Sx, Px, Sy, Py = Sb(x), Pb(x), rr('v', Sb(y), 16), Pb(y)
        valu = []
        for i in range(8):
            valu.append(f"v_exp_f32 v{Sx+2*i}, v{Sx+2*i}")
            valu.append(f"v_exp_f32 v{Sx+2*i+1}, v{Sx+2*i+1}")
            if i > 0:
                valu.append(f"v_cvt_pk_bf16_f32 v{Px+i-1}, v{Sx+2*i-2}, v{Sx+2*i-1}")
        valu.append(f"v_cvt_pk_bf16_f32 v{Px+7}, v{Sx+14}, v{Sx+15}")
        Oy, Ly = rr('v', Ob(tv), 16), rr('v', Lb(tv), 4)
        sel = rr('v', SEL, 4)
        mf = [mf32(Sy, Kf(Kb, 0), Q(tq, 0), C(tq)), mf32(Sy, Kf(Kb, 1), Q(tq, 1)),
              mf32(Oy, Vf(Vb, 0), rr('v', Py, 4)), mf16(Ly, sel, rr('v', Py, 4)),
              mf32(Oy, Vf(Vb, 1), rr('v', Py + 4, 4)), mf16(Ly, sel, rr('v', Py + 4, 4))]
        pos = (0, 4, 8, 12, 15, 19)
        if SMF:
            mf = [mf[0], mf[1], mf[2], mf[4], smf(tv)]
            if noqk: mf[0] = mf[1] = ""
            pos = o.get('apos', (0, 5, 10, 15, 20))
        for i, v in enumerate(valu):
            if i in pos:
                k = pos.index(i)
                p(mf[k])
                p.add(extra.get(k, []))
            p(v)

    def attention(tag, C, side, pre):
        p(mf32(rr('v', Sb(0), 16), Kf(0, 0), Q(0, 0), C(0)))
        p(mf32(rr('v', Sb(0), 16), Kf(0, 1), Q(0, 1)))
        p(f"s_mov_b32 s{s_cnt}, {64 // NR}")
        p.add(pre)
        p.begin_loop(f"{name}_{tag}_loop", 64 // NR)
        for kt in range(NR):
            e0 = {0: [vld(kt + NR - 2, 0)], 1: [vld(kt + NR - 2, 1)],
                  4: [Ins(f"wait {Kf(kt+1, 0)}, {Kf(kt+1, 1)}, {Vf(kt, 0)}, {Vf(kt, 1)}")]}
            e1 = {0: [kld2(kt, 0)], 1: [kld2(kt, 1)], 2: [Ins(f"s_add_u32 s{s_vo}, s{s_vo}, 4096")]}
            if kt == NR - 1:
                e1[3] = [Ins(f"s_sub_u32 s{s_cnt}, s{s_cnt}, 1")]
                e1[4] = [Ins(f"s_cmp_lg_u32 s{s_cnt}, 0")]
            half(0, kt, kt - 1, C, e0)
            half(1, kt + 1, kt, C, e1)
        p(f"s_cbranch_scc1 {name}_{tag}_loop")
        p.end_loop()
        O1, L1, sel = rr('v', Ob(1), 16), rr('v', Lb(1), 4), rr('v', SEL, 4)
        p(mf32(O1, Vf(NR - 1, 0), rr('v', Pb(1), 4)))
        if not SMF: p(mf16(L1, sel, rr('v', Pb(1), 4)))
        p(mf32(O1, Vf(NR - 1, 1), rr('v', Pb(1) + 4, 4)))
        p(smf(1) if SMF else mf16(L1, sel, rr('v', Pb(1) + 4, 4)))

    def attention4(pre):
        T = (2, 3, 0, 1)
        LS = o.get('lslot', 4)
        p(mf32(rr('v', Sb(0), 16), Kf(0, 0), Q(2, 0), "0"))
        p(mf32(rr('v', Sb(0), 16), Kf(0, 1), Q(2, 1)))
        p("s_waitcnt lgkmcnt(0)")
        p("s_barrier")
        p(f"s_mov_b32 s{s_cnt}, 8")
        p.add(pre)
        wdma = lambda i: Ins(f"buffer_load_dwordx4 v{vWD+i}, s[{sE}:{sE+3}], s{s_wdo} offen offset:{i*1024} lds", awr=['LW'], nowaw=True)
        tch = lambda: Ins(f"buffer_load_dword v{vDum}, v{vPF}, s[{sD}:{sD+3}], s{s_po} offen", nowaw=True)
        nxt = lambda: Ins(f"s_add_u32 s{s_po}, s{s_po}, {256 * 7168}")
        side = {0: {1: [tch()], 2: [nxt()]}, 1: {1: [Ins(f"s_and_b32 m0, s{s_wm0}, 0x1ffff")], 2: [Ins(f"s_add_u32 s{s_wm0}, s{s_wm0}, 16384")]},
                2: {1: [Ins(f"s_add_u32 s{s_wdo}, s{s_wdo}, {128 * 2048}")]},
                5: {1: [wdma(0)]}, 7: {1: [wdma(1)]}, 8: {1: [tch()], 2: [nxt()]}, 9: {1: [wdma(2)]}, 11: {1: [wdma(3)]},
                12: {0: [Ins(f"s_bitcmp1_b32 0x150, s{s_cnt}")], 1: [Ins(f"s_cselect_b32 s{s_po}, s{s_pk}, s{s_po}")],
                     2: [Ins(f"s_cselect_b64 s[{sD}:{sD+1}], s[0:1], s[{sD}:{sD+1}]")]},
                13: {0: [Ins("s_cselect_b64 s[0:1], s[14:15], s[0:1]")], 1: [Ins(f"s_cselect_b64 s[14:15], s[{TO[2]}:{TO[2]+1}], s[14:15]")]},
                14: {1: [Ins(f"s_bitcmp1_b32 0x104, s{s_cnt}")], 2: [Raw(f"    s_cbranch_scc1 {name}_rsx\n{name}_rsxback:")]},
                15: {1: [Ins(f"s_sub_u32 s{s_cnt}, s{s_cnt}, 1")], 2: [Ins(f"s_cmp_lg_u32 s{s_cnt}, 0")]}}
        if WH:
            del side[7], side[11]
            side[9] = {1: [wdma(1)]}
            side[1][2] = [Ins(f"s_add_u32 s{s_wm0}, s{s_wm0}, 8192")]
            side[2] = {1: [Ins(f"s_add_u32 s{s_wdo}, s{s_wdo}, {64 * 2048}")]}
        side.setdefault(11, {})[2] = [Ins(f"s_cmp_eq_u32 s{s_cnt}, 1")]
        del side[15][2]
        p.begin_loop(f"{name}_fast_loop", 7)
        for kt in range(4):
            for i in range(4):
                e = dict(side.get(kt * 4 + i, {}))
                e[LS] = [kv4(kt + 3 + (i == 3), (i + 1) & 3)]
                if i == 3: e[0] = [Ins(f"s_add_u32 s{s_vo}, s{s_vo}, 4096")]
                if i == 2: e[7 - LS] = [Ins(f"wait {Kf((kt+1) % 4, 0)}, {Kf((kt+1) % 4, 1)}")]
                if i == 0: e[7 - LS] = [Ins(f"wait {Vf(kt, 0)}, {Vf(kt, 1)}")]
                half(i & 1, (kt + (i == 3)) % 4, (kt - (i == 0)) % 4, lambda y: "0", e, T[(i + 1) % 4], T[(i - 1) % 4])
            if kt == 2:
                p(f"s_cbranch_scc1 {name}_fast_last")
                p.mark_exit()
        p(f"s_branch {name}_fast_loop")
        p.end_loop()
        p(f"{name}_fast_last:")
        B, z = Ob(2), 48
        xr = [Ins(f"ds_read_b64 {rr('v', 40 + t*16 + F*2, 2)}, v{z+F if F else vXA} offset:{t*2048}") for F in range(4) for t in range(2)]
        rsr = [Ins(f"ds_read_b128 {rr('v', RSV + 16*x + 4*jj, 4)}, v{z+7 if x else vRA} offset:{jj*32}") for x in range(2) for jj in range(4)]
        wr = lambda n: Ins(f"ds_write_b128 v{vXS}, {rr('v', B + 4*n, 4)} offset:{n*1024}")
        tagchk = [Raw(f"    v_cmp_ne_u32 vcc, 1, v{z+5}\n    s_nop 0\n    s_cbranch_vccnz {name}_rspoll\n{name}_rsgo:"), Ins(f"ds_write_b32 v{z}, v{z+4}")]
        ex = [{0: xr[0:2], 1: xr[2:4], 2: xr[4:6], 3: [Ins(f"wait {Vf(3, 0)}, {Vf(3, 1)}")] + xr[6:8], 4: tagchk},
              {0: rsr[0:1], 1: rsr[1:3], 2: rsr[3:4], 3: rsr[4:6], 4: rsr[6:8]},
              {1: [wr(0)], 2: [wr(1)], 3: [wr(2)], 4: [wr(3)]},
              {2: [wr(4), wr(5)], 3: [wr(6)] + [Ins(x) for x in (f"v_add_f32 v{Lb(2)}, v{Lb(2)}, v{Lb(2)+1}", f"v_add_f32 v{Lb(3)}, v{Lb(3)}, v{Lb(3)+1}",
                                                                   f"v_cvt_pk_bf16_f32 v{B+30}, v{B+30}, v{B+31}")],
               4: [Ins(f"v_permlane32_swap_b32 v{Lb(2)}, v{Lb(3)}"), Ins(f"v_mov_b32 v{B+31}, v{Lb(2)}"), wr(7)]}]
        for i in range(4):
            half(i & 1, 3, 3 - (i == 0), lambda y: "0", ex[i], T[(i + 1) % 4], T[(i - 1) % 4], i == 3)
        p.add(Raw("; @stamp 4"))
        O1 = rr('v', Ob(1), 16)
        p(mf32(O1, Vf(3, 0), rr('v', Pb(1), 4)))
        p(mf32(O1, Vf(3, 1), rr('v', Pb(1) + 4, 4)))
        p(smf(1))
        p("s_waitcnt lgkmcnt(0)")
        if 'fineo' in dbg: p.add(Raw("; @stamp 0"))
        p("s_barrier", rd=['LW'])
        if 'fineo' in dbg: p.add(Raw("; @stamp 1"))
        for n in (7, 0, 1, 2, 3, 4, 5, 6):
            p(f"ds_read_b128 {rr('v', B + 4*n, 4)}, v{vXR} offset:{n*1024}")
        p(f"""
        v_mov_b32 v{vt}, v{B+31}
        v_mov_b32 v{vt+1}, v{B+31}
        v_and_b32 v{B+31}, 0xffff0000, v{B+30}
        v_lshlrev_b32 v{B+30}, 16, v{B+30}
        v_permlane32_swap_b32 v{vt}, v{vt+1}
        v_add_f32 v{Lb(0)}, v{Lb(0)}, v{vt}
        v_add_f32 v{Lb(1)}, v{Lb(1)}, v{vt+1}""")
        for i in range(0, 32, 2):
            p(f"v_pk_add_f32 {rr('v', Ob(0)+i, 2)}, {rr('v', Ob(0)+i, 2)}, {rr('v', B+i, 2)}")

    pre = take(99)
    pre += [Ins(x.strip()) for x in f"""s_lshl_b32 s{s_fo}, s2, 2
    s_add_u32 s{s_fo}, s{s_fo}, s{s_w}
    s_lshl_b32 s{s_t0}, s{s_fo}, 11
    buffer_load_dwordx4 {rr('v', vRS, 4)}, v{vL16}, s[{sE}:{sE+3}], s{s_t0} offen
    buffer_load_dwordx4 {rr('v', vRS+4, 4)}, v{vL16}, s[{sE}:{sE+3}], s{s_t0} offen offset:1024""".split("\n")]
    if o.get('ipf', True):
        pre += [Ins(x.strip()) for x in f"""s_getpc_b64 s[74:75]
        s_lshr_b32 s{s_t0}, s2, 3
        s_lshl_b32 s{s_t0}, s{s_t0}, 2
        s_add_u32 s{s_t0}, s{s_t0}, s{s_w}
        s_mul_i32 s{s_t0}, s{s_t0}, 384
        s_min_u32 s{s_t0}, s{s_t0}, {name}_end-{name}_fast_loop
        v_min_u32 v4, 2, v0
        v_lshl_add_u32 v4, v4, 7, s{s_t0}""".split("\n")]
        pre.append(Ins(f"global_load_dword v{vDum}, v4, s[74:75]", nowaw=True))
    if len(pre) < 12: pre.append(Ins(f"s_nop {11 - len(pre)}"))
    pre.append(Raw("; @stamp 3"))
    attention4(pre)
    p(f"""
    {name}_fin:
    v_add_f32 v{Lb(0)}, v{Lb(0)}, v{Lb(0)+1}
    v_rcp_f32 v{Lb(0)+2}, v{Lb(0)}
    s_lshl_b32 s{s_t0}, s{s_tok}, 1
    s_add_u32 s{s_t0}, s{s_t0}, s{s_hd}
    s_lshl_b32 s{s_t0}, s{s_t0}, 10
    s_xor_b32 s{s_t1}, s{s_t0}, 1024
    """)
    for x in range(2):
        if x: p(f"v_add_f32 v{Lb(1)}, v{Lb(1)}, v{Lb(1)+1}\nv_rcp_f32 v{Lb(1)+2}, v{Lb(1)}")
        for a in range(2):
            for i in range(8 * a, 8 * a + 8, 2):
                p(f"v_pk_mul_f32 {rr('v', Ob(x)+i, 2)}, {rr('v', Ob(x)+i, 2)}, {rr('v', Lb(x)+2, 2)} op_sel_hi:[1,0]")
            for i in range(4 * a, 4 * a + 4):
                p(f"v_cvt_pk_bf16_f32 v{Pb(x)+i}, v{Ob(x)+2*i}, v{Ob(x)+2*i+1}")
            p(f"buffer_store_dwordx4 {rr('v', Pb(x)+4*a, 4)}, v{vOS}, s[{sB}:{sB+3}], s{s_t1 if x else s_t0} offen offset:{a*512} sc1")
    p(f"v_pk_mul_f32 v[{vt+2}:{vt+3}], {rr('v', Ob(0), 2)}, {rr('v', RSV, 2)}")
    p(f"v_pk_mul_f32 v[{vt+4}:{vt+5}], {rr('v', Ob(0)+2, 2)}, {rr('v', RSV+2, 2)}")
    for i in range(2, 16):
        k = vt + 2 + 2 * (i & 1)
        p(f"v_pk_fma_f32 v[{k}:{k+1}], {rr('v', Ob(0)+2*i, 2)}, {rr('v', RSV+2*i, 2)}, v[{k}:{k+1}]")
    p(f"""
    v_pk_add_f32 v[{vt+2}:{vt+3}], v[{vt+2}:{vt+3}], v[{vt+4}:{vt+5}]
    v_add_f32 v{vt+2}, v{vt+2}, v{vt+3}
    v_mov_b32 v{vt+3}, v{vt+2}
    s_add_u32 s{s_t0}, s{s_pj}, {ST_MP}
    s_mov_b32 s{s_t1}, {f32hex(2.0**-40)}
    v_permlane32_swap_b32 v{vt+2}, v{vt+3}
    v_add_f32 v{vt+2}, v{vt+2}, v{vt+3}
    s_mov_b32 exec_hi, 0
    buffer_store_dword v{vt+2}, v{vPW}, s[{sT}:{sT+3}], s{s_t0} offen sc1
    s_mov_b32 exec_hi, -1
    """)
    if 'fineo' in dbg: p.add(Raw("; @stamp 2"))
    p(f"""
    v_cmp_nle_f32 s[0:1], s{s_t1}, v{Lb(0)}
    v_cmp_nle_f32 s[14:15], s{s_t1}, v{Lb(1)}
    s_mov_b32 s{s_t1}, {f32hex(2.0**40)}
    v_cmp_nge_f32 s[74:75], s{s_t1}, v{Lb(0)}
    v_cmp_nge_f32 vcc, s{s_t1}, v{Lb(1)}
    s_or_b64 s[0:1], s[0:1], s[14:15]
    s_movk_i32 s{s_t1}, 0x207
    v_cmp_class_f32 s[14:15], v{vt+2}, s{s_t1}
    s_or_b64 s[0:1], s[0:1], s[74:75]
    s_or_b64 s[0:1], s[0:1], vcc
    s_or_b64 s[0:1], s[0:1], s[14:15]
    s_cselect_b32 s{s_t1}, 1, 0
    s_cmp_gt_u32 s{s_t1}, s{s_safe}
    {'' if 'nocheck' in dbg else f's_cbranch_scc1 {name}_slow'}
    """)

    SPLIT = True
    s_c, s_xo, s_xe, s_xend = 61, 62, 63, 64
    vX1, vA3 = 12, 16
    WB, AB3 = 40, 104
    vPT = 20
    LEAD = 12
    ACS = lambda F, t: rr('v', AB3 + (F * 2 + t) * 4, 4)

    class Shape:
        def __init__(self, NF, off):
            self.NF, self.NG, self.off = NF, 16 // NF, off
        def X(self, slot, t, G): return rr('a', slot * 8 * self.NG + (t * self.NG + G) * 4, 4)
        def Xall(self, slot): return ", ".join(self.X(slot, t, G) for t in range(2) for G in range(self.NG))
        def W(self, F, G): return rr('v', WB + (F * self.NG + G) * 4, 4)
        def rd(self, slot, n):
            F, G, b = n // (2 * self.NG), (n >> 1) % self.NG, n & 1
            return Ins(f"ds_read_b64_tr_b16 {rr('v', WB + 2*n, 2)}, v{vA3 + (F & 3)} offset:{slot*16384 + self.off(F, G, b)}")
        def xld(self, slot):
            o_ = [Ins(f"s_cmp_lt_u32 s{s_xo}, s{s_xend}"), Ins(f"s_cselect_b32 s{s_xe}, s{s_xo}, s{sB+2}")]
            for t in range(2):
                for G in range(self.NG):
                    o_.append(Ins(f"buffer_load_dwordx4 {self.X(slot, t, G)}, v{vX1 if t else vL16}, s[{sB}:{sB+3}], s{s_xe} offen offset:{G*1024} sc1"))
            o_.append(Ins(f"s_add_u32 s{s_xo}, s{s_xo}, {self.NG * 1024}"))
            return o_
    sh4 = Shape(4, lambda F, G, b: G * 4096 + b * 1024)
    sh8 = Shape(8, lambda F, G, b: G * 8192 + (F >> 2) * 2048 + b * 1024)

    def wread_addr(blk):
        p(f"""
        v_bfe_u32 v{vt}, v0, 2, 3
        v_lshrrev_b32 v{vt+1}, 1, v{vt}
        v_lshlrev_b32 v{vt+1}, 5, v{vt+1}
        v_lshl_add_u32 v{vt}, v{vt}, 7, v{vt+1}
        v_lshrrev_b32 v{vt+1}, 5, v0
        v_lshl_add_u32 v{vt}, v{vt+1}, {blk}, v{vt}
        v_and_b32 v{vt+1}, 3, v0
        v_lshl_add_u32 v{vA3}, v{vt+1}, 3, v{vt}
        v_xor_b32 v{vA3+1}, 32, v{vA3}
        v_xor_b32 v{vA3+2}, 64, v{vA3}
        v_xor_b32 v{vA3+3}, 0x60, v{vA3}""")

    def table_load(aq, soff, blk=0):
        for i in range(4):
            p(f"buffer_load_dwordx2 {rr('v', aq + 2*i, 2)}, v{vPT}, s[{sT}:{sT+3}], s{soff} offen offset:{blk*2048 + i*128} sc1")

    def table_sum(aq, dst):
        p(f"""
        v_pk_add_f32 {rr('v', aq, 2)}, {rr('v', aq, 2)}, {rr('v', aq+2, 2)}
        v_pk_add_f32 {rr('v', aq+4, 2)}, {rr('v', aq+4, 2)}, {rr('v', aq+6, 2)}
        v_pk_add_f32 {rr('v', dst, 2)}, {rr('v', aq, 2)}, {rr('v', aq+4, 2)}""")
        for sw in (16, 32):
            p(f"""
            v_pk_mov_b32 {rr('v', aq, 2)}, {rr('v', dst, 2)}, {rr('v', dst, 2)} op_sel:[0,1]
            v_permlane{sw}_swap_b32 v{dst}, v{aq}
            v_permlane{sw}_swap_b32 v{dst+1}, v{aq+1}
            v_pk_add_f32 {rr('v', dst, 2)}, {rr('v', dst, 2)}, {rr('v', aq, 2)}""")

    def rstd_from(aq, dst):
        table_sum(aq, dst)
        for t in range(2):
            p(f"v_fma_f32 v{dst+t}, v{dst+t}, s{s_t1}, v{vt+4}")
        for t in range(2):
            p(f"v_rsq_f32 v{dst+t}, v{dst+t}")

    p(f"""
    s_add_u32 s{s_xe}, s{s_pj}, {ST_FO}
    s_andn2_b32 s{s_c}, s{s_xe}, 2047
    s_lshl_b32 s{s_xo}, s{s_tok}, 11
    s_lshl_b32 s{s_xend}, s{s_tok}, 6
    s_add_u32 s{s_xend}, s{s_xend}, {ST_MP}""")
    if R3:
        p(f"s_and_b32 s{s_t0}, s{s_j}, 1\ns_lshl_b32 s{s_t0}, s{s_t0}, 14\ns_add_u32 s{s_xo}, s{s_xo}, s{s_t0}")
    AF = o.get('arrfirst', False)
    OM = o.get('omode', 4)

    def o_arrive():
        if 'fineo' in dbg: p.add(Raw("; @stamp 3"))
        if OM == 2:
            p(f"""
            v_lshlrev_b32 v{vt}, 10, v0
            s_and_b32 s{s_t0}, s{s_j}, 8
            s_lshl_b32 s{s_t0}, s{s_t0}, 7
            s_mov_b64 exec, 3
            s_waitcnt vmcnt(0)
            buffer_atomic_add v{vOne}, v{vt}, s[{sT}:{sT+3}], s{s_c} offen
            s_mov_b64 exec, -1
            s_add_u32 s{s_c}, s{s_c}, s{s_t0}""")
        elif OM == 4:
            p(f"""
            v_lshlrev_b32 v{vt}, 9, v0
            v_mov_b32 v31, 0
            s_and_b32 s{s_t0}, s{s_j}, 8
            s_lshl_b32 s{s_t1}, s{s_t0}, 7
            s_add_u32 s{s_t1}, s{s_t1}, s{s_c}
            s_lshl_b32 s{s_t0}, s{s_t0}, 6
            s_add_u32 s{s_c}, s{s_c}, s{s_t0}
            s_cmp_ge_u32 s{s_j}, 8
            s_cselect_b32 s{s_t0}, s{s_c}, s{sT+2}
            s_mov_b32 s{s_spin}, {SPIN}
            s_waitcnt vmcnt(0)
            buffer_load_dword v30, v31, s[{sT}:{sT+3}], s{s_t0} offen sc1
            s_mov_b64 exec, 3
            buffer_atomic_add v{vOne}, v{vt}, s[{sT}:{sT+3}], s{s_t1} offen
            s_mov_b64 exec, -1""")
        elif OM == 3:
            p(f"""
            s_andn2_b32 s{s_c}, s{s_c}, 0x1800
            s_waitcnt vmcnt(0)
            s_barrier""")
            p.add(Raw(f"    s_cmp_lg_u32 s{s_w}, 0\n    s_cbranch_scc1 {name}_nofo\n    buffer_store_dword v{vOne}, v{vZ}, s[{sT}:{sT+3}], s{s_xe} offen sc1\n{name}_nofo:"))
        else:
            arrive(p, s_xe)
    if AF: o_arrive()
    vE = 136
    p(f"""
    v_add_u32 v{vX1}, 0x8000, v{vL16}
    v_and_b32 v{vt+4}, 15, v0
    v_lshlrev_b32 v{vPT}, 3, v{vt+4}
    v_lshrrev_b32 v{vt+5}, 4, v0
    v_lshl_add_u32 v{vPT}, v{vt+5}, 9, v{vPT}""")
    wread_addr(11)
    for t in range(2):
        for F in range(4):
            a = AB3 + (F * 2 + t) * 4
            e = 40 + t * 16 + F * 2
            p(f"""
            v_lshlrev_b32 v{a}, 16, v{e}
            v_and_b32 v{a+1}, 0xffff0000, v{e}
            v_lshlrev_b32 v{a+2}, 16, v{e+1}
            v_and_b32 v{a+3}, 0xffff0000, v{e+1}""")
    def rd3(n):
        q, F, g, b = n >> 4, (n >> 2) & 3, (n >> 1) & 1, n & 1
        return Ins(f"ds_read_b64_tr_b16 {rr('v', WB + 2 * (n % 32), 2)}, v{vA3 + F} offset:{(q & 7) * 8192 + g * 4096 + b * 1024}")
    for n in range(LEAD):
        p.add(rd3(n))
    if not AF: o_arrive()
    if WH:
        p(f"""
        s_lshl_b32 s{s_wdo}, s{s_w}, 16
        s_lshl_b32 s{s_t0}, s{s_j}, 7
        s_add_u32 s{s_wdo}, s{s_wdo}, s{s_t0}
        s_lshl_b32 s{s_wm0}, s{s_w}, 12""")
        for q in range(4, 8):
            p(f"s_add_u32 m0, s{s_wm0}, {q * 16384}\ns_add_u32 s{s_t0}, s{s_wdo}, {q * 128 * 2048}")
            for i in range(4):
                p(f"buffer_load_dwordx4 v{vWD+i}, s[{sE}:{sE+3}], s{s_t0} offen offset:{i*1024} lds", awr=['LW2'], nowaw=True)
    main_cur = p.cur
    bg = []
    BW = o.get('bgwin', 1)
    if BW: p(f"s_mov_b32 s{s_xe}, s{s_c}")
    else: p.cur = bg
    SLOT4, HI4, LEAD4 = 28672, 106496, 8
    s_nb, s_wo4, s_m04, s_dsl, s_rsl, s_tk4 = 66, 68, 69, 70, 71, 72
    vD4 = 21
    AB4 = 32
    p(f"""
    s_and_b32 s{s_t0}, s2, 7
    s_lshr_b32 s{s_t1}, s2, 3
    s_and_b32 s{s_tk4}, s{s_t1}, 7
    s_lshr_b32 s{s_t1}, s{s_t1}, 3
    s_lshl_b32 s{s_nb}, s{s_t0}, 2
    s_add_u32 s{s_nb}, s{s_nb}, s{s_t1}
    s_movk_i32 s{s_t1}, 4682
    s_movk_i32 s{s_t0}, {7168 - 14 * 16}
    """)
    for i in range(7):
        p(f"""
        v_add_u32 v{vt}, {64*i}, v0
        v_mul_u32_u24 v{vt+1}, s{s_t1}, v{vt}
        v_lshrrev_b32 v{vt+1}, 16, v{vt+1}
        v_add_u32 v{vt}, {1024 * (i - (i & 3))}, v{vL16}
        v_mad_u32_u24 v{vD4+i}, v{vt+1}, s{s_t0}, v{vt}
        """)
    p(f"""
    s_lshl_b32 s{s_tk4}, s{s_tk4}, 2
    s_add_u32 s{s_tk4}, s{s_tk4}, s{s_w}
    s_lshl_b32 s{s_tk4}, s{s_tk4}, 6
    s_and_b32 s{s_t0}, s{s_w}, 1
    s_mul_i32 s{s_wo4}, s{s_t0}, {32 * 7168}
    s_mul_i32 s{s_t1}, s{s_nb}, 224
    s_add_u32 s{s_wo4}, s{s_wo4}, s{s_t1}
    s_mul_i32 s{s_m04}, s{s_w}, 7168
    s_mov_b32 s{s_dsl}, s{s_m04}
    s_mov_b32 s{s_rsl}, {HI4}
    s_cmp_lt_u32 s{s_w}, 2
    s_cselect_b64 s[{sD}:{sD+1}], s[{pWG}:{pWG+1}], s[{pWU}:{pWU+1}]
    s_mov_b32 s{sD+2}, {hex(D * FF * 2)}
    """)
    srd(p, sA, pWS, HC[1], bias=HC[0])
    for i in range(4):
        p(f"v_accvgpr_write_b32 a{aMEAN-4+i}, v{vWD+i}")
    p(f"v_mov_b32 v36, v{vPW}")
    vPW = 36
    vX4 = [vL16, 12, 13, 14]
    vA4, vAb, vR4 = 15, 11, 28
    vS, vQ, vP = 28, 144, WB
    s_ho, s_c4, s_sq4 = 65, 67, 73
    HCA = o.get('hca', False)
    p(f"""
    v_add_u32 v{vX4[2]}, 0x10000, v{vL16}
    v_add_u32 v{vX4[3]}, 0x18000, v{vL16}
    v_lshrrev_b32 v{vt}, 2, v0
    v_mul_u32_u24 v{vt}, 224, v{vt}
    v_and_b32 v{vt+1}, 3, v0
    v_lshl_add_u32 v{vAb}, v{vt+1}, 3, v{vt}
    v_mov_b32 v{vA4}, v{vAb}
    s_lshl_b32 s{s_sq4}, s{s_tk4}, 6
    s_add_u32 s{s_c4}, s{s_sq4}, {ST_FC}
    s_add_u32 s{s_sq4}, s{s_sq4}, {ST_SSQ}
    s_add_u32 s{s_ho}, s{s_tok}, s{s_j}
    s_lshl_b32 s{s_ho}, s{s_ho}, 11
    s_add_u32 s{s_c}, s{s_pj}, {ST_FC}
    {f's_andn2_b32 s{s_c}, s{s_c}, 4095' if HCA else ''}
    {f's_and_b32 s{s_t0}, s2, 7' if HCA else ''}
    {f's_lshl_b32 s{s_t0}, s{s_t0}, 9' if HCA else ''}
    {f's_add_u32 s{s_c4}, s{s_c4}, s{s_t0}' if HCA else ''}
    {f'v_lshlrev_b32 v{vt+6}, 9, v0' if HCA else ''}
    s_add_u32 s{s_pj}, s{s_pj}, {ST_SSQ}
    s_mov_b32 s{s_t1}, {f32hex(-1.0/1024)}""")
    if BW:
        for i in range(156, 256, 2 if BW == 1 else 1):
            p(f"v_pk_mov_b32 {rr('v', i, 2)}, 0, 0" if BW == 1 else f"v_mov_b32 v{i}, 0")
        p.cur = bg
    for t in range(2):
        p(f"""
        v_add_f32 v{vE+t}, v{vE+t}, v{vE+2+t}
        v_add_f32 v{vE+4+t}, v{vE+4+t}, v{vE+6+t}
        v_add_f32 v{vS+t}, v{vE+t}, v{vE+4+t}""")
        xsum16_32(p, f"v{vS+t}", f"v{vt}")
        p(f"v_accvgpr_read_b32 v{vt}, a{aMEAN+t}")
        p(f"v_fma_f32 v{vS+t}, v{vS+t}, s{s_t1}, -v{vt}")
    p(f"v_mov_b32 v{vt+4}, {f32hex(1e-5)}\ns_mov_b32 s{s_t1}, {f32hex(1.0/1024)}")
    if not BW:
        for i in range(156, 256):
            p(f"v_mov_b32 v{i}, 0")
    p.cur = main_cur

    def units_of(lst):
        out = []
        for x in lst:
            if out and x.op.startswith(('s_addc', 's_subb', 's_cselect')): out[-1].append(x)
            else: out.append([x])
        return out
    bg = units_of(bg)
    p.add(Raw("; @stamp 5"))
    olk = lambda h: f"buffer_load_dword v30, v31, s[{sT}:{sT+3}], s{s_xe} offen offset:{h*1024} sc1"
    if OM == 4:
        assert BW
        p("wait v30")
        p.add(Raw(spin2(f"{name}_opoll", 8, olk(0), 30)))
    elif OM == 2: poll(p, f"{name}_opoll", s_xe if BW else s_c, 1, vt, 16)
    else: poll(p, f"{name}_opoll", s_xe if BW else s_c, 16, vt, 1, s_j if OM else None)
    if 'twice3' in dbg: p.add(Raw(f"    s_mov_b32 s{s_spin}, 2\n    s_mov_b32 s14, s{s_pj}\n    s_mov_b32 s15, s{s_xo}\n{name}_tw3:\n    s_mov_b32 s{s_pj}, s14\n    s_mov_b32 s{s_xo}, s15"))
    p.add(Raw("; @stamp 6"))

    def dma4(par):
        o_ = []
        for i in range(7):
            if i == 0: o_.append(Ins(f"s_add_u32 m0, s{s_dsl}, {par * SLOT4}"))
            if i == 4: o_.append(Ins("s_add_u32 m0, m0, 4096"))
            o_.append(Ins(f"buffer_load_dwordx4 v{vD4+i}, s[{sD}:{sD+3}], s{s_wo4} offen offset:{(i&3)*1024} lds", awr=['Lx'], nowaw=True))
        o_.append(Ins(f"s_add_u32 s{s_wo4}, s{s_wo4}, {64 * 7168}"))
        return o_

    X3 = lambda q, t, g: rr('a', (q % 8) * 16 + (t * 2 + g) * 4, 4)

    def xld3(q):
        o_ = [Ins(f"buffer_load_dwordx4 {X3(q, t, g)}, v{vX1 if t else vL16}, s[{sB}:{sB+3}], s{s_xo} offen offset:{(q & 1) * 2048 + g*1024} sc1")
              for t in range(2) for g in range(2)]
        return o_ + ([Ins(f"s_add_u32 s{s_xo}, s{s_xo}, 4096")] if q & 1 else [])
    L3 = o.get('l3', 3)
    D4 = o.get('d4', (9, 9))
    for q in range(L3): p.add(xld3(q))
    side = []
    for q in range(16):
        if OM == 4 and q + L3 == 8:
            p("wait v30")
            p.add(Raw(spin2(f"{name}_opoll2", 8, olk(1), 30)))
        if q + L3 < 16: side += xld3(q + L3)
        if q == 16 - L3:
            pass
        for k in range(2):
            if q == 2 * D4[k]: side += dma4(k)
        mp = [Ins(f"buffer_load_dwordx2 {rr('v', vE + 2*i, 2)}, v{vPT}, s[{sT}:{sT+3}], s{s_xend} offen offset:{i*128} sc1") for i in range(4)] if q == (6 if OM == 4 else 1) else []
        if OM == 4 and q == o.get('olk', 2): mp = [Ins(olk(1))]
        for i in range(16):
            F = i >> 2
            t, g = zz(F, 2, 2, ZZ)[i & 3]
            p(mf16(ACS(F, t), rr('v', WB + ((q & 1) * 8 + F * 2 + g) * 4, 4), X3(q, t, g)))
            n = q * 16 + i + LEAD
            if q == 10 and i == 0:
                p("s_barrier")
            if WH and n == 128: p("s_barrier", rd=['LW2'])
            if n < 256: p.add(rd3(n))
            if n in (115, 119, 123, 127): p(f"v_xor_b32 v{vA3 + (n - 112) // 4}, 0x10000, v{vA3 + (n - 112) // 4}")
            used = True
            if i % 4 == 3:
                if (q > 0 or i > 3) and q * 16 + i < 255:
                    m = (q * 16 + i + 1) % 32
                    p(f"wait {rr('v', WB + 2 * m, 8)}" + (", " + ", ".join(X3(q + 1, t_, g_) for t_ in range(2) for g_ in range(2)) if i == 15 else ""))
            if side and i % 4 == 0 and side[0].kind == 'vmem': p.add(side.pop(0))
            elif side and side[0].kind == 'salu': p.add(side.pop(0))
            elif mp and i % 4 == 2: p.add(mp.pop(0))
            else: used = False
            if bg and not used and q > (10 if BW else 0):
                p.add(bg.pop(0))
                if bg and q * 16 + i > 200: p.add(bg.pop(0))
    p.add(side)
    assert not bg, len(bg)
    p.add(Raw("; @stamp 7"))
    if 'twice3' in dbg: p.add(Raw(f"    s_waitcnt vmcnt(0)\n    s_sub_u32 s{s_spin}, s{s_spin}, 1\n    s_cmp_lg_u32 s{s_spin}, 0\n    s_cbranch_scc1 {name}_tw3"))

    for t in range(2):
        sel = "op_sel_hi:[1,0]" if t == 0 else "op_sel:[0,1]"
        q = rr('v', vQ + 2 * t, 2)
        for F in range(4):
            a = AB3 + (F * 2 + t) * 4
            k = vQ + 4 + (F & 1) * 4
            hc = vP + (t * 2 + (F >> 1)) * 4 + (F & 1) * 2
            p(f"""
            v_pk_add_f32 {rr('v', k, 2)}, {rr('v', a, 2)}, {rr('v', vS, 2)} {sel}
            v_pk_add_f32 {rr('v', k+2, 2)}, {rr('v', a+2, 2)}, {rr('v', vS, 2)} {sel}
            v_cvt_pk_bf16_f32 v{hc}, v{k}, v{k+1}
            v_cvt_pk_bf16_f32 v{hc+1}, v{k+2}, v{k+3}""")
            if F & 1:
                g = F >> 1
                p(f"buffer_store_dwordx4 {rr('v', hc-2, 4)}, v{vX1 if t else vL16}, s[{sA}:{sA+3}], s{s_ho} offen offset:{g*1024} sc1")
            p(f"v_pk_mul_f32 {q}, {rr('v', k, 2)}, {rr('v', k, 2)}" if F == 0 else f"v_pk_fma_f32 {q}, {rr('v', k, 2)}, {rr('v', k, 2)}, {q}")
            p(f"v_pk_fma_f32 {q}, {rr('v', k+2, 2)}, {rr('v', k+2, 2)}, {q}")
    p(f"""
    v_add_f32 v{vQ}, v{vQ}, v{vQ+1}
    v_add_f32 v{vQ+2}, v{vQ+2}, v{vQ+3}
    v_permlane16_swap_b32 v{vQ}, v{vQ+2}
    v_add_f32 v{vQ}, v{vQ}, v{vQ+2}
    v_mov_b32 v{vQ+1}, v{vQ}
    v_permlane32_swap_b32 v{vQ}, v{vQ+1}
    v_add_f32 v{vt}, v{vQ}, v{vQ+1}
    s_mov_b32 exec_hi, 0
    buffer_store_dword v{vt}, v{vPW}, s[{sT}:{sT+3}], s{s_pj} offen sc1
    s_mov_b32 exec_hi, -1
    """)
    for q in range(2):
        if D4[q] == 8: p.add(dma4(q))
    for t in range(2):
        for F in range(4):
            a = AB3 + (F * 2 + t) * 4
            hr = vP + 16 + (t * 2 + (F >> 1)) * 4 + (F & 1) * 2
            p(f"v_cvt_pk_bf16_f32 v{hr}, v{a}, v{a+1}\nv_cvt_pk_bf16_f32 v{hr+1}, v{a+2}, v{a+3}")
    for i in range(16):
        p(f"v_accvgpr_write_b32 a{aHR+i}, v{vP+16+i}")
    if 'H' in dbg:
        srd(p, sB, pWS, HR[1], bias=HR[0])
        for t in range(2):
            for g in range(2):
                p(f"buffer_store_dwordx4 {rr('v', vP + 16 + (t*2+g)*4, 4)}, v{vX1 if t else vL16}, s[{sB}:{sB+3}], s{s_ho} offen offset:{g*1024}")
    for i in range(AB4 + (0 if o.get('ril', False) or o.get('hsplit', False) else 16), 156, 2):
        p(f"v_pk_mov_b32 {rr('v', i, 2)}, 0, 0")
    p(f"""
    s_lshl_b32 s{s_xo}, s{s_tk4}, 11
    s_waitcnt vmcnt({7 * D4.count(8)})
    """)
    if 'ack' in dbg: p.add(Raw("; @stamp 0"))
    if HCA:
        p(f"s_mov_b64 exec, 0xff\nbuffer_atomic_add v{vOne}, v{vt+6}, s[{sT}:{sT+3}], s{s_c} offen\ns_mov_b64 exec, -1")
    else:
        p(f"buffer_store_dword v{vOne}, v{vZ}, s[{sT}:{sT+3}], s{s_c} offen sc1")
    if 'ack' in dbg: p.add(Raw("    s_waitcnt vmcnt(0)\n; @stamp 1"))
    for q in range(2):
        if D4[q] == 9: p.add(dma4(q))
    if D4[1] < 10: p(f"s_add_u32 s{s_dsl}, s{s_m04}, {HI4}")
    PX = o.get('px', 8)
    BT = o.get('btouch', 0)
    vFL, vBT = vt + 5, vt + 6
    s_hf, s_x5, s_of, s_bt = 65, 63, 64, 3
    wread_addr(12)
    srd(p, sB, pWS, HH[1], bias=HH[0])
    srd(p, sC, pWS, XC[1], bias=XC[0])
    p(f"""
    s_bfe_u32 s{s_hf}, s{s_b}, 0x10002
    s_lshl_b32 s{s_hf}, s{s_hf}, 1
    s_lshr_b32 s{s_t0}, s{s_j}, 3
    s_add_u32 s{s_hf}, s{s_hf}, s{s_t0}
    s_and_b32 s{s_c}, s{s_tok}, 0x5c0
    s_lshl_b32 s{s_c}, s{s_c}, 6
    s_lshl_b32 s{s_t0}, s{s_hf}, 10
    s_add_u32 s{s_c}, s{s_c}, s{s_t0}
    s_add_u32 s{s_c}, s{s_c}, {ST_FH}
    s_xor_b32 s{s_x5}, s{s_tok}, 512
    s_mul_i32 s{s_x5}, s{s_x5}, {112 * 64}
    s_mul_i32 s{s_t0}, s{s_hf}, {28 * 1024}
    s_add_u32 s{s_x5}, s{s_x5}, s{s_t0}
    s_mul_i32 s{s_of}, s{s_tk4}, {112 * 64}
    s_lshr_b32 s{s_t0}, s{s_nb}, 3
    s_mul_i32 s{s_t0}, s{s_t0}, {56 - 8}
    s_add_u32 s{s_t0}, s{s_t0}, s{s_nb}
    s_lshl_b32 s{s_t0}, s{s_t0}, 9
    s_add_u32 s{s_of}, s{s_of}, s{s_t0}
    v_and_b32 v{vFL}, 7, v0
    v_lshlrev_b32 v{vFL}, 7, v{vFL}
    v_bfe_u32 v{vt}, v0, 3, 1
    v_lshl_add_u32 v{vFL}, v{vt}, 15, v{vFL}""")
    if BT:
        p(f"""
        v_cmp_gt_u32 vcc, 14, v0
        v_lshlrev_b32 v{vt}, 10, v0
        v_add_u32 v{vt}, {4096 + 384}, v{vt}
        v_mov_b32 v{vt+1}, 0x7ffffff0
        v_cndmask_b32 v{vBT}, v{vt+1}, v{vt}, vcc
        s_lshr_b32 s{s_bt}, s2, 3
        s_lshl_b32 s{s_bt}, s{s_bt}, 2
        s_add_u32 s{s_bt}, s{s_bt}, s{s_w}
        s_mul_i32 s{s_bt}, s{s_bt}, {7 * 2048}""")


    X4 = lambda slot, t, g: rr('a', slot * 32 + (t * 2 + g) * 4, 4)
    WB4, WB4B, NWR = 96, 128, 4
    W4 = lambda q, g: rr('a', WB4 + (q % NWR) * 8 + g * 4, 4)
    AC4 = lambda f, t: rr('v', AB4 + (f * 4 + t) * 4, 4)

    def xld4(slot):
        o_ = [Ins(f"buffer_load_dwordx4 {X4(slot, t, g)}, v{vX4[t]}, s[{sA}:{sA+3}], s{s_xo} offen offset:{g*1024} sc1")
              for t in range(4) for g in range(2)]
        return o_ + [Ins(f"s_add_u32 s{s_xo}, s{s_xo}, 2048")]

    def rd4(q, n, par=None, base=WB4):
        f = q % 14
        g, b = n >> 1, n & 1
        if par is None: par = (q // 14) & 1
        return Ins(f"ds_read_b64_tr_b16 {rr('a', base + (q % NWR)*8 + g*4 + 2*b, 2)}, v{vA4} offset:{par*SLOT4 + (f&1)*14336 + (32*g+16*b)*224 + (f>>1)*32}")
    if D4[0] < 8:
        p("s_barrier")
        for n in range(LEAD4):
            p.add(rd4(n >> 2, n & 3))
    p.add(Raw("; @stamp 8"))
    HS = o.get('hsplit', False)
    hlk = lambda h: f"buffer_load_dword v{vt}, v{vt+1}, s[{sT}:{sT+3}], s{s_c4} offen offset:{h*1024} sc1"
    if HS:
        p(f"""
        v_and_b32 v{vt+1}, 7, v0
        v_bfe_u32 v{vt+2}, v0, 3, 1
        v_lshl_add_u32 v{vt+1}, v{vt+2}, 4, v{vt+1}
        v_lshlrev_b32 v{vt+1}, 7, v{vt+1}
        s_mov_b32 s{s_spin}, {SPIN}
        {hlk(0)}
        s_waitcnt vmcnt(0)""")
        p.add(Raw(spin2(f"{name}_hpoll", 1, hlk(0), vt)))
    elif HCA: poll(p, f"{name}_hpoll", s_c4, 1, vt, 32)
    else: poll(p, f"{name}_hpoll", s_c4, 32, vt)
    p.add(Raw("; @stamp 9"))
    RIL = o.get('ril', False)
    if not RIL and not HS:
        for q in range(2):
            table_load(AB4 + 8 * q, s_sq4, q)
    p.add(xld4(0))
    if RIL:
        for q in range(2):
            for i in range(4):
                p(f"buffer_load_dwordx2 {rr('a', WB4B + 8*q + 2*i, 2)}, v{vPT}, s[{sT}:{sT+3}], s{s_sq4} offen offset:{q*2048 + i*128} sc1")
    if o.get('b1', True): p("s_barrier")
    if D4[0] >= 8:
        for n in range(LEAD4):
            p.add(rd4(n >> 2, n & 3))
    ril = []
    if RIL or HS:
        p.cur = ril
        for t in range(4):
            a_ = WB4B + 8 * (t >> 1) + (t & 1)
            for i in range(4): p(f"v_accvgpr_read_b32 v{vt+i}, a{a_ + 2*i}")
            p(f"v_add_f32 v{vt}, v{vt}, v{vt+1}\nv_add_f32 v{vt+2}, v{vt+2}, v{vt+3}\nv_add_f32 v{vt}, v{vt}, v{vt+2}")
            xsum16_32(p, f"v{vt}", f"v{vt+1}")
            p(f"v_fma_f32 v{vt}, v{vt}, s{s_t1}, v{vt+4}\nv_rsq_f32 v{vt}, v{vt}")
            p(f"v_mul_f32 v{vR4+t}, {f32hex(-LOG2E)}, v{vt}")
        p.cur = main_cur
    else:
        for q in range(2):
            rstd_from(AB4 + 8 * q, vR4 + 2 * q)
        for t in range(4):
            p(f"v_mul_f32 v{vR4+t}, {f32hex(-LOG2E)}, v{vR4+t}")
        for i in range(AB4, AB4 + 16, 2):
            p(f"v_pk_mov_b32 {rr('v', i, 2)}, 0, 0")
    if HS:
        pr_ = Prog(); pr_.add(ril); ril = []
        rs_txt = pr_.finish()
    p(f"s_mov_b32 s{s_cnt}, 7")
    p("wait " + ", ".join(X4(0, t, g) for t in range(4) for g in range(2)) + f", {W4(0, 0)}, {W4(0, 1)}")
    p.begin_loop(f"{name}_p4loop", 7)
    B1 = o.get('b1', True)
    BP = o.get('bpos', 99)
    for u in range(2):
        MV = o.get('p4mv', 0)
        if u == 0: d41 = dma4(1)
        vm = d41[MV:] + xld4(0) if u == 1 else xld4(1) + dma4(0) + d41[:MV]
        if 'p4nov' in dbg: vm = [x for x in vm if x.kind != 'vmem']
        fill, pos = {}, 1
        for ins in vm:
            fill.setdefault(pos, []).append(ins)
            pos += o.get('p4d', 4) if 'lds' in ins.mods else o.get('p4step', 4) if ins.kind == 'vmem' else 2
            if pos % 8 == 7: pos += 2
        assert pos < (91 if u else 118), pos
        if u == 1:
            fill[97] = [Ins(f"s_sub_u32 s{s_rsl}, {HI4}, s{s_rsl}")]
            fill[107] = [Ins(f"s_add_u32 s{s_dsl}, s{s_m04}, s{s_rsl}")]
            fill[93] = [Ins(f"s_sub_u32 s{s_cnt}, s{s_cnt}, 1")]
            fill[109] = [Ins(f"s_cmp_lg_u32 s{s_cnt}, 0")]
            fill.setdefault(pos, []).append(Ins(f"s_bitcmp1_b32 {'0x62' if HS else 2}, s{s_cnt}"))
            fill.setdefault(pos + 1, []).append(Raw(f"    s_cbranch_scc1 {name}_x15\n{name}_x15back:"))
            hs = ""
            if HS:
                hs = f"""    s_cmp_eq_u32 s{s_cnt}, 1
    s_cbranch_scc1 {name}_x15b
    s_cmp_eq_u32 s{s_cnt}, 5
    s_cbranch_scc1 {name}_hs2
    {hlk(1)}
    s_branch {name}_x15back
{name}_hs2:
""" + spin2(f"{name}_hpoll2", 1, hlk(1), vt) + "\n" + "".join(
                    f"    buffer_load_dwordx2 {rr('a', WB4B + 8*q + 2*i, 2)}, v{vPT}, s[{sT}:{sT+3}], s{s_sq4} offen offset:{q*2048 + i*128} sc1\n"
                    for q in range(2) for i in range(4)) + f"    s_branch {name}_x15back\n{name}_x15b:\n"
            x15blk = Raw(f"{name}_x15:\n" + hs + "".join(f"    {x.text}\n" for x in xld4(2)[:8]) +
                         (code_touch(f"{name}_ct5", f"{name}_tail4", f"{name}_end", 2, vt, vt + 1) if o.get('ipf5', False) else "") +
                         (rs_txt + "\n" if HS else "") + f"    s_branch {name}_x15back")
        order = [(f, t, g) for f in range(14) for t, g in zz(f, 4, 2, ZZ)]
        late = B1 and u == 1
        for i, (f, t, g) in enumerate(order):
            p(mf16(AC4(f, t), W4(u * 14 + f, g), X4(u, t, g)))
            if late and i == BP:
                p("s_waitcnt vmcnt(8) lgkmcnt(0)")
                p("s_barrier")
            if late and i >= 96:
                if BP <= i < BP + 8:
                    p.add(rd4(28 + ((i - BP) >> 2), (i - BP) & 3))
            elif i % 2 == 0:
                n = i // 2 + LEAD4
                p.add(rd4(u * 14 + (n >> 2), n & 3))
            if i == 95 and u == 1: p(f"v_add_u32 v{vA4}, s{s_rsl}, v{vAb}")
            if i == 95 and not B1:
                p("s_waitcnt vmcnt(15) lgkmcnt(4)")
                if 'p4nobar' not in dbg: p("s_barrier")
            elif i == 111:
                p(f"wait {W4(u*14 + 14, 0)}, {W4(u*14 + 14, 1)}, " + ", ".join(X4(1 - u, t_, g_) for t_ in range(4) for g_ in range(2)))
            elif i % 8 == 7:
                p(f"wait {W4(u*14 + f + 1, 0)}, {W4(u*14 + f + 1, 1)}")
            p.add(fill.get(i, []))
            if ril and u == 1 and i not in fill and i < 94: p.add(ril.pop(0))
    assert not ril
    p(f"s_cbranch_scc1 {name}_p4loop")
    p.end_loop()
    p(f"{name}_tail4:")
    p.add(Raw("; @stamp 10"))
    main_cur = p.cur
    setup = []
    p.cur = setup

    vW5 = 21
    s_wo5, s_m05 = 68, 69
    vH = 13
    vFG, vTwo = 25, 26
    for i in range(2):
        p(f"v_accvgpr_read_b32 v{vW5+i}, a{aMEAN-4+i}")
    p(f"""
    s_mul_i32 s{s_t0}, s{s_hf}, {896 * 2048}
    s_xor_b32 s{s_t1}, s{s_j}, {PX}
    s_add_u32 s{s_t1}, s{s_t1}, 16
    s_sub_u32 s{s_t1}, s{s_t1}, s{s_j}
    s_lshl_b32 s{s_t1}, s{s_t1}, 7
    v_add_u32 v{vW5+2}, s{s_t1}, v{vW5}
    v_add_u32 v{vW5+3}, s{s_t1}, v{vW5+1}
    v_add_u32 v{vW5}, 4096, v{vW5}
    v_add_u32 v{vW5+1}, 4096, v{vW5+1}
    s_mul_i32 s{s_wo5}, s{s_w}, {112 * 2048}""")
    srd(p, sD, pWD, 896 * 2048 + 4096, off=s_t0, bias=-4096)
    p(f"""
    s_lshl_b32 s{s_t1}, s{s_j}, 7
    s_add_u32 s{s_wo5}, s{s_wo5}, s{s_t1}
    s_lshl_b32 s{s_m05}, s{s_w}, 12
    v_lshrrev_b32 v{vt}, 5, v0
    v_mul_u32_u24 v{vt}, {112 * 1024 - 512}, v{vt}
    v_add_u32 v{vH}, v{vt}, v{vL16}
    v_add_u32 v{vH+1}, {2 * 112 * 1024}, v{vH}
    v_add_u32 v{vX1}, {112 * 1024}, v{vL16}
    s_mul_i32 s{s_xo}, s{s_tok}, {112 * 64}
    s_mul_i32 s{s_t0}, s{s_hf}, {28 * 1024}
    s_add_u32 s{s_xo}, s{s_xo}, s{s_t0}
    s_mov_b32 s{s_spin}, {SPIN}
    s_lshl_b32 s{s_t0}, s{s_nb}, 7
    s_add_u32 s{s_sq4}, s{s_sq4}, s{s_t0}
    s_add_u32 s{s_sq4}, s{s_sq4}, {ST_FH - ST_SSQ}""")
    p.cur = main_cur
    btouch = lambda: Ins(f"buffer_load_dword v27, v{vBT}, s[{sD}:{sD+3}], s{s_bt} offen", nowaw=True)

    def dma5(st):
        o_ = [Ins(f"s_add_u32 m0, s{s_m05}, {(st % 8) * 16384}")]
        for i in range(4):
            o_.append(Ins(f"buffer_load_dwordx4 v{vW5+i}, s[{sD}:{sD+3}], s{s_wo5} offen offset:{i*1024} lds", awr=[f'L5_{st}'], nowaw=True))
        o_.append(Ins(f"s_add_u32 s{s_wo5}, s{s_wo5}, {448 * 2048}" if st & 1 == 0 else f"s_sub_u32 s{s_wo5}, s{s_wo5}, {(448 - 16) * 2048}"))
        return o_

    def glu(pr, packed):
        o_ = []
        for t in range(4):
            g = AB4 + ((2 * pr) * 4 + t) * 4
            u_ = AB4 + ((2 * pr + 1) * 4 + t) * 4
            rs_ = rr('v', vR4 + (t & 2), 2)
            sel = "op_sel_hi:[1,0]" if t % 2 == 0 else "op_sel:[0,1]"
            if packed:
                o_ += [f"v_pk_mul_f32 {rr('v', g+r, 2)}, {rr('v', g+r, 2)}, {rs_} {sel}" for r in (0, 2)]
                o_ += [f"v_exp_f32 v{g+r}, v{g+r}" for r in range(4)]
                o_ += [f"v_pk_add_f32 {rr('v', g+r, 2)}, {rr('v', g+r, 2)}, 1.0 op_sel_hi:[1,0]" for r in (0, 2)]
                o_ += [f"v_rcp_f32 v{g+r}, v{g+r}" for r in range(4)]
                o_ += [f"v_pk_mul_f32 {rr('v', u_+r, 2)}, {rr('v', u_+r, 2)}, {rr('v', g+r, 2)}" for r in (0, 2)]
            else:
                o_ += [f"v_mul_f32 v{g+r}, v{vR4+t}, v{g+r}" for r in range(4)]
                o_ += [f"v_exp_f32 v{g+r}, v{g+r}" for r in range(4)]
                o_ += [f"v_add_f32 v{g+r}, 1.0, v{g+r}" for r in range(4)]
                o_ += [f"v_rcp_f32 v{g+r}, v{g+r}" for r in range(4)]
                o_ += [f"v_mul_f32 v{u_+r}, v{u_+r}, v{g+r}" for r in range(4)]
            d_ = AB4 + ((2 * pr) * 4 + (t & 2)) * 4 + (t & 1) * 2
            o_ += [f"v_cvt_pk_bf16_f32 v{d_}, v{u_}, v{u_+1}", f"v_cvt_pk_bf16_f32 v{d_+1}, v{u_+2}, v{u_+3}"]
            if t & 1:
                o_ += [f"v_permlane32_swap_b32 v{d_-2}, v{d_}", f"v_permlane32_swap_b32 v{d_-1}, v{d_+1}",
                       f"buffer_store_dwordx4 {rr('v', d_-2, 4)}, v{vH + (t >> 1)}, s[{sB}:{sB+3}], s{s_of} offen sc1"]
        o_.append(f"s_add_u32 s{s_of}, s{s_of}, 4096")
        return [Ins(x, awr=[f'HS{pr}'], nowaw=True) if x.startswith('buffer') else Ins(x) for x in o_]

    AC5, WB5, vHI, vHF = 96, 40, 72, 224
    XB5 = (160, 192, 32, 0, 64, 96, 128)
    A5 = lambda F, t: rr('v', AC5 + ((F >> 2) + 2 * (t >> 1)) * 32 + ((F & 3) * 2 + (t & 1)) * 4, 4)
    X5 = lambda st, t, G: rr('a', XB5[st % 7] + (t * 2 + G) * 4, 4)
    NT = o.get('nt5', 6)

    def xld5(st):
        o_ = [Ins(f"buffer_load_dwordx4 {X5(st, t, G)}, v{vX1 if t & 1 else vL16}, s[{sB}:{sB+3}], s{s_x5 if t >> 1 else s_xo} offen offset:{G*1024} sc1")
              for t in range(4) for G in range(2)]
        return o_[:4] + [Ins(f"s_add_u32 s{s_xo}, s{s_xo}, 2048")] + o_[4:] + [Ins(f"s_add_u32 s{s_x5}, s{s_x5}, 2048")]

    spin = lambda label, level, ld=None: spin2(label, level, ld or fgl, vFG)
    last = list(range(14 - NT, 14))
    FO = o.get('fo5', 4)
    units = [(st, F, (0, 1, 2, 3)) for st in range(14 - NT) for F in range(8)]
    units += [(st, F, (0, 1, 2, 3)) for st in last[:-FO] for F in range(4, 8)]
    units += [(st, F, (0, 1, 2, 3)) for F in range(4, 8) for st in last[-FO:]]
    kB = len(units)
    kC = kB + 4 * NT
    units += [(st, F, (2, 3)) for F in range(4) for st in last]
    units += [(st, F, (0, 1)) for F in range(4) for st in last]

    def rd5(k):
        st, F = units[k][:2]
        return [Ins(f"ds_read_b64_tr_b16 {rr('v', WB5 + (k % 4)*8 + 2*n, 2)}, v{(vHI if st & 4 else vA3) + (F & 3)} "
                    f"offset:{(st & 3)*16384 + (n >> 1)*8192 + (F >> 2)*2048 + (n & 1)*1024}") for n in range(4)]
    fgl = f"buffer_load_dword v{vFG}, v{vFL}, s[{sT}:{sT+3}], s{s_c} offen sc1"
    tell = lambda prs: [Ins(f"buffer_store_dword v{vOne}, v{vZ}, s[{sT}:{sT+3}], s{s_sq4} offen sc1", rd=[f'HS{q}' for q in prs]),
                        Ins(f"s_add_u32 s{s_sq4}, s{s_sq4}, 0x40000")]
    check = lambda n: [Ins(f"wait v{vFG}"), Raw(spin(f"{name}_fpoll{n}", 1)), Ins(f"s_add_u32 s{s_c}, s{s_c}, 0x40000")]

    W4B = lambda q, g: rr('a', WB4B + (q % NWR) * 8 + g * 4, 4)
    C0 = o.get('c0at', (5, 21))
    at = {o.get('t0at', (2, 27)): tell((0,)), o.get('l0at', (4, 29)): [Ins(fgl)],
          C0: [Raw("; @stamp 11")] + check(0) + [Raw("; @stamp 12")], o.get('t1at', (5, 29)): tell((1, 2, 3))}
    x01 = xld5(0) + xld5(1)
    if not B1:
        p("s_waitcnt vmcnt(0)")
        p("s_barrier")
    for n in range(4):
        p.add(rd4(0, n, 1, WB4B))
    cost = lambda x: 8 if x.kind == 'trans' else 0 if x.kind == 'vmem' else 4
    pend = []
    for pr in range(7):
        work = setup if pr == 0 else glu(pr - 1, False)
        side = dma5(pr - 1) if pr >= 1 else []
        if BT and pr == o.get('btat', 3): side.append(btouch())
        tot = sum(cost(x) for x in work)
        done, wi = 0, 0
        for ff in range(2):
            f = 2 * pr + ff
            if f == 0: order = [(t, k) for t in range(4) for k in (0, 1)] + [(t, k) for t in range(4) for k in (2, 3)]
            else: order = zz(f, 4, 4, ZZ)
            rds = [rd4(f + 1, n, 1, WB4B) for n in range(4)] if f + 1 < 14 else []
            rds += [rd4(f + 2, n, 0) for n in range(4)] if f + 2 < 14 else []
            for i, (t, k) in enumerate(order):
                p(mf16(AC4(f, t), W4(f, k) if k < 2 else W4B(f, k - 2), X4(0 if k < 2 else 2, t, k & 1)))
                if B1 and f == 0 and i == 7:
                    p("s_waitcnt vmcnt(0)")
                if f == 13 and i == 0:
                    p("s_barrier", rd=['L5_0', 'L5_1', 'L5_2', 'L5_3'])
                    rds = rd5(0) + rd5(1)

                def xnext():
                    p.add(x01.pop(0))
                    if x01 and x01[0].kind == 'salu': p.add(x01.pop(0))
                if i % 2 == 0 and rds:
                    p.add(rds.pop(0))
                elif i == 15:
                    if f < 13: p(f"wait {W4(f+1, 0)}, {W4(f+1, 1)}, {W4B(f+1, 0)}, {W4B(f+1, 1)}")
                elif (pr, ff * 16 + i) in at:
                    p.add(at[pr, ff * 16 + i])
                elif pend and i % 2:
                    p.add(pend.pop(0))
                    if pr >= 5 and pend and pend[0].kind == 'salu': p.add(pend.pop(0))
                elif x01 and (pr, ff * 16 + i) > C0 and (len(x01) > 10 or not side):
                    xnext()
                elif side and (i % 2 or pr == 6):
                    p.add(side.pop(0))
                    if pr >= 5 and side and side[0].kind == 'salu': p.add(side.pop(0))
                gap = ff * 16 + i + 1
                while wi < len(work) and done + cost(work[wi]) / 2 <= tot * gap / 32:
                    if work[wi].kind == 'vmem' or (pr and work[wi].kind == 'salu'): pend.append(work[wi])
                    else: p.add(work[wi])
                    done += cost(work[wi]); wi += 1
        assert wi == len(work) and (not side or pr == 6)
    carry = pend + side + x01

    p.add(Raw("; @stamp 13"))
    STG = 131072
    vL, vG, vXF = 30, 15, 26
    s_ro, s_fl, s_xs, s_fy, s_fb = 66, 67, 72, 70, 71
    SQ5 = 32
    bg = []
    p.cur = bg
    for i in range(4):
        p(f"v_xor_b32 v{vHI+i}, 0x10000, v{vA3+i}")
    p(f"""
    s_lshl_b32 s{s_of}, s{s_tok}, 6
    s_add_u32 s{s_of}, s{s_of}, {ST_SSQ}
    s_lshl_b32 s{s_t0}, s{s_b}, 4
    s_add_u32 s{s_t0}, s{s_t0}, s{s_j}
    s_lshl_b32 s{s_xs}, s{s_t0}, 2
    s_add_u32 s{s_xs}, s{s_xs}, s{s_w}
    s_lshl_b32 s{s_fl}, s{s_xs}, 7
    v_and_b32 v{vt+2}, 1, v0
    v_lshlrev_b32 v{vt+2}, 15, v{vt+2}
    v_xor_b32 v{vt+2}, {8 << 9}, v{vt+2}
    v_xor_b32 v{vXF}, s{s_fl}, v{vt+2}
    s_add_u32 s{s_fy}, s{s_fl}, {ST_FY}
    s_add_u32 s{s_fl}, s{s_fl}, {ST_FX}
    s_mov_b32 s{s_fb}, {ST_FY}
    s_lshl_b32 s{s_xs}, s{s_xs}, 14
    s_add_u32 s{s_nb+4}, s{s_xs}, 4096
    s_mul_i32 s{s_t0}, s{s_w}, 4608
    s_add_u32 s{s_t0}, s{s_t0}, {STG}
    v_and_b32 v{vt+2}, 15, v0
    v_mul_u32_u24 v{vt+2}, 144, v{vt+2}
    v_lshrrev_b32 v{vt+3}, 4, v0
    v_lshl_add_u32 v{vt+2}, v{vt+3}, 3, v{vt+2}
    v_add_u32 v{vL}, s{s_t0}, v{vt+2}
    v_lshrrev_b32 v{vt+2}, 3, v0
    v_and_b32 v{vt+3}, 7, v0
    v_lshlrev_b32 v{vt+3}, 4, v{vt+3}
    v_lshl_add_u32 v{vG}, v{vt+2}, 11, v{vt+3}
    v_mul_u32_u24 v{vt+2}, 144, v{vt+2}
    v_add3_u32 v{vL+1}, v{vt+2}, v{vt+3}, s{s_t0}
    s_lshl_b32 s{s_ro}, s{s_tok}, 11
    s_lshl_b32 s{s_t2}, s{s_j}, 7
    s_add_u32 s{s_ro}, s{s_ro}, s{s_t2}
    s_add_u32 s0, s{s_xs}, 4096
    s_add_u32 s1, s{s_xs}, 8192
    s_add_u32 s14, s{s_xs}, 12288
    s_xor_b32 s15, s0, {8 << 16}
    s_xor_b32 s74, s1, {64 << 16}
    s_xor_b32 s75, s14, {72 << 16}
    s_mov_b32 s{s_t1}, {f32hex(1.0/1024)}
    v_mov_b32 v{vt+4}, {f32hex(1e-5)}
    """.replace(f"    s_add_u32 s{s_nb+4}, s{s_xs}, 4096\n", ""))
    srd(p, sA, pOUT, S * D * 2)
    for t in range(2):
        for F in range(4):
            e = aHR + (t * 2 + (F >> 1)) * 4 + (F & 1) * 2
            k = vHF + (F * 2 + t) * 4
            p(f"""
            v_accvgpr_read_b32 v{k+1}, a{e}
            v_accvgpr_read_b32 v{k+3}, a{e+1}
            v_lshlrev_b32 v{k}, 16, v{k+1}
            v_lshlrev_b32 v{k+2}, 16, v{k+3}
            v_and_b32 v{k+1}, 0xffff0000, v{k+1}
            v_and_b32 v{k+3}, 0xffff0000, v{k+3}""")
    bg2 = []
    p.cur = bg2
    for t in range(2):
        p(f"""
        v_add_f32 v{SQ5+t}, v{SQ5+t}, v{SQ5+2+t}
        v_add_f32 v{SQ5+4+t}, v{SQ5+4+t}, v{SQ5+6+t}
        v_add_f32 v{vS+t}, v{SQ5+t}, v{SQ5+4+t}""")
        xsum16_32(p, f"v{vS+t}", f"v{vt}")
        p(f"v_fma_f32 v{vS+t}, v{vS+t}, s{s_t1}, v{vt+4}\nv_rsq_f32 v{vS+t}, v{vS+t}")
    p.cur = main_cur
    sXQ = {1: 0, 2: 1, 3: 14}
    assert NT in (4, 5, 6)
    sql = [Ins(f"buffer_load_dwordx2 {rr('v', SQ5 + 2*i, 2)}, v{vPT}, s[{sT}:{sT+3}], s{s_of} offen offset:{i*128} sc1") for i in range(4)]
    X_ = {st: xld5(st) for st in range(2, 14)}
    X_[1] = [x for x in x01]
    plan = {0: carry + dma5(6) + [Ins(fgl)] + dma5(7) + [check(1)] + X_[2][:5], 1: X_[2][5:] + X_[3] + X_[4][:5],
            2: tell((4, 5, 6)) + X_[4][5:] + X_[5], 3: dma5(8) + dma5(9) + X_[6], 4: [Ins(fgl)] + X_[7] + [check(2)] + X_[8],
            5: dma5(10) + dma5(11) + X_[9], 6: X_[10] + X_[11], 7: dma5(12) + dma5(13) + X_[12], 8: X_[13]}
    bar_at = {2: [4, 5, 6, 7], 4: [], 6: [8, 9, 10, 11], 9: [12, 13]}
    g6 = glu(6, False)
    g6tot, g6done = sum(cost(x) for x in g6), 0
    start = {}
    for k, u_ in enumerate(units[:kB]): start.setdefault(u_[0], k)
    kstart = {k: st for st, k in start.items() if st < 12}
    kbar = {start[st + 1] - 2: v for st, v in bar_at.items()}
    RX = AC5 + 32
    rxl = lambda F, r: Ins(f"buffer_load_dwordx4 {rr('v', AC5 + r*32 + F*8, 4)}, v{vL16}, s[{sC}:{sC+3}], s{(15, 74, 75)[r-1]} offen offset:{F*1024} sc1")
    fyl = f"buffer_load_dword v{vFG}, v{vXF}, s[{sT}:{sT+3}], s{s_fb} offen sc1"
    ev = {}
    YL = o.get('yl', [(-2, (0, 1), 15, 21), (12, (2, 3), 35, 42)])
    for n, (kt_, Fs, kl, kc) in enumerate(YL):
        ev.setdefault(kB + kt_, []).extend(
            [Ins(f"buffer_store_dword v{vOne}, v{vZ}, s[{sT}:{sT+3}], s{s_fy} offen sc1", rd=[f'XS{r}_{F}' for F in Fs for r in (1, 3)]),
             Ins(f"s_add_u32 s{s_fy}, s{s_fy}, 0x40000")])
        ev.setdefault(kB + kl, []).append(Ins(fyl))
        ev.setdefault(kB + kc, []).extend(
            [[Ins(f"wait v{vFG}"), Raw(spin(f"{name}_ypoll{n}", 1, fyl)), Ins(f"s_add_u32 s{s_fb}, s{s_fb}, 0x40000")]] +
            [rxl(F, r) for F in Fs for r in (1, 3)])
    ev.setdefault(kC + o.get('kfb', 12), []).extend(
        [Ins(f"buffer_store_dword v{vOne}, v{vZ}, s[{sT}:{sT+3}], s{s_fl} offen sc1", rd=[f'XS2_{F}' for F in range(4)]),
         Ins(f"s_xor_b32 s{s_fl}, s{s_fl}, {64 << 9}")])
    side, seen, hold = [], set(), 0
    for k, (st, F, ts) in enumerate(units):
        if k in kstart:
            side += plan.get(st, [])
        assert all(x not in side for x in X_.get(st, [])[:-1])
        side += ev.get(k, [])
        if k == kB - 14: side += sql
        if k == kB + 8: bg += bg2
        if 'fine5' in dbg:
            mk = {start[3]: 3, start[4]: 4, start[8]: 5, kB: 6, kC: 7, kC + 8: 8, kC + 16: 9}
            if k in mk: p.add(Raw(f"; @stamp {mk[k]}"))
        rds = rd5(k + 2) if k + 2 < len(units) else []
        order = [(ts[t], G) for t, G in zz(k, len(ts), 2, ZZ)]
        for i, (t, G) in enumerate(order):
            c = None if (F, t) in seen else "0"
            seen.add((F, t))
            p(mf16(A5(F, t), rr('v', WB5 + (k % 4) * 8 + G * 4, 4), X5(st, t, G), c))
            if i == 0 and k in kbar:
                assert not any(f'L5_{x}' in getattr(y, 'awr', ()) for x in kbar[k] for y in side)
                p("s_barrier", rd=[f'L5_{x}' for x in kbar[k]])
            used = False
            if rds and (i % 2 == 0 or len(ts) == 2):
                p.add(rds.pop(0))
            if i == len(order) - 1:
                if k + 1 < len(units):
                    n_ = units[k + 1]
                    p(f"wait {rr('v', WB5 + ((k + 1) % 4) * 8, 8)}, " + ", ".join(X5(n_[0], t_, G_) for t_ in n_[2] for G_ in range(2)))
            if side and i % 2 == 1 and (getattr(side[0], 'kind', '') == 'vmem') == (i % 4 == 1):
                p.add(side.pop(0)); used = True
                while side and i % 4 == 3 and getattr(side[0], 'kind', '') == 'salu': p.add(side.pop(0))
            while g6 and g6done + cost(g6[0]) / 2 <= g6tot * (k * 8 + i + 1) / 62:
                x = g6.pop(0); g6done += cost(x)
                if x.kind == 'vmem': side.insert(0, x)
                elif x.kind != 'salu': p.add(x)
            if bg and not used and k >= 9:
                x = bg.pop(0)
                if x.kind == 'vmem': side.append(x)
                else: p.add(x)
        if st == 13:
            for tp in sorted({t >> 1 for t in ts}):
                r = (F >> 2) + 2 * tp
                if r:
                    a = AC5 + r * 32 + (F & 3) * 8
                    bg += [Ins("wait v0") for _ in range(3 if not bg else 0)]
                    bg += [Ins(f"v_cvt_pk_bf16_f32 v{a+q}, v{a+2*q}, v{a+2*q+1}") for q in range(4)]
                    bg.append(Ins(f"buffer_store_dwordx4 {rr('v', a, 4)}, v{vL16}, s[{sC}:{sC+3}], s{sXQ[r]} offen offset:{(F & 3)*1024} sc1",
                                  awr=[f'XS{r}_{F & 3}'], nowaw=True))
    assert not bg
    p.add(Raw("; @stamp 14"))
    p.add(side + ev.get(len(units), []))
    fxl = f"buffer_load_dword v{vFG}, v{vt+1}, s[{sT}:{sT+3}], s{s_fl} offen sc1"
    p(f"v_mov_b32 v{vt+1}, 0")
    p(fxl)
    sels = ("op_sel_hi:[1,0,1]", "op_sel:[0,1,0]")
    RU = 40

    def add_rx(F, r):
        for q in range(4):
            e, a, k = AC5 + r * 32 + F * 8 + q, RU + ((r * 4 + q) % 8) * 2, vHF + F * 8 + 2 * q
            p(f"v_lshlrev_b32 v{a}, 16, v{e}\nv_and_b32 v{a+1}, 0xffff0000, v{e}")
            p(f"v_pk_fma_f32 {rr('v', k, 2)}, {rr('v', a, 2)}, {rr('v', vS, 2)}, {rr('v', k, 2)} {sels[q >> 1]}")
    for i in range(0, 32, 2):
        p(f"v_pk_fma_f32 {rr('v', vHF+i, 2)}, {rr('v', AC5+i, 2)}, {rr('v', vS, 2)}, {rr('v', vHF+i, 2)} {sels[(i >> 2) & 1]}")
    for F in range(2):
        add_rx(F, 1); add_rx(F, 3)
    if 'tail' in dbg: p.add(Raw("; @stamp 0"))
    p(f"wait v{vFG}")
    p.add(Raw(spin(f"{name}_xpoll", 1, fxl)))
    p.add([rxl(F, 2) for F in range(4)])
    if 'tail' in dbg: p.add(Raw("; @stamp 1"))
    for F in range(2, 4):
        add_rx(F, 1); add_rx(F, 3)
    for F in range(4):
        add_rx(F, 2)
        for t in range(2):
            k = vHF + (F * 2 + t) * 4
            p(f"v_cvt_pk_bf16_f32 v{k}, v{k}, v{k+1}\nv_cvt_pk_bf16_f32 v{k+1}, v{k+2}, v{k+3}")
            p(f"ds_write_b64 v{vL}, v[{k}:{k+1}] offset:{t*16*144 + F*32}")
    for n in range(4):
        p(f"ds_read_b128 {rr('v', 128 + n*4, 4)}, v{vL+1} offset:{n*8*144}")
    if 'tail' in dbg: p.add(Raw("; @stamp 2"))
    for n in range(4):
        p(f"buffer_store_dwordx4 {rr('v', 128 + n*4, 4)}, v{vG}, s[{sA}:{sA+3}], s{s_ro} offen")
        if n < 3: p(f"s_add_u32 s{s_ro}, s{s_ro}, {8 * 2048}")
    p(f"{name}_end:")
    p("s_endpgm")
    p.add(x15blk)
    p.add(outl)

    z = 48
    rgl = f"buffer_load_dwordx2 v[{z+4}:{z+5}], v{z+6}, s[{sT}:{sT+3}], s{s_fo} offen sc1"
    p.add(Raw(f"""{name}_rsx:
    s_cmp_eq_u32 s{s_cnt}, 2
    s_cbranch_scc1 {name}_rs5
    {mf16(rr('v', z, 4), on, rr('v', vRS, 4), "0")}
    {mf16(rr('v', z, 4), on, rr('v', vRS + 4, 4))}
    s_lshl_b32 s{s_t0}, s{s_fo}, 3
    s_add_u32 s{s_t0}, s{s_t0}, {ST_RS2}
    s_lshl_b32 s{s_fo}, s{s_j}, 9
    s_add_u32 s{s_fo}, s{s_fo}, {ST_RS2}
    v_lshlrev_b32 v{z+6}, 3, v0
    s_mov_b32 s{s_spin}, {SPIN}
    s_nop 2
""" + "".join(f"    v_add_f32_dpp v{z}, v{z}, v{z} row_ror:{k} row_mask:0xf bank_mask:0xf\n    s_nop 1\n" for k in (8, 4, 2, 1)) + f"""    v_mov_b32 v{z+1}, 1
    buffer_store_dwordx2 v[{z}:{z+1}], v{vZ}, s[{sT}:{sT+3}], s{s_t0} offen sc1
    s_branch {name}_rsxback
{name}_rs5:
    {rgl}
    s_lshl_b32 s{s_t0}, s{s_w}, 13
    s_add_u32 m0, s{s_t0}, {XT}
    s_add_u32 s{s_t0}, s{s_t0}, {XT + 4096}
    s_lshl_b32 s{s_t1}, s{s_j}, 7
    v_lshl_add_u32 v{z}, v0, 2, s{s_t0}
    v_xor_b32 v{z+1}, 32, v{vXA}
    v_xor_b32 v{z+2}, 64, v{vXA}
    v_xor_b32 v{z+3}, 0x60, v{vXA}
    v_xor_b32 v{z+7}, 128, v{vRA}
""" + "".join(f"    buffer_load_dwordx4 v{vD+i}, s[{sC}:{sC+3}], s{s_t1} offen offset:{i*1024} lds\n" for i in range(4)) +
              (code_touch(f"{name}_ct3", f"{name}_fin", f"{name}_tail4", 1, z + 7, vDum) if o.get('ipf3', False) else "") + f"""    s_branch {name}_rsxback
{name}_rspoll:
    s_sub_u32 s{s_spin}, s{s_spin}, 1
    s_cbranch_scc1 {name}_rsgo
    {rgl}
    s_waitcnt vmcnt(0)
    v_cmp_ne_u32 vcc, 1, v{z+5}
    s_nop 0
    s_cbranch_vccnz {name}_rspoll
    s_branch {name}_rsgo"""))

    slow = p.segment()
    p(f"{name}_slow:")
    p.fence()
    for x in range(2):
        p(f"v_mov_b32 v{Nb(x)}, 0xff800000")
    p(f"s_mov_b32 s{s_ko}, 0\ns_mov_b32 s{sA+2}, {KV[1]}")
    p.begin_loop(f"{name}_max_loop", 64, align=False)
    p.add([kld(0, 0), kld(0, 1)])
    for x in range(2):
        p(mf32(rr('v', Sb(x), 16), Kf(0, 0), Q(x, 0), "0"))
        p(mf32(rr('v', Sb(x), 16), Kf(0, 1), Q(x, 1)))
    for x in range(2):
        for i in range(0, 16, 2):
            p(f"v_max3_f32 v{Nb(x)}, v{Nb(x)}, v{Sb(x)+i}, v{Sb(x)+i+1}")
    p(f"""
    s_add_u32 s{s_ko}, s{s_ko}, 4096
    s_cmp_lg_u32 s{s_ko}, {64 * 4096}
    s_cbranch_scc1 {name}_max_loop""")
    p.end_loop()
    for x in range(2):
        p(f"""
        v_mov_b32 v{vt}, v{Nb(x)}
        v_permlane32_swap_b32 v{Nb(x)}, v{vt}
        v_max_f32 v{Nb(x)}, v{Nb(x)}, v{vt}
        v_sub_f32 v{Nb(x)}, 0, v{Nb(x)}""")
        for i in range(1, 16):
            p(f"v_mov_b32 v{Nb(x)+i}, v{Nb(x)}")
    p(f"s_mov_b32 s{sA+2}, {KV[1]}")
    fill_kv()
    att_init(NR)
    p(f"s_mov_b32 s{s_safe}, 1")
    attention('safe', lambda y: rr('v', Nb(y), 16), False, [Ins("s_nop 11")])
    p.fence()
    p(f"s_branch {name}_fin")
    p.paths = [[main, red_w, rest], [main, fin, fin_k, rest], [main, fin, fin_v, rest], [slow]]
    return p
```

```python
from common import *

LDS_TOTAL = 163840
ST_MR = 0x0000
ST_RS2 = 0x60000
ST_MP = 0x28000
ST_FO = 0x80000
ST_FC = 0xA0000
ST_FH = 0xC0000
ST_FY = 0x120000
ST_FX = 0xE0000
ST_KVC = 0x4000
SPIN = 1 << 20

pX, pWQ, pWK, pWV, pWO, pWG, pWU, pWD, pOUT, pDBG, pWS = 4, 6, 8, 10, 12, 16, 18, 20, 22, 24, 26
sA, sB, sC, sD, sE, sT = 28, 32, 36, 40, 44, 48
s_w, s_b, s_j, s_tok, s_t0, s_t1, s_t2, s_cnt, s_spin = 52, 53, 54, 55, 56, 57, 58, 59, 60
vL16, vZ, vOne = 1, 2, 3
aMEAN, aHR, aA5 = 238, 240, 160


def srd(p, s, ptr, size, off=None, bias=0):
    if off is not None:
        p(f"s_add_u32 s{s}, s{ptr}, s{off}\ns_addc_u32 s{s+1}, s{ptr+1}, 0")
        ptr = s
    if bias > 0:
        p(f"s_add_u32 s{s}, s{ptr}, {hex(bias)}\ns_addc_u32 s{s+1}, s{ptr+1}, 0")
    elif bias < 0:
        p(f"s_sub_u32 s{s}, s{ptr}, {hex(-bias)}\ns_subb_u32 s{s+1}, s{ptr+1}, 0")
    elif off is None:
        p(f"s_mov_b64 s[{s}:{s+1}], s[{ptr}:{ptr+1}]")
    if isinstance(size, str):
        p(size.format(d=f"s{s+2}"))
    else:
        p(f"s_mov_b32 s{s+2}, {hex(size)}")
    p(f"s_mov_b32 s{s+3}, 0x20000")


PFL = ['sc1', 'sc1', 'buffer_store_dword']


def arrive(p, soff):
    p("s_waitcnt vmcnt(0)")
    p(f"{PFL[2]} v{vOne}, v{vZ}, s[{sT}:{sT+3}], s{soff} offen {PFL[1]}")


SLEEP = [0]


def poll(p, label, soff, n, vtmp, target=1, skip=None):
    p(f"""
    s_mov_b32 s{s_spin}, {SPIN}
    v_lshlrev_b32 v{vtmp+1}, 7, v0
    s_mov_b64 exec, {hex((1 << n) - 1) if n < 32 else 0xffff}
    {'s_mov_b32 exec_lo, -1' if n == 32 else ''}
    {f's_bitset0_b32 exec_lo, s{skip}' if skip else ''}""")
    p.add(Raw(f"""    s_branch {label}_go
{label}:
    {f's_sleep {SLEEP[0]}' if SLEEP[0] else ''}
{label}_go:
    buffer_load_dword v{vtmp}, v{vtmp+1}, s[{sT}:{sT+3}], s{soff} offen {PFL[0]}
    s_sub_u32 s{s_spin}, s{s_spin}, 1
    s_waitcnt vmcnt(0)
    v_cmp_gt_u32 vcc, {target}, v{vtmp}
    s_cbranch_scc1 {label}_done
    s_cbranch_vccnz {label}
{label}_done:"""))
    p("s_mov_b64 exec, -1")
    p("s_waitcnt vmcnt(0)")


def spread(vm, start, step):
    fill, pos = {}, start
    for ins in vm:
        fill.setdefault(pos, []).append(ins)
        if ins.kind == 'vmem':
            pos += step
    return fill


def zz(f, nt, nk, on=True):
    if not on:
        return [(t, k) for t in range(nt) for k in range(nk)]
    ts = list(range(nt)) if f % 2 == 0 else list(range(nt - 1, -1, -1))
    return [(t, k if n % 2 == 0 else nk - 1 - k) for n, t in enumerate(ts) for k in range(nk)]


def code_touch(tag, first, last, lines, vtmp, vdst):
    return f"""    s_getpc_b64 s[74:75]
{tag}:
    s_lshr_b32 s{s_t0}, s2, 3
    s_lshl_b32 s{s_t0}, s{s_t0}, 2
    s_add_u32 s{s_t0}, s{s_t0}, s{s_w}
    s_mul_i32 s{s_t0}, s{s_t0}, {128 * lines}
    s_min_u32 s{s_t0}, s{s_t0}, {last}-{first}
    s_sub_u32 s74, s74, {tag}-{first}
    s_subb_u32 s75, s75, 0
    v_min_u32 v{vtmp}, {lines - 1}, v0
    v_lshl_add_u32 v{vtmp}, v{vtmp}, 7, s{s_t0}
    global_load_dword v{vdst}, v{vtmp}, s[74:75]
"""


def gen_fused(name, o):
    ZZ = o.get('zz', True)
    dbg = o.get('dbg', '')
    SLEEP[0] = o.get('sleep', 0)
    PFL[:] = o.get('pfl', PFL)
    KVSC = 'sc1' if o.get('kvsc1', False) else ''
    outl = []

    def spin2(label, level, ld, v):
        outl.append(Raw(f"""{label}:
    s_cmp_eq_u32 s{s_spin}, 0
    s_cbranch_scc1 {label}_done
    s_sub_u32 s{s_spin}, s{s_spin}, 1
    {ld}
    s_waitcnt vmcnt(0)
    v_cmp_gt_u32 vcc, {level}, v{v}
    s_nop 0
    s_cbranch_vccnz {label}
    s_branch {label}_done"""))
        return f"""    v_cmp_gt_u32 vcc, {level}, v{v}
    s_nop 0
    s_cbranch_vccnz {label}
{label}_done:"""
    p = Prog()
    main = p.segment()
    p(f"""
    s_cmp_ge_u32 s2, 256
    s_cbranch_scc1 {name}_end
    s_load_dwordx16 s[4:19], s[0:1], 0
    s_load_dwordx8 s[20:27], s[0:1], 64
    v_lshrrev_b32 v1, 6, v0
    v_and_b32 v0, 63, v0
    v_readfirstlane_b32 s{s_w}, v1
    s_and_b32 s{s_t0}, s2, 7
    s_lshr_b32 s{s_t1}, s2, 3
    s_lshr_b32 s{s_b}, s{s_t0}, 1
    s_lshl_b32 s{s_b}, s{s_b}, 2
    s_and_b32 s{s_j}, s{s_t1}, 3
    s_add_u32 s{s_b}, s{s_b}, s{s_j}
    s_and_b32 s{s_j}, s{s_t0}, 1
    s_lshl_b32 s{s_j}, s{s_j}, 3
    s_lshr_b32 s{s_t1}, s{s_t1}, 2
    s_add_u32 s{s_j}, s{s_j}, s{s_t1}
    {f"s_xor_b32 s{s_j}, s{s_j}, {o['jxor']}" if o.get('jxor') else ''}
    s_lshl_b32 s{s_tok}, s{s_b}, 2
    s_add_u32 s{s_tok}, s{s_tok}, s{s_w}
    s_lshl_b32 s{s_tok}, s{s_tok}, 5
    v_lshlrev_b32 v{vL16}, 4, v0
    v_cmp_eq_u32 vcc, 0, v0
    v_mov_b32 v{vOne}, 0x7ffffff0
    v_cndmask_b32 v{vZ}, v{vOne}, 0, vcc
    v_mov_b32 v{vOne}, 1
    """)

    R3 = o.get('rot3', False)
    SL = 24576
    RED, CSQ = 147456, 162816
    vt = 4
    vD = 12
    vD0 = 18
    vB = 22
    vA = 28
    vST = 34
    ONES = 36
    vRS = 40
    s_kv, s_xoff, s_woff, s_dm, s_pb, s_w6 = 61, 62, 63, 64, 65, 66
    s_hd, s_wdo, s_wm0, s_po, s_pk, s_ko, s_vo, s_pj = 67, 68, 69, 70, 71, 72, 73, 3
    p(f"""
    v_lshrrev_b32 v{vt}, 3, v0
    v_lshrrev_b32 v{vt+1}, 4, v0
    v_and_b32 v{vt+2}, 7, v0
    v_xor_b32 v{vt+3}, v{vt+1}, v{vt+2}
    v_lshlrev_b32 v{vt+3}, 4, v{vt+3}
    v_lshl_add_u32 v{vt+3}, v{vt}, 11, v{vt+3}
    v_xor_b32 v{vt+4}, 64, v{vt+3}
    v_add_u32 v{vD}, 4096, v{vt+3}
    v_add_u32 v{vD+1}, {16384 + 4096 - 1024}, v{vt+4}
    v_add_u32 v{vD0}, {128 + 4096 - 2048}, v{vt+3}
    v_add_u32 v{vD0+1}, {16384 + 128 + 4096 - 3072}, v{vt+4}
    v_lshrrev_b32 v{vt+5}, 5, v0
    v_lshlrev_b32 v{vt+5}, 1, v{vt+5}
    v_xor_b32 v{vt+5}, v{vt+5}, v0
    v_lshlrev_b32 v{vD0+2}, 4, v{vt+5}
    v_add_u32 v{vD+2}, {32768 + 4096 - 2048}, v{vt+3}
    v_add_u32 v{vD+3}, {32768 + 16384 + 4096 - 3072}, v{vt+4}
    v_and_b32 v{vt+1}, 1, v{vt+1}
    v_lshlrev_b32 v{vt+1}, 1, v{vt+1}
    v_xor_b32 v{vt+1}, v{vt+1}, v{vt+2}
    v_lshlrev_b32 v{vt+1}, 4, v{vt+1}
    v_lshl_add_u32 v{vD+4}, v{vt}, 11, v{vt+1}
    v_xor_b32 v{vD+5}, 64, v{vD+4}
    v_add_u32 v{vD+5}, {8*2048 - 1024}, v{vD+5}
    s_lshr_b32 s{s_t0}, s{s_j}, 1
    s_lshl_b32 s{s_kv}, s{s_b}, 3
    s_add_u32 s{s_kv}, s{s_kv}, s{s_t0}
    s_lshl_b32 s{s_kv}, s{s_kv}, 4
    s_lshl_b32 s{s_t0}, s{s_kv}, 11
    s_lshl_b32 s{s_t1}, s{s_w}, 9
    s_add_u32 s{s_t0}, s{s_t0}, s{s_t1}
    s_add_u32 s{s_t1}, s{s_w}, 2
    s_mul_i32 s{s_dm}, s{s_t1}, {SL}
    s_mov_b32 m0, s{s_dm}
    s_mul_i32 s{s_xoff}, s{s_b}, {128 * o.get('rotb', 4)}
    s_mul_i32 s{s_woff}, s{s_j}, {128 * o.get('rotj', 2)}
    s_add_u32 s{s_xoff}, s{s_xoff}, s{s_woff}
    s_and_b32 s{s_xoff}, s{s_xoff}, 2047
    s_mul_i32 s{s_w6}, s{s_w}, 6144
    s_lshl_b32 s{s_ko}, s{s_w}, 14
    s_bfe_u32 s{s_vo}, s{s_j}, 0x20001
    s_lshl_b32 s{s_vo}, s{s_vo}, 14
    s_and_b32 s{s_t1}, s{s_tok}, 0x1e0
    s_lshl_b32 s{s_t1}, s{s_t1}, 5
    s_add_u32 s{s_vo}, s{s_vo}, s{s_t1}
    v_lshlrev_b32 v{vt+6}, 7, v0
    """)
    srd(p, sA, pX, S * D * 2 + 4096, bias=-4096)
    p.add(Raw("; @fine 4"))
    p(f"""
    s_bitcmp0_b32 s{s_j}, 0
    s_cselect_b64 s[{sB}:{sB+1}], s[{pWK}:{pWK+1}], s[{pWV}:{pWV+1}]
    s_mov_b32 s{sB+2}, {D * 64}
    s_mov_b32 s{sB+3}, 0x20000
    """)
    if o.get('kvtouch', True):
        p("s_mov_b64 exec, 0xff")
        p(f"buffer_load_dword v255, v{vt+6}, s[{sB}:{sB+3}], s{s_vo} offen", nowaw=True)
        p.cur[-1].awr = set()
        p("s_mov_b64 exec, -1")
    xo = [vD, vD + 1, vD0, vD0 + 1]
    for n in range(8):
        if n == 4:
            p(f"s_add_u32 m0, m0, 4096\ns_add_u32 s{s_t0}, s{s_t0}, 256")
        p(f"buffer_load_dwordx4 v{xo[n & 3]}, s[{sA}:{sA+3}], s{s_t0} offen offset:{(n & 3) * 1024} lds", awr=['P00'], nowaw=True)

    def wkv(q):
        p("s_add_u32 m0, m0, 4096")
        if q: p(f"s_add_u32 s{s_ko}, s{s_ko}, 4096")
        for i in range(4):
            p(f"buffer_load_dwordx4 v{vD0+2}, s[{sB}:{sB+3}], s{s_ko} offen offset:{i*1024} lds", awr=[f'P0{q}'], nowaw=True)
    EARLY = o.get('early', 0)
    for q in range(EARLY): wkv(q)
    if o.get('sipf', 2):
        p(f"""
        s_getpc_b64 s[0:1]
        s_lshr_b32 s{s_t0}, s2, 3
        s_lshl_b32 s{s_t0}, s{s_t0}, 2
        s_add_u32 s{s_t0}, s{s_t0}, s{s_w}
        s_lshl_b32 s{s_t0}, s{s_t0}, 7
        s_add_u32 s0, s0, s{s_t0}
        s_addc_u32 s1, s1, 0
        s_and_b32 s0, s0, 0xffffff80
        s_load_dword s{s_spin}, s[0:1], 0""")
        if o.get('sipf', 2) == 2: p(f"s_load_dword s{s_cnt}, s[0:1], 64")
    p.add(Raw("; @fine 5"))
    p(f"""
    s_lshl_b32 s{s_t0}, s{s_tok}, 11
    s_lshl_b32 s{s_t1}, s{s_w}, 15
    s_lshl_b32 s{s_t2}, s{s_j}, 7
    s_add_u32 s{s_t1}, s{s_t1}, s{s_t2}
    """)
    srd(p, sC, pX, 32 * 2048 + 4096, off=s_t0, bias=-4096)
    srd(p, sD, pWQ, f"s_sub_u32 {{d}}, {D * D * 2}, s{s_t1}", off=s_t1)

    def dma1(m0expr, tag):
        o_ = [Ins(m0expr), Ins(f"s_lshl_b32 s{s_woff}, s{s_xoff}, 10")]
        for i in range(4):
            o_.append(Ins(f"buffer_load_dwordx4 v{vD+i}, s[{sC}:{sC+3}], s{s_xoff} offen offset:{i*1024} lds", awr=[tag], nowaw=True))
        o_ += [Ins("s_add_u32 m0, m0, 4096"), Ins(f"s_add_u32 s{s_xoff}, s{s_xoff}, 128")]
        for i in range(2):
            o_.append(Ins(f"buffer_load_dwordx4 v{vD+4+i}, s[{sD}:{sD+3}], s{s_woff} offen offset:{i*1024} lds", awr=[tag], nowaw=True))
        o_.append(Ins(f"s_and_b32 s{s_xoff}, s{s_xoff}, 2047"))
        return o_
    if o.get('qtouch', True):
        srd(p, sE, pWQ, D * D * 2)
        p(f"""
        s_lshr_b32 s{s_t0}, s2, 3
        s_lshl_b32 s{s_t0}, s{s_t0}, 2
        s_add_u32 s{s_t0}, s{s_t0}, s{s_w}
        s_lshl_b32 s{s_t0}, s{s_t0}, 14
        s_and_b32 s{s_t1}, s{s_j}, 8
        s_lshl_b32 s{s_t1}, s{s_t1}, 7
        s_add_u32 s{s_t0}, s{s_t0}, s{s_t1}
        v_lshlrev_b32 v{vt+6}, 11, v0
        s_mov_b64 exec, 0xff""")
        p(f"buffer_load_dword v255, v{vt+6}, s[{sE}:{sE+3}], s{s_t0} offen offset:384", nowaw=True)
        p.cur[-1].awr = set()
        if o.get('qlin', True):
            p(f"""
            s_lshl_b32 s{s_t0}, s2, 2
            s_add_u32 s{s_t0}, s{s_t0}, s{s_w}
            s_lshl_b32 s{s_t0}, s{s_t0}, 11
            s_mov_b64 exec, 0xffff
            v_lshlrev_b32 v{vt+6}, 7, v0""")
            p(f"buffer_load_dword v255, v{vt+6}, s[{sE}:{sE+3}], s{s_t0} offen", nowaw=True)
            p.cur[-1].awr = set()
        p("s_mov_b64 exec, -1")
    srd(p, sE, pWO, D * D * 2)

    srd(p, sT, pWS, ST[1], bias=ST[0])
    srd(p, sA, pWS, KV[1], bias=KV[0])
    p(f"""
    v_and_b32 v{vt}, 15, v0
    v_lshrrev_b32 v{vt+1}, 1, v{vt}
    v_lshrrev_b32 v{vt+2}, 4, v0
    v_xor_b32 v{vt+1}, v{vt+1}, v{vt+2}
    v_lshlrev_b32 v{vt+1}, 4, v{vt+1}
    v_lshl_add_u32 v{vt+1}, v{vt}, 7, v{vt+1}
    v_xor_b32 v{vt+3}, 64, v{vt+1}
    v_add_u32 v{vB}, s{s_w6}, v{vt+1}
    v_add_u32 v{vB+1}, s{s_w6}, v{vt+3}
    v_add_u32 v{vA}, s{s_dm}, v{vt+1}
    v_add_u32 v{vA+1}, s{s_dm}, v{vt+3}
    v_lshrrev_b32 v{vt}, 5, v0
    v_and_b32 v{vt+1}, 3, v0
    v_lshlrev_b32 v{vt+1}, 3, v{vt+1}
    v_bfe_u32 v{vt+2}, v0, 2, 2
    v_bfe_u32 v{vt+3}, v0, 4, 1
    v_lshl_add_u32 v{vt+2}, v{vt+3}, 3, v{vt+2}
    v_lshl_add_u32 v{vt+4}, v{vt}, 10, v{vt+1}
    v_lshl_add_u32 v{vt+4}, v{vt+2}, 6, v{vt+4}
    v_lshl_add_u32 v{vt+4}, v{vt+3}, 5, v{vt+4}
    v_add_u32 v{vA+2}, s{s_dm}, v{vt+4}
    v_xor_b32 v{vA+3}, 32, v{vA+2}
    v_mul_u32_u24 v{vt}, 6144, v{vt}
    v_add_u32 v{vt}, v{vt}, v{vt+1}
    v_lshl_add_u32 v{vt}, v{vt+2}, 7, v{vt}
    v_bfe_u32 v{vt+4}, v0, 3, 2
    v_xor_b32 v{vt+4}, s{s_w}, v{vt+4}
    v_lshl_add_u32 v{vB+2}, v{vt+4}, 5, v{vt}
    v_xor_b32 v{vB+3}, 32, v{vB+2}
    v_xor_b32 v{vB+4}, 64, v{vB+2}
    v_xor_b32 v{vB+5}, 0x60, v{vB+2}
    """)
    for i in range(4):
        p(f"v_mov_b32 v{ONES+i}, 0x3f803f80")
    on = rr('v', ONES, 4)
    AB = 48
    CSA = 80
    PA = 84
    FB = 128
    TR = 112
    NR = 8
    Q = lambda x, m: rr('v', 16 + x * 8 + m * 4, 4) if x < 2 else rr('a', 112 + (x - 2) * 8 + m * 4, 4)
    Sb = lambda x: 64 + 16 * x
    RSV = 112
    Nb = lambda x: 144 + 16 * x
    Ob = lambda x: 176 + 16 * x if x < 2 else 144 + 16 * (x - 2)
    Lb = lambda x: 208 + 4 * x if x < 2 else 96 + 4 * (x - 2)
    XT = 131072
    Pb = lambda x: 216 + 8 * x
    SEL, vWD, vPF, vDum, vOS, vPW, vCS, vGP, vMA, vRA, vXS, vXR, vXA = 232, 236, 240, 241, 242, 243, 244, 245, 246, 247, 248, 249, 250

    def att_init(nr):
        for i in list(range(Ob(0), Lb(1) + 4, 2)) + list(range(Pb(1), Pb(1) + 8, 2)):
            p(f"v_pk_mov_b32 {rr('v', i, 2)}, 0, 0")
        for i in range(8): p(f"v_accvgpr_write_b32 a{64 + (nr-1)*8 + i}, 0")
    for i in range(AB, CSA + 4, 2):
        p(f"v_pk_mov_b32 {rr('v', i, 2)}, 0, 0")
    p.add(Raw(f"""    s_or_b32 s{s_t0}, s2, s{s_w}
    s_cbranch_scc1 {name}_noclr
    s_movk_i32 s{s_t0}, {ST_KVC}
""" + "".join(f"    buffer_store_dwordx4 {rr('v', AB, 4)}, v{vL16}, s[{sT}:{sT+3}], s{s_t0} offen offset:{i*1024} sc1\n" for i in range(4)) + f"{name}_noclr:"))
    att_init(4)
    p(f"""
    v_lshrrev_b32 v{vt}, 2, v0
    v_and_b32 v{vt}, 4, v{vt}
    v_xor_b32 v{vt}, v{vt}, v0
    v_and_b32 v{vt}, 7, v{vt}
    v_cmp_eq_u32 vcc, 0, v{vt}
    v_lshrrev_b32 v{vt}, 3, v0
    v_and_b32 v{vt+1}, 6, v{vt}
    v_cndmask_b32 v{SEL}, 0, v{ONES}, vcc
    v_mov_b32 v{SEL+1}, v{SEL}
    v_mov_b32 v{SEL+2}, v{SEL}
    v_mov_b32 v{SEL+3}, v{SEL}
    v_and_b32 v{vt+2}, 7, v0
    v_xor_b32 v{vt+1}, v{vt+1}, v{vt+2}
    v_lshlrev_b32 v{vt+1}, 4, v{vt+1}
    v_lshl_add_u32 v{vWD}, v{vt}, 11, v{vt+1}
    v_add_u32 v{vWD+1}, {8*2048 - 1024}, v{vWD}
    v_add_u32 v{vWD+2}, {16*2048 - 2048}, v{vWD}
    v_add_u32 v{vWD+3}, {24*2048 - 3072}, v{vWD}
    s_lshl_b32 s{s_wdo}, s{s_w}, 16
    s_lshl_b32 s{s_t1}, s{s_j}, 7
    s_add_u32 s{s_wdo}, s{s_wdo}, s{s_t1}
    s_lshl_b32 s{s_wm0}, s{s_w}, 12
    {f's_and_b32 s{s_t0}, s{s_j}, 1' if R3 else ''}
    {f's_lshl_b32 s{s_t0}, s{s_t0}, 16' if R3 else ''}
    {f's_add_u32 s{s_wm0}, s{s_wm0}, s{s_t0}' if R3 else ''}
    s_lshl_b32 s{s_pj}, s{s_tok}, 6
    s_add_u32 s{s_pj}, s{s_pj}, s{s_t1}
    s_lshl_b32 s{s_hd}, s{s_j}, 1
    s_lshr_b32 s{s_t0}, s{s_w}, 1
    s_add_u32 s{s_hd}, s{s_hd}, s{s_t0}
    v_mul_u32_u24 v{vt}, 9363, v0
    v_lshrrev_b32 v{vt}, 16, v{vt}
    v_mul_u32_u24 v{vt+1}, {7168 - 7*128}, v{vt}
    v_cmp_gt_u32 vcc, 14, v0
    v_lshl_add_u32 v{vPF}, v0, 7, v{vt+1}
    s_lshr_b32 s{s_t0}, s2, 3
    v_cndmask_b32 v{vPF}, -1, v{vPF}, vcc
    v_and_b32 v{vPF}, 0x7fffff80, v{vPF}
    s_lshl_b32 s{s_t0}, s{s_t0}, 2
    s_add_u32 s{s_t0}, s{s_t0}, s{s_w}
    s_mul_i32 s{s_pk}, s{s_t0}, {2 * 7168}
    s_and_b32 s{s_t0}, s2, 7
    s_mul_i32 s{s_t0}, s{s_t0}, 896
    s_add_u32 s{s_pk}, s{s_pk}, s{s_t0}
    v_and_b32 v{vt}, 15, v0
    v_bfe_u32 v{vt+1}, v0, 4, 1
    v_lshrrev_b32 v{vt+2}, 5, v0
    v_lshrrev_b32 v{vt+3}, 4, v0
    v_lshlrev_b32 v{vMA}, 3, v{vt}
    s_lshl_b32 s{s_t0}, s{s_w}, 13
    s_add_u32 s{s_t0}, s{s_t0}, {XT}
    v_add_u32 v{vXS}, s{s_t0}, v{vL16}
    v_xor_b32 v{vXR}, 0x2000, v{vXS}
    v_lshrrev_b32 v{vt+4}, 1, v{vt}
    v_xor_b32 v{vt+4}, v{vt+4}, v{vt+2}
    v_lshlrev_b32 v{vt+4}, 4, v{vt+4}
    v_lshl_add_u32 v{vt+4}, v{vt}, 7, v{vt+4}
    v_lshl_add_u32 v{vt+4}, v{vt+1}, 3, v{vt+4}
    v_add_u32 v{vXA}, s{s_t0}, v{vt+4}
    s_and_b32 s{s_t1}, s{s_w}, 2
    s_lshl_b32 s{s_t1}, s{s_t1}, 6
    s_add_u32 s{s_t0}, s{s_t0}, s{s_t1}
    s_add_u32 s{s_t0}, s{s_t0}, 4096
    v_lshl_add_u32 v{vRA}, v{vt+2}, 4, s{s_t0}
    v_add_u32 v253, 8192, v{vL16}
    v_lshl_add_u32 v{vPW}, v{vt+3}, 2, v{vMA}
    v_lshlrev_b32 v{vt}, 4, v{vt}
    v_lshl_add_u32 v{vOS}, v{vt+1}, 15, v{vt}
    v_lshl_add_u32 v{vOS}, v{vt+2}, 8, v{vOS}
    s_lshl_b32 s{s_t0}, s{s_w}, 6
    s_add_u32 s{s_t0}, s{s_t0}, {CSQ}
    v_lshl_add_u32 v{vCS}, v{vt+3}, 4, s{s_t0}
    v_lshlrev_b32 v{vGP}, 5, v{vMA}
    s_bitcmp1_b32 s{s_j}, 0
    s_cselect_b32 s{s_t0}, 9, 10
    s_cselect_b32 s{s_t1}, 8, 9
    v_lshl_add_u32 v{vST}, v{vt+1}, s{s_t0}, v{vt}
    v_lshl_add_u32 v{vST}, v{vt+2}, s{s_t1}, v{vST}
    s_mul_i32 s{s_t0}, s{s_w}, 5120
    s_add_u32 s{s_t0}, s{s_t0}, {RED - 5120}
    v_add_u32 v{vST+1}, s{s_t0}, v{vL16}
    v_and_b32 v{vt}, 3, v0
    v_cmp_eq_u32 s[0:1], 1, v{vt}
    v_cmp_eq_u32 s[14:15], 2, v{vt}
    v_cmp_eq_u32 s[74:75], 3, v{vt}
    v_bfe_u32 v{vt}, v0, 2, 2
    v_cmp_eq_u32 vcc, v{vt}, v{vt+3}
    """)
    SMF = o.get('smf', True)
    vIX = 252
    if SMF:
        p(f"""
        v_and_b32 v{vt+5}, 6, v0
        v_cmp_eq_u32 s[{sB}:{sB+1}], 0, v{vt+5}
        """.replace(f"s[{sB}:{sB+1}]", "s[76:77]" if False else "s[58:59]"))
        p(f"""
        v_cndmask_b32 v{SEL}, 0, v{ONES}, s[58:59]
        v_cndmask_b32 v{SEL+1}, 0, v{ONES}, s[58:59]
        v_cmp_eq_u32 s[58:59], 4, v{vt+5}
        v_and_b32 v{vIX}, 1, v0
        v_mul_u32_u24 v{vIX}, 0xaaaa, v{vIX}
        v_cndmask_b32 v{SEL+2}, 0, v{ONES}, s[58:59]
        v_cndmask_b32 v{SEL+3}, 0, v{ONES}, s[58:59]
        v_add_u32 v{vIX}, 0x4444, v{vIX}""")
    smf = lambda x: f"v_smfmac_f32_16x16x64_bf16 {rr('v', Lb(x), 4)}, {rr('v', SEL, 4)}, {rr('v', Pb(x & 1), 8)}, v{vIX}"
    for q in range(EARLY, 4): wkv(q)
    srd(p, sB, pDBG, 256)
    p.add(Raw("; @stamp 0"))
    X0 = lambda G: rr('a', FB + 4 * G, 4)
    W0 = lambda G, e: rr('a', FB + 32 + (G * 2 + e) * 4, 4)
    acc0 = lambda k: rr('v', PA + 4 * k, 4)

    def rd0(q):
        o_ = []
        for G in (2 * q, 2 * q + 1):
            o_.append(Ins(f"ds_read_b128 {X0(G)}, v{vA + (G & 1)} offset:{q * 2048}", rd=[f'P0{q}']))
            o_ += [Ins(f"ds_read_b64_tr_b16 {rr('a', FB + 32 + (G*2+e)*4 + 2*b, 2)}, v{vA+2+e} offset:{8192 + G*2048 + b*256}")
                   for e in range(2) for b in range(2)]
        return o_

    def mf0(q):
        o_ = []
        for G in (2 * q, 2 * q + 1):
            c = "0" if G == 0 else None
            o_ += [mf16(acc0(4), on, X0(G), c), mf16(acc0(5), X0(G), X0(G), c), mf16(acc0(0), W0(G, 0), X0(G), c),
                   mf16(acc0(2), W0(G, 0), on, c), mf16(acc0(1), W0(G, 1), X0(G), c), mf16(acc0(3), W0(G, 1), on, c)]
        return o_
    p.add(rd0(0))
    p.add(Raw("; @fine 6"))
    later = dma1(f"s_mov_b32 m0, s{s_w6}", 'L0') + dma1(f"s_add_u32 m0, s{s_w6}, {SL}", 'Lx')

    def some(k):
        n = 0
        while later and n < k:
            x = later.pop(0); p.add(x); n += x.kind == 'vmem'
    RSA = PA + 24
    for q in range(4):
        rds = rd0(q + 1) if q < 3 else []
        for i, m in enumerate(mf0(q)):
            p(m)
            if rds: p.add(rds.pop(0))
            if i % 4 == 1: some(1)
    assert EARLY < 4
    p.add(Raw(f"""    s_or_b32 s{s_t0}, s2, s{s_w}
    s_cbranch_scc1 {name}_nordy
    buffer_store_dword v{vOne}, v{vZ}, s[{sB}:{sB+3}], 0 offen sc1
{name}_nordy:"""))
    some(99)
    p.add(Raw("; @fine 7"))
    g = PA + 20
    p(f"""
    v_cndmask_b32 v{g}, v{g}, v{g+1}, s[0:1]
    v_cndmask_b32 v{g}, v{g}, v{g+2}, s[14:15]
    v_cndmask_b32 v{g}, v{g}, v{g+3}, s[74:75]
    v_cndmask_b32 v{PA+17}, 0, v{g}, vcc
    s_cmp_eq_u32 s{s_w}, 0
    s_cbranch_scc1 {name}_p0fin
    """)
    red_w = p.segment()
    for k in (4, 0, 2, 1, 3):
        p(f"ds_write_b128 v{vST+1}, {acc0(k)} offset:{k*1024}")
    p("s_waitcnt lgkmcnt(0)")
    p("s_barrier")
    p(f"s_branch {name}_p1")
    fin = p.segment()
    p(f"{name}_p0fin:")
    p(f"""
    s_mov_b32 s{s_t1}, {f32hex(1.0/1024)}""")
    p("s_barrier")
    for k in (4, 0, 2, 1, 3):
        for w in range(3):
            p(f"ds_read_b128 {rr('v', TR + (k*3+w)*4, 4)}, v{vST+1} offset:{5120*(w+1) + k*1024}")

    def red(k):
        a, b = PA + 4 * k, TR + k * 12
        for h in (0, 2):
            p(f"v_pk_add_f32 {rr('v', a+h, 2)}, {rr('v', a+h, 2)}, {rr('v', b+h, 2)}")
            p(f"v_pk_add_f32 {rr('v', b+4+h, 2)}, {rr('v', b+4+h, 2)}, {rr('v', b+8+h, 2)}")
        for h in (0, 2):
            p(f"v_pk_add_f32 {rr('v', a+h, 2)}, {rr('v', a+h, 2)}, {rr('v', b+4+h, 2)}")
    vM, vR = PA + 20, PA + 21
    d = PA + 24
    red(4)
    xsum16_32(p, f"v{PA+17}", f"v{vt}")
    p(f"""
    v_mul_f32 v{vM}, s{s_t1}, v{PA+16}
    v_mul_f32 v{vt}, v{vM}, v{vM}
    v_fma_f32 v{vt}, v{PA+17}, s{s_t1}, -v{vt}
    v_max_f32 v{vt}, 0, v{vt}
    v_add_f32 v{vt}, {f32hex(1e-5)}, v{vt}
    v_rsq_f32 v{vR}, v{vt}
    s_lshr_b32 s{s_t0}, s{s_kv}, 5
    s_lshl_b32 s{s_t0}, s{s_t0}, 12
    s_bfe_u32 s{s_t1}, s{s_kv}, 0x10004
    """)
    mr = rr('v', vM, 2)
    for e in range(2):
        red(e); red(2 + e)
        a = PA + 4 * e
        for r in (0, 2): p(f"v_pk_fma_f32 {rr('v', a+r, 2)}, {rr('v', a+8+r, 2)}, {mr}, {rr('v', a+r, 2)} op_sel_hi:[1,0,1] neg_lo:[0,1,0] neg_hi:[0,1,0]")
        for r in (0, 2): p(f"v_pk_mul_f32 {rr('v', a+r, 2)}, {rr('v', a+r, 2)}, {mr} op_sel:[0,1]")
        p(f"v_cvt_pk_bf16_f32 v{d+2*e}, v{a}, v{a+1}")
        p(f"v_cvt_pk_bf16_f32 v{d+2*e+1}, v{a+2}, v{a+3}")
    p(f"""
    s_bitcmp1_b32 s{s_j}, 0
    s_cbranch_scc1 {name}_p0v
    """)
    fin_k = p.segment()
    p(f"""
    s_lshl_b32 s{s_t1}, s{s_t1}, 8
    s_add_u32 s{s_t0}, s{s_t0}, s{s_t1}
    buffer_store_dwordx4 {rr('v', d, 4)}, v{vST}, s[{sA}:{sA+3}], s{s_t0} offen sc1
    s_lshl_b32 s{s_t0}, s{s_kv}, 3
    s_mov_b64 exec, 0xffff
    buffer_store_dwordx2 {mr}, v{vMA}, s[{sT}:{sT+3}], s{s_t0} offen offset:{ST_MR} sc1
    s_mov_b64 exec, -1
    s_branch {name}_p1""")
    fin_v = p.segment()
    p(f"""
    {name}_p0v:
    v_lshrrev_b32 v{vt+1}, 4, v0
    v_add_u32 v{vt}, v{vt+1}, v{vMA}
    v_lshlrev_b32 v{vt}, 3, v{vt}
    v_add_u32 v{vt}, {RED}, v{vt}
    ds_write_b64 v{vt}, {rr('v', d, 2)}
    ds_write_b64 v{vt}, {rr('v', d+2, 2)} offset:32
    v_lshrrev_b32 v{vt+3}, 2, v0
    v_lshlrev_b32 v{vt+3}, 6, v{vt+3}
    v_and_b32 v{vt+4}, 3, v0
    v_lshl_add_u32 v{vt+3}, v{vt+4}, 3, v{vt+3}
    v_add_u32 v{vt+3}, {RED}, v{vt+3}
    ds_read_b64_tr_b16 {rr('v', PA, 2)}, v{vt+3}
    ds_read_b64_tr_b16 {rr('v', PA+2, 2)}, v{vt+3} offset:32
    s_lshl_b32 s{s_t1}, s{s_t1}, 10
    s_add_u32 s{s_t0}, s{s_t0}, s{s_t1}
    v_permlane32_swap_b32 v{PA}, v{PA+2}
    v_permlane32_swap_b32 v{PA+1}, v{PA+3}
    buffer_store_dwordx4 {rr('v', PA, 4)}, v{vST}, s[{sA}:{sA+3}], s{s_t0} offen offset:2048 sc1
    """)

    rest = p.segment()
    p(f"{name}_p1:")
    p.add(Raw("; @stamp 1"))
    ACC = lambda F, t: rr('v', AB + (F * 2 + t) * 4, 4)
    X1 = lambda s, t, g: rr('a', FB + s * 48 + (t * 2 + g) * 4, 4)
    W1 = lambda s, F, g: rr('a', FB + s * 48 + 16 + (F * 2 + g) * 4, 4)

    def reads1(s, base, va):
        xr = lambda t, g: Ins(f"ds_read_b128 {X1(s, t, g)}, v{va+g} offset:{base + t*2048}")
        wr = lambda F, g, b: Ins(f"ds_read_b64_tr_b16 {rr('a', FB + s*48 + 16 + (F*2+g)*4 + 2*b, 2)}, v{va+2+F} offset:{base + 2*g*6144 + 4096 + b*512}")
        return [wr(0, 0, 0), wr(0, 0, 1), wr(0, 1, 0), wr(0, 1, 1), xr(0, 0), xr(0, 1), xr(1, 0), xr(1, 1)] + \
               [wr(F, g, b) for F in range(1, 4) for g in range(2) for b in range(2)]
    p(f"""
    s_lshl_b32 s{s_t0}, s2, 2
    s_add_u32 s{s_t0}, s{s_t0}, s{s_w}
    s_lshl_b32 s{s_t0}, s{s_t0}, 10
    s_add_u32 s{s_t0}, s{s_t0}, {ST_FO}
    buffer_store_dwordx4 {rr('v', AB, 4)}, v{vL16}, s[{sT}:{sT+3}], s{s_t0} offen sc1""")
    p.add(Raw(f"""    s_cmp_ge_u32 s2, 2
    s_cbranch_scc1 {name}_nogz
    s_sub_u32 s{s_t0}, s{s_t0}, {ST_FO - ST_RS2}
    buffer_store_dwordx4 {rr('v', AB, 4)}, v{vL16}, s[{sT}:{sT+3}], s{s_t0} offen sc1
{name}_nogz:"""))
    rdy = f"buffer_load_dword v{vt+5}, v{vZ}, s[{sB}:{sB+3}], 0 offen sc1"
    LA = o.get('la1', 4)
    for u in range(2, LA):
        if u == 2: p.add(Raw(f"    s_cmp_lg_u32 s{s_w}, 0\n    s_cbranch_scc1 {name}_nor\n    {rdy}\n{name}_nor:"))
        p.add(dma1(f"s_add_u32 m0, s{s_w6}, {u*SL}", 'Lx'))
    for i in range(Ob(2), Ob(2) + 32, 2):
        p(f"v_pk_mov_b32 {rr('v', i, 2)}, 0, 0")
    p.add(Raw("; @fine 8"))
    p("s_barrier", rd=['L0'])
    p.add(Raw("; @fine 9"))
    p.add(reads1(0, 0, vB))
    for i in range(6):
        p(f"v_mov_b32 v{vA+i}, v{vB+i}")
    p(f"""
    s_mov_b32 s{s_pb}, {2 * SL}
    s_add_u32 s{s_dm}, s{s_w6}, {2 * 2 * SL}
    s_and_b32 s{s_kv}, s2, 15
    s_lshl_b32 s{s_kv}, s{s_kv}, 8
    s_add_u32 s{s_kv}, s{s_kv}, {ST_KVC}
    s_mov_b32 s{s_spin}, {SPIN}
    s_lshl_b32 s{s_t2}, s{s_w}, 8
    s_add_u32 s{s_t2}, s{s_t2}, {10 - LA}
    s_mov_b32 s{s_cnt}, {10 - LA}""")

    def stage1(s, head, fill, rds):
        mf = [mf16(rr('v', CSA, 4), W1(s, 0, g), on) for g in range(2)]
        for F in range(4):
            mf += [mf16(ACC(F, t), W1(s, F, g), X1(s, t, g)) for t, g in zz(F, 2, 2, ZZ)]
        p.add(head)
        rds = list(rds)
        for i, m in enumerate(mf):
            if 'p1nomf' not in dbg: p(m)
            for _ in range(2 if i in (0, 1) else 1):
                if rds:
                    x = rds.pop(0)
                    if 'p1nods' not in dbg: p.add(x)
            p.add([x for x in fill.get(i, []) if not ('p1nodma' in dbg and getattr(x, 'kind', '') == 'vmem')])

    def one_per_gap(lst, start):
        return {start + i: [x] for i, x in enumerate(lst)}

    def spaced(lst):
        pos = [0, 1, 2, 5, 8, 11, 12, 13, 14, 17, 17]
        out = {}
        for k, x in zip(pos, lst): out.setdefault(k, []).append(x)
        return out
    upd = lambda: {3: [Ins(f"v_add_u32 v{vA+2}, s{s_pb}, v{vB+2}")], 6: [Ins(f"v_add_u32 v{vA}, s{s_pb}, v{vB}")],
                   7: [Ins(f"v_add_u32 v{vA+1}, s{s_pb}, v{vB+1}")], 10: [Ins(f"v_add_u32 v{vA+3}, s{s_pb}, v{vB+3}")],
                   15: [Ins(f"v_add_u32 v{vA+4}, s{s_pb}, v{vB+4}")], 17: [Ins(f"v_add_u32 v{vA+5}, s{s_pb}, v{vB+5}")]}
    nextpb = lambda: [Ins(f"s_add_u32 s{s_pb}, s{s_pb}, {2*SL}"), Ins(f"s_cmp_eq_u32 s{s_pb}, {6*SL}"), Ins(f"s_cselect_b32 s{s_pb}, 0, s{s_pb}")]

    def merge(*fs):
        out = {}
        for f in fs:
            for k, v in f.items(): out.setdefault(k, []).extend(v)
        return out
    sync = lambda n: [Ins(f"s_waitcnt vmcnt({n}) lgkmcnt(12)"), Ins("s_barrier")]
    s_nx = s_t0
    p(f"s_mov_b32 s{s_nx}, s{s_w6}")
    p.add(Raw("; @fine 10"))
    p.begin_loop(f"{name}_p1loop", 10 - LA, align=False)
    stage1(0, sync(6 * LA - 12), merge(spaced(dma1(f"s_add_u32 m0, s{s_dm}, {SL * (LA - 4)}", 'Lx')[:-1]), upd(), {16: [Ins(f"s_and_b32 s{s_xoff}, s{s_xoff}, 2047")]}), reads1(1, SL, vA))
    arr = Raw(f"""    s_cmp_lg_u32 s{s_cnt}, s{s_t2}
    s_cbranch_scc1 {name}_noarr
{name}_rchk:
    v_readfirstlane_b32 s{s_t1}, v{vt+5}
    s_sub_u32 s{s_spin}, s{s_spin}, 1
    s_cselect_b32 s{s_t1}, 1, s{s_t1}
    s_cmp_lg_u32 s{s_t1}, 0
    s_cbranch_scc1 {name}_arr
    {rdy}
    s_waitcnt vmcnt(0)
    s_branch {name}_rchk
{name}_arr:
    buffer_atomic_add v{vOne}, v{vZ}, s[{sT}:{sT+3}], s{s_kv} offen
{name}_noarr:""")
    stage1(1, sync(6 * LA - 12) + [arr], merge({3: [Ins(f"s_mov_b32 s{s_dm}, s{s_nx}")], 4: [Ins(f"s_add_u32 s{s_nx}, s{s_pb}, s{s_w6}")],
                                        6: nextpb()[:1], 7: nextpb()[1:], 9: [Ins(f"s_sub_u32 s{s_cnt}, s{s_cnt}, 1")],
                                        15: [Ins(f"s_and_b32 s{s_xoff}, s{s_xoff}, 2047")], 16: [Ins(f"s_cmp_lg_u32 s{s_cnt}, 0")]},
                                       spaced(dma1(f"s_mov_b32 m0, s{s_nx}" if LA == 5 else f"s_add_u32 m0, s{s_dm}, {SL}", 'Lx')[:-1])), reads1(0, 0, vA))
    p(f"s_cbranch_scc1 {name}_p1loop")
    p.end_loop()
    p.add(Raw("; @fine 11"))
    Kf = lambda b, m: rr('a', (b % NR) * 8 + m * 4, 4)
    Vf = lambda b, m: rr('a', 64 + (b % NR) * 8 + m * 4, 4)
    vMR = 84
    kld = lambda b, m: Ins(f"buffer_load_dwordx4 {Kf(b, m)}, v{vL16}, s[{sA}:{sA+3}], s{s_ko} offen offset:{m*1024} {KVSC}")
    vld = lambda b, m: Ins(f"buffer_load_dwordx4 {Vf(b, m)}, v{vL16}, s[{sA}:{sA+3}], s{s_vo} offen offset:{2048 + m*1024} {KVSC}")

    vK2 = 253
    kld2 = lambda b, m: Ins(f"buffer_load_dwordx4 {Kf(b, m)}, v{vK2}, s[{sA}:{sA+3}], s{s_vo} offen offset:{m*1024} {KVSC}")

    def kv_list():
        o_ = [Ins(f"s_mov_b32 s{s_ko}, 0"), Ins(f"s_mov_b32 s{s_vo}, 0")]
        for b in range(NR):
            o_ += [kld(b, 0), kld(b, 1), Ins(f"s_add_u32 s{s_ko}, s{s_ko}, 4096")]
            if b < NR - 2:
                o_ += [vld(b, 0), vld(b, 1), Ins(f"s_add_u32 s{s_vo}, s{s_vo}, 4096")]
        return o_

    def fill_kv():
        p.add(kv_list())
    gl = f"buffer_load_dword v{vt+5}, v{vGP}, s[{sT}:{sT+3}], s{s_kv} offen sc1"
    if LA == 5: stage1(0, sync(18), merge(spaced(dma1(f"s_add_u32 m0, s{s_dm}, {SL}", 'Lx')[:-1]), upd(), {16: [Ins(f"s_and_b32 s{s_xoff}, s{s_xoff}, 2047")]}), reads1(1, SL, vA))
    gp = Raw(f"""    s_branch {name}_gchk
{name}_gpoll:
    {gl}
    s_waitcnt vmcnt(0)
{name}_gchk:
    v_cmp_gt_u32 vcc, 16, v{vt+5}
    s_sub_u32 s{s_spin}, s{s_spin}, 1
    s_cbranch_scc1 {name}_gdone
    s_cbranch_vccnz {name}_gpoll
{name}_gdone:""")
    todo = [Ins(f"buffer_load_dwordx2 {rr('v', vMR+2*t, 2)}, v{vMA}, s[{sT}:{sT+3}], s{s_t0} offen offset:{ST_MR + 128*t} sc1") for t in range(2)]
    kv4 = lambda b, n: Ins(f"buffer_load_dwordx4 {(Kf, Vf)[n >> 1](b % 4, n & 1)}, v{vL16}, s[{sA}:{sA+3}], s{s_vo} offen offset:{n*1024} {KVSC}")
    todo += [Ins(f"s_and_b32 s{s_vo}, s{s_w}, 1"), Ins(f"s_lshl_b32 s{s_vo}, s{s_vo}, 17"), Ins(f"s_add_u32 s{sA+2}, s{s_vo}, 0x20000")]
    for b in range(3):
        todo += [kv4(b, n) for n in range(4)] + [Ins(f"s_add_u32 s{s_vo}, s{s_vo}, 4096")]
    todo.append(kv4(3, 0))

    def take(k):
        o_, n = [], 0
        while todo and n < k:
            x = todo.pop(0); o_.append(x); n += x.kind == 'vmem'
        return o_
    PS = o.get('pstage', 13)
    for u in range(16 - LA, 16):
        head = sync(6 * (14 - u)) if u < PS else [Raw("; @fine 12")] + sync(0) + [Raw("; @fine 13"), gp, Raw("; @fine 14")] if u == PS else []
        fill = {11: one_per_gap(nextpb(), 8), 12: upd(), 15: {10: [Ins(f"ds_write_b128 v{vCS}, {rr('v', CSA, 4)}")]}}.get(u, {})
        if u == PS - 1:
            fill = merge(fill, {2: [Ins(f"s_movk_i32 s{s_kv}, {ST_KVC}")], 4: [Ins(gl)], 5: [Ins(f"s_mov_b32 s{s_spin}, {SPIN}")],
                                11: [Ins(f"s_lshl_b32 s{s_t0}, s{s_tok}, 3")]})
        if u >= PS:
            fill = merge(fill, {i: take(1) for i in range(2, 18, 3 if PS < 14 else 2)})
        stage1(u & 1, head, fill, reads1(1 - (u & 1), 0 if u & 1 else SL, vA) if u < 15 else [])
    p.add(Raw("; @stamp 2"))

    p("s_waitcnt lgkmcnt(0)")
    p("s_barrier")
    CS = 88
    for f in range(4):
        if f: p(f"v_xor_b32 v{vt+f}, {f*64}, v{vCS}")
        p(f"ds_read_b128 {rr('v', CS + 4*f, 4)}, v{vt+f if f else vCS}")
    QP = 112
    for t in range(2):
        p(f"v_accvgpr_write_b32 a{aMEAN+t}, v{vMR+2*t}")
        p(f"v_mul_f32 v{vMR+2*t+1}, {f32hex(LOG2E * DH ** -0.5)}, v{vMR+2*t+1}")
    p(f"s_bitcmp1_b32 s{s_w}, 0\ns_cselect_b64 vcc, -1, 0")
    for hd in range(2):
        for t in range(2):
            mr = rr('v', vMR + 2 * t, 2)
            for f in range(2):
                F = 2 * hd + f
                a = AB + (F * 2 + t) * 4
                dq = QP + hd * 8 + t * 4 + 2 * f
                for r in (0, 2): p(f"v_pk_fma_f32 {rr('v', a+r, 2)}, {rr('v', CS+4*F+r, 2)}, {mr}, {rr('v', a+r, 2)} op_sel_hi:[1,0,1] neg_lo:[0,1,0] neg_hi:[0,1,0]")
                for r in (0, 2): p(f"v_pk_mul_f32 {rr('v', a+r, 2)}, {rr('v', a+r, 2)}, {mr} op_sel:[0,1]")
                p(f"v_cvt_pk_bf16_f32 v{dq}, v{a}, v{a+1}")
                p(f"v_cvt_pk_bf16_f32 v{dq+1}, v{a+2}, v{a+3}")
                p.add(take(1))
        for i in range(8 * hd, 8 * hd + 8):
            p(f"v_cndmask_b32 v{16+i}, v{QP+i}, v{QP+(i^2)}, vcc")
        p.add(take(1))
        for i in range(4):
            p(f"v_permlane16_swap_b32 v{16+hd*8+i}, v{16+hd*8+4+i}")
        for m in range(2):
            p(f"ds_write_b128 v{vXS}, {Q(hd, m)} offset:{(hd*2+m)*1024}")
    for i in range(Lb(2), Lb(2) + 8, 2):
        p(f"v_pk_mov_b32 {rr('v', i, 2)}, 0, 0")
    p("s_waitcnt lgkmcnt(0)")
    p("s_barrier")
    for n in range(4):
        p(f"ds_read_b128 {Q(2 + (n >> 1), n & 1)}, v{vXR} offset:{n*1024}")
    if 'Q' in dbg:
        srd(p, sB, pWS, QF[1], bias=QF[0])
        p(f"s_lshl_b32 s{s_t0}, s{s_hd}, 17\ns_lshl_b32 s{s_t1}, s{s_tok}, 6\ns_add_u32 s{s_t0}, s{s_t0}, s{s_t1}\ns_xor_b32 s{s_t1}, s{s_t0}, 0x20000")
        for x in range(2):
            for m in range(2):
                p(f"buffer_store_dwordx4 {Q(x, m)}, v{vL16}, s[{sB}:{sB+3}], s{s_t1 if x else s_t0} offen offset:{m*1024}")
    s_safe, s_fo = 65, 61
    WH = o.get('wohalf', False)
    TO = {0: (pWG, pWU, pWD), 1: (pWD, pWG, pWU)}[o.get('torder', 0)]
    SENT = o.get('sent', False)
    p(f"""
    s_mov_b64 s[{sD}:{sD+1}], s[{TO[0]}:{TO[0]+1}]
    s_mov_b32 s{sD+2}, {D * FF * 2 if o.get('prefetch', True) else 0}
    s_mov_b64 s[0:1], s[{TO[0]}:{TO[0]+1}]
    s_mov_b64 s[14:15], s[{TO[1]}:{TO[1]+1}]
    s_mov_b32 s{s_po}, {D * FF * 2}
    {f's_lshl_b32 s{s_t0}, s{s_w}, 15' if WH else ''}
    {f's_sub_u32 s{s_wdo}, s{s_wdo}, s{s_t0}' if WH else ''}
    {f's_lshr_b32 s{s_wm0}, s{s_wm0}, 1' if WH else ''}
    s_sub_u32 s{s_wdo}, s{s_wdo}, {(64 if WH else 128) * 2048}
    s_mov_b32 s{s_safe}, 0
    """)
    srd(p, sB, pWS, OF[1], bias=OF[0])

    def half(x, Kb, Vb, C, extra, tq=None, tv=None, noqk=False):
        y = 1 - x
        if tq is None: tq = tv = y
        Sx, Px, Sy, Py = Sb(x), Pb(x), rr('v', Sb(y), 16), Pb(y)
        valu = []
        for i in range(8):
            valu.append(f"v_exp_f32 v{Sx+2*i}, v{Sx+2*i}")
            valu.append(f"v_exp_f32 v{Sx+2*i+1}, v{Sx+2*i+1}")
            if i > 0:
                valu.append(f"v_cvt_pk_bf16_f32 v{Px+i-1}, v{Sx+2*i-2}, v{Sx+2*i-1}")
        valu.append(f"v_cvt_pk_bf16_f32 v{Px+7}, v{Sx+14}, v{Sx+15}")
        Oy, Ly = rr('v', Ob(tv), 16), rr('v', Lb(tv), 4)
        sel = rr('v', SEL, 4)
        mf = [mf32(Sy, Kf(Kb, 0), Q(tq, 0), C(tq)), mf32(Sy, Kf(Kb, 1), Q(tq, 1)),
              mf32(Oy, Vf(Vb, 0), rr('v', Py, 4)), mf16(Ly, sel, rr('v', Py, 4)),
              mf32(Oy, Vf(Vb, 1), rr('v', Py + 4, 4)), mf16(Ly, sel, rr('v', Py + 4, 4))]
        pos = (0, 4, 8, 12, 15, 19)
        if SMF:
            mf = [mf[0], mf[1], mf[2], mf[4], smf(tv)]
            if noqk: mf[0] = mf[1] = ""
            pos = o.get('apos', (0, 5, 10, 15, 20))
        for i, v in enumerate(valu):
            if i in pos:
                k = pos.index(i)
                p(mf[k])
                p.add(extra.get(k, []))
            p(v)

    def attention(tag, C, side, pre):
        p(mf32(rr('v', Sb(0), 16), Kf(0, 0), Q(0, 0), C(0)))
        p(mf32(rr('v', Sb(0), 16), Kf(0, 1), Q(0, 1)))
        p(f"s_mov_b32 s{s_cnt}, {64 // NR}")
        p.add(pre)
        p.begin_loop(f"{name}_{tag}_loop", 64 // NR)
        for kt in range(NR):
            e0 = {0: [vld(kt + NR - 2, 0)], 1: [vld(kt + NR - 2, 1)],
                  4: [Ins(f"wait {Kf(kt+1, 0)}, {Kf(kt+1, 1)}, {Vf(kt, 0)}, {Vf(kt, 1)}")]}
            e1 = {0: [kld2(kt, 0)], 1: [kld2(kt, 1)], 2: [Ins(f"s_add_u32 s{s_vo}, s{s_vo}, 4096")]}
            if kt == NR - 1:
                e1[3] = [Ins(f"s_sub_u32 s{s_cnt}, s{s_cnt}, 1")]
                e1[4] = [Ins(f"s_cmp_lg_u32 s{s_cnt}, 0")]
            half(0, kt, kt - 1, C, e0)
            half(1, kt + 1, kt, C, e1)
        p(f"s_cbranch_scc1 {name}_{tag}_loop")
        p.end_loop()
        O1, L1, sel = rr('v', Ob(1), 16), rr('v', Lb(1), 4), rr('v', SEL, 4)
        p(mf32(O1, Vf(NR - 1, 0), rr('v', Pb(1), 4)))
        if not SMF: p(mf16(L1, sel, rr('v', Pb(1), 4)))
        p(mf32(O1, Vf(NR - 1, 1), rr('v', Pb(1) + 4, 4)))
        p(smf(1) if SMF else mf16(L1, sel, rr('v', Pb(1) + 4, 4)))

    def attention4(pre):
        T = (2, 3, 0, 1)
        LS = o.get('lslot', 4)
        p(mf32(rr('v', Sb(0), 16), Kf(0, 0), Q(2, 0), "0"))
        p(mf32(rr('v', Sb(0), 16), Kf(0, 1), Q(2, 1)))
        p("s_waitcnt lgkmcnt(0)")
        p("s_barrier")
        p(f"s_mov_b32 s{s_cnt}, 8")
        p.add(pre)
        wdma = lambda i: Ins(f"buffer_load_dwordx4 v{vWD+i}, s[{sE}:{sE+3}], s{s_wdo} offen offset:{i*1024} lds", awr=['LW'], nowaw=True)
        tch = lambda: Ins(f"buffer_load_dword v{vDum}, v{vPF}, s[{sD}:{sD+3}], s{s_po} offen", nowaw=True)
        nxt = lambda: Ins(f"s_add_u32 s{s_po}, s{s_po}, {256 * 7168}")
        side = {0: {1: [tch()], 2: [nxt()]}, 1: {1: [Ins(f"s_and_b32 m0, s{s_wm0}, 0x1ffff")], 2: [Ins(f"s_add_u32 s{s_wm0}, s{s_wm0}, 16384")]},
                2: {1: [Ins(f"s_add_u32 s{s_wdo}, s{s_wdo}, {128 * 2048}")]},
                5: {1: [wdma(0)]}, 7: {1: [wdma(1)]}, 8: {1: [tch()], 2: [nxt()]}, 9: {1: [wdma(2)]}, 11: {1: [wdma(3)]},
                12: {0: [Ins(f"s_bitcmp1_b32 0x150, s{s_cnt}")], 1: [Ins(f"s_cselect_b32 s{s_po}, s{s_pk}, s{s_po}")],
                     2: [Ins(f"s_cselect_b64 s[{sD}:{sD+1}], s[0:1], s[{sD}:{sD+1}]")]},
                13: {0: [Ins("s_cselect_b64 s[0:1], s[14:15], s[0:1]")], 1: [Ins(f"s_cselect_b64 s[14:15], s[{TO[2]}:{TO[2]+1}], s[14:15]")]},
                14: {1: [Ins(f"s_bitcmp1_b32 0x104, s{s_cnt}")], 2: [Raw(f"    s_cbranch_scc1 {name}_rsx\n{name}_rsxback:")]},
                15: {1: [Ins(f"s_sub_u32 s{s_cnt}, s{s_cnt}, 1")], 2: [Ins(f"s_cmp_lg_u32 s{s_cnt}, 0")]}}
        if WH:
            del side[7], side[11]
            side[9] = {1: [wdma(1)]}
            side[1][2] = [Ins(f"s_add_u32 s{s_wm0}, s{s_wm0}, 8192")]
            side[2] = {1: [Ins(f"s_add_u32 s{s_wdo}, s{s_wdo}, {64 * 2048}")]}
        side.setdefault(11, {})[2] = [Ins(f"s_cmp_eq_u32 s{s_cnt}, 1")]
        del side[15][2]
        p.begin_loop(f"{name}_fast_loop", 7)
        for kt in range(4):
            for i in range(4):
                e = dict(side.get(kt * 4 + i, {}))
                e[LS] = [kv4(kt + 3 + (i == 3), (i + 1) & 3)]
                if i == 3: e[0] = [Ins(f"s_add_u32 s{s_vo}, s{s_vo}, 4096")]
                if i == 2: e[7 - LS] = [Ins(f"wait {Kf((kt+1) % 4, 0)}, {Kf((kt+1) % 4, 1)}")]
                if i == 0: e[7 - LS] = [Ins(f"wait {Vf(kt, 0)}, {Vf(kt, 1)}")]
                half(i & 1, (kt + (i == 3)) % 4, (kt - (i == 0)) % 4, lambda y: "0", e, T[(i + 1) % 4], T[(i - 1) % 4])
            if kt == 2:
                p(f"s_cbranch_scc1 {name}_fast_last")
                p.mark_exit()
        p(f"s_branch {name}_fast_loop")
        p.end_loop()
        p(f"{name}_fast_last:")
        B, z = Ob(2), 48
        xr = [Ins(f"ds_read_b64 {rr('v', 40 + t*16 + F*2, 2)}, v{z+F if F else vXA} offset:{t*2048}") for F in range(4) for t in range(2)]
        rsr = [Ins(f"ds_read_b128 {rr('v', RSV + 16*x + 4*jj, 4)}, v{z+7 if x else vRA} offset:{jj*32}") for x in range(2) for jj in range(4)]
        wr = lambda n: Ins(f"ds_write_b128 v{vXS}, {rr('v', B + 4*n, 4)} offset:{n*1024}")
        tagchk = [Raw(f"    v_cmp_ne_u32 vcc, 1, v{z+5}\n    s_nop 0\n    s_cbranch_vccnz {name}_rspoll\n{name}_rsgo:"), Ins(f"ds_write_b32 v{z}, v{z+4}")]
        ex = [{0: xr[0:2], 1: xr[2:4], 2: xr[4:6], 3: [Ins(f"wait {Vf(3, 0)}, {Vf(3, 1)}")] + xr[6:8], 4: tagchk},
              {0: rsr[0:1], 1: rsr[1:3], 2: rsr[3:4], 3: rsr[4:6], 4: rsr[6:8]},
              {1: [wr(0)], 2: [wr(1)], 3: [wr(2)], 4: [wr(3)]},
              {2: [wr(4), wr(5)], 3: [wr(6)] + [Ins(x) for x in (f"v_add_f32 v{Lb(2)}, v{Lb(2)}, v{Lb(2)+1}", f"v_add_f32 v{Lb(3)}, v{Lb(3)}, v{Lb(3)+1}",
                                                                   f"v_cvt_pk_bf16_f32 v{B+30}, v{B+30}, v{B+31}")],
               4: [Ins(f"v_permlane32_swap_b32 v{Lb(2)}, v{Lb(3)}"), Ins(f"v_mov_b32 v{B+31}, v{Lb(2)}"), wr(7)]}]
        for i in range(4):
            half(i & 1, 3, 3 - (i == 0), lambda y: "0", ex[i], T[(i + 1) % 4], T[(i - 1) % 4], i == 3)
        p.add(Raw("; @stamp 4"))
        O1 = rr('v', Ob(1), 16)
        p(mf32(O1, Vf(3, 0), rr('v', Pb(1), 4)))
        p(mf32(O1, Vf(3, 1), rr('v', Pb(1) + 4, 4)))
        p(smf(1))
        p("s_waitcnt lgkmcnt(0)")
        if 'fineo' in dbg: p.add(Raw("; @stamp 0"))
        p("s_barrier", rd=['LW'])
        if 'fineo' in dbg: p.add(Raw("; @stamp 1"))
        for n in (7, 0, 1, 2, 3, 4, 5, 6):
            p(f"ds_read_b128 {rr('v', B + 4*n, 4)}, v{vXR} offset:{n*1024}")
        p(f"""
        v_mov_b32 v{vt}, v{B+31}
        v_mov_b32 v{vt+1}, v{B+31}
        v_and_b32 v{B+31}, 0xffff0000, v{B+30}
        v_lshlrev_b32 v{B+30}, 16, v{B+30}
        v_permlane32_swap_b32 v{vt}, v{vt+1}
        v_add_f32 v{Lb(0)}, v{Lb(0)}, v{vt}
        v_add_f32 v{Lb(1)}, v{Lb(1)}, v{vt+1}""")
        for i in range(0, 32, 2):
            p(f"v_pk_add_f32 {rr('v', Ob(0)+i, 2)}, {rr('v', Ob(0)+i, 2)}, {rr('v', B+i, 2)}")

    pre = take(99)
    pre += [Ins(x.strip()) for x in f"""s_lshl_b32 s{s_fo}, s2, 2
    s_add_u32 s{s_fo}, s{s_fo}, s{s_w}
    s_lshl_b32 s{s_t0}, s{s_fo}, 11
    buffer_load_dwordx4 {rr('v', vRS, 4)}, v{vL16}, s[{sE}:{sE+3}], s{s_t0} offen
    buffer_load_dwordx4 {rr('v', vRS+4, 4)}, v{vL16}, s[{sE}:{sE+3}], s{s_t0} offen offset:1024""".split("\n")]
    if o.get('ipf', True):
        pre += [Ins(x.strip()) for x in f"""s_getpc_b64 s[74:75]
        s_lshr_b32 s{s_t0}, s2, 3
        s_lshl_b32 s{s_t0}, s{s_t0}, 2
        s_add_u32 s{s_t0}, s{s_t0}, s{s_w}
        s_mul_i32 s{s_t0}, s{s_t0}, 384
        s_min_u32 s{s_t0}, s{s_t0}, {name}_end-{name}_fast_loop
        v_min_u32 v4, 2, v0
        v_lshl_add_u32 v4, v4, 7, s{s_t0}""".split("\n")]
        pre.append(Ins(f"global_load_dword v{vDum}, v4, s[74:75]", nowaw=True))
    if len(pre) < 12: pre.append(Ins(f"s_nop {11 - len(pre)}"))
    pre.append(Raw("; @stamp 3"))
    attention4(pre)
    p(f"""
    {name}_fin:
    v_add_f32 v{Lb(0)}, v{Lb(0)}, v{Lb(0)+1}
    v_rcp_f32 v{Lb(0)+2}, v{Lb(0)}
    s_lshl_b32 s{s_t0}, s{s_tok}, 1
    s_add_u32 s{s_t0}, s{s_t0}, s{s_hd}
    s_lshl_b32 s{s_t0}, s{s_t0}, 10
    s_xor_b32 s{s_t1}, s{s_t0}, 1024
    """)
    for x in range(2):
        if x: p(f"v_add_f32 v{Lb(1)}, v{Lb(1)}, v{Lb(1)+1}\nv_rcp_f32 v{Lb(1)+2}, v{Lb(1)}")
        for a in range(2):
            for i in range(8 * a, 8 * a + 8, 2):
                p(f"v_pk_mul_f32 {rr('v', Ob(x)+i, 2)}, {rr('v', Ob(x)+i, 2)}, {rr('v', Lb(x)+2, 2)} op_sel_hi:[1,0]")
            for i in range(4 * a, 4 * a + 4):
                p(f"v_cvt_pk_bf16_f32 v{Pb(x)+i}, v{Ob(x)+2*i}, v{Ob(x)+2*i+1}")
            p(f"buffer_store_dwordx4 {rr('v', Pb(x)+4*a, 4)}, v{vOS}, s[{sB}:{sB+3}], s{s_t1 if x else s_t0} offen offset:{a*512} sc1")
    p(f"v_pk_mul_f32 v[{vt+2}:{vt+3}], {rr('v', Ob(0), 2)}, {rr('v', RSV, 2)}")
    p(f"v_pk_mul_f32 v[{vt+4}:{vt+5}], {rr('v', Ob(0)+2, 2)}, {rr('v', RSV+2, 2)}")
    for i in range(2, 16):
        k = vt + 2 + 2 * (i & 1)
        p(f"v_pk_fma_f32 v[{k}:{k+1}], {rr('v', Ob(0)+2*i, 2)}, {rr('v', RSV+2*i, 2)}, v[{k}:{k+1}]")
    p(f"""
    v_pk_add_f32 v[{vt+2}:{vt+3}], v[{vt+2}:{vt+3}], v[{vt+4}:{vt+5}]
    v_add_f32 v{vt+2}, v{vt+2}, v{vt+3}
    v_mov_b32 v{vt+3}, v{vt+2}
    s_add_u32 s{s_t0}, s{s_pj}, {ST_MP}
    s_mov_b32 s{s_t1}, {f32hex(2.0**-40)}
    v_permlane32_swap_b32 v{vt+2}, v{vt+3}
    v_add_f32 v{vt+2}, v{vt+2}, v{vt+3}
    s_mov_b32 exec_hi, 0
    buffer_store_dword v{vt+2}, v{vPW}, s[{sT}:{sT+3}], s{s_t0} offen sc1
    s_mov_b32 exec_hi, -1
    """)
    if 'fineo' in dbg: p.add(Raw("; @stamp 2"))
    p(f"""
    v_cmp_nle_f32 s[0:1], s{s_t1}, v{Lb(0)}
    v_cmp_nle_f32 s[14:15], s{s_t1}, v{Lb(1)}
    s_mov_b32 s{s_t1}, {f32hex(2.0**40)}
    v_cmp_nge_f32 s[74:75], s{s_t1}, v{Lb(0)}
    v_cmp_nge_f32 vcc, s{s_t1}, v{Lb(1)}
    s_or_b64 s[0:1], s[0:1], s[14:15]
    s_movk_i32 s{s_t1}, 0x207
    v_cmp_class_f32 s[14:15], v{vt+2}, s{s_t1}
    s_or_b64 s[0:1], s[0:1], s[74:75]
    s_or_b64 s[0:1], s[0:1], vcc
    s_or_b64 s[0:1], s[0:1], s[14:15]
    s_cselect_b32 s{s_t1}, 1, 0
    s_cmp_gt_u32 s{s_t1}, s{s_safe}
    {'' if 'nocheck' in dbg else f's_cbranch_scc1 {name}_slow'}
    """)

    SPLIT = True
    s_c, s_xo, s_xe, s_xend = 61, 62, 63, 64
    vX1, vA3 = 12, 16
    WB, AB3 = 40, 104
    vPT = 20
    LEAD = 12
    ACS = lambda F, t: rr('v', AB3 + (F * 2 + t) * 4, 4)

    class Shape:
        def __init__(self, NF, off):
            self.NF, self.NG, self.off = NF, 16 // NF, off
        def X(self, slot, t, G): return rr('a', slot * 8 * self.NG + (t * self.NG + G) * 4, 4)
        def Xall(self, slot): return ", ".join(self.X(slot, t, G) for t in range(2) for G in range(self.NG))
        def W(self, F, G): return rr('v', WB + (F * self.NG + G) * 4, 4)
        def rd(self, slot, n):
            F, G, b = n // (2 * self.NG), (n >> 1) % self.NG, n & 1
            return Ins(f"ds_read_b64_tr_b16 {rr('v', WB + 2*n, 2)}, v{vA3 + (F & 3)} offset:{slot*16384 + self.off(F, G, b)}")
        def xld(self, slot):
            o_ = [Ins(f"s_cmp_lt_u32 s{s_xo}, s{s_xend}"), Ins(f"s_cselect_b32 s{s_xe}, s{s_xo}, s{sB+2}")]
            for t in range(2):
                for G in range(self.NG):
                    o_.append(Ins(f"buffer_load_dwordx4 {self.X(slot, t, G)}, v{vX1 if t else vL16}, s[{sB}:{sB+3}], s{s_xe} offen offset:{G*1024} sc1"))
            o_.append(Ins(f"s_add_u32 s{s_xo}, s{s_xo}, {self.NG * 1024}"))
            return o_
    sh4 = Shape(4, lambda F, G, b: G * 4096 + b * 1024)
    sh8 = Shape(8, lambda F, G, b: G * 8192 + (F >> 2) * 2048 + b * 1024)

    def wread_addr(blk):
        p(f"""
        v_bfe_u32 v{vt}, v0, 2, 3
        v_lshrrev_b32 v{vt+1}, 1, v{vt}
        v_lshlrev_b32 v{vt+1}, 5, v{vt+1}
        v_lshl_add_u32 v{vt}, v{vt}, 7, v{vt+1}
        v_lshrrev_b32 v{vt+1}, 5, v0
        v_lshl_add_u32 v{vt}, v{vt+1}, {blk}, v{vt}
        v_and_b32 v{vt+1}, 3, v0
        v_lshl_add_u32 v{vA3}, v{vt+1}, 3, v{vt}
        v_xor_b32 v{vA3+1}, 32, v{vA3}
        v_xor_b32 v{vA3+2}, 64, v{vA3}
        v_xor_b32 v{vA3+3}, 0x60, v{vA3}""")

    def table_load(aq, soff, blk=0):
        for i in range(4):
            p(f"buffer_load_dwordx2 {rr('v', aq + 2*i, 2)}, v{vPT}, s[{sT}:{sT+3}], s{soff} offen offset:{blk*2048 + i*128} sc1")

    def table_sum(aq, dst):
        p(f"""
        v_pk_add_f32 {rr('v', aq, 2)}, {rr('v', aq, 2)}, {rr('v', aq+2, 2)}
        v_pk_add_f32 {rr('v', aq+4, 2)}, {rr('v', aq+4, 2)}, {rr('v', aq+6, 2)}
        v_pk_add_f32 {rr('v', dst, 2)}, {rr('v', aq, 2)}, {rr('v', aq+4, 2)}""")
        for sw in (16, 32):
            p(f"""
            v_pk_mov_b32 {rr('v', aq, 2)}, {rr('v', dst, 2)}, {rr('v', dst, 2)} op_sel:[0,1]
            v_permlane{sw}_swap_b32 v{dst}, v{aq}
            v_permlane{sw}_swap_b32 v{dst+1}, v{aq+1}
            v_pk_add_f32 {rr('v', dst, 2)}, {rr('v', dst, 2)}, {rr('v', aq, 2)}""")

    def rstd_from(aq, dst):
        table_sum(aq, dst)
        for t in range(2):
            p(f"v_fma_f32 v{dst+t}, v{dst+t}, s{s_t1}, v{vt+4}")
        for t in range(2):
            p(f"v_rsq_f32 v{dst+t}, v{dst+t}")

    p(f"""
    s_add_u32 s{s_xe}, s{s_pj}, {ST_FO}
    s_andn2_b32 s{s_c}, s{s_xe}, 2047
    s_lshl_b32 s{s_xo}, s{s_tok}, 11
    s_lshl_b32 s{s_xend}, s{s_tok}, 6
    s_add_u32 s{s_xend}, s{s_xend}, {ST_MP}""")
    if R3:
        p(f"s_and_b32 s{s_t0}, s{s_j}, 1\ns_lshl_b32 s{s_t0}, s{s_t0}, 14\ns_add_u32 s{s_xo}, s{s_xo}, s{s_t0}")
    AF = o.get('arrfirst', False)
    OM = o.get('omode', 4)

    def o_arrive():
        if 'fineo' in dbg: p.add(Raw("; @stamp 3"))
        if OM == 2:
            p(f"""
            v_lshlrev_b32 v{vt}, 10, v0
            s_and_b32 s{s_t0}, s{s_j}, 8
            s_lshl_b32 s{s_t0}, s{s_t0}, 7
            s_mov_b64 exec, 3
            s_waitcnt vmcnt(0)
            buffer_atomic_add v{vOne}, v{vt}, s[{sT}:{sT+3}], s{s_c} offen
            s_mov_b64 exec, -1
            s_add_u32 s{s_c}, s{s_c}, s{s_t0}""")
        elif OM == 4:
            p(f"""
            v_lshlrev_b32 v{vt}, 9, v0
            v_mov_b32 v31, 0
            s_and_b32 s{s_t0}, s{s_j}, 8
            s_lshl_b32 s{s_t1}, s{s_t0}, 7
            s_add_u32 s{s_t1}, s{s_t1}, s{s_c}
            s_lshl_b32 s{s_t0}, s{s_t0}, 6
            s_add_u32 s{s_c}, s{s_c}, s{s_t0}
            s_cmp_ge_u32 s{s_j}, 8
            s_cselect_b32 s{s_t0}, s{s_c}, s{sT+2}
            s_mov_b32 s{s_spin}, {SPIN}
            s_waitcnt vmcnt(0)
            buffer_load_dword v30, v31, s[{sT}:{sT+3}], s{s_t0} offen sc1
            s_mov_b64 exec, 3
            buffer_atomic_add v{vOne}, v{vt}, s[{sT}:{sT+3}], s{s_t1} offen
            s_mov_b64 exec, -1""")
        elif OM == 3:
            p(f"""
            s_andn2_b32 s{s_c}, s{s_c}, 0x1800
            s_waitcnt vmcnt(0)
            s_barrier""")
            p.add(Raw(f"    s_cmp_lg_u32 s{s_w}, 0\n    s_cbranch_scc1 {name}_nofo\n    buffer_store_dword v{vOne}, v{vZ}, s[{sT}:{sT+3}], s{s_xe} offen sc1\n{name}_nofo:"))
        else:
            arrive(p, s_xe)
    if AF: o_arrive()
    vE = 136
    p(f"""
    v_add_u32 v{vX1}, 0x8000, v{vL16}
    v_and_b32 v{vt+4}, 15, v0
    v_lshlrev_b32 v{vPT}, 3, v{vt+4}
    v_lshrrev_b32 v{vt+5}, 4, v0
    v_lshl_add_u32 v{vPT}, v{vt+5}, 9, v{vPT}""")
    wread_addr(11)
    for t in range(2):
        for F in range(4):
            a = AB3 + (F * 2 + t) * 4
            e = 40 + t * 16 + F * 2
            p(f"""
            v_lshlrev_b32 v{a}, 16, v{e}
            v_and_b32 v{a+1}, 0xffff0000, v{e}
            v_lshlrev_b32 v{a+2}, 16, v{e+1}
            v_and_b32 v{a+3}, 0xffff0000, v{e+1}""")
    def rd3(n):
        q, F, g, b = n >> 4, (n >> 2) & 3, (n >> 1) & 1, n & 1
        return Ins(f"ds_read_b64_tr_b16 {rr('v', WB + 2 * (n % 32), 2)}, v{vA3 + F} offset:{(q & 7) * 8192 + g * 4096 + b * 1024}")
    for n in range(LEAD):
        p.add(rd3(n))
    if not AF: o_arrive()
    if WH:
        p(f"""
        s_lshl_b32 s{s_wdo}, s{s_w}, 16
        s_lshl_b32 s{s_t0}, s{s_j}, 7
        s_add_u32 s{s_wdo}, s{s_wdo}, s{s_t0}
        s_lshl_b32 s{s_wm0}, s{s_w}, 12""")
        for q in range(4, 8):
            p(f"s_add_u32 m0, s{s_wm0}, {q * 16384}\ns_add_u32 s{s_t0}, s{s_wdo}, {q * 128 * 2048}")
            for i in range(4):
                p(f"buffer_load_dwordx4 v{vWD+i}, s[{sE}:{sE+3}], s{s_t0} offen offset:{i*1024} lds", awr=['LW2'], nowaw=True)
    main_cur = p.cur
    bg = []
    BW = o.get('bgwin', 1)
    if BW: p(f"s_mov_b32 s{s_xe}, s{s_c}")
    else: p.cur = bg
    SLOT4, HI4, LEAD4 = 28672, 106496, 8
    s_nb, s_wo4, s_m04, s_dsl, s_rsl, s_tk4 = 66, 68, 69, 70, 71, 72
    vD4 = 21
    AB4 = 32
    p(f"""
    s_and_b32 s{s_t0}, s2, 7
    s_lshr_b32 s{s_t1}, s2, 3
    s_and_b32 s{s_tk4}, s{s_t1}, 7
    s_lshr_b32 s{s_t1}, s{s_t1}, 3
    s_lshl_b32 s{s_nb}, s{s_t0}, 2
    s_add_u32 s{s_nb}, s{s_nb}, s{s_t1}
    s_movk_i32 s{s_t1}, 4682
    s_movk_i32 s{s_t0}, {7168 - 14 * 16}
    """)
    for i in range(7):
        p(f"""
        v_add_u32 v{vt}, {64*i}, v0
        v_mul_u32_u24 v{vt+1}, s{s_t1}, v{vt}
        v_lshrrev_b32 v{vt+1}, 16, v{vt+1}
        v_add_u32 v{vt}, {1024 * (i - (i & 3))}, v{vL16}
        v_mad_u32_u24 v{vD4+i}, v{vt+1}, s{s_t0}, v{vt}
        """)
    p(f"""
    s_lshl_b32 s{s_tk4}, s{s_tk4}, 2
    s_add_u32 s{s_tk4}, s{s_tk4}, s{s_w}
    s_lshl_b32 s{s_tk4}, s{s_tk4}, 6
    s_and_b32 s{s_t0}, s{s_w}, 1
    s_mul_i32 s{s_wo4}, s{s_t0}, {32 * 7168}
    s_mul_i32 s{s_t1}, s{s_nb}, 224
    s_add_u32 s{s_wo4}, s{s_wo4}, s{s_t1}
    s_mul_i32 s{s_m04}, s{s_w}, 7168
    s_mov_b32 s{s_dsl}, s{s_m04}
    s_mov_b32 s{s_rsl}, {HI4}
    s_cmp_lt_u32 s{s_w}, 2
    s_cselect_b64 s[{sD}:{sD+1}], s[{pWG}:{pWG+1}], s[{pWU}:{pWU+1}]
    s_mov_b32 s{sD+2}, {hex(D * FF * 2)}
    """)
    srd(p, sA, pWS, HC[1], bias=HC[0])
    for i in range(4):
        p(f"v_accvgpr_write_b32 a{aMEAN-4+i}, v{vWD+i}")
    p(f"v_mov_b32 v36, v{vPW}")
    vPW = 36
    vX4 = [vL16, 12, 13, 14]
    vA4, vAb, vR4 = 15, 11, 28
    vS, vQ, vP = 28, 144, WB
    s_ho, s_c4, s_sq4 = 65, 67, 73
    HCA = o.get('hca', False)
    p(f"""
    v_add_u32 v{vX4[2]}, 0x10000, v{vL16}
    v_add_u32 v{vX4[3]}, 0x18000, v{vL16}
    v_lshrrev_b32 v{vt}, 2, v0
    v_mul_u32_u24 v{vt}, 224, v{vt}
    v_and_b32 v{vt+1}, 3, v0
    v_lshl_add_u32 v{vAb}, v{vt+1}, 3, v{vt}
    v_mov_b32 v{vA4}, v{vAb}
    s_lshl_b32 s{s_sq4}, s{s_tk4}, 6
    s_add_u32 s{s_c4}, s{s_sq4}, {ST_FC}
    s_add_u32 s{s_sq4}, s{s_sq4}, {ST_SSQ}
    s_add_u32 s{s_ho}, s{s_tok}, s{s_j}
    s_lshl_b32 s{s_ho}, s{s_ho}, 11
    s_add_u32 s{s_c}, s{s_pj}, {ST_FC}
    {f's_andn2_b32 s{s_c}, s{s_c}, 4095' if HCA else ''}
    {f's_and_b32 s{s_t0}, s2, 7' if HCA else ''}
    {f's_lshl_b32 s{s_t0}, s{s_t0}, 9' if HCA else ''}
    {f's_add_u32 s{s_c4}, s{s_c4}, s{s_t0}' if HCA else ''}
    {f'v_lshlrev_b32 v{vt+6}, 9, v0' if HCA else ''}
    s_add_u32 s{s_pj}, s{s_pj}, {ST_SSQ}
    s_mov_b32 s{s_t1}, {f32hex(-1.0/1024)}""")
    if BW:
        for i in range(156, 256, 2 if BW == 1 else 1):
            p(f"v_pk_mov_b32 {rr('v', i, 2)}, 0, 0" if BW == 1 else f"v_mov_b32 v{i}, 0")
        p.cur = bg
    for t in range(2):
        p(f"""
        v_add_f32 v{vE+t}, v{vE+t}, v{vE+2+t}
        v_add_f32 v{vE+4+t}, v{vE+4+t}, v{vE+6+t}
        v_add_f32 v{vS+t}, v{vE+t}, v{vE+4+t}""")
        xsum16_32(p, f"v{vS+t}", f"v{vt}")
        p(f"v_accvgpr_read_b32 v{vt}, a{aMEAN+t}")
        p(f"v_fma_f32 v{vS+t}, v{vS+t}, s{s_t1}, -v{vt}")
    p(f"v_mov_b32 v{vt+4}, {f32hex(1e-5)}\ns_mov_b32 s{s_t1}, {f32hex(1.0/1024)}")
    if not BW:
        for i in range(156, 256):
            p(f"v_mov_b32 v{i}, 0")
    p.cur = main_cur

    def units_of(lst):
        out = []
        for x in lst:
            if out and x.op.startswith(('s_addc', 's_subb', 's_cselect')): out[-1].append(x)
            else: out.append([x])
        return out
    bg = units_of(bg)
    p.add(Raw("; @stamp 5"))
    olk = lambda h: f"buffer_load_dword v30, v31, s[{sT}:{sT+3}], s{s_xe} offen offset:{h*1024} sc1"
    if OM == 4:
        assert BW
        p("wait v30")
        p.add(Raw(spin2(f"{name}_opoll", 8, olk(0), 30)))
    elif OM == 2: poll(p, f"{name}_opoll", s_xe if BW else s_c, 1, vt, 16)
    else: poll(p, f"{name}_opoll", s_xe if BW else s_c, 16, vt, 1, s_j if OM else None)
    if 'twice3' in dbg: p.add(Raw(f"    s_mov_b32 s{s_spin}, 2\n    s_mov_b32 s14, s{s_pj}\n    s_mov_b32 s15, s{s_xo}\n{name}_tw3:\n    s_mov_b32 s{s_pj}, s14\n    s_mov_b32 s{s_xo}, s15"))
    p.add(Raw("; @stamp 6"))

    def dma4(par):
        o_ = []
        for i in range(7):
            if i == 0: o_.append(Ins(f"s_add_u32 m0, s{s_dsl}, {par * SLOT4}"))
            if i == 4: o_.append(Ins("s_add_u32 m0, m0, 4096"))
            o_.append(Ins(f"buffer_load_dwordx4 v{vD4+i}, s[{sD}:{sD+3}], s{s_wo4} offen offset:{(i&3)*1024} lds", awr=['Lx'], nowaw=True))
        o_.append(Ins(f"s_add_u32 s{s_wo4}, s{s_wo4}, {64 * 7168}"))
        return o_

    X3 = lambda q, t, g: rr('a', (q % 8) * 16 + (t * 2 + g) * 4, 4)

    def xld3(q):
        o_ = [Ins(f"buffer_load_dwordx4 {X3(q, t, g)}, v{vX1 if t else vL16}, s[{sB}:{sB+3}], s{s_xo} offen offset:{(q & 1) * 2048 + g*1024} sc1")
              for t in range(2) for g in range(2)]
        return o_ + ([Ins(f"s_add_u32 s{s_xo}, s{s_xo}, 4096")] if q & 1 else [])
    L3 = o.get('l3', 3)
    D4 = o.get('d4', (9, 9))
    for q in range(L3): p.add(xld3(q))
    side = []
    for q in range(16):
        if OM == 4 and q + L3 == 8:
            p("wait v30")
            p.add(Raw(spin2(f"{name}_opoll2", 8, olk(1), 30)))
        if q + L3 < 16: side += xld3(q + L3)
        if q == 16 - L3:
            pass
        for k in range(2):
            if q == 2 * D4[k]: side += dma4(k)
        mp = [Ins(f"buffer_load_dwordx2 {rr('v', vE + 2*i, 2)}, v{vPT}, s[{sT}:{sT+3}], s{s_xend} offen offset:{i*128} sc1") for i in range(4)] if q == (6 if OM == 4 else 1) else []
        if OM == 4 and q == o.get('olk', 2): mp = [Ins(olk(1))]
        for i in range(16):
            F = i >> 2
            t, g = zz(F, 2, 2, ZZ)[i & 3]
            p(mf16(ACS(F, t), rr('v', WB + ((q & 1) * 8 + F * 2 + g) * 4, 4), X3(q, t, g)))
            n = q * 16 + i + LEAD
            if q == 10 and i == 0:
                p("s_barrier")
            if WH and n == 128: p("s_barrier", rd=['LW2'])
            if n < 256: p.add(rd3(n))
            if n in (115, 119, 123, 127): p(f"v_xor_b32 v{vA3 + (n - 112) // 4}, 0x10000, v{vA3 + (n - 112) // 4}")
            used = True
            if i % 4 == 3:
                if (q > 0 or i > 3) and q * 16 + i < 255:
                    m = (q * 16 + i + 1) % 32
                    p(f"wait {rr('v', WB + 2 * m, 8)}" + (", " + ", ".join(X3(q + 1, t_, g_) for t_ in range(2) for g_ in range(2)) if i == 15 else ""))
            if side and i % 4 == 0 and side[0].kind == 'vmem': p.add(side.pop(0))
            elif side and side[0].kind == 'salu': p.add(side.pop(0))
            elif mp and i % 4 == 2: p.add(mp.pop(0))
            else: used = False
            if bg and not used and q > (10 if BW else 0):
                p.add(bg.pop(0))
                if bg and q * 16 + i > 200: p.add(bg.pop(0))
    p.add(side)
    assert not bg, len(bg)
    p.add(Raw("; @stamp 7"))
    if 'twice3' in dbg: p.add(Raw(f"    s_waitcnt vmcnt(0)\n    s_sub_u32 s{s_spin}, s{s_spin}, 1\n    s_cmp_lg_u32 s{s_spin}, 0\n    s_cbranch_scc1 {name}_tw3"))

    for t in range(2):
        sel = "op_sel_hi:[1,0]" if t == 0 else "op_sel:[0,1]"
        q = rr('v', vQ + 2 * t, 2)
        for F in range(4):
            a = AB3 + (F * 2 + t) * 4
            k = vQ + 4 + (F & 1) * 4
            hc = vP + (t * 2 + (F >> 1)) * 4 + (F & 1) * 2
            p(f"""
            v_pk_add_f32 {rr('v', k, 2)}, {rr('v', a, 2)}, {rr('v', vS, 2)} {sel}
            v_pk_add_f32 {rr('v', k+2, 2)}, {rr('v', a+2, 2)}, {rr('v', vS, 2)} {sel}
            v_cvt_pk_bf16_f32 v{hc}, v{k}, v{k+1}
            v_cvt_pk_bf16_f32 v{hc+1}, v{k+2}, v{k+3}""")
            if F & 1:
                g = F >> 1
                p(f"buffer_store_dwordx4 {rr('v', hc-2, 4)}, v{vX1 if t else vL16}, s[{sA}:{sA+3}], s{s_ho} offen offset:{g*1024} sc1")
            p(f"v_pk_mul_f32 {q}, {rr('v', k, 2)}, {rr('v', k, 2)}" if F == 0 else f"v_pk_fma_f32 {q}, {rr('v', k, 2)}, {rr('v', k, 2)}, {q}")
            p(f"v_pk_fma_f32 {q}, {rr('v', k+2, 2)}, {rr('v', k+2, 2)}, {q}")
    p(f"""
    v_add_f32 v{vQ}, v{vQ}, v{vQ+1}
    v_add_f32 v{vQ+2}, v{vQ+2}, v{vQ+3}
    v_permlane16_swap_b32 v{vQ}, v{vQ+2}
    v_add_f32 v{vQ}, v{vQ}, v{vQ+2}
    v_mov_b32 v{vQ+1}, v{vQ}
    v_permlane32_swap_b32 v{vQ}, v{vQ+1}
    v_add_f32 v{vt}, v{vQ}, v{vQ+1}
    s_mov_b32 exec_hi, 0
    buffer_store_dword v{vt}, v{vPW}, s[{sT}:{sT+3}], s{s_pj} offen sc1
    s_mov_b32 exec_hi, -1
    """)
    for q in range(2):
        if D4[q] == 8: p.add(dma4(q))
    for t in range(2):
        for F in range(4):
            a = AB3 + (F * 2 + t) * 4
            hr = vP + 16 + (t * 2 + (F >> 1)) * 4 + (F & 1) * 2
            p(f"v_cvt_pk_bf16_f32 v{hr}, v{a}, v{a+1}\nv_cvt_pk_bf16_f32 v{hr+1}, v{a+2}, v{a+3}")
    for i in range(16):
        p(f"v_accvgpr_write_b32 a{aHR+i}, v{vP+16+i}")
    if 'H' in dbg:
        srd(p, sB, pWS, HR[1], bias=HR[0])
        for t in range(2):
            for g in range(2):
                p(f"buffer_store_dwordx4 {rr('v', vP + 16 + (t*2+g)*4, 4)}, v{vX1 if t else vL16}, s[{sB}:{sB+3}], s{s_ho} offen offset:{g*1024}")
    for i in range(AB4 + 0, 156, 2):
        p(f"v_pk_mov_b32 {rr('v', i, 2)}, 0, 0")
    p(f"""
    s_lshl_b32 s{s_xo}, s{s_tk4}, 11
    s_waitcnt vmcnt({7 * D4.count(8)})
    """)
    if 'ack' in dbg: p.add(Raw("; @stamp 0"))
    if HCA:
        p(f"s_mov_b64 exec, 0xff\nbuffer_atomic_add v{vOne}, v{vt+6}, s[{sT}:{sT+3}], s{s_c} offen\ns_mov_b64 exec, -1")
    else:
        p(f"buffer_store_dword v{vOne}, v{vZ}, s[{sT}:{sT+3}], s{s_c} offen sc1")
    if 'ack' in dbg: p.add(Raw("    s_waitcnt vmcnt(0)\n; @stamp 1"))
    HS = o.get('hsplit', False)
    hv = 30 if HS == 2 else vt
    hlk = lambda h: f"buffer_load_dword v{hv}, v{hv+1}, s[{sT}:{sT+3}], s{s_c4} offen offset:{h*1024} sc1"
    hset = f"""
        v_and_b32 v{hv+1}, 7, v0
        v_bfe_u32 v{vt+2}, v0, 3, 1
        v_lshl_add_u32 v{hv+1}, v{vt+2}, 4, v{hv+1}
        v_lshlrev_b32 v{hv+1}, 7, v{hv+1}
        s_mov_b32 s{s_spin}, {SPIN}
        {hlk(0)}"""
    for q in range(2):
        if HS == 2 and q == o.get('hlat', 1): p(hset)
        if D4[q] == 9: p.add(dma4(q))
    if HS == 2 and o.get('hlat', 1) == 2: p(hset)
    if D4[1] < 10: p(f"s_add_u32 s{s_dsl}, s{s_m04}, {HI4}")
    PX = o.get('px', 8)
    BT = o.get('btouch', 0)
    vFL, vBT = vt + 5, vt + 6
    s_hf, s_x5, s_of, s_bt = 65, 63, 64, 3
    wread_addr(12)
    srd(p, sB, pWS, HH[1], bias=HH[0])
    srd(p, sC, pWS, XC[1], bias=XC[0])
    p(f"""
    s_bfe_u32 s{s_hf}, s{s_b}, 0x10002
    s_lshl_b32 s{s_hf}, s{s_hf}, 1
    s_lshr_b32 s{s_t0}, s{s_j}, 3
    s_add_u32 s{s_hf}, s{s_hf}, s{s_t0}
    s_and_b32 s{s_c}, s{s_tok}, 0x5c0
    s_lshl_b32 s{s_c}, s{s_c}, 6
    s_lshl_b32 s{s_t0}, s{s_hf}, 10
    s_add_u32 s{s_c}, s{s_c}, s{s_t0}
    s_add_u32 s{s_c}, s{s_c}, {ST_FH}
    s_xor_b32 s{s_x5}, s{s_tok}, 512
    s_mul_i32 s{s_x5}, s{s_x5}, {112 * 64}
    s_mul_i32 s{s_t0}, s{s_hf}, {28 * 1024}
    s_add_u32 s{s_x5}, s{s_x5}, s{s_t0}
    s_mul_i32 s{s_of}, s{s_tk4}, {112 * 64}
    s_lshr_b32 s{s_t0}, s{s_nb}, 3
    s_mul_i32 s{s_t0}, s{s_t0}, {56 - 8}
    s_add_u32 s{s_t0}, s{s_t0}, s{s_nb}
    s_lshl_b32 s{s_t0}, s{s_t0}, 9
    s_add_u32 s{s_of}, s{s_of}, s{s_t0}
    v_and_b32 v{vFL}, 7, v0
    v_lshlrev_b32 v{vFL}, 7, v{vFL}
    v_bfe_u32 v{vt}, v0, 3, 1
    v_lshl_add_u32 v{vFL}, v{vt}, 15, v{vFL}""")
    if BT:
        p(f"""
        v_cmp_gt_u32 vcc, 14, v0
        v_lshlrev_b32 v{vt}, 10, v0
        v_add_u32 v{vt}, {4096 + 384}, v{vt}
        v_mov_b32 v{vt+1}, 0x7ffffff0
        v_cndmask_b32 v{vBT}, v{vt+1}, v{vt}, vcc
        s_lshr_b32 s{s_bt}, s2, 3
        s_lshl_b32 s{s_bt}, s{s_bt}, 2
        s_add_u32 s{s_bt}, s{s_bt}, s{s_w}
        s_mul_i32 s{s_bt}, s{s_bt}, {7 * 2048}""")


    X4 = lambda slot, t, g: rr('a', slot * 32 + (t * 2 + g) * 4, 4)
    WB4, WB4B, NWR = 96, 128, 4
    W4 = lambda q, g: rr('a', WB4 + (q % NWR) * 8 + g * 4, 4)
    AC4 = lambda f, t: rr('v', AB4 + (f * 4 + t) * 4, 4)

    def xld4(slot):
        o_ = [Ins(f"buffer_load_dwordx4 {X4(slot, t, g)}, v{vX4[t]}, s[{sA}:{sA+3}], s{s_xo} offen offset:{g*1024} sc1")
              for t in range(4) for g in range(2)]
        return o_ + [Ins(f"s_add_u32 s{s_xo}, s{s_xo}, 2048")]

    def rd4(q, n, par=None, base=WB4):
        f = q % 14
        g, b = n >> 1, n & 1
        if par is None: par = (q // 14) & 1
        return Ins(f"ds_read_b64_tr_b16 {rr('a', base + (q % NWR)*8 + g*4 + 2*b, 2)}, v{vA4} offset:{par*SLOT4 + (f&1)*14336 + (32*g+16*b)*224 + (f>>1)*32}")
    if D4[0] < 8:
        p("s_barrier")
        for n in range(LEAD4):
            p.add(rd4(n >> 2, n & 3))
    p.add(Raw("; @stamp 8"))
    if HS:
        if HS == 2: p(f"wait v{hv}")
        else: p(hset + "\ns_waitcnt vmcnt(0)")
        p.add(Raw(spin2(f"{name}_hpoll", 1, hlk(0), hv)))
    elif HCA: poll(p, f"{name}_hpoll", s_c4, 1, vt, 32)
    else: poll(p, f"{name}_hpoll", s_c4, 32, vt)
    p.add(Raw("; @stamp 9"))
    RIL = True
    if not RIL and not HS:
        for q in range(2):
            table_load(AB4 + 8 * q, s_sq4, q)
    p.add(xld4(0))
    if RIL:
        for q in range(2):
            for i in range(4):
                p(f"buffer_load_dwordx2 {rr('a', WB4B + 16 + 8*q + 2*i, 2)}, v{vPT}, s[{sT}:{sT+3}], s{s_sq4} offen offset:{q*2048 + i*128} sc1")
    if o.get('b1', True): p("s_barrier", rd=['Lx'])
    if D4[0] >= 8:
        for n in range(LEAD4):
            p.add(rd4(n >> 2, n & 3))
    ril = []
    if RIL or HS:
        p.cur = ril
        for t in range(4):
            a_ = WB4B + 16 + 8 * (t >> 1) + (t & 1)
            for i in range(4): p(f"v_accvgpr_read_b32 v{vt+i}, a{a_ + 2*i}")
            p(f"v_add_f32 v{vt}, v{vt}, v{vt+1}\nv_add_f32 v{vt+2}, v{vt+2}, v{vt+3}\nv_add_f32 v{vt}, v{vt}, v{vt+2}")
            xsum16_32(p, f"v{vt}", f"v{vt+1}")
            p(f"v_fma_f32 v{vt}, v{vt}, s{s_t1}, v{vt+4}\nv_rsq_f32 v{vt}, v{vt}")
            p(f"v_mul_f32 v{vR4+t}, {f32hex(-LOG2E)}, v{vt}")
        p.cur = main_cur
    else:
        for q in range(2):
            rstd_from(AB4 + 8 * q, vR4 + 2 * q)
        for t in range(4):
            p(f"v_mul_f32 v{vR4+t}, {f32hex(-LOG2E)}, v{vR4+t}")
        for i in range(AB4, AB4 + 16, 2):
            p(f"v_pk_mov_b32 {rr('v', i, 2)}, 0, 0")
    if HS:
        pr_ = Prog(); pr_.add(ril); ril = []
        rs_txt = pr_.finish()
    p(f"s_mov_b32 s{s_cnt}, 6")
    p("wait " + ", ".join(X4(0, t, g) for t in range(4) for g in range(2)) + f", {W4(0, 0)}, {W4(0, 1)}")
    p.begin_loop(f"{name}_p4loop", 6)
    B1 = True
    BP = o.get('bpos', 99)
    order = [(f, t, g) for f in range(14) for t, g in zz(f, 4, 2, ZZ)]

    def gaps4(u, rng, fill, bgw=None):
        for i in rng:
            f, t, g = order[i]
            p(mf16(AC4(f, t), W4(u * 14 + f, g), X4(u, t, g)))
            if u == 1 and i == BP:
                p("s_waitcnt lgkmcnt(0)" if bgw is not None else "s_waitcnt vmcnt(8) lgkmcnt(0)")
                p("s_barrier", rd=['Lx'])
            if u == 1 and i >= 96:
                if BP <= i < BP + 8:
                    p.add(rd4(28 + ((i - BP) >> 2), (i - BP) & 3))
                elif bgw is not None and BP + 8 <= i < BP + 12:
                    p.add(rd4(0, i - BP - 8, 1, WB4B))
            elif i % 2 == 0:
                n = i // 2 + LEAD4
                p.add(rd4(u * 14 + (n >> 2), n & 3))
            if i == 95 and u == 1: p(f"v_add_u32 v{vA4}, s{s_rsl}, v{vAb}")
            if i == 111:
                p(f"wait {W4(u*14 + 14, 0)}, {W4(u*14 + 14, 1)}, " + ", ".join(X4(1 - u, t_, g_) for t_ in range(4) for g_ in range(2)))
            elif i % 8 == 7:
                p(f"wait {W4(u*14 + f + 1, 0)}, {W4(u*14 + f + 1, 1)}")
            p.add(fill.get(i, []))
            for _ in range(2):
                if bgw: p.add(bgw.pop(0))
    for u in range(2):
        MV = o.get('p4mv', 0)
        if u == 0: d41 = dma4(1)
        vm = d41[MV:] + xld4(0) if u == 1 else xld4(1) + dma4(0) + d41[:MV]
        fill, pos = {}, 1
        for ins in vm:
            fill.setdefault(pos, []).append(ins)
            pos += 4 if ins.kind == 'vmem' else 2
            if pos % 8 == 7: pos += 2
        assert pos < (91 if u else 118), pos
        if u == 0:
            gaps4(0, range(112), fill)
        else:
            fill[97] = [Ins(f"s_sub_u32 s{s_rsl}, {HI4}, s{s_rsl}")]
            fill[107] = [Ins(f"s_add_u32 s{s_dsl}, s{s_m04}, s{s_rsl}")]
            fill[pos] = [Ins(f"s_sub_u32 s{s_cnt}, s{s_cnt}, 1")]
            EX = max(pos + 2, o.get('ex4', 0)) | 1
            gaps4(1, range(EX + 1), fill)
            p(f"s_cbranch_scc1 {name}_last4")
            p.mark_exit()
            gaps4(1, range(EX + 1, 112), fill)
    p(f"s_branch {name}_p4loop")
    p.end_loop()
    p(f"{name}_last4:")
    fill, pos = {}, EX + 2
    for ins in xld4(2)[:8]:
        if pos % 8 == 7: pos += 2
        fill[pos] = [ins]
        pos += 4
    gaps4(1, range(EX + 1, 112), fill, ril)
    assert not ril
    p(f"{name}_tail4:")
    p.add(Raw("; @stamp 10"))
    main_cur = p.cur
    setup = []
    p.cur = setup

    vW5 = 21
    s_wo5, s_m05 = 68, 69
    vH = 13
    vFG, vTwo = 25, 26
    for i in range(2):
        p(f"v_accvgpr_read_b32 v{vW5+i}, a{aMEAN-4+i}")
    p(f"""
    s_mul_i32 s{s_t0}, s{s_hf}, {896 * 2048}
    s_xor_b32 s{s_t1}, s{s_j}, {PX}
    s_add_u32 s{s_t1}, s{s_t1}, 16
    s_sub_u32 s{s_t1}, s{s_t1}, s{s_j}
    s_lshl_b32 s{s_t1}, s{s_t1}, 7
    v_add_u32 v{vW5+2}, s{s_t1}, v{vW5}
    v_add_u32 v{vW5+3}, s{s_t1}, v{vW5+1}
    v_add_u32 v{vW5}, 4096, v{vW5}
    v_add_u32 v{vW5+1}, 4096, v{vW5+1}
    s_mul_i32 s{s_wo5}, s{s_w}, {112 * 2048}""")
    srd(p, sD, pWD, 896 * 2048 + 4096, off=s_t0, bias=-4096)
    p(f"""
    s_lshl_b32 s{s_t1}, s{s_j}, 7
    s_add_u32 s{s_wo5}, s{s_wo5}, s{s_t1}
    s_lshl_b32 s{s_m05}, s{s_w}, 12
    v_lshrrev_b32 v{vt}, 5, v0
    v_mul_u32_u24 v{vt}, {112 * 1024 - 512}, v{vt}
    v_add_u32 v{vH}, v{vt}, v{vL16}
    v_add_u32 v{vH+1}, {2 * 112 * 1024}, v{vH}
    v_add_u32 v{vX1}, {112 * 1024}, v{vL16}
    s_mul_i32 s{s_xo}, s{s_tok}, {112 * 64}
    s_mul_i32 s{s_t0}, s{s_hf}, {28 * 1024}
    s_add_u32 s{s_xo}, s{s_xo}, s{s_t0}
    s_mov_b32 s{s_spin}, {SPIN}
    s_lshl_b32 s{s_t0}, s{s_nb}, 7
    s_add_u32 s{s_sq4}, s{s_sq4}, s{s_t0}
    s_add_u32 s{s_sq4}, s{s_sq4}, {ST_FH - ST_SSQ}""")
    p.cur = main_cur
    btouch = lambda: Ins(f"buffer_load_dword v27, v{vBT}, s[{sD}:{sD+3}], s{s_bt} offen", nowaw=True)

    def dma5(st):
        o_ = [Ins(f"s_add_u32 m0, s{s_m05}, {(st % 8) * 16384}")]
        for i in range(4):
            o_.append(Ins(f"buffer_load_dwordx4 v{vW5+i}, s[{sD}:{sD+3}], s{s_wo5} offen offset:{i*1024} lds", awr=[f'L5_{st}'], nowaw=True))
        o_.append(Ins(f"s_add_u32 s{s_wo5}, s{s_wo5}, {448 * 2048}" if st & 1 == 0 else f"s_sub_u32 s{s_wo5}, s{s_wo5}, {(448 - 16) * 2048}"))
        return o_

    def glu(pr, packed):
        o_ = []
        for t in range(4):
            g = AB4 + ((2 * pr) * 4 + t) * 4
            u_ = AB4 + ((2 * pr + 1) * 4 + t) * 4
            rs_ = rr('v', vR4 + (t & 2), 2)
            sel = "op_sel_hi:[1,0]" if t % 2 == 0 else "op_sel:[0,1]"
            if packed:
                o_ += [f"v_pk_mul_f32 {rr('v', g+r, 2)}, {rr('v', g+r, 2)}, {rs_} {sel}" for r in (0, 2)]
                o_ += [f"v_exp_f32 v{g+r}, v{g+r}" for r in range(4)]
                o_ += [f"v_pk_add_f32 {rr('v', g+r, 2)}, {rr('v', g+r, 2)}, 1.0 op_sel_hi:[1,0]" for r in (0, 2)]
                o_ += [f"v_rcp_f32 v{g+r}, v{g+r}" for r in range(4)]
                o_ += [f"v_pk_mul_f32 {rr('v', u_+r, 2)}, {rr('v', u_+r, 2)}, {rr('v', g+r, 2)}" for r in (0, 2)]
            else:
                o_ += [f"v_mul_f32 v{g+r}, v{vR4+t}, v{g+r}" for r in range(4)]
                o_ += [f"v_exp_f32 v{g+r}, v{g+r}" for r in range(4)]
                o_ += [f"v_add_f32 v{g+r}, 1.0, v{g+r}" for r in range(4)]
                o_ += [f"v_rcp_f32 v{g+r}, v{g+r}" for r in range(4)]
                o_ += [f"v_mul_f32 v{u_+r}, v{u_+r}, v{g+r}" for r in range(4)]
            d_ = AB4 + ((2 * pr) * 4 + (t & 2)) * 4 + (t & 1) * 2
            o_ += [f"v_cvt_pk_bf16_f32 v{d_}, v{u_}, v{u_+1}", f"v_cvt_pk_bf16_f32 v{d_+1}, v{u_+2}, v{u_+3}"]
            if t & 1:
                o_ += [f"v_permlane32_swap_b32 v{d_-2}, v{d_}", f"v_permlane32_swap_b32 v{d_-1}, v{d_+1}",
                       f"buffer_store_dwordx4 {rr('v', d_-2, 4)}, v{vH + (t >> 1)}, s[{sB}:{sB+3}], s{s_of} offen sc1"]
        o_.append(f"s_add_u32 s{s_of}, s{s_of}, 4096")
        return [Ins(x, awr=[f'HS{pr}'], nowaw=True) if x.startswith('buffer') else Ins(x) for x in o_]

    AC5, WB5, vHI, vHF = 96, 40, 72, 224
    XB5 = (160, 192, 32, 0, 64, 96, 128)
    A5 = lambda F, t: rr('v', AC5 + ((F >> 2) + 2 * (t >> 1)) * 32 + ((F & 3) * 2 + (t & 1)) * 4, 4)
    X5 = lambda st, t, G: rr('a', XB5[st % 7] + (t * 2 + G) * 4, 4)
    NT = o.get('nt5', 6)

    def xld5(st):
        o_ = [Ins(f"buffer_load_dwordx4 {X5(st, t, G)}, v{vX1 if t & 1 else vL16}, s[{sB}:{sB+3}], s{s_x5 if t >> 1 else s_xo} offen offset:{G*1024} sc1")
              for t in range(4) for G in range(2)]
        return o_[:4] + [Ins(f"s_add_u32 s{s_xo}, s{s_xo}, 2048")] + o_[4:] + [Ins(f"s_add_u32 s{s_x5}, s{s_x5}, 2048")]

    spin = lambda label, level, ld=None: spin2(label, level, ld or fgl, vFG)
    last = list(range(14 - NT, 14))
    FO = o.get('fo5', 4)
    units = [(st, F, (0, 1, 2, 3)) for st in range(14 - NT) for F in range(8)]
    units += [(st, F, (0, 1, 2, 3)) for st in last[:-FO] for F in range(4, 8)]
    units += [(st, F, (0, 1, 2, 3)) for F in range(4, 8) for st in last[-FO:]]
    kB = len(units)
    kC = kB + 4 * NT
    units += [(st, F, (2, 3)) for F in range(4) for st in last]
    units += [(st, F, (0, 1)) for F in range(4) for st in last]

    def rd5(k):
        st, F = units[k][:2]
        return [Ins(f"ds_read_b64_tr_b16 {rr('v', WB5 + (k % 4)*8 + 2*n, 2)}, v{(vHI if st & 4 else vA3) + (F & 3)} "
                    f"offset:{(st & 3)*16384 + (n >> 1)*8192 + (F >> 2)*2048 + (n & 1)*1024}") for n in range(4)]
    fgl = f"buffer_load_dword v{vFG}, v{vFL}, s[{sT}:{sT+3}], s{s_c} offen sc1"
    tell = lambda prs: [Ins(f"buffer_store_dword v{vOne}, v{vZ}, s[{sT}:{sT+3}], s{s_sq4} offen sc1", rd=[f'HS{q}' for q in prs]),
                        Ins(f"s_add_u32 s{s_sq4}, s{s_sq4}, 0x40000")]
    check = lambda n: [Ins(f"wait v{vFG}"), Raw(spin(f"{name}_fpoll{n}", 1)), Ins(f"s_add_u32 s{s_c}, s{s_c}, 0x40000")]

    W4B = lambda q, g: rr('a', WB4B + (q % NWR) * 8 + g * 4, 4)
    C0 = o.get('c0at', (5, 21))
    at = {o.get('t0at', (3, 5)): tell((0,)), o.get('l0at', (4, 29)): [Ins(fgl)],
          C0: [Raw("; @stamp 11")] + check(0) + [Raw("; @stamp 12")], o.get('t1at', (6, 5)): tell((1, 2, 3))}
    x01 = xld5(0) + xld5(1)
    cost = lambda x: 8 if x.kind == 'trans' else 0 if x.kind == 'vmem' else 4
    pend = []
    for pr in range(7):
        work = setup if pr == 0 else glu(pr - 1, False)
        side = dma5(pr - 1) if pr >= 1 else []
        if BT and pr == o.get('btat', 3): side.append(btouch())
        tot = sum(cost(x) for x in work)
        done, wi = 0, 0
        for ff in range(2):
            f = 2 * pr + ff
            if f == 0: order = [(t, k) for t in range(4) for k in (0, 1)] + [(t, k) for t in range(4) for k in (2, 3)]
            else: order = zz(f, 4, 4, ZZ)
            rds = [rd4(f + 1, n, 1, WB4B) for n in range(4)] if f + 1 < 14 else []
            rds += [rd4(f + 2, n, 0) for n in range(4)] if f + 2 < 14 else []
            for i, (t, k) in enumerate(order):
                p(mf16(AC4(f, t), W4(f, k) if k < 2 else W4B(f, k - 2), X4(0 if k < 2 else 2, t, k & 1)))
                if f == 13 and i == 0:
                    p("s_barrier", rd=['L5_0', 'L5_1', 'L5_2', 'L5_3'])
                    rds = rd5(0) + rd5(1)

                def xnext():
                    p.add(x01.pop(0))
                    if x01 and x01[0].kind == 'salu': p.add(x01.pop(0))
                if i % 2 == 0 and rds:
                    p.add(rds.pop(0))
                elif i == 15:
                    if f < 13: p(f"wait {W4(f+1, 0)}, {W4(f+1, 1)}, {W4B(f+1, 0)}, {W4B(f+1, 1)}")
                elif (pr, ff * 16 + i) in at:
                    p.add(at[pr, ff * 16 + i])
                elif pend and i % 2:
                    p.add(pend.pop(0))
                    if pr >= 5 and pend and pend[0].kind == 'salu': p.add(pend.pop(0))
                elif x01 and (pr, ff * 16 + i) > C0 and (len(x01) > 10 or not side):
                    xnext()
                elif side and (i % 2 or pr == 6):
                    p.add(side.pop(0))
                    if pr >= 5 and side and side[0].kind == 'salu': p.add(side.pop(0))
                gap = ff * 16 + i + 1
                while wi < len(work) and done + cost(work[wi]) / 2 <= tot * gap / 32:
                    if work[wi].kind == 'vmem' or (pr and work[wi].kind == 'salu'): pend.append(work[wi])
                    else: p.add(work[wi])
                    done += cost(work[wi]); wi += 1
        assert wi == len(work) and (not side or pr == 6)
    carry = pend + side + x01

    p.add(Raw("; @stamp 13"))
    STG = 131072
    vL, vG, vXF = 30, 15, 26
    s_ro, s_fl, s_xs, s_fy, s_fb = 66, 67, 72, 70, 71
    SQ5 = 32
    bg = []
    p.cur = bg
    for i in range(4):
        p(f"v_xor_b32 v{vHI+i}, 0x10000, v{vA3+i}")
    p(f"""
    s_lshl_b32 s{s_of}, s{s_tok}, 6
    s_add_u32 s{s_of}, s{s_of}, {ST_SSQ}
    s_lshl_b32 s{s_t0}, s{s_b}, 4
    s_add_u32 s{s_t0}, s{s_t0}, s{s_j}
    s_lshl_b32 s{s_xs}, s{s_t0}, 2
    s_add_u32 s{s_xs}, s{s_xs}, s{s_w}
    s_lshl_b32 s{s_fl}, s{s_xs}, 7
    v_and_b32 v{vt+2}, 1, v0
    v_lshlrev_b32 v{vt+2}, 15, v{vt+2}
    v_xor_b32 v{vt+2}, {8 << 9}, v{vt+2}
    v_xor_b32 v{vXF}, s{s_fl}, v{vt+2}
    s_add_u32 s{s_fy}, s{s_fl}, {ST_FY}
    s_add_u32 s{s_fl}, s{s_fl}, {ST_FX}
    s_mov_b32 s{s_fb}, {ST_FY}
    s_lshl_b32 s{s_xs}, s{s_xs}, 14
    s_add_u32 s{s_nb+4}, s{s_xs}, 4096
    s_mul_i32 s{s_t0}, s{s_w}, 4608
    s_add_u32 s{s_t0}, s{s_t0}, {STG}
    v_and_b32 v{vt+2}, 15, v0
    v_mul_u32_u24 v{vt+2}, 144, v{vt+2}
    v_lshrrev_b32 v{vt+3}, 4, v0
    v_lshl_add_u32 v{vt+2}, v{vt+3}, 3, v{vt+2}
    v_add_u32 v{vL}, s{s_t0}, v{vt+2}
    v_lshrrev_b32 v{vt+2}, 3, v0
    v_and_b32 v{vt+3}, 7, v0
    v_lshlrev_b32 v{vt+3}, 4, v{vt+3}
    v_lshl_add_u32 v{vG}, v{vt+2}, 11, v{vt+3}
    v_mul_u32_u24 v{vt+2}, 144, v{vt+2}
    v_add3_u32 v{vL+1}, v{vt+2}, v{vt+3}, s{s_t0}
    s_lshl_b32 s{s_ro}, s{s_tok}, 11
    s_lshl_b32 s{s_t2}, s{s_j}, 7
    s_add_u32 s{s_ro}, s{s_ro}, s{s_t2}
    s_add_u32 s0, s{s_xs}, 4096
    s_add_u32 s1, s{s_xs}, 8192
    s_add_u32 s14, s{s_xs}, 12288
    s_xor_b32 s15, s0, {8 << 16}
    s_xor_b32 s74, s1, {64 << 16}
    s_xor_b32 s75, s14, {72 << 16}
    s_mov_b32 s{s_t1}, {f32hex(1.0/1024)}
    v_mov_b32 v{vt+4}, {f32hex(1e-5)}
    """.replace(f"    s_add_u32 s{s_nb+4}, s{s_xs}, 4096\n", ""))
    srd(p, sA, pOUT, S * D * 2)
    for t in range(2):
        for F in range(4):
            e = aHR + (t * 2 + (F >> 1)) * 4 + (F & 1) * 2
            k = vHF + (F * 2 + t) * 4
            p(f"""
            v_accvgpr_read_b32 v{k+1}, a{e}
            v_accvgpr_read_b32 v{k+3}, a{e+1}
            v_lshlrev_b32 v{k}, 16, v{k+1}
            v_lshlrev_b32 v{k+2}, 16, v{k+3}
            v_and_b32 v{k+1}, 0xffff0000, v{k+1}
            v_and_b32 v{k+3}, 0xffff0000, v{k+3}""")
    bg2 = []
    p.cur = bg2
    for t in range(2):
        p(f"""
        v_add_f32 v{SQ5+t}, v{SQ5+t}, v{SQ5+2+t}
        v_add_f32 v{SQ5+4+t}, v{SQ5+4+t}, v{SQ5+6+t}
        v_add_f32 v{vS+t}, v{SQ5+t}, v{SQ5+4+t}""")
        xsum16_32(p, f"v{vS+t}", f"v{vt}")
        p(f"v_fma_f32 v{vS+t}, v{vS+t}, s{s_t1}, v{vt+4}\nv_rsq_f32 v{vS+t}, v{vS+t}")
    p.cur = main_cur
    sXQ = {1: 0, 2: 1, 3: 14}
    assert NT in (4, 5, 6)
    sql = [Ins(f"buffer_load_dwordx2 {rr('v', SQ5 + 2*i, 2)}, v{vPT}, s[{sT}:{sT+3}], s{s_of} offen offset:{i*128} sc1") for i in range(4)]
    X_ = {st: xld5(st) for st in range(2, 14)}
    X_[1] = [x for x in x01]
    plan = {0: carry + dma5(6) + [Ins(fgl)] + dma5(7) + [check(1)] + X_[2][:5], 1: X_[2][5:] + X_[3] + X_[4][:5],
            2: tell((4, 5, 6)) + X_[4][5:] + X_[5], 3: dma5(8) + dma5(9) + X_[6], 4: [Ins(fgl)] + X_[7] + [check(2)] + X_[8],
            5: dma5(10) + dma5(11) + X_[9], 6: X_[10] + X_[11], 7: dma5(12) + dma5(13) + X_[12], 8: X_[13]}
    bar_at = {2: [4, 5, 6, 7], 4: [], 6: [8, 9, 10, 11], 9: [12, 13]}
    g6 = glu(6, False)
    g6tot, g6done = sum(cost(x) for x in g6), 0
    start = {}
    for k, u_ in enumerate(units[:kB]): start.setdefault(u_[0], k)
    kstart = {k: st for st, k in start.items() if st < 12}
    kbar = {start[st + 1] - 2: v for st, v in bar_at.items()}
    RX = AC5 + 32
    rxl = lambda F, r: Ins(f"buffer_load_dwordx4 {rr('v', AC5 + r*32 + F*8, 4)}, v{vL16}, s[{sC}:{sC+3}], s{(15, 74, 75)[r-1]} offen offset:{F*1024} sc1")
    fyl = f"buffer_load_dword v{vFG}, v{vXF}, s[{sT}:{sT+3}], s{s_fb} offen sc1"
    ev = {}
    YL = o.get('yl', [(3, (0, 1), 19, 30), (21, (2, 3), 36, 43)])
    for n, (kt_, Fs, kl, kc) in enumerate(YL):
        ev.setdefault(kB + kt_, []).extend(
            [Ins(f"buffer_store_dword v{vOne}, v{vZ}, s[{sT}:{sT+3}], s{s_fy} offen sc1", rd=[f'XS{r}_{F}' for F in Fs for r in (1, 3)]),
             Ins(f"s_add_u32 s{s_fy}, s{s_fy}, 0x40000")])
        ev.setdefault(kB + kl, []).append(Ins(fyl))
        ev.setdefault(kB + kc, []).extend(
            [[Ins(f"wait v{vFG}"), Raw(spin(f"{name}_ypoll{n}", 1, fyl)), Ins(f"s_add_u32 s{s_fb}, s{s_fb}, 0x40000")]] +
            [rxl(F, r) for F in Fs for r in (1, 3)])
    ev.setdefault(kC + o.get('kfb', 18), []).extend(
        [Ins(f"buffer_store_dword v{vOne}, v{vZ}, s[{sT}:{sT+3}], s{s_fl} offen sc1", rd=[f'XS2_{F}' for F in range(4)]),
         Ins(f"s_xor_b32 s{s_fl}, s{s_fl}, {64 << 9}")])
    side, seen, hold = [], set(), 0
    for k, (st, F, ts) in enumerate(units):
        if k in kstart:
            side += plan.get(st, [])
        assert all(x not in side for x in X_.get(st, [])[:-1])
        side += ev.get(k, [])
        if k == kB - 14: side += sql
        if k == kB + 8: bg += bg2
        if 'fine5' in dbg:
            mk = {start[3]: 3, start[4]: 4, start[8]: 5, kB: 6, kC: 7, kC + 8: 8, kC + 16: 9}
            if k in mk: p.add(Raw(f"; @stamp {mk[k]}"))
        rds = rd5(k + 2) if k + 2 < len(units) else []
        order = [(ts[t], G) for t, G in zz(k, len(ts), 2, ZZ)]
        for i, (t, G) in enumerate(order):
            c = None if (F, t) in seen else "0"
            seen.add((F, t))
            p(mf16(A5(F, t), rr('v', WB5 + (k % 4) * 8 + G * 4, 4), X5(st, t, G), c))
            if i == 0 and k in kbar:
                assert not any(f'L5_{x}' in getattr(y, 'awr', ()) for x in kbar[k] for y in side)
                p("s_barrier", rd=[f'L5_{x}' for x in kbar[k]])
            used = False
            if rds and (i % 2 == 0 or len(ts) == 2):
                p.add(rds.pop(0))
            if i == len(order) - 1:
                if k + 1 < len(units):
                    n_ = units[k + 1]
                    p(f"wait {rr('v', WB5 + ((k + 1) % 4) * 8, 8)}, " + ", ".join(X5(n_[0], t_, G_) for t_ in n_[2] for G_ in range(2)))
            if side and i % 2 == 1 and (getattr(side[0], 'kind', '') == 'vmem') == (i % 4 == 1):
                p.add(side.pop(0)); used = True
                while side and i % 4 == 3 and getattr(side[0], 'kind', '') == 'salu': p.add(side.pop(0))
            while g6 and g6done + cost(g6[0]) / 2 <= g6tot * (k * 8 + i + 1) / 62:
                x = g6.pop(0); g6done += cost(x)
                if x.kind == 'vmem': side.insert(0, x)
                elif x.kind != 'salu': p.add(x)
            if bg and not used and k >= 9:
                x = bg.pop(0)
                if x.kind == 'vmem': side.append(x)
                else: p.add(x)
        if st == 13:
            for tp in sorted({t >> 1 for t in ts}):
                r = (F >> 2) + 2 * tp
                if r:
                    a = AC5 + r * 32 + (F & 3) * 8
                    bg += [Ins("wait v0") for _ in range(3 if not bg else 0)]
                    bg += [Ins(f"v_cvt_pk_bf16_f32 v{a+q}, v{a+2*q}, v{a+2*q+1}") for q in range(4)]
                    bg.append(Ins(f"buffer_store_dwordx4 {rr('v', a, 4)}, v{vL16}, s[{sC}:{sC+3}], s{sXQ[r]} offen offset:{(F & 3)*1024} sc1",
                                  awr=[f'XS{r}_{F & 3}'], nowaw=True))
    assert not bg
    p.add(Raw("; @stamp 14"))
    p.add(side + ev.get(len(units), []))
    fxl = f"buffer_load_dword v{vFG}, v{vt+1}, s[{sT}:{sT+3}], s{s_fl} offen sc1"
    p(f"v_mov_b32 v{vt+1}, 0")
    p(fxl)
    sels = ("op_sel_hi:[1,0,1]", "op_sel:[0,1,0]")
    RU = 40

    def add_rx(F, r):
        for q in range(4):
            e, a, k = AC5 + r * 32 + F * 8 + q, RU + ((r * 4 + q) % 8) * 2, vHF + F * 8 + 2 * q
            p(f"v_lshlrev_b32 v{a}, 16, v{e}\nv_and_b32 v{a+1}, 0xffff0000, v{e}")
            p(f"v_pk_fma_f32 {rr('v', k, 2)}, {rr('v', a, 2)}, {rr('v', vS, 2)}, {rr('v', k, 2)} {sels[q >> 1]}")
    for i in range(0, 32, 2):
        p(f"v_pk_fma_f32 {rr('v', vHF+i, 2)}, {rr('v', AC5+i, 2)}, {rr('v', vS, 2)}, {rr('v', vHF+i, 2)} {sels[(i >> 2) & 1]}")
    for F in range(2):
        add_rx(F, 1); add_rx(F, 3)
    if 'tail' in dbg: p.add(Raw("; @stamp 0"))
    p(f"wait v{vFG}")
    p.add(Raw(spin(f"{name}_xpoll", 1, fxl)))
    p.add([rxl(F, 2) for F in range(4)])
    if 'tail' in dbg: p.add(Raw("; @stamp 1"))
    for F in range(2, 4):
        add_rx(F, 1); add_rx(F, 3)
    for F in range(4):
        add_rx(F, 2)
        for t in range(2):
            k = vHF + (F * 2 + t) * 4
            p(f"v_cvt_pk_bf16_f32 v{k}, v{k}, v{k+1}\nv_cvt_pk_bf16_f32 v{k+1}, v{k+2}, v{k+3}")
            p(f"ds_write_b64 v{vL}, v[{k}:{k+1}] offset:{t*16*144 + F*32}")
    for n in range(4):
        p(f"ds_read_b128 {rr('v', 128 + n*4, 4)}, v{vL+1} offset:{n*8*144}")
    if 'tail' in dbg: p.add(Raw("; @stamp 2"))
    for n in range(4):
        p(f"buffer_store_dwordx4 {rr('v', 128 + n*4, 4)}, v{vG}, s[{sA}:{sA+3}], s{s_ro} offen")
        if n < 3: p(f"s_add_u32 s{s_ro}, s{s_ro}, {8 * 2048}")
    p(f"{name}_end:")
    p("s_endpgm")
    p.add(outl)

    z = 48
    rgl = f"buffer_load_dwordx2 v[{z+4}:{z+5}], v{z+6}, s[{sT}:{sT+3}], s{s_fo} offen sc1"
    p.add(Raw(f"""{name}_rsx:
    s_cmp_eq_u32 s{s_cnt}, 2
    s_cbranch_scc1 {name}_rs5
    {mf16(rr('v', z, 4), on, rr('v', vRS, 4), "0")}
    {mf16(rr('v', z, 4), on, rr('v', vRS + 4, 4))}
    s_lshl_b32 s{s_t0}, s{s_fo}, 3
    s_add_u32 s{s_t0}, s{s_t0}, {ST_RS2}
    s_lshl_b32 s{s_fo}, s{s_j}, 9
    s_add_u32 s{s_fo}, s{s_fo}, {ST_RS2}
    v_lshlrev_b32 v{z+6}, 3, v0
    s_mov_b32 s{s_spin}, {SPIN}
    s_nop 2
""" + "".join(f"    v_add_f32_dpp v{z}, v{z}, v{z} row_ror:{k} row_mask:0xf bank_mask:0xf\n    s_nop 1\n" for k in (8, 4, 2, 1)) + f"""    v_mov_b32 v{z+1}, 1
    buffer_store_dwordx2 v[{z}:{z+1}], v{vZ}, s[{sT}:{sT+3}], s{s_t0} offen sc1
    s_branch {name}_rsxback
{name}_rs5:
    {rgl}
    s_lshl_b32 s{s_t0}, s{s_w}, 13
    s_add_u32 m0, s{s_t0}, {XT}
    s_add_u32 s{s_t0}, s{s_t0}, {XT + 4096}
    s_lshl_b32 s{s_t1}, s{s_j}, 7
    v_lshl_add_u32 v{z}, v0, 2, s{s_t0}
    v_xor_b32 v{z+1}, 32, v{vXA}
    v_xor_b32 v{z+2}, 64, v{vXA}
    v_xor_b32 v{z+3}, 0x60, v{vXA}
    v_xor_b32 v{z+7}, 128, v{vRA}
""" + "".join(f"    buffer_load_dwordx4 v{vD+i}, s[{sC}:{sC+3}], s{s_t1} offen offset:{i*1024} lds\n" for i in range(4)) +
              (code_touch(f"{name}_ct3", f"{name}_fin", f"{name}_tail4", 1, z + 7, vDum) if o.get('ipf3', False) else "") + f"""    s_branch {name}_rsxback
{name}_rspoll:
    s_sub_u32 s{s_spin}, s{s_spin}, 1
    s_cbranch_scc1 {name}_rsgo
    {rgl}
    s_waitcnt vmcnt(0)
    v_cmp_ne_u32 vcc, 1, v{z+5}
    s_nop 0
    s_cbranch_vccnz {name}_rspoll
    s_branch {name}_rsgo"""))

    slow = p.segment()
    p(f"{name}_slow:")
    p.fence()
    for x in range(2):
        p(f"v_mov_b32 v{Nb(x)}, 0xff800000")
    p(f"s_mov_b32 s{s_ko}, 0\ns_mov_b32 s{sA+2}, {KV[1]}")
    p.begin_loop(f"{name}_max_loop", 64, align=False)
    p.add([kld(0, 0), kld(0, 1)])
    for x in range(2):
        p(mf32(rr('v', Sb(x), 16), Kf(0, 0), Q(x, 0), "0"))
        p(mf32(rr('v', Sb(x), 16), Kf(0, 1), Q(x, 1)))
    for x in range(2):
        for i in range(0, 16, 2):
            p(f"v_max3_f32 v{Nb(x)}, v{Nb(x)}, v{Sb(x)+i}, v{Sb(x)+i+1}")
    p(f"""
    s_add_u32 s{s_ko}, s{s_ko}, 4096
    s_cmp_lg_u32 s{s_ko}, {64 * 4096}
    s_cbranch_scc1 {name}_max_loop""")
    p.end_loop()
    for x in range(2):
        p(f"""
        v_mov_b32 v{vt}, v{Nb(x)}
        v_permlane32_swap_b32 v{Nb(x)}, v{vt}
        v_max_f32 v{Nb(x)}, v{Nb(x)}, v{vt}
        v_sub_f32 v{Nb(x)}, 0, v{Nb(x)}""")
        for i in range(1, 16):
            p(f"v_mov_b32 v{Nb(x)+i}, v{Nb(x)}")
    p(f"s_mov_b32 s{sA+2}, {KV[1]}")
    fill_kv()
    att_init(NR)
    p(f"s_mov_b32 s{s_safe}, 1")
    attention('safe', lambda y: rr('v', Nb(y), 16), False, [Ins("s_nop 11")])
    p.fence()
    p(f"s_branch {name}_fin")
    p.paths = [[main, red_w, rest], [main, fin, fin_k, rest], [main, fin, fin_v, rest], [slow]]
    return p
```

```python
import sys, re
sys.path.insert(0, 'dev')
from common import *
import fused

NAME = 'sequential_preLN__grouped_kv_mqa__glu_gated_glu__prompt'
HDR = open(f'cdna_kernels/{NAME}.s.ref').read().split('; Override launch')[0]
STAMP = (0x4000000, 0x100000)

DOC = """;
"""
PHASES = {0: "P0: fragments from LDS, MFMAs, reduction over the waves", 1: "P1", 2: "P2: q epilogue and exchange", 4: "P2: epilogue",
          6: "P3", 7: "P3: epilogue", 9: "P4", 10: "P4: last two stages with the GLU underneath", 13: "P5", 14: "P5: epilogue"}


def add_stamps(c, d, n, dbgout=False, amp=None):
    c = c.replace(f"{n}:\n", f"{n}:\n    s_memrealtime s[96:97]\n    s_memtime s[94:95]\n", 1)
    tail = f"""    s_waitcnt vmcnt(0)
    s_memrealtime s[98:99]
    s_memtime s[100:101]
    s_add_u32 s28, s26, {STAMP[0]}
    s_addc_u32 s29, s27, 0
    s_mov_b32 s30, 0x100000
    s_mov_b32 s31, 0x20000
    s_waitcnt lgkmcnt(0)
    s_mov_b64 exec, 1
    s_lshl_b32 s56, s2, 2
    s_add_u32 s56, s56, s52
    s_lshl_b32 s56, s56, 7
    s_sub_u32 s93, s100, s94
    s_mov_b32 s92, s98
    s_mov_b32 s91, s96
    v_mov_b32 v0, 0
"""
    for q in range(5):
        tail += "".join(f"    v_mov_b32 v{4+4*q+i}, s{76+4*q+i}\n" for i in range(4))
        tail += f"    buffer_store_dwordx4 v[{4+4*q}:{7+4*q}], v0, s[28:31], s56 offen offset:{16*q}\n"
    if amp:
        a, b, k = amp
        tail += f"    s_sub_u32 s57, s{76+b}, s{76+a}\n    s_mul_i32 s57, s57, {k}\n    s_min_u32 s57, s57, 100000\nF_amp:\n    s_memrealtime s[98:99]\n    s_waitcnt lgkmcnt(0)\n    s_sub_u32 s58, s98, s92\n    s_cmp_lt_u32 s58, s57\n    s_cbranch_scc1 F_amp\n"
    if dbgout:
        tail += "    s_mov_b64 s[28:29], s[24:25]\n    s_mov_b32 s30, 64\n    s_mov_b32 s90, s92\n"
        for i in range(15):
            tail += f"    s_sub_u32 s57, s{76+i}, s91\n    v_mov_b32 v4, s57\n    buffer_store_dword v4, v0, s[28:31], s56 offen offset:{4+4*i}\n"
    c = c.replace("F_end:\n", tail + "F_end:\n", 1)
    c = re.sub(r"; @stamp (\d+)", lambda m: f"    s_memrealtime s[98:99]\n    s_waitcnt lgkmcnt(0)\n    s_mov_b32 s{76+int(m.group(1))}, s98", c)
    d = re.sub(r"next_free_sgpr \d+", "next_free_sgpr 102", d)
    return c, d

def build(o):
    n = NAME + '_kernel'
    pr = fused.gen_fused('F', o)
    txt = HDR + f"; @launch grid=(256,1,1) block=(256,1,1) lds={fused.LDS_TOTAL}\n"
    txt += DOC
    txt += '.amdgcn_target "amdgcn-amd-amdhsa--gfx950"\n.text\n'
    c, d = kernel_text(n, pr)
    if o.get('fine'):
        c = re.sub(r"; @stamp ([4-9]|1\d)\n", "", c).replace("; @fine", "; @stamp")
    else:
        c = re.sub(r"; @fine \d+\n", "", c)
    if o.get('idle'):
        k, n = o['idle']
        c = c.replace(f"; @stamp {k}\n", f"; @stamp {k}\n    s_sleep {n}\n")
    if o.get('trips'):
        c = re.sub(r"; @stamp ([4-9]|1[0-4])\n", "", c)
        sh = "    s_memtime s[98:99]\n" + "".join(f"    s_mov_b32 s{76+k}, s{77+k}\n" for k in range(4, 12)) + "    s_waitcnt lgkmcnt(0)\n    s_mov_b32 s88, s98\n"
        c = c.replace("; @stamp 3\n", "; @stamp 3\n" + sh).replace("    s_cbranch_scc1 F_fast_loop\n", sh + "    s_cbranch_scc1 F_fast_loop\n")
    if o.get('trips4'):
        c = c.replace("; @stamp 9\n", "; @mark9\n")
        c = re.sub(r"; @stamp ([3-9]|1[0-4])\n", "", c)
        sh = "    s_memtime s[98:99]\n" + "".join(f"    s_mov_b32 s{76+k}, s{77+k}\n" for k in range(4, 12)) + "    s_waitcnt lgkmcnt(0)\n    s_mov_b32 s88, s98\n"
        c = c.replace("; @mark9\n", sh).replace(".p2align 6\nF_p4loop:", sh + ".p2align 6\nF_p4loop:").replace("    s_cbranch_scc1 F_p4loop\n", sh + "    s_cbranch_scc1 F_p4loop\n")
    if o.get('both'):
        a, b = o['both']
        c = re.sub(r"; @stamp [01]\n", "", c)
        c = c.replace(f"; @stamp {a}\n", f"; @stamp {a}\n    s_memtime s[98:99]\n    s_waitcnt lgkmcnt(0)\n    s_mov_b32 s76, s98\n")
        c = c.replace(f"; @stamp {b}\n", f"; @stamp {b}\n    s_memtime s[98:99]\n    s_waitcnt lgkmcnt(0)\n    s_mov_b32 s77, s98\n")
    if o.get('stamp'):
        c, d = add_stamps(c, d, n, o.get('dbgout'), o.get('amp'))
        if o.get('cyc'):
            c = c.replace('s_memrealtime', 's_memtime')
    else:
        c = re.sub(r"; @stamp (\d+)\n", lambda m: f"; ---- {PHASES[int(m.group(1))]} ----\n" if int(m.group(1)) in PHASES else "", c)
    return txt + c + '.section .rodata,"a"\n.p2align 6\n' + d

if __name__ == '__main__':
    out = sys.argv[1] if len(sys.argv) > 1 else f'cdna_kernels/{NAME}.s'
    opts = eval(sys.argv[2]) if len(sys.argv) > 2 else {}
    open(out, 'w').write(build(opts))
    print('wrote', out)
```
